```python
import torch

def _softmax(x, axis=-1):
    return torch.softmax(x, dim=axis)
def _gelu(x):
    return torch.nn.functional.gelu(x, approximate="tanh")
def _silu(x):
    return torch.nn.functional.silu(x)
def _sigmoid(x):
    return torch.sigmoid(x)
def _layernorm(x, axis=-1, eps=1e-5):
    m = x.mean(dim=axis, keepdim=True)
    v = x.var(dim=axis, keepdim=True, unbiased=False)
    return (x - m) / torch.sqrt(v + eps)
def _scatter_add(tgt, idx, src, axis=0):
    return tgt.clone().index_add_(axis, idx, src)
def _segment_sum(src, seg, n):
    out = torch.zeros((n,) + src.shape[1:], dtype=src.dtype)
    return out.index_add_(0, seg, src)
def _pad(x, pw):
    flat = tuple(v for pair in reversed(pw) for v in pair)
    return torch.nn.functional.pad(x, flat)

kernel_name = 'gather_scatter__mpnn_edge_mlp__graph'

def setup_inputs():

    _w = (lambda a: (lambda t: t.to(torch.bfloat16) if t.is_floating_point() else t)(torch.as_tensor(a)))
    N, deg, D, De = 25000, 32, 64, max(0, 1)
    E = N * deg
    return {
        "x": _w((lambda *s: torch.randn(*s, dtype=torch.bfloat16) * 0.05)(N, D)),
        "e_attr": _w((lambda *s: torch.randn(*s, dtype=torch.bfloat16) * 0.4)(E, De)),
        "src": _w((lambda lo, hi, *s: torch.randint(lo, hi, s))(0, N, E).to(torch.int64)),
        "dst": _w((lambda lo, hi, *s: torch.randint(lo, hi, s))(0, N, E).to(torch.int64)),
        "w_msg": _w((lambda *s: torch.randn(*s, dtype=torch.bfloat16) * 0.4)(2 * D + De, D)),
        "w_upd": _w((lambda *s: torch.randn(*s, dtype=torch.bfloat16) * 0.05)(2 * D, D)),
    }

def reference(x, e_attr, src, dst, w_msg, w_upd):
    N, D = x.shape
    m_in = torch.concatenate([x[src], x[dst], e_attr], axis=-1)
    msg = _silu(m_in @ w_msg)
    agg = _segment_sum(msg, dst, N)
    return _silu(torch.concatenate([x, agg], axis=-1) @ w_upd)
```

```python
import sys, struct, os
DEBUG = int(os.environ.get('DEBUG', '0'))

N = 25000; E = 800000
NB = 98
NBK = 256
CH = 3200
NCH = 250
WS_REC = 0
WS_TAB = 0x700000
WS_PT  = 0x800000
WS_WF  = 0xC00000
REC_BYTES = NCH*CH*8
TAB_BYTES = NCH*NBK*4
PT_BYTES  = (N+1)*128
WF_BYTES  = 3*8192
LOG2E = 1.4426950408889634
LN2 = 0.6931471805599453
def f32(x): return struct.unpack('<I', struct.pack('<f', x))[0]

class A:
    def __init__(s): s.l = []
    def __call__(s, t): s.l.append('    ' + t)
    def lab(s, t): s.l.append(t + ':')
    def c(s, t): s.l.append('    ; ' + t)
    def raw(s, t): s.l.append(t)

def srd(a, d, base, off, nbytes):
    if off:
        a(f's_add_u32 s{d}, s{base}, {hex(off)}')
        a(f's_addc_u32 s{d+1}, s{base+1}, 0')
    else:
        a(f's_mov_b32 s{d}, s{base}')
        a(f's_mov_b32 s{d+1}, s{base+1}')
    a(f's_mov_b32 s{d+2}, {hex(nbytes)}')
    a(f's_mov_b32 s{d+3}, 0x00020000')

def wave_scan(a, v):
    for sh in (1, 2, 4, 8):
        a('s_nop 1')
        a(f'v_add_u32_dpp v{v}, v{v}, v{v} row_shr:{sh} row_mask:0xf bank_mask:0xf bound_ctrl:0')
    a('s_nop 1')
    a(f'v_add_u32_dpp v{v}, v{v}, v{v} row_bcast:15 row_mask:0xa bank_mask:0xf')
    a('s_nop 1')
    a(f'v_add_u32_dpp v{v}, v{v}, v{v} row_bcast:31 row_mask:0xc bank_mask:0xf')

A_GEMM0 = NCH
A_NGEMM = 98
A_PREP0 = A_GEMM0 + A_NGEMM
A_GRID = A_PREP0 + 3
A_LDS = 2048 + CH*8

def kernel_a(a):
    a.raw('.globl mpnn_bin_kernel')
    a.raw('.p2align 8')
    a.raw('.type mpnn_bin_kernel,@function')
    a.lab('mpnn_bin_kernel')
    a('s_load_dwordx16 s[4:19], s[0:1], 0')
    a('s_load_dwordx2 s[20:21], s[0:1], 64')
    a(f's_cmp_ge_u32 s2, {A_GRID}')
    a('s_cbranch_scc1 A_done')
    a('v_lshrrev_b32 v1, 6, v0')
    a('s_nop 0')
    a('v_readfirstlane_b32 s3, v1')
    a('v_and_b32 v1, 63, v0')
    a(f's_cmp_ge_u32 s2, {A_PREP0}')
    a('s_cbranch_scc1 A_prep')
    a(f's_cmp_ge_u32 s2, {A_GEMM0}')
    a('s_cbranch_scc1 A_gemm')
    a('s_cmp_ge_u32 s3, 7')
    a('s_cbranch_scc1 A_done')
    a('v_cmp_gt_u32 vcc, 400, v0')
    a('s_and_b64 exec, exec, vcc')
    a('v_lshlrev_b32 v2, 2, v0')
    a('v_mov_b32 v3, 0')
    a('v_cmp_gt_u32 vcc, 256, v0')
    a('s_and_saveexec_b64 s[22:23], vcc')
    a('ds_write_b32 v2, v3')
    a('s_mov_b64 exec, s[22:23]')
    a('s_waitcnt lgkmcnt(0)')
    srd(a, 24, 10, 0, E*4)
    srd(a, 28, 8, 0, E*4)
    srd(a, 32, 6, 0, E*2)
    srd(a, 36, 20, WS_REC, REC_BYTES)
    srd(a, 40, 20, WS_TAB, TAB_BYTES)
    a(f's_mul_i32 s44, s2, {CH*4}')
    a(f's_mul_i32 s45, s2, {CH*2}')
    a('v_lshlrev_b32 v2, 5, v0')
    a('v_lshlrev_b32 v3, 4, v0')
    a('buffer_load_dwordx4 v[8:11], v2, s[24:27], s44 offen')
    a('buffer_load_dwordx4 v[12:15], v2, s[24:27], s44 offen offset:16')
    a('buffer_load_dwordx4 v[16:19], v2, s[28:31], s44 offen')
    a('buffer_load_dwordx4 v[20:23], v2, s[28:31], s44 offen offset:16')
    a('buffer_load_dwordx4 v[24:27], v3, s[32:35], s45 offen')
    a('s_mov_b32 s46, 42800')
    a('s_mov_b32 s47, -98')
    a('s_mov_b32 s48, 0xffff0000')
    a('v_mov_b32 v4, 1')
    a('s_barrier')
    a('s_waitcnt vmcnt(3)')
    for j in range(8):
        a(f'v_mul_u32_u24 v{28+j}, s46, v{8+j}')
        a(f'v_lshrrev_b32 v{28+j}, 22, v{28+j}')
        a(f'v_lshlrev_b32 v{28+j}, 2, v{28+j}')
        a(f'ds_add_rtn_u32 v{56+j}, v{28+j}, v4')
    for j in range(8):
        a(f'v_lshlrev_b32 v{8+j}, 2, v{8+j}')
        a(f'v_mad_i32_i24 v{41+2*j}, v{28+j}, s47, v{8+j}')
    a('s_waitcnt vmcnt(0)')
    for j in range(8):
        if j % 2 == 0:
            a(f'v_lshl_or_b32 v{40+2*j}, v{24+j//2}, 16, v{16+j}')
        else:
            a(f'v_and_or_b32 v{40+2*j}, v{24+j//2}, s48, v{16+j}')
    a('s_waitcnt lgkmcnt(0)')
    a('s_barrier')
    a('s_mov_b64 s[22:23], exec')
    a('s_mov_b64 exec, -1')
    a('v_lshlrev_b32 v5, 4, v1')
    a('ds_read_b128 v[8:11], v5')
    a('s_waitcnt lgkmcnt(0)')
    a('v_add_u32 v13, v8, v9')
    a('v_add_u32 v14, v13, v10')
    a('v_add_u32 v15, v14, v11')
    a('v_mov_b32 v16, v15')
    wave_scan(a, 16)
    a('v_sub_u32 v12, v16, v15')
    a('v_add_u32 v15, v12, v14')
    a('v_add_u32 v14, v12, v13')
    a('v_add_u32 v13, v12, v8')
    for k in range(4):
        a(f'v_lshl_or_b32 v{16+k}, v{8+k}, 16, v{12+k}')
    for k in range(4):
        a(f'v_lshlrev_b32 v{12+k}, 3, v{12+k}')
    a('ds_write_b128 v5, v[12:15] offset:1024')
    a('s_cmp_lg_u32 s3, 0')
    a('s_cbranch_scc1 A_notab')
    a('s_lshl_b32 s49, s2, 10')
    a('buffer_store_dwordx4 v[16:19], v5, s[40:43], s49 offen')
    a.lab('A_notab')
    a('s_mov_b64 exec, s[22:23]')
    a('s_waitcnt lgkmcnt(0)')
    for j in range(8):
        a(f'ds_read_b32 v{8+j}, v{28+j} offset:1024')
    for j in range(8):
        a(f's_waitcnt lgkmcnt({7-j})')
        a(f'v_lshl_add_u32 v{8+j}, v{56+j}, 3, v{8+j}')
    for j in range(8):
        a(f'ds_write_b64 v{8+j}, v[{40+2*j}:{41+2*j}] offset:2048')
    a('s_waitcnt lgkmcnt(0)')
    a('s_barrier')
    for j in range(4):
        a(f'ds_read_b128 v[{8+4*j}:{11+4*j}], v3 offset:{2048+6400*j}')
    a(f's_mul_i32 s49, s2, {CH*8}')
    for j in range(4):
        a(f's_waitcnt lgkmcnt({3-j})')
        a(f'buffer_store_dwordx4 v[{8+4*j}:{11+4*j}], v3, s[36:39], s49 offen')
        if j < 3:
            a(f's_add_u32 s49, s49, 6400')
    a('s_endpgm')

    a.lab('A_gemm')
    a(f's_sub_u32 s22, s2, {A_GEMM0}')
    a('s_lshl_b32 s22, s22, 3')
    a('s_add_u32 s22, s22, s3')
    a('s_cmp_ge_u32 s22, 782')
    a('s_cbranch_scc1 A_done')
    a('v_and_b32 v2, 31, v1')
    a('v_lshrrev_b32 v3, 5, v1')
    a('v_bfe_u32 v4, v2, 2, 1')
    a('v_lshlrev_b32 v4, 4, v4')
    a('v_and_b32 v5, 3, v2')
    a('v_add_u32 v4, v4, v5')
    a('v_lshrrev_b32 v5, 3, v2')
    a('v_lshl_add_u32 v4, v5, 2, v4')
    a('v_lshlrev_b32 v4, 2, v4')
    a('v_lshl_add_u32 v4, v3, 10, v4')
    a('v_add_u32 v5, 4096, v4')
    a('s_lshl_b32 s23, s22, 12')
    a('v_lshlrev_b32 v6, 7, v2')
    a('v_lshl_add_u32 v6, v3, 4, v6')
    a('v_add_u32 v6, s23, v6')
    a('v_lshlrev_b32 v7, 7, v2')
    a('v_lshl_add_u32 v7, v3, 6, v7')
    a('v_add_u32 v7, s23, v7')
    a('s_waitcnt lgkmcnt(0)')
    srd(a, 24, 4, 0, N*128)
    srd(a, 28, 12, 0, 129*128)
    srd(a, 32, 20, WS_PT, N*128)
    for ks in range(4):
        for j in range(8):
            base = 4 if ks < 2 else 5
            off = (16*(ks % 2) + j)*128
            a(f'buffer_load_dword v{16+8*ks+j}, v{base}, s[28:31], 0 offen offset:{off}')
    for ks in range(4):
        a(f'buffer_load_dwordx4 v[{48+4*ks}:{51+4*ks}], v6, s[24:27], 0 offen offset:{32*ks}')
    a('s_mov_b32 s36, 0x05040100')
    a('s_mov_b32 s37, 0x07060302')
    a(f's_mov_b32 s38, {hex(f32(-LOG2E))}')
    a('s_mov_b32 s39, 0x7fffffff')
    a('s_mov_b32 s40, 0x7fff0000')
    a('s_waitcnt vmcnt(4)')
    for ks in range(4):
        for jj in range(4):
            r0 = 16+8*ks+2*jj
            a(f'v_perm_b32 v{64+4*ks+jj}, v{r0+1}, v{r0}, s36')
            a(f'v_perm_b32 v{80+4*ks+jj}, v{r0+1}, v{r0}, s37')
    a('s_waitcnt vmcnt(0)')
    a('s_nop 1')
    for ks in range(4):
        c0 = '0' if ks == 0 else 'v[96:111]'
        c1 = '0' if ks == 0 else 'v[112:127]'
        a(f'v_mfma_f32_32x32x16_bf16 v[96:111], v[{64+4*ks}:{67+4*ks}], v[{48+4*ks}:{51+4*ks}], {c0}')
        a(f'v_mfma_f32_32x32x16_bf16 v[112:127], v[{80+4*ks}:{83+4*ks}], v[{48+4*ks}:{51+4*ks}], {c1}')
    a('s_nop 15')
    for r in range(16):
        a(f'v_mul_f32 v{96+r}, s38, v{96+r}')
    for r in range(16):
        a(f'v_mul_f32 v{112+r}, s38, v{112+r}')
    for r in range(0, 16, 2):
        a(f'v_cvt_pk_bf16_f32 v{16+r}, v{96+r}, v{97+r}')
    for r in range(0, 16, 2):
        a(f'v_lshrrev_b32 v{17+r}, 16, v{16+r}')
        a(f'v_and_b32 v{16+r}, 0xffff, v{16+r}')
    for r in range(16):
        a(f'v_and_b32 v{32+r}, s39, v{112+r}')
    for r in range(16):
        a(f'v_add_u32 v{32+r}, 0x8000, v{32+r}')
    for r in range(16):
        a(f'v_sub_u32 v{32+r}, v{32+r}, v{16+r} clamp')
    for r in range(16):
        a(f'v_and_or_b32 v{32+r}, v{32+r}, s40, v{16+r}')
    for r in range(16):
        a(f'v_bfi_b32 v{32+r}, s39, v{32+r}, v{112+r}')
    for i in range(4):
        a(f'buffer_store_dwordx4 v[{32+4*i}:{35+4*i}], v7, s[32:35], 0 offen offset:{16*i}')
    a('s_endpgm')

    a.lab('A_prep')
    a(f's_sub_u32 s22, s2, {A_PREP0}')
    a('s_lshr_b32 s23, s3, 2')
    a('s_and_b32 s24, s3, 3')
    a('v_and_b32 v2, 31, v1')
    a('v_lshrrev_b32 v3, 5, v1')
    a('v_bfe_u32 v4, v2, 2, 1')
    a('v_and_b32 v5, 3, v2')
    a('v_lshrrev_b32 v6, 3, v2')
    a('v_lshl_add_u32 v5, v6, 2, v5')
    a('s_waitcnt lgkmcnt(0)')
    srd(a, 32, 20, WS_WF, WF_BYTES)
    a('s_cmp_lg_u32 s22, 0')
    a('s_cbranch_scc1 A_prep_u')
    srd(a, 28, 12, 0, 129*128)
    a('v_lshrrev_b32 v6, 3, v5')
    a('v_lshl_add_u32 v6, v4, 2, v6')
    a('s_lshl_b32 s25, s23, 1')
    a('v_add_u32 v6, s25, v6')
    a('v_and_b32 v7, 7, v5')
    a('v_lshlrev_b32 v8, 1, v7')
    a('v_add_u32 v9, 1, v8')
    a('v_subrev_u32 v8, 8, v8')
    a('v_cmp_gt_u32 vcc, 4, v7')
    a('s_nop 1')
    a('v_cndmask_b32 v8, v8, v9, vcc')
    a('v_lshl_add_u32 v8, v6, 3, v8')
    a('v_lshlrev_b32 v8, 1, v8')
    a('v_lshl_add_u32 v8, v3, 10, v8')
    a('s_lshl_b32 s26, s24, 11')
    a('s_add_u32 s26, s26, 8192')
    for j in range(8):
        a(f'buffer_load_ushort v{32+j}, v8, s[28:31], s26 offen offset:{128*j}')
    srd(a, 36, 20, WS_PT + N*128, 128)
    a('v_mov_b32 v20, 0x71497149')
    a('v_mov_b32 v21, v20')
    a('v_mov_b32 v22, v20')
    a('v_mov_b32 v23, v20')
    a('v_lshlrev_b32 v24, 4, v0')
    a('buffer_store_dwordx4 v[20:23], v24, s[36:39], 0 offen')
    a('s_branch A_prep_st')
    a.lab('A_prep_u')
    srd(a, 28, 14, 0, 128*128)
    a('v_lshl_add_u32 v8, v4, 4, v5')
    a('s_lshl_b32 s25, s23, 5')
    a('v_add_u32 v8, s25, v8')
    a('v_lshlrev_b32 v8, 1, v8')
    a('s_cmp_lg_u32 s22, 1')
    a('s_cbranch_scc1 A_prep_agg')
    a('v_lshl_add_u32 v8, v3, 10, v8')
    a('s_lshl_b32 s26, s24, 11')
    for j in range(8):
        a(f'buffer_load_ushort v{32+j}, v8, s[28:31], s26 offen offset:{128*j}')
    a('s_branch A_prep_st')
    a.lab('A_prep_agg')
    a('v_lshl_add_u32 v8, v3, 12, v8')
    a('s_lshl_b32 s26, s24, 2')
    a('s_add_u32 s27, s26, 1')
    a('s_sub_u32 s26, s26, 8')
    a('s_cmp_lt_u32 s24, 2')
    a('s_cselect_b32 s26, s27, s26')
    a('s_add_u32 s26, s26, 64')
    a('s_lshl_b32 s26, s26, 7')
    for j in range(8):
        a(f'buffer_load_ushort v{32+j}, v8, s[28:31], s26 offen offset:{(j&3)*1024+(j>>2)*256}')
    a.lab('A_prep_st')
    a('s_lshl_b32 s25, s22, 13')
    a('v_lshlrev_b32 v9, 4, v0')
    a('s_waitcnt vmcnt(0)')
    for j in range(4):
        a(f'v_lshl_or_b32 v{16+j}, v{33+2*j}, 16, v{32+2*j}')
    a('buffer_store_dwordx4 v[16:19], v9, s[32:35], s25 offen')
    a.lab('A_done')
    a('s_endpgm')

RS = 288
L_CNT = 0
L_BASE = 512
L_MAX = 1024
L_PN = 1040
NPCAP = 2080
L_Q = L_PN + NPCAP*2
L_AGG = L_Q + NB*RS
L_REC = L_AGG + NB*RS*2
assert L_REC % 16 == 0 and L_Q % 16 == 0 and L_AGG % 16 == 0
B_LDS = L_REC + NPCAP*16

def stamp(a, i):
    if not DEBUG: return
    a('s_memtime s[92:93]')
    a('s_waitcnt lgkmcnt(0)')
    a(f'v_writelane_b32 v5, s92, {i}')

def kernel_b(a):
    a.raw('.globl mpnn_main_kernel')
    a.raw('.p2align 8')
    a.raw('.type mpnn_main_kernel,@function')
    a.lab('mpnn_main_kernel')
    a('s_load_dwordx16 s[64:79], s[0:1], 0')
    a('s_load_dwordx2 s[80:81], s[0:1], 64')
    a(f's_cmp_ge_u32 s2, {NBK}')
    a('s_cbranch_scc1 B_done')
    a('v_lshrrev_b32 v1, 6, v0')
    a('s_nop 0')
    a('v_readfirstlane_b32 s3, v1')
    a('v_and_b32 v1, 63, v0')
    a('v_and_b32 v3, 7, v0')
    a('v_lshlrev_b32 v2, 4, v3')
    a('v_lshlrev_b32 v3, 3, v3')
    a('v_lshrrev_b32 v4, 3, v0')
    a('v_lshlrev_b32 v5, 10, v4')
    a('s_lshl_b32 s32, s2, 2')
    a('s_add_u32 s33, s32, 0x20000')
    a('s_waitcnt lgkmcnt(0)')
    ws = 80
    srd(a, 4, ws, WS_TAB, TAB_BYTES)
    a('buffer_load_dword v6, v5, s[4:7], s32 offen')
    a('buffer_load_dword v7, v5, s[4:7], s33 offen')
    srd(a, 8, ws, WS_REC, REC_BYTES)
    srd(a, 12, ws, WS_PT, PT_BYTES)
    srd(a, 16, 64, 0, N*128)
    srd(a, 20, ws, WS_WF, WF_BYTES)
    srd(a, 24, 76, 0, N*128)
    srd(a, 28, 72, 0, 129*128)
    srd(a, 88, ws, 0xD00000, 256*131072)
    stamp(a, 0)
    a('s_and_b32 s34, s3, 1')
    a('s_bfe_u32 s35, s3, 0x20001')
    a('s_lshr_b32 s36, s3, 3')
    a(f's_mul_i32 s37, s2, {NB}')
    a('s_lshl_b32 s38, s35, 5')
    a('v_and_b32 v8, 31, v1')
    a('v_add_u32 v8, s38, v8')
    a('v_lshrrev_b32 v9, 5, v1')
    a('v_add_u32 v10, s37, v8')
    a('v_lshlrev_b32 v10, 7, v10')
    a('v_lshl_add_u32 v11, v9, 4, v10')
    for ks in range(4):
        a(f'buffer_load_dwordx4 v[{32+4*ks}:{35+4*ks}], v11, s[16:19], 0 offen offset:{32*ks}')
    a('s_lshl_b32 s39, s36, 13')
    a('s_lshl_b32 s40, s34, 12')
    a('s_add_u32 s39, s39, s40')
    a('v_lshlrev_b32 v11, 4, v1')
    for ks in range(4):
        a(f'buffer_load_dwordx4 v[{48+4*ks}:{51+4*ks}], v11, s[20:23], s39 offen offset:{1024*ks}')
    a('s_movk_i32 s41, 0x4000')
    a('buffer_load_dwordx4 v[64:67], v2, s[28:31], s41 offen')
    a('s_movk_i32 s42, 128')
    a('s_mov_b32 s43, 0xffff0000')
    a('s_mov_b32 s44, 1.0')
    a('s_mov_b32 s45, 1.0')
    a('s_mov_b32 s46, 0x3f80')
    a(f's_mov_b32 s47, {hex(f32(-LOG2E))}')
    a(f's_mov_b32 s48, {hex(f32(-LN2))}')
    a(f's_mov_b32 s49, {hex(f32(-LN2))}')
    a('s_mov_b32 s50, 0')
    a('v_lshlrev_b32 v12, 4, v0')
    a('v_mov_b32 v16, 0')
    a('v_mov_b32 v17, 0')
    a('v_mov_b32 v18, 0')
    a('v_mov_b32 v19, 0')
    a(f'v_add_u32 v13, {L_AGG}, v12')
    for j in range(3):
        a(f'ds_write_b128 v13, v[16:19] offset:{16384*j}')
    a(f'v_cmp_gt_u32 vcc, {NB*RS*2//16-3072}, v0')
    a('s_and_saveexec_b64 s[52:53], vcc')
    a(f'ds_write_b128 v13, v[16:19] offset:{49152}')
    a('s_mov_b64 exec, s[52:53]')
    a.lab('B_batch')
    a('v_mov_b32 v16, 0')
    a('v_mov_b32 v17, 0')
    a('v_mov_b32 v18, 0')
    a('v_mov_b32 v19, 0')
    a('v_lshlrev_b32 v12, 4, v0')
    a(f'v_cmp_gt_u32 vcc, {(L_Q-L_CNT)//16}, v0')
    a('s_and_saveexec_b64 s[52:53], vcc')
    a(f'ds_write_b128 v12, v[16:19] offset:{L_CNT}')
    a('s_mov_b64 exec, s[52:53]')
    a(f'v_mov_b32 v20, {N}')
    a('v_mov_b32 v21, v20')
    a('v_mov_b32 v22, v20')
    a('v_mov_b32 v23, v20')
    a(f'v_add_u32 v13, {L_REC}, v12')
    a('ds_write_b128 v13, v[20:23]')
    a('ds_write_b128 v13, v[20:23] offset:16384')
    a(f'v_cmp_gt_u32 vcc, {NPCAP-2048}, v0')
    a('s_and_saveexec_b64 s[52:53], vcc')
    a('ds_write_b128 v13, v[20:23] offset:32768')
    a('s_mov_b64 exec, s[52:53]')
    a('s_waitcnt lgkmcnt(0)')
    a('s_barrier')
    a('s_cmp_lg_u32 s50, 0')
    a('s_cbranch_scc1 B_tabready')
    a('s_waitcnt vmcnt(9)')
    a.lab('B_tabready')
    stamp(a, 1)
    a('v_and_b32 v14, 7, v0')
    a('v_lshlrev_b32 v14, 1, v14')
    a('v_add_u32 v14, s50, v14')
    a(f's_movk_i32 s51, {CH}')
    a('v_mul_u32_u24 v15, s51, v4')
    a('v_add_u32 v15, v15, v14')
    a(f'v_mov_b32 v24, {L_MAX}')
    for rd in range(2):
        T = 6+rd
        a(f'v_lshrrev_b32 v{20+rd}, 16, v{T}')
        a(f'v_and_b32 v{22+rd}, 0xffff, v{T}')
        a(f'v_add_u32 v{22+rd}, v{22+rd}, v15')
        if rd == 1:
            a(f'v_add_u32 v{22+rd}, {128*CH}, v{22+rd}')
        a(f'v_lshlrev_b32 v{22+rd}, 3, v{22+rd}')
        a(f'ds_max_u32 v24, v{20+rd}')
        a(f'v_sub_u32 v{20+rd}, v{20+rd}, v14')
    for rd in range(2):
        for ld in range(2):
            for e in range(2):
                s = rd*4+ld*2+e
                a(f'v_cmp_lt_i32 s[{52+2*s}:{53+2*s}], {ld*16+e}, v{20+rd}')
    a('v_mov_b32 v25, 0x7fffff00')
    a('s_nop 1')
    for rd in range(2):
        for ld in range(2):
            s = rd*4+ld*2
            r = 96+(rd*2+ld)*4
            a(f'v_cndmask_b32 v{26+rd*2+ld}, v25, v{22+rd}, s[{52+2*s}:{53+2*s}]')
            a(f'buffer_load_dwordx4 v[{r}:{r+3}], v{26+rd*2+ld}, s[8:11], 0 offen offset:{128*ld}')
    a('s_cmp_lg_u32 s50, 0')
    a('s_cbranch_scc1 B_nogemm')
    a('s_waitcnt vmcnt(4)')
    for ks in range(4):
        c = '0' if ks == 0 else 'v[112:127]'
        a(f'v_mfma_f32_32x32x16_bf16 v[112:127], v[{48+4*ks}:{51+4*ks}], v[{32+4*ks}:{35+4*ks}], {c}')
    for i in range(4):
        a(f'v_and_b32 v{68+i}, s43, v{64+i}')
        a(f'v_lshlrev_b32 v{72+i}, 16, v{64+i}')
    for i in range(8):
        a(f'v_mul_f32 v{68+i}, s47, v{68+i}')
    a('s_cmp_ge_u32 s3, 8')
    a('s_cbranch_scc1 B_nogemm')
    a(f's_movk_i32 s51, {RS}')
    a('v_mul_u32_u24 v16, s51, v8')
    a('v_lshl_add_u32 v16, v9, 6, v16')
    a('s_lshl_b32 s51, s34, 5')
    a('v_add_u32 v16, s51, v16')
    a(f'v_cmp_gt_u32 vcc, {NB}, v8')
    for r in range(16):
        a(f'v_mul_f32 v{112+r}, s47, v{112+r}')
    a('s_and_saveexec_b64 s[68:69], vcc')
    for o in range(2):
        a(f'ds_write_b128 v16, v[{112+8*o}:{115+8*o}] offset:{L_Q+16*o}')
        a(f'ds_write_b128 v16, v[{116+8*o}:{119+8*o}] offset:{L_Q+128+16*o}')
    a('s_mov_b64 exec, s[68:69]')
    a.lab('B_nogemm')
    a('v_mov_b32 v24, 1')
    for rd in range(2):
        for ld in range(2):
            a(f's_waitcnt vmcnt({3-(rd*2+ld)})')
            for e in range(2):
                s = rd*4+ld*2+e
                r = 96+(rd*2+ld)*4+2*e
                a(f's_mov_b64 exec, s[{52+2*s}:{53+2*s}]')
                a(f'ds_add_rtn_u32 v{32+s}, v{r+1}, v24 offset:{L_CNT}')
    a('s_mov_b64 exec, -1')
    a('s_waitcnt lgkmcnt(0)')
    a('s_barrier')
    stamp(a, 2)
    a('v_lshlrev_b32 v16, 3, v1')
    a(f'ds_read_b64 v[18:19], v16 offset:{L_CNT}')
    a(f'v_mov_b32 v24, {L_MAX}')
    a('ds_read_b32 v25, v24')
    a('s_waitcnt lgkmcnt(0)')
    a('v_add_u32 v18, 3, v18')
    a('v_add_u32 v19, 3, v19')
    a('v_lshrrev_b32 v18, 2, v18')
    a('v_lshrrev_b32 v19, 2, v19')
    a('v_add_u32 v20, v18, v19')
    a('v_mov_b32 v21, v20')
    wave_scan(a, 21)
    a('v_sub_u32 v22, v21, v20')
    a('v_add_u32 v23, v22, v18')
    a('v_lshlrev_b32 v22, 2, v22')
    a('v_lshlrev_b32 v23, 2, v23')
    a(f'ds_write_b64 v16, v[22:23] offset:{L_BASE}')
    a('v_readlane_b32 s70, v21, 63')
    a('v_readfirstlane_b32 s71, v25')
    a('s_waitcnt lgkmcnt(0)')
    for s in range(8):
        r = 96+(s//2)*4+2*(s % 2)
        a(f's_mov_b64 exec, s[{52+2*s}:{53+2*s}]')
        a(f'ds_read_b32 v{40+s}, v{r+1} offset:{L_BASE}')
    a('s_mov_b64 exec, -1')
    a('s_movk_i32 s51, 72')
    a(f'v_mov_b32 v24, {L_REC}')
    for s in range(8):
        r = 96+(s//2)*4+2*(s % 2)
        if s == 0: a('s_waitcnt lgkmcnt(0)')
        a(f'v_add_u32 v{40+s}, v{40+s}, v{32+s}')
        a(f'v_and_b32 v{32+s}, 3, v{32+s}')
        a(f'v_cmp_eq_u32 s[{72+2*s}:{73+2*s}], 0, v{32+s}')
        a(f'v_lshl_add_u32 v{32+s}, v{40+s}, 2, v24')
        a(f'v_lshrrev_b32 v{40+s}, 1, v{40+s}')
        a(f'v_mul_u32_u24 v{r+1}, s51, v{r+1}')
    for s in range(8):
        r = 96+(s//2)*4+2*(s % 2)
        a(f's_mov_b64 exec, s[{52+2*s}:{53+2*s}]')
        a(f'ds_write_b32 v{32+s}, v{r}')
        a(f's_and_b64 exec, exec, s[{72+2*s}:{73+2*s}]')
        a(f'ds_write_b16 v{40+s}, v{r+1} offset:{L_PN}')
    a('s_mov_b64 exec, -1')
    a('s_waitcnt lgkmcnt(0)')
    a('s_barrier')
    a('s_add_u32 s73, s70, 7')
    a('s_lshr_b32 s73, s73, 3')
    a('s_mov_b32 s72, s3')
    stamp(a, 3)
    a('s_cmp_ge_u32 s72, s73')
    a('s_cbranch_scc1 B_loop_end')
    a('v_lshrrev_b32 v13, 3, v1')
    a('s_lshl_b32 s51, s3, 3')
    a('v_add_u32 v13, s51, v13')
    a('v_lshlrev_b32 v12, 4, v13')
    a(f'v_add_u32 v12, {L_REC}, v12')
    a('v_lshlrev_b32 v13, 1, v13')
    RAW = [32, 48]; EE = [76, 80]; QQ = [84, 92]; AG = [14, 15]
    RC = 16; ND = 20; Z = 100; T = 24; ACC = 108 - 0
    ACC = 0
    def fetch(st):
        a(f'ds_read_b128 v[{RC}:{RC+3}], v12')
        a(f'ds_read_u16 v{ND}, v13 offset:{L_PN}')
        a('v_add_u32 v12, 2048, v12')
        a('v_add_u32 v13, 256, v13')
        a('s_waitcnt lgkmcnt(0)')
        for k in range(4):
            a(f'v_mad_u32_u16 v{21 if k%2==0 else 22}, v{RC+k}, s42, v2')
            a(f'buffer_load_dwordx4 v[{RAW[st]+4*k}:{RAW[st]+4*k+3}], v{21 if k%2==0 else 22}, s[12:15], 0 offen')
        a(f'v_add_u32 v23, v{ND}, v2')
        a(f'ds_read_b128 v[{QQ[st]}:{QQ[st]+3}], v23 offset:{L_Q}')
        a(f'ds_read_b128 v[{QQ[st]+4}:{QQ[st]+7}], v23 offset:{L_Q+128}')
        a(f'v_lshl_add_u32 v{AG[st]}, v{ND}, 1, v3')
        for k in range(4):
            a(f'v_and_b32 v{EE[st]+k}, s43, v{RC+k}')
    ACCR = 108
    accp = [108, 110, 64, 66]
    def compute(st, nwait):
        for k in range(4):
            R = RAW[st]+4*k; Q = QQ[st]
            ep = EE[st]+(k & ~1)
            sel = 'op_sel:[0,0,0] op_sel_hi:[0,1,1]' if k % 2 == 0 else 'op_sel:[1,0,0] op_sel_hi:[1,1,1]'
            for p in range(4):
                a(f'v_pk_fma_f32 v[{Z+2*p}:{Z+2*p+1}], v[{ep}:{ep+1}], v[{68+2*p}:{69+2*p}], v[{Q+2*p}:{Q+2*p+1}] {sel}')
            a(f's_waitcnt vmcnt({nwait+3-k})')
            for i in range(4):
                a(f'v_dot2_f32_bf16 v{Z+4+i}, v{R+i}, s46, v{Z+4+i}')
            a(f'v_pk_add_f32 v[{Z}:{Z+1}], v[{R}:{R+1}], v[{Z}:{Z+1}]')
            a(f'v_pk_add_f32 v[{Z+2}:{Z+3}], v[{R+2}:{R+3}], v[{Z+2}:{Z+3}]')
            for i in range(8):
                a(f'v_exp_f32 v{T+i}, v{Z+i}')
            for p in range(4):
                a(f'v_pk_add_f32 v[{T+2*p}:{T+2*p+1}], v[{T+2*p}:{T+2*p+1}], s[44:45]')
            for i in range(8):
                a(f'v_rcp_f32 v{T+i}, v{T+i}')
            for p in range(4):
                ac = accp[p]
                if k == 0:
                    a(f'v_pk_mul_f32 v[{ac}:{ac+1}], v[{Z+2*p}:{Z+2*p+1}], v[{T+2*p}:{T+2*p+1}]')
                else:
                    a(f'v_pk_fma_f32 v[{ac}:{ac+1}], v[{Z+2*p}:{Z+2*p+1}], v[{T+2*p}:{T+2*p+1}], v[{ac}:{ac+1}]')
        dd = [T, T+2, T+4, T+6, Z, Z+2, Z+4, Z+6]
        for i in range(8):
            ac = accp[i//2]+(i & 1)
            a(f'v_cvt_f64_f32 v[{dd[i]}:{dd[i]+1}], v{ac}')
        for i in range(8):
            a(f'ds_add_f64 v{AG[st]}, v[{dd[i]}:{dd[i]+1}] offset:{L_AGG+64*i}')
    fetch(0)
    a.lab('B_loop')
    for st in range(2):
        a('s_add_u32 s72, s72, 16')
        a('s_cmp_ge_u32 s72, s73')
        a(f's_cbranch_scc1 B_last{st}')
        fetch(1-st)
        a('s_waitcnt lgkmcnt(2)')
        compute(st, 4)
    a('s_branch B_loop')
    for st in range(2):
        a.lab(f'B_last{st}')
        a('s_waitcnt lgkmcnt(0)')
        compute(st, 0)
        if st == 0:
            a('s_branch B_loop_end')
    a.lab('B_loop_end')
    stamp(a, 4)
    a('s_waitcnt lgkmcnt(0)')
    a('s_barrier')
    stamp(a, 5)
    if DEBUG:
        a('s_lshl_b32 s51, s2, 17')
        a('v_lshlrev_b32 v12, 4, v0')
        a('v_mov_b32 v13, v12')
        for j in range(6):
            a(f'ds_read_b128 v[16:19], v13')
            a('s_waitcnt lgkmcnt(0)')
            a(f'buffer_store_dwordx4 v[16:19], v12, s[88:91], s51 offen')
            a('s_add_u32 s51, s51, 16384')
            a('v_add_u32 v13, 16384, v13')
            a('s_waitcnt vmcnt(0)')
        a('v_lshlrev_b32 v12, 2, v0')
        a('buffer_store_dword v5, v12, s[88:91], s51 offen')
        a('s_waitcnt vmcnt(0)')
    a('s_add_u32 s50, s50, 32')
    a('s_cmp_lt_u32 s50, s71')
    a('s_cbranch_scc1 B_batch')
    a('s_cmp_lt_u32 s3, 8')
    a('s_cbranch_scc1 B_done')
    a('s_lshl_b32 s39, s34, 12')
    a('s_add_u32 s39, s39, 16384')
    for ks in range(4):
        a(f'buffer_load_dwordx4 v[{48+4*ks}:{51+4*ks}], v11, s[20:23], s39 offen offset:{1024*ks}')
    a(f's_movk_i32 s51, {RS}')
    a('v_mul_u32_u24 v16, s51, v8')
    a('v_lshlrev_b32 v16, 1, v16')
    a('v_lshl_add_u32 v16, v9, 5, v16')
    for half in range(2):
        for ii in range(4):
            i = half*4+ii
            a(f'ds_read_b128 v[{64+8*ii}:{67+8*ii}], v16 offset:{L_AGG+64*i}')
            a(f'ds_read_b128 v[{68+8*ii}:{71+8*ii}], v16 offset:{L_AGG+64*i+16}')
        for ii in range(4):
            i = half*4+ii
            a(f's_waitcnt lgkmcnt({6-2*ii})')
            for q in range(4):
                a(f'v_cvt_f32_f64 v{96+q}, v[{64+8*ii+2*q}:{65+8*ii+2*q}]')
            a(f'v_pk_mul_f32 v[96:97], v[96:97], s[48:49]')
            a(f'v_pk_mul_f32 v[98:99], v[98:99], s[48:49]')
            a(f'v_cvt_pk_bf16_f32 v{32+2*i}, v96, v97')
            a(f'v_cvt_pk_bf16_f32 v{33+2*i}, v98, v99')
    a('s_waitcnt vmcnt(0)')
    a('s_nop 1')
    for ks in range(4):
        a(f'v_mfma_f32_32x32x16_bf16 v[112:127], v[{48+4*ks}:{51+4*ks}], v[{32+4*ks}:{35+4*ks}], v[112:127]')
    a('v_lshl_add_u32 v17, v9, 5, v10')
    a('s_lshl_b32 s51, s34, 6')
    a('v_add_u32 v17, s51, v17')
    a(f'v_cmp_gt_u32 vcc, {NB}, v8')
    a('s_nop 12')
    for r in range(16):
        a(f'v_mul_f32 v{64+r}, s47, v{112+r}')
    for r in range(16):
        a(f'v_exp_f32 v{64+r}, v{64+r}')
    for r in range(16):
        a(f'v_add_f32 v{64+r}, 1.0, v{64+r}')
    for r in range(16):
        a(f'v_rcp_f32 v{64+r}, v{64+r}')
    for r in range(16):
        a(f'v_mul_f32 v{64+r}, v{64+r}, v{112+r}')
    for r in range(0, 16, 2):
        a(f'v_cvt_pk_bf16_f32 v{32+r//2}, v{64+r}, v{65+r}')
    a('s_and_b64 exec, exec, vcc')
    a('buffer_store_dwordx4 v[32:35], v17, s[24:27], 0 offen')
    a('buffer_store_dwordx4 v[36:39], v17, s[24:27], 0 offen offset:16')
    a.lab('B_done')
    a('s_endpgm')

def kd(a, name, vgpr, sgpr):
    a.raw('.p2align 6')
    a.raw(f'.amdhsa_kernel {name}')
    a.raw(f'  .amdhsa_next_free_vgpr {vgpr}')
    a.raw(f'  .amdhsa_next_free_sgpr {sgpr}')
    a.raw(f'  .amdhsa_accum_offset {(vgpr+3)//4*4}')
    a.raw('  .amdhsa_group_segment_fixed_size 0')
    a.raw('  .amdhsa_kernarg_size 72')
    a.raw('  .amdhsa_user_sgpr_count 2')
    a.raw('  .amdhsa_user_sgpr_kernarg_segment_ptr 1')
    a.raw('  .amdhsa_system_sgpr_workgroup_id_x 1')
    a.raw('.end_amdhsa_kernel')

def main():
    ref = open('gather_scatter__mpnn_edge_mlp__graph.s.ref').read().splitlines()
    hdr = [l for l in ref if l.startswith(';') and '@launch' not in l and 'Override' not in l and 'grid=ceil' not in l]
    a = A()
    for l in hdr: a.raw(l)
    a.raw(f'; @launch kernel=mpnn_bin_kernel grid=({A_GRID},1,1) block=(512,1,1) lds={A_LDS}')
    a.raw(f'; @launch kernel=mpnn_main_kernel grid=({NBK},1,1) block=(1024,1,1) lds={B_LDS}')
    a.raw('.amdgcn_target "amdgcn-amd-amdhsa--gfx950"')
    a.raw('.text')
    kernel_a(a)
    kernel_b(a)
    a.raw('.section .rodata,"a"')
    kd(a, 'mpnn_bin_kernel', 128, 64)
    kd(a, 'mpnn_main_kernel', 128, 96)
    out = sys.argv[1] if len(sys.argv) > 1 else 'gather_scatter__mpnn_edge_mlp__graph.s'
    open(out, 'w').write('\n'.join(a.l) + '\n')

main()
```

```python
import sys, struct, os
DEBUG = int(os.environ.get('DEBUG', '0'))
PRIO = int(os.environ.get('PRIO', '1'))
FORCE_PLAIN = int(os.environ.get('FORCE_PLAIN', '0'))

N = 25000; E = 800000
NB = 98
NBK = 256
CH = 3200
NCH = 250
WS_REC = 0
WS_TAB = 0x700000
WS_PF  = 0x780000
WS_PT  = 0x800000
WS_WF  = 0xC00000
REC_BYTES = NCH*CH*8
TAB_BYTES = NCH*NBK*4
PF_BYTES  = 784*4
PT_BYTES  = (N+1)*128
WF_BYTES  = 3*8192
LOG2E = 1.4426950408889634
LN2 = 0.6931471805599453
LIM_P = 6.0; LIM_Q = 6.0; LIM_E_BF16 = 0x4090; LIM_W = 4.0
def f32(x): return struct.unpack('<I', struct.pack('<f', x))[0]

class A:
    def __init__(s): s.l = []
    def __call__(s, t): s.l.append('    ' + t)
    def lab(s, t): s.l.append(t + ':')
    def raw(s, t): s.l.append(t)

def srd(a, d, base, off, nbytes):
    if off:
        a(f's_add_u32 s{d}, s{base}, {hex(off)}')
        a(f's_addc_u32 s{d+1}, s{base+1}, 0')
    else:
        a(f's_mov_b32 s{d}, s{base}')
        a(f's_mov_b32 s{d+1}, s{base+1}')
    a(f's_mov_b32 s{d+2}, {hex(nbytes)}')
    a(f's_mov_b32 s{d+3}, 0x00020000')

PROF_OFF = 0x4000000
def stamp(a, i, vr=5, sr=92):
    if not DEBUG: return
    a(f's_memrealtime s[{sr}:{sr+1}]')
    a('s_waitcnt lgkmcnt(0)')
    a(f'v_writelane_b32 v{vr}, s{sr}, {i}')
def stampc(a, i, vr=5, sr=92):
    if not DEBUG: return
    a(f's_memtime s[{sr}:{sr+1}]')
    a('s_waitcnt lgkmcnt(0)')
    a(f'v_writelane_b32 v{vr}, s{sr}, {i}')
def stamp_out(a, kern, wsreg, vr=5, sr=92, tmp=6):
    if not DEBUG: return
    a('s_waitcnt vmcnt(0)')
    stamp(a, 15, vr, sr)
    a('s_mov_b64 exec, -1')
    srd(a, 96, wsreg, PROF_OFF + kern*0x400000, 0x400000)
    a(f's_lshl_b32 s{sr}, s2, 4')
    a(f's_add_u32 s{sr}, s{sr}, s3')
    a(f's_lshl_b32 s{sr}, s{sr}, 8')
    a(f'v_lshlrev_b32 v{tmp}, 2, v1')
    a(f'buffer_store_dword v{vr}, v{tmp}, s[96:99], s{sr} offen')

def wave_scan(a, v):
    for sh in (1, 2, 4, 8):
        a('s_nop 1')
        a(f'v_add_u32_dpp v{v}, v{v}, v{v} row_shr:{sh} row_mask:0xf bank_mask:0xf bound_ctrl:0')
    a('s_nop 1')
    a(f'v_add_u32_dpp v{v}, v{v}, v{v} row_bcast:15 row_mask:0xa bank_mask:0xf')
    a('s_nop 1')
    a(f'v_add_u32_dpp v{v}, v{v}, v{v} row_bcast:31 row_mask:0xc bank_mask:0xf')

def pr(r): return f'v[{r}:{r+1}]'
def q4(r): return f'v[{r}:{r+3}]'

A_PREP0 = NCH
A_GRID = NCH + 3
A_BLOCK = 704
A_LDS = 2048 + 64 + CH*8
A_STAGE = 2048 + 64
A_EFLAG = 2048
ST_A = os.environ.get('ST_A', '')

def kernel_a(a):
    a.raw('.globl mpnn_bin_kernel')
    a.raw('.p2align 8')
    a.raw('.type mpnn_bin_kernel,@function')
    a.lab('mpnn_bin_kernel')
    a('s_load_dwordx16 s[4:19], s[0:1], 0')
    a('s_load_dwordx2 s[20:21], s[0:1], 64')
    a(f's_cmp_ge_u32 s2, {A_GRID}')
    a('s_cbranch_scc1 A_done')
    a('v_lshrrev_b32 v1, 6, v0')
    a('v_lshlrev_b32 v3, 4, v0')
    a('v_readfirstlane_b32 s3, v1')
    a('v_and_b32 v1, 63, v0')
    a(f's_cmp_ge_u32 s2, {A_PREP0}')
    a('s_cbranch_scc1 A_prep')
    a('s_cmp_ge_u32 s3, 7')
    a('s_cbranch_scc1 A_gemm')
    a('v_cmp_gt_u32 vcc, 400, v0')
    a('s_and_b64 exec, exec, vcc')
    a('v_lshlrev_b32 v2, 3, v0')
    a(f's_mul_i32 s44, s2, {CH*4}')
    a(f's_mul_i32 s45, s2, {CH*2}')
    a(f's_add_u32 s50, s44, {CH*2}')
    a(f's_add_u32 s51, s45, {CH}')
    a('s_waitcnt lgkmcnt(0)')
    srd(a, 24, 10, 0, E*4)
    a('buffer_load_dwordx4 v[8:11], v3, s[24:27], s44 offen')
    a('buffer_load_dwordx4 v[12:15], v3, s[24:27], s50 offen')
    srd(a, 28, 8, 0, E*4)
    a('buffer_load_dwordx4 v[16:19], v3, s[28:31], s44 offen')
    a('buffer_load_dwordx4 v[20:23], v3, s[28:31], s50 offen')
    srd(a, 32, 6, 0, E*2)
    a('buffer_load_dwordx2 v[24:25], v2, s[32:35], s45 offen')
    a('buffer_load_dwordx2 v[26:27], v2, s[32:35], s51 offen')
    stamp(a, 0, 70)
    a('v_lshlrev_b32 v5, 2, v0')
    a('v_mov_b32 v4, 0')
    a('v_mov_b32 v6, 2048')
    a('v_cmp_gt_u32 vcc, 256, v0')
    a('s_nop 1')
    a('v_cndmask_b32 v5, v6, v5, vcc')
    a('ds_write_b32 v5, v4')
    srd(a, 36, 20, WS_REC, REC_BYTES)
    srd(a, 40, 20, WS_TAB, TAB_BYTES)
    a('s_mov_b32 s46, 42800')
    a('s_mov_b32 s47, -196')
    a('s_mov_b32 s48, 0xffff0000')
    a('s_mov_b32 s52, 0x7fff7fff')
    a('v_mov_b32 v4, 1')
    a('s_waitcnt lgkmcnt(0)')
    a('s_barrier')
    for hf in range(2):
        a(f's_waitcnt vmcnt({5-hf})')
        if hf == 0: stamp(a, 1, 70)
        for j in range(4*hf, 4*hf+4):
            a(f'v_mul_u32_u24 v{28+j}, s46, v{8+j}')
            a(f'v_lshrrev_b32 v{28+j}, 22, v{28+j}')
            a(f'v_lshlrev_b32 v{28+j}, 2, v{28+j}')
            a(f'ds_add_rtn_u32 v{56+j}, v{28+j}, v4')
    for j in range(8):
        a(f'v_lshlrev_b32 v{8+j}, 3, v{8+j}')
        a(f'v_mad_i32_i24 v{41+2*j}, v{28+j}, s47, v{8+j}')
    a('s_waitcnt vmcnt(0)')
    for j in range(8):
        if j % 2 == 0:
            a(f'v_lshl_or_b32 v{40+2*j}, v{24+j//2}, 16, v{16+j}')
        else:
            a(f'v_and_or_b32 v{40+2*j}, v{24+j//2}, s48, v{16+j}')
    for j in range(4):
        a(f'v_and_b32 v{24+j}, s52, v{24+j}')
    a('v_pk_max_u16 v24, v24, v25')
    a('v_pk_max_u16 v26, v26, v27')
    a('v_pk_max_u16 v24, v24, v26')
    a('v_lshrrev_b32 v25, 16, v24')
    a('v_and_b32 v24, 0xffff, v24')
    a('v_max_u32 v24, v24, v25')
    a(f'v_cmp_lt_u32 vcc, {hex(LIM_E_BF16)}, v24')
    a('s_and_saveexec_b64 s[22:23], vcc')
    a('s_cbranch_execz A_eok')
    a('v_mov_b32 v25, 0x80000000')
    a('ds_write_b32 v6, v25')
    a.lab('A_eok')
    a('s_mov_b64 exec, s[22:23]')
    a('s_waitcnt lgkmcnt(0)')
    a('s_barrier')
    stamp(a, 2, 70)
    a('s_mov_b64 exec, -1')
    a('v_lshlrev_b32 v5, 4, v1')
    a('ds_read_b128 v[8:11], v5')
    a('s_waitcnt lgkmcnt(0)')
    a('v_add_u32 v13, v8, v9')
    a('v_add_u32 v14, v13, v10')
    a('v_add_u32 v15, v14, v11')
    a('v_mov_b32 v16, v15')
    wave_scan(a, 16)
    a('v_sub_u32 v12, v16, v15')
    a('v_add_u32 v15, v12, v14')
    a('v_add_u32 v14, v12, v13')
    a('v_add_u32 v13, v12, v8')
    for k in range(4):
        a(f'v_lshlrev_b32 v{20+k}, 3, v{12+k}')
    a('ds_write_b128 v5, v[20:23] offset:1024')
    for k in range(4):
        a(f'v_lshl_or_b32 v{64+k}, v{8+k}, 16, v{12+k}')
    a('s_mov_b64 exec, s[22:23]')
    a('s_waitcnt lgkmcnt(0)')
    for j in range(8):
        a(f'ds_read_b32 v{8+j}, v{28+j} offset:1024')
    for j in range(8):
        a(f's_waitcnt lgkmcnt({7-j})')
        a(f'v_lshl_add_u32 v{8+j}, v{56+j}, 3, v{8+j}')
        a(f'ds_write_b64 v{8+j}, {pr(40+2*j)} offset:{A_STAGE}') if False else None
    stamp(a, 3, 70)
    for j in range(8):
        a(f'ds_write_b64 v{8+j}, {pr(40+2*j)} offset:{A_STAGE}')
    a('s_waitcnt lgkmcnt(0)')
    a('s_barrier')
    stamp(a, 4, 70)
    a('s_cmp_lg_u32 s3, 6')
    a('s_cbranch_scc1 A_notab')
    a('s_mov_b64 exec, -1')
    a('v_mov_b32 v6, 2048')
    a('ds_read_b32 v7, v6')
    a('s_lshl_b32 s49, s2, 10')
    a('s_waitcnt lgkmcnt(0)')
    for k in range(4):
        a(f'v_or_b32 v{64+k}, v{64+k}, v7')
    a(f'buffer_store_dwordx4 v[64:67], v5, s[40:43], s49 offen {ST_A}')
    a('s_mov_b64 exec, s[22:23]')
    a.lab('A_notab')
    for j in range(4):
        a(f'ds_read_b128 {q4(8+4*j)}, v3 offset:{A_STAGE+6400*j}')
    a(f's_mul_i32 s49, s2, {CH*8}')
    for j in range(4):
        a(f's_waitcnt lgkmcnt({3-j})')
        a(f'buffer_store_dwordx4 {q4(8+4*j)}, v3, s[36:39], s49 offen {ST_A}')
        if j < 3:
            a(f's_add_u32 s49, s49, 6400')
    stamp(a, 5, 70)
    stamp_out(a, 0, 20, 70)
    a('s_endpgm')

    a.lab('A_gemm')
    a('s_cmp_ge_u32 s2, 196')
    a('s_cbranch_scc1 A_done')
    a('s_lshl_b32 s22, s2, 2')
    a('s_add_u32 s22, s22, s3')
    a('s_sub_u32 s22, s22, 7')
    a('v_and_b32 v2, 31, v1')
    a('v_lshrrev_b32 v3, 5, v1')
    a('v_lshlrev_b32 v4, 2, v2')
    a('v_lshl_add_u32 v7, v3, 9, v4')
    a('v_lshl_add_u32 v4, v3, 10, v4')
    a('v_add_u32 v5, 4096, v4')
    a('s_lshl_b32 s23, s22, 12')
    a('v_lshlrev_b32 v6, 7, v2')
    a('v_lshl_add_u32 v6, v3, 4, v6')
    a('s_waitcnt lgkmcnt(0)')
    srd(a, 24, 4, 0, N*128)
    for ks in range(4):
        a(f'buffer_load_dwordx4 {q4(48+4*ks)}, v6, s[24:27], s23 offen offset:{32*ks}')
    srd(a, 28, 12, 0, 129*128)
    for ks in range(4):
        for j in range(8):
            base = 4 if ks < 2 else 5
            off = (16*(ks % 2) + j)*128
            a(f'buffer_load_dword v{16+8*ks+j}, v{base}, s[28:31], 0 offen offset:{off}')
    stamp(a, 0, 15)
    srd(a, 32, 20, WS_PT, N*128)
    a('s_mov_b32 s36, 0x05040100')
    a('s_mov_b32 s37, 0x07060302')
    a(f's_mov_b32 s38, {hex(f32(-LOG2E))}')
    a('s_mov_b32 s39, 0x7fffffff')
    a('s_mov_b32 s40, 0x7fff0000')
    a(f's_mov_b32 s41, {hex(f32(LIM_P))}')
    a('s_barrier')
    a('s_waitcnt vmcnt(0)')
    stamp(a, 1, 15)
    for ks in range(4):
        for jj in range(4):
            r0 = 16+8*ks+2*jj
            a(f'v_perm_b32 v{64+4*ks+jj}, v{r0+1}, v{r0}, s36')
            a(f'v_perm_b32 v{80+4*ks+jj}, v{r0+1}, v{r0}, s37')
    a('s_nop 1')
    for ks in range(4):
        c0 = '0' if ks == 0 else 'v[96:111]'
        c1 = '0' if ks == 0 else 'v[112:127]'
        a(f'v_mfma_f32_32x32x16_bf16 v[96:111], {q4(48+4*ks)}, {q4(64+4*ks)}, {c0}')
        a(f'v_mfma_f32_32x32x16_bf16 v[112:127], {q4(48+4*ks)}, {q4(80+4*ks)}, {c1}')
    a('s_barrier')
    a('s_nop 15')
    stamp(a, 2, 15)
    for r in range(16):
        a(f'v_mul_f32 v{96+r}, s38, v{96+r}')
    for r in range(16):
        a(f'v_mul_f32 v{112+r}, s38, v{112+r}')
    for r in range(0, 16, 2):
        a(f'v_cvt_pk_bf16_f32 v{16+r}, v{96+r}, v{97+r}')
    for r in range(0, 16, 2):
        a(f'v_lshrrev_b32 v{17+r}, 16, v{16+r}')
        a(f'v_and_b32 v{16+r}, 0xffff, v{16+r}')
    for r in range(16):
        a(f'v_and_b32 v{32+r}, s39, v{112+r}')
    for r in range(16):
        a(f'v_add_u32 v{32+r}, 0x8000, v{32+r}')
    for r in range(16):
        a(f'v_sub_u32 v{32+r}, v{32+r}, v{16+r} clamp')
    for r in range(16):
        a(f'v_and_or_b32 v{32+r}, v{32+r}, s40, v{16+r}')
    for r in range(16):
        a(f'v_bfi_b32 v{32+r}, s39, v{32+r}, v{112+r}')
        a(f'buffer_store_dword v{32+r}, v7, s[32:35], s23 offen offset:{((r&3)+8*(r>>2))*128} {ST_A}')
    a('v_max_f32 v64, |v96|, |v97|')
    for r in range(2, 32, 2):
        a(f'v_max3_f32 v64, v64, |v{96+r}|, |v{97+r}|')
    a('v_cmp_lt_f32 vcc, s41, v64')
    a('s_and_saveexec_b64 s[42:43], vcc')
    a('s_cbranch_execz A_pok')
    a('v_mov_b32 v65, 0x80000000')
    a('v_mov_b32 v66, 2048')
    a('ds_write_b32 v66, v65')
    a('s_waitcnt lgkmcnt(0)')
    a.lab('A_pok')
    stamp(a, 5, 15)
    stamp_out(a, 0, 20, 15)
    a('s_endpgm')

    a.lab('A_prep')
    a('s_cmp_ge_u32 s3, 8')
    a('s_cbranch_scc1 A_done')
    a(f's_sub_u32 s22, s2, {A_PREP0}')
    a('s_lshr_b32 s23, s3, 2')
    a('s_and_b32 s24, s3, 3')
    a('v_and_b32 v2, 31, v1')
    a('v_lshrrev_b32 v3, 5, v1')
    a('v_bfe_u32 v4, v2, 2, 1')
    a('v_and_b32 v5, 3, v2')
    a('v_lshrrev_b32 v6, 3, v2')
    a('v_lshl_add_u32 v5, v6, 2, v5')
    a('s_waitcnt lgkmcnt(0)')
    srd(a, 32, 20, WS_WF, WF_BYTES)
    a('s_cmp_lg_u32 s22, 0')
    a('s_cbranch_scc1 A_prep_u')
    srd(a, 28, 12, 0, 129*128)
    a('v_lshrrev_b32 v6, 3, v5')
    a('v_lshl_add_u32 v6, v4, 2, v6')
    a('s_lshl_b32 s25, s23, 1')
    a('v_add_u32 v6, s25, v6')
    a('v_and_b32 v7, 7, v5')
    a('v_lshlrev_b32 v8, 1, v7')
    a('v_add_u32 v9, 1, v8')
    a('v_subrev_u32 v8, 8, v8')
    a('v_cmp_gt_u32 vcc, 4, v7')
    a('s_nop 1')
    a('v_cndmask_b32 v8, v8, v9, vcc')
    a('v_lshl_add_u32 v8, v6, 3, v8')
    a('v_lshlrev_b32 v8, 1, v8')
    a('v_lshl_add_u32 v8, v3, 10, v8')
    a('s_lshl_b32 s26, s24, 11')
    a('s_add_u32 s26, s26, 8192')
    for j in range(8):
        a(f'buffer_load_ushort v{32+j}, v8, s[28:31], s26 offen offset:{128*j}')
    srd(a, 36, 20, WS_PT + N*128, 128)
    a('v_mov_b32 v20, 0x71497149')
    a('v_mov_b32 v21, v20')
    a('v_mov_b32 v22, v20')
    a('v_mov_b32 v23, v20')
    a('v_lshlrev_b32 v24, 4, v0')
    a('buffer_store_dwordx4 v[20:23], v24, s[36:39], 0 offen')
    a('s_branch A_prep_st')
    a.lab('A_prep_u')
    srd(a, 28, 14, 0, 128*128)
    a('v_lshl_add_u32 v8, v4, 4, v5')
    a('s_lshl_b32 s25, s23, 5')
    a('v_add_u32 v8, s25, v8')
    a('v_lshlrev_b32 v8, 1, v8')
    a('s_cmp_lg_u32 s22, 1')
    a('s_cbranch_scc1 A_prep_agg')
    a('v_lshl_add_u32 v8, v3, 10, v8')
    a('s_lshl_b32 s26, s24, 11')
    for j in range(8):
        a(f'buffer_load_ushort v{32+j}, v8, s[28:31], s26 offen offset:{128*j}')
    a('s_branch A_prep_st')
    a.lab('A_prep_agg')
    a('v_lshl_add_u32 v8, v3, 12, v8')
    a('s_lshl_b32 s26, s24, 2')
    a('s_add_u32 s27, s26, 1')
    a('s_sub_u32 s26, s26, 8')
    a('s_cmp_lt_u32 s24, 2')
    a('s_cselect_b32 s26, s27, s26')
    a('s_add_u32 s26, s26, 64')
    a('s_lshl_b32 s26, s26, 7')
    for j in range(8):
        a(f'buffer_load_ushort v{32+j}, v8, s[28:31], s26 offen offset:{(j&3)*1024+(j>>2)*256}')
    a.lab('A_prep_st')
    a('s_lshl_b32 s25, s22, 13')
    a('v_lshlrev_b32 v9, 4, v0')
    a('s_waitcnt vmcnt(0)')
    for j in range(4):
        a(f'v_lshl_or_b32 v{16+j}, v{33+2*j}, 16, v{32+2*j}')
    a('buffer_store_dwordx4 v[16:19], v9, s[32:35], s25 offen')
    a.lab('A_done')
    a('s_endpgm')

RS = 288
NPCAP = 2080
L_CNT = 0
L_BASE = 1024
L_MAX = 2048
L_FLAG = 2052
L_WORK = 2056
L_TOT = 2060
L_PN = 2064
L_REC = L_PN + NPCAP*2
L_Q = L_REC + NPCAP*16
L_AGG = L_Q + NB*RS
L_X = L_AGG + NB*RS*2
L_WU = L_X + 13*1024
B_LDS = L_WU + 16384
for x in (L_REC, L_Q, L_AGG, L_X, L_WU): assert x % 16 == 0
assert B_LDS <= 163840 and L_Q + 128 < 65536

def kernel_b(a):
    a.raw('.globl mpnn_main_kernel')
    a.raw('.p2align 8')
    a.raw('.type mpnn_main_kernel,@function')
    a.lab('mpnn_main_kernel')
    a('s_load_dwordx2 s[80:81], s[0:1], 64')
    a('s_load_dwordx16 s[64:79], s[0:1], 0')
    a(f's_cmp_ge_u32 s2, {NBK}')
    a('s_cbranch_scc1 B_done')
    a('v_lshrrev_b32 v1, 6, v0')
    a('v_lshrrev_b32 v4, 3, v0')
    a('v_readfirstlane_b32 s3, v1')
    a('v_lshlrev_b32 v12, 10, v4')
    a('s_lshl_b32 s32, s2, 2')
    a('s_add_u32 s33, s32, 0x20000')
    a('v_and_b32 v1, 63, v0')
    a('v_and_b32 v3, 7, v0')
    a('v_lshlrev_b32 v2, 4, v3')
    a('s_waitcnt lgkmcnt(0)')
    ws = 80
    srd(a, 4, ws, WS_TAB, TAB_BYTES)
    a('buffer_load_dword v6, v12, s[4:7], s32 offen')
    a('buffer_load_dword v7, v12, s[4:7], s33 offen')
    stamp(a, 0)
    srd(a, 8, ws, WS_REC, REC_BYTES)
    srd(a, 16, 64, 0, N*128)
    srd(a, 20, ws, WS_WF, WF_BYTES)
    srd(a, 28, 72, 0, 129*128)
    srd(a, 12, ws, WS_PT, PT_BYTES)
    srd(a, 24, 76, 0, N*128)
    a('s_mov_b64 s[88:89], s[80:81]')
    a('s_and_b32 s34, s3, 1')
    a('s_bfe_u32 s35, s3, 0x20001')
    a(f's_mul_i32 s37, s2, {NB}')
    a('s_lshl_b32 s38, s35, 5')
    a('v_lshlrev_b32 v11, 4, v1')
    a('v_and_b32 v8, 31, v1')
    a('v_add_u32 v8, s38, v8')
    a('v_lshrrev_b32 v9, 5, v1')
    a('v_lshlrev_b32 v3, 3, v3')
    a(f'v_add_u32 v3, {L_AGG}, v3')
    a('s_movk_i32 s42, 128')
    a('s_mov_b32 s43, 0xffff0000')
    a('s_mov_b32 s44, 1.0')
    a('s_mov_b32 s45, 1.0')
    a('s_mov_b32 s46, 0x3f80')
    a(f's_mov_b32 s47, {hex(f32(-LOG2E))}')
    a(f's_mov_b32 s48, {hex(f32(-LN2))}')
    a(f's_mov_b32 s49, {hex(f32(-LN2))}')
    a('s_mov_b32 s50, 0')
    a('s_mov_b32 s90, 0')
    a('v_lshlrev_b32 v12, 4, v0')
    for r in range(16, 20): a(f'v_mov_b32 v{r}, 0')
    a(f'v_add_u32 v13, {L_AGG}, v12')
    for j in range(3):
        a(f'ds_write_b128 v13, v[16:19] offset:{16384*j}')
    a(f'v_cmp_gt_u32 vcc, {NB*RS*2//16-3072}, v0')
    a('s_and_saveexec_b64 s[52:53], vcc')
    a('ds_write_b128 v13, v[16:19] offset:49152')
    a('s_mov_b64 exec, s[52:53]')
    a.lab('B_batch')
    for r in range(16, 20): a(f'v_mov_b32 v{r}, 0')
    a('v_lshlrev_b32 v12, 4, v0')
    a(f'v_cmp_gt_u32 vcc, {L_REC//16}, v0')
    a('s_and_saveexec_b64 s[52:53], vcc')
    a('ds_write_b128 v12, v[16:19]')
    a('s_mov_b64 exec, s[52:53]')
    a(f'v_mov_b32 v20, {N}')
    a('v_mov_b32 v21, v20')
    a('v_mov_b32 v22, v20')
    a('v_mov_b32 v23, v20')
    a(f'ds_write_b128 v12, v[20:23] offset:{L_REC}')
    a(f'ds_write_b128 v12, v[20:23] offset:{L_REC+16384}')
    a(f'v_cmp_gt_u32 vcc, {NPCAP-2048}, v0')
    a('s_and_saveexec_b64 s[52:53], vcc')
    a(f'ds_write_b128 v12, v[20:23] offset:{L_REC+32768}')
    a('s_mov_b64 exec, s[52:53]')
    a('v_and_b32 v14, 7, v0')
    a('v_lshlrev_b32 v14, 1, v14')
    a('v_add_u32 v14, s50, v14')
    a(f's_movk_i32 s51, {CH}')
    a('v_mul_u32_u24 v15, s51, v4')
    a('v_add_u32 v15, v15, v14')
    a('v_mov_b32 v25, 0x7fffff00')
    a('s_waitcnt vmcnt(0)')
    stamp(a, 1)
    for rd in range(2):
        T = 6+rd
        a(f'v_bfe_u32 v{20+rd}, v{T}, 16, 13')
        a(f'v_and_b32 v{22+rd}, 0xffff, v{T}')
        a(f'v_add_u32 v{22+rd}, v{22+rd}, v15')
        if rd == 1:
            a(f'v_add_u32 v{22+rd}, {128*CH}, v{22+rd}')
        a(f'v_lshlrev_b32 v{22+rd}, 3, v{22+rd}')
        a(f'v_sub_u32 v{16+rd}, v{20+rd}, v14')
    for rd in range(2):
        for ld in range(2):
            for e in range(2):
                s = rd*4+ld*2+e
                a(f'v_cmp_lt_i32 s[{52+2*s}:{53+2*s}], {ld*16+e}, v{16+rd}')
    order = [(0, 0), (1, 0), (0, 1), (1, 1)]
    for rd, ld in order:
        s = rd*4+ld*2
        r = 96+(rd*2+ld)*4
        a(f'v_cndmask_b32 v{26+rd*2+ld}, v25, v{22+rd}, s[{52+2*s}:{53+2*s}]')
        a(f'buffer_load_dwordx4 {q4(r)}, v{26+rd*2+ld}, s[8:11], 0 offen offset:{128*ld}')
    a('s_cmp_lg_u32 s50, 0')
    a('s_cbranch_scc1 B_noaux')
    a('s_lshl_b32 s39, s37, 7')
    a('s_lshl_b32 s40, s3, 10')
    a('s_add_u32 s39, s39, s40')
    a('buffer_load_dwordx4 v[32:35], v11, s[16:19], s39 offen')
    a(f's_add_u32 m0, s40, {L_WU}')
    a('s_add_u32 s40, s40, 8192')
    a('buffer_load_dwordx4 v11, s[20:23], s40 offen lds')
    a('s_movk_i32 s41, 0x4000')
    a('buffer_load_dwordx4 v[64:67], v2, s[28:31], s41 offen')
    a('s_cmp_ge_u32 s3, 8')
    a('s_cbranch_scc1 B_noaux')
    a('s_lshl_b32 s39, s34, 12')
    for ks in range(4):
        a(f'buffer_load_dwordx4 {q4(48+4*ks)}, v11, s[20:23], s39 offen offset:{1024*ks}')
    a.lab('B_noaux')
    a('s_waitcnt lgkmcnt(0)')
    a('s_barrier')
    a('v_max_i32 v16, v16, v17')
    a('v_or_b32 v17, v6, v7')
    a('v_cmp_lt_i32 vcc, 32, v16')
    a('v_cmp_gt_i32 s[68:69], 0, v17')
    a(f'v_mov_b32 v24, {L_MAX}')
    a('v_mov_b32 v16, 1')
    a('s_cbranch_vccz B_nomore')
    a('ds_write_b32 v24, v16')
    a.lab('B_nomore')
    a('s_cmp_eq_u64 s[68:69], 0')
    a('s_cbranch_scc1 B_noflag')
    a('ds_write_b32 v24, v16 offset:4')
    a.lab('B_noflag')
    a('v_mov_b32 v24, 4')
    def ranks(extra):
        for n, (rd, ld) in enumerate(order):
            a(f's_waitcnt vmcnt({3-n+extra})')
            for e in range(2):
                s = rd*4+ld*2+e
                r = 96+(rd*2+ld)*4+2*e
                a(f's_mov_b64 exec, s[{52+2*s}:{53+2*s}]')
                a(f'ds_add_rtn_u32 v{36+s}, v{r+1}, v24 offset:{L_CNT}')
        a('s_mov_b64 exec, -1')
    a('s_cmp_lg_u32 s50, 0')
    a('s_cbranch_scc1 B_rk0')
    a('s_cmp_ge_u32 s3, 8')
    a('s_cbranch_scc1 B_rk3')
    ranks(7)
    a('s_waitcnt vmcnt(6)')
    a('s_branch B_rkx')
    a.lab('B_rk3')
    ranks(3)
    a('s_waitcnt vmcnt(2)')
    a.lab('B_rkx')
    a('v_lshrrev_b32 v16, 3, v1')
    a('v_and_b32 v17, 7, v1')
    a('v_xor_b32 v17, v17, v16')
    a('v_lshlrev_b32 v17, 4, v17')
    a('v_lshl_add_u32 v17, v16, 7, v17')
    a('s_lshl_b32 s51, s3, 10')
    a(f's_add_u32 s51, s51, {L_X}')
    a('v_add_u32 v17, s51, v17')
    a('s_cmp_ge_u32 s3, 13')
    a('s_cbranch_scc1 B_rkdone')
    a('ds_write_b128 v17, v[32:35]')
    a('s_branch B_rkdone')
    a.lab('B_rk0')
    ranks(0)
    a.lab('B_rkdone')
    a('s_waitcnt lgkmcnt(0)')
    a('s_barrier')
    stamp(a, 2)
    a('s_cmp_ge_u32 s3, 8')
    a('s_cbranch_scc1 B_scan')
    a('s_cmp_lg_u32 s50, 0')
    a('s_cbranch_scc1 B_mid')
    a('v_and_b32 v18, 7, v1')
    a('v_xor_b32 v18, v18, v9')
    a('v_lshlrev_b32 v16, 7, v8')
    a(f'v_add_u32 v16, {L_X}, v16')
    for ks in range(4):
        a(f'v_xor_b32 v19, {2*ks}, v18')
        a(f'v_lshl_add_u32 v{20+ks}, v19, 4, v16')
        a(f'ds_read_b128 {q4(76+4*ks)}, v{20+ks}')
    a(f's_movk_i32 s68, {RS}')
    a('v_mul_u32_u24 v16, s68, v8')
    a('v_lshl_add_u32 v16, v9, 6, v16')
    a('s_lshl_b32 s68, s34, 5')
    a('v_add_u32 v16, s68, v16')
    a(f'v_mov_b32 v18, {NB}')
    a('v_cmp_gt_u32 s[68:69], v18, v8')
    a('s_waitcnt vmcnt(0) lgkmcnt(0)')
    for ks in range(4):
        c = '0' if ks == 0 else 'v[112:127]'
        a(f'v_mfma_f32_32x32x16_bf16 v[112:127], {q4(48+4*ks)}, {q4(76+4*ks)}, {c}')
    a('s_nop 11')
    for r in range(16):
        a(f'v_mul_f32 v{112+r}, s47, v{112+r}')
    a('s_mov_b64 exec, s[68:69]')
    for o in range(2):
        a(f'ds_write_b128 v16, {q4(112+8*o)} offset:{L_Q+16*o}')
        a(f'ds_write_b128 v16, {q4(116+8*o)} offset:{L_Q+128+16*o}')
    a('v_max_f32 v17, |v112|, |v113|')
    for r in range(2, 16, 2):
        a(f'v_max3_f32 v17, v17, |v{112+r}|, |v{113+r}|')
    a(f'v_cmp_lt_f32 vcc, {hex(f32(LIM_Q))}, v17')
    a('s_mov_b64 exec, -1')
    a('s_cbranch_vccz B_mid')
    a(f'v_mov_b32 v24, {L_FLAG}')
    a('v_mov_b32 v16, 1')
    a('ds_write_b32 v24, v16')
    a('s_branch B_mid')
    a.lab('B_scan')
    a(f'ds_read_b128 v[16:19], v11 offset:{L_CNT}')
    a('s_waitcnt lgkmcnt(0)')
    for k in range(2):
        a(f'v_and_b32 v{20+k}, 12, v{16+2*k}')
        a(f'v_min_u32 v{20+k}, 1, v{20+k}')
        a(f'v_lshrrev_b32 v{22+k}, 4, v{16+2*k}')
        a(f'v_lshl_or_b32 v{20+k}, v{20+k}, 16, v{22+k}')
    a('v_add_u32 v24, v20, v21')
    a('v_mov_b32 v25, v24')
    wave_scan(a, 25)
    a('v_sub_u32 v24, v25, v24')
    a('v_readlane_b32 s70, v25, 63')
    a('v_add_u32 v25, v24, v20')
    a(f's_movk_i32 s51, {2*RS}')
    a('v_mul_u32_u24 v76, s51, v1')
    a('s_and_b32 s72, s70, 0xffff')
    for k in range(2):
        a(f'v_and_b32 v{28+k}, 0xffff, v{24+k}')
        a(f'v_lshrrev_b32 v{30+k}, 16, v{24+k}')
        a(f'v_add_u32 v{30+k}, s72, v{30+k}')
        a(f'v_sub_u32 v{81+2*k}, v{30+k}, v{22+k}')
        a(f'v_lshlrev_b32 v{81+2*k}, 20, v{81+2*k}')
        a(f'v_lshl_or_b32 v{80+2*k}, v{28+k}, 4, v{81+2*k}')
        a(f'v_lshlrev_b32 v{81+2*k}, 4, v{22+k}')
    a(f'ds_write_b128 v11, v[80:83] offset:{L_BASE}')
    a(f'v_add_u32 v77, {RS}, v76')
    a('s_sub_u32 s51, s3, 8')
    a.lab('B_pn')
    for k in range(2):
        a(f'v_cmp_lt_u32 s[{74+2*k}:{75+2*k}], s51, v{22+k}')
        a(f'v_add_u32 v{78+k}, s51, v{28+k}')
        a(f'v_lshlrev_b32 v{78+k}, 1, v{78+k}')
    a('s_or_b64 s[68:69], s[74:75], s[76:77]')
    a('s_cbranch_scc0 B_pn_done')
    for k in range(2):
        a(f's_mov_b64 exec, s[{74+2*k}:{75+2*k}]')
        a(f'ds_write_b16 v{78+k}, v{76+k} offset:{L_PN}')
    a('s_mov_b64 exec, -1')
    a('s_add_u32 s51, s51, 8')
    a('s_branch B_pn')
    a.lab('B_pn_done')
    a('s_cmp_lg_u32 s3, 15')
    a('s_cbranch_scc1 B_mid')
    for k in range(2):
        a(f'v_lshrrev_b32 v{78+k}, 16, v{20+k}')
        a(f'v_cmp_ne_u32 s[{74+2*k}:{75+2*k}], 0, v{78+k}')
        a(f'v_lshlrev_b32 v{78+k}, 1, v{30+k}')
    for k in range(2):
        a(f's_mov_b64 exec, s[{74+2*k}:{75+2*k}]')
        a(f'ds_write_b16 v{78+k}, v{76+k} offset:{L_PN}')
    a('s_mov_b64 exec, 1')
    a(f'v_mov_b32 v24, {L_TOT}')
    a('v_mov_b32 v25, s70')
    a('ds_write_b32 v24, v25')
    a('s_mov_b64 exec, -1')
    a.lab('B_mid')
    a('s_cmp_lg_u32 s50, 0')
    a('s_cbranch_scc1 B_now3')
    a('s_waitcnt vmcnt(0)')
    for i in range(4):
        a(f'v_and_b32 v{68+i}, s43, v{64+i}')
        a(f'v_lshlrev_b32 v{72+i}, 16, v{64+i}')
    for i in range(8):
        a(f'v_mul_f32 v{68+i}, s47, v{68+i}')
    a('v_max3_f32 v16, |v68|, |v69|, |v70|')
    a('v_max3_f32 v16, v16, |v71|, |v72|')
    a('v_max3_f32 v16, v16, |v73|, |v74|')
    a('v_max_f32 v16, v16, |v75|')
    a(f'v_cmp_lt_f32 vcc, {LIM_W}, v16')
    a('s_nop 0')
    a('s_cmp_lg_u64 vcc, 0')
    a('s_cselect_b32 s90, 1, 0')
    a.lab('B_now3')
    a('s_waitcnt lgkmcnt(0)')
    a('s_barrier')
    stamp(a, 6)
    a(f'v_mov_b32 v24, {L_MAX}')
    a('ds_read_b128 v[16:19], v24')
    for s in range(8):
        r = 96+(s//2)*4+2*(s % 2)
        a(f's_mov_b64 exec, s[{52+2*s}:{53+2*s}]')
        a(f'ds_read_b64 {pr(76+2*s)}, v{r+1} offset:{L_BASE}')
    a('s_mov_b64 exec, -1')
    a('v_lshrrev_b32 v13, 3, v1')
    a(f'v_mov_b32 v14, {L_WORK}')
    a('v_mov_b32 v15, 1')
    a('s_waitcnt lgkmcnt(0)')
    a('v_readfirstlane_b32 s70, v19')
    a('v_readfirstlane_b32 s71, v16')
    a('v_readfirstlane_b32 s91, v17')
    for s in range(8):
        a(f'v_cmp_lt_u32 vcc, v{36+s}, v{77+2*s}')
        if s > 0:
            a(f'v_add_u32 v{36+s-1}, v{36+s-1}, v{76+2*(s-1)}')
            r = 96+((s-1)//2)*4+2*((s-1) % 2)
            a(f's_mov_b64 exec, s[{52+2*(s-1)}:{53+2*(s-1)}]')
            a(f'ds_write_b32 v{36+s-1}, v{r} offset:{L_REC}')
            a('s_mov_b64 exec, -1')
        else:
            a('s_nop 1')
        a(f'v_cndmask_b32_sdwa v{76+2*s}, v{76+2*s}, v{76+2*s}, vcc dst_sel:DWORD dst_unused:UNUSED_PAD src0_sel:WORD_1 src1_sel:WORD_0')
    a('s_and_b32 s72, s70, 0xffff')
    a(f'v_add_u32 v43, v43, v90')
    a('s_mov_b64 exec, s[66:67]')
    a(f'ds_write_b32 v43, v110 offset:{L_REC}')
    a('s_mov_b64 exec, -1')
    a('s_lshr_b32 s73, s70, 16')
    a('s_add_u32 s73, s73, s72')
    a('s_or_b32 s90, s90, s91')
    a('s_lshr_b32 s74, s72, 3')
    a('s_lshl_b32 s68, s74, 3')
    a('s_sub_u32 s75, s73, s68')
    a('s_add_u32 s75, s75, 7')
    a('s_lshr_b32 s75, s75, 3')
    a('s_add_u32 s75, s75, s74')
    a('s_mov_b32 s82, s74')
    a('s_cmp_lg_u32 s90, 0')
    a('s_cselect_b32 s82, 0, s82')
    if FORCE_PLAIN: a('s_mov_b32 s82, 0')
    a('v_mul_u32_u24 v10, s74, v13')
    a('v_lshlrev_b32 v12, 4, v10')
    a('v_lshlrev_b32 v10, 1, v10')
    a('v_lshlrev_b32 v111, 4, v13')
    a('v_lshlrev_b32 v13, 1, v13')
    a('s_waitcnt lgkmcnt(0)')
    a('s_barrier')
    stamp(a, 3)
    stampc(a, 8)
    a('s_mov_b32 s83, 0')
    if PRIO: a('s_setprio 3')
    RAW = 32; Q = 48; EE = 56; RC = 60; ND = 64; IDX = 65; AGC = 66; AGN = 67; Z = 76; T = 16; TMP = 108
    cnt = [0]
    def read_recs(sidx):
        n = cnt[0]; cnt[0] += 1
        a(f's_cmp_ge_u32 s{sidx}, s74')
        a(f's_cbranch_scc1 B_rrP{n}')
        a(f's_lshl_b32 s51, s{sidx}, 4')
        a(f'v_add_u32 v{TMP}, s51, v12')
        a(f's_lshl_b32 s51, s{sidx}, 1')
        a(f'v_add_u32 v{TMP+1}, s51, v10')
        a(f's_branch B_rrX{n}')
        a.lab(f'B_rrP{n}')
        a(f's_min_u32 s79, s{sidx}, {NPCAP//8-1}')
        a(f's_lshl_b32 s51, s79, 7')
        a(f'v_add_u32 v{TMP}, s51, v111')
        a(f's_lshl_b32 s51, s79, 4')
        a(f'v_add_u32 v{TMP+1}, s51, v13')
        a.lab(f'B_rrX{n}')
        a(f'ds_read_b128 {q4(RC)}, v{TMP} offset:{L_REC}')
        a(f'ds_read_u16 v{ND}, v{TMP+1} offset:{L_PN}')
    def fetch():
        for k in range(4):
            a(f'v_mad_u32_u16 v{TMP+(k&1)}, v{RC+k}, s42, v2')
            a(f'buffer_load_dwordx4 {q4(RAW+4*k)}, v{TMP+(k&1)}, s[12:15], 0 offen')
        a(f'v_add_u32 v{TMP+2}, v{ND}, v2')
        a(f'ds_read_b128 {q4(Q)}, v{TMP+2} offset:{L_Q}')
        a(f'ds_read_b128 {q4(Q+4)}, v{TMP+2} offset:{L_Q+128}')
        a(f'v_lshl_add_u32 v{AGN}, v{ND}, 1, v3')
        for k in range(4):
            a(f'v_and_b32 v{EE+k}, s43, v{RC+k}')
    def grab():
        a('s_mov_b64 exec, 1')
        a(f'ds_add_rtn_u32 v{IDX}, v14, v15')
        a('s_mov_b64 exec, -1')
    def zphase():
        for k in range(4):
            R = RAW+4*k; Zk = Z+8*k
            ep = EE+(k & ~1)
            sel = 'op_sel:[0,0,0] op_sel_hi:[0,1,1]' if k % 2 == 0 else 'op_sel:[1,0,0] op_sel_hi:[1,1,1]'
            for p in range(4):
                a(f'v_pk_fma_f32 {pr(Zk+2*p)}, {pr(ep)}, {pr(68+2*p)}, {pr(Q+2*p)} {sel}')
            a(f's_waitcnt vmcnt({3-k})')
            for i in range(4):
                a(f'v_dot2_f32_bf16 v{Zk+4+i}, v{R+i}, s46, v{Zk+4+i}')
            a(f'v_pk_add_f32 {pr(Zk)}, {pr(R)}, {pr(Zk)}')
            a(f'v_pk_add_f32 {pr(Zk+2)}, {pr(R+2)}, {pr(Zk+2)}')
    def shared():
        for pp in range(2):
            ps = [2*pp, 2*pp+1]
            tt = {ps[0]: T, ps[1]: T+6}
            for half in range(2):
                def regs(p):
                    za = Z+16*half+2*p
                    return za, za+8, tt[p]+(0 if half == 0 else 4), tt[p]+2
                for p in ps:
                    za, zb, ta, tb = regs(p)
                    a(f'v_exp_f32 v{ta}, v{za}'); a(f'v_exp_f32 v{ta+1}, v{za+1}')
                    a(f'v_exp_f32 v{tb}, v{zb}'); a(f'v_exp_f32 v{tb+1}, v{zb+1}')
                for p in ps:
                    za, zb, ta, tb = regs(p)
                    a(f'v_pk_fma_f32 {pr(zb)}, {pr(zb)}, {pr(ta)}, {pr(zb)}')
                for p in ps:
                    za, zb, ta, tb = regs(p)
                    a(f'v_pk_add_f32 {pr(tb)}, {pr(tb)}, s[44:45]')
                for p in ps:
                    za, zb, ta, tb = regs(p)
                    a(f'v_pk_fma_f32 {pr(zb)}, {pr(za)}, {pr(tb)}, {pr(zb)}')
                for p in ps:
                    za, zb, ta, tb = regs(p)
                    a(f'v_pk_fma_f32 {pr(ta)}, {pr(ta)}, {pr(tb)}, {pr(tb)}')
            for p in ps:
                a(f'v_pk_mul_f32 {pr(Z+2*p)}, {pr(Z+8+2*p)}, {pr(tt[p]+4)}')
            for p in ps:
                a(f'v_pk_mul_f32 {pr(tt[p]+2)}, {pr(tt[p])}, {pr(tt[p]+4)}')
            for p in ps:
                a(f'v_pk_fma_f32 {pr(Z+2*p)}, {pr(Z+24+2*p)}, {pr(tt[p])}, {pr(Z+2*p)}')
            for p in ps:
                a(f'v_rcp_f32 v{tt[p]+2}, v{tt[p]+2}'); a(f'v_rcp_f32 v{tt[p]+3}, v{tt[p]+3}')
            a('s_nop 0')
            for p in ps:
                a(f'v_pk_mul_f32 {pr(Z+2*p)}, {pr(Z+2*p)}, {pr(tt[p]+2)}')
            for p in ps:
                a(f'v_cvt_f64_f32 {pr(Z+8+2*p)}, v{Z+2*p}'); a(f'v_cvt_f64_f32 {pr(Z+16+2*p)}, v{Z+2*p+1}')
            for p in ps:
                a(f'ds_add_f64 v{AGC}, {pr(Z+8+2*p)} offset:{64*(2*p)}')
                a(f'ds_add_f64 v{AGC}, {pr(Z+16+2*p)} offset:{64*(2*p+1)}')
    def plain():
        AC = T+8
        for k in range(4):
            Zk = Z+8*k
            for i in range(8): a(f'v_exp_f32 v{T+i}, v{Zk+i}')
            for p in range(4): a(f'v_pk_add_f32 {pr(T+2*p)}, {pr(T+2*p)}, s[44:45]')
            for i in range(8): a(f'v_rcp_f32 v{T+i}, v{T+i}')
            for p in range(4):
                if k == 0:
                    a(f'v_pk_mul_f32 {pr(AC+2*p)}, {pr(Zk+2*p)}, {pr(T+2*p)}')
                else:
                    a(f'v_pk_fma_f32 {pr(AC+2*p)}, {pr(Zk+2*p)}, {pr(T+2*p)}, {pr(AC+2*p)}')
        for i in range(8): a(f'v_cvt_f64_f32 {pr(Z+2*i)}, v{AC+i}')
        for i in range(8): a(f'ds_add_f64 v{AGC}, {pr(Z+2*i)} offset:{64*i}')
    a('s_mov_b32 s76, s3')
    a('s_add_u32 s77, s3, 16')
    a('s_cmp_ge_u32 s76, s75')
    a('s_cbranch_scc1 B_loop_end')
    read_recs(76)
    grab()
    a('s_waitcnt lgkmcnt(0)')
    fetch()
    read_recs(77)
    a('s_waitcnt lgkmcnt(0)')
    a.lab('B_loop')
    a('s_waitcnt lgkmcnt(8)')
    a(f'v_mov_b32 v{AGC}, v{AGN}')
    a(f'v_readfirstlane_b32 s78, v{IDX}')
    zphase()
    if DEBUG:
        a('s_cmp_gt_u32 s83, 3')
        a('s_cbranch_scc1 B_nost')
        a('s_memrealtime s[92:93]')
        a('s_add_u32 m0, s83, 11')
        a('s_waitcnt lgkmcnt(0)')
        a('v_writelane_b32 v5, s92, m0')
        a.lab('B_nost')
    a('s_add_u32 s78, s78, 32')
    a('s_cmp_ge_u32 s77, s75')
    a('s_cbranch_scc1 B_nofetch')
    fetch()
    read_recs(78)
    grab()
    a.lab('B_nofetch')
    a('s_cmp_ge_u32 s76, s82')
    a('s_cbranch_scc1 B_plain')
    shared()
    a.lab('B_next')
    a('s_add_u32 s83, s83, 1')
    if PRIO:
        for c, p in ((2, 2), (4, 1), (5, 0)):
            a(f's_cmp_lg_u32 s83, {c}')
            a(f's_cbranch_scc1 B_pr{c}')
            a(f's_setprio {p}')
            a.lab(f'B_pr{c}')
    a('s_mov_b32 s76, s77')
    a('s_mov_b32 s77, s78')
    a('s_cmp_lt_u32 s76, s75')
    a('s_cbranch_scc1 B_loop')
    a('s_branch B_loop_end')
    a.lab('B_plain')
    plain()
    a('s_branch B_next')
    a.lab('B_loop_end')
    stamp(a, 4)
    a('s_cmp_lt_u32 s3, 8')
    a('s_cbranch_scc1 B_join')
    a('s_lshl_b32 s39, s34, 12')
    a(f's_add_u32 s39, s39, {L_WU}')
    a('v_add_u32 v17, s39, v11')
    a('v_and_b32 v18, 7, v1')
    a('v_xor_b32 v18, v18, v9')
    a('v_lshlrev_b32 v16, 7, v8')
    a(f'v_add_u32 v16, {L_X}, v16')
    for ks in range(4):
        a(f'v_xor_b32 v19, {2*ks}, v18')
        a(f'v_lshl_add_u32 v{20+ks}, v19, 4, v16')
        a(f'ds_read_b128 {q4(32+4*ks)}, v{20+ks}')
        a(f'ds_read_b128 {q4(48+4*ks)}, v17 offset:{1024*ks}')
    a('s_waitcnt lgkmcnt(0)')
    for ks in range(4):
        c = '0' if ks == 0 else 'v[112:127]'
        a(f'v_mfma_f32_32x32x16_bf16 v[112:127], {q4(48+4*ks)}, {q4(32+4*ks)}, {c}')
    for ks in range(4):
        a(f'ds_read_b128 {q4(48+4*ks)}, v17 offset:{8192+1024*ks}')
    a.lab('B_join')
    a('s_waitcnt lgkmcnt(0)')
    a('s_barrier')
    stamp(a, 5)
    stampc(a, 9)
    if DEBUG: a('v_writelane_b32 v5, s83, 10')
    a('s_add_u32 s50, s50, 32')
    a('s_cmp_lg_u32 s71, 0')
    a('s_cbranch_scc1 B_batch')
    a('s_cmp_lt_u32 s3, 8')
    a('s_cbranch_scc1 B_done2')
    a(f's_movk_i32 s51, {2*RS}')
    a('v_mul_u32_u24 v16, s51, v8')
    a('v_lshl_add_u32 v16, v9, 5, v16')
    a(f'v_add_u32 v16, {L_AGG}, v16')
    for half in range(2):
        for ii in range(4):
            i = half*4+ii
            a(f'ds_read_b128 {q4(64+8*ii)}, v16 offset:{64*i}')
            a(f'ds_read_b128 {q4(68+8*ii)}, v16 offset:{64*i+16}')
        for ii in range(4):
            i = half*4+ii
            a(f's_waitcnt lgkmcnt({6-2*ii})')
            for q in range(4):
                a(f'v_cvt_f32_f64 v{96+q}, {pr(64+8*ii+2*q)}')
            a(f'v_pk_mul_f32 v[96:97], v[96:97], s[48:49]')
            a(f'v_pk_mul_f32 v[98:99], v[98:99], s[48:49]')
            a(f'v_cvt_pk_bf16_f32 v{32+2*i}, v96, v97')
            a(f'v_cvt_pk_bf16_f32 v{33+2*i}, v98, v99')
    a('s_nop 1')
    for ks in range(4):
        a(f'v_mfma_f32_32x32x16_bf16 v[112:127], {q4(48+4*ks)}, {q4(32+4*ks)}, v[112:127]')
    a('v_add_u32 v17, s37, v8')
    a('v_lshlrev_b32 v17, 7, v17')
    a('v_lshl_add_u32 v17, v9, 5, v17')
    a('s_lshl_b32 s51, s34, 6')
    a(f'v_cmp_gt_u32 vcc, {NB}, v8')
    a('s_nop 12')
    for r in range(16): a(f'v_mul_f32 v{64+r}, s47, v{112+r}')
    for r in range(16): a(f'v_exp_f32 v{64+r}, v{64+r}')
    for r in range(16): a(f'v_add_f32 v{64+r}, 1.0, v{64+r}')
    for r in range(16): a(f'v_rcp_f32 v{64+r}, v{64+r}')
    for r in range(16): a(f'v_mul_f32 v{64+r}, v{64+r}, v{112+r}')
    for r in range(0, 16, 2): a(f'v_cvt_pk_bf16_f32 v{32+r//2}, v{64+r}, v{65+r}')
    a('s_and_b64 exec, exec, vcc')
    a('buffer_store_dwordx4 v[32:35], v17, s[24:27], s51 offen')
    a('buffer_store_dwordx4 v[36:39], v17, s[24:27], s51 offen offset:16')
    a.lab('B_done2')
    stamp_out(a, 1, 88)
    a.lab('B_done')
    a('s_endpgm')

def kd(a, name, vgpr, sgpr):
    a.raw('.p2align 6')
    a.raw(f'.amdhsa_kernel {name}')
    a.raw(f'  .amdhsa_next_free_vgpr {vgpr}')
    a.raw(f'  .amdhsa_next_free_sgpr {sgpr}')
    a.raw(f'  .amdhsa_accum_offset {(vgpr+3)//4*4}')
    a.raw('  .amdhsa_group_segment_fixed_size 0')
    a.raw('  .amdhsa_kernarg_size 72')
    a.raw('  .amdhsa_user_sgpr_count 2')
    a.raw('  .amdhsa_user_sgpr_kernarg_segment_ptr 1')
    a.raw('  .amdhsa_system_sgpr_workgroup_id_x 1')
    a.raw('.end_amdhsa_kernel')

def main():
    ref = open('gather_scatter__mpnn_edge_mlp__graph.s.ref').read().splitlines()
    hdr = [l for l in ref if l.startswith(';') and '@launch' not in l and 'Override' not in l and 'grid=ceil' not in l]
    a = A()
    for l in hdr: a.raw(l)
    a.raw(f'; @launch kernel=mpnn_bin_kernel grid=({A_GRID},1,1) block=({A_BLOCK},1,1) lds={A_LDS}')
    a.raw(f'; @launch kernel=mpnn_main_kernel grid=({NBK},1,1) block=(1024,1,1) lds={B_LDS}')
    a.raw('.amdgcn_target "amdgcn-amd-amdhsa--gfx950"')
    a.raw('.text')
    kernel_a(a)
    kernel_b(a)
    a.raw('.section .rodata,"a"')
    kd(a, 'mpnn_bin_kernel', 128, 100)
    kd(a, 'mpnn_main_kernel', 128, 100)
    out = sys.argv[1] if len(sys.argv) > 1 else 'gather_scatter__mpnn_edge_mlp__graph.s'
    open(out, 'w').write('\n'.join(a.l) + '\n')

main()
```

```python
import sys, struct, os
DEBUG = int(os.environ.get('DEBUG', '0'))
PRIO = int(os.environ.get('PRIO', '1'))
XMAP = int(os.environ.get('XMAP', '1'))
PREF = int(os.environ.get('PREF', '0'))
CPF = int(os.environ.get('CPF', '1'))
FORCE_PLAIN = int(os.environ.get('FORCE_PLAIN', '0'))

N = 25000; E = 800000
NB = 98
NBK = 256
CH = 3200
NCH = 250
WS_REC = 0
WS_TAB = 0x700000
WS_PF  = 0x780000
WS_PT  = 0x800000
WS_WF  = 0xC00000
REC_BYTES = NCH*CH*8
TAB_BYTES = NCH*NBK*4
PF_BYTES  = 784*4
PT_BYTES  = (N+1)*128
WF_BYTES  = 3*8192 + 512
WF_W3 = 3*8192
LOG2E = 1.4426950408889634
LN2 = 0.6931471805599453
LIM_P = 6.0; LIM_Q = 6.0; LIM_E_BF16 = 0x4090; LIM_W = 4.0
def f32(x): return struct.unpack('<I', struct.pack('<f', x))[0]

class A:
    def __init__(s): s.l = []
    def __call__(s, t): s.l.append('    ' + t)
    def lab(s, t): s.l.append(t + ':')
    def raw(s, t): s.l.append(t)

def srd(a, d, base, off, nbytes):
    if off:
        a(f's_add_u32 s{d}, s{base}, {hex(off)}')
        a(f's_addc_u32 s{d+1}, s{base+1}, 0')
    else:
        a(f's_mov_b32 s{d}, s{base}')
        a(f's_mov_b32 s{d+1}, s{base+1}')
    a(f's_mov_b32 s{d+2}, {hex(nbytes)}')
    a(f's_mov_b32 s{d+3}, 0x00020000')

PROF_OFF = 0x4000000
def stamp(a, i, vr=5, sr=92):
    if not DEBUG: return
    a(f's_memrealtime s[{sr}:{sr+1}]')
    a('s_waitcnt lgkmcnt(0)')
    a(f'v_writelane_b32 v{vr}, s{sr}, {i}')
def stampc(a, i, vr=5, sr=92):
    if not DEBUG: return
    a(f's_memtime s[{sr}:{sr+1}]')
    a('s_waitcnt lgkmcnt(0)')
    a(f'v_writelane_b32 v{vr}, s{sr}, {i}')
def stamp_out(a, kern, wsreg, vr=5, sr=92, tmp=6):
    if not DEBUG: return
    a('s_waitcnt vmcnt(0)')
    stamp(a, 15, vr, sr)
    a('s_mov_b64 exec, -1')
    srd(a, 96, wsreg, PROF_OFF + kern*0x400000, 0x400000)
    a(f's_lshl_b32 s{sr}, s2, 4')
    a(f's_add_u32 s{sr}, s{sr}, s3')
    a(f's_lshl_b32 s{sr}, s{sr}, 8')
    a(f'v_lshlrev_b32 v{tmp}, 2, v1')
    a(f'buffer_store_dword v{vr}, v{tmp}, s[96:99], s{sr} offen')

def wave_scan(a, v):
    for sh in (1, 2, 4, 8):
        a('s_nop 1')
        a(f'v_add_u32_dpp v{v}, v{v}, v{v} row_shr:{sh} row_mask:0xf bank_mask:0xf bound_ctrl:0')
    a('s_nop 1')
    a(f'v_add_u32_dpp v{v}, v{v}, v{v} row_bcast:15 row_mask:0xa bank_mask:0xf')
    a('s_nop 1')
    a(f'v_add_u32_dpp v{v}, v{v}, v{v} row_bcast:31 row_mask:0xc bank_mask:0xf')

def pr(r): return f'v[{r}:{r+1}]'
def q4(r): return f'v[{r}:{r+3}]'

A_GEMM0 = NCH
A_PREP0 = NCH + 112
A_GRID = A_PREP0 + 4
A_BLOCK = 448
A_XT = 0
A_LDS = 7*4096
A_STAGE = 2048 + 64
A_EFLAG = 2048
ST_A = os.environ.get('ST_A', 'sc0 sc1')

def kernel_a(a):
    a.raw('.globl mpnn_bin_kernel')
    a.raw('.p2align 8')
    a.raw('.type mpnn_bin_kernel,@function')
    a.lab('mpnn_bin_kernel')
    a('s_load_dwordx16 s[4:19], s[0:1], 0')
    a('s_load_dwordx2 s[20:21], s[0:1], 64')
    if CPF:
        a('s_getpc_b64 s[60:61]')
        a.lab('A_pc')
        a('v_lshlrev_b32 v100, 4, v0')
        a('v_add_u32 v101, 7168, v100')
        a('v_add_u32 v102, 14336, v100')
        a('v_min_u32 v102, code_end-A_pc-16, v102')
        a('global_load_dwordx4 v[104:107], v100, s[60:61]')
        a('global_load_dwordx4 v[108:111], v101, s[60:61]')
        a('global_load_dwordx4 v[112:115], v102, s[60:61]')
    a(f's_cmp_ge_u32 s2, {A_GRID}')
    a('s_cbranch_scc1 A_done')
    a('v_lshrrev_b32 v1, 6, v0')
    a('v_lshlrev_b32 v3, 4, v0')
    a('v_readfirstlane_b32 s3, v1')
    a('v_and_b32 v1, 63, v0')
    a(f's_cmp_ge_u32 s2, {A_PREP0}')
    a('s_cbranch_scc1 A_prep')
    a(f's_cmp_ge_u32 s2, {A_GEMM0}')
    a('s_cbranch_scc1 A_gemm')
    a('v_cmp_gt_u32 vcc, 400, v0')
    a('s_and_b64 exec, exec, vcc')
    a('v_lshlrev_b32 v2, 3, v0')
    a(f's_mul_i32 s44, s2, {CH*4}')
    a(f's_mul_i32 s45, s2, {CH*2}')
    a(f's_add_u32 s50, s44, {CH*2}')
    a(f's_add_u32 s51, s45, {CH}')
    a('s_waitcnt lgkmcnt(0)')
    srd(a, 24, 10, 0, E*4)
    a('buffer_load_dwordx4 v[8:11], v3, s[24:27], s44 offen')
    a('buffer_load_dwordx4 v[12:15], v3, s[24:27], s50 offen')
    srd(a, 28, 8, 0, E*4)
    a('buffer_load_dwordx4 v[16:19], v3, s[28:31], s44 offen')
    a('buffer_load_dwordx4 v[20:23], v3, s[28:31], s50 offen')
    srd(a, 32, 6, 0, E*2)
    a('buffer_load_dwordx2 v[24:25], v2, s[32:35], s45 offen')
    a('buffer_load_dwordx2 v[26:27], v2, s[32:35], s51 offen')
    stamp(a, 0, 70)
    a('v_lshlrev_b32 v5, 2, v0')
    a('v_mov_b32 v4, 0')
    a('v_mov_b32 v6, 2048')
    a('v_cmp_gt_u32 vcc, 256, v0')
    a('s_nop 1')
    a('v_cndmask_b32 v5, v6, v5, vcc')
    a('ds_write_b32 v5, v4')
    srd(a, 36, 20, WS_REC, REC_BYTES)
    srd(a, 40, 20, WS_TAB, TAB_BYTES)
    a('s_mov_b32 s46, 42800')
    a('s_mov_b32 s47, -196')
    a('s_mov_b32 s48, 0xffff0000')
    a('s_mov_b32 s52, 0x7fff7fff')
    a('v_mov_b32 v4, 1')
    a('s_waitcnt lgkmcnt(0)')
    a('s_barrier')
    for hf in range(2):
        a(f's_waitcnt vmcnt({5-hf})')
        if hf == 0: stamp(a, 1, 70)
        for j in range(4*hf, 4*hf+4):
            a(f'v_mul_u32_u24 v{28+j}, s46, v{8+j}')
            a(f'v_lshrrev_b32 v{28+j}, 22, v{28+j}')
            a(f'v_lshlrev_b32 v{28+j}, 2, v{28+j}')
            a(f'ds_add_rtn_u32 v{56+j}, v{28+j}, v4')
    for j in range(8):
        a(f'v_lshlrev_b32 v{8+j}, 3, v{8+j}')
        a(f'v_mad_i32_i24 v{41+2*j}, v{28+j}, s47, v{8+j}')
    a('s_mov_b64 s[22:23], exec')
    a('s_waitcnt lgkmcnt(0)')
    a('s_barrier')
    stamp(a, 2, 70)
    a('s_mov_b64 exec, -1')
    a('v_lshlrev_b32 v5, 4, v1')
    a('ds_read_b128 v[8:11], v5')
    a('s_waitcnt lgkmcnt(0)')
    a('v_add_u32 v13, v8, v9')
    a('v_add_u32 v14, v13, v10')
    a('v_add_u32 v15, v14, v11')
    a('v_mov_b32 v72, v15')
    wave_scan(a, 72)
    a('v_sub_u32 v12, v72, v15')
    a('v_add_u32 v15, v12, v14')
    a('v_add_u32 v14, v12, v13')
    a('v_add_u32 v13, v12, v8')
    for k in range(4):
        a(f'v_lshlrev_b32 v{72+k}, 3, v{12+k}')
    a('ds_write_b128 v5, v[72:75] offset:1024')
    for k in range(4):
        a(f'v_lshl_or_b32 v{64+k}, v{8+k}, 16, v{12+k}')
    a('s_mov_b64 exec, s[22:23]')
    a('s_waitcnt lgkmcnt(0)')
    for j in range(8):
        a(f'ds_read_b32 v{8+j}, v{28+j} offset:1024')
    a('s_waitcnt vmcnt(0)')
    for j in range(8):
        if j % 2 == 0:
            a(f'v_lshl_or_b32 v{40+2*j}, v{24+j//2}, 16, v{16+j}')
        else:
            a(f'v_and_or_b32 v{40+2*j}, v{24+j//2}, s48, v{16+j}')
    for j in range(4):
        a(f'v_and_b32 v{24+j}, s52, v{24+j}')
    a('v_pk_max_u16 v24, v24, v25')
    a('v_pk_max_u16 v26, v26, v27')
    a('v_pk_max_u16 v24, v24, v26')
    a('v_lshrrev_b32 v25, 16, v24')
    a('v_and_b32 v24, 0xffff, v24')
    a('v_max_u32 v24, v24, v25')
    a(f'v_cmp_lt_u32 vcc, {hex(LIM_E_BF16)}, v24')
    a('s_and_saveexec_b64 s[54:55], vcc')
    a('s_cbranch_execz A_eok')
    a('v_mov_b32 v25, 0x80000000')
    a('ds_write_b32 v6, v25')
    a.lab('A_eok')
    a('s_mov_b64 exec, s[54:55]')
    a('s_waitcnt lgkmcnt(0)')
    for j in range(8):
        a(f'v_lshl_add_u32 v{8+j}, v{56+j}, 3, v{8+j}')
    stamp(a, 3, 70)
    for j in range(8):
        a(f'ds_write_b64 v{8+j}, {pr(40+2*j)} offset:{A_STAGE}')
    a('s_waitcnt lgkmcnt(0)')
    a('s_barrier')
    stamp(a, 4, 70)
    a('s_cmp_lg_u32 s3, 6')
    a('s_cbranch_scc1 A_notab')
    a('s_mov_b64 exec, -1')
    a('v_mov_b32 v6, 2048')
    a('ds_read_b32 v7, v6')
    a('s_lshl_b32 s49, s2, 10')
    a('s_waitcnt lgkmcnt(0)')
    for k in range(4):
        a(f'v_or_b32 v{64+k}, v{64+k}, v7')
    a(f'buffer_store_dwordx4 v[64:67], v5, s[40:43], s49 offen {ST_A}')
    a('s_mov_b64 exec, s[22:23]')
    a.lab('A_notab')
    for j in range(4):
        a(f'ds_read_b128 {q4(8+4*j)}, v3 offset:{A_STAGE+6400*j}')
    a(f's_mul_i32 s49, s2, {CH*8}')
    for j in range(4):
        a(f's_waitcnt lgkmcnt({3-j})')
        a(f'buffer_store_dwordx4 {q4(8+4*j)}, v3, s[36:39], s49 offen {ST_A}')
        if j < 3:
            a(f's_add_u32 s49, s49, 6400')
    stamp(a, 5, 70)
    stamp_out(a, 0, 20, 70)
    a('s_endpgm')

    a.lab('A_gemm')
    a(f's_sub_u32 s22, s2, {A_GEMM0}')
    a('s_mul_i32 s22, s22, 7')
    a('s_add_u32 s22, s22, s3')
    a('v_and_b32 v2, 31, v1')
    a('v_lshrrev_b32 v3, 5, v1')
    a('v_lshlrev_b32 v4, 2, v2')
    a('v_lshl_add_u32 v7, v3, 9, v4')
    a('v_lshl_add_u32 v4, v3, 10, v4')
    a('v_add_u32 v5, 4096, v4')
    a('s_lshl_b32 s23, s22, 12')
    a('v_lshlrev_b32 v6, 4, v1')
    a('s_lshl_b32 s42, s3, 12')
    a('v_lshrrev_b32 v8, 3, v1')
    a('v_and_b32 v9, 7, v1')
    a('v_xor_b32 v10, v9, v8')
    a('v_lshlrev_b32 v10, 4, v10')
    a('v_lshl_add_u32 v10, v8, 7, v10')
    a('v_add_u32 v10, s42, v10')
    a('v_xor_b32 v9, v9, v3')
    a('v_lshlrev_b32 v8, 7, v2')
    a('v_add_u32 v8, s42, v8')
    for ks in range(4):
        a(f'v_xor_b32 v{11+ks}, {2*ks}, v9')
        a(f'v_lshl_add_u32 v{11+ks}, v{11+ks}, 4, v8')
    a('s_waitcnt lgkmcnt(0)')
    srd(a, 24, 4, 0, N*128)
    srd(a, 28, 12, 0, 129*128)
    for j in range(4):
        a(f'buffer_load_dwordx4 {q4(48+4*j)}, v6, s[24:27], s23 offen offset:{1024*j}')
    for ks in range(4):
        for j in range(8):
            base = 4 if ks < 2 else 5
            off = (16*(ks % 2) + j)*128
            a(f'buffer_load_dword v{16+8*ks+j}, v{base}, s[28:31], 0 offen offset:{off}')
    stamp(a, 0, 15)
    srd(a, 32, 20, WS_PT, N*128)
    srd(a, 44, 20, WS_PF, PF_BYTES)
    a('s_mov_b32 s36, 0x05040100')
    a('s_mov_b32 s37, 0x07060302')
    a(f's_mov_b32 s38, {hex(f32(-LOG2E))}')
    a('s_mov_b32 s39, 0x7fffffff')
    a('s_mov_b32 s40, 0x7fff0000')
    a(f's_mov_b32 s41, {hex(f32(LIM_P))}')
    a('s_waitcnt vmcnt(32)')
    for j in range(4):
        a(f'ds_write_b128 v10, {q4(48+4*j)} offset:{1024*j}')
    a('s_waitcnt lgkmcnt(0)')
    for ks in range(4):
        a(f'ds_read_b128 {q4(48+4*ks)}, v{11+ks}')
    a('s_waitcnt vmcnt(0)')
    stamp(a, 1, 15)
    for ks in range(4):
        for jj in range(4):
            r0 = 16+8*ks+2*jj
            a(f'v_perm_b32 v{64+4*ks+jj}, v{r0+1}, v{r0}, s36')
            a(f'v_perm_b32 v{80+4*ks+jj}, v{r0+1}, v{r0}, s37')
    a('s_waitcnt lgkmcnt(0)')
    for ks in range(4):
        c0 = '0' if ks == 0 else 'v[96:111]'
        c1 = '0' if ks == 0 else 'v[112:127]'
        a(f'v_mfma_f32_32x32x16_bf16 v[96:111], {q4(48+4*ks)}, {q4(64+4*ks)}, {c0}')
        a(f'v_mfma_f32_32x32x16_bf16 v[112:127], {q4(48+4*ks)}, {q4(80+4*ks)}, {c1}')
    a('s_nop 15')
    stamp(a, 2, 15)
    for r in range(16):
        a(f'v_mul_f32 v{96+r}, s38, v{96+r}')
    for r in range(16):
        a(f'v_mul_f32 v{112+r}, s38, v{112+r}')
    for r in range(0, 16, 2):
        a(f'v_cvt_pk_bf16_f32 v{16+r}, v{96+r}, v{97+r}')
    for r in range(0, 16, 2):
        a(f'v_lshrrev_b32 v{17+r}, 16, v{16+r}')
        a(f'v_and_b32 v{16+r}, 0xffff, v{16+r}')
    for r in range(16):
        a(f'v_and_b32 v{32+r}, s39, v{112+r}')
    for r in range(16):
        a(f'v_add_u32 v{32+r}, 0x8000, v{32+r}')
    for r in range(16):
        a(f'v_sub_u32 v{32+r}, v{32+r}, v{16+r} clamp')
    for r in range(16):
        a(f'v_and_or_b32 v{32+r}, v{32+r}, s40, v{16+r}')
    for r in range(16):
        a(f'v_bfi_b32 v{32+r}, s39, v{32+r}, v{112+r}')
        a(f'buffer_store_dword v{32+r}, v7, s[32:35], s23 offen offset:{((r&3)+8*(r>>2))*128} {ST_A}')
    a('v_max_f32 v64, |v96|, |v97|')
    for r in range(2, 32, 2):
        a(f'v_max3_f32 v64, v64, |v{96+r}|, |v{97+r}|')
    a('v_cmp_lt_f32 vcc, s41, v64')
    a('s_lshl_b32 s43, s22, 2')
    a('v_mov_b32 v66, 0')
    a('s_cmp_lg_u64 vcc, 0')
    a('s_cselect_b32 s42, 1, 0')
    a('v_mov_b32 v65, s42')
    a('s_mov_b64 exec, 1')
    a(f'buffer_store_dword v65, v66, s[44:47], s43 offen {ST_A}')
    stamp(a, 5, 15)
    stamp_out(a, 0, 20, 15)
    a('s_endpgm')

    a.lab('A_prep')
    a(f's_sub_u32 s50, s2, {A_PREP0}')
    a('s_mul_i32 s50, s50, 7')
    a('s_add_u32 s50, s50, s3')
    a('s_cmp_gt_u32 s50, 24')
    a('s_cbranch_scc1 A_done')
    a('s_lshr_b32 s22, s50, 3')
    a('s_bfe_u32 s23, s50, 0x10002')
    a('s_and_b32 s24, s50, 3')
    a('v_and_b32 v2, 31, v1')
    a('v_lshrrev_b32 v3, 5, v1')
    a('v_bfe_u32 v4, v2, 2, 1')
    a('v_and_b32 v5, 3, v2')
    a('v_lshrrev_b32 v6, 3, v2')
    a('v_lshl_add_u32 v5, v6, 2, v5')
    a('s_waitcnt lgkmcnt(0)')
    srd(a, 32, 20, WS_WF, WF_BYTES)
    a('s_cmp_eq_u32 s50, 24')
    a('s_cbranch_scc1 A_prep_w3')
    a('s_cmp_lg_u32 s22, 0')
    a('s_cbranch_scc1 A_prep_u')
    srd(a, 28, 12, 0, 129*128)
    a('v_lshrrev_b32 v6, 3, v5')
    a('v_lshl_add_u32 v6, v4, 2, v6')
    a('s_lshl_b32 s25, s23, 1')
    a('v_add_u32 v6, s25, v6')
    a('v_and_b32 v7, 7, v5')
    a('v_lshlrev_b32 v8, 1, v7')
    a('v_add_u32 v9, 1, v8')
    a('v_subrev_u32 v8, 8, v8')
    a('v_cmp_gt_u32 vcc, 4, v7')
    a('s_nop 1')
    a('v_cndmask_b32 v8, v8, v9, vcc')
    a('v_lshl_add_u32 v8, v6, 3, v8')
    a('v_lshlrev_b32 v8, 1, v8')
    a('v_lshl_add_u32 v8, v3, 10, v8')
    a('s_lshl_b32 s26, s24, 11')
    a('s_add_u32 s26, s26, 8192')
    for j in range(8):
        a(f'buffer_load_ushort v{32+j}, v8, s[28:31], s26 offen offset:{128*j}')
    a('s_branch A_prep_st')
    a.lab('A_prep_u')
    srd(a, 28, 14, 0, 128*128)
    a('v_lshl_add_u32 v8, v4, 4, v5')
    a('s_lshl_b32 s25, s23, 5')
    a('v_add_u32 v8, s25, v8')
    a('v_lshlrev_b32 v8, 1, v8')
    a('s_cmp_lg_u32 s22, 1')
    a('s_cbranch_scc1 A_prep_agg')
    a('v_lshl_add_u32 v8, v3, 10, v8')
    a('s_lshl_b32 s26, s24, 11')
    for j in range(8):
        a(f'buffer_load_ushort v{32+j}, v8, s[28:31], s26 offen offset:{128*j}')
    a('s_branch A_prep_st')
    a.lab('A_prep_w3')
    srd(a, 44, 20, WS_PT + N*128, 128)
    a('v_mov_b32 v20, 0x71497149')
    a('v_mov_b32 v21, v20')
    a('v_mov_b32 v22, v20')
    a('v_mov_b32 v23, v20')
    a('v_lshlrev_b32 v24, 4, v1')
    a('buffer_store_dwordx4 v[20:23], v24, s[44:47], 0 offen')
    srd(a, 36, 12, 0, 129*128)
    a('v_and_b32 v10, 7, v1')
    a('v_lshlrev_b32 v11, 4, v10')
    a('s_movk_i32 s27, 0x4000')
    a('buffer_load_dwordx4 v[44:47], v11, s[36:39], s27 offen')
    a(f's_mov_b32 s40, {hex(f32(-LOG2E))}')
    a('s_waitcnt vmcnt(0)')
    for i in range(4):
        a(f'v_and_b32 v{48+i}, 0xffff0000, v{44+i}')
        a(f'v_lshlrev_b32 v{52+i}, 16, v{44+i}')
    for i in range(8):
        a(f'v_mul_f32 v{48+i}, s40, v{48+i}')
    a('v_max3_f32 v44, |v48|, |v49|, |v50|')
    a('v_max3_f32 v44, v44, |v51|, |v52|')
    a('v_max3_f32 v44, v44, |v53|, |v54|')
    a('v_max_f32 v44, v44, |v55|')
    a(f'v_cmp_lt_f32 vcc, {LIM_W}, v44')
    a('v_lshlrev_b32 v11, 5, v10')
    a('s_cmp_lg_u64 vcc, 0')
    a('s_cselect_b32 s41, 1, 0')
    a('v_mov_b32 v45, s41')
    a('v_mov_b32 v46, 0')
    a(f's_movk_i32 s27, {WF_W3}')
    a('buffer_store_dwordx4 v[48:51], v11, s[32:35], s27 offen')
    a('buffer_store_dwordx4 v[52:55], v11, s[32:35], s27 offen offset:16')
    a('buffer_store_dword v45, v46, s[32:35], s27 offen offset:256')
    a('s_endpgm')
    a.lab('A_prep_agg')
    a('v_lshl_add_u32 v8, v3, 12, v8')
    a('s_lshl_b32 s26, s24, 2')
    a('s_add_u32 s27, s26, 1')
    a('s_sub_u32 s26, s26, 8')
    a('s_cmp_lt_u32 s24, 2')
    a('s_cselect_b32 s26, s27, s26')
    a('s_add_u32 s26, s26, 64')
    a('s_lshl_b32 s26, s26, 7')
    for j in range(8):
        a(f'buffer_load_ushort v{32+j}, v8, s[28:31], s26 offen offset:{(j&3)*1024+(j>>2)*256}')
    a.lab('A_prep_st')
    a('s_lshl_b32 s25, s50, 10')
    a('v_lshlrev_b32 v9, 4, v1')
    a('s_waitcnt vmcnt(0)')
    for j in range(4):
        a(f'v_lshl_or_b32 v{16+j}, v{33+2*j}, 16, v{32+2*j}')
    a('buffer_store_dwordx4 v[16:19], v9, s[32:35], s25 offen')
    a.lab('A_done')
    a('s_endpgm')

RS = 288
NPCAP = 2080
L_CNT = 0
L_BASE = 1024
L_MAX = 2048
L_FLAG = 2052
L_WORK = 2056
L_TOT = 2060
L_PN = 2064
L_REC = L_PN + NPCAP*2
L_Q = L_REC + NPCAP*16
L_AGG = L_Q + NB*RS
L_X = L_AGG + NB*RS*2
L_WU = L_X + 13*1024
L_SCR = L_WU + 16384
B_LDS = L_SCR + 1024
NPF = 0
for x in (L_REC, L_Q, L_AGG, L_X, L_WU): assert x % 16 == 0
assert B_LDS <= 163840 and L_Q + 128 < 65536

def kernel_b(a):
    a.raw('.globl mpnn_main_kernel')
    a.raw('.p2align 8')
    a.raw('.type mpnn_main_kernel,@function')
    a.lab('mpnn_main_kernel')
    a('s_load_dwordx2 s[80:81], s[0:1], 64')
    a('s_load_dwordx16 s[64:79], s[0:1], 0')
    if CPF:
        a('s_getpc_b64 s[60:61]')
        a.lab('B_pc')
        a('v_lshlrev_b32 v100, 4, v0')
        a('v_min_u32 v100, code_end-B_pc-16, v100')
        a('global_load_dwordx4 v[104:107], v100, s[60:61]')
    a(f's_cmp_ge_u32 s2, {NBK}')
    a('s_cbranch_scc1 B_done')
    a('v_lshrrev_b32 v1, 6, v0')
    a('v_lshrrev_b32 v4, 3, v0')
    a('v_readfirstlane_b32 s3, v1')
    a('v_lshlrev_b32 v12, 10, v4')
    if XMAP:
        a('s_and_b32 s85, s2, 7')
        a('s_lshl_b32 s85, s85, 5')
        a('s_lshr_b32 s86, s2, 3')
        a('s_add_u32 s85, s85, s86')
    else:
        a('s_mov_b32 s85, s2')
        a('s_lshr_b32 s86, s2, 3')
    a('s_lshl_b32 s32, s85, 2')
    a('s_add_u32 s33, s32, 0x20000')
    a('v_and_b32 v1, 63, v0')
    a('v_and_b32 v3, 7, v0')
    a('v_lshlrev_b32 v2, 4, v3')
    a('s_waitcnt lgkmcnt(0)')
    ws = 80
    srd(a, 4, ws, WS_TAB, TAB_BYTES)
    a('buffer_load_dword v6, v12, s[4:7], s32 offen')
    a('buffer_load_dword v7, v12, s[4:7], s33 offen')
    stamp(a, 0)
    srd(a, 8, ws, WS_REC, REC_BYTES)
    srd(a, 16, 64, 0, N*128)
    srd(a, 20, ws, WS_WF, WF_BYTES)
    a(f's_add_u32 s28, s80, {hex(WS_WF+WF_W3+256)}')
    a('s_addc_u32 s29, s81, 0')
    a('s_load_dword s90, s[28:29], 0')
    srd(a, 12, ws, WS_PT, PT_BYTES)
    srd(a, 24, 76, 0, N*128)
    a('s_mov_b64 s[88:89], s[80:81]')
    a('s_and_b32 s34, s3, 1')
    a('s_bfe_u32 s35, s3, 0x20001')
    a(f's_mul_i32 s37, s85, {NB}')
    a('s_lshl_b32 s38, s35, 5')
    a('v_lshlrev_b32 v11, 4, v1')
    a('v_and_b32 v8, 31, v1')
    a('v_add_u32 v8, s38, v8')
    a('v_lshrrev_b32 v9, 5, v1')
    a('v_lshlrev_b32 v3, 3, v3')
    a(f'v_add_u32 v3, {L_AGG}, v3')
    a('s_movk_i32 s42, 128')
    a('s_mov_b32 s43, 0xffff0000')
    a('s_mov_b32 s44, 1.0')
    a('s_mov_b32 s45, 1.0')
    a('s_mov_b32 s46, 0x3f80')
    a(f's_mov_b32 s47, {hex(f32(-LOG2E))}')
    a(f's_mov_b32 s48, {hex(f32(-LN2))}')
    a(f's_mov_b32 s49, {hex(f32(-LN2))}')
    a('s_mov_b32 s50, 0')
    a('v_lshlrev_b32 v12, 4, v0')
    for r in range(16, 20): a(f'v_mov_b32 v{r}, 0')
    a(f'v_add_u32 v13, {L_AGG}, v12')
    for j in range(3):
        a(f'ds_write_b128 v13, v[16:19] offset:{16384*j}')
    a(f'v_cmp_gt_u32 vcc, {NB*RS*2//16-3072}, v0')
    a('s_and_saveexec_b64 s[52:53], vcc')
    a('ds_write_b128 v13, v[16:19] offset:49152')
    a('s_mov_b64 exec, s[52:53]')
    a.lab('B_batch')
    for r in range(16, 20): a(f'v_mov_b32 v{r}, 0')
    a('v_lshlrev_b32 v12, 4, v0')
    a(f'v_cmp_gt_u32 vcc, {L_REC//16}, v0')
    a('s_and_saveexec_b64 s[52:53], vcc')
    a('ds_write_b128 v12, v[16:19]')
    a('s_mov_b64 exec, s[52:53]')
    a(f'v_mov_b32 v20, {N}')
    a('v_mov_b32 v21, v20')
    a('v_mov_b32 v22, v20')
    a('v_mov_b32 v23, v20')
    a(f'ds_write_b128 v12, v[20:23] offset:{L_REC}')
    a(f'ds_write_b128 v12, v[20:23] offset:{L_REC+16384}')
    a(f'v_cmp_gt_u32 vcc, {NPCAP-2048}, v0')
    a('s_and_saveexec_b64 s[52:53], vcc')
    a(f'ds_write_b128 v12, v[20:23] offset:{L_REC+32768}')
    a('s_mov_b64 exec, s[52:53]')
    a('v_and_b32 v14, 7, v0')
    a('v_lshlrev_b32 v14, 1, v14')
    a('v_add_u32 v14, s50, v14')
    a(f's_movk_i32 s51, {CH}')
    a('v_mul_u32_u24 v15, s51, v4')
    a('v_add_u32 v15, v15, v14')
    a('v_mov_b32 v25, 0x7fffff00')
    a('s_waitcnt vmcnt(0)')
    stamp(a, 1)
    for rd in range(2):
        T = 6+rd
        a(f'v_bfe_u32 v{20+rd}, v{T}, 16, 13')
        a(f'v_and_b32 v{22+rd}, 0xffff, v{T}')
        a(f'v_add_u32 v{22+rd}, v{22+rd}, v15')
        if rd == 1:
            a(f'v_add_u32 v{22+rd}, {128*CH}, v{22+rd}')
        a(f'v_lshlrev_b32 v{22+rd}, 3, v{22+rd}')
        a(f'v_sub_u32 v{16+rd}, v{20+rd}, v14')
    for rd in range(2):
        for ld in range(2):
            for e in range(2):
                s = rd*4+ld*2+e
                a(f'v_cmp_lt_i32 s[{52+2*s}:{53+2*s}], {ld*16+e}, v{16+rd}')
    order = [(0, 0), (1, 0), (0, 1), (1, 1)]
    for rd, ld in order:
        s = rd*4+ld*2
        r = 96+(rd*2+ld)*4
        a(f'v_cndmask_b32 v{26+rd*2+ld}, v25, v{22+rd}, s[{52+2*s}:{53+2*s}]')
        a(f'buffer_load_dwordx4 {q4(r)}, v{26+rd*2+ld}, s[8:11], 0 offen offset:{128*ld}')
    a('s_cmp_lg_u32 s50, 0')
    a('s_cbranch_scc1 B_noaux')
    a('s_lshl_b32 s39, s37, 7')
    a('s_lshl_b32 s40, s3, 10')
    a('s_add_u32 s39, s39, s40')
    a('buffer_load_dwordx4 v[32:35], v11, s[16:19], s39 offen')
    a(f's_add_u32 m0, s40, {L_WU}')
    a('s_add_u32 s40, s40, 8192')
    a('buffer_load_dwordx4 v11, s[20:23], s40 offen lds')
    a(f's_movk_i32 s41, {WF_W3}')
    a('v_lshlrev_b32 v18, 1, v2')
    a('buffer_load_dwordx4 v[68:71], v18, s[20:23], s41 offen')
    a('buffer_load_dwordx4 v[72:75], v18, s[20:23], s41 offen offset:16')
    srd(a, 28, 88, WS_PF, PF_BYTES)
    a('v_lshlrev_b32 v18, 2, v0')
    a('buffer_load_dword v44, v18, s[28:31], 0 offen')
    a('s_cmp_ge_u32 s3, 8')
    a('s_cbranch_scc1 B_now2')
    a('s_lshl_b32 s39, s34, 12')
    for ks in range(4):
        a(f'buffer_load_dwordx4 {q4(48+4*ks)}, v11, s[20:23], s39 offen offset:{1024*ks}')
    a.lab('B_now2')
    a.lab('B_noaux')
    a('s_waitcnt lgkmcnt(0)')
    a('s_barrier')
    a('v_max_i32 v16, v16, v17')
    a('v_or_b32 v17, v6, v7')
    a('v_cmp_lt_i32 vcc, 32, v16')
    a('v_cmp_gt_i32 s[68:69], 0, v17')
    a(f'v_mov_b32 v24, {L_MAX}')
    a('v_mov_b32 v16, 1')
    a('s_cbranch_vccz B_nomore')
    a('ds_write_b32 v24, v16')
    a.lab('B_nomore')
    a('s_cmp_eq_u64 s[68:69], 0')
    a('s_cbranch_scc1 B_noflag')
    a('ds_write_b32 v24, v16 offset:4')
    a.lab('B_noflag')
    a('v_mov_b32 v24, 4')
    def ranks(extra):
        for n, (rd, ld) in enumerate(order):
            a(f's_waitcnt vmcnt({3-n+extra})')
            for e in range(2):
                s = rd*4+ld*2+e
                r = 96+(rd*2+ld)*4+2*e
                a(f's_mov_b64 exec, s[{52+2*s}:{53+2*s}]')
                a(f'ds_add_rtn_u32 v{36+s}, v{r+1}, v24 offset:{L_CNT}')
        a('s_mov_b64 exec, -1')
    a('s_cmp_lg_u32 s50, 0')
    a('s_cbranch_scc1 B_rk0')
    a('s_cmp_ge_u32 s3, 8')
    a('s_cbranch_scc1 B_rk3')
    ranks(9)
    a('s_waitcnt vmcnt(8)')
    a('s_branch B_rkx')
    a.lab('B_rk3')
    ranks(5)
    a('s_waitcnt vmcnt(4)')
    a.lab('B_rkx')
    stamp(a, 7)
    a('v_lshrrev_b32 v16, 3, v1')
    a('v_and_b32 v17, 7, v1')
    a('v_xor_b32 v17, v17, v16')
    a('v_lshlrev_b32 v17, 4, v17')
    a('v_lshl_add_u32 v17, v16, 7, v17')
    a('s_lshl_b32 s51, s3, 10')
    a(f's_add_u32 s51, s51, {L_X}')
    a('v_add_u32 v17, s51, v17')
    a('s_cmp_ge_u32 s3, 13')
    a('s_cbranch_scc1 B_rkdone')
    a('ds_write_b128 v17, v[32:35]')
    a('s_branch B_rkdone')
    a.lab('B_rk0')
    ranks(0)
    a.lab('B_rkdone')
    a('s_waitcnt lgkmcnt(0)')
    a('s_barrier')
    stamp(a, 2)
    a('s_cmp_ge_u32 s3, 8')
    a('s_cbranch_scc1 B_scan')
    a('s_cmp_lg_u32 s50, 0')
    a('s_cbranch_scc1 B_mid')
    a('v_and_b32 v18, 7, v1')
    a('v_xor_b32 v18, v18, v9')
    a('v_lshlrev_b32 v16, 7, v8')
    a(f'v_add_u32 v16, {L_X}, v16')
    for ks in range(4):
        a(f'v_xor_b32 v19, {2*ks}, v18')
        a(f'v_lshl_add_u32 v{20+ks}, v19, 4, v16')
        a(f'ds_read_b128 {q4(76+4*ks)}, v{20+ks}')
    a(f's_movk_i32 s68, {RS}')
    a('v_mul_u32_u24 v16, s68, v8')
    a('v_lshl_add_u32 v16, v9, 6, v16')
    a('s_lshl_b32 s68, s34, 5')
    a('v_add_u32 v16, s68, v16')
    a(f'v_mov_b32 v18, {NB}')
    a('v_cmp_gt_u32 s[68:69], v18, v8')
    a(f's_waitcnt vmcnt({NPF}) lgkmcnt(0)')
    for ks in range(4):
        c = '0' if ks == 0 else 'v[112:127]'
        a(f'v_mfma_f32_32x32x16_bf16 v[112:127], {q4(48+4*ks)}, {q4(76+4*ks)}, {c}')
    a('s_nop 11')
    for r in range(16):
        a(f'v_mul_f32 v{112+r}, s47, v{112+r}')
    a('s_mov_b64 exec, s[68:69]')
    for o in range(2):
        a(f'ds_write_b128 v16, {q4(112+8*o)} offset:{L_Q+16*o}')
        a(f'ds_write_b128 v16, {q4(116+8*o)} offset:{L_Q+128+16*o}')
    a('v_max_f32 v17, |v112|, |v113|')
    for r in range(2, 16, 2):
        a(f'v_max3_f32 v17, v17, |v{112+r}|, |v{113+r}|')
    a(f'v_cmp_lt_f32 vcc, {hex(f32(LIM_Q))}, v17')
    a('s_mov_b64 exec, -1')
    a('s_cbranch_vccz B_mid')
    a(f'v_mov_b32 v24, {L_FLAG}')
    a('v_mov_b32 v16, 1')
    a('ds_write_b32 v24, v16')
    a('s_branch B_mid')
    a.lab('B_scan')
    a('s_cmp_lt_u32 s3, 12')
    a('s_cbranch_scc1 B_scan2')
    if PREF:
        a('s_cmp_lg_u32 s50, 0')
        a('s_cbranch_scc1 B_mid')
        a('s_waitcnt vmcnt(0)')
        a('s_mul_i32 s39, s86, 100000')
        a('s_sub_u32 s40, s3, 12')
        a('s_mul_i32 s40, s40, 25600')
        a('s_add_u32 s39, s39, s40')
        a(f's_mov_b32 m0, {L_SCR}')
        for j in range(25):
            a('buffer_load_dwordx4 v11, s[12:15], s39 offen lds')
            if j < 24: a('s_add_u32 s39, s39, 1024')
        a('s_branch B_mid2')
    else:
        a('s_branch B_mid')
    a.lab('B_scan2')
    a(f'ds_read_b128 v[16:19], v11 offset:{L_CNT}')
    a('s_waitcnt lgkmcnt(0)')
    for k in range(2):
        a(f'v_and_b32 v{20+k}, 12, v{16+2*k}')
        a(f'v_min_u32 v{20+k}, 1, v{20+k}')
        a(f'v_lshrrev_b32 v{22+k}, 4, v{16+2*k}')
        a(f'v_lshl_or_b32 v{20+k}, v{20+k}, 16, v{22+k}')
    a('v_add_u32 v24, v20, v21')
    a('v_mov_b32 v25, v24')
    wave_scan(a, 25)
    a('v_sub_u32 v24, v25, v24')
    a('v_readlane_b32 s70, v25, 63')
    a('v_add_u32 v25, v24, v20')
    a(f's_movk_i32 s51, {2*RS}')
    a('v_mul_u32_u24 v76, s51, v1')
    a('s_and_b32 s72, s70, 0xffff')
    for k in range(2):
        a(f'v_and_b32 v{28+k}, 0xffff, v{24+k}')
        a(f'v_lshrrev_b32 v{30+k}, 16, v{24+k}')
        a(f'v_add_u32 v{30+k}, s72, v{30+k}')
        a(f'v_sub_u32 v{81+2*k}, v{30+k}, v{22+k}')
        a(f'v_lshlrev_b32 v{81+2*k}, 20, v{81+2*k}')
        a(f'v_lshl_or_b32 v{80+2*k}, v{28+k}, 4, v{81+2*k}')
        a(f'v_lshlrev_b32 v{81+2*k}, 4, v{22+k}')
    a(f'ds_write_b128 v11, v[80:83] offset:{L_BASE}')
    a(f'v_add_u32 v77, {RS}, v76')
    a('s_sub_u32 s51, s3, 8')
    a.lab('B_pn')
    for k in range(2):
        a(f'v_cmp_lt_u32 s[{74+2*k}:{75+2*k}], s51, v{22+k}')
        a(f'v_add_u32 v{78+k}, s51, v{28+k}')
        a(f'v_lshlrev_b32 v{78+k}, 1, v{78+k}')
    a('s_or_b64 s[68:69], s[74:75], s[76:77]')
    a('s_cbranch_scc0 B_pn_done')
    for k in range(2):
        a(f's_mov_b64 exec, s[{74+2*k}:{75+2*k}]')
        a(f'ds_write_b16 v{78+k}, v{76+k} offset:{L_PN}')
    a('s_mov_b64 exec, -1')
    a('s_add_u32 s51, s51, 4')
    a('s_branch B_pn')
    a.lab('B_pn_done')
    a('s_cmp_lg_u32 s3, 11')
    a('s_cbranch_scc1 B_mid')
    for k in range(2):
        a(f'v_lshrrev_b32 v{78+k}, 16, v{20+k}')
        a(f'v_cmp_ne_u32 s[{74+2*k}:{75+2*k}], 0, v{78+k}')
        a(f'v_lshlrev_b32 v{78+k}, 1, v{30+k}')
    for k in range(2):
        a(f's_mov_b64 exec, s[{74+2*k}:{75+2*k}]')
        a(f'ds_write_b16 v{78+k}, v{76+k} offset:{L_PN}')
    a('s_mov_b64 exec, 1')
    a(f'v_mov_b32 v24, {L_TOT}')
    a('v_mov_b32 v25, s70')
    a('ds_write_b32 v24, v25')
    a('s_mov_b64 exec, -1')
    a.lab('B_mid')
    a('s_cmp_lg_u32 s50, 0')
    a('s_cbranch_scc1 B_mid2')
    a('s_waitcnt vmcnt(0)')
    a('v_cmp_ne_u32 vcc, 0, v44')
    a(f'v_mov_b32 v24, {L_FLAG}')
    a('v_mov_b32 v16, 1')
    a('s_cbranch_vccz B_mid2')
    a('ds_write_b32 v24, v16')
    a.lab('B_mid2')
    a('s_waitcnt lgkmcnt(0)')
    a('s_barrier')
    stamp(a, 6)
    a(f'v_mov_b32 v24, {L_MAX}')
    a('ds_read_b128 v[16:19], v24')
    for s in range(8):
        r = 96+(s//2)*4+2*(s % 2)
        a(f's_mov_b64 exec, s[{52+2*s}:{53+2*s}]')
        a(f'ds_read_b64 {pr(76+2*s)}, v{r+1} offset:{L_BASE}')
    a('s_mov_b64 exec, -1')
    a('v_lshrrev_b32 v13, 3, v1')
    a(f'v_mov_b32 v14, {L_WORK}')
    a('v_mov_b32 v15, 1')
    a('s_waitcnt lgkmcnt(0)')
    a('v_readfirstlane_b32 s70, v19')
    a('v_readfirstlane_b32 s71, v16')
    a('v_readfirstlane_b32 s91, v17')
    for s in range(8):
        a(f'v_cmp_lt_u32 vcc, v{36+s}, v{77+2*s}')
        if s > 0:
            a(f'v_add_u32 v{36+s-1}, v{36+s-1}, v{76+2*(s-1)}')
            r = 96+((s-1)//2)*4+2*((s-1) % 2)
            a(f's_mov_b64 exec, s[{52+2*(s-1)}:{53+2*(s-1)}]')
            a(f'ds_write_b32 v{36+s-1}, v{r} offset:{L_REC}')
            a('s_mov_b64 exec, -1')
        else:
            a('s_nop 1')
        a(f'v_cndmask_b32_sdwa v{76+2*s}, v{76+2*s}, v{76+2*s}, vcc dst_sel:DWORD dst_unused:UNUSED_PAD src0_sel:WORD_1 src1_sel:WORD_0')
    a('s_and_b32 s72, s70, 0xffff')
    a(f'v_add_u32 v43, v43, v90')
    a('s_mov_b64 exec, s[66:67]')
    a(f'ds_write_b32 v43, v110 offset:{L_REC}')
    a('s_mov_b64 exec, -1')
    a('s_lshr_b32 s73, s70, 16')
    a('s_add_u32 s73, s73, s72')
    a('s_or_b32 s90, s90, s91')
    a('s_lshr_b32 s74, s72, 3')
    a('s_lshl_b32 s68, s74, 3')
    a('s_sub_u32 s75, s73, s68')
    a('s_add_u32 s75, s75, 7')
    a('s_lshr_b32 s75, s75, 3')
    a('s_add_u32 s75, s75, s74')
    a('s_mov_b32 s82, s74')
    a('s_cmp_lg_u32 s90, 0')
    a('s_cselect_b32 s82, 0, s82')
    if FORCE_PLAIN: a('s_mov_b32 s82, 0')
    a('v_mul_u32_u24 v10, s74, v13')
    a('v_lshlrev_b32 v12, 4, v10')
    a('v_lshlrev_b32 v10, 1, v10')
    a('v_lshlrev_b32 v111, 4, v13')
    a('v_lshlrev_b32 v13, 1, v13')
    a('s_waitcnt lgkmcnt(0)')
    a('s_barrier')
    stamp(a, 3)
    stampc(a, 8)
    a('s_mov_b32 s83, 0')
    if PRIO: a('s_setprio 3')
    RAW = 32; Q = 48; EE = 56; RC = 60; ND = 64; IDX = 65; AGC = 66; AGN = 67; Z = 76; T = 16; TMP = 108
    cnt = [0]
    def read_recs(sidx):
        n = cnt[0]; cnt[0] += 1
        a(f's_cmp_ge_u32 s{sidx}, s74')
        a(f's_cbranch_scc1 B_rrP{n}')
        a(f's_lshl_b32 s51, s{sidx}, 4')
        a(f'v_add_u32 v{TMP}, s51, v12')
        a(f's_lshl_b32 s51, s{sidx}, 1')
        a(f'v_add_u32 v{TMP+1}, s51, v10')
        a(f's_branch B_rrX{n}')
        a.lab(f'B_rrP{n}')
        a(f's_min_u32 s79, s{sidx}, {NPCAP//8-1}')
        a(f's_lshl_b32 s51, s79, 7')
        a(f'v_add_u32 v{TMP}, s51, v111')
        a(f's_lshl_b32 s51, s79, 4')
        a(f'v_add_u32 v{TMP+1}, s51, v13')
        a.lab(f'B_rrX{n}')
        a(f'ds_read_b128 {q4(RC)}, v{TMP} offset:{L_REC}')
        a(f'ds_read_u16 v{ND}, v{TMP+1} offset:{L_PN}')
    def fetch():
        for k in range(4):
            a(f'v_mad_u32_u16 v{TMP+(k&1)}, v{RC+k}, s42, v2')
            a(f'buffer_load_dwordx4 {q4(RAW+4*k)}, v{TMP+(k&1)}, s[12:15], 0 offen')
        a(f'v_add_u32 v{TMP+2}, v{ND}, v2')
        a(f'ds_read_b128 {q4(Q)}, v{TMP+2} offset:{L_Q}')
        a(f'ds_read_b128 {q4(Q+4)}, v{TMP+2} offset:{L_Q+128}')
        a(f'v_lshl_add_u32 v{AGN}, v{ND}, 1, v3')
        for k in range(4):
            a(f'v_and_b32 v{EE+k}, s43, v{RC+k}')
    def grab():
        a('s_mov_b64 exec, 1')
        a(f'ds_add_rtn_u32 v{IDX}, v14, v15')
        a('s_mov_b64 exec, -1')
    def zphase():
        for k in range(4):
            R = RAW+4*k; Zk = Z+8*k
            ep = EE+(k & ~1)
            sel = 'op_sel:[0,0,0] op_sel_hi:[0,1,1]' if k % 2 == 0 else 'op_sel:[1,0,0] op_sel_hi:[1,1,1]'
            for p in range(4):
                a(f'v_pk_fma_f32 {pr(Zk+2*p)}, {pr(ep)}, {pr(68+2*p)}, {pr(Q+2*p)} {sel}')
            a(f's_waitcnt vmcnt({3-k})')
            for i in range(4):
                a(f'v_dot2_f32_bf16 v{Zk+4+i}, v{R+i}, s46, v{Zk+4+i}')
            a(f'v_pk_add_f32 {pr(Zk)}, {pr(R)}, {pr(Zk)}')
            a(f'v_pk_add_f32 {pr(Zk+2)}, {pr(R+2)}, {pr(Zk+2)}')
    def shared():
        for pp in range(2):
            ps = [2*pp, 2*pp+1]
            tt = {ps[0]: T, ps[1]: T+6}
            for half in range(2):
                def regs(p):
                    za = Z+16*half+2*p
                    return za, za+8, tt[p]+(0 if half == 0 else 4), tt[p]+2
                for p in ps:
                    za, zb, ta, tb = regs(p)
                    a(f'v_exp_f32 v{ta}, v{za}'); a(f'v_exp_f32 v{ta+1}, v{za+1}')
                    a(f'v_exp_f32 v{tb}, v{zb}'); a(f'v_exp_f32 v{tb+1}, v{zb+1}')
                for p in ps:
                    za, zb, ta, tb = regs(p)
                    a(f'v_pk_fma_f32 {pr(zb)}, {pr(zb)}, {pr(ta)}, {pr(zb)}')
                for p in ps:
                    za, zb, ta, tb = regs(p)
                    a(f'v_pk_add_f32 {pr(tb)}, {pr(tb)}, s[44:45]')
                for p in ps:
                    za, zb, ta, tb = regs(p)
                    a(f'v_pk_fma_f32 {pr(zb)}, {pr(za)}, {pr(tb)}, {pr(zb)}')
                for p in ps:
                    za, zb, ta, tb = regs(p)
                    a(f'v_pk_fma_f32 {pr(ta)}, {pr(ta)}, {pr(tb)}, {pr(tb)}')
            for p in ps:
                a(f'v_pk_mul_f32 {pr(Z+2*p)}, {pr(Z+8+2*p)}, {pr(tt[p]+4)}')
            for p in ps:
                a(f'v_pk_mul_f32 {pr(tt[p]+2)}, {pr(tt[p])}, {pr(tt[p]+4)}')
            for p in ps:
                a(f'v_pk_fma_f32 {pr(Z+2*p)}, {pr(Z+24+2*p)}, {pr(tt[p])}, {pr(Z+2*p)}')
            for p in ps:
                a(f'v_rcp_f32 v{tt[p]+2}, v{tt[p]+2}'); a(f'v_rcp_f32 v{tt[p]+3}, v{tt[p]+3}')
            a('s_nop 0')
            for p in ps:
                a(f'v_pk_mul_f32 {pr(Z+2*p)}, {pr(Z+2*p)}, {pr(tt[p]+2)}')
            for p in ps:
                a(f'v_cvt_f64_f32 {pr(Z+8+2*p)}, v{Z+2*p}'); a(f'v_cvt_f64_f32 {pr(Z+16+2*p)}, v{Z+2*p+1}')
            for p in ps:
                a(f'ds_add_f64 v{AGC}, {pr(Z+8+2*p)} offset:{64*(2*p)}')
                a(f'ds_add_f64 v{AGC}, {pr(Z+16+2*p)} offset:{64*(2*p+1)}')
    def plain():
        AC = T+8
        for k in range(4):
            Zk = Z+8*k
            for i in range(8): a(f'v_exp_f32 v{T+i}, v{Zk+i}')
            for p in range(4): a(f'v_pk_add_f32 {pr(T+2*p)}, {pr(T+2*p)}, s[44:45]')
            for i in range(8): a(f'v_rcp_f32 v{T+i}, v{T+i}')
            for p in range(4):
                if k == 0:
                    a(f'v_pk_mul_f32 {pr(AC+2*p)}, {pr(Zk+2*p)}, {pr(T+2*p)}')
                else:
                    a(f'v_pk_fma_f32 {pr(AC+2*p)}, {pr(Zk+2*p)}, {pr(T+2*p)}, {pr(AC+2*p)}')
        for i in range(8): a(f'v_cvt_f64_f32 {pr(Z+2*i)}, v{AC+i}')
        for i in range(8): a(f'ds_add_f64 v{AGC}, {pr(Z+2*i)} offset:{64*i}')
    a('s_mov_b32 s76, s3')
    a('s_add_u32 s77, s3, 16')
    a('s_cmp_ge_u32 s76, s75')
    a('s_cbranch_scc1 B_loop_end')
    read_recs(76)
    grab()
    a('s_waitcnt lgkmcnt(0)')
    fetch()
    read_recs(77)
    a('s_waitcnt lgkmcnt(0)')
    a.lab('B_loop')
    a('s_waitcnt lgkmcnt(8)')
    a(f'v_mov_b32 v{AGC}, v{AGN}')
    a(f'v_readfirstlane_b32 s78, v{IDX}')
    zphase()
    if DEBUG:
        a('s_cmp_gt_u32 s83, 3')
        a('s_cbranch_scc1 B_nost')
        a('s_memrealtime s[92:93]')
        a('s_add_u32 m0, s83, 11')
        a('s_waitcnt lgkmcnt(0)')
        a('v_writelane_b32 v5, s92, m0')
        a.lab('B_nost')
    a('s_add_u32 s78, s78, 32')
    a('s_cmp_ge_u32 s77, s75')
    a('s_cbranch_scc1 B_nofetch')
    fetch()
    read_recs(78)
    grab()
    a.lab('B_nofetch')
    a('s_cmp_ge_u32 s76, s82')
    a('s_cbranch_scc1 B_plain')
    shared()
    a.lab('B_next')
    a('s_add_u32 s83, s83, 1')
    if PRIO:
        for c, p in ((2, 2), (4, 1), (5, 0)):
            a(f's_cmp_lg_u32 s83, {c}')
            a(f's_cbranch_scc1 B_pr{c}')
            a(f's_setprio {p}')
            a.lab(f'B_pr{c}')
    a('s_mov_b32 s76, s77')
    a('s_mov_b32 s77, s78')
    a('s_cmp_lt_u32 s76, s75')
    a('s_cbranch_scc1 B_loop')
    a('s_branch B_loop_end')
    a.lab('B_plain')
    plain()
    a('s_branch B_next')
    a.lab('B_loop_end')
    stamp(a, 4)
    a('s_cmp_lt_u32 s3, 8')
    a('s_cbranch_scc1 B_join')
    a('s_lshl_b32 s39, s34, 12')
    a(f's_add_u32 s39, s39, {L_WU}')
    a('v_add_u32 v17, s39, v11')
    a('v_and_b32 v18, 7, v1')
    a('v_xor_b32 v18, v18, v9')
    a('v_lshlrev_b32 v16, 7, v8')
    a(f'v_add_u32 v16, {L_X}, v16')
    for ks in range(4):
        a(f'v_xor_b32 v19, {2*ks}, v18')
        a(f'v_lshl_add_u32 v{20+ks}, v19, 4, v16')
        a(f'ds_read_b128 {q4(32+4*ks)}, v{20+ks}')
        a(f'ds_read_b128 {q4(48+4*ks)}, v17 offset:{1024*ks}')
    a('s_waitcnt lgkmcnt(0)')
    for ks in range(4):
        c = '0' if ks == 0 else 'v[112:127]'
        a(f'v_mfma_f32_32x32x16_bf16 v[112:127], {q4(48+4*ks)}, {q4(32+4*ks)}, {c}')
    for ks in range(4):
        a(f'ds_read_b128 {q4(48+4*ks)}, v17 offset:{8192+1024*ks}')
    a.lab('B_join')
    a('s_waitcnt lgkmcnt(0)')
    a('s_barrier')
    stamp(a, 5)
    stampc(a, 9)
    if DEBUG: a('v_writelane_b32 v5, s83, 10')
    a('s_add_u32 s50, s50, 32')
    a('s_cmp_lg_u32 s71, 0')
    a('s_cbranch_scc1 B_batch')
    a('s_cmp_lt_u32 s3, 8')
    a('s_cbranch_scc1 B_done2')
    a(f's_movk_i32 s51, {2*RS}')
    a('v_mul_u32_u24 v16, s51, v8')
    a('v_lshl_add_u32 v16, v9, 5, v16')
    a(f'v_add_u32 v16, {L_AGG}, v16')
    for half in range(2):
        for ii in range(4):
            i = half*4+ii
            a(f'ds_read_b128 {q4(64+8*ii)}, v16 offset:{64*i}')
            a(f'ds_read_b128 {q4(68+8*ii)}, v16 offset:{64*i+16}')
        for ii in range(4):
            i = half*4+ii
            a(f's_waitcnt lgkmcnt({6-2*ii})')
            for q in range(4):
                a(f'v_cvt_f32_f64 v{96+q}, {pr(64+8*ii+2*q)}')
            a(f'v_pk_mul_f32 v[96:97], v[96:97], s[48:49]')
            a(f'v_pk_mul_f32 v[98:99], v[98:99], s[48:49]')
            a(f'v_cvt_pk_bf16_f32 v{32+2*i}, v96, v97')
            a(f'v_cvt_pk_bf16_f32 v{33+2*i}, v98, v99')
    a('s_nop 1')
    for ks in range(4):
        a(f'v_mfma_f32_32x32x16_bf16 v[112:127], {q4(48+4*ks)}, {q4(32+4*ks)}, v[112:127]')
    a('v_add_u32 v17, s37, v8')
    a('v_lshlrev_b32 v17, 7, v17')
    a('v_lshl_add_u32 v17, v9, 5, v17')
    a('s_lshl_b32 s51, s34, 6')
    a(f'v_cmp_gt_u32 vcc, {NB}, v8')
    a('s_nop 12')
    for r in range(16): a(f'v_mul_f32 v{64+r}, s47, v{112+r}')
    for r in range(16): a(f'v_exp_f32 v{64+r}, v{64+r}')
    for r in range(16): a(f'v_add_f32 v{64+r}, 1.0, v{64+r}')
    for r in range(16): a(f'v_rcp_f32 v{64+r}, v{64+r}')
    for r in range(16): a(f'v_mul_f32 v{64+r}, v{64+r}, v{112+r}')
    for r in range(0, 16, 2): a(f'v_cvt_pk_bf16_f32 v{32+r//2}, v{64+r}, v{65+r}')
    a('s_and_b64 exec, exec, vcc')
    a('buffer_store_dwordx4 v[32:35], v17, s[24:27], s51 offen')
    a('buffer_store_dwordx4 v[36:39], v17, s[24:27], s51 offen offset:16')
    a.lab('B_done2')
    stamp_out(a, 1, 88)
    a.lab('B_done')
    a('s_endpgm')
    a.lab('code_end')

def kd(a, name, vgpr, sgpr):
    a.raw('.p2align 6')
    a.raw(f'.amdhsa_kernel {name}')
    a.raw(f'  .amdhsa_next_free_vgpr {vgpr}')
    a.raw(f'  .amdhsa_next_free_sgpr {sgpr}')
    a.raw(f'  .amdhsa_accum_offset {(vgpr+3)//4*4}')
    a.raw('  .amdhsa_group_segment_fixed_size 0')
    a.raw('  .amdhsa_kernarg_size 72')
    a.raw('  .amdhsa_user_sgpr_count 2')
    a.raw('  .amdhsa_user_sgpr_kernarg_segment_ptr 1')
    a.raw('  .amdhsa_system_sgpr_workgroup_id_x 1')
    a.raw('.end_amdhsa_kernel')

def main():
    ref = open('gather_scatter__mpnn_edge_mlp__graph.s.ref').read().splitlines()
    hdr = [l for l in ref if l.startswith(';') and '@launch' not in l and 'Override' not in l and 'grid=ceil' not in l]
    a = A()
    for l in hdr: a.raw(l)
    a.raw(f'; @launch kernel=mpnn_bin_kernel grid=({A_GRID},1,1) block=({A_BLOCK},1,1) lds={A_LDS}')
    a.raw(f'; @launch kernel=mpnn_main_kernel grid=({NBK},1,1) block=(1024,1,1) lds={B_LDS}')
    a.raw('.amdgcn_target "amdgcn-amd-amdhsa--gfx950"')
    a.raw('.text')
    kernel_a(a)
    kernel_b(a)
    a.raw('.section .rodata,"a"')
    kd(a, 'mpnn_bin_kernel', 128, 100)
    kd(a, 'mpnn_main_kernel', 128, 100)
    out = sys.argv[1] if len(sys.argv) > 1 else 'gather_scatter__mpnn_edge_mlp__graph.s'
    open(out, 'w').write('\n'.join(a.l) + '\n')

main()
```

```python
import sys, struct, os
DEBUG = int(os.environ.get('DEBUG', '0'))
PRIO = int(os.environ.get('PRIO', '1'))
XMAP = int(os.environ.get('XMAP', '1'))
PREF = int(os.environ.get('PREF', '0'))
CPF = int(os.environ.get('CPF', '0'))
FORCE_PLAIN = int(os.environ.get('FORCE_PLAIN', '0'))

N = 25000; E = 800000
NB = 98
NBK = 256
CH = 3200
NCH = 250
WS_REC = 0
WS_TAB = 0x700000
WS_PF  = 0x780000
WS_PT  = 0x800000
WS_WF  = 0xC00000
REC_BYTES = NCH*CH*8
TAB_BYTES = NCH*NBK*4
PF_BYTES  = 784*4
PT_BYTES  = (N+1)*128
WF_BYTES  = 3*8192 + 512
WF_W3 = 3*8192
LOG2E = 1.4426950408889634
LN2 = 0.6931471805599453
LIM_P = 6.0; LIM_Q = 6.0; LIM_E_BF16 = 0x4090; LIM_W = 4.0
def f32(x): return struct.unpack('<I', struct.pack('<f', x))[0]

class A:
    def __init__(s): s.l = []
    def __call__(s, t): s.l.append('    ' + t)
    def lab(s, t): s.l.append(t + ':')
    def raw(s, t): s.l.append(t)

def srd(a, d, base, off, nbytes):
    if off:
        a(f's_add_u32 s{d}, s{base}, {hex(off)}')
        a(f's_addc_u32 s{d+1}, s{base+1}, 0')
    else:
        a(f's_mov_b32 s{d}, s{base}')
        a(f's_mov_b32 s{d+1}, s{base+1}')
    a(f's_mov_b32 s{d+2}, {hex(nbytes)}')
    a(f's_mov_b32 s{d+3}, 0x00020000')

PROF_OFF = 0x4000000
def stamp(a, i, vr=5, sr=92):
    if not DEBUG: return
    a(f's_memrealtime s[{sr}:{sr+1}]')
    a('s_waitcnt lgkmcnt(0)')
    a(f'v_writelane_b32 v{vr}, s{sr}, {i}')
def stampc(a, i, vr=5, sr=92):
    if not DEBUG: return
    a(f's_memtime s[{sr}:{sr+1}]')
    a('s_waitcnt lgkmcnt(0)')
    a(f'v_writelane_b32 v{vr}, s{sr}, {i}')
def stamp_out(a, kern, wsreg, vr=5, sr=92, tmp=6):
    if not DEBUG: return
    a('s_waitcnt vmcnt(0)')
    stamp(a, 15, vr, sr)
    a('s_mov_b64 exec, -1')
    srd(a, 96, wsreg, PROF_OFF + kern*0x400000, 0x400000)
    a(f's_lshl_b32 s{sr}, s2, 4')
    a(f's_add_u32 s{sr}, s{sr}, s3')
    a(f's_lshl_b32 s{sr}, s{sr}, 8')
    a(f'v_lshlrev_b32 v{tmp}, 2, v1')
    a(f'buffer_store_dword v{vr}, v{tmp}, s[96:99], s{sr} offen')

def wave_scan(a, v):
    for sh in (1, 2, 4, 8):
        a('s_nop 1')
        a(f'v_add_u32_dpp v{v}, v{v}, v{v} row_shr:{sh} row_mask:0xf bank_mask:0xf bound_ctrl:0')
    a('s_nop 1')
    a(f'v_add_u32_dpp v{v}, v{v}, v{v} row_bcast:15 row_mask:0xa bank_mask:0xf')
    a('s_nop 1')
    a(f'v_add_u32_dpp v{v}, v{v}, v{v} row_bcast:31 row_mask:0xc bank_mask:0xf')

def pr(r): return f'v[{r}:{r+1}]'
def q4(r): return f'v[{r}:{r+3}]'

A_GEMM0 = NCH
A_PREP0 = NCH + 112
A_GRID = A_PREP0 + 4
A_BLOCK = 448
A_XT = 0
A_W1 = 7*4096
A_LDS = A_W1 + 8192
A_STAGE = 2048 + 64
A_EFLAG = 2048
ST_A = os.environ.get('ST_A', 'sc0 sc1')

def kernel_a(a):
    a.raw('.globl mpnn_bin_kernel')
    a.raw('.p2align 8')
    a.raw('.type mpnn_bin_kernel,@function')
    a.lab('mpnn_bin_kernel')
    if DEBUG:
        a('s_memrealtime s[94:95]')
        a('s_getreg_b32 s62, hwreg(HW_REG_HW_ID)')
        a('s_getreg_b32 s63, hwreg(HW_REG_XCC_ID)')
    a('s_load_dwordx16 s[4:19], s[0:1], 0')
    a('s_load_dwordx2 s[20:21], s[0:1], 64')
    if CPF:
        a('s_getpc_b64 s[60:61]')
        a.lab('A_pc')
        a('v_lshlrev_b32 v100, 4, v0')
        a('v_add_u32 v101, 7168, v100')
        a('v_min_u32 v101, code_end-A_pc-16, v101')
        a('v_min_u32 v100, code_end-A_pc-16, v100')
        a('global_load_dwordx4 v[104:107], v100, s[60:61]')
        a('global_load_dwordx4 v[108:111], v101, s[60:61]')
    a(f's_cmp_ge_u32 s2, {A_GRID}')
    a('s_cbranch_scc1 A_done')
    a('v_lshrrev_b32 v1, 6, v0')
    a('v_lshlrev_b32 v3, 4, v0')
    a('v_readfirstlane_b32 s3, v1')
    a('v_and_b32 v1, 63, v0')
    a(f's_cmp_ge_u32 s2, {A_PREP0}')
    a('s_cbranch_scc1 A_prep')
    a(f's_cmp_ge_u32 s2, {A_GEMM0}')
    a('s_cbranch_scc1 A_gemm')
    a('v_cmp_gt_u32 vcc, 400, v0')
    a('s_and_b64 exec, exec, vcc')
    a('v_lshlrev_b32 v2, 3, v0')
    a(f's_mul_i32 s44, s2, {CH*4}')
    a(f's_mul_i32 s45, s2, {CH*2}')
    a(f's_add_u32 s50, s44, {CH*2}')
    a(f's_add_u32 s51, s45, {CH}')
    a('s_waitcnt lgkmcnt(0)')
    srd(a, 24, 10, 0, E*4)
    a('buffer_load_dwordx4 v[8:11], v3, s[24:27], s44 offen')
    a('buffer_load_dwordx4 v[12:15], v3, s[24:27], s50 offen')
    srd(a, 28, 8, 0, E*4)
    a('buffer_load_dwordx4 v[16:19], v3, s[28:31], s44 offen')
    a('buffer_load_dwordx4 v[20:23], v3, s[28:31], s50 offen')
    srd(a, 32, 6, 0, E*2)
    a('buffer_load_dwordx2 v[24:25], v2, s[32:35], s45 offen')
    a('buffer_load_dwordx2 v[26:27], v2, s[32:35], s51 offen')
    stamp(a, 0, 70)
    if DEBUG:
        a('v_writelane_b32 v70, s94, 8')
        a('v_writelane_b32 v70, s62, 9')
        a('v_writelane_b32 v70, s63, 10')
    a('v_lshlrev_b32 v5, 2, v0')
    a('v_mov_b32 v4, 0')
    a('v_mov_b32 v6, 2048')
    a('v_cmp_gt_u32 vcc, 256, v0')
    a('s_nop 1')
    a('v_cndmask_b32 v5, v6, v5, vcc')
    a('ds_write_b32 v5, v4')
    srd(a, 36, 20, WS_REC, REC_BYTES)
    srd(a, 40, 20, WS_TAB, TAB_BYTES)
    a('s_mov_b32 s46, 42800')
    a('s_mov_b32 s47, -196')
    a('s_mov_b32 s48, 0xffff0000')
    a('s_mov_b32 s52, 0x7fff7fff')
    a('v_mov_b32 v4, 1')
    a('s_waitcnt lgkmcnt(0)')
    a('s_barrier')
    for hf in range(2):
        a(f's_waitcnt vmcnt({5-hf})')
        if hf == 0: stamp(a, 1, 70)
        for j in range(4*hf, 4*hf+4):
            a(f'v_mul_u32_u24 v{28+j}, s46, v{8+j}')
            a(f'v_lshrrev_b32 v{28+j}, 22, v{28+j}')
            a(f'v_lshlrev_b32 v{28+j}, 2, v{28+j}')
            a(f'ds_add_rtn_u32 v{56+j}, v{28+j}, v4')
    for j in range(8):
        a(f'v_lshlrev_b32 v{8+j}, 3, v{8+j}')
        a(f'v_mad_i32_i24 v{41+2*j}, v{28+j}, s47, v{8+j}')
    a('s_mov_b64 s[22:23], exec')
    a('s_waitcnt lgkmcnt(0)')
    a('s_barrier')
    stamp(a, 2, 70)
    a('s_mov_b64 exec, -1')
    a('v_lshlrev_b32 v5, 4, v1')
    a('ds_read_b128 v[8:11], v5')
    a('s_waitcnt lgkmcnt(0)')
    a('v_add_u32 v13, v8, v9')
    a('v_add_u32 v14, v13, v10')
    a('v_add_u32 v15, v14, v11')
    a('v_mov_b32 v72, v15')
    wave_scan(a, 72)
    a('v_sub_u32 v12, v72, v15')
    a('v_add_u32 v15, v12, v14')
    a('v_add_u32 v14, v12, v13')
    a('v_add_u32 v13, v12, v8')
    for k in range(4):
        a(f'v_lshlrev_b32 v{72+k}, 3, v{12+k}')
    a('ds_write_b128 v5, v[72:75] offset:1024')
    for k in range(4):
        a(f'v_lshl_or_b32 v{64+k}, v{8+k}, 16, v{12+k}')
    a('s_mov_b64 exec, s[22:23]')
    a('s_waitcnt lgkmcnt(0)')
    for j in range(8):
        a(f'ds_read_b32 v{8+j}, v{28+j} offset:1024')
    a('s_waitcnt vmcnt(0)')
    for j in range(8):
        if j % 2 == 0:
            a(f'v_lshl_or_b32 v{40+2*j}, v{24+j//2}, 16, v{16+j}')
        else:
            a(f'v_and_or_b32 v{40+2*j}, v{24+j//2}, s48, v{16+j}')
    for j in range(4):
        a(f'v_and_b32 v{24+j}, s52, v{24+j}')
    a('v_pk_max_u16 v24, v24, v25')
    a('v_pk_max_u16 v26, v26, v27')
    a('v_pk_max_u16 v24, v24, v26')
    a('v_lshrrev_b32 v25, 16, v24')
    a('v_and_b32 v24, 0xffff, v24')
    a('v_max_u32 v24, v24, v25')
    a(f'v_cmp_lt_u32 vcc, {hex(LIM_E_BF16)}, v24')
    a('s_and_saveexec_b64 s[54:55], vcc')
    a('s_cbranch_execz A_eok')
    a('v_mov_b32 v25, 0x80000000')
    a('ds_write_b32 v6, v25')
    a.lab('A_eok')
    a('s_mov_b64 exec, s[54:55]')
    a('s_waitcnt lgkmcnt(0)')
    for j in range(8):
        a(f'v_lshl_add_u32 v{8+j}, v{56+j}, 3, v{8+j}')
    stamp(a, 3, 70)
    for j in range(8):
        a(f'ds_write_b64 v{8+j}, {pr(40+2*j)} offset:{A_STAGE}')
    a('s_waitcnt lgkmcnt(0)')
    a('s_barrier')
    stamp(a, 4, 70)
    a('s_cmp_lg_u32 s3, 6')
    a('s_cbranch_scc1 A_notab')
    a('s_mov_b64 exec, -1')
    a('v_mov_b32 v6, 2048')
    a('ds_read_b32 v7, v6')
    a('s_lshl_b32 s49, s2, 10')
    a('s_waitcnt lgkmcnt(0)')
    for k in range(4):
        a(f'v_or_b32 v{64+k}, v{64+k}, v7')
    a(f'buffer_store_dwordx4 v[64:67], v5, s[40:43], s49 offen {ST_A}')
    a('s_mov_b64 exec, s[22:23]')
    a.lab('A_notab')
    for j in range(4):
        a(f'ds_read_b128 {q4(8+4*j)}, v3 offset:{A_STAGE+6400*j}')
    a(f's_mul_i32 s49, s2, {CH*8}')
    for j in range(4):
        a(f's_waitcnt lgkmcnt({3-j})')
        a(f'buffer_store_dwordx4 {q4(8+4*j)}, v3, s[36:39], s49 offen {ST_A}')
        if j < 3:
            a(f's_add_u32 s49, s49, 6400')
    stamp(a, 5, 70)
    stamp_out(a, 0, 20, 70)
    a('s_endpgm')

    a.lab('A_gemm')
    a(f's_sub_u32 s22, s2, {A_GEMM0}')
    a('s_mul_i32 s22, s22, 7')
    a('s_add_u32 s22, s22, s3')
    a('v_and_b32 v2, 31, v1')
    a('v_lshrrev_b32 v3, 5, v1')
    a('v_lshlrev_b32 v4, 2, v2')
    a('v_lshl_add_u32 v7, v3, 9, v4')
    a('v_lshl_add_u32 v4, v3, 10, v4')
    a(f'v_add_u32 v4, {A_W1}, v4')
    a('v_lshlrev_b32 v5, 4, v0')
    a('s_lshl_b32 s23, s22, 12')
    a('v_lshlrev_b32 v6, 4, v1')
    a('s_lshl_b32 s42, s3, 12')
    a('v_lshrrev_b32 v8, 3, v1')
    a('v_and_b32 v9, 7, v1')
    a('v_xor_b32 v10, v9, v8')
    a('v_lshlrev_b32 v10, 4, v10')
    a('v_lshl_add_u32 v10, v8, 7, v10')
    a('v_add_u32 v10, s42, v10')
    a('v_xor_b32 v9, v9, v3')
    a('v_lshlrev_b32 v8, 7, v2')
    a('v_add_u32 v8, s42, v8')
    for ks in range(4):
        a(f'v_xor_b32 v{11+ks}, {2*ks}, v9')
        a(f'v_lshl_add_u32 v{11+ks}, v{11+ks}, 4, v8')
    a('s_waitcnt lgkmcnt(0)')
    srd(a, 24, 4, 0, N*128)
    srd(a, 28, 12, 0, 64*128)
    a('s_movk_i32 s43, 7168')
    a('buffer_load_dwordx4 v[16:19], v5, s[28:31], 0 offen')
    a('buffer_load_dwordx4 v[20:23], v5, s[28:31], s43 offen')
    for j in range(4):
        a(f'buffer_load_dwordx4 {q4(48+4*j)}, v6, s[24:27], s23 offen offset:{1024*j}')
    stamp(a, 0, 15)
    if DEBUG:
        a('v_writelane_b32 v15, s94, 8')
        a('v_writelane_b32 v15, s62, 9')
        a('v_writelane_b32 v15, s63, 10')
    srd(a, 32, 20, WS_PT, N*128)
    srd(a, 44, 20, WS_PF, PF_BYTES)
    a('s_mov_b32 s36, 0x05040100')
    a('s_mov_b32 s37, 0x07060302')
    a(f's_mov_b32 s38, {hex(f32(-LOG2E))}')
    a('s_mov_b32 s39, 0x7fffffff')
    a('s_mov_b32 s40, 0x7fff0000')
    a(f's_mov_b32 s41, {hex(f32(LIM_P))}')
    a('s_waitcnt vmcnt(4)')
    a(f'ds_write_b128 v5, v[16:19] offset:{A_W1}')
    a('s_cmp_lg_u32 s3, 0')
    a('s_cbranch_scc1 A_w1done')
    a(f'ds_write_b128 v5, v[20:23] offset:{A_W1+7168}')
    a.lab('A_w1done')
    a('s_waitcnt lgkmcnt(0)')
    a('s_barrier')
    for ks in range(4):
        if ks: a('v_add_u32 v4, 2048, v4')
        for jj in range(4):
            a(f'ds_read2_b32 {pr(16+8*ks+2*jj)}, v4 offset0:{64*jj} offset1:{64*jj+32}')
    a('s_waitcnt vmcnt(0)')
    for j in range(4):
        a(f'ds_write_b128 v10, {q4(48+4*j)} offset:{1024*j}')
    a('s_waitcnt lgkmcnt(0)')
    for ks in range(4):
        a(f'ds_read_b128 {q4(48+4*ks)}, v{11+ks}')
    stamp(a, 1, 15)
    for ks in range(4):
        for jj in range(4):
            r0 = 16+8*ks+2*jj
            a(f'v_perm_b32 v{64+4*ks+jj}, v{r0+1}, v{r0}, s36')
            a(f'v_perm_b32 v{80+4*ks+jj}, v{r0+1}, v{r0}, s37')
    a('s_waitcnt lgkmcnt(0)')
    for ks in range(4):
        c0 = '0' if ks == 0 else 'v[96:111]'
        c1 = '0' if ks == 0 else 'v[112:127]'
        a(f'v_mfma_f32_32x32x16_bf16 v[96:111], {q4(48+4*ks)}, {q4(64+4*ks)}, {c0}')
        a(f'v_mfma_f32_32x32x16_bf16 v[112:127], {q4(48+4*ks)}, {q4(80+4*ks)}, {c1}')
    a('s_nop 15')
    stamp(a, 2, 15)
    for r in range(16):
        a(f'v_mul_f32 v{96+r}, s38, v{96+r}')
    for r in range(16):
        a(f'v_mul_f32 v{112+r}, s38, v{112+r}')
    for r in range(0, 16, 2):
        a(f'v_cvt_pk_bf16_f32 v{16+r}, v{96+r}, v{97+r}')
    for r in range(0, 16, 2):
        a(f'v_lshrrev_b32 v{17+r}, 16, v{16+r}')
        a(f'v_and_b32 v{16+r}, 0xffff, v{16+r}')
    for r in range(16):
        a(f'v_and_b32 v{32+r}, s39, v{112+r}')
    for r in range(16):
        a(f'v_add_u32 v{32+r}, 0x8000, v{32+r}')
    for r in range(16):
        a(f'v_sub_u32 v{32+r}, v{32+r}, v{16+r} clamp')
    for r in range(16):
        a(f'v_and_or_b32 v{32+r}, v{32+r}, s40, v{16+r}')
    for r in range(16):
        a(f'v_bfi_b32 v{32+r}, s39, v{32+r}, v{112+r}')
        a(f'buffer_store_dword v{32+r}, v7, s[32:35], s23 offen offset:{((r&3)+8*(r>>2))*128} {ST_A}')
    a('v_max_f32 v64, |v96|, |v97|')
    for r in range(2, 32, 2):
        a(f'v_max3_f32 v64, v64, |v{96+r}|, |v{97+r}|')
    a('v_cmp_lt_f32 vcc, s41, v64')
    a('s_lshl_b32 s43, s22, 2')
    a('v_mov_b32 v66, 0')
    a('s_cmp_lg_u64 vcc, 0')
    a('s_cselect_b32 s42, 1, 0')
    a('v_mov_b32 v65, s42')
    a('s_mov_b64 exec, 1')
    a(f'buffer_store_dword v65, v66, s[44:47], s43 offen {ST_A}')
    stamp(a, 5, 15)
    stamp_out(a, 0, 20, 15)
    a('s_endpgm')

    a.lab('A_prep')
    a(f's_sub_u32 s50, s2, {A_PREP0}')
    a('s_mul_i32 s50, s50, 7')
    a('s_add_u32 s50, s50, s3')
    a('s_cmp_gt_u32 s50, 24')
    a('s_cbranch_scc1 A_done')
    a('s_lshr_b32 s22, s50, 3')
    a('s_bfe_u32 s23, s50, 0x10002')
    a('s_and_b32 s24, s50, 3')
    a('v_and_b32 v2, 31, v1')
    a('v_lshrrev_b32 v3, 5, v1')
    a('v_bfe_u32 v4, v2, 2, 1')
    a('v_and_b32 v5, 3, v2')
    a('v_lshrrev_b32 v6, 3, v2')
    a('v_lshl_add_u32 v5, v6, 2, v5')
    a('s_waitcnt lgkmcnt(0)')
    srd(a, 32, 20, WS_WF, WF_BYTES)
    a('s_cmp_eq_u32 s50, 24')
    a('s_cbranch_scc1 A_prep_w3')
    a('s_cmp_lg_u32 s22, 0')
    a('s_cbranch_scc1 A_prep_u')
    srd(a, 28, 12, 0, 129*128)
    a('v_lshrrev_b32 v6, 3, v5')
    a('v_lshl_add_u32 v6, v4, 2, v6')
    a('s_lshl_b32 s25, s23, 1')
    a('v_add_u32 v6, s25, v6')
    a('v_and_b32 v7, 7, v5')
    a('v_lshlrev_b32 v8, 1, v7')
    a('v_add_u32 v9, 1, v8')
    a('v_subrev_u32 v8, 8, v8')
    a('v_cmp_gt_u32 vcc, 4, v7')
    a('s_nop 1')
    a('v_cndmask_b32 v8, v8, v9, vcc')
    a('v_lshl_add_u32 v8, v6, 3, v8')
    a('v_lshlrev_b32 v8, 1, v8')
    a('v_lshl_add_u32 v8, v3, 10, v8')
    a('s_lshl_b32 s26, s24, 11')
    a('s_add_u32 s26, s26, 8192')
    for j in range(8):
        a(f'buffer_load_ushort v{32+j}, v8, s[28:31], s26 offen offset:{128*j}')
    a('s_branch A_prep_st')
    a.lab('A_prep_u')
    srd(a, 28, 14, 0, 128*128)
    a('v_lshl_add_u32 v8, v4, 4, v5')
    a('s_lshl_b32 s25, s23, 5')
    a('v_add_u32 v8, s25, v8')
    a('v_lshlrev_b32 v8, 1, v8')
    a('s_cmp_lg_u32 s22, 1')
    a('s_cbranch_scc1 A_prep_agg')
    a('v_lshl_add_u32 v8, v3, 10, v8')
    a('s_lshl_b32 s26, s24, 11')
    for j in range(8):
        a(f'buffer_load_ushort v{32+j}, v8, s[28:31], s26 offen offset:{128*j}')
    a('s_branch A_prep_st')
    a.lab('A_prep_w3')
    srd(a, 44, 20, WS_PT + N*128, 128)
    a('v_mov_b32 v20, 0x71497149')
    a('v_mov_b32 v21, v20')
    a('v_mov_b32 v22, v20')
    a('v_mov_b32 v23, v20')
    a('v_lshlrev_b32 v24, 4, v1')
    a('buffer_store_dwordx4 v[20:23], v24, s[44:47], 0 offen')
    srd(a, 36, 12, 0, 129*128)
    a('v_and_b32 v10, 7, v1')
    a('v_lshlrev_b32 v11, 4, v10')
    a('s_movk_i32 s27, 0x4000')
    a('buffer_load_dwordx4 v[44:47], v11, s[36:39], s27 offen')
    a(f's_mov_b32 s40, {hex(f32(-LOG2E))}')
    a('s_waitcnt vmcnt(0)')
    for i in range(4):
        a(f'v_and_b32 v{48+i}, 0xffff0000, v{44+i}')
        a(f'v_lshlrev_b32 v{52+i}, 16, v{44+i}')
    for i in range(8):
        a(f'v_mul_f32 v{48+i}, s40, v{48+i}')
    a('v_max3_f32 v44, |v48|, |v49|, |v50|')
    a('v_max3_f32 v44, v44, |v51|, |v52|')
    a('v_max3_f32 v44, v44, |v53|, |v54|')
    a('v_max_f32 v44, v44, |v55|')
    a(f'v_cmp_lt_f32 vcc, {LIM_W}, v44')
    a('v_lshlrev_b32 v11, 5, v10')
    a('s_cmp_lg_u64 vcc, 0')
    a('s_cselect_b32 s41, 1, 0')
    a('v_mov_b32 v45, s41')
    a('v_mov_b32 v46, 0')
    a(f's_movk_i32 s27, {WF_W3}')
    a('buffer_store_dwordx4 v[48:51], v11, s[32:35], s27 offen')
    a('buffer_store_dwordx4 v[52:55], v11, s[32:35], s27 offen offset:16')
    a('buffer_store_dword v45, v46, s[32:35], s27 offen offset:256')
    a('s_endpgm')
    a.lab('A_prep_agg')
    a('v_lshl_add_u32 v8, v3, 12, v8')
    a('s_lshl_b32 s26, s24, 2')
    a('s_add_u32 s27, s26, 1')
    a('s_sub_u32 s26, s26, 8')
    a('s_cmp_lt_u32 s24, 2')
    a('s_cselect_b32 s26, s27, s26')
    a('s_add_u32 s26, s26, 64')
    a('s_lshl_b32 s26, s26, 7')
    for j in range(8):
        a(f'buffer_load_ushort v{32+j}, v8, s[28:31], s26 offen offset:{(j&3)*1024+(j>>2)*256}')
    a.lab('A_prep_st')
    a('s_lshl_b32 s25, s50, 10')
    a('v_lshlrev_b32 v9, 4, v1')
    a('s_waitcnt vmcnt(0)')
    for j in range(4):
        a(f'v_lshl_or_b32 v{16+j}, v{33+2*j}, 16, v{32+2*j}')
    a('buffer_store_dwordx4 v[16:19], v9, s[32:35], s25 offen')
    a.lab('A_done')
    a('s_endpgm')

RS = 288
NPCAP = 2080
L_CNT = 0
L_BASE = 1024
L_MAX = 2048
L_FLAG = 2052
L_WORK = 2056
L_TOT = 2060
L_PN = 2064
L_REC = L_PN + NPCAP*2
L_Q = L_REC + NPCAP*16
L_AGG = L_Q + NB*RS
L_X = L_AGG + NB*RS*2
L_WU = L_X + 13*1024
L_SCR = L_WU + 16384
B_LDS = L_SCR + 1024
NPF = 0
for x in (L_REC, L_Q, L_AGG, L_X, L_WU): assert x % 16 == 0
assert B_LDS <= 163840 and L_Q + 128 < 65536

def kernel_b(a):
    a.raw('.globl mpnn_main_kernel')
    a.raw('.p2align 8')
    a.raw('.type mpnn_main_kernel,@function')
    a.lab('mpnn_main_kernel')
    a('s_load_dwordx2 s[80:81], s[0:1], 64')
    a('s_load_dwordx16 s[64:79], s[0:1], 0')
    if CPF:
        a('s_getpc_b64 s[60:61]')
        a.lab('B_pc')
        a('v_lshlrev_b32 v100, 4, v0')
        a('v_min_u32 v100, code_end-B_pc-16, v100')
        a('global_load_dwordx4 v[104:107], v100, s[60:61]')
    a(f's_cmp_ge_u32 s2, {NBK}')
    a('s_cbranch_scc1 B_done')
    a('v_lshrrev_b32 v1, 6, v0')
    a('v_lshrrev_b32 v4, 3, v0')
    a('v_readfirstlane_b32 s3, v1')
    a('v_lshlrev_b32 v12, 10, v4')
    if XMAP:
        a('s_and_b32 s85, s2, 7')
        a('s_lshl_b32 s85, s85, 5')
        a('s_lshr_b32 s86, s2, 3')
        a('s_add_u32 s85, s85, s86')
    else:
        a('s_mov_b32 s85, s2')
        a('s_lshr_b32 s86, s2, 3')
    a('s_lshl_b32 s32, s85, 2')
    a('s_add_u32 s33, s32, 0x20000')
    a('v_and_b32 v1, 63, v0')
    a('v_and_b32 v3, 7, v0')
    a('v_lshlrev_b32 v2, 4, v3')
    a('s_waitcnt lgkmcnt(0)')
    ws = 80
    srd(a, 4, ws, WS_TAB, TAB_BYTES)
    a('buffer_load_dword v6, v12, s[4:7], s32 offen')
    a('buffer_load_dword v7, v12, s[4:7], s33 offen')
    stamp(a, 0)
    srd(a, 8, ws, WS_REC, REC_BYTES)
    srd(a, 16, 64, 0, N*128)
    srd(a, 20, ws, WS_WF, WF_BYTES)
    a(f's_add_u32 s28, s80, {hex(WS_WF+WF_W3+256)}')
    a('s_addc_u32 s29, s81, 0')
    a('s_load_dword s90, s[28:29], 0')
    srd(a, 12, ws, WS_PT, PT_BYTES)
    srd(a, 24, 76, 0, N*128)
    a('s_mov_b64 s[88:89], s[80:81]')
    a('s_and_b32 s34, s3, 1')
    a('s_bfe_u32 s35, s3, 0x20001')
    a(f's_mul_i32 s37, s85, {NB}')
    a('s_lshl_b32 s38, s35, 5')
    a('v_lshlrev_b32 v11, 4, v1')
    a('v_and_b32 v8, 31, v1')
    a('v_add_u32 v8, s38, v8')
    a('v_lshrrev_b32 v9, 5, v1')
    a('v_lshlrev_b32 v3, 3, v3')
    a(f'v_add_u32 v3, {L_AGG}, v3')
    a('s_movk_i32 s42, 128')
    a('s_mov_b32 s43, 0xffff0000')
    a('s_mov_b32 s44, 1.0')
    a('s_mov_b32 s45, 1.0')
    a('s_mov_b32 s46, 0x3f80')
    a(f's_mov_b32 s47, {hex(f32(-LOG2E))}')
    a(f's_mov_b32 s48, {hex(f32(-LN2))}')
    a(f's_mov_b32 s49, {hex(f32(-LN2))}')
    a('s_mov_b32 s50, 0')
    a('v_lshlrev_b32 v12, 4, v0')
    for r in range(16, 20): a(f'v_mov_b32 v{r}, 0')
    a(f'v_add_u32 v13, {L_AGG}, v12')
    for j in range(3):
        a(f'ds_write_b128 v13, v[16:19] offset:{16384*j}')
    a(f'v_cmp_gt_u32 vcc, {NB*RS*2//16-3072}, v0')
    a('s_and_saveexec_b64 s[52:53], vcc')
    a('ds_write_b128 v13, v[16:19] offset:49152')
    a('s_mov_b64 exec, s[52:53]')
    a.lab('B_batch')
    for r in range(16, 20): a(f'v_mov_b32 v{r}, 0')
    a('v_lshlrev_b32 v12, 4, v0')
    a(f'v_cmp_gt_u32 vcc, {L_REC//16}, v0')
    a('s_and_saveexec_b64 s[52:53], vcc')
    a('ds_write_b128 v12, v[16:19]')
    a('s_mov_b64 exec, s[52:53]')
    a(f'v_mov_b32 v20, {N}')
    a('v_mov_b32 v21, v20')
    a('v_mov_b32 v22, v20')
    a('v_mov_b32 v23, v20')
    a(f'ds_write_b128 v12, v[20:23] offset:{L_REC}')
    a(f'ds_write_b128 v12, v[20:23] offset:{L_REC+16384}')
    a(f'v_cmp_gt_u32 vcc, {NPCAP-2048}, v0')
    a('s_and_saveexec_b64 s[52:53], vcc')
    a(f'ds_write_b128 v12, v[20:23] offset:{L_REC+32768}')
    a('s_mov_b64 exec, s[52:53]')
    a('v_and_b32 v14, 7, v0')
    a('v_lshlrev_b32 v14, 1, v14')
    a('v_add_u32 v14, s50, v14')
    a(f's_movk_i32 s51, {CH}')
    a('v_mul_u32_u24 v15, s51, v4')
    a('v_add_u32 v15, v15, v14')
    a('v_mov_b32 v25, 0x7fffff00')
    a('s_waitcnt vmcnt(0)')
    stamp(a, 1)
    for rd in range(2):
        T = 6+rd
        a(f'v_bfe_u32 v{20+rd}, v{T}, 16, 13')
        a(f'v_and_b32 v{22+rd}, 0xffff, v{T}')
        a(f'v_add_u32 v{22+rd}, v{22+rd}, v15')
        if rd == 1:
            a(f'v_add_u32 v{22+rd}, {128*CH}, v{22+rd}')
        a(f'v_lshlrev_b32 v{22+rd}, 3, v{22+rd}')
        a(f'v_sub_u32 v{16+rd}, v{20+rd}, v14')
    for rd in range(2):
        for ld in range(2):
            for e in range(2):
                s = rd*4+ld*2+e
                a(f'v_cmp_lt_i32 s[{52+2*s}:{53+2*s}], {ld*16+e}, v{16+rd}')
    order = [(0, 0), (1, 0), (0, 1), (1, 1)]
    for rd, ld in order:
        s = rd*4+ld*2
        r = 96+(rd*2+ld)*4
        a(f'v_cndmask_b32 v{26+rd*2+ld}, v25, v{22+rd}, s[{52+2*s}:{53+2*s}]')
        a(f'buffer_load_dwordx4 {q4(r)}, v{26+rd*2+ld}, s[8:11], 0 offen offset:{128*ld}')
    a('s_cmp_lg_u32 s50, 0')
    a('s_cbranch_scc1 B_noaux')
    a('s_lshl_b32 s39, s37, 7')
    a('s_lshl_b32 s40, s3, 10')
    a('s_add_u32 s39, s39, s40')
    a('buffer_load_dwordx4 v[32:35], v11, s[16:19], s39 offen')
    a(f's_add_u32 m0, s40, {L_WU}')
    a('s_add_u32 s40, s40, 8192')
    a('buffer_load_dwordx4 v11, s[20:23], s40 offen lds')
    a(f's_movk_i32 s41, {WF_W3}')
    a('v_lshlrev_b32 v18, 1, v2')
    a('buffer_load_dwordx4 v[68:71], v18, s[20:23], s41 offen')
    a('buffer_load_dwordx4 v[72:75], v18, s[20:23], s41 offen offset:16')
    srd(a, 28, 88, WS_PF, PF_BYTES)
    a('v_lshlrev_b32 v18, 2, v0')
    a('buffer_load_dword v44, v18, s[28:31], 0 offen')
    a('s_cmp_ge_u32 s3, 8')
    a('s_cbranch_scc1 B_now2')
    a('s_lshl_b32 s39, s34, 12')
    for ks in range(4):
        a(f'buffer_load_dwordx4 {q4(48+4*ks)}, v11, s[20:23], s39 offen offset:{1024*ks}')
    a.lab('B_now2')
    a.lab('B_noaux')
    a('s_waitcnt lgkmcnt(0)')
    a('s_barrier')
    a('v_max_i32 v16, v16, v17')
    a('v_or_b32 v17, v6, v7')
    a('v_cmp_lt_i32 vcc, 32, v16')
    a('v_cmp_gt_i32 s[68:69], 0, v17')
    a(f'v_mov_b32 v24, {L_MAX}')
    a('v_mov_b32 v16, 1')
    a('s_cbranch_vccz B_nomore')
    a('ds_write_b32 v24, v16')
    a.lab('B_nomore')
    a('s_cmp_eq_u64 s[68:69], 0')
    a('s_cbranch_scc1 B_noflag')
    a('ds_write_b32 v24, v16 offset:4')
    a.lab('B_noflag')
    a('v_mov_b32 v24, 4')
    def ranks(extra):
        for n, (rd, ld) in enumerate(order):
            a(f's_waitcnt vmcnt({3-n+extra})')
            for e in range(2):
                s = rd*4+ld*2+e
                r = 96+(rd*2+ld)*4+2*e
                a(f's_mov_b64 exec, s[{52+2*s}:{53+2*s}]')
                a(f'ds_add_rtn_u32 v{36+s}, v{r+1}, v24 offset:{L_CNT}')
        a('s_mov_b64 exec, -1')
    a('s_cmp_lg_u32 s50, 0')
    a('s_cbranch_scc1 B_rk0')
    a('s_cmp_ge_u32 s3, 8')
    a('s_cbranch_scc1 B_rk3')
    ranks(9)
    a('s_waitcnt vmcnt(8)')
    a('s_branch B_rkx')
    a.lab('B_rk3')
    ranks(5)
    a('s_waitcnt vmcnt(4)')
    a.lab('B_rkx')
    stamp(a, 7)
    a('v_lshrrev_b32 v16, 3, v1')
    a('v_and_b32 v17, 7, v1')
    a('v_xor_b32 v17, v17, v16')
    a('v_lshlrev_b32 v17, 4, v17')
    a('v_lshl_add_u32 v17, v16, 7, v17')
    a('s_lshl_b32 s51, s3, 10')
    a(f's_add_u32 s51, s51, {L_X}')
    a('v_add_u32 v17, s51, v17')
    a('s_cmp_ge_u32 s3, 13')
    a('s_cbranch_scc1 B_rkdone')
    a('ds_write_b128 v17, v[32:35]')
    a('s_branch B_rkdone')
    a.lab('B_rk0')
    ranks(0)
    a.lab('B_rkdone')
    a('s_waitcnt lgkmcnt(0)')
    a('s_barrier')
    stamp(a, 2)
    a('s_cmp_ge_u32 s3, 8')
    a('s_cbranch_scc1 B_scan')
    a('s_cmp_lg_u32 s50, 0')
    a('s_cbranch_scc1 B_mid')
    a('v_and_b32 v18, 7, v1')
    a('v_xor_b32 v18, v18, v9')
    a('v_lshlrev_b32 v16, 7, v8')
    a(f'v_add_u32 v16, {L_X}, v16')
    for ks in range(4):
        a(f'v_xor_b32 v19, {2*ks}, v18')
        a(f'v_lshl_add_u32 v{20+ks}, v19, 4, v16')
        a(f'ds_read_b128 {q4(76+4*ks)}, v{20+ks}')
    a(f's_movk_i32 s68, {RS}')
    a('v_mul_u32_u24 v16, s68, v8')
    a('v_lshl_add_u32 v16, v9, 6, v16')
    a('s_lshl_b32 s68, s34, 5')
    a('v_add_u32 v16, s68, v16')
    a(f'v_mov_b32 v18, {NB}')
    a('v_cmp_gt_u32 s[68:69], v18, v8')
    a(f's_waitcnt vmcnt({NPF}) lgkmcnt(0)')
    for ks in range(4):
        c = '0' if ks == 0 else 'v[112:127]'
        a(f'v_mfma_f32_32x32x16_bf16 v[112:127], {q4(48+4*ks)}, {q4(76+4*ks)}, {c}')
    a('s_nop 11')
    for r in range(16):
        a(f'v_mul_f32 v{112+r}, s47, v{112+r}')
    a('s_mov_b64 exec, s[68:69]')
    for o in range(2):
        a(f'ds_write_b128 v16, {q4(112+8*o)} offset:{L_Q+16*o}')
        a(f'ds_write_b128 v16, {q4(116+8*o)} offset:{L_Q+128+16*o}')
    a('v_max_f32 v17, |v112|, |v113|')
    for r in range(2, 16, 2):
        a(f'v_max3_f32 v17, v17, |v{112+r}|, |v{113+r}|')
    a(f'v_cmp_lt_f32 vcc, {hex(f32(LIM_Q))}, v17')
    a('s_mov_b64 exec, -1')
    a('s_cbranch_vccz B_mid')
    a(f'v_mov_b32 v24, {L_FLAG}')
    a('v_mov_b32 v16, 1')
    a('ds_write_b32 v24, v16')
    a('s_branch B_mid')
    a.lab('B_scan')
    a('s_cmp_lt_u32 s3, 12')
    a('s_cbranch_scc1 B_scan2')
    if PREF:
        a('s_cmp_lg_u32 s50, 0')
        a('s_cbranch_scc1 B_mid')
        a('s_waitcnt vmcnt(0)')
        a('s_mul_i32 s39, s86, 100000')
        a('s_sub_u32 s40, s3, 12')
        a('s_mul_i32 s40, s40, 25600')
        a('s_add_u32 s39, s39, s40')
        a(f's_mov_b32 m0, {L_SCR}')
        for j in range(25):
            a('buffer_load_dwordx4 v11, s[12:15], s39 offen lds')
            if j < 24: a('s_add_u32 s39, s39, 1024')
        a('s_branch B_mid2')
    else:
        a('s_branch B_mid')
    a.lab('B_scan2')
    a(f'ds_read_b128 v[16:19], v11 offset:{L_CNT}')
    a('s_waitcnt lgkmcnt(0)')
    for k in range(2):
        a(f'v_and_b32 v{20+k}, 12, v{16+2*k}')
        a(f'v_min_u32 v{20+k}, 1, v{20+k}')
        a(f'v_lshrrev_b32 v{22+k}, 4, v{16+2*k}')
        a(f'v_lshl_or_b32 v{20+k}, v{20+k}, 16, v{22+k}')
    a('v_add_u32 v24, v20, v21')
    a('v_mov_b32 v25, v24')
    wave_scan(a, 25)
    a('v_sub_u32 v24, v25, v24')
    a('v_readlane_b32 s70, v25, 63')
    a('v_add_u32 v25, v24, v20')
    a(f's_movk_i32 s51, {2*RS}')
    a('v_mul_u32_u24 v76, s51, v1')
    a('s_and_b32 s72, s70, 0xffff')
    for k in range(2):
        a(f'v_and_b32 v{28+k}, 0xffff, v{24+k}')
        a(f'v_lshrrev_b32 v{30+k}, 16, v{24+k}')
        a(f'v_add_u32 v{30+k}, s72, v{30+k}')
        a(f'v_sub_u32 v{81+2*k}, v{30+k}, v{22+k}')
        a(f'v_lshlrev_b32 v{81+2*k}, 20, v{81+2*k}')
        a(f'v_lshl_or_b32 v{80+2*k}, v{28+k}, 4, v{81+2*k}')
        a(f'v_lshlrev_b32 v{81+2*k}, 4, v{22+k}')
    a(f'ds_write_b128 v11, v[80:83] offset:{L_BASE}')
    a(f'v_add_u32 v77, {RS}, v76')
    a('s_sub_u32 s51, s3, 8')
    a.lab('B_pn')
    for k in range(2):
        a(f'v_cmp_lt_u32 s[{74+2*k}:{75+2*k}], s51, v{22+k}')
        a(f'v_add_u32 v{78+k}, s51, v{28+k}')
        a(f'v_lshlrev_b32 v{78+k}, 1, v{78+k}')
    a('s_or_b64 s[68:69], s[74:75], s[76:77]')
    a('s_cbranch_scc0 B_pn_done')
    for k in range(2):
        a(f's_mov_b64 exec, s[{74+2*k}:{75+2*k}]')
        a(f'ds_write_b16 v{78+k}, v{76+k} offset:{L_PN}')
    a('s_mov_b64 exec, -1')
    a('s_add_u32 s51, s51, 4')
    a('s_branch B_pn')
    a.lab('B_pn_done')
    a('s_cmp_lg_u32 s3, 11')
    a('s_cbranch_scc1 B_mid')
    for k in range(2):
        a(f'v_lshrrev_b32 v{78+k}, 16, v{20+k}')
        a(f'v_cmp_ne_u32 s[{74+2*k}:{75+2*k}], 0, v{78+k}')
        a(f'v_lshlrev_b32 v{78+k}, 1, v{30+k}')
    for k in range(2):
        a(f's_mov_b64 exec, s[{74+2*k}:{75+2*k}]')
        a(f'ds_write_b16 v{78+k}, v{76+k} offset:{L_PN}')
    a('s_mov_b64 exec, 1')
    a(f'v_mov_b32 v24, {L_TOT}')
    a('v_mov_b32 v25, s70')
    a('ds_write_b32 v24, v25')
    a('s_mov_b64 exec, -1')
    a.lab('B_mid')
    a('s_cmp_lg_u32 s50, 0')
    a('s_cbranch_scc1 B_mid2')
    a('s_waitcnt vmcnt(0)')
    a('v_cmp_ne_u32 vcc, 0, v44')
    a(f'v_mov_b32 v24, {L_FLAG}')
    a('v_mov_b32 v16, 1')
    a('s_cbranch_vccz B_mid2')
    a('ds_write_b32 v24, v16')
    a.lab('B_mid2')
    a('s_waitcnt lgkmcnt(0)')
    a('s_barrier')
    stamp(a, 6)
    a(f'v_mov_b32 v24, {L_MAX}')
    a('ds_read_b128 v[16:19], v24')
    for s in range(8):
        r = 96+(s//2)*4+2*(s % 2)
        a(f's_mov_b64 exec, s[{52+2*s}:{53+2*s}]')
        a(f'ds_read_b64 {pr(76+2*s)}, v{r+1} offset:{L_BASE}')
    a('s_mov_b64 exec, -1')
    a('v_lshrrev_b32 v13, 3, v1')
    a(f'v_mov_b32 v14, {L_WORK}')
    a('v_mov_b32 v15, 1')
    a('s_waitcnt lgkmcnt(0)')
    a('v_readfirstlane_b32 s70, v19')
    a('v_readfirstlane_b32 s71, v16')
    a('v_readfirstlane_b32 s91, v17')
    for s in range(8):
        a(f'v_cmp_lt_u32 vcc, v{36+s}, v{77+2*s}')
        if s > 0:
            a(f'v_add_u32 v{36+s-1}, v{36+s-1}, v{76+2*(s-1)}')
            r = 96+((s-1)//2)*4+2*((s-1) % 2)
            a(f's_mov_b64 exec, s[{52+2*(s-1)}:{53+2*(s-1)}]')
            a(f'ds_write_b32 v{36+s-1}, v{r} offset:{L_REC}')
            a('s_mov_b64 exec, -1')
        else:
            a('s_nop 1')
        a(f'v_cndmask_b32_sdwa v{76+2*s}, v{76+2*s}, v{76+2*s}, vcc dst_sel:DWORD dst_unused:UNUSED_PAD src0_sel:WORD_1 src1_sel:WORD_0')
    a('s_and_b32 s72, s70, 0xffff')
    a(f'v_add_u32 v43, v43, v90')
    a('s_mov_b64 exec, s[66:67]')
    a(f'ds_write_b32 v43, v110 offset:{L_REC}')
    a('s_mov_b64 exec, -1')
    a('s_lshr_b32 s73, s70, 16')
    a('s_add_u32 s73, s73, s72')
    a('s_or_b32 s90, s90, s91')
    a('s_lshr_b32 s74, s72, 3')
    a('s_lshl_b32 s68, s74, 3')
    a('s_sub_u32 s75, s73, s68')
    a('s_add_u32 s75, s75, 7')
    a('s_lshr_b32 s75, s75, 3')
    a('s_add_u32 s75, s75, s74')
    a('s_mov_b32 s82, s74')
    a('s_cmp_lg_u32 s90, 0')
    a('s_cselect_b32 s82, 0, s82')
    if FORCE_PLAIN: a('s_mov_b32 s82, 0')
    a('v_mul_u32_u24 v10, s74, v13')
    a('v_lshlrev_b32 v12, 4, v10')
    a('v_lshlrev_b32 v10, 1, v10')
    a('v_lshlrev_b32 v111, 4, v13')
    a('v_lshlrev_b32 v13, 1, v13')
    a('s_waitcnt lgkmcnt(0)')
    a('s_barrier')
    stamp(a, 3)
    stampc(a, 8)
    a('s_mov_b32 s83, 0')
    if PRIO: a('s_setprio 3')
    RAW = 32; Q = 48; EE = 56; RC = 60; ND = 64; IDX = 65; AGC = 66; AGN = 67; Z = 76; T = 16; TMP = 108
    cnt = [0]
    def read_recs(sidx):
        n = cnt[0]; cnt[0] += 1
        a(f's_cmp_ge_u32 s{sidx}, s74')
        a(f's_cbranch_scc1 B_rrP{n}')
        a(f's_lshl_b32 s51, s{sidx}, 4')
        a(f'v_add_u32 v{TMP}, s51, v12')
        a(f's_lshl_b32 s51, s{sidx}, 1')
        a(f'v_add_u32 v{TMP+1}, s51, v10')
        a(f's_branch B_rrX{n}')
        a.lab(f'B_rrP{n}')
        a(f's_min_u32 s79, s{sidx}, {NPCAP//8-1}')
        a(f's_lshl_b32 s51, s79, 7')
        a(f'v_add_u32 v{TMP}, s51, v111')
        a(f's_lshl_b32 s51, s79, 4')
        a(f'v_add_u32 v{TMP+1}, s51, v13')
        a.lab(f'B_rrX{n}')
        a(f'ds_read_b128 {q4(RC)}, v{TMP} offset:{L_REC}')
        a(f'ds_read_u16 v{ND}, v{TMP+1} offset:{L_PN}')
    def fetch():
        for k in range(4):
            a(f'v_mad_u32_u16 v{TMP+(k&1)}, v{RC+k}, s42, v2')
            a(f'buffer_load_dwordx4 {q4(RAW+4*k)}, v{TMP+(k&1)}, s[12:15], 0 offen')
        a(f'v_add_u32 v{TMP+2}, v{ND}, v2')
        a(f'ds_read_b128 {q4(Q)}, v{TMP+2} offset:{L_Q}')
        a(f'ds_read_b128 {q4(Q+4)}, v{TMP+2} offset:{L_Q+128}')
        a(f'v_lshl_add_u32 v{AGN}, v{ND}, 1, v3')
        for k in range(4):
            a(f'v_and_b32 v{EE+k}, s43, v{RC+k}')
    def grab():
        a('s_mov_b64 exec, 1')
        a(f'ds_add_rtn_u32 v{IDX}, v14, v15')
        a('s_mov_b64 exec, -1')
    def zphase():
        for k in range(4):
            R = RAW+4*k; Zk = Z+8*k
            ep = EE+(k & ~1)
            sel = 'op_sel:[0,0,0] op_sel_hi:[0,1,1]' if k % 2 == 0 else 'op_sel:[1,0,0] op_sel_hi:[1,1,1]'
            for p in range(4):
                a(f'v_pk_fma_f32 {pr(Zk+2*p)}, {pr(ep)}, {pr(68+2*p)}, {pr(Q+2*p)} {sel}')
            a(f's_waitcnt vmcnt({3-k})')
            for i in range(4):
                a(f'v_dot2_f32_bf16 v{Zk+4+i}, v{R+i}, s46, v{Zk+4+i}')
            a(f'v_pk_add_f32 {pr(Zk)}, {pr(R)}, {pr(Zk)}')
            a(f'v_pk_add_f32 {pr(Zk+2)}, {pr(R+2)}, {pr(Zk+2)}')
    def shared():
        for pp in range(2):
            ps = [2*pp, 2*pp+1]
            tt = {ps[0]: T, ps[1]: T+6}
            for half in range(2):
                def regs(p):
                    za = Z+16*half+2*p
                    return za, za+8, tt[p]+(0 if half == 0 else 4), tt[p]+2
                for p in ps:
                    za, zb, ta, tb = regs(p)
                    a(f'v_exp_f32 v{ta}, v{za}'); a(f'v_exp_f32 v{ta+1}, v{za+1}')
                    a(f'v_exp_f32 v{tb}, v{zb}'); a(f'v_exp_f32 v{tb+1}, v{zb+1}')
                for p in ps:
                    za, zb, ta, tb = regs(p)
                    a(f'v_pk_fma_f32 {pr(zb)}, {pr(zb)}, {pr(ta)}, {pr(zb)}')
                for p in ps:
                    za, zb, ta, tb = regs(p)
                    a(f'v_pk_add_f32 {pr(tb)}, {pr(tb)}, s[44:45]')
                for p in ps:
                    za, zb, ta, tb = regs(p)
                    a(f'v_pk_fma_f32 {pr(zb)}, {pr(za)}, {pr(tb)}, {pr(zb)}')
                for p in ps:
                    za, zb, ta, tb = regs(p)
                    a(f'v_pk_fma_f32 {pr(ta)}, {pr(ta)}, {pr(tb)}, {pr(tb)}')
            for p in ps:
                a(f'v_pk_mul_f32 {pr(Z+2*p)}, {pr(Z+8+2*p)}, {pr(tt[p]+4)}')
            for p in ps:
                a(f'v_pk_mul_f32 {pr(tt[p]+2)}, {pr(tt[p])}, {pr(tt[p]+4)}')
            for p in ps:
                a(f'v_pk_fma_f32 {pr(Z+2*p)}, {pr(Z+24+2*p)}, {pr(tt[p])}, {pr(Z+2*p)}')
            for p in ps:
                a(f'v_rcp_f32 v{tt[p]+2}, v{tt[p]+2}'); a(f'v_rcp_f32 v{tt[p]+3}, v{tt[p]+3}')
            a('s_nop 0')
            for p in ps:
                a(f'v_pk_mul_f32 {pr(Z+2*p)}, {pr(Z+2*p)}, {pr(tt[p]+2)}')
            for p in ps:
                a(f'v_cvt_f64_f32 {pr(Z+8+2*p)}, v{Z+2*p}'); a(f'v_cvt_f64_f32 {pr(Z+16+2*p)}, v{Z+2*p+1}')
            for p in ps:
                a(f'ds_add_f64 v{AGC}, {pr(Z+8+2*p)} offset:{64*(2*p)}')
                a(f'ds_add_f64 v{AGC}, {pr(Z+16+2*p)} offset:{64*(2*p+1)}')
    def plain():
        AC = T+8
        for k in range(4):
            Zk = Z+8*k
            for i in range(8): a(f'v_exp_f32 v{T+i}, v{Zk+i}')
            for p in range(4): a(f'v_pk_add_f32 {pr(T+2*p)}, {pr(T+2*p)}, s[44:45]')
            for i in range(8): a(f'v_rcp_f32 v{T+i}, v{T+i}')
            for p in range(4):
                if k == 0:
                    a(f'v_pk_mul_f32 {pr(AC+2*p)}, {pr(Zk+2*p)}, {pr(T+2*p)}')
                else:
                    a(f'v_pk_fma_f32 {pr(AC+2*p)}, {pr(Zk+2*p)}, {pr(T+2*p)}, {pr(AC+2*p)}')
        for i in range(8): a(f'v_cvt_f64_f32 {pr(Z+2*i)}, v{AC+i}')
        for i in range(8): a(f'ds_add_f64 v{AGC}, {pr(Z+2*i)} offset:{64*i}')
    a('s_mov_b32 s76, s3')
    a('s_add_u32 s77, s3, 16')
    a('s_cmp_ge_u32 s76, s75')
    a('s_cbranch_scc1 B_loop_end')
    read_recs(76)
    grab()
    a('s_waitcnt lgkmcnt(0)')
    fetch()
    read_recs(77)
    a('s_waitcnt lgkmcnt(0)')
    a.lab('B_loop')
    a('s_waitcnt lgkmcnt(8)')
    a(f'v_mov_b32 v{AGC}, v{AGN}')
    a(f'v_readfirstlane_b32 s78, v{IDX}')
    zphase()
    if DEBUG:
        a('s_cmp_gt_u32 s83, 3')
        a('s_cbranch_scc1 B_nost')
        a('s_memrealtime s[92:93]')
        a('s_add_u32 m0, s83, 11')
        a('s_waitcnt lgkmcnt(0)')
        a('v_writelane_b32 v5, s92, m0')
        a.lab('B_nost')
    a('s_add_u32 s78, s78, 32')
    a('s_cmp_ge_u32 s77, s75')
    a('s_cbranch_scc1 B_nofetch')
    fetch()
    read_recs(78)
    grab()
    a.lab('B_nofetch')
    a('s_cmp_ge_u32 s76, s82')
    a('s_cbranch_scc1 B_plain')
    shared()
    a.lab('B_next')
    a('s_add_u32 s83, s83, 1')
    if PRIO:
        for c, p in ((2, 2), (4, 1), (5, 0)):
            a(f's_cmp_lg_u32 s83, {c}')
            a(f's_cbranch_scc1 B_pr{c}')
            a(f's_setprio {p}')
            a.lab(f'B_pr{c}')
    a('s_mov_b32 s76, s77')
    a('s_mov_b32 s77, s78')
    a('s_cmp_lt_u32 s76, s75')
    a('s_cbranch_scc1 B_loop')
    a('s_branch B_loop_end')
    a.lab('B_plain')
    plain()
    a('s_branch B_next')
    a.lab('B_loop_end')
    stamp(a, 4)
    a('s_cmp_lt_u32 s3, 8')
    a('s_cbranch_scc1 B_join')
    a('s_lshl_b32 s39, s34, 12')
    a(f's_add_u32 s39, s39, {L_WU}')
    a('v_add_u32 v17, s39, v11')
    a('v_and_b32 v18, 7, v1')
    a('v_xor_b32 v18, v18, v9')
    a('v_lshlrev_b32 v16, 7, v8')
    a(f'v_add_u32 v16, {L_X}, v16')
    for ks in range(4):
        a(f'v_xor_b32 v19, {2*ks}, v18')
        a(f'v_lshl_add_u32 v{20+ks}, v19, 4, v16')
        a(f'ds_read_b128 {q4(32+4*ks)}, v{20+ks}')
        a(f'ds_read_b128 {q4(48+4*ks)}, v17 offset:{1024*ks}')
    a('s_waitcnt lgkmcnt(0)')
    for ks in range(4):
        c = '0' if ks == 0 else 'v[112:127]'
        a(f'v_mfma_f32_32x32x16_bf16 v[112:127], {q4(48+4*ks)}, {q4(32+4*ks)}, {c}')
    for ks in range(4):
        a(f'ds_read_b128 {q4(48+4*ks)}, v17 offset:{8192+1024*ks}')
    a.lab('B_join')
    a('s_waitcnt lgkmcnt(0)')
    a('s_barrier')
    stamp(a, 5)
    stampc(a, 9)
    if DEBUG: a('v_writelane_b32 v5, s83, 10')
    a('s_add_u32 s50, s50, 32')
    a('s_cmp_lg_u32 s71, 0')
    a('s_cbranch_scc1 B_batch')
    a('s_cmp_lt_u32 s3, 8')
    a('s_cbranch_scc1 B_done2')
    a(f's_movk_i32 s51, {2*RS}')
    a('v_mul_u32_u24 v16, s51, v8')
    a('v_lshl_add_u32 v16, v9, 5, v16')
    a(f'v_add_u32 v16, {L_AGG}, v16')
    for half in range(2):
        for ii in range(4):
            i = half*4+ii
            a(f'ds_read_b128 {q4(64+8*ii)}, v16 offset:{64*i}')
            a(f'ds_read_b128 {q4(68+8*ii)}, v16 offset:{64*i+16}')
        for ii in range(4):
            i = half*4+ii
            a(f's_waitcnt lgkmcnt({6-2*ii})')
            for q in range(4):
                a(f'v_cvt_f32_f64 v{96+q}, {pr(64+8*ii+2*q)}')
            a(f'v_pk_mul_f32 v[96:97], v[96:97], s[48:49]')
            a(f'v_pk_mul_f32 v[98:99], v[98:99], s[48:49]')
            a(f'v_cvt_pk_bf16_f32 v{32+2*i}, v96, v97')
            a(f'v_cvt_pk_bf16_f32 v{33+2*i}, v98, v99')
    a('s_nop 1')
    for ks in range(4):
        a(f'v_mfma_f32_32x32x16_bf16 v[112:127], {q4(48+4*ks)}, {q4(32+4*ks)}, v[112:127]')
    a('v_add_u32 v17, s37, v8')
    a('v_lshlrev_b32 v17, 7, v17')
    a('v_lshl_add_u32 v17, v9, 5, v17')
    a('s_lshl_b32 s51, s34, 6')
    a(f'v_cmp_gt_u32 vcc, {NB}, v8')
    a('s_nop 12')
    for r in range(16): a(f'v_mul_f32 v{64+r}, s47, v{112+r}')
    for r in range(16): a(f'v_exp_f32 v{64+r}, v{64+r}')
    for r in range(16): a(f'v_add_f32 v{64+r}, 1.0, v{64+r}')
    for r in range(16): a(f'v_rcp_f32 v{64+r}, v{64+r}')
    for r in range(16): a(f'v_mul_f32 v{64+r}, v{64+r}, v{112+r}')
    for r in range(0, 16, 2): a(f'v_cvt_pk_bf16_f32 v{32+r//2}, v{64+r}, v{65+r}')
    a('s_and_b64 exec, exec, vcc')
    a('buffer_store_dwordx4 v[32:35], v17, s[24:27], s51 offen')
    a('buffer_store_dwordx4 v[36:39], v17, s[24:27], s51 offen offset:16')
    a.lab('B_done2')
    stamp_out(a, 1, 88)
    a.lab('B_done')
    a('s_endpgm')
    a.lab('code_end')

def kd(a, name, vgpr, sgpr):
    a.raw('.p2align 6')
    a.raw(f'.amdhsa_kernel {name}')
    a.raw(f'  .amdhsa_next_free_vgpr {vgpr}')
    a.raw(f'  .amdhsa_next_free_sgpr {sgpr}')
    a.raw(f'  .amdhsa_accum_offset {(vgpr+3)//4*4}')
    a.raw('  .amdhsa_group_segment_fixed_size 0')
    a.raw('  .amdhsa_kernarg_size 72')
    a.raw('  .amdhsa_user_sgpr_count 2')
    a.raw('  .amdhsa_user_sgpr_kernarg_segment_ptr 1')
    a.raw('  .amdhsa_system_sgpr_workgroup_id_x 1')
    a.raw('.end_amdhsa_kernel')

def main():
    ref = open('gather_scatter__mpnn_edge_mlp__graph.s.ref').read().splitlines()
    hdr = [l for l in ref if l.startswith(';') and '@launch' not in l and 'Override' not in l and 'grid=ceil' not in l]
    a = A()
    for l in hdr: a.raw(l)
    a.raw(f'; @launch kernel=mpnn_bin_kernel grid=({A_GRID},1,1) block=({A_BLOCK},1,1) lds={A_LDS}')
    a.raw(f'; @launch kernel=mpnn_main_kernel grid=({NBK},1,1) block=(1024,1,1) lds={B_LDS}')
    a.raw('.amdgcn_target "amdgcn-amd-amdhsa--gfx950"')
    a.raw('.text')
    kernel_a(a)
    kernel_b(a)
    a.raw('.section .rodata,"a"')
    kd(a, 'mpnn_bin_kernel', 128, 100)
    kd(a, 'mpnn_main_kernel', 128, 100)
    out = sys.argv[1] if len(sys.argv) > 1 else 'gather_scatter__mpnn_edge_mlp__graph.s'
    open(out, 'w').write('\n'.join(a.l) + '\n')

main()
```

```python
import sys, struct, os
DEBUG = int(os.environ.get('DEBUG', '0'))
PRIO = int(os.environ.get('PRIO', '1'))
XMAP = int(os.environ.get('XMAP', '1'))
PREF = int(os.environ.get('PREF', '0'))
CPF = int(os.environ.get('CPF', '0'))
TLBW = int(os.environ.get('TLBW', '1'))
FORCE_PLAIN = int(os.environ.get('FORCE_PLAIN', '0'))

N = 25000; E = 800000
NB = 98
NBK = 256
CH = 3200
NCH = 250
WS_REC = 0
WS_TAB = 0x700000
WS_PF  = 0x780000
WS_PT  = 0x800000
WS_WF  = 0x7C0000
REC_BYTES = NCH*CH*8
TAB_BYTES = NCH*NBK*4
PF_BYTES  = 784*4
PT_BYTES  = (N+1)*128
WF_BYTES  = 3*8192 + 512
WF_W3 = 3*8192
LOG2E = 1.4426950408889634
LN2 = 0.6931471805599453
LIM_P = 6.0; LIM_Q = 6.0; LIM_E_BF16 = 0x4090; LIM_W = 4.0
def f32(x): return struct.unpack('<I', struct.pack('<f', x))[0]

class A:
    def __init__(s): s.l = []
    def __call__(s, t): s.l.append('    ' + t)
    def lab(s, t): s.l.append(t + ':')
    def raw(s, t): s.l.append(t)

def srd(a, d, base, off, nbytes):
    if off:
        a(f's_add_u32 s{d}, s{base}, {hex(off)}')
        a(f's_addc_u32 s{d+1}, s{base+1}, 0')
    else:
        a(f's_mov_b32 s{d}, s{base}')
        a(f's_mov_b32 s{d+1}, s{base+1}')
    a(f's_mov_b32 s{d+2}, {hex(nbytes)}')
    a(f's_mov_b32 s{d+3}, 0x00020000')

PROF_OFF = 0x4000000
def stamp(a, i, vr=5, sr=92):
    if not DEBUG: return
    a(f's_memrealtime s[{sr}:{sr+1}]')
    a('s_waitcnt lgkmcnt(0)')
    a(f'v_writelane_b32 v{vr}, s{sr}, {i}')
def stampc(a, i, vr=5, sr=92):
    if not DEBUG: return
    a(f's_memtime s[{sr}:{sr+1}]')
    a('s_waitcnt lgkmcnt(0)')
    a(f'v_writelane_b32 v{vr}, s{sr}, {i}')
def stamp_out(a, kern, wsreg, vr=5, sr=92, tmp=6):
    if not DEBUG: return
    a('s_waitcnt vmcnt(0)')
    stamp(a, 15, vr, sr)
    a('s_mov_b64 exec, -1')
    srd(a, 96, wsreg, PROF_OFF + kern*0x400000, 0x400000)
    a(f's_lshl_b32 s{sr}, s2, 4')
    a(f's_add_u32 s{sr}, s{sr}, s3')
    a(f's_lshl_b32 s{sr}, s{sr}, 8')
    a(f'v_lshlrev_b32 v{tmp}, 2, v1')
    a(f'buffer_store_dword v{vr}, v{tmp}, s[96:99], s{sr} offen')

def wave_scan(a, v):
    for sh in (1, 2, 4, 8):
        a('s_nop 1')
        a(f'v_add_u32_dpp v{v}, v{v}, v{v} row_shr:{sh} row_mask:0xf bank_mask:0xf bound_ctrl:0')
    a('s_nop 1')
    a(f'v_add_u32_dpp v{v}, v{v}, v{v} row_bcast:15 row_mask:0xa bank_mask:0xf')
    a('s_nop 1')
    a(f'v_add_u32_dpp v{v}, v{v}, v{v} row_bcast:31 row_mask:0xc bank_mask:0xf')

def pr(r): return f'v[{r}:{r+1}]'
def q4(r): return f'v[{r}:{r+3}]'

A_GEMM0 = NCH
A_PREP0 = NCH + 112
A_GRID = A_PREP0 + 4
A_BLOCK = 448
A_XT = 0
A_W1 = 7*4096
A_LDS = A_W1 + 8192
A_STAGE = 2048 + 64
A_EFLAG = 2048
ST_A = os.environ.get('ST_A', 'sc0 sc1')

def kernel_a(a):
    a.raw('.globl mpnn_bin_kernel')
    a.raw('.p2align 8')
    a.raw('.type mpnn_bin_kernel,@function')
    a.lab('mpnn_bin_kernel')
    if DEBUG:
        a('s_memrealtime s[94:95]')
        a('s_getreg_b32 s62, hwreg(HW_REG_HW_ID)')
        a('s_getreg_b32 s63, hwreg(HW_REG_XCC_ID)')
    a('s_load_dwordx16 s[4:19], s[0:1], 0')
    a('s_load_dwordx2 s[20:21], s[0:1], 64')
    if CPF:
        a('s_getpc_b64 s[60:61]')
        a.lab('A_pc')
        a('v_lshlrev_b32 v100, 4, v0')
        a('v_add_u32 v101, 7168, v100')
        a('v_min_u32 v101, code_end-A_pc-16, v101')
        a('v_min_u32 v100, code_end-A_pc-16, v100')
        a('global_load_dwordx4 v[104:107], v100, s[60:61]')
        a('global_load_dwordx4 v[108:111], v101, s[60:61]')
    a(f's_cmp_ge_u32 s2, {A_GRID}')
    a('s_cbranch_scc1 A_done')
    a('v_lshrrev_b32 v1, 6, v0')
    a('v_lshlrev_b32 v3, 4, v0')
    a('v_readfirstlane_b32 s3, v1')
    a('v_and_b32 v1, 63, v0')
    a(f's_cmp_ge_u32 s2, {A_PREP0}')
    a('s_cbranch_scc1 A_prep')
    a(f's_cmp_ge_u32 s2, {A_GEMM0}')
    a('s_cbranch_scc1 A_gemm')
    a('v_cmp_gt_u32 vcc, 400, v0')
    a('s_and_b64 exec, exec, vcc')
    a('v_lshlrev_b32 v2, 3, v0')
    a(f's_mul_i32 s44, s2, {CH*4}')
    a(f's_mul_i32 s45, s2, {CH*2}')
    a(f's_add_u32 s50, s44, {CH*2}')
    a(f's_add_u32 s51, s45, {CH}')
    a('s_waitcnt lgkmcnt(0)')
    srd(a, 24, 10, 0, E*4)
    a('buffer_load_dwordx4 v[8:11], v3, s[24:27], s44 offen')
    a('buffer_load_dwordx4 v[12:15], v3, s[24:27], s50 offen')
    srd(a, 28, 8, 0, E*4)
    a('buffer_load_dwordx4 v[16:19], v3, s[28:31], s44 offen')
    a('buffer_load_dwordx4 v[20:23], v3, s[28:31], s50 offen')
    srd(a, 32, 6, 0, E*2)
    a('buffer_load_dwordx2 v[24:25], v2, s[32:35], s45 offen')
    a('buffer_load_dwordx2 v[26:27], v2, s[32:35], s51 offen')
    stamp(a, 0, 70)
    if DEBUG:
        a('v_writelane_b32 v70, s94, 8')
        a('v_writelane_b32 v70, s62, 9')
        a('v_writelane_b32 v70, s63, 10')
    a('v_lshlrev_b32 v5, 2, v0')
    a('v_mov_b32 v4, 0')
    a('v_mov_b32 v6, 2048')
    a('v_cmp_gt_u32 vcc, 256, v0')
    a('s_nop 1')
    a('v_cndmask_b32 v5, v6, v5, vcc')
    a('ds_write_b32 v5, v4')
    if TLBW:
        srd(a, 36, 20, 0, 0xC00000)
        a('v_lshlrev_b32 v7, 20, v1')
        a('buffer_load_dword v71, v7, s[36:39], 0 offen')
    srd(a, 36, 20, WS_REC, REC_BYTES)
    srd(a, 40, 20, WS_TAB, TAB_BYTES)
    a('s_mov_b32 s46, 42800')
    a('s_mov_b32 s47, -196')
    a('s_mov_b32 s48, 0xffff0000')
    a('s_mov_b32 s52, 0x7fff7fff')
    a('v_mov_b32 v4, 1')
    a('s_waitcnt lgkmcnt(0)')
    a('s_barrier')
    for hf in range(2):
        a(f's_waitcnt vmcnt({5-hf+TLBW})')
        if hf == 0: stamp(a, 1, 70)
        for j in range(4*hf, 4*hf+4):
            a(f'v_mul_u32_u24 v{28+j}, s46, v{8+j}')
            a(f'v_lshrrev_b32 v{28+j}, 22, v{28+j}')
            a(f'v_lshlrev_b32 v{28+j}, 2, v{28+j}')
            a(f'ds_add_rtn_u32 v{56+j}, v{28+j}, v4')
    for j in range(8):
        a(f'v_lshlrev_b32 v{8+j}, 3, v{8+j}')
        a(f'v_mad_i32_i24 v{41+2*j}, v{28+j}, s47, v{8+j}')
    a('s_mov_b64 s[22:23], exec')
    a('s_waitcnt lgkmcnt(0)')
    a('s_barrier')
    stamp(a, 2, 70)
    a('s_mov_b64 exec, -1')
    a('v_lshlrev_b32 v5, 4, v1')
    a('ds_read_b128 v[8:11], v5')
    a('s_waitcnt lgkmcnt(0)')
    a('v_add_u32 v13, v8, v9')
    a('v_add_u32 v14, v13, v10')
    a('v_add_u32 v15, v14, v11')
    a('v_mov_b32 v72, v15')
    wave_scan(a, 72)
    a('v_sub_u32 v12, v72, v15')
    a('v_add_u32 v15, v12, v14')
    a('v_add_u32 v14, v12, v13')
    a('v_add_u32 v13, v12, v8')
    for k in range(4):
        a(f'v_lshlrev_b32 v{72+k}, 3, v{12+k}')
    a('ds_write_b128 v5, v[72:75] offset:1024')
    for k in range(4):
        a(f'v_lshl_or_b32 v{64+k}, v{8+k}, 16, v{12+k}')
    a('s_mov_b64 exec, s[22:23]')
    a('s_waitcnt lgkmcnt(0)')
    for j in range(8):
        a(f'ds_read_b32 v{8+j}, v{28+j} offset:1024')
    a('s_waitcnt vmcnt(0)')
    for j in range(8):
        if j % 2 == 0:
            a(f'v_lshl_or_b32 v{40+2*j}, v{24+j//2}, 16, v{16+j}')
        else:
            a(f'v_and_or_b32 v{40+2*j}, v{24+j//2}, s48, v{16+j}')
    for j in range(4):
        a(f'v_and_b32 v{24+j}, s52, v{24+j}')
    a('v_pk_max_u16 v24, v24, v25')
    a('v_pk_max_u16 v26, v26, v27')
    a('v_pk_max_u16 v24, v24, v26')
    a('v_lshrrev_b32 v25, 16, v24')
    a('v_and_b32 v24, 0xffff, v24')
    a('v_max_u32 v24, v24, v25')
    a(f'v_cmp_lt_u32 vcc, {hex(LIM_E_BF16)}, v24')
    a('s_and_saveexec_b64 s[54:55], vcc')
    a('s_cbranch_execz A_eok')
    a('v_mov_b32 v25, 0x80000000')
    a('ds_write_b32 v6, v25')
    a.lab('A_eok')
    a('s_mov_b64 exec, s[54:55]')
    a('s_waitcnt lgkmcnt(0)')
    for j in range(8):
        a(f'v_lshl_add_u32 v{8+j}, v{56+j}, 3, v{8+j}')
    stamp(a, 3, 70)
    for j in range(8):
        a(f'ds_write_b64 v{8+j}, {pr(40+2*j)} offset:{A_STAGE}')
    a('s_waitcnt lgkmcnt(0)')
    a('s_barrier')
    stamp(a, 4, 70)
    a('s_cmp_lg_u32 s3, 6')
    a('s_cbranch_scc1 A_notab')
    a('s_mov_b64 exec, -1')
    a('v_mov_b32 v6, 2048')
    a('ds_read_b32 v7, v6')
    a('s_lshl_b32 s49, s2, 10')
    a('s_waitcnt lgkmcnt(0)')
    for k in range(4):
        a(f'v_or_b32 v{64+k}, v{64+k}, v7')
    a(f'buffer_store_dwordx4 v[64:67], v5, s[40:43], s49 offen {ST_A}')
    a('s_mov_b64 exec, s[22:23]')
    a.lab('A_notab')
    for j in range(4):
        a(f'ds_read_b128 {q4(8+4*j)}, v3 offset:{A_STAGE+6400*j}')
    a(f's_mul_i32 s49, s2, {CH*8}')
    for j in range(4):
        a(f's_waitcnt lgkmcnt({3-j})')
        a(f'buffer_store_dwordx4 {q4(8+4*j)}, v3, s[36:39], s49 offen {ST_A}')
        if j < 3:
            a(f's_add_u32 s49, s49, 6400')
    stamp(a, 5, 70)
    stamp_out(a, 0, 20, 70)
    a('s_endpgm')

    a.lab('A_gemm')
    a(f's_sub_u32 s22, s2, {A_GEMM0}')
    a('s_mul_i32 s22, s22, 7')
    a('s_add_u32 s22, s22, s3')
    a('v_and_b32 v2, 31, v1')
    a('v_lshrrev_b32 v3, 5, v1')
    a('v_lshlrev_b32 v4, 2, v2')
    a('v_lshl_add_u32 v7, v3, 9, v4')
    a('v_lshl_add_u32 v4, v3, 10, v4')
    a(f'v_add_u32 v4, {A_W1}, v4')
    a('v_lshlrev_b32 v5, 4, v0')
    a('s_lshl_b32 s23, s22, 12')
    a('v_lshlrev_b32 v6, 4, v1')
    a('s_lshl_b32 s42, s3, 12')
    a('v_lshrrev_b32 v8, 3, v1')
    a('v_and_b32 v9, 7, v1')
    a('v_xor_b32 v10, v9, v8')
    a('v_lshlrev_b32 v10, 4, v10')
    a('v_lshl_add_u32 v10, v8, 7, v10')
    a('v_add_u32 v10, s42, v10')
    a('v_xor_b32 v9, v9, v3')
    a('v_lshlrev_b32 v8, 7, v2')
    a('v_add_u32 v8, s42, v8')
    for ks in range(4):
        a(f'v_xor_b32 v{11+ks}, {2*ks}, v9')
        a(f'v_lshl_add_u32 v{11+ks}, v{11+ks}, 4, v8')
    a('s_waitcnt lgkmcnt(0)')
    srd(a, 24, 4, 0, N*128)
    srd(a, 28, 12, 0, 64*128)
    a('s_movk_i32 s43, 7168')
    a('buffer_load_dwordx4 v[16:19], v5, s[28:31], 0 offen')
    a('buffer_load_dwordx4 v[20:23], v5, s[28:31], s43 offen')
    for j in range(4):
        a(f'buffer_load_dwordx4 {q4(48+4*j)}, v6, s[24:27], s23 offen offset:{1024*j}')
    stamp(a, 0, 15)
    if DEBUG:
        a('v_writelane_b32 v15, s94, 8')
        a('v_writelane_b32 v15, s62, 9')
        a('v_writelane_b32 v15, s63, 10')
    srd(a, 32, 20, WS_PT, N*128)
    srd(a, 44, 20, WS_PF, PF_BYTES)
    a('s_mov_b32 s36, 0x05040100')
    a('s_mov_b32 s37, 0x07060302')
    a(f's_mov_b32 s38, {hex(f32(-LOG2E))}')
    a('s_mov_b32 s39, 0x7fffffff')
    a('s_mov_b32 s40, 0x7fff0000')
    a(f's_mov_b32 s41, {hex(f32(LIM_P))}')
    a('s_waitcnt vmcnt(4)')
    a(f'ds_write_b128 v5, v[16:19] offset:{A_W1}')
    a('s_cmp_lg_u32 s3, 0')
    a('s_cbranch_scc1 A_w1done')
    a(f'ds_write_b128 v5, v[20:23] offset:{A_W1+7168}')
    a.lab('A_w1done')
    a('s_waitcnt lgkmcnt(0)')
    a('s_barrier')
    for ks in range(4):
        if ks: a('v_add_u32 v4, 2048, v4')
        for jj in range(4):
            a(f'ds_read2_b32 {pr(16+8*ks+2*jj)}, v4 offset0:{64*jj} offset1:{64*jj+32}')
    a('s_waitcnt vmcnt(0)')
    for j in range(4):
        a(f'ds_write_b128 v10, {q4(48+4*j)} offset:{1024*j}')
    a('s_waitcnt lgkmcnt(0)')
    for ks in range(4):
        a(f'ds_read_b128 {q4(48+4*ks)}, v{11+ks}')
    stamp(a, 1, 15)
    for ks in range(4):
        for jj in range(4):
            r0 = 16+8*ks+2*jj
            a(f'v_perm_b32 v{64+4*ks+jj}, v{r0+1}, v{r0}, s36')
            a(f'v_perm_b32 v{80+4*ks+jj}, v{r0+1}, v{r0}, s37')
    a('s_waitcnt lgkmcnt(0)')
    for ks in range(4):
        c0 = '0' if ks == 0 else 'v[96:111]'
        c1 = '0' if ks == 0 else 'v[112:127]'
        a(f'v_mfma_f32_32x32x16_bf16 v[96:111], {q4(48+4*ks)}, {q4(64+4*ks)}, {c0}')
        a(f'v_mfma_f32_32x32x16_bf16 v[112:127], {q4(48+4*ks)}, {q4(80+4*ks)}, {c1}')
    a('s_nop 15')
    stamp(a, 2, 15)
    for r in range(16):
        a(f'v_mul_f32 v{96+r}, s38, v{96+r}')
    for r in range(16):
        a(f'v_mul_f32 v{112+r}, s38, v{112+r}')
    for r in range(0, 16, 2):
        a(f'v_cvt_pk_bf16_f32 v{16+r}, v{96+r}, v{97+r}')
    for r in range(0, 16, 2):
        a(f'v_lshrrev_b32 v{17+r}, 16, v{16+r}')
        a(f'v_and_b32 v{16+r}, 0xffff, v{16+r}')
    for r in range(16):
        a(f'v_and_b32 v{32+r}, s39, v{112+r}')
    for r in range(16):
        a(f'v_add_u32 v{32+r}, 0x8000, v{32+r}')
    for r in range(16):
        a(f'v_sub_u32 v{32+r}, v{32+r}, v{16+r} clamp')
    for r in range(16):
        a(f'v_and_or_b32 v{32+r}, v{32+r}, s40, v{16+r}')
    for r in range(16):
        a(f'v_bfi_b32 v{32+r}, s39, v{32+r}, v{112+r}')
        a(f'buffer_store_dword v{32+r}, v7, s[32:35], s23 offen offset:{((r&3)+8*(r>>2))*128} {ST_A}')
    a('v_max_f32 v64, |v96|, |v97|')
    for r in range(2, 32, 2):
        a(f'v_max3_f32 v64, v64, |v{96+r}|, |v{97+r}|')
    a('v_cmp_lt_f32 vcc, s41, v64')
    a('s_lshl_b32 s43, s22, 2')
    a('v_mov_b32 v66, 0')
    a('s_cmp_lg_u64 vcc, 0')
    a('s_cselect_b32 s42, 1, 0')
    a('v_mov_b32 v65, s42')
    a('s_mov_b64 exec, 1')
    a(f'buffer_store_dword v65, v66, s[44:47], s43 offen {ST_A}')
    stamp(a, 5, 15)
    stamp_out(a, 0, 20, 15)
    a('s_endpgm')

    a.lab('A_prep')
    a(f's_sub_u32 s50, s2, {A_PREP0}')
    a('s_mul_i32 s50, s50, 7')
    a('s_add_u32 s50, s50, s3')
    a('s_cmp_gt_u32 s50, 24')
    a('s_cbranch_scc1 A_done')
    a('s_lshr_b32 s22, s50, 3')
    a('s_bfe_u32 s23, s50, 0x10002')
    a('s_and_b32 s24, s50, 3')
    a('v_and_b32 v2, 31, v1')
    a('v_lshrrev_b32 v3, 5, v1')
    a('v_bfe_u32 v4, v2, 2, 1')
    a('v_and_b32 v5, 3, v2')
    a('v_lshrrev_b32 v6, 3, v2')
    a('v_lshl_add_u32 v5, v6, 2, v5')
    a('s_waitcnt lgkmcnt(0)')
    srd(a, 32, 20, WS_WF, WF_BYTES)
    a('s_cmp_eq_u32 s50, 24')
    a('s_cbranch_scc1 A_prep_w3')
    a('s_cmp_lg_u32 s22, 0')
    a('s_cbranch_scc1 A_prep_u')
    srd(a, 28, 12, 0, 129*128)
    a('v_lshrrev_b32 v6, 3, v5')
    a('v_lshl_add_u32 v6, v4, 2, v6')
    a('s_lshl_b32 s25, s23, 1')
    a('v_add_u32 v6, s25, v6')
    a('v_and_b32 v7, 7, v5')
    a('v_lshlrev_b32 v8, 1, v7')
    a('v_add_u32 v9, 1, v8')
    a('v_subrev_u32 v8, 8, v8')
    a('v_cmp_gt_u32 vcc, 4, v7')
    a('s_nop 1')
    a('v_cndmask_b32 v8, v8, v9, vcc')
    a('v_lshl_add_u32 v8, v6, 3, v8')
    a('v_lshlrev_b32 v8, 1, v8')
    a('v_lshl_add_u32 v8, v3, 10, v8')
    a('s_lshl_b32 s26, s24, 11')
    a('s_add_u32 s26, s26, 8192')
    for j in range(8):
        a(f'buffer_load_ushort v{32+j}, v8, s[28:31], s26 offen offset:{128*j}')
    a('s_branch A_prep_st')
    a.lab('A_prep_u')
    srd(a, 28, 14, 0, 128*128)
    a('v_lshl_add_u32 v8, v4, 4, v5')
    a('s_lshl_b32 s25, s23, 5')
    a('v_add_u32 v8, s25, v8')
    a('v_lshlrev_b32 v8, 1, v8')
    a('s_cmp_lg_u32 s22, 1')
    a('s_cbranch_scc1 A_prep_agg')
    a('v_lshl_add_u32 v8, v3, 10, v8')
    a('s_lshl_b32 s26, s24, 11')
    for j in range(8):
        a(f'buffer_load_ushort v{32+j}, v8, s[28:31], s26 offen offset:{128*j}')
    a('s_branch A_prep_st')
    a.lab('A_prep_w3')
    srd(a, 44, 20, WS_PT + N*128, 128)
    a('v_mov_b32 v20, 0x71497149')
    a('v_mov_b32 v21, v20')
    a('v_mov_b32 v22, v20')
    a('v_mov_b32 v23, v20')
    a('v_lshlrev_b32 v24, 4, v1')
    a('buffer_store_dwordx4 v[20:23], v24, s[44:47], 0 offen')
    srd(a, 36, 12, 0, 129*128)
    a('v_and_b32 v10, 7, v1')
    a('v_lshlrev_b32 v11, 4, v10')
    a('s_movk_i32 s27, 0x4000')
    a('buffer_load_dwordx4 v[44:47], v11, s[36:39], s27 offen')
    a(f's_mov_b32 s40, {hex(f32(-LOG2E))}')
    a('s_waitcnt vmcnt(0)')
    for i in range(4):
        a(f'v_and_b32 v{48+i}, 0xffff0000, v{44+i}')
        a(f'v_lshlrev_b32 v{52+i}, 16, v{44+i}')
    for i in range(8):
        a(f'v_mul_f32 v{48+i}, s40, v{48+i}')
    a('v_max3_f32 v44, |v48|, |v49|, |v50|')
    a('v_max3_f32 v44, v44, |v51|, |v52|')
    a('v_max3_f32 v44, v44, |v53|, |v54|')
    a('v_max_f32 v44, v44, |v55|')
    a(f'v_cmp_lt_f32 vcc, {LIM_W}, v44')
    a('v_lshlrev_b32 v11, 5, v10')
    a('s_cmp_lg_u64 vcc, 0')
    a('s_cselect_b32 s41, 1, 0')
    a('v_mov_b32 v45, s41')
    a('v_mov_b32 v46, 0')
    a(f's_movk_i32 s27, {WF_W3}')
    a('buffer_store_dwordx4 v[48:51], v11, s[32:35], s27 offen')
    a('buffer_store_dwordx4 v[52:55], v11, s[32:35], s27 offen offset:16')
    a('buffer_store_dword v45, v46, s[32:35], s27 offen offset:256')
    a('s_endpgm')
    a.lab('A_prep_agg')
    a('v_lshl_add_u32 v8, v3, 12, v8')
    a('s_lshl_b32 s26, s24, 2')
    a('s_add_u32 s27, s26, 1')
    a('s_sub_u32 s26, s26, 8')
    a('s_cmp_lt_u32 s24, 2')
    a('s_cselect_b32 s26, s27, s26')
    a('s_add_u32 s26, s26, 64')
    a('s_lshl_b32 s26, s26, 7')
    for j in range(8):
        a(f'buffer_load_ushort v{32+j}, v8, s[28:31], s26 offen offset:{(j&3)*1024+(j>>2)*256}')
    a.lab('A_prep_st')
    a('s_lshl_b32 s25, s50, 10')
    a('v_lshlrev_b32 v9, 4, v1')
    a('s_waitcnt vmcnt(0)')
    for j in range(4):
        a(f'v_lshl_or_b32 v{16+j}, v{33+2*j}, 16, v{32+2*j}')
    a('buffer_store_dwordx4 v[16:19], v9, s[32:35], s25 offen')
    a.lab('A_done')
    a('s_endpgm')

RS = 288
NPCAP = 2080
L_CNT = 0
L_BASE = 1024
L_MAX = 2048
L_FLAG = 2052
L_WORK = 2056
L_TOT = 2060
L_PN = 2064
L_REC = L_PN + NPCAP*2
L_Q = L_REC + NPCAP*16
L_AGG = L_Q + NB*RS
L_X = L_AGG + NB*RS*2
L_WU = L_X + 13*1024
L_SCR = L_WU + 16384
B_LDS = L_SCR + 1024
NPF = 0
for x in (L_REC, L_Q, L_AGG, L_X, L_WU): assert x % 16 == 0
assert B_LDS <= 163840 and L_Q + 128 < 65536

def kernel_b(a):
    a.raw('.globl mpnn_main_kernel')
    a.raw('.p2align 8')
    a.raw('.type mpnn_main_kernel,@function')
    a.lab('mpnn_main_kernel')
    a('s_load_dwordx2 s[80:81], s[0:1], 64')
    a('s_load_dwordx16 s[64:79], s[0:1], 0')
    if CPF:
        a('s_getpc_b64 s[60:61]')
        a.lab('B_pc')
        a('v_lshlrev_b32 v100, 4, v0')
        a('v_min_u32 v100, code_end-B_pc-16, v100')
        a('global_load_dwordx4 v[104:107], v100, s[60:61]')
    a(f's_cmp_ge_u32 s2, {NBK}')
    a('s_cbranch_scc1 B_done')
    a('v_lshrrev_b32 v1, 6, v0')
    a('v_lshrrev_b32 v4, 3, v0')
    a('v_readfirstlane_b32 s3, v1')
    a('v_lshlrev_b32 v12, 10, v4')
    if XMAP:
        a('s_and_b32 s85, s2, 7')
        a('s_lshl_b32 s85, s85, 5')
        a('s_lshr_b32 s86, s2, 3')
        a('s_add_u32 s85, s85, s86')
    else:
        a('s_mov_b32 s85, s2')
        a('s_lshr_b32 s86, s2, 3')
    a('s_lshl_b32 s32, s85, 2')
    a('s_add_u32 s33, s32, 0x20000')
    a('v_and_b32 v1, 63, v0')
    a('v_and_b32 v3, 7, v0')
    a('v_lshlrev_b32 v2, 4, v3')
    a('s_waitcnt lgkmcnt(0)')
    ws = 80
    srd(a, 4, ws, WS_TAB, TAB_BYTES)
    a('buffer_load_dword v6, v12, s[4:7], s32 offen')
    a('buffer_load_dword v7, v12, s[4:7], s33 offen')
    stamp(a, 0)
    if TLBW:
        srd(a, 8, ws, 0, 0xC00000)
        a('v_lshlrev_b32 v13, 20, v1')
        a('buffer_load_dword v112, v13, s[8:11], 0 offen')
        srd(a, 24, 76, 0, N*128)
        a('buffer_load_dword v113, v13, s[24:27], 0 offen')
    srd(a, 8, ws, WS_REC, REC_BYTES)
    srd(a, 16, 64, 0, N*128)
    srd(a, 20, ws, WS_WF, WF_BYTES)
    a(f's_add_u32 s28, s80, {hex(WS_WF+WF_W3+256)}')
    a('s_addc_u32 s29, s81, 0')
    a('s_load_dword s90, s[28:29], 0')
    srd(a, 12, ws, WS_PT, PT_BYTES)
    srd(a, 24, 76, 0, N*128)
    a('s_mov_b64 s[88:89], s[80:81]')
    a('s_and_b32 s34, s3, 1')
    a('s_bfe_u32 s35, s3, 0x20001')
    a(f's_mul_i32 s37, s85, {NB}')
    a('s_lshl_b32 s38, s35, 5')
    a('v_lshlrev_b32 v11, 4, v1')
    a('v_and_b32 v8, 31, v1')
    a('v_add_u32 v8, s38, v8')
    a('v_lshrrev_b32 v9, 5, v1')
    a('v_lshlrev_b32 v3, 3, v3')
    a(f'v_add_u32 v3, {L_AGG}, v3')
    a('s_movk_i32 s42, 128')
    a('s_mov_b32 s43, 0xffff0000')
    a('s_mov_b32 s44, 1.0')
    a('s_mov_b32 s45, 1.0')
    a('s_mov_b32 s46, 0x3f80')
    a(f's_mov_b32 s47, {hex(f32(-LOG2E))}')
    a(f's_mov_b32 s48, {hex(f32(-LN2))}')
    a(f's_mov_b32 s49, {hex(f32(-LN2))}')
    a('s_mov_b32 s50, 0')
    a('v_lshlrev_b32 v12, 4, v0')
    for r in range(16, 20): a(f'v_mov_b32 v{r}, 0')
    a(f'v_add_u32 v13, {L_AGG}, v12')
    for j in range(3):
        a(f'ds_write_b128 v13, v[16:19] offset:{16384*j}')
    a(f'v_cmp_gt_u32 vcc, {NB*RS*2//16-3072}, v0')
    a('s_and_saveexec_b64 s[52:53], vcc')
    a('ds_write_b128 v13, v[16:19] offset:49152')
    a('s_mov_b64 exec, s[52:53]')
    a.lab('B_batch')
    for r in range(16, 20): a(f'v_mov_b32 v{r}, 0')
    a('v_lshlrev_b32 v12, 4, v0')
    a(f'v_cmp_gt_u32 vcc, {L_REC//16}, v0')
    a('s_and_saveexec_b64 s[52:53], vcc')
    a('ds_write_b128 v12, v[16:19]')
    a('s_mov_b64 exec, s[52:53]')
    a(f'v_mov_b32 v20, {N}')
    a('v_mov_b32 v21, v20')
    a('v_mov_b32 v22, v20')
    a('v_mov_b32 v23, v20')
    a(f'ds_write_b128 v12, v[20:23] offset:{L_REC}')
    a(f'ds_write_b128 v12, v[20:23] offset:{L_REC+16384}')
    a(f'v_cmp_gt_u32 vcc, {NPCAP-2048}, v0')
    a('s_and_saveexec_b64 s[52:53], vcc')
    a(f'ds_write_b128 v12, v[20:23] offset:{L_REC+32768}')
    a('s_mov_b64 exec, s[52:53]')
    a('v_and_b32 v14, 7, v0')
    a('v_lshlrev_b32 v14, 1, v14')
    a('v_add_u32 v14, s50, v14')
    a(f's_movk_i32 s51, {CH}')
    a('v_mul_u32_u24 v15, s51, v4')
    a('v_add_u32 v15, v15, v14')
    a('v_mov_b32 v25, 0x7fffff00')
    a(f's_waitcnt vmcnt({2 if TLBW else 0})')
    stamp(a, 1)
    for rd in range(2):
        T = 6+rd
        a(f'v_bfe_u32 v{20+rd}, v{T}, 16, 13')
        a(f'v_and_b32 v{22+rd}, 0xffff, v{T}')
        a(f'v_add_u32 v{22+rd}, v{22+rd}, v15')
        if rd == 1:
            a(f'v_add_u32 v{22+rd}, {128*CH}, v{22+rd}')
        a(f'v_lshlrev_b32 v{22+rd}, 3, v{22+rd}')
        a(f'v_sub_u32 v{16+rd}, v{20+rd}, v14')
    for rd in range(2):
        for ld in range(2):
            for e in range(2):
                s = rd*4+ld*2+e
                a(f'v_cmp_lt_i32 s[{52+2*s}:{53+2*s}], {ld*16+e}, v{16+rd}')
    order = [(0, 0), (1, 0), (0, 1), (1, 1)]
    for rd, ld in order:
        s = rd*4+ld*2
        r = 96+(rd*2+ld)*4
        a(f'v_cndmask_b32 v{26+rd*2+ld}, v25, v{22+rd}, s[{52+2*s}:{53+2*s}]')
        a(f'buffer_load_dwordx4 {q4(r)}, v{26+rd*2+ld}, s[8:11], 0 offen offset:{128*ld}')
    a('s_cmp_lg_u32 s50, 0')
    a('s_cbranch_scc1 B_noaux')
    a('s_lshl_b32 s39, s37, 7')
    a('s_lshl_b32 s40, s3, 10')
    a('s_add_u32 s39, s39, s40')
    a('buffer_load_dwordx4 v[32:35], v11, s[16:19], s39 offen')
    a(f's_add_u32 m0, s40, {L_WU}')
    a('s_add_u32 s40, s40, 8192')
    a('buffer_load_dwordx4 v11, s[20:23], s40 offen lds')
    a(f's_movk_i32 s41, {WF_W3}')
    a('v_lshlrev_b32 v18, 1, v2')
    a('buffer_load_dwordx4 v[68:71], v18, s[20:23], s41 offen')
    a('buffer_load_dwordx4 v[72:75], v18, s[20:23], s41 offen offset:16')
    srd(a, 28, 88, WS_PF, PF_BYTES)
    a('v_lshlrev_b32 v18, 2, v0')
    a('buffer_load_dword v44, v18, s[28:31], 0 offen')
    a('s_cmp_ge_u32 s3, 8')
    a('s_cbranch_scc1 B_now2')
    a('s_lshl_b32 s39, s34, 12')
    for ks in range(4):
        a(f'buffer_load_dwordx4 {q4(48+4*ks)}, v11, s[20:23], s39 offen offset:{1024*ks}')
    a.lab('B_now2')
    a.lab('B_noaux')
    a('s_waitcnt lgkmcnt(0)')
    a('s_barrier')
    a('v_max_i32 v16, v16, v17')
    a('v_or_b32 v17, v6, v7')
    a('v_cmp_lt_i32 vcc, 32, v16')
    a('v_cmp_gt_i32 s[68:69], 0, v17')
    a(f'v_mov_b32 v24, {L_MAX}')
    a('v_mov_b32 v16, 1')
    a('s_cbranch_vccz B_nomore')
    a('ds_write_b32 v24, v16')
    a.lab('B_nomore')
    a('s_cmp_eq_u64 s[68:69], 0')
    a('s_cbranch_scc1 B_noflag')
    a('ds_write_b32 v24, v16 offset:4')
    a.lab('B_noflag')
    a('v_mov_b32 v24, 4')
    def ranks(extra):
        for n, (rd, ld) in enumerate(order):
            a(f's_waitcnt vmcnt({3-n+extra})')
            for e in range(2):
                s = rd*4+ld*2+e
                r = 96+(rd*2+ld)*4+2*e
                a(f's_mov_b64 exec, s[{52+2*s}:{53+2*s}]')
                a(f'ds_add_rtn_u32 v{36+s}, v{r+1}, v24 offset:{L_CNT}')
        a('s_mov_b64 exec, -1')
    a('s_cmp_lg_u32 s50, 0')
    a('s_cbranch_scc1 B_rk0')
    a('s_cmp_ge_u32 s3, 8')
    a('s_cbranch_scc1 B_rk3')
    ranks(9)
    a('s_waitcnt vmcnt(8)')
    a('s_branch B_rkx')
    a.lab('B_rk3')
    ranks(5)
    a('s_waitcnt vmcnt(4)')
    a.lab('B_rkx')
    stamp(a, 7)
    a('v_lshrrev_b32 v16, 3, v1')
    a('v_and_b32 v17, 7, v1')
    a('v_xor_b32 v17, v17, v16')
    a('v_lshlrev_b32 v17, 4, v17')
    a('v_lshl_add_u32 v17, v16, 7, v17')
    a('s_lshl_b32 s51, s3, 10')
    a(f's_add_u32 s51, s51, {L_X}')
    a('v_add_u32 v17, s51, v17')
    a('s_cmp_ge_u32 s3, 13')
    a('s_cbranch_scc1 B_rkdone')
    a('ds_write_b128 v17, v[32:35]')
    a('s_branch B_rkdone')
    a.lab('B_rk0')
    ranks(0)
    a.lab('B_rkdone')
    a('s_waitcnt lgkmcnt(0)')
    a('s_barrier')
    stamp(a, 2)
    a('s_cmp_ge_u32 s3, 8')
    a('s_cbranch_scc1 B_scan')
    a('s_cmp_lg_u32 s50, 0')
    a('s_cbranch_scc1 B_mid')
    a('v_and_b32 v18, 7, v1')
    a('v_xor_b32 v18, v18, v9')
    a('v_lshlrev_b32 v16, 7, v8')
    a(f'v_add_u32 v16, {L_X}, v16')
    for ks in range(4):
        a(f'v_xor_b32 v19, {2*ks}, v18')
        a(f'v_lshl_add_u32 v{20+ks}, v19, 4, v16')
        a(f'ds_read_b128 {q4(76+4*ks)}, v{20+ks}')
    a(f's_movk_i32 s68, {RS}')
    a('v_mul_u32_u24 v16, s68, v8')
    a('v_lshl_add_u32 v16, v9, 6, v16')
    a('s_lshl_b32 s68, s34, 5')
    a('v_add_u32 v16, s68, v16')
    a(f'v_mov_b32 v18, {NB}')
    a('v_cmp_gt_u32 s[68:69], v18, v8')
    a(f's_waitcnt vmcnt({NPF}) lgkmcnt(0)')
    for ks in range(4):
        c = '0' if ks == 0 else 'v[112:127]'
        a(f'v_mfma_f32_32x32x16_bf16 v[112:127], {q4(48+4*ks)}, {q4(76+4*ks)}, {c}')
    a('s_nop 11')
    for r in range(16):
        a(f'v_mul_f32 v{112+r}, s47, v{112+r}')
    a('s_mov_b64 exec, s[68:69]')
    for o in range(2):
        a(f'ds_write_b128 v16, {q4(112+8*o)} offset:{L_Q+16*o}')
        a(f'ds_write_b128 v16, {q4(116+8*o)} offset:{L_Q+128+16*o}')
    a('v_max_f32 v17, |v112|, |v113|')
    for r in range(2, 16, 2):
        a(f'v_max3_f32 v17, v17, |v{112+r}|, |v{113+r}|')
    a(f'v_cmp_lt_f32 vcc, {hex(f32(LIM_Q))}, v17')
    a('s_mov_b64 exec, -1')
    a('s_cbranch_vccz B_mid')
    a(f'v_mov_b32 v24, {L_FLAG}')
    a('v_mov_b32 v16, 1')
    a('ds_write_b32 v24, v16')
    a('s_branch B_mid')
    a.lab('B_scan')
    a('s_cmp_lt_u32 s3, 12')
    a('s_cbranch_scc1 B_scan2')
    if PREF:
        a('s_cmp_lg_u32 s50, 0')
        a('s_cbranch_scc1 B_mid')
        a('s_waitcnt vmcnt(0)')
        a('s_mul_i32 s39, s86, 100000')
        a('s_sub_u32 s40, s3, 12')
        a('s_mul_i32 s40, s40, 25600')
        a('s_add_u32 s39, s39, s40')
        a(f's_mov_b32 m0, {L_SCR}')
        for j in range(25):
            a('buffer_load_dwordx4 v11, s[12:15], s39 offen lds')
            if j < 24: a('s_add_u32 s39, s39, 1024')
        a('s_branch B_mid2')
    else:
        a('s_branch B_mid')
    a.lab('B_scan2')
    a(f'ds_read_b128 v[16:19], v11 offset:{L_CNT}')
    a('s_waitcnt lgkmcnt(0)')
    for k in range(2):
        a(f'v_and_b32 v{20+k}, 12, v{16+2*k}')
        a(f'v_min_u32 v{20+k}, 1, v{20+k}')
        a(f'v_lshrrev_b32 v{22+k}, 4, v{16+2*k}')
        a(f'v_lshl_or_b32 v{20+k}, v{20+k}, 16, v{22+k}')
    a('v_add_u32 v24, v20, v21')
    a('v_mov_b32 v25, v24')
    wave_scan(a, 25)
    a('v_sub_u32 v24, v25, v24')
    a('v_readlane_b32 s70, v25, 63')
    a('v_add_u32 v25, v24, v20')
    a(f's_movk_i32 s51, {2*RS}')
    a('v_mul_u32_u24 v76, s51, v1')
    a('s_and_b32 s72, s70, 0xffff')
    for k in range(2):
        a(f'v_and_b32 v{28+k}, 0xffff, v{24+k}')
        a(f'v_lshrrev_b32 v{30+k}, 16, v{24+k}')
        a(f'v_add_u32 v{30+k}, s72, v{30+k}')
        a(f'v_sub_u32 v{81+2*k}, v{30+k}, v{22+k}')
        a(f'v_lshlrev_b32 v{81+2*k}, 20, v{81+2*k}')
        a(f'v_lshl_or_b32 v{80+2*k}, v{28+k}, 4, v{81+2*k}')
        a(f'v_lshlrev_b32 v{81+2*k}, 4, v{22+k}')
    a(f'ds_write_b128 v11, v[80:83] offset:{L_BASE}')
    a(f'v_add_u32 v77, {RS}, v76')
    a('s_sub_u32 s51, s3, 8')
    a.lab('B_pn')
    for k in range(2):
        a(f'v_cmp_lt_u32 s[{74+2*k}:{75+2*k}], s51, v{22+k}')
        a(f'v_add_u32 v{78+k}, s51, v{28+k}')
        a(f'v_lshlrev_b32 v{78+k}, 1, v{78+k}')
    a('s_or_b64 s[68:69], s[74:75], s[76:77]')
    a('s_cbranch_scc0 B_pn_done')
    for k in range(2):
        a(f's_mov_b64 exec, s[{74+2*k}:{75+2*k}]')
        a(f'ds_write_b16 v{78+k}, v{76+k} offset:{L_PN}')
    a('s_mov_b64 exec, -1')
    a('s_add_u32 s51, s51, 4')
    a('s_branch B_pn')
    a.lab('B_pn_done')
    a('s_cmp_lg_u32 s3, 11')
    a('s_cbranch_scc1 B_mid')
    for k in range(2):
        a(f'v_lshrrev_b32 v{78+k}, 16, v{20+k}')
        a(f'v_cmp_ne_u32 s[{74+2*k}:{75+2*k}], 0, v{78+k}')
        a(f'v_lshlrev_b32 v{78+k}, 1, v{30+k}')
    for k in range(2):
        a(f's_mov_b64 exec, s[{74+2*k}:{75+2*k}]')
        a(f'ds_write_b16 v{78+k}, v{76+k} offset:{L_PN}')
    a('s_mov_b64 exec, 1')
    a(f'v_mov_b32 v24, {L_TOT}')
    a('v_mov_b32 v25, s70')
    a('ds_write_b32 v24, v25')
    a('s_mov_b64 exec, -1')
    a.lab('B_mid')
    a('s_cmp_lg_u32 s50, 0')
    a('s_cbranch_scc1 B_mid2')
    a('s_waitcnt vmcnt(0)')
    a('v_cmp_ne_u32 vcc, 0, v44')
    a(f'v_mov_b32 v24, {L_FLAG}')
    a('v_mov_b32 v16, 1')
    a('s_cbranch_vccz B_mid2')
    a('ds_write_b32 v24, v16')
    a.lab('B_mid2')
    a('s_waitcnt lgkmcnt(0)')
    a('s_barrier')
    stamp(a, 6)
    a(f'v_mov_b32 v24, {L_MAX}')
    a('ds_read_b128 v[16:19], v24')
    for s in range(8):
        r = 96+(s//2)*4+2*(s % 2)
        a(f's_mov_b64 exec, s[{52+2*s}:{53+2*s}]')
        a(f'ds_read_b64 {pr(76+2*s)}, v{r+1} offset:{L_BASE}')
    a('s_mov_b64 exec, -1')
    a('v_lshrrev_b32 v13, 3, v1')
    a(f'v_mov_b32 v14, {L_WORK}')
    a('v_mov_b32 v15, 1')
    a('s_waitcnt lgkmcnt(0)')
    a('v_readfirstlane_b32 s70, v19')
    a('v_readfirstlane_b32 s71, v16')
    a('v_readfirstlane_b32 s91, v17')
    for s in range(8):
        a(f'v_cmp_lt_u32 vcc, v{36+s}, v{77+2*s}')
        if s > 0:
            a(f'v_add_u32 v{36+s-1}, v{36+s-1}, v{76+2*(s-1)}')
            r = 96+((s-1)//2)*4+2*((s-1) % 2)
            a(f's_mov_b64 exec, s[{52+2*(s-1)}:{53+2*(s-1)}]')
            a(f'ds_write_b32 v{36+s-1}, v{r} offset:{L_REC}')
            a('s_mov_b64 exec, -1')
        else:
            a('s_nop 1')
        a(f'v_cndmask_b32_sdwa v{76+2*s}, v{76+2*s}, v{76+2*s}, vcc dst_sel:DWORD dst_unused:UNUSED_PAD src0_sel:WORD_1 src1_sel:WORD_0')
    a('s_and_b32 s72, s70, 0xffff')
    a(f'v_add_u32 v43, v43, v90')
    a('s_mov_b64 exec, s[66:67]')
    a(f'ds_write_b32 v43, v110 offset:{L_REC}')
    a('s_mov_b64 exec, -1')
    a('s_lshr_b32 s73, s70, 16')
    a('s_add_u32 s73, s73, s72')
    a('s_or_b32 s90, s90, s91')
    a('s_lshr_b32 s74, s72, 3')
    a('s_lshl_b32 s68, s74, 3')
    a('s_sub_u32 s75, s73, s68')
    a('s_add_u32 s75, s75, 7')
    a('s_lshr_b32 s75, s75, 3')
    a('s_add_u32 s75, s75, s74')
    a('s_mov_b32 s82, s74')
    a('s_cmp_lg_u32 s90, 0')
    a('s_cselect_b32 s82, 0, s82')
    if FORCE_PLAIN: a('s_mov_b32 s82, 0')
    a('v_mul_u32_u24 v10, s74, v13')
    a('v_lshlrev_b32 v12, 4, v10')
    a('v_lshlrev_b32 v10, 1, v10')
    a('v_lshlrev_b32 v111, 4, v13')
    a('v_lshlrev_b32 v13, 1, v13')
    a('s_waitcnt lgkmcnt(0)')
    a('s_barrier')
    stamp(a, 3)
    stampc(a, 8)
    a('s_mov_b32 s83, 0')
    if PRIO: a('s_setprio 3')
    RAW = 32; Q = 48; EE = 56; RC = 60; ND = 64; IDX = 65; AGC = 66; AGN = 67; Z = 76; T = 16; TMP = 108
    cnt = [0]
    def read_recs(sidx):
        n = cnt[0]; cnt[0] += 1
        a(f's_cmp_ge_u32 s{sidx}, s74')
        a(f's_cbranch_scc1 B_rrP{n}')
        a(f's_lshl_b32 s51, s{sidx}, 4')
        a(f'v_add_u32 v{TMP}, s51, v12')
        a(f's_lshl_b32 s51, s{sidx}, 1')
        a(f'v_add_u32 v{TMP+1}, s51, v10')
        a(f's_branch B_rrX{n}')
        a.lab(f'B_rrP{n}')
        a(f's_min_u32 s79, s{sidx}, {NPCAP//8-1}')
        a(f's_lshl_b32 s51, s79, 7')
        a(f'v_add_u32 v{TMP}, s51, v111')
        a(f's_lshl_b32 s51, s79, 4')
        a(f'v_add_u32 v{TMP+1}, s51, v13')
        a.lab(f'B_rrX{n}')
        a(f'ds_read_b128 {q4(RC)}, v{TMP} offset:{L_REC}')
        a(f'ds_read_u16 v{ND}, v{TMP+1} offset:{L_PN}')
    def fetch():
        for k in range(4):
            a(f'v_mad_u32_u16 v{TMP+(k&1)}, v{RC+k}, s42, v2')
            a(f'buffer_load_dwordx4 {q4(RAW+4*k)}, v{TMP+(k&1)}, s[12:15], 0 offen')
        a(f'v_add_u32 v{TMP+2}, v{ND}, v2')
        a(f'ds_read_b128 {q4(Q)}, v{TMP+2} offset:{L_Q}')
        a(f'ds_read_b128 {q4(Q+4)}, v{TMP+2} offset:{L_Q+128}')
        a(f'v_lshl_add_u32 v{AGN}, v{ND}, 1, v3')
        for k in range(4):
            a(f'v_and_b32 v{EE+k}, s43, v{RC+k}')
    def grab():
        a('s_mov_b64 exec, 1')
        a(f'ds_add_rtn_u32 v{IDX}, v14, v15')
        a('s_mov_b64 exec, -1')
    def zphase():
        for k in range(4):
            R = RAW+4*k; Zk = Z+8*k
            ep = EE+(k & ~1)
            sel = 'op_sel:[0,0,0] op_sel_hi:[0,1,1]' if k % 2 == 0 else 'op_sel:[1,0,0] op_sel_hi:[1,1,1]'
            for p in range(4):
                a(f'v_pk_fma_f32 {pr(Zk+2*p)}, {pr(ep)}, {pr(68+2*p)}, {pr(Q+2*p)} {sel}')
            a(f's_waitcnt vmcnt({3-k})')
            for i in range(4):
                a(f'v_dot2_f32_bf16 v{Zk+4+i}, v{R+i}, s46, v{Zk+4+i}')
            a(f'v_pk_add_f32 {pr(Zk)}, {pr(R)}, {pr(Zk)}')
            a(f'v_pk_add_f32 {pr(Zk+2)}, {pr(R+2)}, {pr(Zk+2)}')
    def shared():
        for pp in range(2):
            ps = [2*pp, 2*pp+1]
            tt = {ps[0]: T, ps[1]: T+6}
            for half in range(2):
                def regs(p):
                    za = Z+16*half+2*p
                    return za, za+8, tt[p]+(0 if half == 0 else 4), tt[p]+2
                for p in ps:
                    za, zb, ta, tb = regs(p)
                    a(f'v_exp_f32 v{ta}, v{za}'); a(f'v_exp_f32 v{ta+1}, v{za+1}')
                    a(f'v_exp_f32 v{tb}, v{zb}'); a(f'v_exp_f32 v{tb+1}, v{zb+1}')
                for p in ps:
                    za, zb, ta, tb = regs(p)
                    a(f'v_pk_fma_f32 {pr(zb)}, {pr(zb)}, {pr(ta)}, {pr(zb)}')
                for p in ps:
                    za, zb, ta, tb = regs(p)
                    a(f'v_pk_add_f32 {pr(tb)}, {pr(tb)}, s[44:45]')
                for p in ps:
                    za, zb, ta, tb = regs(p)
                    a(f'v_pk_fma_f32 {pr(zb)}, {pr(za)}, {pr(tb)}, {pr(zb)}')
                for p in ps:
                    za, zb, ta, tb = regs(p)
                    a(f'v_pk_fma_f32 {pr(ta)}, {pr(ta)}, {pr(tb)}, {pr(tb)}')
            for p in ps:
                a(f'v_pk_mul_f32 {pr(Z+2*p)}, {pr(Z+8+2*p)}, {pr(tt[p]+4)}')
            for p in ps:
                a(f'v_pk_mul_f32 {pr(tt[p]+2)}, {pr(tt[p])}, {pr(tt[p]+4)}')
            for p in ps:
                a(f'v_pk_fma_f32 {pr(Z+2*p)}, {pr(Z+24+2*p)}, {pr(tt[p])}, {pr(Z+2*p)}')
            for p in ps:
                a(f'v_rcp_f32 v{tt[p]+2}, v{tt[p]+2}'); a(f'v_rcp_f32 v{tt[p]+3}, v{tt[p]+3}')
            a('s_nop 0')
            for p in ps:
                a(f'v_pk_mul_f32 {pr(Z+2*p)}, {pr(Z+2*p)}, {pr(tt[p]+2)}')
            for p in ps:
                a(f'v_cvt_f64_f32 {pr(Z+8+2*p)}, v{Z+2*p}'); a(f'v_cvt_f64_f32 {pr(Z+16+2*p)}, v{Z+2*p+1}')
            for p in ps:
                a(f'ds_add_f64 v{AGC}, {pr(Z+8+2*p)} offset:{64*(2*p)}')
                a(f'ds_add_f64 v{AGC}, {pr(Z+16+2*p)} offset:{64*(2*p+1)}')
    def plain():
        AC = T+8
        for k in range(4):
            Zk = Z+8*k
            for i in range(8): a(f'v_exp_f32 v{T+i}, v{Zk+i}')
            for p in range(4): a(f'v_pk_add_f32 {pr(T+2*p)}, {pr(T+2*p)}, s[44:45]')
            for i in range(8): a(f'v_rcp_f32 v{T+i}, v{T+i}')
            for p in range(4):
                if k == 0:
                    a(f'v_pk_mul_f32 {pr(AC+2*p)}, {pr(Zk+2*p)}, {pr(T+2*p)}')
                else:
                    a(f'v_pk_fma_f32 {pr(AC+2*p)}, {pr(Zk+2*p)}, {pr(T+2*p)}, {pr(AC+2*p)}')
        for i in range(8): a(f'v_cvt_f64_f32 {pr(Z+2*i)}, v{AC+i}')
        for i in range(8): a(f'ds_add_f64 v{AGC}, {pr(Z+2*i)} offset:{64*i}')
    a('s_mov_b32 s76, s3')
    a('s_add_u32 s77, s3, 16')
    a('s_cmp_ge_u32 s76, s75')
    a('s_cbranch_scc1 B_loop_end')
    read_recs(76)
    grab()
    a('s_waitcnt lgkmcnt(0)')
    fetch()
    read_recs(77)
    a('s_waitcnt lgkmcnt(0)')
    a.lab('B_loop')
    a('s_waitcnt lgkmcnt(8)')
    a(f'v_mov_b32 v{AGC}, v{AGN}')
    a(f'v_readfirstlane_b32 s78, v{IDX}')
    zphase()
    if DEBUG:
        a('s_cmp_gt_u32 s83, 3')
        a('s_cbranch_scc1 B_nost')
        a('s_memrealtime s[92:93]')
        a('s_add_u32 m0, s83, 11')
        a('s_waitcnt lgkmcnt(0)')
        a('v_writelane_b32 v5, s92, m0')
        a.lab('B_nost')
    a('s_add_u32 s78, s78, 32')
    a('s_cmp_ge_u32 s77, s75')
    a('s_cbranch_scc1 B_nofetch')
    fetch()
    read_recs(78)
    grab()
    a.lab('B_nofetch')
    a('s_cmp_ge_u32 s76, s82')
    a('s_cbranch_scc1 B_plain')
    shared()
    a.lab('B_next')
    a('s_add_u32 s83, s83, 1')
    if PRIO:
        for c, p in ((2, 2), (4, 1), (5, 0)):
            a(f's_cmp_lg_u32 s83, {c}')
            a(f's_cbranch_scc1 B_pr{c}')
            a(f's_setprio {p}')
            a.lab(f'B_pr{c}')
    a('s_mov_b32 s76, s77')
    a('s_mov_b32 s77, s78')
    a('s_cmp_lt_u32 s76, s75')
    a('s_cbranch_scc1 B_loop')
    a('s_branch B_loop_end')
    a.lab('B_plain')
    plain()
    a('s_branch B_next')
    a.lab('B_loop_end')
    stamp(a, 4)
    a('s_cmp_lt_u32 s3, 8')
    a('s_cbranch_scc1 B_join')
    a('s_lshl_b32 s39, s34, 12')
    a(f's_add_u32 s39, s39, {L_WU}')
    a('v_add_u32 v17, s39, v11')
    a('v_and_b32 v18, 7, v1')
    a('v_xor_b32 v18, v18, v9')
    a('v_lshlrev_b32 v16, 7, v8')
    a(f'v_add_u32 v16, {L_X}, v16')
    for ks in range(4):
        a(f'v_xor_b32 v19, {2*ks}, v18')
        a(f'v_lshl_add_u32 v{20+ks}, v19, 4, v16')
        a(f'ds_read_b128 {q4(32+4*ks)}, v{20+ks}')
        a(f'ds_read_b128 {q4(48+4*ks)}, v17 offset:{1024*ks}')
    a('s_waitcnt lgkmcnt(0)')
    for ks in range(4):
        c = '0' if ks == 0 else 'v[112:127]'
        a(f'v_mfma_f32_32x32x16_bf16 v[112:127], {q4(48+4*ks)}, {q4(32+4*ks)}, {c}')
    for ks in range(4):
        a(f'ds_read_b128 {q4(48+4*ks)}, v17 offset:{8192+1024*ks}')
    a.lab('B_join')
    a('s_waitcnt lgkmcnt(0)')
    a('s_barrier')
    stamp(a, 5)
    stampc(a, 9)
    if DEBUG: a('v_writelane_b32 v5, s83, 10')
    a('s_add_u32 s50, s50, 32')
    a('s_cmp_lg_u32 s71, 0')
    a('s_cbranch_scc1 B_batch')
    a('s_cmp_lt_u32 s3, 8')
    a('s_cbranch_scc1 B_done2')
    a(f's_movk_i32 s51, {2*RS}')
    a('v_mul_u32_u24 v16, s51, v8')
    a('v_lshl_add_u32 v16, v9, 5, v16')
    a(f'v_add_u32 v16, {L_AGG}, v16')
    for half in range(2):
        for ii in range(4):
            i = half*4+ii
            a(f'ds_read_b128 {q4(64+8*ii)}, v16 offset:{64*i}')
            a(f'ds_read_b128 {q4(68+8*ii)}, v16 offset:{64*i+16}')
        for ii in range(4):
            i = half*4+ii
            a(f's_waitcnt lgkmcnt({6-2*ii})')
            for q in range(4):
                a(f'v_cvt_f32_f64 v{96+q}, {pr(64+8*ii+2*q)}')
            a(f'v_pk_mul_f32 v[96:97], v[96:97], s[48:49]')
            a(f'v_pk_mul_f32 v[98:99], v[98:99], s[48:49]')
            a(f'v_cvt_pk_bf16_f32 v{32+2*i}, v96, v97')
            a(f'v_cvt_pk_bf16_f32 v{33+2*i}, v98, v99')
    a('s_nop 1')
    for ks in range(4):
        a(f'v_mfma_f32_32x32x16_bf16 v[112:127], {q4(48+4*ks)}, {q4(32+4*ks)}, v[112:127]')
    a('v_add_u32 v17, s37, v8')
    a('v_lshlrev_b32 v17, 7, v17')
    a('v_lshl_add_u32 v17, v9, 5, v17')
    a('s_lshl_b32 s51, s34, 6')
    a(f'v_cmp_gt_u32 vcc, {NB}, v8')
    a('s_nop 12')
    for r in range(16): a(f'v_mul_f32 v{64+r}, s47, v{112+r}')
    for r in range(16): a(f'v_exp_f32 v{64+r}, v{64+r}')
    for r in range(16): a(f'v_add_f32 v{64+r}, 1.0, v{64+r}')
    for r in range(16): a(f'v_rcp_f32 v{64+r}, v{64+r}')
    for r in range(16): a(f'v_mul_f32 v{64+r}, v{64+r}, v{112+r}')
    for r in range(0, 16, 2): a(f'v_cvt_pk_bf16_f32 v{32+r//2}, v{64+r}, v{65+r}')
    a('s_and_b64 exec, exec, vcc')
    a('buffer_store_dwordx4 v[32:35], v17, s[24:27], s51 offen')
    a('buffer_store_dwordx4 v[36:39], v17, s[24:27], s51 offen offset:16')
    a.lab('B_done2')
    stamp_out(a, 1, 88)
    a.lab('B_done')
    a('s_endpgm')
    a.lab('code_end')

def kd(a, name, vgpr, sgpr):
    a.raw('.p2align 6')
    a.raw(f'.amdhsa_kernel {name}')
    a.raw(f'  .amdhsa_next_free_vgpr {vgpr}')
    a.raw(f'  .amdhsa_next_free_sgpr {sgpr}')
    a.raw(f'  .amdhsa_accum_offset {(vgpr+3)//4*4}')
    a.raw('  .amdhsa_group_segment_fixed_size 0')
    a.raw('  .amdhsa_kernarg_size 72')
    a.raw('  .amdhsa_user_sgpr_count 2')
    a.raw('  .amdhsa_user_sgpr_kernarg_segment_ptr 1')
    a.raw('  .amdhsa_system_sgpr_workgroup_id_x 1')
    a.raw('.end_amdhsa_kernel')

def main():
    ref = open('gather_scatter__mpnn_edge_mlp__graph.s.ref').read().splitlines()
    hdr = [l for l in ref if l.startswith(';') and '@launch' not in l and 'Override' not in l and 'grid=ceil' not in l]
    a = A()
    for l in hdr: a.raw(l)
    a.raw(f'; @launch kernel=mpnn_bin_kernel grid=({A_GRID},1,1) block=({A_BLOCK},1,1) lds={A_LDS}')
    a.raw(f'; @launch kernel=mpnn_main_kernel grid=({NBK},1,1) block=(1024,1,1) lds={B_LDS}')
    a.raw('.amdgcn_target "amdgcn-amd-amdhsa--gfx950"')
    a.raw('.text')
    kernel_a(a)
    kernel_b(a)
    a.raw('.section .rodata,"a"')
    kd(a, 'mpnn_bin_kernel', 128, 100)
    kd(a, 'mpnn_main_kernel', 128, 100)
    out = sys.argv[1] if len(sys.argv) > 1 else 'gather_scatter__mpnn_edge_mlp__graph.s'
    open(out, 'w').write('\n'.join(a.l) + '\n')

main()
```

```python
import sys, struct, os
DEBUG = int(os.environ.get('DEBUG', '0'))
PRIO = int(os.environ.get('PRIO', '1'))
XMAP = int(os.environ.get('XMAP', '1'))
PREF = int(os.environ.get('PREF', '0'))
CPF = int(os.environ.get('CPF', '0'))
TLBW = int(os.environ.get('TLBW', '0'))
ST_O = os.environ.get('ST_O', '')
FORCE_PLAIN = int(os.environ.get('FORCE_PLAIN', '0'))

N = 25000; E = 800000
NB = 98
NBK = 256
CH = 3200
NCH = 250
WS_REC = 0
WS_TAB = 0x700000
WS_PF  = 0x780000
WS_PT  = 0x800000
WS_WF  = 0x7C0000
REC_BYTES = NCH*CH*8
TAB_BYTES = NCH*NBK*4
PF_BYTES  = 1000*4
PT_BYTES  = (N+1)*128
WF_BYTES  = 3*8192 + 512
WF_W3 = 3*8192
LOG2E = 1.4426950408889634
LN2 = 0.6931471805599453
LIM_P = 6.0; LIM_Q = 6.0; LIM_E_BF16 = 0x4090; LIM_W = 4.0
def f32(x): return struct.unpack('<I', struct.pack('<f', x))[0]

class A:
    def __init__(s): s.l = []
    def __call__(s, t): s.l.append('    ' + t)
    def lab(s, t): s.l.append(t + ':')
    def raw(s, t): s.l.append(t)

def srd(a, d, base, off, nbytes):
    if off:
        a(f's_add_u32 s{d}, s{base}, {hex(off)}')
        a(f's_addc_u32 s{d+1}, s{base+1}, 0')
    else:
        a(f's_mov_b32 s{d}, s{base}')
        a(f's_mov_b32 s{d+1}, s{base+1}')
    a(f's_mov_b32 s{d+2}, {hex(nbytes)}')
    a(f's_mov_b32 s{d+3}, 0x00020000')

PROF_OFF = 0x4000000
def stamp(a, i, vr=5, sr=92):
    if not DEBUG: return
    a(f's_memrealtime s[{sr}:{sr+1}]')
    a('s_waitcnt lgkmcnt(0)')
    a(f'v_writelane_b32 v{vr}, s{sr}, {i}')
def stampc(a, i, vr=5, sr=92):
    if not DEBUG: return
    a(f's_memtime s[{sr}:{sr+1}]')
    a('s_waitcnt lgkmcnt(0)')
    a(f'v_writelane_b32 v{vr}, s{sr}, {i}')
def stamp_out(a, kern, wsreg, vr=5, sr=92, tmp=6):
    if not DEBUG: return
    a('s_waitcnt vmcnt(0)')
    stamp(a, 15, vr, sr)
    a('s_mov_b64 exec, -1')
    srd(a, 96, wsreg, PROF_OFF + kern*0x400000, 0x400000)
    a(f's_lshl_b32 s{sr}, s2, 4')
    a(f's_add_u32 s{sr}, s{sr}, s3')
    a(f's_lshl_b32 s{sr}, s{sr}, 8')
    a(f'v_lshlrev_b32 v{tmp}, 2, v1')
    a(f'buffer_store_dword v{vr}, v{tmp}, s[96:99], s{sr} offen')

def wave_scan(a, v):
    for sh in (1, 2, 4, 8):
        a('s_nop 1')
        a(f'v_add_u32_dpp v{v}, v{v}, v{v} row_shr:{sh} row_mask:0xf bank_mask:0xf bound_ctrl:0')
    a('s_nop 1')
    a(f'v_add_u32_dpp v{v}, v{v}, v{v} row_bcast:15 row_mask:0xa bank_mask:0xf')
    a('s_nop 1')
    a(f'v_add_u32_dpp v{v}, v{v}, v{v} row_bcast:31 row_mask:0xc bank_mask:0xf')

def pr(r): return f'v[{r}:{r+1}]'
def q4(r): return f'v[{r}:{r+3}]'

A_GEMM0 = NCH
A_PREP0 = NCH + 250
A_GRID = A_PREP0 + 4
A_BLOCK = 448
A_XT = 0
A_W1 = 4*4096
A_LDS = 2112 + CH*8
A_STAGE = 2048 + 64
A_EFLAG = 2048
ST_A = os.environ.get('ST_A', 'sc0 sc1')

def kernel_a(a):
    a.raw('.globl mpnn_bin_kernel')
    a.raw('.p2align 8')
    a.raw('.type mpnn_bin_kernel,@function')
    a.lab('mpnn_bin_kernel')
    if DEBUG:
        a('s_memrealtime s[94:95]')
        a('s_getreg_b32 s62, hwreg(HW_REG_HW_ID)')
        a('s_getreg_b32 s63, hwreg(HW_REG_XCC_ID)')
    a('s_load_dwordx16 s[4:19], s[0:1], 0')
    a('s_load_dwordx2 s[20:21], s[0:1], 64')
    if CPF:
        a('s_getpc_b64 s[60:61]')
        a.lab('A_pc')
        a('v_lshlrev_b32 v100, 4, v0')
        a('v_add_u32 v101, 7168, v100')
        a('v_min_u32 v101, code_end-A_pc-16, v101')
        a('v_min_u32 v100, code_end-A_pc-16, v100')
        a('global_load_dwordx4 v[104:107], v100, s[60:61]')
        a('global_load_dwordx4 v[108:111], v101, s[60:61]')
    a(f's_cmp_ge_u32 s2, {A_GRID}')
    a('s_cbranch_scc1 A_done')
    a('v_lshrrev_b32 v1, 6, v0')
    a('v_lshlrev_b32 v3, 4, v0')
    a('v_readfirstlane_b32 s3, v1')
    a('v_and_b32 v1, 63, v0')
    a(f's_cmp_ge_u32 s2, {A_PREP0}')
    a('s_cbranch_scc1 A_prep')
    a(f's_cmp_ge_u32 s2, {A_GEMM0}')
    a('s_cbranch_scc1 A_gemm')
    a('v_cmp_gt_u32 vcc, 400, v0')
    a('s_and_b64 exec, exec, vcc')
    a('v_lshlrev_b32 v2, 3, v0')
    a(f's_mul_i32 s44, s2, {CH*4}')
    a(f's_mul_i32 s45, s2, {CH*2}')
    a(f's_add_u32 s50, s44, {CH*2}')
    a(f's_add_u32 s51, s45, {CH}')
    a('s_waitcnt lgkmcnt(0)')
    srd(a, 24, 10, 0, E*4)
    a('buffer_load_dwordx4 v[8:11], v3, s[24:27], s44 offen')
    a('buffer_load_dwordx4 v[12:15], v3, s[24:27], s50 offen')
    srd(a, 28, 8, 0, E*4)
    a('buffer_load_dwordx4 v[16:19], v3, s[28:31], s44 offen')
    a('buffer_load_dwordx4 v[20:23], v3, s[28:31], s50 offen')
    srd(a, 32, 6, 0, E*2)
    a('buffer_load_dwordx2 v[24:25], v2, s[32:35], s45 offen')
    a('buffer_load_dwordx2 v[26:27], v2, s[32:35], s51 offen')
    stamp(a, 0, 70)
    if DEBUG:
        a('v_writelane_b32 v70, s94, 8')
        a('v_writelane_b32 v70, s62, 9')
        a('v_writelane_b32 v70, s63, 10')
    a('v_lshlrev_b32 v5, 2, v0')
    a('v_mov_b32 v4, 0')
    a('v_mov_b32 v6, 2048')
    a('v_cmp_gt_u32 vcc, 256, v0')
    a('s_nop 1')
    a('v_cndmask_b32 v5, v6, v5, vcc')
    a('ds_write_b32 v5, v4')
    if TLBW:
        srd(a, 36, 20, 0, 0xC00000)
        a('v_lshlrev_b32 v7, 20, v1')
        a('buffer_load_dword v71, v7, s[36:39], 0 offen')
    srd(a, 36, 20, WS_REC, REC_BYTES)
    srd(a, 40, 20, WS_TAB, TAB_BYTES)
    a('s_mov_b32 s46, 42800')
    a('s_mov_b32 s47, -196')
    a('s_mov_b32 s48, 0xffff0000')
    a('s_mov_b32 s52, 0x7fff7fff')
    a('v_mov_b32 v4, 1')
    a('s_waitcnt lgkmcnt(0)')
    a('s_barrier')
    for hf in range(2):
        a(f's_waitcnt vmcnt({5-hf+TLBW})')
        if hf == 0: stamp(a, 1, 70)
        for j in range(4*hf, 4*hf+4):
            a(f'v_mul_u32_u24 v{28+j}, s46, v{8+j}')
            a(f'v_lshrrev_b32 v{28+j}, 22, v{28+j}')
            a(f'v_lshlrev_b32 v{28+j}, 2, v{28+j}')
            a(f'ds_add_rtn_u32 v{56+j}, v{28+j}, v4')
    for j in range(8):
        a(f'v_lshlrev_b32 v{8+j}, 3, v{8+j}')
        a(f'v_mad_i32_i24 v{41+2*j}, v{28+j}, s47, v{8+j}')
    a('s_mov_b64 s[22:23], exec')
    a('s_waitcnt lgkmcnt(0)')
    a('s_barrier')
    stamp(a, 2, 70)
    a('s_mov_b64 exec, -1')
    a('v_lshlrev_b32 v5, 4, v1')
    a('ds_read_b128 v[8:11], v5')
    a('s_waitcnt lgkmcnt(0)')
    a('v_add_u32 v13, v8, v9')
    a('v_add_u32 v14, v13, v10')
    a('v_add_u32 v15, v14, v11')
    a('v_mov_b32 v72, v15')
    wave_scan(a, 72)
    a('v_sub_u32 v12, v72, v15')
    a('v_add_u32 v15, v12, v14')
    a('v_add_u32 v14, v12, v13')
    a('v_add_u32 v13, v12, v8')
    for k in range(4):
        a(f'v_lshlrev_b32 v{72+k}, 3, v{12+k}')
    a('ds_write_b128 v5, v[72:75] offset:1024')
    for k in range(4):
        a(f'v_lshl_or_b32 v{64+k}, v{8+k}, 16, v{12+k}')
    a('s_mov_b64 exec, s[22:23]')
    a('s_waitcnt lgkmcnt(0)')
    for j in range(8):
        a(f'ds_read_b32 v{8+j}, v{28+j} offset:1024')
    a('s_waitcnt vmcnt(0)')
    for j in range(8):
        if j % 2 == 0:
            a(f'v_lshlrev_b32 v{40+2*j}, 16, v{24+j//2}')
        else:
            a(f'v_and_b32 v{40+2*j}, s48, v{24+j//2}')
        a(f'v_lshl_or_b32 v{41+2*j}, v{41+2*j}, 16, v{16+j}')
    for j in range(4):
        a(f'v_and_b32 v{24+j}, s52, v{24+j}')
    a('v_pk_max_u16 v24, v24, v25')
    a('v_pk_max_u16 v26, v26, v27')
    a('v_pk_max_u16 v24, v24, v26')
    a('v_lshrrev_b32 v25, 16, v24')
    a('v_and_b32 v24, 0xffff, v24')
    a('v_max_u32 v24, v24, v25')
    a(f'v_cmp_lt_u32 vcc, {hex(LIM_E_BF16)}, v24')
    a('s_and_saveexec_b64 s[54:55], vcc')
    a('s_cbranch_execz A_eok')
    a('v_mov_b32 v25, 0x80000000')
    a('ds_write_b32 v6, v25')
    a.lab('A_eok')
    a('s_mov_b64 exec, s[54:55]')
    a('s_waitcnt lgkmcnt(0)')
    for j in range(8):
        a(f'v_lshl_add_u32 v{8+j}, v{56+j}, 3, v{8+j}')
    stamp(a, 3, 70)
    for j in range(8):
        a(f'ds_write_b64 v{8+j}, {pr(40+2*j)} offset:{A_STAGE}')
    a('s_waitcnt lgkmcnt(0)')
    a('s_barrier')
    stamp(a, 4, 70)
    a('s_cmp_lg_u32 s3, 6')
    a('s_cbranch_scc1 A_notab')
    a('s_mov_b64 exec, -1')
    a('v_mov_b32 v6, 2048')
    a('ds_read_b32 v7, v6')
    a('s_lshl_b32 s49, s2, 10')
    a('s_waitcnt lgkmcnt(0)')
    for k in range(4):
        a(f'v_or_b32 v{64+k}, v{64+k}, v7')
    a(f'buffer_store_dwordx4 v[64:67], v5, s[40:43], s49 offen {ST_A}')
    a('s_mov_b64 exec, s[22:23]')
    a.lab('A_notab')
    for j in range(4):
        a(f'ds_read_b128 {q4(8+4*j)}, v3 offset:{A_STAGE+6400*j}')
    a(f's_mul_i32 s49, s2, {CH*8}')
    for j in range(4):
        a(f's_waitcnt lgkmcnt({3-j})')
        a(f'buffer_store_dwordx4 {q4(8+4*j)}, v3, s[36:39], s49 offen {ST_A}')
        if j < 3:
            a(f's_add_u32 s49, s49, 6400')
    stamp(a, 5, 70)
    stamp_out(a, 0, 20, 70)
    a('s_endpgm')

    a.lab('A_gemm')
    a(f's_sub_u32 s22, s2, {A_GEMM0}')
    a('s_mul_i32 s48, s22, 12800')
    a('s_add_u32 s49, s48, 12800')
    a('s_lshl_b32 s22, s22, 2')
    a('s_add_u32 s22, s22, s3')
    a('v_and_b32 v2, 31, v1')
    a('v_lshrrev_b32 v3, 5, v1')
    a('v_lshlrev_b32 v4, 2, v2')
    a('v_lshl_add_u32 v7, v3, 9, v4')
    a('v_lshl_add_u32 v4, v3, 10, v4')
    a(f'v_add_u32 v4, {A_W1}, v4')
    a('v_lshlrev_b32 v5, 4, v0')
    a('s_lshl_b32 s23, s3, 12')
    a('s_add_u32 s23, s23, s48')
    a('v_lshlrev_b32 v6, 4, v1')
    a('s_lshl_b32 s42, s3, 12')
    a('v_add_u32 v7, s42, v7')
    a('v_lshrrev_b32 v8, 3, v1')
    a('v_and_b32 v9, 7, v1')
    a('v_xor_b32 v10, v9, v8')
    a('v_lshlrev_b32 v10, 4, v10')
    a('v_lshl_add_u32 v10, v8, 7, v10')
    a('v_add_u32 v10, s42, v10')
    a('v_xor_b32 v9, v9, v3')
    a('v_lshlrev_b32 v8, 7, v2')
    a('v_add_u32 v8, s42, v8')
    for ks in range(4):
        a(f'v_xor_b32 v{11+ks}, {2*ks}, v9')
        a(f'v_lshl_add_u32 v{11+ks}, v{11+ks}, 4, v8')
    a('s_waitcnt lgkmcnt(0)')
    srd(a, 24, 4, 0, N*128)
    a('s_mov_b32 s26, s49')
    srd(a, 28, 12, 0, 64*128)
    a('s_movk_i32 s43, 7168')
    a('buffer_load_dwordx4 v[16:19], v5, s[28:31], 0 offen')
    a('buffer_load_dwordx4 v[20:23], v5, s[28:31], s43 offen')
    for j in range(4):
        a(f'buffer_load_dwordx4 {q4(48+4*j)}, v6, s[24:27], s23 offen offset:{1024*j}')
    stamp(a, 0, 15)
    if DEBUG:
        a('v_writelane_b32 v15, s94, 8')
        a('v_writelane_b32 v15, s62, 9')
        a('v_writelane_b32 v15, s63, 10')
    srd(a, 32, 20, WS_PT, N*128)
    a('s_mov_b32 s34, s49')
    srd(a, 44, 20, WS_PF, PF_BYTES)
    a('s_mov_b32 s36, 0x05040100')
    a('s_mov_b32 s37, 0x07060302')
    a(f's_mov_b32 s38, {hex(f32(-LOG2E))}')
    a('s_mov_b32 s39, 0x7fffffff')
    a('s_mov_b32 s40, 0x7fff0000')
    a(f's_mov_b32 s41, {hex(f32(LIM_P))}')
    a('s_waitcnt vmcnt(4)')
    a(f'ds_write_b128 v5, v[16:19] offset:{A_W1}')
    a('s_cmp_lg_u32 s3, 0')
    a('s_cbranch_scc1 A_w1done')
    a(f'ds_write_b128 v5, v[20:23] offset:{A_W1+7168}')
    a.lab('A_w1done')
    a('s_waitcnt lgkmcnt(0)')
    a('s_barrier')
    a('s_cmp_ge_u32 s3, 4')
    a('s_cbranch_scc1 A_done')
    for ks in range(4):
        if ks: a('v_add_u32 v4, 2048, v4')
        for jj in range(4):
            a(f'ds_read2_b32 {pr(16+8*ks+2*jj)}, v4 offset0:{64*jj} offset1:{64*jj+32}')
    a('s_waitcnt vmcnt(0)')
    for j in range(4):
        a(f'ds_write_b128 v10, {q4(48+4*j)} offset:{1024*j}')
    a('s_waitcnt lgkmcnt(0)')
    for ks in range(4):
        a(f'ds_read_b128 {q4(48+4*ks)}, v{11+ks}')
    stamp(a, 1, 15)
    for ks in range(4):
        for jj in range(4):
            r0 = 16+8*ks+2*jj
            a(f'v_perm_b32 v{64+4*ks+jj}, v{r0+1}, v{r0}, s36')
            a(f'v_perm_b32 v{80+4*ks+jj}, v{r0+1}, v{r0}, s37')
    a('s_waitcnt lgkmcnt(0)')
    for ks in range(4):
        c0 = '0' if ks == 0 else 'v[96:111]'
        c1 = '0' if ks == 0 else 'v[112:127]'
        a(f'v_mfma_f32_32x32x16_bf16 v[96:111], {q4(48+4*ks)}, {q4(64+4*ks)}, {c0}')
        a(f'v_mfma_f32_32x32x16_bf16 v[112:127], {q4(48+4*ks)}, {q4(80+4*ks)}, {c1}')
    a('s_nop 15')
    stamp(a, 2, 15)
    for r in range(16):
        a(f'v_mul_f32 v{96+r}, s38, v{96+r}')
    for r in range(16):
        a(f'v_mul_f32 v{112+r}, s38, v{112+r}')
    for r in range(0, 16, 2):
        a(f'v_cvt_pk_bf16_f32 v{16+r}, v{96+r}, v{97+r}')
    for r in range(0, 16, 2):
        a(f'v_lshrrev_b32 v{17+r}, 16, v{16+r}')
        a(f'v_and_b32 v{16+r}, 0xffff, v{16+r}')
    for r in range(16):
        a(f'v_and_b32 v{32+r}, s39, v{112+r}')
    for r in range(16):
        a(f'v_add_u32 v{32+r}, 0x8000, v{32+r}')
    for r in range(16):
        a(f'v_sub_u32 v{32+r}, v{32+r}, v{16+r} clamp')
    for r in range(16):
        a(f'v_and_or_b32 v{32+r}, v{32+r}, s40, v{16+r}')
    for r in range(16):
        a(f'v_bfi_b32 v{32+r}, s39, v{32+r}, v{112+r}')
        a(f'ds_write_b32 v7, v{32+r} offset:{((r&3)+8*(r>>2))*128}')
    a('v_add_u32 v8, s42, v6')
    a('s_waitcnt lgkmcnt(0)')
    for j in range(4):
        a(f'ds_read_b128 {q4(48+4*j)}, v8 offset:{1024*j}')
    a('v_max_f32 v64, |v96|, |v97|')
    for r in range(2, 32, 2):
        a(f'v_max3_f32 v64, v64, |v{96+r}|, |v{97+r}|')
    a('v_cmp_lt_f32 vcc, s41, v64')
    for j in range(4):
        a(f's_waitcnt lgkmcnt({3-j})')
        a(f'buffer_store_dwordx4 {q4(48+4*j)}, v6, s[32:35], s23 offen offset:{1024*j} {ST_A}')
    a('s_lshl_b32 s43, s22, 2')
    a('v_mov_b32 v66, 0')
    a('s_cmp_lg_u64 vcc, 0')
    a('s_cselect_b32 s42, 1, 0')
    a('v_mov_b32 v65, s42')
    a('s_mov_b64 exec, 1')
    a(f'buffer_store_dword v65, v66, s[44:47], s43 offen {ST_A}')
    stamp(a, 5, 15)
    stamp_out(a, 0, 20, 15)
    a('s_endpgm')

    a.lab('A_prep')
    a(f's_sub_u32 s50, s2, {A_PREP0}')
    a('s_mul_i32 s50, s50, 7')
    a('s_add_u32 s50, s50, s3')
    a('s_cmp_gt_u32 s50, 24')
    a('s_cbranch_scc1 A_done')
    a('s_lshr_b32 s22, s50, 3')
    a('s_bfe_u32 s23, s50, 0x10002')
    a('s_and_b32 s24, s50, 3')
    a('v_and_b32 v2, 31, v1')
    a('v_lshrrev_b32 v3, 5, v1')
    a('v_bfe_u32 v4, v2, 2, 1')
    a('v_and_b32 v5, 3, v2')
    a('v_lshrrev_b32 v6, 3, v2')
    a('v_lshl_add_u32 v5, v6, 2, v5')
    a('s_waitcnt lgkmcnt(0)')
    srd(a, 32, 20, WS_WF, WF_BYTES)
    a('s_cmp_eq_u32 s50, 24')
    a('s_cbranch_scc1 A_prep_w3')
    a('s_cmp_lg_u32 s22, 0')
    a('s_cbranch_scc1 A_prep_u')
    srd(a, 28, 12, 0, 129*128)
    a('v_lshrrev_b32 v6, 3, v5')
    a('v_lshl_add_u32 v6, v4, 2, v6')
    a('s_lshl_b32 s25, s23, 1')
    a('v_add_u32 v6, s25, v6')
    a('v_and_b32 v7, 7, v5')
    a('v_lshlrev_b32 v8, 1, v7')
    a('v_add_u32 v9, 1, v8')
    a('v_subrev_u32 v8, 8, v8')
    a('v_cmp_gt_u32 vcc, 4, v7')
    a('s_nop 1')
    a('v_cndmask_b32 v8, v8, v9, vcc')
    a('v_lshl_add_u32 v8, v6, 3, v8')
    a('v_lshlrev_b32 v8, 1, v8')
    a('v_lshl_add_u32 v8, v3, 10, v8')
    a('s_lshl_b32 s26, s24, 11')
    a('s_add_u32 s26, s26, 8192')
    for j in range(8):
        a(f'buffer_load_ushort v{32+j}, v8, s[28:31], s26 offen offset:{128*j}')
    a('s_branch A_prep_st')
    a.lab('A_prep_u')
    srd(a, 28, 14, 0, 128*128)
    a('v_lshl_add_u32 v8, v4, 4, v5')
    a('s_lshl_b32 s25, s23, 5')
    a('v_add_u32 v8, s25, v8')
    a('v_lshlrev_b32 v8, 1, v8')
    a('s_cmp_lg_u32 s22, 1')
    a('s_cbranch_scc1 A_prep_agg')
    a('v_lshl_add_u32 v8, v3, 10, v8')
    a('s_lshl_b32 s26, s24, 11')
    for j in range(8):
        a(f'buffer_load_ushort v{32+j}, v8, s[28:31], s26 offen offset:{128*j}')
    a('s_branch A_prep_st')
    a.lab('A_prep_w3')
    srd(a, 44, 20, WS_PT + N*128, 128)
    a('v_mov_b32 v20, 0x71497149')
    a('v_mov_b32 v21, v20')
    a('v_mov_b32 v22, v20')
    a('v_mov_b32 v23, v20')
    a('v_lshlrev_b32 v24, 4, v1')
    a('buffer_store_dwordx4 v[20:23], v24, s[44:47], 0 offen')
    srd(a, 36, 12, 0, 129*128)
    a('v_and_b32 v10, 7, v1')
    a('v_lshlrev_b32 v11, 4, v10')
    a('s_movk_i32 s27, 0x4000')
    a('buffer_load_dwordx4 v[44:47], v11, s[36:39], s27 offen')
    a(f's_mov_b32 s40, {hex(f32(-LOG2E))}')
    a('s_waitcnt vmcnt(0)')
    for i in range(4):
        a(f'v_and_b32 v{48+i}, 0xffff0000, v{44+i}')
        a(f'v_lshlrev_b32 v{52+i}, 16, v{44+i}')
    for i in range(8):
        a(f'v_mul_f32 v{48+i}, s40, v{48+i}')
    a('v_max3_f32 v44, |v48|, |v49|, |v50|')
    a('v_max3_f32 v44, v44, |v51|, |v52|')
    a('v_max3_f32 v44, v44, |v53|, |v54|')
    a('v_max_f32 v44, v44, |v55|')
    a(f'v_cmp_lt_f32 vcc, {LIM_W}, v44')
    a('v_lshlrev_b32 v11, 5, v10')
    a('s_cmp_lg_u64 vcc, 0')
    a('s_cselect_b32 s41, 1, 0')
    a('v_mov_b32 v45, s41')
    a('v_mov_b32 v46, 0')
    a(f's_movk_i32 s27, {WF_W3}')
    a('buffer_store_dwordx4 v[48:51], v11, s[32:35], s27 offen')
    a('buffer_store_dwordx4 v[52:55], v11, s[32:35], s27 offen offset:16')
    a('buffer_store_dword v45, v46, s[32:35], s27 offen offset:256')
    a('s_endpgm')
    a.lab('A_prep_agg')
    a('v_lshl_add_u32 v8, v3, 12, v8')
    a('s_lshl_b32 s26, s24, 2')
    a('s_add_u32 s27, s26, 1')
    a('s_sub_u32 s26, s26, 8')
    a('s_cmp_lt_u32 s24, 2')
    a('s_cselect_b32 s26, s27, s26')
    a('s_add_u32 s26, s26, 64')
    a('s_lshl_b32 s26, s26, 7')
    for j in range(8):
        a(f'buffer_load_ushort v{32+j}, v8, s[28:31], s26 offen offset:{(j&3)*1024+(j>>2)*256}')
    a.lab('A_prep_st')
    a('s_lshl_b32 s25, s50, 10')
    a('v_lshlrev_b32 v9, 4, v1')
    a('s_waitcnt vmcnt(0)')
    for j in range(4):
        a(f'v_lshl_or_b32 v{16+j}, v{33+2*j}, 16, v{32+2*j}')
    a('buffer_store_dwordx4 v[16:19], v9, s[32:35], s25 offen')
    a.lab('A_done')
    a('s_endpgm')

RS = 288
NPCAP = 1440
L_CNT = 0
L_BASE = 1024
L_MAX = 2048
L_FLAG = 2052
L_WORK = 2056
L_TOT = 2060
L_REC = 2064
L_Q = L_REC + NPCAP*32
L_AGG = L_Q + NB*RS
L_X = L_AGG + NB*RS*2
L_WU = L_X + 13*1024
B_LDS = L_WU + 16384
NPF = 0
for x in (L_REC, L_Q, L_AGG, L_X, L_WU): assert x % 16 == 0
assert B_LDS <= 163840 and L_Q + 128 < 65536

def kernel_b(a):
    a.raw('.globl mpnn_main_kernel')
    a.raw('.p2align 8')
    a.raw('.type mpnn_main_kernel,@function')
    a.lab('mpnn_main_kernel')
    a('s_load_dwordx2 s[80:81], s[0:1], 64')
    a('s_load_dwordx16 s[64:79], s[0:1], 0')
    if CPF:
        a('s_getpc_b64 s[60:61]')
        a.lab('B_pc')
        a('v_lshlrev_b32 v100, 4, v0')
        a('v_min_u32 v100, code_end-B_pc-16, v100')
        a('global_load_dwordx4 v[104:107], v100, s[60:61]')
    a(f's_cmp_ge_u32 s2, {NBK}')
    a('s_cbranch_scc1 B_done')
    a('v_lshrrev_b32 v1, 6, v0')
    a('v_lshrrev_b32 v4, 3, v0')
    a('v_readfirstlane_b32 s3, v1')
    a('v_lshlrev_b32 v12, 10, v4')
    if XMAP:
        a('s_and_b32 s85, s2, 7')
        a('s_lshl_b32 s85, s85, 5')
        a('s_lshr_b32 s86, s2, 3')
        a('s_add_u32 s85, s85, s86')
    else:
        a('s_mov_b32 s85, s2')
        a('s_lshr_b32 s86, s2, 3')
    a('s_lshl_b32 s32, s85, 2')
    a('s_add_u32 s33, s32, 0x20000')
    a('v_and_b32 v1, 63, v0')
    a('v_and_b32 v3, 7, v0')
    a('v_lshlrev_b32 v2, 4, v3')
    a('s_waitcnt lgkmcnt(0)')
    ws = 80
    srd(a, 4, ws, WS_TAB, TAB_BYTES)
    a('buffer_load_dword v6, v12, s[4:7], s32 offen')
    a('buffer_load_dword v7, v12, s[4:7], s33 offen')
    stamp(a, 0)
    if TLBW:
        srd(a, 8, ws, 0, 0xC00000)
        a('v_lshlrev_b32 v13, 20, v1')
        a('buffer_load_dword v112, v13, s[8:11], 0 offen')
        srd(a, 24, 76, 0, N*128)
        a('buffer_load_dword v113, v13, s[24:27], 0 offen')
    srd(a, 8, ws, WS_REC, REC_BYTES)
    srd(a, 16, 64, 0, N*128)
    srd(a, 20, ws, WS_WF, WF_BYTES)
    a(f's_add_u32 s28, s80, {hex(WS_WF+WF_W3+256)}')
    a('s_addc_u32 s29, s81, 0')
    a('s_load_dword s90, s[28:29], 0')
    srd(a, 12, ws, WS_PT, PT_BYTES)
    srd(a, 24, 76, 0, N*128)
    a('s_mov_b64 s[88:89], s[80:81]')
    a('s_and_b32 s34, s3, 1')
    a('s_bfe_u32 s35, s3, 0x20001')
    a(f's_mul_i32 s37, s85, {NB}')
    a('s_lshl_b32 s38, s35, 5')
    a('v_lshlrev_b32 v11, 4, v1')
    a('v_and_b32 v8, 31, v1')
    a('v_add_u32 v8, s38, v8')
    a('v_lshrrev_b32 v9, 5, v1')
    a('v_lshlrev_b32 v3, 3, v3')
    a(f'v_add_u32 v3, {L_AGG}, v3')
    a('s_movk_i32 s42, 128')
    a('s_mov_b32 s43, 0xffff0000')
    a('s_mov_b32 s44, 1.0')
    a('s_mov_b32 s45, 1.0')
    a('s_mov_b32 s46, 0x3f80')
    a(f's_mov_b32 s47, {hex(f32(-LOG2E))}')
    a(f's_mov_b32 s48, {hex(f32(-LN2))}')
    a(f's_mov_b32 s49, {hex(f32(-LN2))}')
    a('s_mov_b32 s50, 0')
    a('s_movk_i32 s84, 72')
    a('s_mov_b32 s86, 0')
    a('v_lshlrev_b32 v12, 4, v0')
    for r in range(16, 20): a(f'v_mov_b32 v{r}, 0')
    a(f'v_add_u32 v13, {L_AGG}, v12')
    for j in range(3):
        a(f'ds_write_b128 v13, v[16:19] offset:{16384*j}')
    a(f'v_cmp_gt_u32 vcc, {NB*RS*2//16-3072}, v0')
    a('s_and_saveexec_b64 s[52:53], vcc')
    a('ds_write_b128 v13, v[16:19] offset:49152')
    a('s_mov_b64 exec, s[52:53]')
    a('s_mov_b32 s87, 32')
    a.lab('B_batch')
    for r in range(16, 20): a(f'v_mov_b32 v{r}, 0')
    a('v_lshlrev_b32 v12, 4, v0')
    a(f'v_cmp_gt_u32 vcc, {L_REC//16}, v0')
    a('s_and_saveexec_b64 s[52:53], vcc')
    a('ds_write_b128 v12, v[16:19]')
    a('s_mov_b64 exec, s[52:53]')
    a('v_mov_b32 v20, 0')
    a(f'v_mov_b32 v21, {N}')
    a('v_mov_b32 v22, 0')
    a(f'v_mov_b32 v23, {N}')
    a(f'ds_write_b128 v12, v[20:23] offset:{L_REC}')
    a(f'ds_write_b128 v12, v[20:23] offset:{L_REC+16384}')
    a(f'v_cmp_gt_u32 vcc, {NPCAP*2-2048}, v0')
    a('s_and_saveexec_b64 s[52:53], vcc')
    a(f'ds_write_b128 v12, v[20:23] offset:{L_REC+32768}')
    a('s_mov_b64 exec, s[52:53]')
    a('v_and_b32 v14, 7, v0')
    a('v_lshlrev_b32 v14, 1, v14')
    a('v_add_u32 v14, s50, v14')
    a(f's_movk_i32 s51, {CH}')
    a('v_mul_u32_u24 v15, s51, v4')
    a('v_add_u32 v15, v15, v14')
    a('v_mov_b32 v25, 0x7fffff00')
    a('s_waitcnt vmcnt(0)')
    stamp(a, 1)
    for rd in range(2):
        T = 6+rd
        a(f'v_bfe_u32 v{20+rd}, v{T}, 16, 13')
        a(f'v_and_b32 v{22+rd}, 0xffff, v{T}')
        a(f'v_add_u32 v{22+rd}, v{22+rd}, v15')
        if rd == 1:
            a(f'v_add_u32 v{22+rd}, {128*CH}, v{22+rd}')
        a(f'v_lshlrev_b32 v{22+rd}, 3, v{22+rd}')
        a(f'v_sub_u32 v{16+rd}, v{20+rd}, v14')
    for rd in range(2):
        for ld in range(2):
            for e in range(2):
                s = rd*4+ld*2+e
                a(f'v_cmp_lt_i32 s[{52+2*s}:{53+2*s}], {ld*16+e}, v{16+rd}')
    a('s_cmp_eq_u32 s87, 32')
    a('s_cbranch_scc1 B_step32')
    for s in (2, 3, 6, 7):
        a(f's_mov_b64 s[{52+2*s}:{53+2*s}], 0')
    a.lab('B_step32')
    order = [(0, 0), (1, 0), (0, 1), (1, 1)]
    for rd, ld in order:
        s = rd*4+ld*2
        r = 96+(rd*2+ld)*4
        a(f'v_cndmask_b32 v{26+rd*2+ld}, v25, v{22+rd}, s[{52+2*s}:{53+2*s}]')
        a(f'buffer_load_dwordx4 {q4(r)}, v{26+rd*2+ld}, s[8:11], 0 offen offset:{128*ld}')
    a('s_cmp_lg_u32 s86, 0')
    a('s_cbranch_scc1 B_noaux')
    a('s_lshl_b32 s39, s37, 7')
    a('s_lshl_b32 s40, s3, 10')
    a('s_add_u32 s39, s39, s40')
    a('buffer_load_dwordx4 v[32:35], v11, s[16:19], s39 offen')
    a(f's_add_u32 m0, s40, {L_WU}')
    a('s_add_u32 s40, s40, 8192')
    a('buffer_load_dwordx4 v11, s[20:23], s40 offen lds')
    a(f's_movk_i32 s41, {WF_W3}')
    a('v_lshlrev_b32 v18, 1, v2')
    a('buffer_load_dwordx4 v[68:71], v18, s[20:23], s41 offen')
    a('buffer_load_dwordx4 v[72:75], v18, s[20:23], s41 offen offset:16')
    srd(a, 28, 88, WS_PF, PF_BYTES)
    a('v_lshlrev_b32 v18, 2, v0')
    a('buffer_load_dword v44, v18, s[28:31], 0 offen')
    a('s_cmp_ge_u32 s3, 8')
    a('s_cbranch_scc1 B_noaux')
    a('s_lshl_b32 s39, s34, 12')
    for ks in range(4):
        a(f'buffer_load_dwordx4 {q4(48+4*ks)}, v11, s[20:23], s39 offen offset:{1024*ks}')
    a.lab('B_noaux')
    a('s_waitcnt lgkmcnt(0)')
    a('s_barrier')
    a('v_max_i32 v16, v16, v17')
    a('v_or_b32 v17, v6, v7')
    a('v_cmp_lt_i32 vcc, s87, v16')
    a('v_cmp_gt_i32 s[68:69], 0, v17')
    a(f'v_mov_b32 v24, {L_MAX}')
    a('v_mov_b32 v16, 1')
    a('s_cbranch_vccz B_nomore')
    a('ds_write_b32 v24, v16')
    a.lab('B_nomore')
    a('s_cmp_eq_u64 s[68:69], 0')
    a('s_cbranch_scc1 B_noflag')
    a('ds_write_b32 v24, v16 offset:4')
    a.lab('B_noflag')
    a('v_mov_b32 v24, 8')
    lc = [0]
    def ranks(extra):
        for n, (rd, ld) in enumerate(order):
            a(f's_waitcnt vmcnt({3-n+extra})')
            for e in range(2):
                s = rd*4+ld*2+e
                r = 96+(rd*2+ld)*4+2*e
                a(f's_mov_b64 exec, s[{52+2*s}:{53+2*s}]')
                if ld:
                    lc[0] += 1
                    a(f's_cbranch_execz B_sk{lc[0]}')
                a(f'v_lshrrev_b32 v{16+s}, 16, v{r+1}') if False else None
                a(f'v_lshrrev_b32 v{112+s}, 16, v{r+1}')
                a(f'ds_add_rtn_u32 v{36+s}, v{112+s}, v24 offset:{L_CNT}')
                if ld: a.lab(f'B_sk{lc[0]}')
        a('s_mov_b64 exec, -1')
    a('s_cmp_lg_u32 s86, 0')
    a('s_cbranch_scc1 B_rk0')
    a('s_cmp_ge_u32 s3, 8')
    a('s_cbranch_scc1 B_rk3')
    ranks(9)
    a('s_waitcnt vmcnt(8)')
    a('s_branch B_rkx')
    a.lab('B_rk3')
    ranks(5)
    a('s_waitcnt vmcnt(4)')
    a.lab('B_rkx')
    stamp(a, 7)
    a('v_lshrrev_b32 v16, 3, v1')
    a('v_and_b32 v17, 7, v1')
    a('v_xor_b32 v17, v17, v16')
    a('v_lshlrev_b32 v17, 4, v17')
    a('v_lshl_add_u32 v17, v16, 7, v17')
    a('s_lshl_b32 s51, s3, 10')
    a(f's_add_u32 s51, s51, {L_X}')
    a('v_add_u32 v17, s51, v17')
    a('s_cmp_ge_u32 s3, 13')
    a('s_cbranch_scc1 B_rkdone')
    a('ds_write_b128 v17, v[32:35]')
    a('s_branch B_rkdone')
    a.lab('B_rk0')
    ranks(0)
    a.lab('B_rkdone')
    a('s_waitcnt lgkmcnt(0)')
    a('s_barrier')
    stamp(a, 2)
    a('s_cmp_ge_u32 s3, 8')
    a('s_cbranch_scc1 B_scan')
    a('s_cmp_lg_u32 s86, 0')
    a('s_cbranch_scc1 B_mid2')
    a('v_and_b32 v46, 7, v1')
    a('v_xor_b32 v46, v46, v9')
    a('v_lshlrev_b32 v45, 7, v8')
    a(f'v_add_u32 v45, {L_X}, v45')
    for ks in range(4):
        a(f'v_xor_b32 v47, {2*ks}, v46')
        a(f'v_lshl_add_u32 v{64+ks}, v47, 4, v45')
        a(f'ds_read_b128 {q4(76+4*ks)}, v{64+ks}')
    a(f's_movk_i32 s68, {RS}')
    a('v_mul_u32_u24 v45, s68, v8')
    a('v_lshl_add_u32 v45, v9, 6, v45')
    a('s_lshl_b32 s68, s34, 5')
    a('v_add_u32 v45, s68, v45')
    a(f'v_mov_b32 v46, {NB}')
    a('v_cmp_gt_u32 s[68:69], v46, v8')
    a('s_waitcnt vmcnt(0) lgkmcnt(0)')
    for ks in range(4):
        c = '0' if ks == 0 else 'v[16:31]'
        a(f'v_mfma_f32_32x32x16_bf16 v[16:31], {q4(48+4*ks)}, {q4(76+4*ks)}, {c}')
    a('v_cmp_ne_u32 s[70:71], 0, v44')
    a('s_nop 10')
    for r in range(16):
        a(f'v_mul_f32 v{16+r}, s47, v{16+r}')
    a('s_mov_b64 exec, s[68:69]')
    for o in range(2):
        a(f'ds_write_b128 v45, {q4(16+8*o)} offset:{L_Q+16*o}')
        a(f'ds_write_b128 v45, {q4(20+8*o)} offset:{L_Q+128+16*o}')
    a('v_max_f32 v46, |v16|, |v17|')
    for r in range(2, 16, 2):
        a(f'v_max3_f32 v46, v46, |v{16+r}|, |v{17+r}|')
    a(f'v_cmp_lt_f32 vcc, {hex(f32(LIM_Q))}, v46')
    a('s_mov_b64 exec, -1')
    a('s_or_b64 vcc, vcc, s[70:71]')
    a('s_branch B_mid1')
    a.lab('B_scan')
    a('s_cmp_lg_u32 s3, 8')
    a('s_cbranch_scc1 B_mid')
    a(f'ds_read_b128 v[16:19], v11 offset:{L_CNT}')
    a('s_waitcnt lgkmcnt(0)')
    for k in range(2):
        a(f'v_and_b32 v{20+k}, 24, v{16+2*k}')
        a(f'v_min_u32 v{20+k}, 1, v{20+k}')
        a(f'v_lshrrev_b32 v{22+k}, 5, v{16+2*k}')
        a(f'v_lshl_or_b32 v{20+k}, v{20+k}, 16, v{22+k}')
    a('v_add_u32 v24, v20, v21')
    a('v_mov_b32 v25, v24')
    wave_scan(a, 25)
    a('v_sub_u32 v24, v25, v24')
    a('v_readlane_b32 s70, v25, 63')
    a('v_add_u32 v25, v24, v20')
    a('s_and_b32 s72, s70, 0xffff')
    for k in range(2):
        a(f'v_and_b32 v{28+k}, 0xffff, v{24+k}')
        a(f'v_lshrrev_b32 v{30+k}, 16, v{24+k}')
        a(f'v_add_u32 v{30+k}, s72, v{30+k}')
        a(f'v_sub_u32 v{81+2*k}, v{30+k}, v{22+k}')
        a(f'v_lshlrev_b32 v{81+2*k}, 21, v{81+2*k}')
        a(f'v_lshl_or_b32 v{80+2*k}, v{28+k}, 5, v{81+2*k}')
        a(f'v_lshlrev_b32 v{81+2*k}, 5, v{22+k}')
    a(f'ds_write_b128 v11, v[80:83] offset:{L_BASE}')
    a('s_mov_b64 exec, 1')
    a(f'v_mov_b32 v24, {L_TOT}')
    a('v_mov_b32 v25, s70')
    a('ds_write_b32 v24, v25')
    a('s_mov_b64 exec, -1')
    a.lab('B_mid')
    a('s_cmp_lg_u32 s86, 0')
    a('s_cbranch_scc1 B_mid2')
    a('s_waitcnt vmcnt(0)')
    a('v_cmp_ne_u32 vcc, 0, v44')
    a.lab('B_mid1')
    a(f'v_mov_b32 v24, {L_FLAG}')
    a('v_mov_b32 v16, 1')
    a('s_nop 2')
    a('s_cbranch_vccz B_mid2')
    a('ds_write_b32 v24, v16')
    a.lab('B_mid2')
    a('s_mov_b32 s86, 1')
    a('s_waitcnt lgkmcnt(0)')
    a('s_barrier')
    stamp(a, 6)
    a(f'v_mov_b32 v24, {L_MAX}')
    a('ds_read_b128 v[16:19], v24')
    for s in (0, 1, 4, 5, 2, 3, 6, 7):
        a(f's_mov_b64 exec, s[{52+2*s}:{53+2*s}]')
        if s in (2, 3, 6, 7):
            lc[0] += 1
            a(f's_cbranch_execz B_sk{lc[0]}')
        a(f'ds_read_b64 {pr(76+2*s)}, v{112+s} offset:{L_BASE}')
        if s in (2, 3, 6, 7): a.lab(f'B_sk{lc[0]}')
    a('s_mov_b64 exec, -1')
    a('v_lshrrev_b32 v13, 3, v1')
    a(f'v_mov_b32 v14, {L_WORK}')
    a('v_mov_b32 v15, 1')
    a('s_waitcnt lgkmcnt(0)')
    a('v_readfirstlane_b32 s70, v19')
    a('v_readfirstlane_b32 s71, v16')
    a('v_readfirstlane_b32 s91, v17')
    a('s_nop 0')
    a('s_or_b32 s90, s90, s91')
    a('s_and_b32 s72, s70, 0xffff')
    a('s_lshr_b32 s73, s70, 16')
    a('s_add_u32 s73, s73, s72')
    a(f's_cmp_le_u32 s73, {NPCAP-8}')
    a('s_cbranch_scc1 B_capok')
    a('s_mov_b32 s87, 16')
    a('s_barrier')
    a('s_branch B_batch')
    a.lab('B_capok')
    def place(s):
        r = 96+(s//2)*4+2*(s % 2)
        a(f's_mov_b64 exec, s[{52+2*s}:{53+2*s}]')
        sk = s in (2, 3, 6, 7)
        if sk:
            lc[0] += 1
            a(f's_cbranch_execz B_sk{lc[0]}')
        a(f'v_cmp_lt_u32 vcc, v{36+s}, v{77+2*s}')
        a('s_nop 1')
        a(f'v_cndmask_b32_sdwa v{76+2*s}, v{76+2*s}, v{76+2*s}, vcc dst_sel:DWORD dst_unused:UNUSED_PAD src0_sel:WORD_1 src1_sel:WORD_0')
        a('s_nop 0')
        a(f'v_add_u32 v{36+s}, v{36+s}, v{76+2*s}')
        a(f'ds_write_b64 v{36+s}, {pr(r)} offset:{L_REC}')
        if sk: a.lab(f'B_sk{lc[0]}')
    for s in (0, 1, 4, 5, 2, 3, 6, 7): place(s)
    a('s_mov_b64 exec, -1')
    a('s_lshr_b32 s74, s72, 3')
    a('s_lshl_b32 s68, s74, 3')
    a('s_sub_u32 s75, s73, s68')
    a('s_add_u32 s75, s75, 7')
    a('s_lshr_b32 s75, s75, 3')
    a('s_add_u32 s75, s75, s74')
    a('s_cmp_lg_u32 s90, 0')
    a('s_cselect_b32 s82, 0, s74')
    if FORCE_PLAIN: a('s_mov_b32 s82, 0')
    a('v_mul_u32_u24 v12, s74, v13')
    a('v_lshlrev_b32 v12, 5, v12')
    a('v_lshlrev_b32 v13, 5, v13')
    a('s_waitcnt lgkmcnt(0)')
    a('s_barrier')
    stamp(a, 3)
    stampc(a, 8)
    a('s_mov_b32 s83, 0')
    if PRIO: a('s_setprio 3')
    RAW = 32; Q = 48; RCS = [56, 112]; IDX = 64; AGS = [66, 67]; Z = 76; T = 16; TMP = 108
    cnt = [0]
    def read_recs(sidx, st):
        n = cnt[0]; cnt[0] += 1
        a(f's_cmp_ge_u32 s{sidx}, s74')
        a(f's_cbranch_scc1 B_rrP{n}')
        a(f's_lshl_b32 s51, s{sidx}, 5')
        a(f'v_add_u32 v{TMP}, s51, v12')
        a(f's_branch B_rrX{n}')
        a.lab(f'B_rrP{n}')
        a(f's_min_u32 s79, s{sidx}, {NPCAP//8-1}')
        a(f's_lshl_b32 s51, s79, 8')
        a(f'v_add_u32 v{TMP}, s51, v13')
        a.lab(f'B_rrX{n}')
        a(f'ds_read_b128 {q4(RCS[st])}, v{TMP} offset:{L_REC}')
        a(f'ds_read_b128 {q4(RCS[st]+4)}, v{TMP} offset:{L_REC+16}')
    def fetch(st):
        RC = RCS[st]
        for k in range(4):
            a(f'v_mad_u32_u16 v{TMP+(k&1)}, v{RC+2*k+1}, s42, v2')
            a(f'buffer_load_dwordx4 {q4(RAW+4*k)}, v{TMP+(k&1)}, s[12:15], 0 offen')
        a(f'v_mad_u32_u16 v{TMP+2}, v{RC+1}, 36, v2 op_sel:[1,0,0,0]')
        a(f'ds_read_b128 {q4(Q)}, v{TMP+2} offset:{L_Q}')
        a(f'ds_read_b128 {q4(Q+4)}, v{TMP+2} offset:{L_Q+128}')
        a(f'v_mad_u32_u16 v{AGS[st]}, v{RC+1}, s84, v3 op_sel:[1,0,0,0]')
    def grab():
        a('s_mov_b64 exec, 1')
        a(f'ds_add_rtn_u32 v{IDX}, v14, v15')
        a('s_mov_b64 exec, -1')
    def zphase(st):
        for k in range(4):
            R = RAW+4*k; Zk = Z+8*k
            ep = RCS[st]+2*k
            sel = 'op_sel:[0,0,0] op_sel_hi:[0,1,1]'
            for p in range(4):
                a(f'v_pk_fma_f32 {pr(Zk+2*p)}, {pr(ep)}, {pr(68+2*p)}, {pr(Q+2*p)} {sel}')
            a(f's_waitcnt vmcnt({3-k})')
            for i in range(4):
                a(f'v_dot2_f32_bf16 v{Zk+4+i}, v{R+i}, s46, v{Zk+4+i}')
            a(f'v_pk_add_f32 {pr(Zk)}, {pr(R)}, {pr(Zk)}')
            a(f'v_pk_add_f32 {pr(Zk+2)}, {pr(R+2)}, {pr(Zk+2)}')
    def shared(AGC):
        for pp in range(2):
            ps = [2*pp, 2*pp+1]
            tt = {ps[0]: T, ps[1]: T+6}
            for half in range(2):
                def regs(p):
                    za = Z+16*half+2*p
                    return za, za+8, tt[p]+(0 if half == 0 else 4), tt[p]+2
                for p in ps:
                    za, zb, ta, tb = regs(p)
                    a(f'v_exp_f32 v{ta}, v{za}'); a(f'v_exp_f32 v{ta+1}, v{za+1}')
                    a(f'v_exp_f32 v{tb}, v{zb}'); a(f'v_exp_f32 v{tb+1}, v{zb+1}')
                for p in ps:
                    za, zb, ta, tb = regs(p)
                    a(f'v_pk_fma_f32 {pr(zb)}, {pr(zb)}, {pr(ta)}, {pr(zb)}')
                for p in ps:
                    za, zb, ta, tb = regs(p)
                    a(f'v_pk_add_f32 {pr(tb)}, {pr(tb)}, s[44:45]')
                for p in ps:
                    za, zb, ta, tb = regs(p)
                    a(f'v_pk_fma_f32 {pr(zb)}, {pr(za)}, {pr(tb)}, {pr(zb)}')
                for p in ps:
                    za, zb, ta, tb = regs(p)
                    a(f'v_pk_fma_f32 {pr(ta)}, {pr(ta)}, {pr(tb)}, {pr(tb)}')
            for p in ps:
                a(f'v_pk_mul_f32 {pr(Z+2*p)}, {pr(Z+8+2*p)}, {pr(tt[p]+4)}')
            for p in ps:
                a(f'v_pk_mul_f32 {pr(tt[p]+2)}, {pr(tt[p])}, {pr(tt[p]+4)}')
            for p in ps:
                a(f'v_pk_fma_f32 {pr(Z+2*p)}, {pr(Z+24+2*p)}, {pr(tt[p])}, {pr(Z+2*p)}')
            for p in ps:
                a(f'v_rcp_f32 v{tt[p]+2}, v{tt[p]+2}'); a(f'v_rcp_f32 v{tt[p]+3}, v{tt[p]+3}')
            a('s_nop 0')
            for p in ps:
                a(f'v_pk_mul_f32 {pr(Z+2*p)}, {pr(Z+2*p)}, {pr(tt[p]+2)}')
            for p in ps:
                a(f'v_cvt_f64_f32 {pr(Z+8+2*p)}, v{Z+2*p}'); a(f'v_cvt_f64_f32 {pr(Z+16+2*p)}, v{Z+2*p+1}')
            for p in ps:
                a(f'ds_add_f64 v{AGC}, {pr(Z+8+2*p)} offset:{64*(2*p)}')
                a(f'ds_add_f64 v{AGC}, {pr(Z+16+2*p)} offset:{64*(2*p+1)}')
    def plain(AGC):
        AC = T+8
        for k in range(4):
            Zk = Z+8*k
            for i in range(8): a(f'v_exp_f32 v{T+i}, v{Zk+i}')
            for p in range(4): a(f'v_pk_add_f32 {pr(T+2*p)}, {pr(T+2*p)}, s[44:45]')
            for i in range(8): a(f'v_rcp_f32 v{T+i}, v{T+i}')
            for p in range(4):
                if k == 0:
                    a(f'v_pk_mul_f32 {pr(AC+2*p)}, {pr(Zk+2*p)}, {pr(T+2*p)}')
                else:
                    a(f'v_pk_fma_f32 {pr(AC+2*p)}, {pr(Zk+2*p)}, {pr(T+2*p)}, {pr(AC+2*p)}')
        for i in range(8): a(f'v_cvt_f64_f32 {pr(Z+2*i)}, v{AC+i}')
        for i in range(8): a(f'ds_add_f64 v{AGC}, {pr(Z+2*i)} offset:{64*i}')
    a('s_mov_b32 s76, s3')
    a('s_add_u32 s77, s3, 16')
    a('s_cmp_ge_u32 s76, s75')
    a('s_cbranch_scc1 B_loop_end')
    read_recs(76, 0)
    grab()
    a('s_waitcnt lgkmcnt(0)')
    fetch(0)
    read_recs(77, 1)
    a('s_waitcnt lgkmcnt(0)')
    for st in range(2):
        a.lab(f'B_loop{st}')
        a('s_waitcnt lgkmcnt(8)')
        a(f'v_readfirstlane_b32 s78, v{IDX}')
        zphase(st)
        if DEBUG:
            a('s_cmp_gt_u32 s83, 3')
            a(f's_cbranch_scc1 B_nost{st}')
            a('s_memrealtime s[92:93]')
            a('s_add_u32 m0, s83, 11')
            a('s_waitcnt lgkmcnt(0)')
            a('v_writelane_b32 v5, s92, m0')
            a.lab(f'B_nost{st}')
        a('s_add_u32 s78, s78, 32')
        a('s_cmp_ge_u32 s77, s75')
        a(f's_cbranch_scc1 B_nofetch{st}')
        fetch(1-st)
        read_recs(78, st)
        grab()
        a.lab(f'B_nofetch{st}')
        a('s_cmp_ge_u32 s76, s82')
        a(f's_cbranch_scc1 B_plain{st}')
        shared(AGS[st])
        a.lab(f'B_next{st}')
        a('s_add_u32 s83, s83, 1')
        if PRIO:
            for c, p in (((3, 1), (5, 0)) if st == 0 else ((2, 2),)):
                pass
            for c, p in ((2, 2), (4, 1), (5, 0)):
                if (c % 2) != (1-st) % 2 and False: continue
                a(f's_cmp_lg_u32 s83, {c}')
                a(f's_cbranch_scc1 B_pr{c}_{st}')
                a(f's_setprio {p}')
                a.lab(f'B_pr{c}_{st}')
        a('s_mov_b32 s76, s77')
        a('s_mov_b32 s77, s78')
        a('s_cmp_lt_u32 s76, s75')
        if st == 0:
            a('s_cbranch_scc0 B_loop_end')
        else:
            a('s_cbranch_scc1 B_loop0')
            a('s_branch B_loop_end')
    for st in range(2):
        a.lab(f'B_plain{st}')
        plain(AGS[st])
        a(f's_branch B_next{st}')
    a.lab('B_loop_end')
    stamp(a, 4)
    a('s_cmp_lt_u32 s3, 8')
    a('s_cbranch_scc1 B_join')
    a('s_lshl_b32 s39, s34, 12')
    a(f's_add_u32 s39, s39, {L_WU}')
    a('v_add_u32 v17, s39, v11')
    a('v_and_b32 v18, 7, v1')
    a('v_xor_b32 v18, v18, v9')
    a('v_lshlrev_b32 v16, 7, v8')
    a(f'v_add_u32 v16, {L_X}, v16')
    for ks in range(4):
        a(f'v_xor_b32 v19, {2*ks}, v18')
        a(f'v_lshl_add_u32 v{20+ks}, v19, 4, v16')
        a(f'ds_read_b128 {q4(32+4*ks)}, v{20+ks}')
        a(f'ds_read_b128 {q4(48+4*ks)}, v17 offset:{1024*ks}')
    a('s_waitcnt lgkmcnt(0)')
    for ks in range(4):
        c = '0' if ks == 0 else 'v[112:127]'
        a(f'v_mfma_f32_32x32x16_bf16 v[112:127], {q4(48+4*ks)}, {q4(32+4*ks)}, {c}')
    for ks in range(4):
        a(f'ds_read_b128 {q4(48+4*ks)}, v17 offset:{8192+1024*ks}')
    a.lab('B_join')
    a('s_waitcnt lgkmcnt(0)')
    a('s_barrier')
    stamp(a, 5)
    stampc(a, 9)
    if DEBUG: a('v_writelane_b32 v5, s83, 10')
    a('s_add_u32 s50, s50, s87')
    a('s_cmp_lg_u32 s71, 0')
    a('s_cbranch_scc1 B_batch')
    a('s_cmp_lt_u32 s3, 8')
    a('s_cbranch_scc1 B_done2')
    a(f's_movk_i32 s51, {2*RS}')
    a('v_mul_u32_u24 v16, s51, v8')
    a('v_lshl_add_u32 v16, v9, 5, v16')
    a(f'v_add_u32 v16, {L_AGG}, v16')
    for half in range(2):
        for ii in range(4):
            i = half*4+ii
            a(f'ds_read_b128 {q4(64+8*ii)}, v16 offset:{64*i}')
            a(f'ds_read_b128 {q4(68+8*ii)}, v16 offset:{64*i+16}')
        for ii in range(4):
            i = half*4+ii
            a(f's_waitcnt lgkmcnt({6-2*ii})')
            for q in range(4):
                a(f'v_cvt_f32_f64 v{96+q}, {pr(64+8*ii+2*q)}')
            a(f'v_pk_mul_f32 v[96:97], v[96:97], s[48:49]')
            a(f'v_pk_mul_f32 v[98:99], v[98:99], s[48:49]')
            a(f'v_cvt_pk_bf16_f32 v{32+2*i}, v96, v97')
            a(f'v_cvt_pk_bf16_f32 v{33+2*i}, v98, v99')
    a('s_nop 1')
    for ks in range(4):
        a(f'v_mfma_f32_32x32x16_bf16 v[112:127], {q4(48+4*ks)}, {q4(32+4*ks)}, v[112:127]')
    a('v_add_u32 v17, s37, v8')
    a('v_lshlrev_b32 v17, 7, v17')
    a('v_lshl_add_u32 v17, v9, 5, v17')
    a('s_lshl_b32 s51, s34, 6')
    a(f'v_cmp_gt_u32 vcc, {NB}, v8')
    a('s_nop 12')
    for r in range(16): a(f'v_mul_f32 v{64+r}, s47, v{112+r}')
    for r in range(16): a(f'v_exp_f32 v{64+r}, v{64+r}')
    for r in range(16): a(f'v_add_f32 v{64+r}, 1.0, v{64+r}')
    for r in range(16): a(f'v_rcp_f32 v{64+r}, v{64+r}')
    for r in range(16): a(f'v_mul_f32 v{64+r}, v{64+r}, v{112+r}')
    for r in range(0, 16, 2): a(f'v_cvt_pk_bf16_f32 v{32+r//2}, v{64+r}, v{65+r}')
    a('s_and_b64 exec, exec, vcc')
    a(f'buffer_store_dwordx4 v[32:35], v17, s[24:27], s51 offen {ST_O}')
    a(f'buffer_store_dwordx4 v[36:39], v17, s[24:27], s51 offen offset:16 {ST_O}')
    a.lab('B_done2')
    stamp_out(a, 1, 88)
    a.lab('B_done')
    a('s_endpgm')
    a.lab('code_end')

def kd(a, name, vgpr, sgpr):
    a.raw('.p2align 6')
    a.raw(f'.amdhsa_kernel {name}')
    a.raw(f'  .amdhsa_next_free_vgpr {vgpr}')
    a.raw(f'  .amdhsa_next_free_sgpr {sgpr}')
    a.raw(f'  .amdhsa_accum_offset {(vgpr+3)//4*4}')
    a.raw('  .amdhsa_group_segment_fixed_size 0')
    a.raw('  .amdhsa_kernarg_size 72')
    a.raw('  .amdhsa_user_sgpr_count 2')
    a.raw('  .amdhsa_user_sgpr_kernarg_segment_ptr 1')
    a.raw('  .amdhsa_system_sgpr_workgroup_id_x 1')
    a.raw('.end_amdhsa_kernel')

def main():
    ref = open('gather_scatter__mpnn_edge_mlp__graph.s.ref').read().splitlines()
    hdr = [l for l in ref if l.startswith(';') and '@launch' not in l and 'Override' not in l and 'grid=ceil' not in l]
    a = A()
    for l in hdr: a.raw(l)
    a.raw(f'; @launch kernel=mpnn_bin_kernel grid=({A_GRID},1,1) block=({A_BLOCK},1,1) lds={A_LDS}')
    a.raw(f'; @launch kernel=mpnn_main_kernel grid=({NBK},1,1) block=(1024,1,1) lds={B_LDS}')
    a.raw('.amdgcn_target "amdgcn-amd-amdhsa--gfx950"')
    a.raw('.text')
    kernel_a(a)
    kernel_b(a)
    a.raw('.section .rodata,"a"')
    kd(a, 'mpnn_bin_kernel', 128, 100)
    kd(a, 'mpnn_main_kernel', 128, 100)
    out = sys.argv[1] if len(sys.argv) > 1 else 'gather_scatter__mpnn_edge_mlp__graph.s'
    open(out, 'w').write('\n'.join(a.l) + '\n')

main()
```

```python
import sys, struct, os
DEBUG = int(os.environ.get('DEBUG', '0'))
PRIO = int(os.environ.get('PRIO', '1'))
XMAP = int(os.environ.get('XMAP', '1'))
PREF = int(os.environ.get('PREF', '0'))
CPF = int(os.environ.get('CPF', '0'))
TLBW = int(os.environ.get('TLBW', '0'))
ST_O = os.environ.get('ST_O', '')
LATESRC = int(os.environ.get('LATESRC', '1'))
FORCE_PLAIN = int(os.environ.get('FORCE_PLAIN', '0'))

N = 25000; E = 800000
NB = 98
NBK = 256
CH = 3200
NCH = 250
WS_REC = 0
WS_TAB = 0x700000
WS_PF  = 0x780000
WS_PT  = 0x800000
WS_WF  = 0x7C0000
REC_BYTES = NCH*CH*8
TAB_BYTES = NCH*NBK*4
PF_BYTES  = 1000*4
PT_BYTES  = (N+1)*128
WF_BYTES  = 3*8192 + 512
WF_W3 = 3*8192
LOG2E = 1.4426950408889634
LN2 = 0.6931471805599453
LIM_P = 6.0; LIM_Q = 6.0; LIM_E_BF16 = 0x4090; LIM_W = 4.0
def f32(x): return struct.unpack('<I', struct.pack('<f', x))[0]

class A:
    def __init__(s): s.l = []
    def __call__(s, t): s.l.append('    ' + t)
    def lab(s, t): s.l.append(t + ':')
    def raw(s, t): s.l.append(t)

def srd(a, d, base, off, nbytes):
    if off:
        a(f's_add_u32 s{d}, s{base}, {hex(off)}')
        a(f's_addc_u32 s{d+1}, s{base+1}, 0')
    else:
        a(f's_mov_b32 s{d}, s{base}')
        a(f's_mov_b32 s{d+1}, s{base+1}')
    a(f's_mov_b32 s{d+2}, {hex(nbytes)}')
    a(f's_mov_b32 s{d+3}, 0x00020000')

PROF_OFF = 0x4000000
def stamp(a, i, vr=5, sr=92):
    if not DEBUG: return
    a(f's_memrealtime s[{sr}:{sr+1}]')
    a('s_waitcnt lgkmcnt(0)')
    a(f'v_writelane_b32 v{vr}, s{sr}, {i}')
def stampc(a, i, vr=5, sr=92):
    if not DEBUG: return
    a(f's_memtime s[{sr}:{sr+1}]')
    a('s_waitcnt lgkmcnt(0)')
    a(f'v_writelane_b32 v{vr}, s{sr}, {i}')
def stamp_out(a, kern, wsreg, vr=5, sr=92, tmp=6):
    if not DEBUG: return
    a('s_waitcnt vmcnt(0)')
    stamp(a, 15, vr, sr)
    a('s_mov_b64 exec, -1')
    srd(a, 96, wsreg, PROF_OFF + kern*0x400000, 0x400000)
    a(f's_lshl_b32 s{sr}, s2, 4')
    a(f's_add_u32 s{sr}, s{sr}, s3')
    a(f's_lshl_b32 s{sr}, s{sr}, 8')
    a(f'v_lshlrev_b32 v{tmp}, 2, v1')
    a(f'buffer_store_dword v{vr}, v{tmp}, s[96:99], s{sr} offen')

def wave_scan(a, v):
    for sh in (1, 2, 4, 8):
        a('s_nop 1')
        a(f'v_add_u32_dpp v{v}, v{v}, v{v} row_shr:{sh} row_mask:0xf bank_mask:0xf bound_ctrl:0')
    a('s_nop 1')
    a(f'v_add_u32_dpp v{v}, v{v}, v{v} row_bcast:15 row_mask:0xa bank_mask:0xf')
    a('s_nop 1')
    a(f'v_add_u32_dpp v{v}, v{v}, v{v} row_bcast:31 row_mask:0xc bank_mask:0xf')

def pr(r): return f'v[{r}:{r+1}]'
def q4(r): return f'v[{r}:{r+3}]'

A_GEMM0 = NCH
A_PREP0 = NCH + 250
A_GRID = A_PREP0 + 4
A_BLOCK = 448
A_XT = 0
A_W1 = 4*4096
A_LDS = 2112 + CH*8
A_STAGE = 2048 + 64
A_EFLAG = 2048
ST_A = os.environ.get('ST_A', 'sc0 sc1')

def kernel_a(a):
    a.raw('.globl mpnn_bin_kernel')
    a.raw('.p2align 8')
    a.raw('.type mpnn_bin_kernel,@function')
    a.lab('mpnn_bin_kernel')
    if DEBUG:
        a('s_memrealtime s[94:95]')
        a('s_getreg_b32 s62, hwreg(HW_REG_HW_ID)')
        a('s_getreg_b32 s63, hwreg(HW_REG_XCC_ID)')
    a('s_load_dwordx16 s[4:19], s[0:1], 0')
    a('s_load_dwordx2 s[20:21], s[0:1], 64')
    if CPF:
        a('s_getpc_b64 s[60:61]')
        a.lab('A_pc')
        a('v_lshlrev_b32 v100, 4, v0')
        a('v_add_u32 v101, 7168, v100')
        a('v_min_u32 v101, code_end-A_pc-16, v101')
        a('v_min_u32 v100, code_end-A_pc-16, v100')
        a('global_load_dwordx4 v[104:107], v100, s[60:61]')
        a('global_load_dwordx4 v[108:111], v101, s[60:61]')
    a(f's_cmp_ge_u32 s2, {A_GRID}')
    a('s_cbranch_scc1 A_done')
    a('v_lshrrev_b32 v1, 6, v0')
    a('v_lshlrev_b32 v3, 4, v0')
    a('v_readfirstlane_b32 s3, v1')
    a('v_and_b32 v1, 63, v0')
    a(f's_cmp_ge_u32 s2, {A_PREP0}')
    a('s_cbranch_scc1 A_prep')
    a(f's_cmp_ge_u32 s2, {A_GEMM0}')
    a('s_cbranch_scc1 A_gemm')
    a('v_cmp_gt_u32 vcc, 400, v0')
    a('s_and_b64 exec, exec, vcc')
    a('v_lshlrev_b32 v2, 3, v0')
    a(f's_mul_i32 s44, s2, {CH*4}')
    a(f's_mul_i32 s45, s2, {CH*2}')
    a(f's_add_u32 s50, s44, {CH*2}')
    a(f's_add_u32 s51, s45, {CH}')
    a('s_waitcnt lgkmcnt(0)')
    srd(a, 24, 10, 0, E*4)
    a('buffer_load_dwordx4 v[8:11], v3, s[24:27], s44 offen')
    a('buffer_load_dwordx4 v[12:15], v3, s[24:27], s50 offen')
    srd(a, 28, 8, 0, E*4)
    srd(a, 32, 6, 0, E*2)
    def srcloads():
        a('buffer_load_dwordx4 v[16:19], v3, s[28:31], s44 offen')
        a('buffer_load_dwordx4 v[20:23], v3, s[28:31], s50 offen')
        a('buffer_load_dwordx2 v[24:25], v2, s[32:35], s45 offen')
        a('buffer_load_dwordx2 v[26:27], v2, s[32:35], s51 offen')
    if not LATESRC: srcloads()
    stamp(a, 0, 70)
    if DEBUG:
        a('v_writelane_b32 v70, s94, 8')
        a('v_writelane_b32 v70, s62, 9')
        a('v_writelane_b32 v70, s63, 10')
    a('v_lshlrev_b32 v5, 2, v0')
    a('v_mov_b32 v4, 0')
    a('v_mov_b32 v6, 2048')
    a('v_cmp_gt_u32 vcc, 256, v0')
    a('s_nop 1')
    a('v_cndmask_b32 v5, v6, v5, vcc')
    a('ds_write_b32 v5, v4')
    if TLBW:
        srd(a, 36, 20, 0, 0xC00000)
        a('v_lshlrev_b32 v7, 20, v1')
        a('buffer_load_dword v71, v7, s[36:39], 0 offen')
    srd(a, 36, 20, WS_REC, REC_BYTES)
    srd(a, 40, 20, WS_TAB, TAB_BYTES)
    a('s_mov_b32 s46, 42800')
    a('s_mov_b32 s47, -196')
    a('s_mov_b32 s48, 0xffff0000')
    a('s_mov_b32 s52, 0x7fff7fff')
    a('v_mov_b32 v4, 1')
    a('s_waitcnt lgkmcnt(0)')
    a('s_barrier')
    for hf in range(2):
        if LATESRC:
            a(f's_waitcnt vmcnt({1 if hf == 0 else 4})')
            if hf == 0: srcloads()
        else:
            a(f's_waitcnt vmcnt({5-hf+TLBW})')
        if hf == 0: stamp(a, 1, 70)
        for j in range(4*hf, 4*hf+4):
            a(f'v_mul_u32_u24 v{28+j}, s46, v{8+j}')
            a(f'v_lshrrev_b32 v{28+j}, 22, v{28+j}')
            a(f'v_lshlrev_b32 v{28+j}, 2, v{28+j}')
            a(f'ds_add_rtn_u32 v{56+j}, v{28+j}, v4')
    for j in range(8):
        a(f'v_lshlrev_b32 v{8+j}, 3, v{8+j}')
        a(f'v_mad_i32_i24 v{41+2*j}, v{28+j}, s47, v{8+j}')
    a('s_mov_b64 s[22:23], exec')
    a('s_waitcnt lgkmcnt(0)')
    a('s_barrier')
    stamp(a, 2, 70)
    a('s_mov_b64 exec, -1')
    a('v_lshlrev_b32 v5, 4, v1')
    a('ds_read_b128 v[8:11], v5')
    a('s_waitcnt lgkmcnt(0)')
    a('v_add_u32 v13, v8, v9')
    a('v_add_u32 v14, v13, v10')
    a('v_add_u32 v15, v14, v11')
    a('v_mov_b32 v72, v15')
    wave_scan(a, 72)
    a('v_sub_u32 v12, v72, v15')
    a('v_add_u32 v15, v12, v14')
    a('v_add_u32 v14, v12, v13')
    a('v_add_u32 v13, v12, v8')
    for k in range(4):
        a(f'v_lshlrev_b32 v{72+k}, 3, v{12+k}')
    a('ds_write_b128 v5, v[72:75] offset:1024')
    for k in range(4):
        a(f'v_lshl_or_b32 v{64+k}, v{8+k}, 16, v{12+k}')
    a('s_mov_b64 exec, s[22:23]')
    a('s_waitcnt lgkmcnt(0)')
    for j in range(8):
        a(f'ds_read_b32 v{8+j}, v{28+j} offset:1024')
    a('s_waitcnt vmcnt(0)')
    for j in range(8):
        if j % 2 == 0:
            a(f'v_lshlrev_b32 v{40+2*j}, 16, v{24+j//2}')
        else:
            a(f'v_and_b32 v{40+2*j}, s48, v{24+j//2}')
        a(f'v_lshl_or_b32 v{41+2*j}, v{41+2*j}, 16, v{16+j}')
    for j in range(4):
        a(f'v_and_b32 v{24+j}, s52, v{24+j}')
    a('v_pk_max_u16 v24, v24, v25')
    a('v_pk_max_u16 v26, v26, v27')
    a('v_pk_max_u16 v24, v24, v26')
    a('v_lshrrev_b32 v25, 16, v24')
    a('v_and_b32 v24, 0xffff, v24')
    a('v_max_u32 v24, v24, v25')
    a(f'v_cmp_lt_u32 vcc, {hex(LIM_E_BF16)}, v24')
    a('s_and_saveexec_b64 s[54:55], vcc')
    a('s_cbranch_execz A_eok')
    a('v_mov_b32 v25, 0x80000000')
    a('ds_write_b32 v6, v25')
    a.lab('A_eok')
    a('s_mov_b64 exec, s[54:55]')
    a('s_waitcnt lgkmcnt(0)')
    for j in range(8):
        a(f'v_lshl_add_u32 v{8+j}, v{56+j}, 3, v{8+j}')
    stamp(a, 3, 70)
    for j in range(8):
        a(f'ds_write_b64 v{8+j}, {pr(40+2*j)} offset:{A_STAGE}')
    a('s_waitcnt lgkmcnt(0)')
    a('s_barrier')
    stamp(a, 4, 70)
    a('s_cmp_lg_u32 s3, 6')
    a('s_cbranch_scc1 A_notab')
    a('s_mov_b64 exec, -1')
    a('v_mov_b32 v6, 2048')
    a('ds_read_b32 v7, v6')
    a('s_lshl_b32 s49, s2, 10')
    a('s_waitcnt lgkmcnt(0)')
    for k in range(4):
        a(f'v_or_b32 v{64+k}, v{64+k}, v7')
    a(f'buffer_store_dwordx4 v[64:67], v5, s[40:43], s49 offen {ST_A}')
    a('s_mov_b64 exec, s[22:23]')
    a.lab('A_notab')
    for j in range(4):
        a(f'ds_read_b128 {q4(8+4*j)}, v3 offset:{A_STAGE+6400*j}')
    a(f's_mul_i32 s49, s2, {CH*8}')
    for j in range(4):
        a(f's_waitcnt lgkmcnt({3-j})')
        a(f'buffer_store_dwordx4 {q4(8+4*j)}, v3, s[36:39], s49 offen {ST_A}')
        if j < 3:
            a(f's_add_u32 s49, s49, 6400')
    stamp(a, 5, 70)
    stamp_out(a, 0, 20, 70)
    a('s_endpgm')

    a.lab('A_gemm')
    a(f's_sub_u32 s22, s2, {A_GEMM0}')
    a('s_mul_i32 s48, s22, 12800')
    a('s_add_u32 s49, s48, 12800')
    a('s_lshl_b32 s22, s22, 2')
    a('s_add_u32 s22, s22, s3')
    a('v_and_b32 v2, 31, v1')
    a('v_lshrrev_b32 v3, 5, v1')
    a('v_lshlrev_b32 v4, 2, v2')
    a('v_lshl_add_u32 v7, v3, 9, v4')
    a('v_lshl_add_u32 v4, v3, 10, v4')
    a(f'v_add_u32 v4, {A_W1}, v4')
    a('v_lshlrev_b32 v5, 4, v0')
    a('s_lshl_b32 s23, s3, 12')
    a('s_add_u32 s23, s23, s48')
    a('v_lshlrev_b32 v6, 4, v1')
    a('s_lshl_b32 s42, s3, 12')
    a('v_add_u32 v7, s42, v7')
    a('v_lshrrev_b32 v8, 3, v1')
    a('v_and_b32 v9, 7, v1')
    a('v_xor_b32 v10, v9, v8')
    a('v_lshlrev_b32 v10, 4, v10')
    a('v_lshl_add_u32 v10, v8, 7, v10')
    a('v_add_u32 v10, s42, v10')
    a('v_xor_b32 v9, v9, v3')
    a('v_lshlrev_b32 v8, 7, v2')
    a('v_add_u32 v8, s42, v8')
    for ks in range(4):
        a(f'v_xor_b32 v{11+ks}, {2*ks}, v9')
        a(f'v_lshl_add_u32 v{11+ks}, v{11+ks}, 4, v8')
    a('s_waitcnt lgkmcnt(0)')
    srd(a, 24, 4, 0, N*128)
    a('s_mov_b32 s26, s49')
    srd(a, 28, 12, 0, 64*128)
    a('s_movk_i32 s43, 7168')
    a('buffer_load_dwordx4 v[16:19], v5, s[28:31], 0 offen')
    a('buffer_load_dwordx4 v[20:23], v5, s[28:31], s43 offen')
    for j in range(4):
        a(f'buffer_load_dwordx4 {q4(48+4*j)}, v6, s[24:27], s23 offen offset:{1024*j}')
    stamp(a, 0, 15)
    if DEBUG:
        a('v_writelane_b32 v15, s94, 8')
        a('v_writelane_b32 v15, s62, 9')
        a('v_writelane_b32 v15, s63, 10')
    srd(a, 32, 20, WS_PT, N*128)
    a('s_mov_b32 s34, s49')
    srd(a, 44, 20, WS_PF, PF_BYTES)
    a('s_mov_b32 s36, 0x05040100')
    a('s_mov_b32 s37, 0x07060302')
    a(f's_mov_b32 s38, {hex(f32(-LOG2E))}')
    a('s_mov_b32 s39, 0x7fffffff')
    a('s_mov_b32 s40, 0x7fff0000')
    a(f's_mov_b32 s41, {hex(f32(LIM_P))}')
    a('s_waitcnt vmcnt(4)')
    a(f'ds_write_b128 v5, v[16:19] offset:{A_W1}')
    a('s_cmp_lg_u32 s3, 0')
    a('s_cbranch_scc1 A_w1done')
    a(f'ds_write_b128 v5, v[20:23] offset:{A_W1+7168}')
    a.lab('A_w1done')
    a('s_waitcnt lgkmcnt(0)')
    a('s_barrier')
    a('s_cmp_ge_u32 s3, 4')
    a('s_cbranch_scc1 A_done')
    for ks in range(4):
        if ks: a('v_add_u32 v4, 2048, v4')
        for jj in range(4):
            a(f'ds_read2_b32 {pr(16+8*ks+2*jj)}, v4 offset0:{64*jj} offset1:{64*jj+32}')
    a('s_waitcnt vmcnt(0)')
    for j in range(4):
        a(f'ds_write_b128 v10, {q4(48+4*j)} offset:{1024*j}')
    a('s_waitcnt lgkmcnt(0)')
    for ks in range(4):
        a(f'ds_read_b128 {q4(48+4*ks)}, v{11+ks}')
    stamp(a, 1, 15)
    for ks in range(4):
        for jj in range(4):
            r0 = 16+8*ks+2*jj
            a(f'v_perm_b32 v{64+4*ks+jj}, v{r0+1}, v{r0}, s36')
            a(f'v_perm_b32 v{80+4*ks+jj}, v{r0+1}, v{r0}, s37')
    a('s_waitcnt lgkmcnt(0)')
    for ks in range(4):
        c0 = '0' if ks == 0 else 'v[96:111]'
        c1 = '0' if ks == 0 else 'v[112:127]'
        a(f'v_mfma_f32_32x32x16_bf16 v[96:111], {q4(48+4*ks)}, {q4(64+4*ks)}, {c0}')
        a(f'v_mfma_f32_32x32x16_bf16 v[112:127], {q4(48+4*ks)}, {q4(80+4*ks)}, {c1}')
    a('s_nop 15')
    stamp(a, 2, 15)
    for r in range(16):
        a(f'v_mul_f32 v{96+r}, s38, v{96+r}')
    for r in range(16):
        a(f'v_mul_f32 v{112+r}, s38, v{112+r}')
    for r in range(0, 16, 2):
        a(f'v_cvt_pk_bf16_f32 v{16+r}, v{96+r}, v{97+r}')
    for r in range(0, 16, 2):
        a(f'v_lshrrev_b32 v{17+r}, 16, v{16+r}')
        a(f'v_and_b32 v{16+r}, 0xffff, v{16+r}')
    for r in range(16):
        a(f'v_and_b32 v{32+r}, s39, v{112+r}')
    for r in range(16):
        a(f'v_add_u32 v{32+r}, 0x8000, v{32+r}')
    for r in range(16):
        a(f'v_sub_u32 v{32+r}, v{32+r}, v{16+r} clamp')
    for r in range(16):
        a(f'v_and_or_b32 v{32+r}, v{32+r}, s40, v{16+r}')
    for r in range(16):
        a(f'v_bfi_b32 v{32+r}, s39, v{32+r}, v{112+r}')
        a(f'ds_write_b32 v7, v{32+r} offset:{((r&3)+8*(r>>2))*128}')
    a('v_add_u32 v8, s42, v6')
    a('s_waitcnt lgkmcnt(0)')
    for j in range(4):
        a(f'ds_read_b128 {q4(48+4*j)}, v8 offset:{1024*j}')
    a('v_max_f32 v64, |v96|, |v97|')
    for r in range(2, 32, 2):
        a(f'v_max3_f32 v64, v64, |v{96+r}|, |v{97+r}|')
    a('v_cmp_lt_f32 vcc, s41, v64')
    for j in range(4):
        a(f's_waitcnt lgkmcnt({3-j})')
        a(f'buffer_store_dwordx4 {q4(48+4*j)}, v6, s[32:35], s23 offen offset:{1024*j} {ST_A}')
    a('s_lshl_b32 s43, s22, 2')
    a('v_mov_b32 v66, 0')
    a('s_cmp_lg_u64 vcc, 0')
    a('s_cselect_b32 s42, 1, 0')
    a('v_mov_b32 v65, s42')
    a('s_mov_b64 exec, 1')
    a(f'buffer_store_dword v65, v66, s[44:47], s43 offen {ST_A}')
    stamp(a, 5, 15)
    stamp_out(a, 0, 20, 15)
    a('s_endpgm')

    a.lab('A_prep')
    a(f's_sub_u32 s50, s2, {A_PREP0}')
    a('s_mul_i32 s50, s50, 7')
    a('s_add_u32 s50, s50, s3')
    a('s_cmp_gt_u32 s50, 24')
    a('s_cbranch_scc1 A_done')
    a('s_lshr_b32 s22, s50, 3')
    a('s_bfe_u32 s23, s50, 0x10002')
    a('s_and_b32 s24, s50, 3')
    a('v_and_b32 v2, 31, v1')
    a('v_lshrrev_b32 v3, 5, v1')
    a('v_bfe_u32 v4, v2, 2, 1')
    a('v_and_b32 v5, 3, v2')
    a('v_lshrrev_b32 v6, 3, v2')
    a('v_lshl_add_u32 v5, v6, 2, v5')
    a('s_waitcnt lgkmcnt(0)')
    srd(a, 32, 20, WS_WF, WF_BYTES)
    a('s_cmp_eq_u32 s50, 24')
    a('s_cbranch_scc1 A_prep_w3')
    a('s_cmp_lg_u32 s22, 0')
    a('s_cbranch_scc1 A_prep_u')
    srd(a, 28, 12, 0, 129*128)
    a('v_lshrrev_b32 v6, 3, v5')
    a('v_lshl_add_u32 v6, v4, 2, v6')
    a('s_lshl_b32 s25, s23, 1')
    a('v_add_u32 v6, s25, v6')
    a('v_and_b32 v7, 7, v5')
    a('v_lshlrev_b32 v8, 1, v7')
    a('v_add_u32 v9, 1, v8')
    a('v_subrev_u32 v8, 8, v8')
    a('v_cmp_gt_u32 vcc, 4, v7')
    a('s_nop 1')
    a('v_cndmask_b32 v8, v8, v9, vcc')
    a('v_lshl_add_u32 v8, v6, 3, v8')
    a('v_lshlrev_b32 v8, 1, v8')
    a('v_lshl_add_u32 v8, v3, 10, v8')
    a('s_lshl_b32 s26, s24, 11')
    a('s_add_u32 s26, s26, 8192')
    for j in range(8):
        a(f'buffer_load_ushort v{32+j}, v8, s[28:31], s26 offen offset:{128*j}')
    a('s_branch A_prep_st')
    a.lab('A_prep_u')
    srd(a, 28, 14, 0, 128*128)
    a('v_lshl_add_u32 v8, v4, 4, v5')
    a('s_lshl_b32 s25, s23, 5')
    a('v_add_u32 v8, s25, v8')
    a('v_lshlrev_b32 v8, 1, v8')
    a('s_cmp_lg_u32 s22, 1')
    a('s_cbranch_scc1 A_prep_agg')
    a('v_lshl_add_u32 v8, v3, 10, v8')
    a('s_lshl_b32 s26, s24, 11')
    for j in range(8):
        a(f'buffer_load_ushort v{32+j}, v8, s[28:31], s26 offen offset:{128*j}')
    a('s_branch A_prep_st')
    a.lab('A_prep_w3')
    srd(a, 44, 20, WS_PT + N*128, 128)
    a('v_mov_b32 v20, 0x71497149')
    a('v_mov_b32 v21, v20')
    a('v_mov_b32 v22, v20')
    a('v_mov_b32 v23, v20')
    a('v_lshlrev_b32 v24, 4, v1')
    a('buffer_store_dwordx4 v[20:23], v24, s[44:47], 0 offen')
    srd(a, 36, 12, 0, 129*128)
    a('v_and_b32 v10, 7, v1')
    a('v_lshlrev_b32 v11, 4, v10')
    a('s_movk_i32 s27, 0x4000')
    a('buffer_load_dwordx4 v[44:47], v11, s[36:39], s27 offen')
    a(f's_mov_b32 s40, {hex(f32(-LOG2E))}')
    a('s_waitcnt vmcnt(0)')
    for i in range(4):
        a(f'v_and_b32 v{48+i}, 0xffff0000, v{44+i}')
        a(f'v_lshlrev_b32 v{52+i}, 16, v{44+i}')
    for i in range(8):
        a(f'v_mul_f32 v{48+i}, s40, v{48+i}')
    a('v_max3_f32 v44, |v48|, |v49|, |v50|')
    a('v_max3_f32 v44, v44, |v51|, |v52|')
    a('v_max3_f32 v44, v44, |v53|, |v54|')
    a('v_max_f32 v44, v44, |v55|')
    a(f'v_cmp_lt_f32 vcc, {LIM_W}, v44')
    a('v_lshlrev_b32 v11, 5, v10')
    a('s_cmp_lg_u64 vcc, 0')
    a('s_cselect_b32 s41, 1, 0')
    a('v_mov_b32 v45, s41')
    a('v_mov_b32 v46, 0')
    a(f's_movk_i32 s27, {WF_W3}')
    a('buffer_store_dwordx4 v[48:51], v11, s[32:35], s27 offen')
    a('buffer_store_dwordx4 v[52:55], v11, s[32:35], s27 offen offset:16')
    a('buffer_store_dword v45, v46, s[32:35], s27 offen offset:256')
    a('s_endpgm')
    a.lab('A_prep_agg')
    a('v_lshl_add_u32 v8, v3, 12, v8')
    a('s_lshl_b32 s26, s24, 2')
    a('s_add_u32 s27, s26, 1')
    a('s_sub_u32 s26, s26, 8')
    a('s_cmp_lt_u32 s24, 2')
    a('s_cselect_b32 s26, s27, s26')
    a('s_add_u32 s26, s26, 64')
    a('s_lshl_b32 s26, s26, 7')
    for j in range(8):
        a(f'buffer_load_ushort v{32+j}, v8, s[28:31], s26 offen offset:{(j&3)*1024+(j>>2)*256}')
    a.lab('A_prep_st')
    a('s_lshl_b32 s25, s50, 10')
    a('v_lshlrev_b32 v9, 4, v1')
    a('s_waitcnt vmcnt(0)')
    for j in range(4):
        a(f'v_lshl_or_b32 v{16+j}, v{33+2*j}, 16, v{32+2*j}')
    a('buffer_store_dwordx4 v[16:19], v9, s[32:35], s25 offen')
    a.lab('A_done')
    a('s_endpgm')

RS = 288
NPCAP = 1440
L_CNT = 0
L_BASE = 1024
L_MAX = 2048
L_FLAG = 2052
L_WORK = 2056
L_TOT = 2060
L_REC = 2064
L_Q = L_REC + NPCAP*32
L_AGG = L_Q + NB*RS
L_X = L_AGG + NB*RS*2
L_WU = L_X + 13*1024
B_LDS = L_WU + 16384
NPF = 0
for x in (L_REC, L_Q, L_AGG, L_X, L_WU): assert x % 16 == 0
assert B_LDS <= 163840 and L_Q + 128 < 65536

def kernel_b(a):
    a.raw('.globl mpnn_main_kernel')
    a.raw('.p2align 8')
    a.raw('.type mpnn_main_kernel,@function')
    a.lab('mpnn_main_kernel')
    a('s_load_dwordx2 s[80:81], s[0:1], 64')
    a('s_load_dwordx16 s[64:79], s[0:1], 0')
    if CPF:
        a('s_getpc_b64 s[60:61]')
        a.lab('B_pc')
        a('v_lshlrev_b32 v100, 4, v0')
        a('v_min_u32 v100, code_end-B_pc-16, v100')
        a('global_load_dwordx4 v[104:107], v100, s[60:61]')
    a(f's_cmp_ge_u32 s2, {NBK}')
    a('s_cbranch_scc1 B_done')
    a('v_lshrrev_b32 v1, 6, v0')
    a('v_lshrrev_b32 v4, 3, v0')
    a('v_readfirstlane_b32 s3, v1')
    a('v_lshlrev_b32 v12, 10, v4')
    if XMAP:
        a('s_and_b32 s85, s2, 7')
        a('s_lshl_b32 s85, s85, 5')
        a('s_lshr_b32 s86, s2, 3')
        a('s_add_u32 s85, s85, s86')
    else:
        a('s_mov_b32 s85, s2')
        a('s_lshr_b32 s86, s2, 3')
    a('s_lshl_b32 s32, s85, 2')
    a('s_add_u32 s33, s32, 0x20000')
    a('v_and_b32 v1, 63, v0')
    a('v_and_b32 v3, 7, v0')
    a('v_lshlrev_b32 v2, 4, v3')
    a('s_waitcnt lgkmcnt(0)')
    ws = 80
    srd(a, 4, ws, WS_TAB, TAB_BYTES)
    a('buffer_load_dword v6, v12, s[4:7], s32 offen')
    a('buffer_load_dword v7, v12, s[4:7], s33 offen')
    stamp(a, 0)
    if TLBW:
        srd(a, 8, ws, 0, 0xC00000)
        a('v_lshlrev_b32 v13, 20, v1')
        a('buffer_load_dword v112, v13, s[8:11], 0 offen')
        srd(a, 24, 76, 0, N*128)
        a('buffer_load_dword v113, v13, s[24:27], 0 offen')
    srd(a, 8, ws, WS_REC, REC_BYTES)
    srd(a, 16, 64, 0, N*128)
    srd(a, 20, ws, WS_WF, WF_BYTES)
    a(f's_add_u32 s28, s80, {hex(WS_WF+WF_W3+256)}')
    a('s_addc_u32 s29, s81, 0')
    a('s_load_dword s90, s[28:29], 0')
    srd(a, 12, ws, WS_PT, PT_BYTES)
    srd(a, 24, 76, 0, N*128)
    a('s_mov_b64 s[88:89], s[80:81]')
    a('s_and_b32 s34, s3, 1')
    a('s_bfe_u32 s35, s3, 0x20001')
    a(f's_mul_i32 s37, s85, {NB}')
    a('s_lshl_b32 s38, s35, 5')
    a('v_lshlrev_b32 v11, 4, v1')
    a('v_and_b32 v8, 31, v1')
    a('v_add_u32 v8, s38, v8')
    a('v_lshrrev_b32 v9, 5, v1')
    a('v_lshlrev_b32 v3, 3, v3')
    a(f'v_add_u32 v3, {L_AGG}, v3')
    a('s_movk_i32 s42, 128')
    a('s_mov_b32 s43, 0xffff0000')
    a('s_mov_b32 s44, 1.0')
    a('s_mov_b32 s45, 1.0')
    a('s_mov_b32 s46, 0x3f80')
    a(f's_mov_b32 s47, {hex(f32(-LOG2E))}')
    a(f's_mov_b32 s48, {hex(f32(-LN2))}')
    a(f's_mov_b32 s49, {hex(f32(-LN2))}')
    a('s_mov_b32 s50, 0')
    a('s_movk_i32 s84, 72')
    a('s_mov_b32 s86, 0')
    a('v_lshlrev_b32 v12, 4, v0')
    for r in range(16, 20): a(f'v_mov_b32 v{r}, 0')
    a(f'v_add_u32 v13, {L_AGG}, v12')
    for j in range(3):
        a(f'ds_write_b128 v13, v[16:19] offset:{16384*j}')
    a(f'v_cmp_gt_u32 vcc, {NB*RS*2//16-3072}, v0')
    a('s_and_saveexec_b64 s[52:53], vcc')
    a('ds_write_b128 v13, v[16:19] offset:49152')
    a('s_mov_b64 exec, s[52:53]')
    a('s_mov_b32 s87, 32')
    a.lab('B_batch')
    for r in range(16, 20): a(f'v_mov_b32 v{r}, 0')
    a('v_lshlrev_b32 v12, 4, v0')
    a(f'v_cmp_gt_u32 vcc, {L_REC//16}, v0')
    a('s_and_saveexec_b64 s[52:53], vcc')
    a('ds_write_b128 v12, v[16:19]')
    a('s_mov_b64 exec, s[52:53]')
    a('v_mov_b32 v20, 0')
    a(f'v_mov_b32 v21, {N}')
    a('v_mov_b32 v22, 0')
    a(f'v_mov_b32 v23, {N}')
    a(f'ds_write_b128 v12, v[20:23] offset:{L_REC}')
    a(f'ds_write_b128 v12, v[20:23] offset:{L_REC+16384}')
    a(f'v_cmp_gt_u32 vcc, {NPCAP*2-2048}, v0')
    a('s_and_saveexec_b64 s[52:53], vcc')
    a(f'ds_write_b128 v12, v[20:23] offset:{L_REC+32768}')
    a('s_mov_b64 exec, s[52:53]')
    a('v_and_b32 v14, 7, v0')
    a('v_lshlrev_b32 v14, 1, v14')
    a('v_add_u32 v14, s50, v14')
    a(f's_movk_i32 s51, {CH}')
    a('v_mul_u32_u24 v15, s51, v4')
    a('v_add_u32 v15, v15, v14')
    a('v_mov_b32 v25, 0x7fffff00')
    a('s_waitcnt vmcnt(0)')
    stamp(a, 1)
    for rd in range(2):
        T = 6+rd
        a(f'v_bfe_u32 v{20+rd}, v{T}, 16, 13')
        a(f'v_and_b32 v{22+rd}, 0xffff, v{T}')
        a(f'v_add_u32 v{22+rd}, v{22+rd}, v15')
        if rd == 1:
            a(f'v_add_u32 v{22+rd}, {128*CH}, v{22+rd}')
        a(f'v_lshlrev_b32 v{22+rd}, 3, v{22+rd}')
        a(f'v_sub_u32 v{16+rd}, v{20+rd}, v14')
    for rd in range(2):
        for ld in range(2):
            for e in range(2):
                s = rd*4+ld*2+e
                a(f'v_cmp_lt_i32 s[{52+2*s}:{53+2*s}], {ld*16+e}, v{16+rd}')
    a('s_cmp_eq_u32 s87, 32')
    a('s_cbranch_scc1 B_step32')
    for s in (2, 3, 6, 7):
        a(f's_mov_b64 s[{52+2*s}:{53+2*s}], 0')
    a.lab('B_step32')
    order = [(0, 0), (1, 0), (0, 1), (1, 1)]
    for rd, ld in order:
        s = rd*4+ld*2
        r = 96+(rd*2+ld)*4
        a(f'v_cndmask_b32 v{26+rd*2+ld}, v25, v{22+rd}, s[{52+2*s}:{53+2*s}]')
        a(f'buffer_load_dwordx4 {q4(r)}, v{26+rd*2+ld}, s[8:11], 0 offen offset:{128*ld}')
    a('s_cmp_lg_u32 s86, 0')
    a('s_cbranch_scc1 B_noaux')
    a('s_lshl_b32 s39, s37, 7')
    a('s_lshl_b32 s40, s3, 10')
    a('s_add_u32 s39, s39, s40')
    a('buffer_load_dwordx4 v[32:35], v11, s[16:19], s39 offen')
    a(f's_add_u32 m0, s40, {L_WU}')
    a('s_add_u32 s40, s40, 8192')
    a('buffer_load_dwordx4 v11, s[20:23], s40 offen lds')
    a(f's_movk_i32 s41, {WF_W3}')
    a('v_lshlrev_b32 v18, 1, v2')
    a('buffer_load_dwordx4 v[68:71], v18, s[20:23], s41 offen')
    a('buffer_load_dwordx4 v[72:75], v18, s[20:23], s41 offen offset:16')
    srd(a, 28, 88, WS_PF, PF_BYTES)
    a('v_lshlrev_b32 v18, 2, v0')
    a('buffer_load_dword v44, v18, s[28:31], 0 offen')
    a('s_cmp_ge_u32 s3, 8')
    a('s_cbranch_scc1 B_noaux')
    a('s_lshl_b32 s39, s34, 12')
    for ks in range(4):
        a(f'buffer_load_dwordx4 {q4(48+4*ks)}, v11, s[20:23], s39 offen offset:{1024*ks}')
    a.lab('B_noaux')
    a('s_waitcnt lgkmcnt(0)')
    a('s_barrier')
    a('v_max_i32 v16, v16, v17')
    a('v_or_b32 v17, v6, v7')
    a('v_cmp_lt_i32 vcc, s87, v16')
    a('v_cmp_gt_i32 s[68:69], 0, v17')
    a(f'v_mov_b32 v24, {L_MAX}')
    a('v_mov_b32 v16, 1')
    a('s_cbranch_vccz B_nomore')
    a('ds_write_b32 v24, v16')
    a.lab('B_nomore')
    a('s_cmp_eq_u64 s[68:69], 0')
    a('s_cbranch_scc1 B_noflag')
    a('ds_write_b32 v24, v16 offset:4')
    a.lab('B_noflag')
    a('v_mov_b32 v24, 8')
    lc = [0]
    def ranks(extra):
        for n, (rd, ld) in enumerate(order):
            a(f's_waitcnt vmcnt({3-n+extra})')
            for e in range(2):
                s = rd*4+ld*2+e
                r = 96+(rd*2+ld)*4+2*e
                a(f's_mov_b64 exec, s[{52+2*s}:{53+2*s}]')
                if ld:
                    lc[0] += 1
                    a(f's_cbranch_execz B_sk{lc[0]}')
                a(f'v_lshrrev_b32 v{16+s}, 16, v{r+1}') if False else None
                a(f'v_lshrrev_b32 v{112+s}, 16, v{r+1}')
                a(f'ds_add_rtn_u32 v{36+s}, v{112+s}, v24 offset:{L_CNT}')
                if ld: a.lab(f'B_sk{lc[0]}')
        a('s_mov_b64 exec, -1')
    a('s_cmp_lg_u32 s86, 0')
    a('s_cbranch_scc1 B_rk0')
    a('s_cmp_ge_u32 s3, 8')
    a('s_cbranch_scc1 B_rk3')
    ranks(9)
    a('s_waitcnt vmcnt(8)')
    a('s_branch B_rkx')
    a.lab('B_rk3')
    ranks(5)
    a('s_waitcnt vmcnt(4)')
    a.lab('B_rkx')
    stamp(a, 7)
    a('v_lshrrev_b32 v16, 3, v1')
    a('v_and_b32 v17, 7, v1')
    a('v_xor_b32 v17, v17, v16')
    a('v_lshlrev_b32 v17, 4, v17')
    a('v_lshl_add_u32 v17, v16, 7, v17')
    a('s_lshl_b32 s51, s3, 10')
    a(f's_add_u32 s51, s51, {L_X}')
    a('v_add_u32 v17, s51, v17')
    a('s_cmp_ge_u32 s3, 13')
    a('s_cbranch_scc1 B_rkdone')
    a('ds_write_b128 v17, v[32:35]')
    a('s_branch B_rkdone')
    a.lab('B_rk0')
    ranks(0)
    a.lab('B_rkdone')
    a('s_waitcnt lgkmcnt(0)')
    a('s_barrier')
    stamp(a, 2)
    a('s_cmp_ge_u32 s3, 8')
    a('s_cbranch_scc1 B_scan')
    a('s_cmp_lg_u32 s86, 0')
    a('s_cbranch_scc1 B_mid2')
    a('v_and_b32 v46, 7, v1')
    a('v_xor_b32 v46, v46, v9')
    a('v_lshlrev_b32 v45, 7, v8')
    a(f'v_add_u32 v45, {L_X}, v45')
    for ks in range(4):
        a(f'v_xor_b32 v47, {2*ks}, v46')
        a(f'v_lshl_add_u32 v{64+ks}, v47, 4, v45')
        a(f'ds_read_b128 {q4(76+4*ks)}, v{64+ks}')
    a(f's_movk_i32 s68, {RS}')
    a('v_mul_u32_u24 v45, s68, v8')
    a('v_lshl_add_u32 v45, v9, 6, v45')
    a('s_lshl_b32 s68, s34, 5')
    a('v_add_u32 v45, s68, v45')
    a(f'v_mov_b32 v46, {NB}')
    a('v_cmp_gt_u32 s[68:69], v46, v8')
    a('s_waitcnt vmcnt(0) lgkmcnt(0)')
    for ks in range(4):
        c = '0' if ks == 0 else 'v[16:31]'
        a(f'v_mfma_f32_32x32x16_bf16 v[16:31], {q4(48+4*ks)}, {q4(76+4*ks)}, {c}')
    a('v_cmp_ne_u32 s[70:71], 0, v44')
    a('s_nop 10')
    for r in range(16):
        a(f'v_mul_f32 v{16+r}, s47, v{16+r}')
    a('s_mov_b64 exec, s[68:69]')
    for o in range(2):
        a(f'ds_write_b128 v45, {q4(16+8*o)} offset:{L_Q+16*o}')
        a(f'ds_write_b128 v45, {q4(20+8*o)} offset:{L_Q+128+16*o}')
    a('v_max_f32 v46, |v16|, |v17|')
    for r in range(2, 16, 2):
        a(f'v_max3_f32 v46, v46, |v{16+r}|, |v{17+r}|')
    a(f'v_cmp_lt_f32 vcc, {hex(f32(LIM_Q))}, v46')
    a('s_mov_b64 exec, -1')
    a('s_or_b64 vcc, vcc, s[70:71]')
    a('s_branch B_mid1')
    a.lab('B_scan')
    a('s_cmp_lg_u32 s3, 8')
    a('s_cbranch_scc1 B_mid')
    a(f'ds_read_b128 v[16:19], v11 offset:{L_CNT}')
    a('s_waitcnt lgkmcnt(0)')
    for k in range(2):
        a(f'v_and_b32 v{20+k}, 24, v{16+2*k}')
        a(f'v_min_u32 v{20+k}, 1, v{20+k}')
        a(f'v_lshrrev_b32 v{22+k}, 5, v{16+2*k}')
        a(f'v_lshl_or_b32 v{20+k}, v{20+k}, 16, v{22+k}')
    a('v_add_u32 v24, v20, v21')
    a('v_mov_b32 v25, v24')
    wave_scan(a, 25)
    a('v_sub_u32 v24, v25, v24')
    a('v_readlane_b32 s70, v25, 63')
    a('v_add_u32 v25, v24, v20')
    a('s_and_b32 s72, s70, 0xffff')
    for k in range(2):
        a(f'v_and_b32 v{28+k}, 0xffff, v{24+k}')
        a(f'v_lshrrev_b32 v{30+k}, 16, v{24+k}')
        a(f'v_add_u32 v{30+k}, s72, v{30+k}')
        a(f'v_sub_u32 v{81+2*k}, v{30+k}, v{22+k}')
        a(f'v_lshlrev_b32 v{81+2*k}, 21, v{81+2*k}')
        a(f'v_lshl_or_b32 v{80+2*k}, v{28+k}, 5, v{81+2*k}')
        a(f'v_lshlrev_b32 v{81+2*k}, 5, v{22+k}')
    a(f'ds_write_b128 v11, v[80:83] offset:{L_BASE}')
    a('s_mov_b64 exec, 1')
    a(f'v_mov_b32 v24, {L_TOT}')
    a('v_mov_b32 v25, s70')
    a('ds_write_b32 v24, v25')
    a('s_mov_b64 exec, -1')
    a.lab('B_mid')
    a('s_cmp_lg_u32 s86, 0')
    a('s_cbranch_scc1 B_mid2')
    a('s_waitcnt vmcnt(0)')
    a('v_cmp_ne_u32 vcc, 0, v44')
    a.lab('B_mid1')
    a(f'v_mov_b32 v24, {L_FLAG}')
    a('v_mov_b32 v16, 1')
    a('s_nop 2')
    a('s_cbranch_vccz B_mid2')
    a('ds_write_b32 v24, v16')
    a.lab('B_mid2')
    a('s_mov_b32 s86, 1')
    a('s_waitcnt lgkmcnt(0)')
    a('s_barrier')
    stamp(a, 6)
    a(f'v_mov_b32 v24, {L_MAX}')
    a('ds_read_b128 v[16:19], v24')
    for s in (0, 1, 4, 5, 2, 3, 6, 7):
        a(f's_mov_b64 exec, s[{52+2*s}:{53+2*s}]')
        if s in (2, 3, 6, 7):
            lc[0] += 1
            a(f's_cbranch_execz B_sk{lc[0]}')
        a(f'ds_read_b64 {pr(76+2*s)}, v{112+s} offset:{L_BASE}')
        if s in (2, 3, 6, 7): a.lab(f'B_sk{lc[0]}')
    a('s_mov_b64 exec, -1')
    a('v_lshrrev_b32 v13, 3, v1')
    a(f'v_mov_b32 v14, {L_WORK}')
    a('v_mov_b32 v15, 1')
    a('s_waitcnt lgkmcnt(0)')
    a('v_readfirstlane_b32 s70, v19')
    a('v_readfirstlane_b32 s71, v16')
    a('v_readfirstlane_b32 s91, v17')
    a('s_nop 0')
    a('s_or_b32 s90, s90, s91')
    a('s_and_b32 s72, s70, 0xffff')
    a('s_lshr_b32 s73, s70, 16')
    a('s_add_u32 s73, s73, s72')
    a(f's_cmp_le_u32 s73, {NPCAP-8}')
    a('s_cbranch_scc1 B_capok')
    a('s_mov_b32 s87, 16')
    a('s_barrier')
    a('s_branch B_batch')
    a.lab('B_capok')
    def place(s):
        r = 96+(s//2)*4+2*(s % 2)
        a(f's_mov_b64 exec, s[{52+2*s}:{53+2*s}]')
        sk = s in (2, 3, 6, 7)
        if sk:
            lc[0] += 1
            a(f's_cbranch_execz B_sk{lc[0]}')
        a(f'v_cmp_lt_u32 vcc, v{36+s}, v{77+2*s}')
        a('s_nop 1')
        a(f'v_cndmask_b32_sdwa v{76+2*s}, v{76+2*s}, v{76+2*s}, vcc dst_sel:DWORD dst_unused:UNUSED_PAD src0_sel:WORD_1 src1_sel:WORD_0')
        a('s_nop 0')
        a(f'v_add_u32 v{36+s}, v{36+s}, v{76+2*s}')
        a(f'ds_write_b64 v{36+s}, {pr(r)} offset:{L_REC}')
        if sk: a.lab(f'B_sk{lc[0]}')
    for s in (0, 1, 4, 5, 2, 3, 6, 7): place(s)
    a('s_mov_b64 exec, -1')
    a('s_lshr_b32 s74, s72, 3')
    a('s_lshl_b32 s68, s74, 3')
    a('s_sub_u32 s75, s73, s68')
    a('s_add_u32 s75, s75, 7')
    a('s_lshr_b32 s75, s75, 3')
    a('s_add_u32 s75, s75, s74')
    a('s_cmp_lg_u32 s90, 0')
    a('s_cselect_b32 s82, 0, s74')
    if FORCE_PLAIN: a('s_mov_b32 s82, 0')
    a('v_mul_u32_u24 v12, s74, v13')
    a('v_lshlrev_b32 v12, 5, v12')
    a('v_lshlrev_b32 v13, 5, v13')
    a('s_waitcnt lgkmcnt(0)')
    a('s_barrier')
    stamp(a, 3)
    stampc(a, 8)
    a('s_mov_b32 s83, 0')
    if PRIO: a('s_setprio 3')
    RAW = 32; Q = 48; RCS = [56, 112]; IDX = 64; AGS = [66, 67]; Z = 76; T = 16; TMP = 108
    cnt = [0]
    def read_recs(sidx, st):
        n = cnt[0]; cnt[0] += 1
        a(f's_cmp_ge_u32 s{sidx}, s74')
        a(f's_cbranch_scc1 B_rrP{n}')
        a(f's_lshl_b32 s51, s{sidx}, 5')
        a(f'v_add_u32 v{TMP}, s51, v12')
        a(f's_branch B_rrX{n}')
        a.lab(f'B_rrP{n}')
        a(f's_min_u32 s79, s{sidx}, {NPCAP//8-1}')
        a(f's_lshl_b32 s51, s79, 8')
        a(f'v_add_u32 v{TMP}, s51, v13')
        a.lab(f'B_rrX{n}')
        a(f'ds_read_b128 {q4(RCS[st])}, v{TMP} offset:{L_REC}')
        a(f'ds_read_b128 {q4(RCS[st]+4)}, v{TMP} offset:{L_REC+16}')
    def fetch(st):
        RC = RCS[st]
        for k in range(4):
            a(f'v_mad_u32_u16 v{TMP+(k&1)}, v{RC+2*k+1}, s42, v2')
            a(f'buffer_load_dwordx4 {q4(RAW+4*k)}, v{TMP+(k&1)}, s[12:15], 0 offen')
        a(f'v_mad_u32_u16 v{TMP+2}, v{RC+1}, 36, v2 op_sel:[1,0,0,0]')
        a(f'ds_read_b128 {q4(Q)}, v{TMP+2} offset:{L_Q}')
        a(f'ds_read_b128 {q4(Q+4)}, v{TMP+2} offset:{L_Q+128}')
        a(f'v_mad_u32_u16 v{AGS[st]}, v{RC+1}, s84, v3 op_sel:[1,0,0,0]')
    def grab():
        a('s_mov_b64 exec, 1')
        a(f'ds_add_rtn_u32 v{IDX}, v14, v15')
        a('s_mov_b64 exec, -1')
    def zphase(st):
        for k in range(4):
            R = RAW+4*k; Zk = Z+8*k
            ep = RCS[st]+2*k
            sel = 'op_sel:[0,0,0] op_sel_hi:[0,1,1]'
            for p in range(4):
                a(f'v_pk_fma_f32 {pr(Zk+2*p)}, {pr(ep)}, {pr(68+2*p)}, {pr(Q+2*p)} {sel}')
            a(f's_waitcnt vmcnt({3-k})')
            for i in range(4):
                a(f'v_dot2_f32_bf16 v{Zk+4+i}, v{R+i}, s46, v{Zk+4+i}')
            a(f'v_pk_add_f32 {pr(Zk)}, {pr(R)}, {pr(Zk)}')
            a(f'v_pk_add_f32 {pr(Zk+2)}, {pr(R+2)}, {pr(Zk+2)}')
    def shared(AGC):
        for pp in range(2):
            ps = [2*pp, 2*pp+1]
            tt = {ps[0]: T, ps[1]: T+6}
            for half in range(2):
                def regs(p):
                    za = Z+16*half+2*p
                    return za, za+8, tt[p]+(0 if half == 0 else 4), tt[p]+2
                for p in ps:
                    za, zb, ta, tb = regs(p)
                    a(f'v_exp_f32 v{ta}, v{za}'); a(f'v_exp_f32 v{ta+1}, v{za+1}')
                    a(f'v_exp_f32 v{tb}, v{zb}'); a(f'v_exp_f32 v{tb+1}, v{zb+1}')
                for p in ps:
                    za, zb, ta, tb = regs(p)
                    a(f'v_pk_fma_f32 {pr(zb)}, {pr(zb)}, {pr(ta)}, {pr(zb)}')
                for p in ps:
                    za, zb, ta, tb = regs(p)
                    a(f'v_pk_add_f32 {pr(tb)}, {pr(tb)}, s[44:45]')
                for p in ps:
                    za, zb, ta, tb = regs(p)
                    a(f'v_pk_fma_f32 {pr(zb)}, {pr(za)}, {pr(tb)}, {pr(zb)}')
                for p in ps:
                    za, zb, ta, tb = regs(p)
                    a(f'v_pk_fma_f32 {pr(ta)}, {pr(ta)}, {pr(tb)}, {pr(tb)}')
            for p in ps:
                a(f'v_pk_mul_f32 {pr(Z+2*p)}, {pr(Z+8+2*p)}, {pr(tt[p]+4)}')
            for p in ps:
                a(f'v_pk_mul_f32 {pr(tt[p]+2)}, {pr(tt[p])}, {pr(tt[p]+4)}')
            for p in ps:
                a(f'v_pk_fma_f32 {pr(Z+2*p)}, {pr(Z+24+2*p)}, {pr(tt[p])}, {pr(Z+2*p)}')
            for p in ps:
                a(f'v_rcp_f32 v{tt[p]+2}, v{tt[p]+2}'); a(f'v_rcp_f32 v{tt[p]+3}, v{tt[p]+3}')
            a('s_nop 0')
            for p in ps:
                a(f'v_pk_mul_f32 {pr(Z+2*p)}, {pr(Z+2*p)}, {pr(tt[p]+2)}')
            for p in ps:
                a(f'v_cvt_f64_f32 {pr(Z+8+2*p)}, v{Z+2*p}'); a(f'v_cvt_f64_f32 {pr(Z+16+2*p)}, v{Z+2*p+1}')
            for p in ps:
                a(f'ds_add_f64 v{AGC}, {pr(Z+8+2*p)} offset:{64*(2*p)}')
                a(f'ds_add_f64 v{AGC}, {pr(Z+16+2*p)} offset:{64*(2*p+1)}')
    def plain(AGC):
        AC = T+8
        for k in range(4):
            Zk = Z+8*k
            for i in range(8): a(f'v_exp_f32 v{T+i}, v{Zk+i}')
            for p in range(4): a(f'v_pk_add_f32 {pr(T+2*p)}, {pr(T+2*p)}, s[44:45]')
            for i in range(8): a(f'v_rcp_f32 v{T+i}, v{T+i}')
            for p in range(4):
                if k == 0:
                    a(f'v_pk_mul_f32 {pr(AC+2*p)}, {pr(Zk+2*p)}, {pr(T+2*p)}')
                else:
                    a(f'v_pk_fma_f32 {pr(AC+2*p)}, {pr(Zk+2*p)}, {pr(T+2*p)}, {pr(AC+2*p)}')
        for i in range(8): a(f'v_cvt_f64_f32 {pr(Z+2*i)}, v{AC+i}')
        for i in range(8): a(f'ds_add_f64 v{AGC}, {pr(Z+2*i)} offset:{64*i}')
    a('s_mov_b32 s76, s3')
    a('s_add_u32 s77, s3, 16')
    a('s_cmp_ge_u32 s76, s75')
    a('s_cbranch_scc1 B_loop_end')
    read_recs(76, 0)
    grab()
    a('s_waitcnt lgkmcnt(0)')
    fetch(0)
    read_recs(77, 1)
    a('s_waitcnt lgkmcnt(0)')
    for st in range(2):
        a.lab(f'B_loop{st}')
        a('s_waitcnt lgkmcnt(8)')
        a(f'v_readfirstlane_b32 s78, v{IDX}')
        zphase(st)
        if DEBUG:
            a('s_cmp_gt_u32 s83, 15')
            a(f's_cbranch_scc1 B_nost{st}')
            a('s_memrealtime s[92:93]')
            a('s_add_u32 m0, s83, 16')
            a('s_waitcnt lgkmcnt(0)')
            a('v_writelane_b32 v5, s92, m0')
            a.lab(f'B_nost{st}')
        a('s_add_u32 s78, s78, 32')
        a('s_cmp_ge_u32 s77, s75')
        a(f's_cbranch_scc1 B_nofetch{st}')
        fetch(1-st)
        read_recs(78, st)
        grab()
        a.lab(f'B_nofetch{st}')
        a('s_cmp_ge_u32 s76, s82')
        a(f's_cbranch_scc1 B_plain{st}')
        shared(AGS[st])
        a.lab(f'B_next{st}')
        a('s_add_u32 s83, s83, 1')
        if PRIO:
            for c, p in (((3, 1), (5, 0)) if st == 0 else ((2, 2),)):
                pass
            for c, p in ((2, 2), (4, 1), (5, 0)):
                if (c % 2) != (1-st) % 2 and False: continue
                a(f's_cmp_lg_u32 s83, {c}')
                a(f's_cbranch_scc1 B_pr{c}_{st}')
                a(f's_setprio {p}')
                a.lab(f'B_pr{c}_{st}')
        a('s_mov_b32 s76, s77')
        a('s_mov_b32 s77, s78')
        a('s_cmp_lt_u32 s76, s75')
        if st == 0:
            a('s_cbranch_scc0 B_loop_end')
        else:
            a('s_cbranch_scc1 B_loop0')
            a('s_branch B_loop_end')
    for st in range(2):
        a.lab(f'B_plain{st}')
        plain(AGS[st])
        a(f's_branch B_next{st}')
    a.lab('B_loop_end')
    stamp(a, 4)
    a('s_cmp_lt_u32 s3, 8')
    a('s_cbranch_scc1 B_join')
    a('s_lshl_b32 s39, s34, 12')
    a(f's_add_u32 s39, s39, {L_WU}')
    a('v_add_u32 v17, s39, v11')
    a('v_and_b32 v18, 7, v1')
    a('v_xor_b32 v18, v18, v9')
    a('v_lshlrev_b32 v16, 7, v8')
    a(f'v_add_u32 v16, {L_X}, v16')
    for ks in range(4):
        a(f'v_xor_b32 v19, {2*ks}, v18')
        a(f'v_lshl_add_u32 v{20+ks}, v19, 4, v16')
        a(f'ds_read_b128 {q4(32+4*ks)}, v{20+ks}')
        a(f'ds_read_b128 {q4(48+4*ks)}, v17 offset:{1024*ks}')
    a('s_waitcnt lgkmcnt(0)')
    for ks in range(4):
        c = '0' if ks == 0 else 'v[112:127]'
        a(f'v_mfma_f32_32x32x16_bf16 v[112:127], {q4(48+4*ks)}, {q4(32+4*ks)}, {c}')
    for ks in range(4):
        a(f'ds_read_b128 {q4(48+4*ks)}, v17 offset:{8192+1024*ks}')
    a.lab('B_join')
    a('s_waitcnt lgkmcnt(0)')
    a('s_barrier')
    stamp(a, 5)
    stampc(a, 9)
    if DEBUG: a('v_writelane_b32 v5, s83, 10')
    a('s_add_u32 s50, s50, s87')
    a('s_cmp_lg_u32 s71, 0')
    a('s_cbranch_scc1 B_batch')
    a('s_cmp_lt_u32 s3, 8')
    a('s_cbranch_scc1 B_done2')
    a(f's_movk_i32 s51, {2*RS}')
    a('v_mul_u32_u24 v16, s51, v8')
    a('v_lshl_add_u32 v16, v9, 5, v16')
    a(f'v_add_u32 v16, {L_AGG}, v16')
    for half in range(2):
        for ii in range(4):
            i = half*4+ii
            a(f'ds_read_b128 {q4(64+8*ii)}, v16 offset:{64*i}')
            a(f'ds_read_b128 {q4(68+8*ii)}, v16 offset:{64*i+16}')
        for ii in range(4):
            i = half*4+ii
            a(f's_waitcnt lgkmcnt({6-2*ii})')
            for q in range(4):
                a(f'v_cvt_f32_f64 v{96+q}, {pr(64+8*ii+2*q)}')
            a(f'v_pk_mul_f32 v[96:97], v[96:97], s[48:49]')
            a(f'v_pk_mul_f32 v[98:99], v[98:99], s[48:49]')
            a(f'v_cvt_pk_bf16_f32 v{32+2*i}, v96, v97')
            a(f'v_cvt_pk_bf16_f32 v{33+2*i}, v98, v99')
    a('s_nop 1')
    for ks in range(4):
        a(f'v_mfma_f32_32x32x16_bf16 v[112:127], {q4(48+4*ks)}, {q4(32+4*ks)}, v[112:127]')
    a('v_add_u32 v17, s37, v8')
    a('v_lshlrev_b32 v17, 7, v17')
    a('v_lshl_add_u32 v17, v9, 5, v17')
    a('s_lshl_b32 s51, s34, 6')
    a(f'v_cmp_gt_u32 vcc, {NB}, v8')
    a('s_nop 12')
    for r in range(16): a(f'v_mul_f32 v{64+r}, s47, v{112+r}')
    for r in range(16): a(f'v_exp_f32 v{64+r}, v{64+r}')
    for r in range(16): a(f'v_add_f32 v{64+r}, 1.0, v{64+r}')
    for r in range(16): a(f'v_rcp_f32 v{64+r}, v{64+r}')
    for r in range(16): a(f'v_mul_f32 v{64+r}, v{64+r}, v{112+r}')
    for r in range(0, 16, 2): a(f'v_cvt_pk_bf16_f32 v{32+r//2}, v{64+r}, v{65+r}')
    a('s_and_b64 exec, exec, vcc')
    a(f'buffer_store_dwordx4 v[32:35], v17, s[24:27], s51 offen {ST_O}')
    a(f'buffer_store_dwordx4 v[36:39], v17, s[24:27], s51 offen offset:16 {ST_O}')
    a.lab('B_done2')
    stamp_out(a, 1, 88)
    a.lab('B_done')
    a('s_endpgm')
    a.lab('code_end')

def kd(a, name, vgpr, sgpr):
    a.raw('.p2align 6')
    a.raw(f'.amdhsa_kernel {name}')
    a.raw(f'  .amdhsa_next_free_vgpr {vgpr}')
    a.raw(f'  .amdhsa_next_free_sgpr {sgpr}')
    a.raw(f'  .amdhsa_accum_offset {(vgpr+3)//4*4}')
    a.raw('  .amdhsa_group_segment_fixed_size 0')
    a.raw('  .amdhsa_kernarg_size 72')
    a.raw('  .amdhsa_user_sgpr_count 2')
    a.raw('  .amdhsa_user_sgpr_kernarg_segment_ptr 1')
    a.raw('  .amdhsa_system_sgpr_workgroup_id_x 1')
    a.raw('.end_amdhsa_kernel')

def main():
    ref = open('gather_scatter__mpnn_edge_mlp__graph.s.ref').read().splitlines()
    hdr = [l for l in ref if l.startswith(';') and '@launch' not in l and 'Override' not in l and 'grid=ceil' not in l]
    a = A()
    for l in hdr: a.raw(l)
    a.raw(f'; @launch kernel=mpnn_bin_kernel grid=({A_GRID},1,1) block=({A_BLOCK},1,1) lds={A_LDS}')
    a.raw(f'; @launch kernel=mpnn_main_kernel grid=({NBK},1,1) block=(1024,1,1) lds={B_LDS}')
    a.raw('.amdgcn_target "amdgcn-amd-amdhsa--gfx950"')
    a.raw('.text')
    kernel_a(a)
    kernel_b(a)
    a.raw('.section .rodata,"a"')
    kd(a, 'mpnn_bin_kernel', 128, 100)
    kd(a, 'mpnn_main_kernel', 128, 100)
    out = sys.argv[1] if len(sys.argv) > 1 else 'gather_scatter__mpnn_edge_mlp__graph.s'
    open(out, 'w').write('\n'.join(a.l) + '\n')

main()
```

```python
import sys, struct, os
DEBUG = int(os.environ.get('DEBUG', '0'))
PRIO = int(os.environ.get('PRIO', '1'))
XMAP = int(os.environ.get('XMAP', '1'))
PREF = int(os.environ.get('PREF', '0'))
CPF = int(os.environ.get('CPF', '0'))
TLBW = int(os.environ.get('TLBW', '0'))
ST_O = os.environ.get('ST_O', '')
LATESRC = int(os.environ.get('LATESRC', '1'))
FORCE_PLAIN = int(os.environ.get('FORCE_PLAIN', '0'))

N = 25000; E = 800000
NB = 98
NBK = 256
CH = 3200
NCH = 250
WS_REC = 0
WS_TAB = 0x700000
WS_PF  = 0x780000
WS_PT  = 0x800000
WS_WF  = 0x7C0000
REC_BYTES = NCH*CH*8
TAB_BYTES = NCH*NBK*4
PF_BYTES  = 1000*4
PT_BYTES  = (N+1)*128
WF_BYTES  = 3*8192 + 512
WF_W3 = 3*8192
LOG2E = 1.4426950408889634
LN2 = 0.6931471805599453
LIM_P = 3.0; LIM_Q = 3.0; LIM_E_BF16 = 0x4040; LIM_W = 3.0
def f32(x): return struct.unpack('<I', struct.pack('<f', x))[0]

class A:
    def __init__(s): s.l = []
    def __call__(s, t): s.l.append('    ' + t)
    def lab(s, t): s.l.append(t + ':')
    def raw(s, t): s.l.append(t)

def srd(a, d, base, off, nbytes):
    if off:
        a(f's_add_u32 s{d}, s{base}, {hex(off)}')
        a(f's_addc_u32 s{d+1}, s{base+1}, 0')
    else:
        a(f's_mov_b32 s{d}, s{base}')
        a(f's_mov_b32 s{d+1}, s{base+1}')
    a(f's_mov_b32 s{d+2}, {hex(nbytes)}')
    a(f's_mov_b32 s{d+3}, 0x00020000')

PROF_OFF = 0x4000000
def stamp(a, i, vr=65, sr=92):
    if not DEBUG: return
    a(f's_memrealtime s[{sr}:{sr+1}]')
    a('s_waitcnt lgkmcnt(0)')
    a(f'v_writelane_b32 v{vr}, s{sr}, {i}')
def stampc(a, i, vr=65, sr=92):
    if not DEBUG: return
    a(f's_memtime s[{sr}:{sr+1}]')
    a('s_waitcnt lgkmcnt(0)')
    a(f'v_writelane_b32 v{vr}, s{sr}, {i}')
def stamp_out(a, kern, wsreg, vr=65, sr=92, tmp=6):
    if not DEBUG: return
    a('s_waitcnt vmcnt(0)')
    stamp(a, 15, vr, sr)
    a('s_mov_b64 exec, -1')
    srd(a, 96, wsreg, PROF_OFF + kern*0x400000, 0x400000)
    a(f's_lshl_b32 s{sr}, s2, 4')
    a(f's_add_u32 s{sr}, s{sr}, s3')
    a(f's_lshl_b32 s{sr}, s{sr}, 8')
    a(f'v_lshlrev_b32 v{tmp}, 2, v1')
    a(f'buffer_store_dword v{vr}, v{tmp}, s[96:99], s{sr} offen')

def wave_scan(a, v):
    for sh in (1, 2, 4, 8):
        a('s_nop 1')
        a(f'v_add_u32_dpp v{v}, v{v}, v{v} row_shr:{sh} row_mask:0xf bank_mask:0xf bound_ctrl:0')
    a('s_nop 1')
    a(f'v_add_u32_dpp v{v}, v{v}, v{v} row_bcast:15 row_mask:0xa bank_mask:0xf')
    a('s_nop 1')
    a(f'v_add_u32_dpp v{v}, v{v}, v{v} row_bcast:31 row_mask:0xc bank_mask:0xf')

def pr(r): return f'v[{r}:{r+1}]'
def q4(r): return f'v[{r}:{r+3}]'

A_GEMM0 = NCH
A_PREP0 = NCH + 250
A_GRID = A_PREP0 + 4
A_BLOCK = 448
A_XT = 0
A_W1 = 4*4096
A_LDS = 2112 + CH*8
A_STAGE = 2048 + 64
A_EFLAG = 2048
ST_A = os.environ.get('ST_A', 'sc0 sc1')

def kernel_a(a):
    a.raw('.globl mpnn_bin_kernel')
    a.raw('.p2align 8')
    a.raw('.type mpnn_bin_kernel,@function')
    a.lab('mpnn_bin_kernel')
    if DEBUG:
        a('s_memrealtime s[94:95]')
        a('s_getreg_b32 s62, hwreg(HW_REG_HW_ID)')
        a('s_getreg_b32 s63, hwreg(HW_REG_XCC_ID)')
    a('s_load_dwordx16 s[4:19], s[0:1], 0')
    a('s_load_dwordx2 s[20:21], s[0:1], 64')
    if CPF:
        a('s_getpc_b64 s[60:61]')
        a.lab('A_pc')
        a('v_lshlrev_b32 v100, 4, v0')
        a('v_add_u32 v101, 7168, v100')
        a('v_min_u32 v101, code_end-A_pc-16, v101')
        a('v_min_u32 v100, code_end-A_pc-16, v100')
        a('global_load_dwordx4 v[104:107], v100, s[60:61]')
        a('global_load_dwordx4 v[108:111], v101, s[60:61]')
    a(f's_cmp_ge_u32 s2, {A_GRID}')
    a('s_cbranch_scc1 A_done')
    a('v_lshrrev_b32 v1, 6, v0')
    a('v_lshlrev_b32 v3, 4, v0')
    a('v_readfirstlane_b32 s3, v1')
    a('v_and_b32 v1, 63, v0')
    a(f's_cmp_ge_u32 s2, {A_PREP0}')
    a('s_cbranch_scc1 A_prep')
    a(f's_cmp_ge_u32 s2, {A_GEMM0}')
    a('s_cbranch_scc1 A_gemm')
    a('v_cmp_gt_u32 vcc, 400, v0')
    a('s_and_b64 exec, exec, vcc')
    a('v_lshlrev_b32 v2, 3, v0')
    a(f's_mul_i32 s44, s2, {CH*4}')
    a(f's_mul_i32 s45, s2, {CH*2}')
    a(f's_add_u32 s50, s44, {CH*2}')
    a(f's_add_u32 s51, s45, {CH}')
    a('s_waitcnt lgkmcnt(0)')
    srd(a, 24, 10, 0, E*4)
    a('buffer_load_dwordx4 v[8:11], v3, s[24:27], s44 offen')
    a('buffer_load_dwordx4 v[12:15], v3, s[24:27], s50 offen')
    srd(a, 28, 8, 0, E*4)
    srd(a, 32, 6, 0, E*2)
    def srcloads():
        a('buffer_load_dwordx4 v[16:19], v3, s[28:31], s44 offen')
        a('buffer_load_dwordx4 v[20:23], v3, s[28:31], s50 offen')
        a('buffer_load_dwordx2 v[24:25], v2, s[32:35], s45 offen')
        a('buffer_load_dwordx2 v[26:27], v2, s[32:35], s51 offen')
    if not LATESRC: srcloads()
    stamp(a, 0, 70)
    if DEBUG:
        a('v_writelane_b32 v70, s94, 8')
        a('v_writelane_b32 v70, s62, 9')
        a('v_writelane_b32 v70, s63, 10')
    a('v_lshlrev_b32 v5, 2, v0')
    a('v_mov_b32 v4, 0')
    a('v_mov_b32 v6, 2048')
    a('v_cmp_gt_u32 vcc, 256, v0')
    a('s_nop 1')
    a('v_cndmask_b32 v5, v6, v5, vcc')
    a('ds_write_b32 v5, v4')
    if TLBW:
        srd(a, 36, 20, 0, 0xC00000)
        a('v_lshlrev_b32 v7, 20, v1')
        a('buffer_load_dword v71, v7, s[36:39], 0 offen')
    srd(a, 36, 20, WS_REC, REC_BYTES)
    srd(a, 40, 20, WS_TAB, TAB_BYTES)
    a('s_mov_b32 s46, 42800')
    a('s_mov_b32 s47, -196')
    a('s_mov_b32 s48, 0xffff0000')
    a('s_mov_b32 s52, 0x7fff7fff')
    a('v_mov_b32 v4, 1')
    a('s_waitcnt lgkmcnt(0)')
    a('s_barrier')
    for hf in range(2):
        if LATESRC:
            a(f's_waitcnt vmcnt({1 if hf == 0 else 4})')
            if hf == 0: srcloads()
        else:
            a(f's_waitcnt vmcnt({5-hf+TLBW})')
        if hf == 0: stamp(a, 1, 70)
        for j in range(4*hf, 4*hf+4):
            a(f'v_mul_u32_u24 v{28+j}, s46, v{8+j}')
            a(f'v_lshrrev_b32 v{28+j}, 22, v{28+j}')
            a(f'v_lshlrev_b32 v{28+j}, 2, v{28+j}')
            a(f'ds_add_rtn_u32 v{56+j}, v{28+j}, v4')
    for j in range(8):
        a(f'v_lshlrev_b32 v{8+j}, 3, v{8+j}')
        a(f'v_mad_i32_i24 v{41+2*j}, v{28+j}, s47, v{8+j}')
    a('s_mov_b64 s[22:23], exec')
    a('s_waitcnt lgkmcnt(0)')
    a('s_barrier')
    stamp(a, 2, 70)
    a('s_mov_b64 exec, -1')
    a('v_lshlrev_b32 v5, 4, v1')
    a('ds_read_b128 v[8:11], v5')
    a('s_waitcnt lgkmcnt(0)')
    a('v_add_u32 v13, v8, v9')
    a('v_add_u32 v14, v13, v10')
    a('v_add_u32 v15, v14, v11')
    a('v_mov_b32 v72, v15')
    wave_scan(a, 72)
    a('v_sub_u32 v12, v72, v15')
    a('v_add_u32 v15, v12, v14')
    a('v_add_u32 v14, v12, v13')
    a('v_add_u32 v13, v12, v8')
    for k in range(4):
        a(f'v_lshlrev_b32 v{72+k}, 3, v{12+k}')
    a('ds_write_b128 v5, v[72:75] offset:1024')
    for k in range(4):
        a(f'v_lshl_or_b32 v{64+k}, v{8+k}, 16, v{12+k}')
    a('s_mov_b64 exec, s[22:23]')
    a('s_waitcnt lgkmcnt(0)')
    for j in range(8):
        a(f'ds_read_b32 v{8+j}, v{28+j} offset:1024')
    a('s_waitcnt vmcnt(0)')
    for j in range(8):
        if j % 2 == 0:
            a(f'v_lshlrev_b32 v{40+2*j}, 16, v{24+j//2}')
        else:
            a(f'v_and_b32 v{40+2*j}, s48, v{24+j//2}')
        a(f'v_lshl_or_b32 v{41+2*j}, v{41+2*j}, 16, v{16+j}')
    for j in range(4):
        a(f'v_and_b32 v{24+j}, s52, v{24+j}')
    a('v_pk_max_u16 v24, v24, v25')
    a('v_pk_max_u16 v26, v26, v27')
    a('v_pk_max_u16 v24, v24, v26')
    a('v_lshrrev_b32 v25, 16, v24')
    a('v_and_b32 v24, 0xffff, v24')
    a('v_max_u32 v24, v24, v25')
    a(f'v_cmp_lt_u32 vcc, {hex(LIM_E_BF16)}, v24')
    a('s_and_saveexec_b64 s[54:55], vcc')
    a('s_cbranch_execz A_eok')
    a('v_mov_b32 v25, 0x80000000')
    a('ds_write_b32 v6, v25')
    a.lab('A_eok')
    a('s_mov_b64 exec, s[54:55]')
    a('s_waitcnt lgkmcnt(0)')
    for j in range(8):
        a(f'v_lshl_add_u32 v{8+j}, v{56+j}, 3, v{8+j}')
    stamp(a, 3, 70)
    for j in range(8):
        a(f'ds_write_b64 v{8+j}, {pr(40+2*j)} offset:{A_STAGE}')
    a('s_waitcnt lgkmcnt(0)')
    a('s_barrier')
    stamp(a, 4, 70)
    a('s_cmp_lg_u32 s3, 6')
    a('s_cbranch_scc1 A_notab')
    a('s_mov_b64 exec, -1')
    a('v_mov_b32 v6, 2048')
    a('ds_read_b32 v7, v6')
    a('s_lshl_b32 s49, s2, 10')
    a('s_waitcnt lgkmcnt(0)')
    for k in range(4):
        a(f'v_or_b32 v{64+k}, v{64+k}, v7')
    a(f'buffer_store_dwordx4 v[64:67], v5, s[40:43], s49 offen {ST_A}')
    a('s_mov_b64 exec, s[22:23]')
    a.lab('A_notab')
    for j in range(4):
        a(f'ds_read_b128 {q4(8+4*j)}, v3 offset:{A_STAGE+6400*j}')
    a(f's_mul_i32 s49, s2, {CH*8}')
    for j in range(4):
        a(f's_waitcnt lgkmcnt({3-j})')
        a(f'buffer_store_dwordx4 {q4(8+4*j)}, v3, s[36:39], s49 offen {ST_A}')
        if j < 3:
            a(f's_add_u32 s49, s49, 6400')
    stamp(a, 5, 70)
    stamp_out(a, 0, 20, 70)
    a('s_endpgm')

    a.lab('A_gemm')
    a(f's_sub_u32 s22, s2, {A_GEMM0}')
    a('s_mul_i32 s48, s22, 12800')
    a('s_add_u32 s49, s48, 12800')
    a('s_lshl_b32 s22, s22, 2')
    a('s_add_u32 s22, s22, s3')
    a('v_and_b32 v2, 31, v1')
    a('v_lshrrev_b32 v3, 5, v1')
    a('v_lshlrev_b32 v4, 2, v2')
    a('v_lshl_add_u32 v7, v3, 9, v4')
    a('v_lshl_add_u32 v4, v3, 10, v4')
    a(f'v_add_u32 v4, {A_W1}, v4')
    a('v_lshlrev_b32 v5, 4, v0')
    a('s_lshl_b32 s23, s3, 12')
    a('s_add_u32 s23, s23, s48')
    a('v_lshlrev_b32 v6, 4, v1')
    a('s_lshl_b32 s42, s3, 12')
    a('v_add_u32 v7, s42, v7')
    a('v_lshrrev_b32 v8, 3, v1')
    a('v_and_b32 v9, 7, v1')
    a('v_xor_b32 v10, v9, v8')
    a('v_lshlrev_b32 v10, 4, v10')
    a('v_lshl_add_u32 v10, v8, 7, v10')
    a('v_add_u32 v10, s42, v10')
    a('v_xor_b32 v9, v9, v3')
    a('v_lshlrev_b32 v8, 7, v2')
    a('v_add_u32 v8, s42, v8')
    for ks in range(4):
        a(f'v_xor_b32 v{11+ks}, {2*ks}, v9')
        a(f'v_lshl_add_u32 v{11+ks}, v{11+ks}, 4, v8')
    a('s_waitcnt lgkmcnt(0)')
    srd(a, 24, 4, 0, N*128)
    a('s_mov_b32 s26, s49')
    srd(a, 28, 12, 0, 64*128)
    a('s_movk_i32 s43, 7168')
    a('buffer_load_dwordx4 v[16:19], v5, s[28:31], 0 offen')
    a('buffer_load_dwordx4 v[20:23], v5, s[28:31], s43 offen')
    for j in range(4):
        a(f'buffer_load_dwordx4 {q4(48+4*j)}, v6, s[24:27], s23 offen offset:{1024*j}')
    stamp(a, 0, 15)
    if DEBUG:
        a('v_writelane_b32 v15, s94, 8')
        a('v_writelane_b32 v15, s62, 9')
        a('v_writelane_b32 v15, s63, 10')
    srd(a, 32, 20, WS_PT, N*128)
    a('s_mov_b32 s34, s49')
    srd(a, 44, 20, WS_PF, PF_BYTES)
    a('s_mov_b32 s36, 0x05040100')
    a('s_mov_b32 s37, 0x07060302')
    a(f's_mov_b32 s38, {hex(f32(-LOG2E))}')
    a('s_mov_b32 s39, 0x7fffffff')
    a('s_mov_b32 s40, 0x7fff0000')
    a(f's_mov_b32 s41, {hex(f32(LIM_P))}')
    a('s_waitcnt vmcnt(4)')
    a(f'ds_write_b128 v5, v[16:19] offset:{A_W1}')
    a('s_cmp_lg_u32 s3, 0')
    a('s_cbranch_scc1 A_w1done')
    a(f'ds_write_b128 v5, v[20:23] offset:{A_W1+7168}')
    a.lab('A_w1done')
    a('s_waitcnt lgkmcnt(0)')
    a('s_barrier')
    a('s_cmp_ge_u32 s3, 4')
    a('s_cbranch_scc1 A_done')
    for ks in range(4):
        if ks: a('v_add_u32 v4, 2048, v4')
        for jj in range(4):
            a(f'ds_read2_b32 {pr(16+8*ks+2*jj)}, v4 offset0:{64*jj} offset1:{64*jj+32}')
    a('s_waitcnt vmcnt(0)')
    for j in range(4):
        a(f'ds_write_b128 v10, {q4(48+4*j)} offset:{1024*j}')
    a('s_waitcnt lgkmcnt(0)')
    for ks in range(4):
        a(f'ds_read_b128 {q4(48+4*ks)}, v{11+ks}')
    stamp(a, 1, 15)
    for ks in range(4):
        for jj in range(4):
            r0 = 16+8*ks+2*jj
            a(f'v_perm_b32 v{64+4*ks+jj}, v{r0+1}, v{r0}, s36')
            a(f'v_perm_b32 v{80+4*ks+jj}, v{r0+1}, v{r0}, s37')
    a('s_waitcnt lgkmcnt(0)')
    for ks in range(4):
        c0 = '0' if ks == 0 else 'v[96:111]'
        c1 = '0' if ks == 0 else 'v[112:127]'
        a(f'v_mfma_f32_32x32x16_bf16 v[96:111], {q4(48+4*ks)}, {q4(64+4*ks)}, {c0}')
        a(f'v_mfma_f32_32x32x16_bf16 v[112:127], {q4(48+4*ks)}, {q4(80+4*ks)}, {c1}')
    a('s_nop 15')
    stamp(a, 2, 15)
    for r in range(16):
        a(f'v_mul_f32 v{96+r}, s38, v{96+r}')
    for r in range(16):
        a(f'v_mul_f32 v{112+r}, s38, v{112+r}')
    for r in range(0, 16, 2):
        a(f'v_cvt_pk_bf16_f32 v{16+r}, v{96+r}, v{97+r}')
    for r in range(0, 16, 2):
        a(f'v_lshrrev_b32 v{17+r}, 16, v{16+r}')
        a(f'v_and_b32 v{16+r}, 0xffff, v{16+r}')
    for r in range(16):
        a(f'v_and_b32 v{32+r}, s39, v{112+r}')
    for r in range(16):
        a(f'v_add_u32 v{32+r}, 0x8000, v{32+r}')
    for r in range(16):
        a(f'v_sub_u32 v{32+r}, v{32+r}, v{16+r} clamp')
    for r in range(16):
        a(f'v_and_or_b32 v{32+r}, v{32+r}, s40, v{16+r}')
    for r in range(16):
        a(f'v_bfi_b32 v{32+r}, s39, v{32+r}, v{112+r}')
        a(f'ds_write_b32 v7, v{32+r} offset:{((r&3)+8*(r>>2))*128}')
    a('v_add_u32 v8, s42, v6')
    a('s_waitcnt lgkmcnt(0)')
    for j in range(4):
        a(f'ds_read_b128 {q4(48+4*j)}, v8 offset:{1024*j}')
    a('v_max_f32 v64, |v96|, |v97|')
    for r in range(2, 32, 2):
        a(f'v_max3_f32 v64, v64, |v{96+r}|, |v{97+r}|')
    a('v_cmp_lt_f32 vcc, s41, v64')
    for j in range(4):
        a(f's_waitcnt lgkmcnt({3-j})')
        a(f'buffer_store_dwordx4 {q4(48+4*j)}, v6, s[32:35], s23 offen offset:{1024*j} {ST_A}')
    a('s_lshl_b32 s43, s22, 2')
    a('v_mov_b32 v66, 0')
    a('s_cmp_lg_u64 vcc, 0')
    a('s_cselect_b32 s42, 1, 0')
    a('v_mov_b32 v65, s42')
    a('s_mov_b64 exec, 1')
    a(f'buffer_store_dword v65, v66, s[44:47], s43 offen {ST_A}')
    stamp(a, 5, 15)
    stamp_out(a, 0, 20, 15)
    a('s_endpgm')

    a.lab('A_prep')
    a(f's_sub_u32 s50, s2, {A_PREP0}')
    a('s_mul_i32 s50, s50, 7')
    a('s_add_u32 s50, s50, s3')
    a('s_cmp_gt_u32 s50, 24')
    a('s_cbranch_scc1 A_done')
    a('s_lshr_b32 s22, s50, 3')
    a('s_bfe_u32 s23, s50, 0x10002')
    a('s_and_b32 s24, s50, 3')
    a('v_and_b32 v2, 31, v1')
    a('v_lshrrev_b32 v3, 5, v1')
    a('v_bfe_u32 v4, v2, 2, 1')
    a('v_and_b32 v5, 3, v2')
    a('v_lshrrev_b32 v6, 3, v2')
    a('v_lshl_add_u32 v5, v6, 2, v5')
    a('s_waitcnt lgkmcnt(0)')
    srd(a, 32, 20, WS_WF, WF_BYTES)
    a('s_cmp_eq_u32 s50, 24')
    a('s_cbranch_scc1 A_prep_w3')
    a('s_cmp_lg_u32 s22, 0')
    a('s_cbranch_scc1 A_prep_u')
    srd(a, 28, 12, 0, 129*128)
    a('v_lshrrev_b32 v6, 3, v5')
    a('v_lshl_add_u32 v6, v4, 2, v6')
    a('s_lshl_b32 s25, s23, 1')
    a('v_add_u32 v6, s25, v6')
    a('v_and_b32 v7, 7, v5')
    a('v_lshlrev_b32 v8, 1, v7')
    a('v_add_u32 v9, 1, v8')
    a('v_subrev_u32 v8, 8, v8')
    a('v_cmp_gt_u32 vcc, 4, v7')
    a('s_nop 1')
    a('v_cndmask_b32 v8, v8, v9, vcc')
    a('v_lshl_add_u32 v8, v6, 3, v8')
    a('v_lshlrev_b32 v8, 1, v8')
    a('v_lshl_add_u32 v8, v3, 10, v8')
    a('s_lshl_b32 s26, s24, 11')
    a('s_add_u32 s26, s26, 8192')
    for j in range(8):
        a(f'buffer_load_ushort v{32+j}, v8, s[28:31], s26 offen offset:{128*j}')
    a('s_branch A_prep_st')
    a.lab('A_prep_u')
    srd(a, 28, 14, 0, 128*128)
    a('v_lshl_add_u32 v8, v4, 4, v5')
    a('s_lshl_b32 s25, s23, 5')
    a('v_add_u32 v8, s25, v8')
    a('v_lshlrev_b32 v8, 1, v8')
    a('s_cmp_lg_u32 s22, 1')
    a('s_cbranch_scc1 A_prep_agg')
    a('v_lshl_add_u32 v8, v3, 10, v8')
    a('s_lshl_b32 s26, s24, 11')
    for j in range(8):
        a(f'buffer_load_ushort v{32+j}, v8, s[28:31], s26 offen offset:{128*j}')
    a('s_branch A_prep_st')
    a.lab('A_prep_w3')
    srd(a, 44, 20, WS_PT + N*128, 128)
    a('v_mov_b32 v20, 0x71497149')
    a('v_mov_b32 v21, v20')
    a('v_mov_b32 v22, v20')
    a('v_mov_b32 v23, v20')
    a('v_lshlrev_b32 v24, 4, v1')
    a('buffer_store_dwordx4 v[20:23], v24, s[44:47], 0 offen')
    srd(a, 36, 12, 0, 129*128)
    a('v_and_b32 v10, 7, v1')
    a('v_lshlrev_b32 v11, 4, v10')
    a('s_movk_i32 s27, 0x4000')
    a('buffer_load_dwordx4 v[44:47], v11, s[36:39], s27 offen')
    a(f's_mov_b32 s40, {hex(f32(-LOG2E))}')
    a('s_waitcnt vmcnt(0)')
    for i in range(4):
        a(f'v_and_b32 v{48+i}, 0xffff0000, v{44+i}')
        a(f'v_lshlrev_b32 v{52+i}, 16, v{44+i}')
    for i in range(8):
        a(f'v_mul_f32 v{48+i}, s40, v{48+i}')
    a('v_max3_f32 v44, |v48|, |v49|, |v50|')
    a('v_max3_f32 v44, v44, |v51|, |v52|')
    a('v_max3_f32 v44, v44, |v53|, |v54|')
    a('v_max_f32 v44, v44, |v55|')
    a(f'v_cmp_lt_f32 vcc, {hex(f32(LIM_W))}, v44')
    a('v_lshlrev_b32 v11, 5, v10')
    a('s_cmp_lg_u64 vcc, 0')
    a('s_cselect_b32 s41, 1, 0')
    a('v_mov_b32 v45, s41')
    a('v_mov_b32 v46, 0')
    a(f's_movk_i32 s27, {WF_W3}')
    a('buffer_store_dwordx4 v[48:51], v11, s[32:35], s27 offen')
    a('buffer_store_dwordx4 v[52:55], v11, s[32:35], s27 offen offset:16')
    a('buffer_store_dword v45, v46, s[32:35], s27 offen offset:256')
    a('s_endpgm')
    a.lab('A_prep_agg')
    a('v_lshl_add_u32 v8, v3, 12, v8')
    a('s_lshl_b32 s26, s24, 2')
    a('s_add_u32 s27, s26, 1')
    a('s_sub_u32 s26, s26, 8')
    a('s_cmp_lt_u32 s24, 2')
    a('s_cselect_b32 s26, s27, s26')
    a('s_add_u32 s26, s26, 64')
    a('s_lshl_b32 s26, s26, 7')
    for j in range(8):
        a(f'buffer_load_ushort v{32+j}, v8, s[28:31], s26 offen offset:{(j&3)*1024+(j>>2)*256}')
    a.lab('A_prep_st')
    a('s_lshl_b32 s25, s50, 10')
    a('v_lshlrev_b32 v9, 4, v1')
    a('s_waitcnt vmcnt(0)')
    for j in range(4):
        a(f'v_lshl_or_b32 v{16+j}, v{33+2*j}, 16, v{32+2*j}')
    a('buffer_store_dwordx4 v[16:19], v9, s[32:35], s25 offen')
    a.lab('A_done')
    a('s_endpgm')

RS = 288
NPCAP = 1408
NU = NPCAP//8
L_CNT = 0
L_BASE = 1024
L_MAX = 2048
L_FLAG = 2052
L_TOT = 2056
L_WORK = 2064
L_REC = 2080
L_Q = L_REC + NPCAP*32
L_AGG = L_Q + (NB+1)*RS
L_X = L_AGG + (NB+1)*RS*2
L_WU = L_X + 13*1024
B_LDS = L_WU + 16384
DUMMY1 = N | (NB*8) << 16
for x in (L_REC, L_Q, L_AGG, L_X, L_WU): assert x % 16 == 0
assert B_LDS <= 163840 and L_Q + 128 < 65536

def kernel_b(a):
    a.raw('.globl mpnn_main_kernel')
    a.raw('.p2align 8')
    a.raw('.type mpnn_main_kernel,@function')
    a.lab('mpnn_main_kernel')
    a('s_load_dwordx2 s[80:81], s[0:1], 64')
    a('s_load_dwordx16 s[64:79], s[0:1], 0')
    if CPF:
        a('s_getpc_b64 s[60:61]')
        a.lab('B_pc')
        a('v_lshlrev_b32 v100, 4, v0')
        a('v_min_u32 v100, code_end-B_pc-16, v100')
        a('global_load_dwordx4 v[104:107], v100, s[60:61]')
    a(f's_cmp_ge_u32 s2, {NBK}')
    a('s_cbranch_scc1 B_done')
    a('v_lshrrev_b32 v1, 6, v0')
    a('v_lshrrev_b32 v4, 3, v0')
    a('v_readfirstlane_b32 s3, v1')
    a('v_lshlrev_b32 v12, 10, v4')
    if XMAP:
        a('s_and_b32 s85, s2, 7')
        a('s_lshl_b32 s85, s85, 5')
        a('s_lshr_b32 s86, s2, 3')
        a('s_add_u32 s85, s85, s86')
    else:
        a('s_mov_b32 s85, s2')
        a('s_lshr_b32 s86, s2, 3')
    a('s_lshl_b32 s32, s85, 2')
    a('s_add_u32 s33, s32, 0x20000')
    a('v_and_b32 v1, 63, v0')
    a('v_and_b32 v3, 7, v0')
    a('v_lshlrev_b32 v2, 4, v3')
    a('s_waitcnt lgkmcnt(0)')
    ws = 80
    srd(a, 4, ws, WS_TAB, TAB_BYTES)
    a('buffer_load_dword v6, v12, s[4:7], s32 offen')
    a('buffer_load_dword v7, v12, s[4:7], s33 offen')
    stamp(a, 0)
    if TLBW:
        srd(a, 8, ws, 0, 0xC00000)
        a('v_lshlrev_b32 v13, 20, v1')
        a('buffer_load_dword v112, v13, s[8:11], 0 offen')
        srd(a, 24, 76, 0, N*128)
        a('buffer_load_dword v113, v13, s[24:27], 0 offen')
    srd(a, 8, ws, WS_REC, REC_BYTES)
    srd(a, 16, 64, 0, N*128)
    srd(a, 20, ws, WS_WF, WF_BYTES)
    a(f's_add_u32 s28, s80, {hex(WS_WF+WF_W3+256)}')
    a('s_addc_u32 s29, s81, 0')
    a('s_load_dword s90, s[28:29], 0')
    srd(a, 12, ws, WS_PT, PT_BYTES)
    srd(a, 24, 76, 0, N*128)
    a('s_mov_b64 s[88:89], s[80:81]')
    a('s_and_b32 s34, s3, 1')
    a('s_bfe_u32 s35, s3, 0x20001')
    a(f's_mul_i32 s37, s85, {NB}')
    a('s_lshl_b32 s38, s35, 5')
    a('v_lshlrev_b32 v11, 4, v1')
    a('v_and_b32 v8, 31, v1')
    a('v_add_u32 v8, s38, v8')
    a('v_lshrrev_b32 v9, 5, v1')
    a('v_lshlrev_b32 v3, 3, v3')
    a(f'v_add_u32 v3, {L_AGG}, v3')
    a('s_movk_i32 s42, 128')
    a('s_mov_b32 s43, 0xffff0000')
    a('s_mov_b32 s44, 1.0')
    a('s_mov_b32 s45, 1.0')
    a('s_mov_b32 s46, 0x3f80')
    a(f's_mov_b32 s47, {hex(f32(-LOG2E))}')
    a(f's_mov_b32 s48, {hex(f32(-LN2))}')
    a(f's_mov_b32 s49, {hex(f32(-LN2))}')
    a('s_mov_b32 s50, 0')
    a('s_movk_i32 s84, 72')
    a('s_mov_b32 s86, 0')
    a('v_lshlrev_b32 v12, 4, v0')
    for r in range(16, 20): a(f'v_mov_b32 v{r}, 0')
    a(f'v_add_u32 v13, {L_AGG}, v12')
    for j in range(3):
        a(f'ds_write_b128 v13, v[16:19] offset:{16384*j}')
    a(f'v_cmp_gt_u32 vcc, {NB*RS*2//16-3072}, v0')
    a('s_and_saveexec_b64 s[52:53], vcc')
    a('ds_write_b128 v13, v[16:19] offset:49152')
    a('s_mov_b64 exec, s[52:53]')
    a('s_mov_b32 s87, 32')
    a.lab('B_batch')
    for r in range(16, 20): a(f'v_mov_b32 v{r}, 0')
    a('v_lshlrev_b32 v12, 4, v0')
    a(f'v_cmp_gt_u32 vcc, {L_REC//16}, v0')
    a('s_and_saveexec_b64 s[52:53], vcc')
    a('ds_write_b128 v12, v[16:19]')
    a('s_mov_b64 exec, s[52:53]')
    a('v_mov_b32 v20, 0')
    a(f'v_mov_b32 v21, {hex(DUMMY1)}')
    a('v_mov_b32 v22, 0')
    a(f'v_mov_b32 v23, {hex(DUMMY1)}')
    a(f'ds_write_b128 v12, v[20:23] offset:{L_REC}')
    a(f'ds_write_b128 v12, v[20:23] offset:{L_REC+16384}')
    a(f'v_cmp_gt_u32 vcc, {NPCAP*2-2048}, v0')
    a('s_and_saveexec_b64 s[52:53], vcc')
    a(f'ds_write_b128 v12, v[20:23] offset:{L_REC+32768}')
    a('s_mov_b64 exec, s[52:53]')
    a('v_and_b32 v14, 7, v0')
    a('v_lshlrev_b32 v14, 1, v14')
    a('v_add_u32 v14, s50, v14')
    a(f's_movk_i32 s51, {CH}')
    a('v_mul_u32_u24 v15, s51, v4')
    a('v_add_u32 v15, v15, v14')
    a('v_mov_b32 v25, 0x7fffff00')
    a('s_waitcnt vmcnt(0)')
    stamp(a, 1)
    for rd in range(2):
        T = 6+rd
        a(f'v_bfe_u32 v{20+rd}, v{T}, 16, 13')
        a(f'v_and_b32 v{22+rd}, 0xffff, v{T}')
        a(f'v_add_u32 v{22+rd}, v{22+rd}, v15')
        if rd == 1:
            a(f'v_add_u32 v{22+rd}, {128*CH}, v{22+rd}')
        a(f'v_lshlrev_b32 v{22+rd}, 3, v{22+rd}')
        a(f'v_sub_u32 v{16+rd}, v{20+rd}, v14')
    for rd in range(2):
        for ld in range(2):
            for e in range(2):
                s = rd*4+ld*2+e
                a(f'v_cmp_lt_i32 s[{52+2*s}:{53+2*s}], {ld*16+e}, v{16+rd}')
    a('s_cmp_eq_u32 s87, 32')
    a('s_cbranch_scc1 B_step32')
    for s in (2, 3, 6, 7):
        a(f's_mov_b64 s[{52+2*s}:{53+2*s}], 0')
    a.lab('B_step32')
    order = [(0, 0), (1, 0), (0, 1), (1, 1)]
    for rd, ld in order:
        s = rd*4+ld*2
        r = 96+(rd*2+ld)*4
        a(f'v_cndmask_b32 v{26+rd*2+ld}, v25, v{22+rd}, s[{52+2*s}:{53+2*s}]')
        a(f'buffer_load_dwordx4 {q4(r)}, v{26+rd*2+ld}, s[8:11], 0 offen offset:{128*ld}')
    a('s_cmp_lg_u32 s86, 0')
    a('s_cbranch_scc1 B_noaux')
    a('s_lshl_b32 s39, s37, 7')
    a('s_lshl_b32 s40, s3, 10')
    a('s_add_u32 s39, s39, s40')
    a('buffer_load_dwordx4 v[32:35], v11, s[16:19], s39 offen')
    a(f's_add_u32 m0, s40, {L_WU}')
    a('s_add_u32 s40, s40, 8192')
    a('buffer_load_dwordx4 v11, s[20:23], s40 offen lds')
    a(f's_movk_i32 s41, {WF_W3}')
    a('v_lshlrev_b32 v18, 1, v2')
    a('buffer_load_dwordx4 v[68:71], v18, s[20:23], s41 offen')
    a('buffer_load_dwordx4 v[72:75], v18, s[20:23], s41 offen offset:16')
    srd(a, 28, 88, WS_PF, PF_BYTES)
    a('v_lshlrev_b32 v18, 2, v0')
    a('buffer_load_dword v44, v18, s[28:31], 0 offen')
    a('s_cmp_ge_u32 s3, 8')
    a('s_cbranch_scc1 B_noaux')
    a('s_lshl_b32 s39, s34, 12')
    for ks in range(4):
        a(f'buffer_load_dwordx4 {q4(48+4*ks)}, v11, s[20:23], s39 offen offset:{1024*ks}')
    a.lab('B_noaux')
    a('s_waitcnt lgkmcnt(0)')
    a('s_barrier')
    a('v_max_i32 v16, v16, v17')
    a('v_or_b32 v17, v6, v7')
    a('v_cmp_lt_i32 vcc, s87, v16')
    a('v_cmp_gt_i32 s[68:69], 0, v17')
    a(f'v_mov_b32 v24, {L_MAX}')
    a('v_mov_b32 v16, 1')
    a('s_cbranch_vccz B_nomore')
    a('ds_write_b32 v24, v16')
    a.lab('B_nomore')
    a('s_cmp_eq_u64 s[68:69], 0')
    a('s_cbranch_scc1 B_noflag')
    a('ds_write_b32 v24, v16 offset:4')
    a.lab('B_noflag')
    a('v_mov_b32 v24, 8')
    lc = [0]
    def ranks(extra):
        for n, (rd, ld) in enumerate(order):
            a(f's_waitcnt vmcnt({3-n+extra})')
            for e in range(2):
                s = rd*4+ld*2+e
                r = 96+(rd*2+ld)*4+2*e
                a(f's_mov_b64 exec, s[{52+2*s}:{53+2*s}]')
                if ld:
                    lc[0] += 1
                    a(f's_cbranch_execz B_sk{lc[0]}')
                a(f'v_lshrrev_b32 v{16+s}, 16, v{r+1}') if False else None
                a(f'v_lshrrev_b32 v{112+s}, 16, v{r+1}')
                a(f'ds_add_rtn_u32 v{36+s}, v{112+s}, v24 offset:{L_CNT}')
                if ld: a.lab(f'B_sk{lc[0]}')
        a('s_mov_b64 exec, -1')
    a('s_cmp_lg_u32 s86, 0')
    a('s_cbranch_scc1 B_rk0')
    a('s_cmp_ge_u32 s3, 8')
    a('s_cbranch_scc1 B_rk3')
    ranks(9)
    a('s_waitcnt vmcnt(8)')
    a('s_branch B_rkx')
    a.lab('B_rk3')
    ranks(5)
    a('s_waitcnt vmcnt(4)')
    a.lab('B_rkx')
    stamp(a, 7)
    a('v_lshrrev_b32 v16, 3, v1')
    a('v_and_b32 v17, 7, v1')
    a('v_xor_b32 v17, v17, v16')
    a('v_lshlrev_b32 v17, 4, v17')
    a('v_lshl_add_u32 v17, v16, 7, v17')
    a('s_lshl_b32 s51, s3, 10')
    a(f's_add_u32 s51, s51, {L_X}')
    a('v_add_u32 v17, s51, v17')
    a('s_cmp_ge_u32 s3, 13')
    a('s_cbranch_scc1 B_rkdone')
    a('ds_write_b128 v17, v[32:35]')
    a('s_branch B_rkdone')
    a.lab('B_rk0')
    ranks(0)
    a.lab('B_rkdone')
    a('s_waitcnt lgkmcnt(0)')
    a('s_barrier')
    stamp(a, 2)
    a('s_cmp_ge_u32 s3, 8')
    a('s_cbranch_scc1 B_scan')
    a('s_cmp_lg_u32 s86, 0')
    a('s_cbranch_scc1 B_mid2')
    a('v_and_b32 v46, 7, v1')
    a('v_xor_b32 v46, v46, v9')
    a('v_lshlrev_b32 v45, 7, v8')
    a(f'v_add_u32 v45, {L_X}, v45')
    for ks in range(4):
        a(f'v_xor_b32 v47, {2*ks}, v46')
        a(f'v_lshl_add_u32 v{92+ks}, v47, 4, v45')
        a(f'ds_read_b128 {q4(76+4*ks)}, v{92+ks}')
    a(f's_movk_i32 s68, {RS}')
    a('v_mul_u32_u24 v45, s68, v8')
    a('v_lshl_add_u32 v45, v9, 6, v45')
    a('s_lshl_b32 s68, s34, 5')
    a('v_add_u32 v45, s68, v45')
    a(f'v_mov_b32 v46, {NB}')
    a('v_cmp_gt_u32 s[68:69], v46, v8')
    a('s_waitcnt vmcnt(0) lgkmcnt(0)')
    for ks in range(4):
        c = '0' if ks == 0 else 'v[16:31]'
        a(f'v_mfma_f32_32x32x16_bf16 v[16:31], {q4(48+4*ks)}, {q4(76+4*ks)}, {c}')
    a('v_cmp_ne_u32 s[70:71], 0, v44')
    a('s_nop 10')
    for r in range(16):
        a(f'v_mul_f32 v{16+r}, s47, v{16+r}')
    a('s_mov_b64 exec, s[68:69]')
    for o in range(2):
        a(f'ds_write_b128 v45, {q4(16+8*o)} offset:{L_Q+16*o}')
        a(f'ds_write_b128 v45, {q4(20+8*o)} offset:{L_Q+128+16*o}')
    a('v_max_f32 v46, |v16|, |v17|')
    for r in range(2, 16, 2):
        a(f'v_max3_f32 v46, v46, |v{16+r}|, |v{17+r}|')
    a(f'v_cmp_lt_f32 vcc, {hex(f32(LIM_Q))}, v46')
    a('s_mov_b64 exec, -1')
    a('s_or_b64 vcc, vcc, s[70:71]')
    a('s_branch B_mid1')
    a.lab('B_scan')
    a('s_cmp_lg_u32 s3, 8')
    a('s_cbranch_scc1 B_mid')
    a(f'ds_read_b128 v[16:19], v11 offset:{L_CNT}')
    a('s_waitcnt lgkmcnt(0)')
    for k in range(2):
        c = 16+2*k
        a(f'v_lshrrev_b32 v{20+k}, 6, v{c}')
        a(f'v_bfe_u32 v{22+k}, v{c}, 5, 1')
        a(f'v_bfe_u32 v{24+k}, v{c}, 3, 2')
        a(f'v_lshl_or_b32 v{20+k}, v{22+k}, 16, v{20+k}')
        a(f'v_mad_i32_i24 v{24+k}, v{24+k}, -10, 30')
        a(f'v_lshlrev_b32 v{26+k}, v{24+k}, 1') if False else None
        a(f'v_lshlrev_b32_e64 v{26+k}, v{24+k}, 1')
    a('v_add_u32 v28, v20, v21')
    a('v_add_u32 v29, v26, v27')
    a('v_mov_b32 v30, v28')
    a('v_mov_b32 v31, v29')
    for sh in (1, 2, 4, 8):
        a('s_nop 0')
        for v in (30, 31):
            a(f'v_add_u32_dpp v{v}, v{v}, v{v} row_shr:{sh} row_mask:0xf bank_mask:0xf bound_ctrl:0')
    a('s_nop 0')
    for v in (30, 31): a(f'v_add_u32_dpp v{v}, v{v}, v{v} row_bcast:15 row_mask:0xa bank_mask:0xf')
    a('s_nop 0')
    for v in (30, 31): a(f'v_add_u32_dpp v{v}, v{v}, v{v} row_bcast:31 row_mask:0xc bank_mask:0xf')
    a('v_sub_u32 v28, v30, v28')
    a('v_sub_u32 v29, v31, v29')
    a('v_readlane_b32 s70, v30, 63')
    a('v_readlane_b32 s71, v31, 63')
    a('v_add_u32 v30, v28, v20')
    a('v_add_u32 v31, v29, v26')
    a('s_and_b32 s72, s70, 0xffff')
    a('s_add_u32 s72, s72, 7')
    a('s_lshr_b32 s72, s72, 3')
    a('s_lshr_b32 s73, s70, 16')
    a('s_add_u32 s73, s73, 7')
    a('s_lshr_b32 s73, s73, 3')
    for i, r in enumerate((74, 75, 76)):
        a(f's_bfe_u32 s{r}, s71, {hex((10 << 16) | (10*i))}')
        a(f's_add_u32 s{r}, s{r}, 7')
        a(f's_lshr_b32 s{r}, s{r}, 3')
    a('s_lshl_b32 s77, s72, 9')
    a('s_lshl_b32 s78, s73, 8')
    a('s_add_u32 s78, s78, s77')
    a('s_add_u32 s79, s74, s75')
    a('s_lshl_b32 s79, s79, 23')
    a('s_lshl_b32 s68, s74, 13')
    a('s_or_b32 s79, s79, s68')
    ex1 = (28, 30); ex2 = (29, 31)
    for k in range(2):
        c = 16+2*k
        a(f'v_add_u32 v{ex2[k]}, s79, v{ex2[k]}')
        a(f'v_bfe_u32 v{ex2[k]}, v{ex2[k]}, v{24+k}, 10')
        a(f'v_lshl_add_u32 v{ex2[k]}, v{ex2[k]}, 5, s78')
        a(f'v_lshrrev_b32 v{26+k}, 16, v{ex1[k]}')
        a(f'v_lshl_add_u32 v{26+k}, v{26+k}, 5, s77')
        a(f'v_cmp_ne_u32 vcc, 0, v{22+k}')
        a(f'v_and_b32 v{c}, 0xffc0, v{c}')
        a(f'v_and_b32 v{ex1[k]}, 0xffff, v{ex1[k]}')
        a(f'v_cndmask_b32 v{26+k}, v{ex2[k]}, v{26+k}, vcc')
        a(f'v_sub_u32 v{26+k}, v{26+k}, v{c}')
        a(f'v_lshlrev_b32 v{26+k}, 16, v{26+k}')
        a(f'v_lshl_or_b32 v{80+2*k}, v{ex1[k]}, 6, v{26+k}')
        a(f'v_sub_u32 v{ex2[k]}, v{ex2[k]}, v{c}')
        a(f'v_subrev_u32 v{ex2[k]}, 32, v{ex2[k]}')
        a(f'v_lshl_or_b32 v{81+2*k}, v{ex2[k]}, 16, v{c}')
    a(f'ds_write_b128 v11, v[80:83] offset:{L_BASE}')
    a('s_add_u32 s73, s73, s72')
    a('s_add_u32 s74, s74, s73')
    a('s_add_u32 s75, s75, s74')
    a('s_add_u32 s76, s76, s75')
    a('s_lshl_b32 s73, s73, 8')
    a('s_lshl_b32 s74, s74, 16')
    a('s_lshl_b32 s75, s75, 24')
    a('s_or_b32 s73, s73, s72')
    a('s_or_b32 s74, s74, s75')
    a('s_or_b32 s73, s73, s74')
    a('s_add_u32 s77, s76, s72')
    a(f's_cmp_le_u32 s77, {NU}')
    a('s_cselect_b32 s76, s76, -1')
    a('s_mov_b64 exec, 1')
    a(f'v_mov_b32 v24, {L_TOT}')
    a('v_mov_b32 v26, s73')
    a('v_mov_b32 v27, s76')
    a('ds_write_b64 v24, v[26:27]')
    a('s_mov_b64 exec, -1')
    a.lab('B_mid')
    a('s_cmp_lg_u32 s86, 0')
    a('s_cbranch_scc1 B_mid2')
    a('s_waitcnt vmcnt(0)')
    a('v_cmp_ne_u32 vcc, 0, v44')
    a.lab('B_mid1')
    a(f'v_mov_b32 v24, {L_FLAG}')
    a('v_mov_b32 v16, 1')
    a('s_nop 2')
    a('s_cbranch_vccz B_mid2')
    a('ds_write_b32 v24, v16')
    a.lab('B_mid2')
    a('s_mov_b32 s86, 1')
    a('s_waitcnt lgkmcnt(0)')
    a('s_barrier')
    stamp(a, 6)
    a(f'v_mov_b32 v24, {L_MAX}')
    a('ds_read_b128 v[16:19], v24')
    for s in (0, 1, 4, 5, 2, 3, 6, 7):
        a(f's_mov_b64 exec, s[{52+2*s}:{53+2*s}]')
        if s in (2, 3, 6, 7):
            lc[0] += 1
            a(f's_cbranch_execz B_sk{lc[0]}')
        a(f'ds_read_b64 {pr(76+2*s)}, v{112+s} offset:{L_BASE}')
        if s in (2, 3, 6, 7): a.lab(f'B_sk{lc[0]}')
    a('s_mov_b64 exec, -1')
    a('v_lshrrev_b32 v13, 3, v1')
    a(f'v_mov_b32 v14, {L_WORK}')
    a('v_mov_b32 v15, 1')
    a('s_waitcnt lgkmcnt(0)')
    a('v_readfirstlane_b32 s70, v18')
    a('v_readfirstlane_b32 s75, v19')
    a('v_readfirstlane_b32 s71, v16')
    a('v_readfirstlane_b32 s91, v17')
    a('s_cmp_lg_u32 s75, -1')
    a('s_cbranch_scc1 B_capok')
    a('s_mov_b32 s87, 16')
    a('s_barrier')
    a('s_branch B_batch')
    a.lab('B_capok')
    def place(s):
        r = 96+(s//2)*4+2*(s % 2)
        w0 = 76+2*s; w1 = w0+1
        a(f's_mov_b64 exec, s[{52+2*s}:{53+2*s}]')
        sk = s in (2, 3, 6, 7)
        if sk:
            lc[0] += 1
            a(f's_cbranch_execz B_sk{lc[0]}')
        a(f'v_cmp_lt_u32_sdwa vcc, v{36+s}, v{w1} src0_sel:DWORD src1_sel:WORD_0')
        a(f'v_subrev_u32 v{112+s}, 32, v{36+s}')
        a('s_nop 0')
        a(f'v_cndmask_b32_sdwa v{w0}, v{w0}, v{w0}, vcc dst_sel:DWORD dst_unused:UNUSED_PAD src0_sel:WORD_1 src1_sel:WORD_0')
        a(f'v_cmp_lt_i32_sdwa vcc, v{112+s}, v{w1} src0_sel:DWORD src1_sel:WORD_0')
        a('s_nop 1')
        a(f'v_cndmask_b32_sdwa v{w0}, v{w1}, v{w0}, vcc dst_sel:DWORD dst_unused:UNUSED_PAD src0_sel:WORD_1 src1_sel:DWORD')
        a('s_nop 0')
        a(f'v_add_u32 v{36+s}, v{36+s}, v{w0}')
        a(f'ds_write_b64 v{36+s}, {pr(r)} offset:{L_REC}')
        if sk: a.lab(f'B_sk{lc[0]}')
    for s in (0, 1, 4, 5, 2, 3, 6, 7): place(s)
    a('s_mov_b64 exec, -1')
    a('s_or_b32 s90, s90, s91')
    a('s_and_b32 s74, s70, 0xff')
    a('s_bfe_u32 s72, s70, 0x80008')
    a('s_bfe_u32 s73, s70, 0x80010')
    a('s_lshr_b32 s82, s70, 24')
    if FORCE_PLAIN: a('s_mov_b32 s90, 1')
    a('s_cmp_eq_u32 s90, 0')
    a('s_cbranch_scc1 B_fast')
    a('s_add_u32 s75, s75, s74')
    a('s_mov_b32 s74, 0')
    a.lab('B_fast')
    a('v_mul_u32_u24 v12, s74, v13')
    a('v_lshlrev_b32 v12, 6, v12')
    a('v_lshlrev_b32 v13, 5, v13')
    a('s_waitcnt lgkmcnt(0)')
    a('s_barrier')
    stamp(a, 3)
    stampc(a, 8)
    a('s_mov_b32 s83, 0')
    if PRIO: a('s_setprio 3')
    RAW = 32; Q = 48; RCS = [56, 112]; IDX = 64; AGC = 66; AGN = 67; Z = 76; T = 16; TMP = 108; KN = 120; KD = 4
    cnt = [0]
    def rd(st, off=0):
        a(f'ds_read_b128 {q4(RCS[st])}, v{TMP} offset:{L_REC+off}')
        a(f'ds_read_b128 {q4(RCS[st]+4)}, v{TMP} offset:{L_REC+off+16}')
    def addr8(sidx):
        a(f's_lshl_b32 s51, s{sidx}, 6')
        a(f'v_add_u32 v{TMP}, s51, v12')
    def addr4(sidx):
        a(f's_add_u32 s79, s{sidx}, s74')
        a(f's_min_u32 s79, s79, {NU-1}')
        a(f's_lshl_b32 s51, s79, 8')
        a(f'v_add_u32 v{TMP}, s51, v13')
    def read_any(sidx, st):
        n = cnt[0]; cnt[0] += 1
        a(f's_cmp_ge_u32 s{sidx}, s74')
        a(f's_cbranch_scc1 B_rrP{n}')
        addr8(sidx)
        a(f's_branch B_rrX{n}')
        a.lab(f'B_rrP{n}')
        addr4(sidx)
        a.lab(f'B_rrX{n}')
        rd(st)
    def gathers(st):
        RC = RCS[st]
        for k in range(4):
            a(f'v_mad_u32_u16 v{TMP+(k&1)}, v{RC+2*k+1}, s42, v2')
            a(f'buffer_load_dwordx4 {q4(RAW+4*k)}, v{TMP+(k&1)}, s[12:15], 0 offen')
    def fetch(st):
        RC = RCS[st]
        gathers(st)
        a(f'v_mad_u32_u16 v{TMP+2}, v{RC+1}, 36, v2 op_sel:[1,0,0,0]')
        a(f'ds_read_b128 {q4(Q)}, v{TMP+2} offset:{L_Q}')
        a(f'ds_read_b128 {q4(Q+4)}, v{TMP+2} offset:{L_Q+128}')
        a(f'v_mad_u32_u16 v{AGN}, v{RC+1}, s84, v3 op_sel:[1,0,0,0]')
    def grab():
        a('s_mov_b64 exec, 1')
        a(f'ds_add_rtn_u32 v{IDX}, v14, v15')
        a('s_mov_b64 exec, -1')
    def zstep(st, k):
        R = RAW+4*k; Zk = Z+8*k; ep = RCS[st]+2*k
        for p in range(4):
            a(f'v_pk_fma_f32 {pr(Zk+2*p)}, {pr(ep)}, {pr(68+2*p)}, {pr(Q+2*p)} op_sel_hi:[0,1,1]')
        a(f's_waitcnt vmcnt({3-k})')
        for i in range(4):
            a(f'v_dot2_f32_bf16 v{Zk+4+i}, v{R+i}, s46, v{Zk+4+i}')
        a(f'v_pk_add_f32 {pr(Zk)}, {pr(R)}, {pr(Zk)}')
        a(f'v_pk_add_f32 {pr(Zk+2)}, {pr(R+2)}, {pr(Zk+2)}')
    def pair(ps, tt, half):
        def regs(p):
            za = Z+16*half+2*p
            return za, za+8, tt[p]+(0 if half == 0 else 4), tt[p]+2
        for p in ps:
            za, zb, ta, tb = regs(p)
            a(f'v_exp_f32 v{ta}, v{za}'); a(f'v_exp_f32 v{ta+1}, v{za+1}')
            a(f'v_exp_f32 v{tb}, v{zb}'); a(f'v_exp_f32 v{tb+1}, v{zb+1}')
        for p in ps:
            za, zb, ta, tb = regs(p)
            a(f'v_pk_fma_f32 {pr(zb)}, {pr(zb)}, {pr(ta)}, {pr(zb)}')
        for p in ps:
            za, zb, ta, tb = regs(p)
            a(f'v_pk_add_f32 {pr(tb)}, {pr(tb)}, s[44:45]')
        for p in ps:
            za, zb, ta, tb = regs(p)
            a(f'v_pk_fma_f32 {pr(zb)}, {pr(za)}, {pr(tb)}, {pr(zb)}')
        for p in ps:
            za, zb, ta, tb = regs(p)
            a(f'v_pk_fma_f32 {pr(ta)}, {pr(ta)}, {pr(tb)}, {pr(tb)}')
    def merge(ps, n1, d1, n2, d2, no, do, x):
        for p in ps: a(f'v_pk_mul_f32 {pr(x(p))}, {pr(n1(p))}, {pr(d2(p))}')
        for p in ps: a(f'v_pk_fma_f32 {pr(no(p))}, {pr(n2(p))}, {pr(d1(p))}, {pr(x(p))}')
        for p in ps: a(f'v_pk_mul_f32 {pr(do(p))}, {pr(d1(p))}, {pr(d2(p))}')
    def finish(ps, n, d):
        for p in ps:
            a(f'v_rcp_f32 v{d(p)}, v{d(p)}'); a(f'v_rcp_f32 v{d(p)+1}, v{d(p)+1}')
        a('s_nop 0')
        for p in ps: a(f'v_pk_mul_f32 {pr(Z+2*p)}, {pr(n(p))}, {pr(d(p))}')
        for p in ps:
            a(f'v_cvt_f64_f32 {pr(Z+8+2*p)}, v{Z+2*p}'); a(f'v_cvt_f64_f32 {pr(Z+16+2*p)}, v{Z+2*p+1}')
        for p in ps:
            a(f'ds_add_f64 v{AGC}, {pr(Z+8+2*p)} offset:{64*(2*p)}')
            a(f'ds_add_f64 v{AGC}, {pr(Z+16+2*p)} offset:{64*(2*p+1)}')
    def compute(kind):
        for pp in range(2):
            ps = [2*pp, 2*pp+1]
            tt = {ps[0]: T, ps[1]: T+6}
            zA = lambda p: Z+2*p
            n1 = lambda p: Z+8+2*p; d1 = lambda p: tt[p]
            n2 = lambda p: Z+24+2*p; d2 = lambda p: tt[p]+4
            dm = lambda p: tt[p]+2
            if kind in ('4', '8a', '8b'):
                pair(ps, tt, 0); pair(ps, tt, 1)
                if kind == '8a':
                    merge(ps, n1, d1, n2, d2, lambda p: KN+2*p, lambda p: KD+2*p, zA)
                else:
                    merge(ps, n1, d1, n2, d2, zA, dm, zA)
                    if kind == '8b':
                        merge(ps, zA, dm, lambda p: KN+2*p, lambda p: KD+2*p, zA, d1, n1)
                        finish(ps, zA, d1)
                    else:
                        finish(ps, zA, dm)
            elif kind == '3':
                pair(ps, tt, 0)
                for p in ps:
                    a(f'v_exp_f32 v{d2(p)}, v{Z+16+2*p}'); a(f'v_exp_f32 v{d2(p)+1}, v{Z+17+2*p}')
                a('s_nop 0')
                for p in ps: a(f'v_pk_add_f32 {pr(d2(p))}, {pr(d2(p))}, s[44:45]')
                merge(ps, n1, d1, lambda p: Z+16+2*p, d2, zA, dm, zA)
                finish(ps, zA, dm)
            elif kind == '2':
                pair(ps, tt, 0)
                finish(ps, n1, d1)
            elif kind == '1':
                for p in ps:
                    a(f'v_exp_f32 v{d1(p)}, v{zA(p)}'); a(f'v_exp_f32 v{d1(p)+1}, v{zA(p)+1}')
                a('s_nop 0')
                for p in ps: a(f'v_pk_add_f32 {pr(d1(p))}, {pr(d1(p))}, s[44:45]')
                finish(ps, zA, d1)
    def plain():
        AC = T+8
        for k in range(4):
            Zk = Z+8*k
            for i in range(8): a(f'v_exp_f32 v{T+i}, v{Zk+i}')
            for p in range(4): a(f'v_pk_add_f32 {pr(T+2*p)}, {pr(T+2*p)}, s[44:45]')
            for i in range(8): a(f'v_rcp_f32 v{T+i}, v{T+i}')
            for p in range(4):
                if k == 0:
                    a(f'v_pk_mul_f32 {pr(AC+2*p)}, {pr(Zk+2*p)}, {pr(T+2*p)}')
                else:
                    a(f'v_pk_fma_f32 {pr(AC+2*p)}, {pr(Zk+2*p)}, {pr(T+2*p)}, {pr(AC+2*p)}')
        for i in range(8): a(f'v_cvt_f64_f32 {pr(Z+2*i)}, v{AC+i}')
        for i in range(8): a(f'ds_add_f64 v{AGC}, {pr(Z+2*i)} offset:{64*i}')
    pc = [0]
    def prio(inc):
        a(f's_add_u32 s83, s83, {inc}')
        if not PRIO: return
        n = pc[0]; pc[0] += 1
        a('s_cmp_lt_u32 s83, 2')
        a(f's_cbranch_scc1 B_pr{n}')
        a('s_setprio 2')
        a('s_cmp_lt_u32 s83, 4')
        a(f's_cbranch_scc1 B_pr{n}')
        a('s_setprio 1')
        a('s_cmp_lt_u32 s83, 6')
        a(f's_cbranch_scc1 B_pr{n}')
        a('s_setprio 0')
        a.lab(f'B_pr{n}')
    def dbgz(n):
        if not DEBUG: return
        a('s_cmp_gt_u32 s83, 15')
        a(f's_cbranch_scc1 B_nost{n}')
        a('s_memrealtime s[92:93]')
        a('s_add_u32 m0, s83, 16')
        a('s_waitcnt lgkmcnt(0)')
        a('v_writelane_b32 v65, s92, m0')
        a.lab(f'B_nost{n}')
    a('s_mov_b32 s76, s3')
    a('s_add_u32 s77, s3, 16')
    a('s_cmp_ge_u32 s76, s75')
    a('s_cbranch_scc1 B_loop_end')
    a('s_cmp_ge_u32 s76, s74')
    a('s_cbranch_scc1 B_pre4')
    addr8(76)
    rd(0); rd(1, 32)
    grab()
    a('s_waitcnt lgkmcnt(0)')
    fetch(0)
    a('s_waitcnt lgkmcnt(0)')
    a.lab('B_loop8')
    a('s_waitcnt lgkmcnt(8)')
    a(f'v_mov_b32 v{AGC}, v{AGN}')
    a(f'v_readfirstlane_b32 s78, v{IDX}')
    for k in range(4): zstep(0, k)
    dbgz('8')
    gathers(1)
    a('s_add_u32 s78, s78, 32')
    read_any(77, 0)
    compute('8a')
    for k in range(4): zstep(1, k)
    a('s_cmp_ge_u32 s77, s75')
    a('s_cbranch_scc1 B_nof8')
    a('s_waitcnt lgkmcnt(0)')
    fetch(0)
    a('s_cmp_ge_u32 s77, s74')
    a('s_cbranch_scc1 B_tr8')
    addr8(77)
    rd(1, 32)
    a('s_branch B_tr8x')
    a.lab('B_tr8')
    addr4(78)
    rd(1)
    a.lab('B_tr8x')
    grab()
    a.lab('B_nof8')
    compute('8b')
    prio(2)
    a('s_mov_b32 s76, s77')
    a('s_cmp_lt_u32 s76, s74')
    a('s_cselect_b32 s69, 1, 0')
    a('s_mov_b32 s77, s78')
    a('s_cbranch_scc1 B_loop8')
    a('s_cmp_lt_u32 s76, s75')
    a('s_cbranch_scc1 B_loop0')
    a('s_branch B_loop_end')
    a.lab('B_pre4')
    addr4(76)
    rd(0)
    grab()
    a('s_waitcnt lgkmcnt(0)')
    fetch(0)
    addr4(77)
    rd(1)
    a('s_waitcnt lgkmcnt(0)')
    for st in range(2):
        a.lab(f'B_loop{st}')
        a('s_waitcnt lgkmcnt(8)')
        a(f'v_mov_b32 v{AGC}, v{AGN}')
        a(f'v_readfirstlane_b32 s78, v{IDX}')
        a(f's_mov_b32 s69, {st}')
        zstep(st, 0)
        a('s_cmp_lg_u32 s90, 0')
        a(f's_cbranch_scc1 B_z1_{st}')
        a('s_cmp_ge_u32 s76, s82')
        a(f's_cbranch_scc1 B_zd_{st}')
        a.lab(f'B_z1_{st}')
        zstep(st, 1)
        a('s_cmp_lg_u32 s90, 0')
        a(f's_cbranch_scc1 B_z2_{st}')
        a('s_cmp_ge_u32 s76, s73')
        a(f's_cbranch_scc1 B_zd_{st}')
        a.lab(f'B_z2_{st}')
        zstep(st, 2)
        a('s_cmp_lg_u32 s90, 0')
        a(f's_cbranch_scc1 B_z3_{st}')
        a('s_cmp_ge_u32 s76, s72')
        a(f's_cbranch_scc1 B_zd_{st}')
        a.lab(f'B_z3_{st}')
        zstep(st, 3)
        a.lab(f'B_zd_{st}')
        dbgz(st)
        a('s_add_u32 s78, s78, 32')
        a('s_cmp_ge_u32 s77, s75')
        a(f's_cbranch_scc1 B_disp')
        fetch(1-st)
        addr4(78)
        rd(st)
        grab()
        if st == 0: a('s_branch B_disp')
    a.lab('B_disp')
    a('s_cmp_lg_u32 s90, 0')
    a('s_cbranch_scc1 B_cp')
    a('s_cmp_ge_u32 s76, s82')
    a('s_cbranch_scc1 B_c1')
    a('s_cmp_ge_u32 s76, s73')
    a('s_cbranch_scc1 B_c2')
    a('s_cmp_ge_u32 s76, s72')
    a('s_cbranch_scc1 B_c3')
    compute('4')
    a.lab('B_next')
    prio(1)
    a('s_mov_b32 s76, s77')
    a('s_mov_b32 s77, s78')
    a('s_cmp_ge_u32 s76, s75')
    a('s_cbranch_scc1 B_loop_end')
    a('s_cmp_eq_u32 s69, 0')
    a('s_cbranch_scc1 B_loop1')
    a('s_branch B_loop0')
    for kd_ in ('3', '2', '1'):
        a.lab(f'B_c{kd_}')
        compute(kd_)
        a('s_branch B_next')
    a.lab('B_cp')
    plain()
    a('s_branch B_next')
    a.lab('B_loop_end')
    stamp(a, 4)
    a('s_waitcnt vmcnt(0)')
    a('v_lshlrev_b32 v11, 4, v1')
    a('v_and_b32 v8, 31, v1')
    a('v_add_u32 v8, s38, v8')
    a('v_lshrrev_b32 v9, 5, v1')
    a('s_cmp_lt_u32 s3, 8')
    a('s_cbranch_scc1 B_join')
    a('s_lshl_b32 s39, s34, 12')
    a(f's_add_u32 s39, s39, {L_WU}')
    a('v_add_u32 v17, s39, v11')
    a('v_and_b32 v18, 7, v1')
    a('v_xor_b32 v18, v18, v9')
    a('v_lshlrev_b32 v16, 7, v8')
    a(f'v_add_u32 v16, {L_X}, v16')
    for ks in range(4):
        a(f'v_xor_b32 v19, {2*ks}, v18')
        a(f'v_lshl_add_u32 v{20+ks}, v19, 4, v16')
        a(f'ds_read_b128 {q4(32+4*ks)}, v{20+ks}')
        a(f'ds_read_b128 {q4(48+4*ks)}, v17 offset:{1024*ks}')
    a('s_waitcnt lgkmcnt(0)')
    for ks in range(4):
        c = '0' if ks == 0 else 'v[112:127]'
        a(f'v_mfma_f32_32x32x16_bf16 v[112:127], {q4(48+4*ks)}, {q4(32+4*ks)}, {c}')
    for ks in range(4):
        a(f'ds_read_b128 {q4(48+4*ks)}, v17 offset:{8192+1024*ks}')
    a.lab('B_join')
    a('s_waitcnt lgkmcnt(0)')
    a('s_barrier')
    stamp(a, 5)
    stampc(a, 9)
    if DEBUG: a('v_writelane_b32 v65, s83, 10')
    a('s_add_u32 s50, s50, s87')
    a('s_cmp_eq_u32 s71, 0')
    a('s_cbranch_scc1 B_fin')
    a('v_lshrrev_b32 v4, 3, v0')
    a('v_lshlrev_b32 v12, 10, v4')
    a('buffer_load_dword v6, v12, s[4:7], s32 offen')
    a('buffer_load_dword v7, v12, s[4:7], s33 offen')
    a('s_branch B_batch')
    a.lab('B_fin')
    a('s_cmp_lt_u32 s3, 8')
    a('s_cbranch_scc1 B_done2')
    a(f's_movk_i32 s51, {2*RS}')
    a('v_mul_u32_u24 v16, s51, v8')
    a('v_lshl_add_u32 v16, v9, 5, v16')
    a(f'v_add_u32 v16, {L_AGG}, v16')
    for half in range(2):
        for ii in range(4):
            i = half*4+ii
            a(f'ds_read_b128 {q4(64+8*ii)}, v16 offset:{64*i}')
            a(f'ds_read_b128 {q4(68+8*ii)}, v16 offset:{64*i+16}')
        for ii in range(4):
            i = half*4+ii
            a(f's_waitcnt lgkmcnt({6-2*ii})')
            for q in range(4):
                a(f'v_cvt_f32_f64 v{96+q}, {pr(64+8*ii+2*q)}')
            a(f'v_pk_mul_f32 v[96:97], v[96:97], s[48:49]')
            a(f'v_pk_mul_f32 v[98:99], v[98:99], s[48:49]')
            a(f'v_cvt_pk_bf16_f32 v{32+2*i}, v96, v97')
            a(f'v_cvt_pk_bf16_f32 v{33+2*i}, v98, v99')
    a('s_nop 1')
    for ks in range(4):
        a(f'v_mfma_f32_32x32x16_bf16 v[112:127], {q4(48+4*ks)}, {q4(32+4*ks)}, v[112:127]')
    a('v_add_u32 v17, s37, v8')
    a('v_lshlrev_b32 v17, 7, v17')
    a('v_lshl_add_u32 v17, v9, 5, v17')
    a('s_lshl_b32 s51, s34, 6')
    a(f'v_cmp_gt_u32 vcc, {NB}, v8')
    a('s_nop 12')
    for r in range(16): a(f'v_mul_f32 v{64+r}, s47, v{112+r}')
    for r in range(16): a(f'v_exp_f32 v{64+r}, v{64+r}')
    for r in range(16): a(f'v_add_f32 v{64+r}, 1.0, v{64+r}')
    for r in range(16): a(f'v_rcp_f32 v{64+r}, v{64+r}')
    for r in range(16): a(f'v_mul_f32 v{64+r}, v{64+r}, v{112+r}')
    for r in range(0, 16, 2): a(f'v_cvt_pk_bf16_f32 v{32+r//2}, v{64+r}, v{65+r}')
    a('s_and_b64 exec, exec, vcc')
    a(f'buffer_store_dwordx4 v[32:35], v17, s[24:27], s51 offen {ST_O}')
    a(f'buffer_store_dwordx4 v[36:39], v17, s[24:27], s51 offen offset:16 {ST_O}')
    a.lab('B_done2')
    stamp_out(a, 1, 88)
    a.lab('B_done')
    a('s_endpgm')
    a.lab('code_end')

def kd(a, name, vgpr, sgpr):
    a.raw('.p2align 6')
    a.raw(f'.amdhsa_kernel {name}')
    a.raw(f'  .amdhsa_next_free_vgpr {vgpr}')
    a.raw(f'  .amdhsa_next_free_sgpr {sgpr}')
    a.raw(f'  .amdhsa_accum_offset {(vgpr+3)//4*4}')
    a.raw('  .amdhsa_group_segment_fixed_size 0')
    a.raw('  .amdhsa_kernarg_size 72')
    a.raw('  .amdhsa_user_sgpr_count 2')
    a.raw('  .amdhsa_user_sgpr_kernarg_segment_ptr 1')
    a.raw('  .amdhsa_system_sgpr_workgroup_id_x 1')
    a.raw('.end_amdhsa_kernel')

def main():
    ref = open('gather_scatter__mpnn_edge_mlp__graph.s.ref').read().splitlines()
    hdr = [l for l in ref if l.startswith(';') and '@launch' not in l and 'Override' not in l and 'grid=ceil' not in l]
    a = A()
    for l in hdr: a.raw(l)
    a.raw(f'; @launch kernel=mpnn_bin_kernel grid=({A_GRID},1,1) block=({A_BLOCK},1,1) lds={A_LDS}')
    a.raw(f'; @launch kernel=mpnn_main_kernel grid=({NBK},1,1) block=(1024,1,1) lds={B_LDS}')
    a.raw('.amdgcn_target "amdgcn-amd-amdhsa--gfx950"')
    a.raw('.text')
    kernel_a(a)
    kernel_b(a)
    a.raw('.section .rodata,"a"')
    kd(a, 'mpnn_bin_kernel', 128, 100)
    kd(a, 'mpnn_main_kernel', 128, 100)
    out = sys.argv[1] if len(sys.argv) > 1 else 'gather_scatter__mpnn_edge_mlp__graph.s'
    open(out, 'w').write('\n'.join(a.l) + '\n')

main()
```

```python
import sys, struct, os
DEBUG = int(os.environ.get('DEBUG', '0'))
PRIO = int(os.environ.get('PRIO', '1'))
XMAP = int(os.environ.get('XMAP', '1'))
PREF = int(os.environ.get('PREF', '0'))
CPF = int(os.environ.get('CPF', '0'))
TLBW = int(os.environ.get('TLBW', '0'))
ST_O = os.environ.get('ST_O', '')
LATESRC = int(os.environ.get('LATESRC', '1'))
TOUCH = int(os.environ.get('TOUCH', '4'))
FORCE_PLAIN = int(os.environ.get('FORCE_PLAIN', '0'))

N = 25000; E = 800000
NB = 98
NBK = 256
CH = 3200
NCH = 250
WS_REC = 0
WS_TAB = 0x700000
WS_PF  = 0x780000
WS_PT  = 0x800000
WS_WF  = 0x7C0000
REC_BYTES = NCH*CH*8
TAB_BYTES = NCH*NBK*4
PF_BYTES  = 1000*4
PT_BYTES  = (N+1)*128
WF_BYTES  = 3*8192 + 512
WF_W3 = 3*8192
LOG2E = 1.4426950408889634
LN2 = 0.6931471805599453
LIM_P = 3.0; LIM_Q = 3.0; LIM_E_BF16 = 0x4040; LIM_W = 3.0
def f32(x): return struct.unpack('<I', struct.pack('<f', x))[0]

class A:
    def __init__(s): s.l = []
    def __call__(s, t): s.l.append('    ' + t)
    def lab(s, t): s.l.append(t + ':')
    def raw(s, t): s.l.append(t)

def srd(a, d, base, off, nbytes):
    if off:
        a(f's_add_u32 s{d}, s{base}, {hex(off)}')
        a(f's_addc_u32 s{d+1}, s{base+1}, 0')
    else:
        a(f's_mov_b32 s{d}, s{base}')
        a(f's_mov_b32 s{d+1}, s{base+1}')
    a(f's_mov_b32 s{d+2}, {hex(nbytes)}')
    a(f's_mov_b32 s{d+3}, 0x00020000')

PROF_OFF = 0x4000000
def stamp(a, i, vr=65, sr=92):
    if not DEBUG: return
    a(f's_memrealtime s[{sr}:{sr+1}]')
    a('s_waitcnt lgkmcnt(0)')
    a(f'v_writelane_b32 v{vr}, s{sr}, {i}')
def stampc(a, i, vr=65, sr=92):
    if not DEBUG: return
    a(f's_memtime s[{sr}:{sr+1}]')
    a('s_waitcnt lgkmcnt(0)')
    a(f'v_writelane_b32 v{vr}, s{sr}, {i}')
def stamp_out(a, kern, wsreg, vr=65, sr=92, tmp=6):
    if not DEBUG: return
    a('s_waitcnt vmcnt(0)')
    stamp(a, 15, vr, sr)
    a('s_mov_b64 exec, -1')
    srd(a, 96, wsreg, PROF_OFF + kern*0x400000, 0x400000)
    a(f's_lshl_b32 s{sr}, s2, 4')
    a(f's_add_u32 s{sr}, s{sr}, s3')
    a(f's_lshl_b32 s{sr}, s{sr}, 8')
    a(f'v_lshlrev_b32 v{tmp}, 2, v1')
    a(f'buffer_store_dword v{vr}, v{tmp}, s[96:99], s{sr} offen')

def wave_scan(a, v):
    for sh in (1, 2, 4, 8):
        a('s_nop 1')
        a(f'v_add_u32_dpp v{v}, v{v}, v{v} row_shr:{sh} row_mask:0xf bank_mask:0xf bound_ctrl:0')
    a('s_nop 1')
    a(f'v_add_u32_dpp v{v}, v{v}, v{v} row_bcast:15 row_mask:0xa bank_mask:0xf')
    a('s_nop 1')
    a(f'v_add_u32_dpp v{v}, v{v}, v{v} row_bcast:31 row_mask:0xc bank_mask:0xf')

def pr(r): return f'v[{r}:{r+1}]'
def q4(r): return f'v[{r}:{r+3}]'

A_GEMM0 = NCH
A_PREP0 = NCH + 250
A_GRID = A_PREP0 + 4
A_BLOCK = 448
A_XT = 0
A_W1 = 4*4096
A_LDS = 2112 + CH*8
A_STAGE = 2048 + 64
A_EFLAG = 2048
ST_A = os.environ.get('ST_A', 'sc0 sc1')

def kernel_a(a):
    a.raw('.globl mpnn_bin_kernel')
    a.raw('.p2align 8')
    a.raw('.type mpnn_bin_kernel,@function')
    a.lab('mpnn_bin_kernel')
    if DEBUG:
        a('s_memrealtime s[94:95]')
        a('s_getreg_b32 s62, hwreg(HW_REG_HW_ID)')
        a('s_getreg_b32 s63, hwreg(HW_REG_XCC_ID)')
    a('s_load_dwordx16 s[4:19], s[0:1], 0')
    a('s_load_dwordx2 s[20:21], s[0:1], 64')
    if CPF:
        a('s_getpc_b64 s[60:61]')
        a.lab('A_pc')
        a('v_lshlrev_b32 v100, 4, v0')
        a('v_add_u32 v101, 7168, v100')
        a('v_min_u32 v101, code_end-A_pc-16, v101')
        a('v_min_u32 v100, code_end-A_pc-16, v100')
        a('global_load_dwordx4 v[104:107], v100, s[60:61]')
        a('global_load_dwordx4 v[108:111], v101, s[60:61]')
    a(f's_cmp_ge_u32 s2, {A_GRID}')
    a('s_cbranch_scc1 A_done')
    a('v_lshrrev_b32 v1, 6, v0')
    a('v_lshlrev_b32 v3, 4, v0')
    a('v_readfirstlane_b32 s3, v1')
    a('v_and_b32 v1, 63, v0')
    a(f's_cmp_ge_u32 s2, {A_PREP0}')
    a('s_cbranch_scc1 A_prep')
    a(f's_cmp_ge_u32 s2, {A_GEMM0}')
    a('s_cbranch_scc1 A_gemm')
    a('v_cmp_gt_u32 vcc, 400, v0')
    a('s_and_b64 exec, exec, vcc')
    a('v_lshlrev_b32 v2, 3, v0')
    a(f's_mul_i32 s44, s2, {CH*4}')
    a(f's_mul_i32 s45, s2, {CH*2}')
    a(f's_add_u32 s50, s44, {CH*2}')
    a(f's_add_u32 s51, s45, {CH}')
    a('s_waitcnt lgkmcnt(0)')
    srd(a, 24, 10, 0, E*4)
    a('buffer_load_dwordx4 v[8:11], v3, s[24:27], s44 offen')
    a('buffer_load_dwordx4 v[12:15], v3, s[24:27], s50 offen')
    srd(a, 28, 8, 0, E*4)
    srd(a, 32, 6, 0, E*2)
    def srcloads():
        a('buffer_load_dwordx4 v[16:19], v3, s[28:31], s44 offen')
        a('buffer_load_dwordx4 v[20:23], v3, s[28:31], s50 offen')
        a('buffer_load_dwordx2 v[24:25], v2, s[32:35], s45 offen')
        a('buffer_load_dwordx2 v[26:27], v2, s[32:35], s51 offen')
    if not LATESRC: srcloads()
    stamp(a, 0, 70)
    if DEBUG:
        a('v_writelane_b32 v70, s94, 8')
        a('v_writelane_b32 v70, s62, 9')
        a('v_writelane_b32 v70, s63, 10')
    a('v_lshlrev_b32 v5, 2, v0')
    a('v_mov_b32 v4, 0')
    a('v_mov_b32 v6, 2048')
    a('v_cmp_gt_u32 vcc, 256, v0')
    a('s_nop 1')
    a('v_cndmask_b32 v5, v6, v5, vcc')
    a('ds_write_b32 v5, v4')
    if TLBW:
        srd(a, 36, 20, 0, 0xC00000)
        a('v_lshlrev_b32 v7, 20, v1')
        a('buffer_load_dword v71, v7, s[36:39], 0 offen')
    srd(a, 36, 20, WS_REC, REC_BYTES)
    srd(a, 40, 20, WS_TAB, TAB_BYTES)
    a('s_mov_b32 s46, 42800')
    a('s_mov_b32 s47, -196')
    a('s_mov_b32 s48, 0xffff0000')
    a('s_mov_b32 s52, 0x7fff7fff')
    a('v_mov_b32 v4, 1')
    a('s_waitcnt lgkmcnt(0)')
    a('s_barrier')
    for hf in range(2):
        if LATESRC:
            a(f's_waitcnt vmcnt({1 if hf == 0 else 4})')
            if hf == 0: srcloads()
        else:
            a(f's_waitcnt vmcnt({5-hf+TLBW})')
        if hf == 0: stamp(a, 1, 70)
        for j in range(4*hf, 4*hf+4):
            a(f'v_mul_u32_u24 v{28+j}, s46, v{8+j}')
            a(f'v_lshrrev_b32 v{28+j}, 22, v{28+j}')
            a(f'v_lshlrev_b32 v{28+j}, 2, v{28+j}')
            a(f'ds_add_rtn_u32 v{56+j}, v{28+j}, v4')
    for j in range(8):
        a(f'v_lshlrev_b32 v{8+j}, 3, v{8+j}')
        a(f'v_mad_i32_i24 v{41+2*j}, v{28+j}, s47, v{8+j}')
    a('s_mov_b64 s[22:23], exec')
    a('s_waitcnt lgkmcnt(0)')
    a('s_barrier')
    stamp(a, 2, 70)
    a('s_mov_b64 exec, -1')
    a('v_lshlrev_b32 v5, 4, v1')
    a('ds_read_b128 v[8:11], v5')
    a('s_waitcnt lgkmcnt(0)')
    a('v_add_u32 v13, v8, v9')
    a('v_add_u32 v14, v13, v10')
    a('v_add_u32 v15, v14, v11')
    a('v_mov_b32 v72, v15')
    wave_scan(a, 72)
    a('v_sub_u32 v12, v72, v15')
    a('v_add_u32 v15, v12, v14')
    a('v_add_u32 v14, v12, v13')
    a('v_add_u32 v13, v12, v8')
    for k in range(4):
        a(f'v_lshlrev_b32 v{72+k}, 3, v{12+k}')
    a('ds_write_b128 v5, v[72:75] offset:1024')
    for k in range(4):
        a(f'v_lshl_or_b32 v{64+k}, v{8+k}, 16, v{12+k}')
    a('s_mov_b64 exec, s[22:23]')
    a('s_waitcnt lgkmcnt(0)')
    for j in range(8):
        a(f'ds_read_b32 v{8+j}, v{28+j} offset:1024')
    a('s_waitcnt vmcnt(0)')
    for j in range(8):
        if j % 2 == 0:
            a(f'v_lshlrev_b32 v{40+2*j}, 16, v{24+j//2}')
        else:
            a(f'v_and_b32 v{40+2*j}, s48, v{24+j//2}')
        a(f'v_lshl_or_b32 v{41+2*j}, v{41+2*j}, 16, v{16+j}')
    for j in range(4):
        a(f'v_and_b32 v{24+j}, s52, v{24+j}')
    a('v_pk_max_u16 v24, v24, v25')
    a('v_pk_max_u16 v26, v26, v27')
    a('v_pk_max_u16 v24, v24, v26')
    a('v_lshrrev_b32 v25, 16, v24')
    a('v_and_b32 v24, 0xffff, v24')
    a('v_max_u32 v24, v24, v25')
    a(f'v_cmp_lt_u32 vcc, {hex(LIM_E_BF16)}, v24')
    a('s_and_saveexec_b64 s[54:55], vcc')
    a('s_cbranch_execz A_eok')
    a('v_mov_b32 v25, 0x80000000')
    a('ds_write_b32 v6, v25')
    a.lab('A_eok')
    a('s_mov_b64 exec, s[54:55]')
    a('s_waitcnt lgkmcnt(0)')
    for j in range(8):
        a(f'v_lshl_add_u32 v{8+j}, v{56+j}, 3, v{8+j}')
    stamp(a, 3, 70)
    for j in range(8):
        a(f'ds_write_b64 v{8+j}, {pr(40+2*j)} offset:{A_STAGE}')
    a('s_waitcnt lgkmcnt(0)')
    a('s_barrier')
    stamp(a, 4, 70)
    a('s_cmp_lg_u32 s3, 6')
    a('s_cbranch_scc1 A_notab')
    a('s_mov_b64 exec, -1')
    a('v_mov_b32 v6, 2048')
    a('ds_read_b32 v7, v6')
    a('s_lshl_b32 s49, s2, 10')
    a('s_waitcnt lgkmcnt(0)')
    for k in range(4):
        a(f'v_or_b32 v{64+k}, v{64+k}, v7')
    a(f'buffer_store_dwordx4 v[64:67], v5, s[40:43], s49 offen {ST_A}')
    a('s_mov_b64 exec, s[22:23]')
    a.lab('A_notab')
    for j in range(4):
        a(f'ds_read_b128 {q4(8+4*j)}, v3 offset:{A_STAGE+6400*j}')
    a(f's_mul_i32 s49, s2, {CH*8}')
    for j in range(4):
        a(f's_waitcnt lgkmcnt({3-j})')
        a(f'buffer_store_dwordx4 {q4(8+4*j)}, v3, s[36:39], s49 offen {ST_A}')
        if j < 3:
            a(f's_add_u32 s49, s49, 6400')
    stamp(a, 5, 70)
    stamp_out(a, 0, 20, 70)
    a('s_endpgm')

    a.lab('A_gemm')
    a(f's_sub_u32 s22, s2, {A_GEMM0}')
    a('s_mul_i32 s48, s22, 12800')
    a('s_add_u32 s49, s48, 12800')
    a('s_lshl_b32 s22, s22, 2')
    a('s_add_u32 s22, s22, s3')
    a('v_and_b32 v2, 31, v1')
    a('v_lshrrev_b32 v3, 5, v1')
    a('v_lshlrev_b32 v4, 2, v2')
    a('v_lshl_add_u32 v7, v3, 9, v4')
    a('v_lshl_add_u32 v4, v3, 10, v4')
    a(f'v_add_u32 v4, {A_W1}, v4')
    a('v_lshlrev_b32 v5, 4, v0')
    a('s_lshl_b32 s23, s3, 12')
    a('s_add_u32 s23, s23, s48')
    a('v_lshlrev_b32 v6, 4, v1')
    a('s_lshl_b32 s42, s3, 12')
    a('v_add_u32 v7, s42, v7')
    a('v_lshrrev_b32 v8, 3, v1')
    a('v_and_b32 v9, 7, v1')
    a('v_xor_b32 v10, v9, v8')
    a('v_lshlrev_b32 v10, 4, v10')
    a('v_lshl_add_u32 v10, v8, 7, v10')
    a('v_add_u32 v10, s42, v10')
    a('v_xor_b32 v9, v9, v3')
    a('v_lshlrev_b32 v8, 7, v2')
    a('v_add_u32 v8, s42, v8')
    for ks in range(4):
        a(f'v_xor_b32 v{11+ks}, {2*ks}, v9')
        a(f'v_lshl_add_u32 v{11+ks}, v{11+ks}, 4, v8')
    a('s_waitcnt lgkmcnt(0)')
    srd(a, 24, 4, 0, N*128)
    a('s_mov_b32 s26, s49')
    srd(a, 28, 12, 0, 64*128)
    a('s_movk_i32 s43, 7168')
    a('buffer_load_dwordx4 v[16:19], v5, s[28:31], 0 offen')
    a('buffer_load_dwordx4 v[20:23], v5, s[28:31], s43 offen')
    for j in range(4):
        a(f'buffer_load_dwordx4 {q4(48+4*j)}, v6, s[24:27], s23 offen offset:{1024*j}')
    stamp(a, 0, 15)
    if DEBUG:
        a('v_writelane_b32 v15, s94, 8')
        a('v_writelane_b32 v15, s62, 9')
        a('v_writelane_b32 v15, s63, 10')
    srd(a, 32, 20, WS_PT, N*128)
    a('s_mov_b32 s34, s49')
    srd(a, 44, 20, WS_PF, PF_BYTES)
    a('s_mov_b32 s36, 0x05040100')
    a('s_mov_b32 s37, 0x07060302')
    a(f's_mov_b32 s38, {hex(f32(-LOG2E))}')
    a('s_mov_b32 s39, 0x7fffffff')
    a('s_mov_b32 s40, 0x7fff0000')
    a(f's_mov_b32 s41, {hex(f32(LIM_P))}')
    a('s_waitcnt vmcnt(4)')
    a(f'ds_write_b128 v5, v[16:19] offset:{A_W1}')
    a('s_cmp_lg_u32 s3, 0')
    a('s_cbranch_scc1 A_w1done')
    a(f'ds_write_b128 v5, v[20:23] offset:{A_W1+7168}')
    a.lab('A_w1done')
    a('s_waitcnt lgkmcnt(0)')
    a('s_barrier')
    a('s_cmp_ge_u32 s3, 4')
    a('s_cbranch_scc1 A_done')
    for ks in range(4):
        if ks: a('v_add_u32 v4, 2048, v4')
        for jj in range(4):
            a(f'ds_read2_b32 {pr(16+8*ks+2*jj)}, v4 offset0:{64*jj} offset1:{64*jj+32}')
    a('s_waitcnt vmcnt(0)')
    for j in range(4):
        a(f'ds_write_b128 v10, {q4(48+4*j)} offset:{1024*j}')
    a('s_waitcnt lgkmcnt(0)')
    for ks in range(4):
        a(f'ds_read_b128 {q4(48+4*ks)}, v{11+ks}')
    stamp(a, 1, 15)
    for ks in range(4):
        for jj in range(4):
            r0 = 16+8*ks+2*jj
            a(f'v_perm_b32 v{64+4*ks+jj}, v{r0+1}, v{r0}, s36')
            a(f'v_perm_b32 v{80+4*ks+jj}, v{r0+1}, v{r0}, s37')
    a('s_waitcnt lgkmcnt(0)')
    for ks in range(4):
        c0 = '0' if ks == 0 else 'v[96:111]'
        c1 = '0' if ks == 0 else 'v[112:127]'
        a(f'v_mfma_f32_32x32x16_bf16 v[96:111], {q4(48+4*ks)}, {q4(64+4*ks)}, {c0}')
        a(f'v_mfma_f32_32x32x16_bf16 v[112:127], {q4(48+4*ks)}, {q4(80+4*ks)}, {c1}')
    a('s_nop 15')
    stamp(a, 2, 15)
    for r in range(16):
        a(f'v_mul_f32 v{96+r}, s38, v{96+r}')
    for r in range(16):
        a(f'v_mul_f32 v{112+r}, s38, v{112+r}')
    for r in range(0, 16, 2):
        a(f'v_cvt_pk_bf16_f32 v{16+r}, v{96+r}, v{97+r}')
    for r in range(0, 16, 2):
        a(f'v_lshrrev_b32 v{17+r}, 16, v{16+r}')
        a(f'v_and_b32 v{16+r}, 0xffff, v{16+r}')
    for r in range(16):
        a(f'v_and_b32 v{32+r}, s39, v{112+r}')
    for r in range(16):
        a(f'v_add_u32 v{32+r}, 0x8000, v{32+r}')
    for r in range(16):
        a(f'v_sub_u32 v{32+r}, v{32+r}, v{16+r} clamp')
    for r in range(16):
        a(f'v_and_or_b32 v{32+r}, v{32+r}, s40, v{16+r}')
    for r in range(16):
        a(f'v_bfi_b32 v{32+r}, s39, v{32+r}, v{112+r}')
        a(f'ds_write_b32 v7, v{32+r} offset:{((r&3)+8*(r>>2))*128}')
    a('v_add_u32 v8, s42, v6')
    a('s_waitcnt lgkmcnt(0)')
    for j in range(4):
        a(f'ds_read_b128 {q4(48+4*j)}, v8 offset:{1024*j}')
    a('v_max_f32 v64, |v96|, |v97|')
    for r in range(2, 32, 2):
        a(f'v_max3_f32 v64, v64, |v{96+r}|, |v{97+r}|')
    a('v_cmp_lt_f32 vcc, s41, v64')
    for j in range(4):
        a(f's_waitcnt lgkmcnt({3-j})')
        a(f'buffer_store_dwordx4 {q4(48+4*j)}, v6, s[32:35], s23 offen offset:{1024*j} {ST_A}')
    a('s_lshl_b32 s43, s22, 2')
    a('v_mov_b32 v66, 0')
    a('s_cmp_lg_u64 vcc, 0')
    a('s_cselect_b32 s42, 1, 0')
    a('v_mov_b32 v65, s42')
    a('s_mov_b64 exec, 1')
    a(f'buffer_store_dword v65, v66, s[44:47], s43 offen {ST_A}')
    stamp(a, 5, 15)
    stamp_out(a, 0, 20, 15)
    a('s_endpgm')

    a.lab('A_prep')
    a(f's_sub_u32 s50, s2, {A_PREP0}')
    a('s_mul_i32 s50, s50, 7')
    a('s_add_u32 s50, s50, s3')
    a('s_cmp_gt_u32 s50, 24')
    a('s_cbranch_scc1 A_done')
    a('s_lshr_b32 s22, s50, 3')
    a('s_bfe_u32 s23, s50, 0x10002')
    a('s_and_b32 s24, s50, 3')
    a('v_and_b32 v2, 31, v1')
    a('v_lshrrev_b32 v3, 5, v1')
    a('v_bfe_u32 v4, v2, 2, 1')
    a('v_and_b32 v5, 3, v2')
    a('v_lshrrev_b32 v6, 3, v2')
    a('v_lshl_add_u32 v5, v6, 2, v5')
    a('s_waitcnt lgkmcnt(0)')
    srd(a, 32, 20, WS_WF, WF_BYTES)
    a('s_cmp_eq_u32 s50, 24')
    a('s_cbranch_scc1 A_prep_w3')
    a('s_cmp_lg_u32 s22, 0')
    a('s_cbranch_scc1 A_prep_u')
    srd(a, 28, 12, 0, 129*128)
    a('v_lshrrev_b32 v6, 3, v5')
    a('v_lshl_add_u32 v6, v4, 2, v6')
    a('s_lshl_b32 s25, s23, 1')
    a('v_add_u32 v6, s25, v6')
    a('v_and_b32 v7, 7, v5')
    a('v_lshlrev_b32 v8, 1, v7')
    a('v_add_u32 v9, 1, v8')
    a('v_subrev_u32 v8, 8, v8')
    a('v_cmp_gt_u32 vcc, 4, v7')
    a('s_nop 1')
    a('v_cndmask_b32 v8, v8, v9, vcc')
    a('v_lshl_add_u32 v8, v6, 3, v8')
    a('v_lshlrev_b32 v8, 1, v8')
    a('v_lshl_add_u32 v8, v3, 10, v8')
    a('s_lshl_b32 s26, s24, 11')
    a('s_add_u32 s26, s26, 8192')
    for j in range(8):
        a(f'buffer_load_ushort v{32+j}, v8, s[28:31], s26 offen offset:{128*j}')
    a('s_branch A_prep_st')
    a.lab('A_prep_u')
    srd(a, 28, 14, 0, 128*128)
    a('v_lshl_add_u32 v8, v4, 4, v5')
    a('s_lshl_b32 s25, s23, 5')
    a('v_add_u32 v8, s25, v8')
    a('v_lshlrev_b32 v8, 1, v8')
    a('s_cmp_lg_u32 s22, 1')
    a('s_cbranch_scc1 A_prep_agg')
    a('v_lshl_add_u32 v8, v3, 10, v8')
    a('s_lshl_b32 s26, s24, 11')
    for j in range(8):
        a(f'buffer_load_ushort v{32+j}, v8, s[28:31], s26 offen offset:{128*j}')
    a('s_branch A_prep_st')
    a.lab('A_prep_w3')
    srd(a, 44, 20, WS_PT + N*128, 128)
    a('v_mov_b32 v20, 0x71497149')
    a('v_mov_b32 v21, v20')
    a('v_mov_b32 v22, v20')
    a('v_mov_b32 v23, v20')
    a('v_lshlrev_b32 v24, 4, v1')
    a('buffer_store_dwordx4 v[20:23], v24, s[44:47], 0 offen')
    srd(a, 36, 12, 0, 129*128)
    a('v_and_b32 v10, 7, v1')
    a('v_lshlrev_b32 v11, 4, v10')
    a('s_movk_i32 s27, 0x4000')
    a('buffer_load_dwordx4 v[44:47], v11, s[36:39], s27 offen')
    a(f's_mov_b32 s40, {hex(f32(-LOG2E))}')
    a('s_waitcnt vmcnt(0)')
    for i in range(4):
        a(f'v_and_b32 v{48+i}, 0xffff0000, v{44+i}')
        a(f'v_lshlrev_b32 v{52+i}, 16, v{44+i}')
    for i in range(8):
        a(f'v_mul_f32 v{48+i}, s40, v{48+i}')
    a('v_max3_f32 v44, |v48|, |v49|, |v50|')
    a('v_max3_f32 v44, v44, |v51|, |v52|')
    a('v_max3_f32 v44, v44, |v53|, |v54|')
    a('v_max_f32 v44, v44, |v55|')
    a(f'v_cmp_lt_f32 vcc, {hex(f32(LIM_W))}, v44')
    a('v_lshlrev_b32 v11, 5, v10')
    a('s_cmp_lg_u64 vcc, 0')
    a('s_cselect_b32 s41, 1, 0')
    a('v_mov_b32 v45, s41')
    a('v_mov_b32 v46, 0')
    a(f's_movk_i32 s27, {WF_W3}')
    a('buffer_store_dwordx4 v[48:51], v11, s[32:35], s27 offen')
    a('buffer_store_dwordx4 v[52:55], v11, s[32:35], s27 offen offset:16')
    a('buffer_store_dword v45, v46, s[32:35], s27 offen offset:256')
    a('s_endpgm')
    a.lab('A_prep_agg')
    a('v_lshl_add_u32 v8, v3, 12, v8')
    a('s_lshl_b32 s26, s24, 2')
    a('s_add_u32 s27, s26, 1')
    a('s_sub_u32 s26, s26, 8')
    a('s_cmp_lt_u32 s24, 2')
    a('s_cselect_b32 s26, s27, s26')
    a('s_add_u32 s26, s26, 64')
    a('s_lshl_b32 s26, s26, 7')
    for j in range(8):
        a(f'buffer_load_ushort v{32+j}, v8, s[28:31], s26 offen offset:{(j&3)*1024+(j>>2)*256}')
    a.lab('A_prep_st')
    a('s_lshl_b32 s25, s50, 10')
    a('v_lshlrev_b32 v9, 4, v1')
    a('s_waitcnt vmcnt(0)')
    for j in range(4):
        a(f'v_lshl_or_b32 v{16+j}, v{33+2*j}, 16, v{32+2*j}')
    a('buffer_store_dwordx4 v[16:19], v9, s[32:35], s25 offen')
    a.lab('A_done')
    a('s_endpgm')

RS = 288
L_CNT = 0
L_MAX = 1024
L_FLAG = 1028
L_F8C = 1032
L_TOT = 1036
L_WORK = 1040
L_OVF = 1044
L_L8 = 1056
L_L2 = L_L8 + 1600
L_REC = L_L2 + 832
DUMP_OFF = NB*512
L_Q = L_REC + DUMP_OFF + 64
L_AGG = L_Q + (NB+1)*RS
L_X = L_AGG + (NB+1)*RS*2
L_WU = L_X + 13*1024
L_W3 = L_WU + 8192
B_LDS = L_W3 + 256
DUMMY1 = N | (NB*8) << 16
for x in (L_L8, L_REC, L_Q, L_AGG, L_X, L_WU): assert x % 16 == 0
assert B_LDS <= 163840 and L_Q + 128 < 65536

def kernel_b(a):
    a.raw('.globl mpnn_main_kernel')
    a.raw('.p2align 8')
    a.raw('.type mpnn_main_kernel,@function')
    a.lab('mpnn_main_kernel')
    a('s_load_dwordx2 s[80:81], s[0:1], 64')
    a('s_load_dwordx16 s[64:79], s[0:1], 0')
    a(f's_cmp_ge_u32 s2, {NBK}')
    a('s_cbranch_scc1 B_done')
    a('v_lshrrev_b32 v1, 6, v0')
    a('v_lshrrev_b32 v4, 3, v0')
    a('v_readfirstlane_b32 s3, v1')
    a('v_lshlrev_b32 v12, 10, v4')
    a('s_and_b32 s85, s2, 7')
    a('s_lshl_b32 s85, s85, 5')
    a('s_lshr_b32 s86, s2, 3')
    a('s_add_u32 s85, s85, s86')
    a('s_lshl_b32 s32, s85, 2')
    a('s_add_u32 s33, s32, 0x20000')
    a('v_and_b32 v1, 63, v0')
    a('v_and_b32 v3, 7, v0')
    a('v_lshlrev_b32 v2, 4, v3')
    a('v_lshlrev_b32 v11, 4, v1')
    a(f's_mul_i32 s37, s85, {NB}')
    a('s_lshl_b32 s39, s37, 7')
    a('s_lshl_b32 s40, s3, 10')
    a('s_add_u32 s39, s39, s40')
    a('s_and_b32 s34, s3, 1')
    a('s_lshl_b32 s41, s34, 12')
    a('s_waitcnt lgkmcnt(0)')
    ws = 80
    srd(a, 4, ws, WS_TAB, TAB_BYTES)
    a('buffer_load_dword v6, v12, s[4:7], s32 offen')
    a('buffer_load_dword v7, v12, s[4:7], s33 offen')
    stamp(a, 0)
    srd(a, 8, ws, WS_REC, REC_BYTES)
    a(f's_add_u32 s28, s80, {hex(WS_WF+WF_W3+256)}')
    a('s_addc_u32 s29, s81, 0')
    a('s_load_dword s90, s[28:29], 0')
    srd(a, 12, ws, WS_PT, PT_BYTES)
    srd(a, 24, 76, 0, N*128)
    a('s_mov_b64 s[88:89], s[80:81]')
    a('s_bfe_u32 s35, s3, 0x20001')
    a('s_lshl_b32 s38, s35, 5')
    a('v_and_b32 v8, 31, v1')
    a('v_add_u32 v8, s38, v8')
    a('v_lshrrev_b32 v9, 5, v1')
    a('v_lshlrev_b32 v3, 3, v3')
    a(f'v_add_u32 v3, {L_AGG}, v3')
    a('s_movk_i32 s42, 128')
    a('s_mov_b32 s44, 1.0')
    a('s_mov_b32 s45, 1.0')
    a('s_mov_b32 s46, 0x3f80')
    a(f's_mov_b32 s47, {hex(f32(-LOG2E))}')
    a(f's_mov_b32 s48, {hex(f32(-LN2))}')
    a(f's_mov_b32 s49, {hex(f32(-LN2))}')
    a('s_mov_b32 s50, 0')
    a('s_movk_i32 s84, 72')
    a('s_mov_b32 s86, 0')
    a('s_mov_b32 s87, -1')
    srd(a, 16, 64, 0, N*128)
    srd(a, 20, ws, WS_WF, WF_BYTES)
    srd(a, 28, ws, WS_PF, PF_BYTES)
    for r in range(44, 48): a(f'v_mov_b32 v{r}, 0') if False else None
    a('s_cmp_ge_u32 s3, 13')
    a('s_cbranch_scc1 B_a13')
    a('buffer_load_dwordx4 v[32:35], v11, s[16:19], s39 offen')
    a('s_cmp_ge_u32 s3, 8')
    a('s_cbranch_scc1 B_a8')
    a(f's_add_u32 m0, s40, {L_WU}')
    a('s_nop 0')
    a('buffer_load_dwordx4 v11, s[20:23], s40 offen lds')
    a('s_branch B_batch')
    a.lab('B_a8')
    a('s_sub_u32 s51, s40, 8192')
    a('buffer_load_dwordx4 v[48:51], v11, s[28:31], s51 offen')
    a('s_branch B_batch')
    a.lab('B_a13')
    a(f's_mov_b32 m0, {L_W3}')
    a(f's_movk_i32 s51, {WF_W3}')
    a('s_mov_b64 exec, 0xffff')
    a('buffer_load_dwordx4 v11, s[20:23], s51 offen lds')
    a('buffer_load_dwordx4 v11, s[20:23], s51 offen lds')
    a('s_mov_b64 exec, -1')
    a.lab('B_batch')
    a('v_and_b32 v14, 7, v0')
    a('v_lshlrev_b32 v14, 1, v14')
    a('v_add_u32 v14, s50, v14')
    a(f's_movk_i32 s51, {CH}')
    a('v_mul_u32_u24 v15, s51, v4')
    a('v_add_u32 v15, v15, v14')
    a('v_mov_b32 v25, 0x7fffff00')
    a('v_lshrrev_b32 v45, 3, v1')
    a('v_and_b32 v46, 7, v1')
    a('v_xor_b32 v47, v46, v45')
    a('v_lshlrev_b32 v47, 4, v47')
    a('v_lshl_add_u32 v47, v45, 7, v47')
    a(f's_add_u32 s51, s40, {L_X}')
    a('v_add_u32 v47, s51, v47')
    a('s_cmp_lg_u32 s86, 0')
    a('s_cbranch_scc1 B_tw0')
    a('s_waitcnt vmcnt(2)')
    a('s_branch B_twx')
    a.lab('B_tw0')
    a('s_waitcnt vmcnt(0)')
    a.lab('B_twx')
    stamp(a, 1)
    for rd_ in range(2):
        T_ = 6+rd_
        a(f'v_bfe_u32 v{20+rd_}, v{T_}, 16, 13')
        a(f'v_and_b32 v{22+rd_}, 0xffff, v{T_}')
        a(f'v_add_u32 v{22+rd_}, v{22+rd_}, v15')
        if rd_ == 1:
            a(f'v_add_u32 v{22+rd_}, {128*CH}, v{22+rd_}')
        a(f'v_lshlrev_b32 v{22+rd_}, 3, v{22+rd_}')
        a(f'v_sub_u32 v{16+rd_}, v{20+rd_}, v14')
    for s in range(8):
        a(f'v_cmp_lt_i32 s[{52+2*s}:{53+2*s}], {((s >> 1) & 1)*16+(s & 1)}, v{16+(s >> 2)}')
    a('s_cmp_eq_u32 s87, -1')
    a('s_cbranch_scc1 B_allsl')
    a('s_lshl_b32 s51, s3, 3')
    a('s_sub_u32 s51, s87, s51')
    a('s_mov_b64 s[68:69], s[52:53]')
    for s in range(8):
        a(f's_cmp_eq_u32 s51, {s}')
        a(f's_cselect_b64 s[{52+2*s}:{53+2*s}], s[{52+2*s}:{53+2*s}], 0')
    a.lab('B_allsl')
    order = [(0, 0), (1, 0), (0, 1), (1, 1)]
    for rd_, ld in order:
        s = rd_*4+ld*2
        r = 96+(rd_*2+ld)*4
        a(f's_or_b64 vcc, s[{52+2*s}:{53+2*s}], s[{54+2*s}:{55+2*s}]')
        a(f'v_cndmask_b32 v{26+rd_*2+ld}, v25, v{22+rd_}, vcc')
        a(f'buffer_load_dwordx4 {q4(r)}, v{26+rd_*2+ld}, s[8:11], 0 offen offset:{128*ld}')
    a('v_max_i32 v16, v16, v17')
    a('v_or_b32 v17, v6, v7')
    a('v_cmp_lt_i32 s[70:71], 32, v16')
    a('v_cmp_gt_i32 s[72:73], 0, v17')
    a('v_lshlrev_b32 v12, 4, v0')
    a('s_cmp_lg_u32 s86, 0')
    a('s_cbranch_scc1 B_noaux')
    for r in range(20, 24): a(f'v_mov_b32 v{r}, 0')
    a(f'v_add_u32 v13, {L_AGG}, v12')
    for j in range(3):
        a(f'ds_write_b128 v13, v[20:23] offset:{16384*j}')
    a(f'v_cmp_gt_u32 vcc, {NB*RS*2//16-3072}, v0')
    a('s_and_saveexec_b64 s[68:69], vcc')
    a('ds_write_b128 v13, v[20:23] offset:49152')
    a('s_mov_b64 exec, s[68:69]')
    a('s_waitcnt vmcnt(4)')
    a('s_cmp_ge_u32 s3, 13')
    a('s_cbranch_scc1 B_noaux')
    a('ds_write_b128 v47, v[32:35]')
    a('s_cmp_lt_u32 s3, 8')
    a('s_cbranch_scc1 B_noaux')
    a('v_or3_b32 v48, v48, v49, v50')
    a('v_or_b32 v48, v48, v51')
    a('v_cmp_ne_u32 vcc, 0, v48')
    a('s_nop 0')
    a('s_or_b64 s[72:73], s[72:73], vcc')
    a.lab('B_noaux')
    a(f'v_mov_b32 v16, {hex(DUMP_OFF | DUMP_OFF << 16)}')
    a(f'v_cmp_gt_u32 vcc, {L_L8//16}, v0')
    a('v_mov_b32 v28, 0')
    a(f'v_mov_b32 v29, {hex(DUMMY1)}')
    a('v_cndmask_b32 v16, v16, v28, vcc')
    a('v_mov_b32 v30, 0')
    a(f'v_mov_b32 v31, {hex(DUMMY1)}')
    a('v_mov_b32 v17, v16')
    a('v_mov_b32 v18, v16')
    a('v_mov_b32 v19, v16')
    a(f'v_cmp_gt_u32 vcc, {L_REC//16}, v0')
    a('s_and_saveexec_b64 s[68:69], vcc')
    a('ds_write_b128 v12, v[16:19]')
    a('s_mov_b64 exec, 15')
    a(f'ds_write_b128 v11, v[28:31] offset:{L_REC+DUMP_OFF}')
    a('s_mov_b64 exec, s[68:69]')
    a('s_waitcnt lgkmcnt(0)')
    a('s_barrier')
    a(f'v_mov_b32 v24, {L_MAX}')
    a('v_mov_b32 v16, 1')
    a('s_cmp_eq_u64 s[70:71], 0')
    a('s_cbranch_scc1 B_nomore')
    a('ds_write_b32 v24, v16')
    a.lab('B_nomore')
    a('s_cmp_eq_u64 s[72:73], 0')
    a('s_cbranch_scc1 B_noflag')
    a('ds_write_b32 v24, v16 offset:4')
    a.lab('B_noflag')
    lc = [0]
    def ranks(extra):
        a('v_mov_b32 v24, 8')
        for n, (rd_, ld) in enumerate(order):
            a(f's_waitcnt vmcnt({3-n+extra})')
            for e in range(2):
                s = rd_*4+ld*2+e
                r = 96+(rd_*2+ld)*4+2*e
                a(f's_mov_b64 exec, s[{52+2*s}:{53+2*s}]')
                if ld:
                    lc[0] += 1
                    a(f's_cbranch_execz B_sk{lc[0]}')
                a(f'v_lshrrev_b32 v{112+s}, 16, v{r+1}')
                a(f'ds_add_rtn_u32 v{36+s}, v{112+s}, v24 offset:{L_CNT}')
                if ld: a.lab(f'B_sk{lc[0]}')
        a('s_mov_b64 exec, -1')
    a('s_cmp_lg_u32 s86, 0')
    a('s_cbranch_scc1 B_rk0')
    a('s_cmp_ge_u32 s3, 8')
    a('s_cbranch_scc1 B_rk3')
    a('v_xor_b32 v46, v46, v9')
    a('v_lshlrev_b32 v45, 7, v8')
    a(f'v_add_u32 v45, {L_X}, v45')
    for ks in range(4):
        a(f'v_xor_b32 v47, {2*ks}, v46')
        a(f'v_lshl_add_u32 v{92+ks}, v47, 4, v45')
        a(f'ds_read_b128 {q4(76+4*ks)}, v{92+ks}')
    a(f's_add_u32 s68, s41, {L_WU}')
    a('v_add_u32 v47, s68, v11')
    for ks in range(4):
        a(f'ds_read_b128 {q4(48+4*ks)}, v47 offset:{1024*ks}')
    a(f's_movk_i32 s68, {RS}')
    a('v_mul_u32_u24 v45, s68, v8')
    a('v_lshl_add_u32 v45, v9, 6, v45')
    a('s_lshl_b32 s68, s34, 5')
    a('v_add_u32 v45, s68, v45')
    a(f'v_mov_b32 v46, {NB}')
    a('v_cmp_gt_u32 s[68:69], v46, v8')
    a('s_waitcnt lgkmcnt(0)')
    for ks in range(4):
        c = '0' if ks == 0 else 'v[16:31]'
        a(f'v_mfma_f32_32x32x16_bf16 v[16:31], {q4(48+4*ks)}, {q4(76+4*ks)}, {c}')
    a('s_nop 11')
    for r in range(16):
        a(f'v_mul_f32 v{16+r}, s47, v{16+r}')
    a('s_mov_b64 exec, s[68:69]')
    for o in range(2):
        a(f'ds_write_b128 v45, {q4(16+8*o)} offset:{L_Q+16*o}')
        a(f'ds_write_b128 v45, {q4(20+8*o)} offset:{L_Q+128+16*o}')
    a('v_max_f32 v46, |v16|, |v17|')
    for r in range(2, 16, 2):
        a(f'v_max3_f32 v46, v46, |v{16+r}|, |v{17+r}|')
    a(f'v_cmp_lt_f32 s[70:71], {hex(f32(LIM_Q))}, v46') if False else None
    a(f'v_cmp_lt_f32 vcc, {hex(f32(LIM_Q))}, v46')
    a('s_mov_b64 exec, -1')
    a(f'v_mov_b32 v24, {L_FLAG}')
    a('v_mov_b32 v16, 1')
    a('s_cbranch_vccz B_rk0')
    a('ds_write_b32 v24, v16')
    a.lab('B_rk3')
    a.lab('B_rk0')
    ranks(0)
    a.lab('B_rkdone')
    a('s_movk_i32 s51, 504')
    a('s_waitcnt lgkmcnt(0)')
    stamp(a, 7)
    for s in (0, 1, 4, 5, 2, 3, 6, 7):
        r = 96+(s//2)*4+2*(s % 2)
        a(f's_mov_b64 exec, s[{52+2*s}:{53+2*s}]')
        sk = s in (2, 3, 6, 7)
        if sk:
            lc[0] += 1
            a(f's_cbranch_execz B_sk{lc[0]}')
        a(f'v_min_u32 v{36+s}, s51, v{36+s}')
        a(f'v_lshl_add_u32 v{36+s}, v{112+s}, 6, v{36+s}')
        a(f'ds_write_b64 v{36+s}, {pr(r)} offset:{L_REC}')
        if sk: a.lab(f'B_sk{lc[0]}')
    a('s_mov_b64 exec, -1')
    a('v_lshrrev_b32 v13, 3, v1')
    a('v_lshlrev_b32 v13, 1, v13')
    a(f'v_mov_b32 v14, {L_WORK}')
    a('v_mov_b32 v15, 1')
    a('s_waitcnt lgkmcnt(0)')
    a('s_barrier')
    stamp(a, 2)
    a('s_cmp_lg_u32 s86, 0')
    a('s_cbranch_scc1 B_now3')
    a('s_mov_b32 s86, 1')
    a('v_lshlrev_b32 v16, 1, v2')
    a(f'v_add_u32 v16, {L_W3}, v16')
    a('ds_read_b128 v[68:71], v16')
    a('ds_read_b128 v[72:75], v16 offset:16')
    a('s_cmp_lt_u32 s3, 12')
    a('s_cbranch_scc1 B_now3')
    a('s_sub_u32 s51, s3, 12')
    a('s_lshl_b32 s51, s51, 11')
    a(f's_add_u32 m0, s51, {L_WU}')
    a('s_add_u32 s51, s51, 16384')
    a('buffer_load_dwordx4 v11, s[20:23], s51 offen lds')
    a('buffer_load_dwordx4 v11, s[20:23], s51 offen offset:1024 lds')
    a.lab('B_now3')
    a('s_cmp_ge_u32 s3, 12')
    a('s_cbranch_scc1 B_lsd')
    a(f'ds_read_b128 v[16:19], v11 offset:{L_CNT}')
    a('v_lshlrev_b32 v20, 10, v1')
    a('v_add_u32 v21, 512, v20')
    a('s_cmp_ge_u32 s3, 8')
    a('s_cbranch_scc1 B_cls')
    a('s_lshl_b32 s51, s3, 6')
    a('v_add_u32 v20, s51, v20')
    a('v_add_u32 v21, s51, v21')
    a('s_add_u32 s51, s51, 64')
    a(f'v_mov_b32 v24, {L_F8C}')
    a('s_waitcnt lgkmcnt(0)')
    a('v_cmp_le_u32 s[68:69], s51, v16')
    a('v_cmp_le_u32 s[70:71], s51, v18')
    a('s_bcnt1_i32_b64 s72, s[68:69]')
    a('s_bcnt1_i32_b64 s73, s[70:71]')
    a('s_add_u32 s73, s73, s72')
    a('v_mov_b32 v25, s73')
    a('s_mov_b64 exec, 1')
    a('ds_add_rtn_u32 v26, v24, v25')
    a('s_mov_b64 exec, -1')
    a('v_mbcnt_lo_u32_b32 v22, s68, 0')
    a('v_mbcnt_hi_u32_b32 v22, s69, v22')
    a('v_mbcnt_lo_u32_b32 v23, s70, 0')
    a('v_mbcnt_hi_u32_b32 v23, s71, v23')
    a('v_add_u32 v23, s72, v23')
    a('s_waitcnt lgkmcnt(0)')
    a('v_readfirstlane_b32 s72, v26')
    a('s_nop 1')
    a('v_add_lshl_u32 v22, v22, s72, 1')
    a('v_add_lshl_u32 v23, v23, s72, 1')
    a('s_mov_b64 exec, s[68:69]')
    a(f'ds_write_b16 v22, v20 offset:{L_L8}')
    a('s_mov_b64 exec, s[70:71]')
    a(f'ds_write_b16 v23, v21 offset:{L_L8}')
    a('s_mov_b64 exec, -1')
    a('s_branch B_lsd')
    a.lab('B_cls')
    a('s_waitcnt lgkmcnt(0)')
    for k in range(2):
        a(f'v_bfe_u32 v{22+k}, v{16+2*k}, 5, 1')
        a(f'v_bfe_u32 v{24+k}, v{16+2*k}, 3, 2')
    msk = [(52, 54), (56, 58), (60, 62), (64, 66)]
    for k in range(2):
        a(f'v_cmp_ne_u32 s[{msk[0][k]}:{msk[0][k]+1}], 0, v{22+k}')
        for c in range(1, 4):
            a(f'v_cmp_eq_u32 s[{msk[c][k]}:{msk[c][k]+1}], {4-c}, v{24+k}')
    a('v_max_u32 v26, v16, v18')
    a('v_cmp_lt_u32 vcc, 512, v26')
    a('s_mov_b32 s72, 0')
    a('s_mov_b32 s73, 0')
    for c in range(4):
        a(f's_cmp_eq_u32 s3, {8+c}')
        a(f's_cselect_b64 s[68:69], s[{msk[c][0]}:{msk[c][0]+1}], s[68:69]')
        a(f's_cselect_b64 s[70:71], s[{msk[c][1]}:{msk[c][1]+1}], s[70:71]')
        a('s_cselect_b32 s74, s72, s74')
        a(f's_bcnt1_i32_b64 s75, s[{msk[c][0]}:{msk[c][0]+1}]')
        a(f's_bcnt1_i32_b64 s76, s[{msk[c][1]}:{msk[c][1]+1}]')
        a('s_add_u32 s75, s75, s76')
        a('s_add_u32 s75, s75, 7')
        a('s_lshr_b32 s75, s75, 3')
        a('s_add_u32 s72, s72, s75')
        a(f's_lshl_b32 s75, s72, {8*c}')
        a('s_or_b32 s73, s73, s75')
    a('s_cmp_eq_u32 s3, 8')
    a('s_cselect_b32 s51, 63, 31')
    a('s_not_b32 s51, s51')
    a('s_lshl_b32 s74, s74, 3')
    a('s_bcnt1_i32_b64 s75, s[68:69]')
    a('s_add_u32 s75, s75, s74')
    a('v_and_b32 v16, s51, v16')
    a('v_and_b32 v18, s51, v18')
    a('v_add_u32 v20, v20, v16')
    a('v_add_u32 v21, v21, v18')
    a('v_mbcnt_lo_u32_b32 v22, s68, 0')
    a('v_mbcnt_hi_u32_b32 v22, s69, v22')
    a('v_mbcnt_lo_u32_b32 v23, s70, 0')
    a('v_mbcnt_hi_u32_b32 v23, s71, v23')
    a('v_add_lshl_u32 v22, v22, s74, 1')
    a('v_add_lshl_u32 v23, v23, s75, 1')
    a('s_mov_b64 exec, s[68:69]')
    a(f'ds_write_b16 v22, v20 offset:{L_L2}')
    a('s_mov_b64 exec, s[70:71]')
    a(f'ds_write_b16 v23, v21 offset:{L_L2}')
    a('s_mov_b64 exec, 1')
    a('s_cmp_lg_u64 vcc, 0')
    a('s_cselect_b32 s73, -1, s73')
    a(f'v_mov_b32 v24, {L_TOT}')
    a('v_mov_b32 v25, s73')
    a('ds_write_b32 v24, v25')
    a('s_mov_b64 exec, -1')
    a.lab('B_lsd')
    a('s_waitcnt lgkmcnt(0)')
    a('s_barrier')
    stamp(a, 3)
    stampc(a, 8)
    RAW = 32; Q = 48; RCS = [56, 112]; IDX = 64; AGC = 66; AGN = 67; Z = 76; T = 16; TMP = 108; KN = 120; KD = 4; EN = 111
    cnt = [0]
    def rd(st, off=0):
        a(f'ds_read_b128 {q4(RCS[st])}, v{EN} offset:{L_REC+off}')
        a(f'ds_read_b128 {q4(RCS[st]+4)}, v{EN} offset:{L_REC+off+16}')
    def ent8(sidx):
        a(f's_lshl_b32 s51, s{sidx}, 4')
        a(f'v_add_u32 v{TMP}, s51, v13')
        a(f'ds_read_u16 v{EN}, v{TMP} offset:{L_L8}')
    def ent4(sidx):
        a(f's_sub_u32 s79, s{sidx}, s74')
        a(f's_min_u32 s79, s79, 51')
        a(f's_lshl_b32 s51, s79, 4')
        a(f'v_add_u32 v{TMP}, s51, v13')
        a(f'ds_read_u16 v{EN}, v{TMP} offset:{L_L2}')
    def ent_any(sidx):
        n = cnt[0]; cnt[0] += 1
        a(f's_cmp_ge_u32 s{sidx}, s74')
        a(f's_cbranch_scc1 B_rrP{n}')
        ent8(sidx)
        a(f's_branch B_rrX{n}')
        a.lab(f'B_rrP{n}')
        ent4(sidx)
        a.lab(f'B_rrX{n}')
    def gathers(st):
        RC = RCS[st]
        for k in range(4):
            a(f'v_mad_u32_u16 v{TMP+(k&1)}, v{RC+2*k+1}, s42, v2')
            a(f'buffer_load_dwordx4 {q4(RAW+4*k)}, v{TMP+(k&1)}, s[12:15], 0 offen')
    def fetch(st):
        RC = RCS[st]
        gathers(st)
        a(f'v_mad_u32_u16 v{TMP+2}, v{RC+1}, 36, v2 op_sel:[1,0,0,0]')
        a(f'ds_read_b128 {q4(Q)}, v{TMP+2} offset:{L_Q}')
        a(f'ds_read_b128 {q4(Q+4)}, v{TMP+2} offset:{L_Q+128}')
        a(f'v_mad_u32_u16 v{AGN}, v{RC+1}, s84, v3 op_sel:[1,0,0,0]')
    def grab():
        a('s_mov_b64 exec, 1')
        a(f'ds_add_rtn_u32 v{IDX}, v14, v15')
        a('s_mov_b64 exec, -1')
    def zstep(st, k):
        R = RAW+4*k; Zk = Z+8*k; ep = RCS[st]+2*k
        for p in range(4):
            a(f'v_pk_fma_f32 {pr(Zk+2*p)}, {pr(ep)}, {pr(68+2*p)}, {pr(Q+2*p)} op_sel_hi:[0,1,1]')
        a(f's_waitcnt vmcnt({3-k})')
        for i in range(4):
            a(f'v_dot2_f32_bf16 v{Zk+4+i}, v{R+i}, s46, v{Zk+4+i}')
        a(f'v_pk_add_f32 {pr(Zk)}, {pr(R)}, {pr(Zk)}')
        a(f'v_pk_add_f32 {pr(Zk+2)}, {pr(R+2)}, {pr(Zk+2)}')
    def pair(ps, tt, half):
        def regs(p):
            za = Z+16*half+2*p
            return za, za+8, tt[p]+(0 if half == 0 else 4), tt[p]+2
        for p in ps:
            za, zb, ta, tb = regs(p)
            a(f'v_exp_f32 v{ta}, v{za}'); a(f'v_exp_f32 v{ta+1}, v{za+1}')
            a(f'v_exp_f32 v{tb}, v{zb}'); a(f'v_exp_f32 v{tb+1}, v{zb+1}')
        for p in ps:
            za, zb, ta, tb = regs(p)
            a(f'v_pk_fma_f32 {pr(zb)}, {pr(zb)}, {pr(ta)}, {pr(zb)}')
        for p in ps:
            za, zb, ta, tb = regs(p)
            a(f'v_pk_add_f32 {pr(tb)}, {pr(tb)}, s[44:45]')
        for p in ps:
            za, zb, ta, tb = regs(p)
            a(f'v_pk_fma_f32 {pr(zb)}, {pr(za)}, {pr(tb)}, {pr(zb)}')
        for p in ps:
            za, zb, ta, tb = regs(p)
            a(f'v_pk_fma_f32 {pr(ta)}, {pr(ta)}, {pr(tb)}, {pr(tb)}')
    def merge(ps, n1, d1, n2, d2, no, do, x):
        for p in ps: a(f'v_pk_mul_f32 {pr(x(p))}, {pr(n1(p))}, {pr(d2(p))}')
        for p in ps: a(f'v_pk_fma_f32 {pr(no(p))}, {pr(n2(p))}, {pr(d1(p))}, {pr(x(p))}')
        for p in ps: a(f'v_pk_mul_f32 {pr(do(p))}, {pr(d1(p))}, {pr(d2(p))}')
    def finish(ps, n, d):
        for p in ps:
            a(f'v_rcp_f32 v{d(p)}, v{d(p)}'); a(f'v_rcp_f32 v{d(p)+1}, v{d(p)+1}')
        a('s_nop 0')
        for p in ps: a(f'v_pk_mul_f32 {pr(Z+2*p)}, {pr(n(p))}, {pr(d(p))}')
        for p in ps:
            a(f'v_cvt_f64_f32 {pr(Z+8+2*p)}, v{Z+2*p}'); a(f'v_cvt_f64_f32 {pr(Z+16+2*p)}, v{Z+2*p+1}')
        for p in ps:
            a(f'ds_add_f64 v{AGC}, {pr(Z+8+2*p)} offset:{64*(2*p)}')
            a(f'ds_add_f64 v{AGC}, {pr(Z+16+2*p)} offset:{64*(2*p+1)}')
    def compute(kind):
        for pp in range(2):
            ps = [2*pp, 2*pp+1]
            tt = {ps[0]: T, ps[1]: T+6}
            zA = lambda p: Z+2*p
            n1 = lambda p: Z+8+2*p; d1 = lambda p: tt[p]
            n2 = lambda p: Z+24+2*p; d2 = lambda p: tt[p]+4
            dm = lambda p: tt[p]+2
            if kind in ('4', '8a', '8b'):
                pair(ps, tt, 0); pair(ps, tt, 1)
                if kind == '8a':
                    merge(ps, n1, d1, n2, d2, lambda p: KN+2*p, lambda p: KD+2*p, zA)
                else:
                    merge(ps, n1, d1, n2, d2, zA, dm, zA)
                    if kind == '8b':
                        merge(ps, zA, dm, lambda p: KN+2*p, lambda p: KD+2*p, zA, d1, n1)
                        finish(ps, zA, d1)
                    else:
                        finish(ps, zA, dm)
            elif kind == '3':
                pair(ps, tt, 0)
                for p in ps:
                    a(f'v_exp_f32 v{d2(p)}, v{Z+16+2*p}'); a(f'v_exp_f32 v{d2(p)+1}, v{Z+17+2*p}')
                a('s_nop 0')
                for p in ps: a(f'v_pk_add_f32 {pr(d2(p))}, {pr(d2(p))}, s[44:45]')
                merge(ps, n1, d1, lambda p: Z+16+2*p, d2, zA, dm, zA)
                finish(ps, zA, dm)
            elif kind == '2':
                pair(ps, tt, 0)
                finish(ps, n1, d1)
            elif kind == '1':
                for p in ps:
                    a(f'v_exp_f32 v{d1(p)}, v{zA(p)}'); a(f'v_exp_f32 v{d1(p)+1}, v{zA(p)+1}')
                a('s_nop 0')
                for p in ps: a(f'v_pk_add_f32 {pr(d1(p))}, {pr(d1(p))}, s[44:45]')
                finish(ps, zA, d1)
    def plain():
        AC = T+8
        lim = [82, 73, 72]
        for k in range(4):
            Zk = Z+8*k
            for i in range(8): a(f'v_exp_f32 v{T+i}, v{Zk+i}')
            for p in range(4): a(f'v_pk_add_f32 {pr(T+2*p)}, {pr(T+2*p)}, s[44:45]')
            for i in range(8): a(f'v_rcp_f32 v{T+i}, v{T+i}')
            for p in range(4):
                if k == 0:
                    a(f'v_pk_mul_f32 {pr(AC+2*p)}, {pr(Zk+2*p)}, {pr(T+2*p)}')
                else:
                    a(f'v_pk_fma_f32 {pr(AC+2*p)}, {pr(Zk+2*p)}, {pr(T+2*p)}, {pr(AC+2*p)}')
            if k < 3:
                a(f's_cmp_ge_u32 s76, s{lim[k]}')
                a('s_cbranch_scc1 B_pfl')
        a.lab('B_pfl')
        for i in range(8): a(f'v_cvt_f64_f32 {pr(Z+2*i)}, v{AC+i}')
        for i in range(8): a(f'ds_add_f64 v{AGC}, {pr(Z+2*i)} offset:{64*i}')
    pc = [0]
    def prio(inc):
        a(f's_add_u32 s83, s83, {inc}')
        if not PRIO: return
        n = pc[0]; pc[0] += 1
        a('s_cmp_lt_u32 s83, 2')
        a(f's_cbranch_scc1 B_pr{n}')
        a('s_setprio 2')
        a('s_cmp_lt_u32 s83, 4')
        a(f's_cbranch_scc1 B_pr{n}')
        a('s_setprio 1')
        a('s_cmp_lt_u32 s83, 6')
        a(f's_cbranch_scc1 B_pr{n}')
        a('s_setprio 0')
        a.lab(f'B_pr{n}')
    def dbgz(n):
        if not DEBUG: return
        a('s_cmp_gt_u32 s83, 15')
        a(f's_cbranch_scc1 B_nost{n}')
        a('s_memrealtime s[92:93]')
        a('s_add_u32 m0, s83, 16')
        a('s_waitcnt lgkmcnt(0)')
        a('v_writelane_b32 v65, s92, m0')
        a.lab(f'B_nost{n}')
    a(f'v_mov_b32 v24, {L_MAX}')
    a('ds_read_b128 v[16:19], v24')
    a('s_mov_b32 s76, s3')
    a('s_add_u32 s77, s3, 16')
    ent8(76)
    grab()
    a('s_mov_b32 s83, 0')
    if PRIO: a('s_setprio 3')
    a('s_waitcnt lgkmcnt(0)')
    rd(0); rd(1, 32)
    a('v_readfirstlane_b32 s70, v19')
    a('v_readfirstlane_b32 s74, v18')
    a('v_readfirstlane_b32 s71, v16')
    a('v_readfirstlane_b32 s91, v17')
    a('s_cmp_lg_u32 s70, -1')
    a('s_cbranch_scc1 B_capok')
    a('s_mov_b32 s87, 0')
    a('s_setprio 0')
    a('s_waitcnt lgkmcnt(0)')
    a('s_barrier')
    a('s_branch B_batch')
    a.lab('B_capok')
    a('s_or_b32 s90, s90, s91')
    if FORCE_PLAIN: a('s_mov_b32 s90, 1')
    a('s_add_u32 s74, s74, 7')
    a('s_lshr_b32 s74, s74, 3')
    a('s_and_b32 s72, s70, 0xff')
    a('s_add_u32 s72, s72, s74')
    a('s_bfe_u32 s73, s70, 0x80008')
    a('s_add_u32 s73, s73, s74')
    a('s_bfe_u32 s82, s70, 0x80010')
    a('s_add_u32 s82, s82, s74')
    a('s_lshr_b32 s75, s70, 24')
    a('s_add_u32 s75, s75, s74')
    a('s_cmp_ge_u32 s76, s75')
    a('s_cbranch_scc1 B_loop_end')
    a('s_cmp_ge_u32 s76, s74')
    a('s_cbranch_scc1 B_pre4')
    a('s_waitcnt lgkmcnt(0)')
    fetch(0)
    ent_any(77)
    a('s_waitcnt lgkmcnt(0)')
    a.lab('B_loop8')
    a('s_waitcnt lgkmcnt(8)')
    a(f'v_mov_b32 v{AGC}, v{AGN}')
    a(f'v_readfirstlane_b32 s78, v{IDX}')
    for k in range(4): zstep(0, k)
    dbgz('8')
    gathers(1)
    a('s_add_u32 s78, s78, 32')
    rd(0)
    a('s_cmp_lg_u32 s90, 0')
    a('s_cbranch_scc1 B_p8a')
    compute('8a')
    a.lab('B_p8ax')
    for k in range(4): zstep(1, k)
    a('s_cmp_ge_u32 s77, s75')
    a('s_cbranch_scc1 B_nof8')
    a('s_waitcnt lgkmcnt(0)')
    fetch(0)
    a('s_cmp_ge_u32 s77, s74')
    a('s_cbranch_scc1 B_tr8')
    rd(1, 32)
    ent_any(78)
    a('s_branch B_tr8x')
    a.lab('B_tr8')
    ent4(78)
    a('s_waitcnt lgkmcnt(0)')
    rd(1)
    a.lab('B_tr8x')
    grab()
    a.lab('B_nof8')
    a('s_cmp_lg_u32 s90, 0')
    a('s_cbranch_scc1 B_p8b')
    compute('8b')
    a.lab('B_p8bx')
    prio(2)
    a('s_mov_b32 s76, s77')
    a('s_mov_b32 s77, s78')
    a('s_cmp_lt_u32 s76, s74')
    a('s_cbranch_scc1 B_loop8')
    a('s_cmp_lt_u32 s76, s75')
    a('s_cbranch_scc1 B_loop0')
    a('s_branch B_loop_end')
    a.lab('B_p8a')
    a('s_mov_b32 s69, 2')
    a('s_branch B_cp')
    a.lab('B_p8b')
    a('s_mov_b32 s69, 3')
    a('s_branch B_cp')
    a.lab('B_pre4')
    a('s_waitcnt lgkmcnt(0)')
    ent4(76)
    a('s_waitcnt lgkmcnt(0)')
    rd(0)
    ent4(77)
    a('s_waitcnt lgkmcnt(0)')
    fetch(0)
    rd(1)
    a('s_waitcnt lgkmcnt(0)')
    for st in range(2):
        a.lab(f'B_loop{st}')
        a('s_waitcnt lgkmcnt(8)')
        a(f'v_mov_b32 v{AGC}, v{AGN}')
        a(f'v_readfirstlane_b32 s78, v{IDX}')
        a(f's_mov_b32 s69, {st}')
        zstep(st, 0)
        a('s_add_u32 s78, s78, 32')
        ent4(78)
        a('s_cmp_ge_u32 s76, s82')
        a(f's_cbranch_scc1 B_zd_{st}')
        a.lab(f'B_z1_{st}')
        zstep(st, 1)
        a('s_cmp_ge_u32 s76, s73')
        a(f's_cbranch_scc1 B_zd_{st}')
        a.lab(f'B_z2_{st}')
        zstep(st, 2)
        a('s_cmp_ge_u32 s76, s72')
        a(f's_cbranch_scc1 B_zd_{st}')
        a.lab(f'B_z3_{st}')
        zstep(st, 3)
        a.lab(f'B_zd_{st}')
        dbgz(st)
        a('s_cmp_ge_u32 s77, s75')
        a(f's_cbranch_scc1 B_disp')
        fetch(1-st)
        a('s_waitcnt lgkmcnt(2)')
        rd(st)
        grab()
        if st == 0: a('s_branch B_disp')
    a.lab('B_disp')
    a('s_cmp_lg_u32 s90, 0')
    a('s_cbranch_scc1 B_cp')
    a('s_cmp_ge_u32 s76, s82')
    a('s_cbranch_scc1 B_c1')
    a('s_cmp_ge_u32 s76, s73')
    a('s_cbranch_scc1 B_c2')
    a('s_cmp_ge_u32 s76, s72')
    a('s_cbranch_scc1 B_c3')
    compute('4')
    a.lab('B_next')
    prio(1)
    a('s_mov_b32 s76, s77')
    a('s_mov_b32 s77, s78')
    a('s_cmp_ge_u32 s76, s75')
    a('s_cbranch_scc1 B_loop_end')
    a('s_cmp_eq_u32 s69, 0')
    a('s_cbranch_scc1 B_loop1')
    a('s_branch B_loop0')
    for kd_ in ('3', '2', '1'):
        a.lab(f'B_c{kd_}')
        compute(kd_)
        a('s_branch B_next')
    a.lab('B_cp')
    plain()
    a('s_cmp_lt_u32 s69, 2')
    a('s_cbranch_scc1 B_next')
    a('s_cmp_eq_u32 s69, 2')
    a('s_cbranch_scc1 B_p8ax')
    a('s_branch B_p8bx')
    a.lab('B_loop_end')
    stamp(a, 4)
    a('s_waitcnt vmcnt(0) lgkmcnt(0)')
    a('v_lshlrev_b32 v11, 4, v1')
    a('v_and_b32 v8, 31, v1')
    a('v_add_u32 v8, s38, v8')
    a('v_lshrrev_b32 v9, 5, v1')
    a('s_cmp_ge_u32 s3, 8')
    a('s_cbranch_scc1 B_join')
    WX = [100, 104, 108, 4]
    a('s_add_u32 s39, s41, 8192')
    for ks in range(4):
        a(f'buffer_load_dwordx4 {q4(WX[ks])}, v11, s[20:23], s39 offen offset:{1024*ks}')
    a(f's_add_u32 s39, s41, {L_WU}')
    a('v_add_u32 v12, s39, v11')
    a('v_and_b32 v13, 7, v1')
    a('v_xor_b32 v13, v13, v9')
    a('v_lshlrev_b32 v14, 7, v8')
    a(f'v_add_u32 v14, {L_X}, v14')
    for ks in range(4):
        a(f'v_xor_b32 v15, {2*ks}, v13')
        a(f'v_lshl_add_u32 v15, v15, 4, v14')
        a(f'ds_read_b128 {q4(16+4*ks)}, v15')
        a(f'ds_read_b128 {q4(48+4*ks)}, v12 offset:{1024*ks}')
    a(f's_movk_i32 s51, {2*RS}')
    a('v_mul_u32_u24 v12, s51, v8')
    a('v_lshl_add_u32 v12, v9, 5, v12')
    a(f'v_add_u32 v12, {L_AGG}, v12')
    a.lab('B_join')
    a('s_setprio 0')
    a('s_waitcnt lgkmcnt(0)')
    a('s_barrier')
    stamp(a, 5)
    stampc(a, 9)
    if DEBUG: a('v_writelane_b32 v65, s83, 10')
    a('s_cmp_eq_u32 s87, -1')
    a('s_cbranch_scc1 B_nb')
    a('s_add_u32 s87, s87, 1')
    a('s_cmp_lt_u32 s87, 128')
    a('s_cbranch_scc1 B_again')
    a('s_mov_b32 s87, -1')
    a.lab('B_nb')
    a('s_add_u32 s50, s50, 32')
    a('s_cmp_eq_u32 s71, 0')
    a('s_cbranch_scc1 B_fin')
    a.lab('B_again')
    a('s_waitcnt vmcnt(0)')
    a('v_lshrrev_b32 v4, 3, v0')
    a('v_lshlrev_b32 v12, 10, v4')
    a('buffer_load_dword v6, v12, s[4:7], s32 offen')
    a('buffer_load_dword v7, v12, s[4:7], s33 offen')
    a('s_branch B_batch')
    a.lab('B_fin')
    if DEBUG: a('v_mov_b32 v3, v65')
    a('s_cmp_ge_u32 s3, 8')
    a('s_cbranch_scc1 B_done2')
    for half in range(2):
        for ii in range(4):
            i = half*4+ii
            a(f'ds_read_b128 {q4(64+8*ii)}, v12 offset:{64*i}')
            a(f'ds_read_b128 {q4(68+8*ii)}, v12 offset:{64*i+16}')
        if half == 0:
            a('s_waitcnt vmcnt(0)')
            for ks in range(4):
                c = '0' if ks == 0 else 'v[112:127]'
                a(f'v_mfma_f32_32x32x16_bf16 v[112:127], {q4(WX[ks])}, {q4(16+4*ks)}, {c}')
        for ii in range(4):
            i = half*4+ii
            a(f's_waitcnt lgkmcnt({6-2*ii})')
            for q in range(4):
                a(f'v_cvt_f32_f64 v{96+q}, {pr(64+8*ii+2*q)}')
            a(f'v_pk_mul_f32 v[96:97], v[96:97], s[48:49]')
            a(f'v_pk_mul_f32 v[98:99], v[98:99], s[48:49]')
            a(f'v_cvt_pk_bf16_f32 v{32+2*i}, v96, v97')
            a(f'v_cvt_pk_bf16_f32 v{33+2*i}, v98, v99')
    a('s_nop 1')
    for ks in range(4):
        a(f'v_mfma_f32_32x32x16_bf16 v[112:127], {q4(48+4*ks)}, {q4(32+4*ks)}, v[112:127]')
    a('v_add_u32 v17, s37, v8')
    a('v_lshlrev_b32 v17, 7, v17')
    a('v_lshl_add_u32 v17, v9, 5, v17')
    a('s_lshl_b32 s51, s34, 6')
    a(f'v_cmp_gt_u32 vcc, {NB}, v8')
    a('s_nop 12')
    for r in range(16): a(f'v_mul_f32 v{64+r}, s47, v{112+r}')
    for r in range(16): a(f'v_exp_f32 v{64+r}, v{64+r}')
    for r in range(16): a(f'v_add_f32 v{64+r}, 1.0, v{64+r}')
    for r in range(16): a(f'v_rcp_f32 v{64+r}, v{64+r}')
    for r in range(16): a(f'v_mul_f32 v{64+r}, v{64+r}, v{112+r}')
    for r in range(0, 16, 2): a(f'v_cvt_pk_bf16_f32 v{32+r//2}, v{64+r}, v{65+r}')
    a('s_and_b64 exec, exec, vcc')
    a(f'buffer_store_dwordx4 v[32:35], v17, s[24:27], s51 offen {ST_O}')
    a(f'buffer_store_dwordx4 v[36:39], v17, s[24:27], s51 offen offset:16 {ST_O}')
    a.lab('B_done2')
    stamp_out(a, 1, 88, 3)
    a.lab('B_done')
    a('s_endpgm')

def kd(a, name, vgpr, sgpr):
    a.raw('.p2align 6')
    a.raw(f'.amdhsa_kernel {name}')
    a.raw(f'  .amdhsa_next_free_vgpr {vgpr}')
    a.raw(f'  .amdhsa_next_free_sgpr {sgpr}')
    a.raw(f'  .amdhsa_accum_offset {(vgpr+3)//4*4}')
    a.raw('  .amdhsa_group_segment_fixed_size 0')
    a.raw('  .amdhsa_kernarg_size 72')
    a.raw('  .amdhsa_user_sgpr_count 2')
    a.raw('  .amdhsa_user_sgpr_kernarg_segment_ptr 1')
    a.raw('  .amdhsa_system_sgpr_workgroup_id_x 1')
    a.raw('.end_amdhsa_kernel')

def main():
    ref = open('gather_scatter__mpnn_edge_mlp__graph.s.ref').read().splitlines()
    hdr = [l for l in ref if l.startswith(';') and '@launch' not in l and 'Override' not in l and 'grid=ceil' not in l]
    a = A()
    for l in hdr: a.raw(l)
    a.raw(f'; @launch kernel=mpnn_bin_kernel grid=({A_GRID},1,1) block=({A_BLOCK},1,1) lds={A_LDS}')
    a.raw(f'; @launch kernel=mpnn_main_kernel grid=({NBK},1,1) block=(1024,1,1) lds={B_LDS}')
    a.raw('.amdgcn_target "amdgcn-amd-amdhsa--gfx950"')
    a.raw('.text')
    kernel_a(a)
    kernel_b(a)
    a.raw('.section .rodata,"a"')
    kd(a, 'mpnn_bin_kernel', 128, 100)
    kd(a, 'mpnn_main_kernel', 128, 100)
    out = sys.argv[1] if len(sys.argv) > 1 else 'gather_scatter__mpnn_edge_mlp__graph.s'
    open(out, 'w').write('\n'.join(a.l) + '\n')

main()
```

```python
import sys, struct, os
DEBUG = int(os.environ.get('DEBUG', '0'))
PRIO = int(os.environ.get('PRIO', '1'))
XMAP = int(os.environ.get('XMAP', '1'))
PREF = int(os.environ.get('PREF', '0'))
CPF = int(os.environ.get('CPF', '0'))
TLBW = int(os.environ.get('TLBW', '0'))
ST_O = os.environ.get('ST_O', 'sc0 sc1')
LATESRC = int(os.environ.get('LATESRC', '1'))
TOUCH = int(os.environ.get('TOUCH', '4'))
PT = [int(x) for x in os.environ.get('PT', '2,6,7').split(',')]
GFIRST = int(os.environ.get('GFIRST', '1'))
FORCE_PLAIN = int(os.environ.get('FORCE_PLAIN', '0'))

N = 25000; E = 800000
NB = 98
NBK = 256
CH = 3200
NCH = 250
WS_REC = 0
WS_TAB = 0x700000
WS_PF  = 0x780000
WS_PT  = 0x800000
WS_WF  = 0x7C0000
REC_BYTES = NCH*CH*8
TAB_BYTES = NCH*NBK*4
PF_BYTES  = 1000*4
PT_BYTES  = (N+1)*128
WF_BYTES  = 3*8192 + 512
WF_W3 = 3*8192
LOG2E = 1.4426950408889634
LN2 = 0.6931471805599453
LIM_P = 3.0; LIM_Q = 3.0; LIM_E_BF16 = 0x4040; LIM_W = 3.0
def f32(x): return struct.unpack('<I', struct.pack('<f', x))[0]

class A:
    def __init__(s): s.l = []
    def __call__(s, t): s.l.append('    ' + t)
    def lab(s, t): s.l.append(t + ':')
    def raw(s, t): s.l.append(t)

def srd(a, d, base, off, nbytes):
    if off:
        a(f's_add_u32 s{d}, s{base}, {hex(off)}')
        a(f's_addc_u32 s{d+1}, s{base+1}, 0')
    else:
        a(f's_mov_b32 s{d}, s{base}')
        a(f's_mov_b32 s{d+1}, s{base+1}')
    a(f's_mov_b32 s{d+2}, {hex(nbytes)}')
    a(f's_mov_b32 s{d+3}, 0x00020000')

PROF_OFF = 0x4000000
def stamp(a, i, vr=65, sr=92):
    if not DEBUG: return
    a(f's_memrealtime s[{sr}:{sr+1}]')
    a('s_waitcnt lgkmcnt(0)')
    a(f'v_writelane_b32 v{vr}, s{sr}, {i}')
def stampc(a, i, vr=65, sr=92):
    if not DEBUG: return
    a(f's_memtime s[{sr}:{sr+1}]')
    a('s_waitcnt lgkmcnt(0)')
    a(f'v_writelane_b32 v{vr}, s{sr}, {i}')
def stamp_out(a, kern, wsreg, vr=65, sr=92, tmp=6):
    if not DEBUG: return
    a('s_waitcnt vmcnt(0)')
    stamp(a, 15, vr, sr)
    a('s_mov_b64 exec, -1')
    srd(a, 96, wsreg, PROF_OFF + kern*0x400000, 0x400000)
    a(f's_lshl_b32 s{sr}, s2, 4')
    a(f's_add_u32 s{sr}, s{sr}, s3')
    a(f's_lshl_b32 s{sr}, s{sr}, 8')
    a(f'v_lshlrev_b32 v{tmp}, 2, v1')
    a(f'buffer_store_dword v{vr}, v{tmp}, s[96:99], s{sr} offen')

def wave_scan(a, v):
    for sh in (1, 2, 4, 8):
        a('s_nop 1')
        a(f'v_add_u32_dpp v{v}, v{v}, v{v} row_shr:{sh} row_mask:0xf bank_mask:0xf bound_ctrl:0')
    a('s_nop 1')
    a(f'v_add_u32_dpp v{v}, v{v}, v{v} row_bcast:15 row_mask:0xa bank_mask:0xf')
    a('s_nop 1')
    a(f'v_add_u32_dpp v{v}, v{v}, v{v} row_bcast:31 row_mask:0xc bank_mask:0xf')

def pr(r): return f'v[{r}:{r+1}]'
def q4(r): return f'v[{r}:{r+3}]'

A_GEMM0 = NCH
A_PREP0 = NCH + 250
A_GRID = A_PREP0 + 4
A_BLOCK = 448
A_XT = 0
A_W1 = 4*4096
A_LDS = 2112 + CH*8
A_STAGE = 2048 + 64
A_EFLAG = 2048
ST_A = os.environ.get('ST_A', 'sc0 sc1')

def kernel_a(a):
    a.raw('.globl mpnn_bin_kernel')
    a.raw('.p2align 8')
    a.raw('.type mpnn_bin_kernel,@function')
    a.lab('mpnn_bin_kernel')
    if DEBUG:
        a('s_memrealtime s[94:95]')
        a('s_getreg_b32 s62, hwreg(HW_REG_HW_ID)')
        a('s_getreg_b32 s63, hwreg(HW_REG_XCC_ID)')
    a('s_load_dwordx16 s[4:19], s[0:1], 0')
    a('s_load_dwordx2 s[20:21], s[0:1], 64')
    if CPF:
        a('s_getpc_b64 s[60:61]')
        a.lab('A_pc')
        a('v_lshlrev_b32 v100, 4, v0')
        a('v_add_u32 v101, 7168, v100')
        a('v_min_u32 v101, code_end-A_pc-16, v101')
        a('v_min_u32 v100, code_end-A_pc-16, v100')
        a('global_load_dwordx4 v[104:107], v100, s[60:61]')
        a('global_load_dwordx4 v[108:111], v101, s[60:61]')
    a(f's_cmp_ge_u32 s2, {A_GRID}')
    a('s_cbranch_scc1 A_done')
    a('v_lshrrev_b32 v1, 6, v0')
    a('v_lshlrev_b32 v3, 4, v0')
    a('v_readfirstlane_b32 s3, v1')
    a('v_and_b32 v1, 63, v0')
    a(f's_cmp_ge_u32 s2, {A_PREP0}')
    a('s_cbranch_scc1 A_prep')
    if GFIRST:
        a(f's_add_u32 s22, s2, {NCH}')
        a(f's_sub_u32 s23, s2, {NCH}')
        a(f's_cmp_lt_u32 s2, {NCH}')
        a('s_cselect_b32 s2, s22, s23')
    a(f's_cmp_ge_u32 s2, {A_GEMM0}')
    a('s_cbranch_scc1 A_gemm')
    a('v_cmp_gt_u32 vcc, 400, v0')
    a('s_and_b64 exec, exec, vcc')
    a('v_lshlrev_b32 v2, 3, v0')
    a(f's_mul_i32 s44, s2, {CH*4}')
    a(f's_mul_i32 s45, s2, {CH*2}')
    a(f's_add_u32 s50, s44, {CH*2}')
    a(f's_add_u32 s51, s45, {CH}')
    a('s_waitcnt lgkmcnt(0)')
    srd(a, 24, 10, 0, E*4)
    a('buffer_load_dwordx4 v[8:11], v3, s[24:27], s44 offen')
    a('buffer_load_dwordx4 v[12:15], v3, s[24:27], s50 offen')
    srd(a, 28, 8, 0, E*4)
    srd(a, 32, 6, 0, E*2)
    def srcloads():
        a('buffer_load_dwordx4 v[16:19], v3, s[28:31], s44 offen')
        a('buffer_load_dwordx4 v[20:23], v3, s[28:31], s50 offen')
        a('buffer_load_dwordx2 v[24:25], v2, s[32:35], s45 offen')
        a('buffer_load_dwordx2 v[26:27], v2, s[32:35], s51 offen')
    if not LATESRC: srcloads()
    stamp(a, 0, 70)
    if DEBUG:
        a('v_writelane_b32 v70, s94, 8')
        a('v_writelane_b32 v70, s62, 9')
        a('v_writelane_b32 v70, s63, 10')
    a('v_lshlrev_b32 v5, 2, v0')
    a('v_mov_b32 v4, 0')
    a('v_mov_b32 v6, 2048')
    a('v_cmp_gt_u32 vcc, 256, v0')
    a('s_nop 1')
    a('v_cndmask_b32 v5, v6, v5, vcc')
    a('ds_write_b32 v5, v4')
    if TLBW:
        srd(a, 36, 20, 0, 0xC00000)
        a('v_lshlrev_b32 v7, 20, v1')
        a('buffer_load_dword v71, v7, s[36:39], 0 offen')
    srd(a, 36, 20, WS_REC, REC_BYTES)
    srd(a, 40, 20, WS_TAB, TAB_BYTES)
    a('s_mov_b32 s46, 42800')
    a('s_mov_b32 s47, -196')
    a('s_mov_b32 s48, 0xffff0000')
    a('s_mov_b32 s52, 0x7fff7fff')
    a('v_mov_b32 v4, 1')
    a('s_waitcnt lgkmcnt(0)')
    a('s_barrier')
    for hf in range(2):
        if LATESRC:
            a(f's_waitcnt vmcnt({1 if hf == 0 else 4})')
            if hf == 0: srcloads()
        else:
            a(f's_waitcnt vmcnt({5-hf+TLBW})')
        if hf == 0: stamp(a, 1, 70)
        for j in range(4*hf, 4*hf+4):
            a(f'v_mul_u32_u24 v{28+j}, s46, v{8+j}')
            a(f'v_lshrrev_b32 v{28+j}, 22, v{28+j}')
            a(f'v_lshlrev_b32 v{28+j}, 2, v{28+j}')
            a(f'ds_add_rtn_u32 v{56+j}, v{28+j}, v4')
    for j in range(8):
        a(f'v_lshlrev_b32 v{8+j}, 3, v{8+j}')
        a(f'v_mad_i32_i24 v{41+2*j}, v{28+j}, s47, v{8+j}')
    a('s_mov_b64 s[22:23], exec')
    a('s_waitcnt lgkmcnt(0)')
    a('s_barrier')
    stamp(a, 2, 70)
    a('s_mov_b64 exec, -1')
    a('v_lshlrev_b32 v5, 4, v1')
    a('ds_read_b128 v[8:11], v5')
    a('s_waitcnt lgkmcnt(0)')
    a('v_add_u32 v13, v8, v9')
    a('v_add_u32 v14, v13, v10')
    a('v_add_u32 v15, v14, v11')
    a('v_mov_b32 v72, v15')
    wave_scan(a, 72)
    a('v_sub_u32 v12, v72, v15')
    a('v_add_u32 v15, v12, v14')
    a('v_add_u32 v14, v12, v13')
    a('v_add_u32 v13, v12, v8')
    for k in range(4):
        a(f'v_lshlrev_b32 v{72+k}, 3, v{12+k}')
    a('ds_write_b128 v5, v[72:75] offset:1024')
    for k in range(4):
        a(f'v_lshl_or_b32 v{64+k}, v{8+k}, 16, v{12+k}')
    a('s_mov_b64 exec, s[22:23]')
    a('s_waitcnt lgkmcnt(0)')
    for j in range(8):
        a(f'ds_read_b32 v{8+j}, v{28+j} offset:1024')
    a('s_waitcnt vmcnt(0)')
    for j in range(8):
        if j % 2 == 0:
            a(f'v_lshlrev_b32 v{40+2*j}, 16, v{24+j//2}')
        else:
            a(f'v_and_b32 v{40+2*j}, s48, v{24+j//2}')
        a(f'v_lshl_or_b32 v{41+2*j}, v{41+2*j}, 16, v{16+j}')
    for j in range(4):
        a(f'v_and_b32 v{24+j}, s52, v{24+j}')
    a('v_pk_max_u16 v24, v24, v25')
    a('v_pk_max_u16 v26, v26, v27')
    a('v_pk_max_u16 v24, v24, v26')
    a('v_lshrrev_b32 v25, 16, v24')
    a('v_and_b32 v24, 0xffff, v24')
    a('v_max_u32 v24, v24, v25')
    a(f'v_cmp_lt_u32 vcc, {hex(LIM_E_BF16)}, v24')
    a('s_and_saveexec_b64 s[54:55], vcc')
    a('s_cbranch_execz A_eok')
    a('v_mov_b32 v25, 0x80000000')
    a('ds_write_b32 v6, v25')
    a.lab('A_eok')
    a('s_mov_b64 exec, s[54:55]')
    a('s_waitcnt lgkmcnt(0)')
    for j in range(8):
        a(f'v_lshl_add_u32 v{8+j}, v{56+j}, 3, v{8+j}')
    stamp(a, 3, 70)
    for j in range(8):
        a(f'ds_write_b64 v{8+j}, {pr(40+2*j)} offset:{A_STAGE}')
    a('s_waitcnt lgkmcnt(0)')
    a('s_barrier')
    stamp(a, 4, 70)
    a('s_cmp_lg_u32 s3, 6')
    a('s_cbranch_scc1 A_notab')
    a('s_mov_b64 exec, -1')
    a('v_mov_b32 v6, 2048')
    a('ds_read_b32 v7, v6')
    a('s_lshl_b32 s49, s2, 10')
    a('s_waitcnt lgkmcnt(0)')
    for k in range(4):
        a(f'v_or_b32 v{64+k}, v{64+k}, v7')
    a(f'buffer_store_dwordx4 v[64:67], v5, s[40:43], s49 offen {ST_A}')
    a('s_mov_b64 exec, s[22:23]')
    a.lab('A_notab')
    for j in range(4):
        a(f'ds_read_b128 {q4(8+4*j)}, v3 offset:{A_STAGE+6400*j}')
    a(f's_mul_i32 s49, s2, {CH*8}')
    for j in range(4):
        a(f's_waitcnt lgkmcnt({3-j})')
        a(f'buffer_store_dwordx4 {q4(8+4*j)}, v3, s[36:39], s49 offen {ST_A}')
        if j < 3:
            a(f's_add_u32 s49, s49, 6400')
    stamp(a, 5, 70)
    stamp_out(a, 0, 20, 70)
    a('s_endpgm')

    a.lab('A_gemm')
    a(f's_sub_u32 s22, s2, {A_GEMM0}')
    a('s_mul_i32 s48, s22, 12800')
    a('s_add_u32 s49, s48, 12800')
    a('s_lshl_b32 s22, s22, 2')
    a('s_add_u32 s22, s22, s3')
    a('v_and_b32 v2, 31, v1')
    a('v_lshrrev_b32 v3, 5, v1')
    a('v_lshlrev_b32 v4, 2, v2')
    a('v_lshl_add_u32 v7, v3, 9, v4')
    a('v_lshl_add_u32 v4, v3, 10, v4')
    a(f'v_add_u32 v4, {A_W1}, v4')
    a('v_lshlrev_b32 v5, 4, v0')
    a('s_lshl_b32 s23, s3, 12')
    a('s_add_u32 s23, s23, s48')
    a('v_lshlrev_b32 v6, 4, v1')
    a('s_lshl_b32 s42, s3, 12')
    a('v_add_u32 v7, s42, v7')
    a('v_lshrrev_b32 v8, 3, v1')
    a('v_and_b32 v9, 7, v1')
    a('v_xor_b32 v10, v9, v8')
    a('v_lshlrev_b32 v10, 4, v10')
    a('v_lshl_add_u32 v10, v8, 7, v10')
    a('v_add_u32 v10, s42, v10')
    a('v_xor_b32 v9, v9, v3')
    a('v_lshlrev_b32 v8, 7, v2')
    a('v_add_u32 v8, s42, v8')
    for ks in range(4):
        a(f'v_xor_b32 v{11+ks}, {2*ks}, v9')
        a(f'v_lshl_add_u32 v{11+ks}, v{11+ks}, 4, v8')
    a('s_waitcnt lgkmcnt(0)')
    srd(a, 24, 4, 0, N*128)
    a('s_mov_b32 s26, s49')
    srd(a, 28, 12, 0, 64*128)
    a('s_movk_i32 s43, 7168')
    a('buffer_load_dwordx4 v[16:19], v5, s[28:31], 0 offen')
    a('buffer_load_dwordx4 v[20:23], v5, s[28:31], s43 offen')
    for j in range(4):
        a(f'buffer_load_dwordx4 {q4(48+4*j)}, v6, s[24:27], s23 offen offset:{1024*j}')
    stamp(a, 0, 15)
    if DEBUG:
        a('v_writelane_b32 v15, s94, 8')
        a('v_writelane_b32 v15, s62, 9')
        a('v_writelane_b32 v15, s63, 10')
    srd(a, 32, 20, WS_PT, N*128)
    a('s_mov_b32 s34, s49')
    srd(a, 44, 20, WS_PF, PF_BYTES)
    a('s_mov_b32 s36, 0x05040100')
    a('s_mov_b32 s37, 0x07060302')
    a(f's_mov_b32 s38, {hex(f32(-LOG2E))}')
    a('s_mov_b32 s39, 0x7fffffff')
    a('s_mov_b32 s40, 0x7fff0000')
    a(f's_mov_b32 s41, {hex(f32(LIM_P))}')
    a('s_waitcnt vmcnt(4)')
    a(f'ds_write_b128 v5, v[16:19] offset:{A_W1}')
    a('s_cmp_lg_u32 s3, 0')
    a('s_cbranch_scc1 A_w1done')
    a(f'ds_write_b128 v5, v[20:23] offset:{A_W1+7168}')
    a.lab('A_w1done')
    a('s_waitcnt lgkmcnt(0)')
    a('s_barrier')
    a('s_cmp_ge_u32 s3, 4')
    a('s_cbranch_scc1 A_done')
    for ks in range(4):
        if ks: a('v_add_u32 v4, 2048, v4')
        for jj in range(4):
            a(f'ds_read2_b32 {pr(16+8*ks+2*jj)}, v4 offset0:{64*jj} offset1:{64*jj+32}')
    a('s_waitcnt vmcnt(0)')
    for j in range(4):
        a(f'ds_write_b128 v10, {q4(48+4*j)} offset:{1024*j}')
    a('s_waitcnt lgkmcnt(0)')
    for ks in range(4):
        a(f'ds_read_b128 {q4(48+4*ks)}, v{11+ks}')
    stamp(a, 1, 15)
    for ks in range(4):
        for jj in range(4):
            r0 = 16+8*ks+2*jj
            a(f'v_perm_b32 v{64+4*ks+jj}, v{r0+1}, v{r0}, s36')
            a(f'v_perm_b32 v{80+4*ks+jj}, v{r0+1}, v{r0}, s37')
    a('s_waitcnt lgkmcnt(0)')
    for ks in range(4):
        c0 = '0' if ks == 0 else 'v[96:111]'
        c1 = '0' if ks == 0 else 'v[112:127]'
        a(f'v_mfma_f32_32x32x16_bf16 v[96:111], {q4(48+4*ks)}, {q4(64+4*ks)}, {c0}')
        a(f'v_mfma_f32_32x32x16_bf16 v[112:127], {q4(48+4*ks)}, {q4(80+4*ks)}, {c1}')
    a('s_nop 15')
    stamp(a, 2, 15)
    for r in range(16):
        a(f'v_mul_f32 v{96+r}, s38, v{96+r}')
    for r in range(16):
        a(f'v_mul_f32 v{112+r}, s38, v{112+r}')
    for r in range(0, 16, 2):
        a(f'v_cvt_pk_bf16_f32 v{16+r}, v{96+r}, v{97+r}')
    for r in range(0, 16, 2):
        a(f'v_lshrrev_b32 v{17+r}, 16, v{16+r}')
        a(f'v_and_b32 v{16+r}, 0xffff, v{16+r}')
    for r in range(16):
        a(f'v_and_b32 v{32+r}, s39, v{112+r}')
    for r in range(16):
        a(f'v_add_u32 v{32+r}, 0x8000, v{32+r}')
    for r in range(16):
        a(f'v_sub_u32 v{32+r}, v{32+r}, v{16+r} clamp')
    for r in range(16):
        a(f'v_and_or_b32 v{32+r}, v{32+r}, s40, v{16+r}')
    for r in range(16):
        a(f'v_bfi_b32 v{32+r}, s39, v{32+r}, v{112+r}')
        a(f'ds_write_b32 v7, v{32+r} offset:{((r&3)+8*(r>>2))*128}')
    a('v_add_u32 v8, s42, v6')
    a('s_waitcnt lgkmcnt(0)')
    for j in range(4):
        a(f'ds_read_b128 {q4(48+4*j)}, v8 offset:{1024*j}')
    a('v_max_f32 v64, |v96|, |v97|')
    for r in range(2, 32, 2):
        a(f'v_max3_f32 v64, v64, |v{96+r}|, |v{97+r}|')
    a('v_cmp_lt_f32 vcc, s41, v64')
    for j in range(4):
        a(f's_waitcnt lgkmcnt({3-j})')
        a(f'buffer_store_dwordx4 {q4(48+4*j)}, v6, s[32:35], s23 offen offset:{1024*j} {ST_A}')
    a('s_lshl_b32 s43, s22, 2')
    a('v_mov_b32 v66, 0')
    a('s_cmp_lg_u64 vcc, 0')
    a('s_cselect_b32 s42, 1, 0')
    a('v_mov_b32 v65, s42')
    a('s_mov_b64 exec, 1')
    a(f'buffer_store_dword v65, v66, s[44:47], s43 offen {ST_A}')
    stamp(a, 5, 15)
    stamp_out(a, 0, 20, 15)
    a('s_endpgm')

    a.lab('A_prep')
    a(f's_sub_u32 s50, s2, {A_PREP0}')
    a('s_mul_i32 s50, s50, 7')
    a('s_add_u32 s50, s50, s3')
    a('s_cmp_gt_u32 s50, 24')
    a('s_cbranch_scc1 A_done')
    a('s_lshr_b32 s22, s50, 3')
    a('s_bfe_u32 s23, s50, 0x10002')
    a('s_and_b32 s24, s50, 3')
    a('v_and_b32 v2, 31, v1')
    a('v_lshrrev_b32 v3, 5, v1')
    a('v_bfe_u32 v4, v2, 2, 1')
    a('v_and_b32 v5, 3, v2')
    a('v_lshrrev_b32 v6, 3, v2')
    a('v_lshl_add_u32 v5, v6, 2, v5')
    a('s_waitcnt lgkmcnt(0)')
    srd(a, 32, 20, WS_WF, WF_BYTES)
    a('s_cmp_eq_u32 s50, 24')
    a('s_cbranch_scc1 A_prep_w3')
    a('s_cmp_lg_u32 s22, 0')
    a('s_cbranch_scc1 A_prep_u')
    srd(a, 28, 12, 0, 129*128)
    a('v_lshrrev_b32 v6, 3, v5')
    a('v_lshl_add_u32 v6, v4, 2, v6')
    a('s_lshl_b32 s25, s23, 1')
    a('v_add_u32 v6, s25, v6')
    a('v_and_b32 v7, 7, v5')
    a('v_lshlrev_b32 v8, 1, v7')
    a('v_add_u32 v9, 1, v8')
    a('v_subrev_u32 v8, 8, v8')
    a('v_cmp_gt_u32 vcc, 4, v7')
    a('s_nop 1')
    a('v_cndmask_b32 v8, v8, v9, vcc')
    a('v_lshl_add_u32 v8, v6, 3, v8')
    a('v_lshlrev_b32 v8, 1, v8')
    a('v_lshl_add_u32 v8, v3, 10, v8')
    a('s_lshl_b32 s26, s24, 11')
    a('s_add_u32 s26, s26, 8192')
    for j in range(8):
        a(f'buffer_load_ushort v{32+j}, v8, s[28:31], s26 offen offset:{128*j}')
    a('s_branch A_prep_st')
    a.lab('A_prep_u')
    srd(a, 28, 14, 0, 128*128)
    a('v_lshl_add_u32 v8, v4, 4, v5')
    a('s_lshl_b32 s25, s23, 5')
    a('v_add_u32 v8, s25, v8')
    a('v_lshlrev_b32 v8, 1, v8')
    a('s_cmp_lg_u32 s22, 1')
    a('s_cbranch_scc1 A_prep_agg')
    a('v_lshl_add_u32 v8, v3, 10, v8')
    a('s_lshl_b32 s26, s24, 11')
    for j in range(8):
        a(f'buffer_load_ushort v{32+j}, v8, s[28:31], s26 offen offset:{128*j}')
    a('s_branch A_prep_st')
    a.lab('A_prep_w3')
    srd(a, 44, 20, WS_PT + N*128, 128)
    a('v_mov_b32 v20, 0x71497149')
    a('v_mov_b32 v21, v20')
    a('v_mov_b32 v22, v20')
    a('v_mov_b32 v23, v20')
    a('v_lshlrev_b32 v24, 4, v1')
    a('buffer_store_dwordx4 v[20:23], v24, s[44:47], 0 offen')
    srd(a, 36, 12, 0, 129*128)
    a('v_and_b32 v10, 7, v1')
    a('v_lshlrev_b32 v11, 4, v10')
    a('s_movk_i32 s27, 0x4000')
    a('buffer_load_dwordx4 v[44:47], v11, s[36:39], s27 offen')
    a(f's_mov_b32 s40, {hex(f32(-LOG2E))}')
    a('s_waitcnt vmcnt(0)')
    for i in range(4):
        a(f'v_and_b32 v{48+i}, 0xffff0000, v{44+i}')
        a(f'v_lshlrev_b32 v{52+i}, 16, v{44+i}')
    for i in range(8):
        a(f'v_mul_f32 v{48+i}, s40, v{48+i}')
    a('v_max3_f32 v44, |v48|, |v49|, |v50|')
    a('v_max3_f32 v44, v44, |v51|, |v52|')
    a('v_max3_f32 v44, v44, |v53|, |v54|')
    a('v_max_f32 v44, v44, |v55|')
    a(f'v_cmp_lt_f32 vcc, {hex(f32(LIM_W))}, v44')
    a('v_lshlrev_b32 v11, 5, v10')
    a('s_cmp_lg_u64 vcc, 0')
    a('s_cselect_b32 s41, 1, 0')
    a('v_mov_b32 v45, s41')
    a('v_mov_b32 v46, 0')
    a(f's_movk_i32 s27, {WF_W3}')
    a('buffer_store_dwordx4 v[48:51], v11, s[32:35], s27 offen')
    a('buffer_store_dwordx4 v[52:55], v11, s[32:35], s27 offen offset:16')
    a('buffer_store_dword v45, v46, s[32:35], s27 offen offset:256')
    a('s_endpgm')
    a.lab('A_prep_agg')
    a('v_lshl_add_u32 v8, v3, 11, v8')
    a('s_and_b32 s26, s24, 1')
    a('s_lshl_b32 s26, s26, 5')
    a('s_lshr_b32 s27, s24, 1')
    a('s_lshl_b32 s27, s27, 1')
    a('s_add_u32 s26, s26, s27')
    a('s_add_u32 s26, s26, 64')
    a('s_lshl_b32 s26, s26, 7')
    for j in range(8):
        i_ = 2*(j >> 1)
        ph = 2*i_+1 if i_ < 4 else 2*i_-8
        a(f'buffer_load_ushort v{32+j}, v8, s[28:31], s26 offen offset:{(8*(j & 1)+ph)*128}')
    a.lab('A_prep_st')
    a('s_lshl_b32 s25, s50, 10')
    a('v_lshlrev_b32 v9, 4, v1')
    a('s_waitcnt vmcnt(0)')
    for j in range(4):
        a(f'v_lshl_or_b32 v{16+j}, v{33+2*j}, 16, v{32+2*j}')
    a('buffer_store_dwordx4 v[16:19], v9, s[32:35], s25 offen')
    a.lab('A_done')
    a('s_endpgm')

RS = 288
L_CNT = 0
L_MAX = 1024
L_FLAG = 1028
L_F8C = 1032
L_TOT = 1036
L_WORK = 1040
L_OVF = 1044
L_L8 = 1056
L_L2 = L_L8 + 1600
L_REC = L_L2 + 832
DUMP_OFF = NB*512
L_Q = L_REC + DUMP_OFF + 64
L_AGG = L_Q + (NB+1)*RS
L_X = L_AGG + (NB+1)*RS*2
L_WU = L_X + 13*1024
L_W3 = L_WU + 8192
B_LDS = L_W3 + 256
DUMMY1 = N | (NB*8) << 16
for x in (L_L8, L_REC, L_Q, L_AGG, L_X, L_WU): assert x % 16 == 0
assert B_LDS <= 163840 and L_Q + 128 < 65536

def kernel_b(a):
    a.raw('.globl mpnn_main_kernel')
    a.raw('.p2align 8')
    a.raw('.type mpnn_main_kernel,@function')
    a.lab('mpnn_main_kernel')
    a('s_load_dwordx2 s[80:81], s[0:1], 64')
    a('s_load_dwordx16 s[64:79], s[0:1], 0')
    a(f's_cmp_ge_u32 s2, {NBK}')
    a('s_cbranch_scc1 B_done')
    a('v_lshrrev_b32 v1, 6, v0')
    a('v_lshrrev_b32 v4, 3, v0')
    a('v_readfirstlane_b32 s3, v1')
    a('v_lshlrev_b32 v12, 10, v4')
    a('s_and_b32 s85, s2, 7')
    a('s_lshl_b32 s85, s85, 5')
    a('s_lshr_b32 s86, s2, 3')
    a('s_add_u32 s85, s85, s86')
    a('s_lshl_b32 s32, s85, 2')
    a('s_add_u32 s33, s32, 0x20000')
    a('v_and_b32 v1, 63, v0')
    a('v_and_b32 v3, 7, v0')
    a('v_lshlrev_b32 v2, 4, v3')
    a('v_lshlrev_b32 v11, 4, v1')
    a(f's_mul_i32 s37, s85, {NB}')
    a('s_lshl_b32 s39, s37, 7')
    a('s_lshl_b32 s40, s3, 10')
    a('s_add_u32 s39, s39, s40')
    a('s_and_b32 s34, s3, 1')
    a('s_lshl_b32 s41, s34, 12')
    a('s_waitcnt lgkmcnt(0)')
    ws = 80
    srd(a, 4, ws, WS_TAB, TAB_BYTES)
    a('buffer_load_dword v6, v12, s[4:7], s32 offen')
    a('buffer_load_dword v7, v12, s[4:7], s33 offen')
    stamp(a, 0)
    srd(a, 8, ws, WS_REC, REC_BYTES)
    a(f's_add_u32 s28, s80, {hex(WS_WF+WF_W3+256)}')
    a('s_addc_u32 s29, s81, 0')
    a('s_load_dword s90, s[28:29], 0')
    srd(a, 12, ws, WS_PT, PT_BYTES)
    srd(a, 24, 76, 0, N*128)
    a('s_mov_b64 s[88:89], s[80:81]')
    a('s_bfe_u32 s35, s3, 0x20001')
    a('s_lshl_b32 s38, s35, 5')
    a('v_and_b32 v8, 31, v1')
    a('v_add_u32 v8, s38, v8')
    a('v_lshrrev_b32 v9, 5, v1')
    a('v_lshlrev_b32 v3, 3, v3')
    a(f'v_add_u32 v3, {L_AGG}, v3')
    a('s_movk_i32 s42, 128')
    a('s_mov_b32 s44, 1.0')
    a('s_mov_b32 s45, 1.0')
    a('s_mov_b32 s46, 0x3f80')
    a(f's_mov_b32 s47, {hex(f32(-LOG2E))}')
    a(f's_mov_b32 s48, {hex(f32(-LN2))}')
    a(f's_mov_b32 s49, {hex(f32(-LN2))}')
    a('s_mov_b32 s50, 0')
    a('s_movk_i32 s84, 72')
    a('s_mov_b32 s86, 0')
    a('s_mov_b32 s87, -1')
    srd(a, 16, 64, 0, N*128)
    srd(a, 20, ws, WS_WF, WF_BYTES)
    srd(a, 28, ws, WS_PF, PF_BYTES)
    for r in range(44, 48): a(f'v_mov_b32 v{r}, 0') if False else None
    a('s_cmp_ge_u32 s3, 13')
    a('s_cbranch_scc1 B_a13')
    a('buffer_load_dwordx4 v[32:35], v11, s[16:19], s39 offen')
    a('s_cmp_ge_u32 s3, 8')
    a('s_cbranch_scc1 B_a8')
    a(f's_add_u32 m0, s40, {L_WU}')
    a('s_nop 0')
    a('buffer_load_dwordx4 v11, s[20:23], s40 offen lds')
    a('s_branch B_batch')
    a.lab('B_a8')
    a('s_sub_u32 s51, s40, 8192')
    a('buffer_load_dwordx4 v[48:51], v11, s[28:31], s51 offen')
    a('s_branch B_batch')
    a.lab('B_a13')
    a(f's_mov_b32 m0, {L_W3}')
    a(f's_movk_i32 s51, {WF_W3}')
    a('s_mov_b64 exec, 0xffff')
    a('buffer_load_dwordx4 v11, s[20:23], s51 offen lds')
    a('buffer_load_dwordx4 v11, s[20:23], s51 offen lds')
    a('s_mov_b64 exec, -1')
    a.lab('B_batch')
    a('v_and_b32 v14, 7, v0')
    a('v_lshlrev_b32 v14, 1, v14')
    a('v_add_u32 v14, s50, v14')
    a(f's_movk_i32 s51, {CH}')
    a('v_mul_u32_u24 v15, s51, v4')
    a('v_add_u32 v15, v15, v14')
    a('v_mov_b32 v25, 0x7fffff00')
    a('v_lshrrev_b32 v45, 3, v1')
    a('v_and_b32 v46, 7, v1')
    a('v_xor_b32 v47, v46, v45')
    a('v_lshlrev_b32 v47, 4, v47')
    a('v_lshl_add_u32 v47, v45, 7, v47')
    a(f's_add_u32 s51, s40, {L_X}')
    a('v_add_u32 v47, s51, v47')
    a('s_cmp_lg_u32 s86, 0')
    a('s_cbranch_scc1 B_tw0')
    a('s_waitcnt vmcnt(2)')
    a('s_branch B_twx')
    a.lab('B_tw0')
    a('s_waitcnt vmcnt(0)')
    a.lab('B_twx')
    stamp(a, 1)
    for rd_ in range(2):
        T_ = 6+rd_
        a(f'v_bfe_u32 v{20+rd_}, v{T_}, 16, 13')
        a(f'v_and_b32 v{22+rd_}, 0xffff, v{T_}')
        a(f'v_add_u32 v{22+rd_}, v{22+rd_}, v15')
        if rd_ == 1:
            a(f'v_add_u32 v{22+rd_}, {128*CH}, v{22+rd_}')
        a(f'v_lshlrev_b32 v{22+rd_}, 3, v{22+rd_}')
        a(f'v_sub_u32 v{16+rd_}, v{20+rd_}, v14')
    for s in range(8):
        a(f'v_cmp_lt_i32 s[{52+2*s}:{53+2*s}], {((s >> 1) & 1)*16+(s & 1)}, v{16+(s >> 2)}')
    a('s_cmp_eq_u32 s87, -1')
    a('s_cbranch_scc1 B_allsl')
    a('s_lshl_b32 s51, s3, 3')
    a('s_sub_u32 s51, s87, s51')
    a('s_mov_b64 s[68:69], s[52:53]')
    for s in range(8):
        a(f's_cmp_eq_u32 s51, {s}')
        a(f's_cselect_b64 s[{52+2*s}:{53+2*s}], s[{52+2*s}:{53+2*s}], 0')
    a.lab('B_allsl')
    order = [(0, 0), (1, 0), (0, 1), (1, 1)]
    for rd_, ld in order:
        s = rd_*4+ld*2
        r = 96+(rd_*2+ld)*4
        a(f's_or_b64 vcc, s[{52+2*s}:{53+2*s}], s[{54+2*s}:{55+2*s}]')
        a(f'v_cndmask_b32 v{26+rd_*2+ld}, v25, v{22+rd_}, vcc')
        a(f'buffer_load_dwordx4 {q4(r)}, v{26+rd_*2+ld}, s[8:11], 0 offen offset:{128*ld}')
    a('v_max_i32 v16, v16, v17')
    a('v_or_b32 v17, v6, v7')
    a('v_cmp_lt_i32 s[70:71], 32, v16')
    a('v_cmp_gt_i32 s[72:73], 0, v17')
    a('v_lshlrev_b32 v12, 4, v0')
    a('s_cmp_lg_u32 s86, 0')
    a('s_cbranch_scc1 B_noaux')
    for r in range(20, 24): a(f'v_mov_b32 v{r}, 0')
    a(f'v_add_u32 v13, {L_AGG}, v12')
    for j in range(3):
        a(f'ds_write_b128 v13, v[20:23] offset:{16384*j}')
    a(f'v_cmp_gt_u32 vcc, {NB*RS*2//16-3072}, v0')
    a('s_and_saveexec_b64 s[68:69], vcc')
    a('ds_write_b128 v13, v[20:23] offset:49152')
    a('s_mov_b64 exec, s[68:69]')
    a('s_waitcnt vmcnt(4)')
    a('s_cmp_ge_u32 s3, 13')
    a('s_cbranch_scc1 B_noaux')
    a('ds_write_b128 v47, v[32:35]')
    a('s_cmp_lt_u32 s3, 8')
    a('s_cbranch_scc1 B_noaux')
    a('v_or3_b32 v48, v48, v49, v50')
    a('v_or_b32 v48, v48, v51')
    a('v_cmp_ne_u32 vcc, 0, v48')
    a('s_nop 0')
    a('s_or_b64 s[72:73], s[72:73], vcc')
    a.lab('B_noaux')
    a(f'v_mov_b32 v16, {hex(DUMP_OFF | DUMP_OFF << 16)}')
    a(f'v_cmp_gt_u32 vcc, {L_L8//16}, v0')
    a('v_mov_b32 v28, 0')
    a(f'v_mov_b32 v29, {hex(DUMMY1)}')
    a('v_cndmask_b32 v16, v16, v28, vcc')
    a('v_mov_b32 v30, 0')
    a(f'v_mov_b32 v31, {hex(DUMMY1)}')
    a('v_mov_b32 v17, v16')
    a('v_mov_b32 v18, v16')
    a('v_mov_b32 v19, v16')
    a(f'v_cmp_gt_u32 vcc, {L_REC//16}, v0')
    a('s_and_saveexec_b64 s[68:69], vcc')
    a('ds_write_b128 v12, v[16:19]')
    a('s_mov_b64 exec, 15')
    a(f'ds_write_b128 v11, v[28:31] offset:{L_REC+DUMP_OFF}')
    a('s_mov_b64 exec, s[68:69]')
    a('s_waitcnt lgkmcnt(0)')
    a('s_barrier')
    stamp(a, 9)
    a(f'v_mov_b32 v24, {L_MAX}')
    a('v_mov_b32 v16, 1')
    a('s_cmp_eq_u64 s[70:71], 0')
    a('s_cbranch_scc1 B_nomore')
    a('ds_write_b32 v24, v16')
    a.lab('B_nomore')
    a('s_cmp_eq_u64 s[72:73], 0')
    a('s_cbranch_scc1 B_noflag')
    a('ds_write_b32 v24, v16 offset:4')
    a.lab('B_noflag')
    lc = [0]
    def ranks(extra):
        a('v_mov_b32 v24, 8')
        for n, (rd_, ld) in enumerate(order):
            a(f's_waitcnt vmcnt({3-n+extra})')
            if n in (0, 1, 3):
                a('s_mov_b64 exec, -1')
                stamp(a, {0: 6, 1: 14, 3: 10}[n])
            for e in range(2):
                s = rd_*4+ld*2+e
                r = 96+(rd_*2+ld)*4+2*e
                a(f's_mov_b64 exec, s[{52+2*s}:{53+2*s}]')
                if ld:
                    lc[0] += 1
                    a(f's_cbranch_execz B_sk{lc[0]}')
                a(f'v_lshrrev_b32 v{112+s}, 16, v{r+1}')
                a(f'ds_add_rtn_u32 v{36+s}, v{112+s}, v24 offset:{L_CNT}')
                if ld: a.lab(f'B_sk{lc[0]}')
        a('s_mov_b64 exec, -1')
    a('s_cmp_lg_u32 s86, 0')
    a('s_cbranch_scc1 B_rk0')
    a('s_cmp_ge_u32 s3, 8')
    a('s_cbranch_scc1 B_rk3')
    a('v_xor_b32 v46, v46, v9')
    a('v_lshlrev_b32 v45, 7, v8')
    a(f'v_add_u32 v45, {L_X}, v45')
    for ks in range(4):
        a(f'v_xor_b32 v47, {2*ks}, v46')
        a(f'v_lshl_add_u32 v{92+ks}, v47, 4, v45')
        a(f'ds_read_b128 {q4(76+4*ks)}, v{92+ks}')
    a(f's_add_u32 s68, s41, {L_WU}')
    a('v_add_u32 v47, s68, v11')
    for ks in range(4):
        a(f'ds_read_b128 {q4(48+4*ks)}, v47 offset:{1024*ks}')
    a(f's_movk_i32 s68, {RS}')
    a('v_mul_u32_u24 v45, s68, v8')
    a('v_lshl_add_u32 v45, v9, 6, v45')
    a('s_lshl_b32 s68, s34, 5')
    a('v_add_u32 v45, s68, v45')
    a(f'v_mov_b32 v46, {NB}')
    a('v_cmp_gt_u32 s[68:69], v46, v8')
    a('s_waitcnt lgkmcnt(0)')
    for ks in range(4):
        c = '0' if ks == 0 else 'v[16:31]'
        a(f'v_mfma_f32_32x32x16_bf16 v[16:31], {q4(48+4*ks)}, {q4(76+4*ks)}, {c}')
    a('s_nop 11')
    for r in range(16):
        a(f'v_mul_f32 v{16+r}, s47, v{16+r}')
    a('s_mov_b64 exec, s[68:69]')
    for o in range(2):
        a(f'ds_write_b128 v45, {q4(16+8*o)} offset:{L_Q+16*o}')
        a(f'ds_write_b128 v45, {q4(20+8*o)} offset:{L_Q+128+16*o}')
    a('v_max_f32 v46, |v16|, |v17|')
    for r in range(2, 16, 2):
        a(f'v_max3_f32 v46, v46, |v{16+r}|, |v{17+r}|')
    a(f'v_cmp_lt_f32 s[70:71], {hex(f32(LIM_Q))}, v46') if False else None
    a(f'v_cmp_lt_f32 vcc, {hex(f32(LIM_Q))}, v46')
    a('s_mov_b64 exec, -1')
    a(f'v_mov_b32 v24, {L_FLAG}')
    a('v_mov_b32 v16, 1')
    a('s_cbranch_vccz B_rk0')
    a('ds_write_b32 v24, v16')
    a.lab('B_rk3')
    a.lab('B_rk0')
    ranks(0)
    a.lab('B_rkdone')
    a('s_movk_i32 s51, 504')
    a('s_waitcnt lgkmcnt(0)')
    stamp(a, 7)
    for s in (0, 1, 4, 5, 2, 3, 6, 7):
        r = 96+(s//2)*4+2*(s % 2)
        a(f's_mov_b64 exec, s[{52+2*s}:{53+2*s}]')
        sk = s in (2, 3, 6, 7)
        if sk:
            lc[0] += 1
            a(f's_cbranch_execz B_sk{lc[0]}')
        a(f'v_min_u32 v{36+s}, s51, v{36+s}')
        a(f'v_lshl_add_u32 v{36+s}, v{112+s}, 6, v{36+s}')
        a(f'ds_write_b64 v{36+s}, {pr(r)} offset:{L_REC}')
        if sk: a.lab(f'B_sk{lc[0]}')
    a('s_mov_b64 exec, -1')
    a('v_lshrrev_b32 v13, 3, v1')
    a('v_lshlrev_b32 v13, 1, v13')
    a(f'v_mov_b32 v14, {L_WORK}')
    a('v_mov_b32 v15, 1')
    a('s_waitcnt lgkmcnt(0)')
    a('s_barrier')
    stamp(a, 2)
    a('s_cmp_lg_u32 s86, 0')
    a('s_cbranch_scc1 B_now3')
    a('s_mov_b32 s86, 1')
    a('v_lshlrev_b32 v16, 1, v2')
    a(f'v_add_u32 v16, {L_W3}, v16')
    a('ds_read_b128 v[68:71], v16')
    a('ds_read_b128 v[72:75], v16 offset:16')
    a('s_cmp_lt_u32 s3, 12')
    a('s_cbranch_scc1 B_now3')
    a('s_sub_u32 s51, s3, 12')
    a('s_lshl_b32 s51, s51, 11')
    a(f's_add_u32 m0, s51, {L_WU}')
    a('s_add_u32 s51, s51, 16384')
    a('buffer_load_dwordx4 v11, s[20:23], s51 offen lds')
    a('buffer_load_dwordx4 v11, s[20:23], s51 offen offset:1024 lds')
    a.lab('B_now3')
    a('s_cmp_ge_u32 s3, 12')
    a('s_cbranch_scc1 B_lsd')
    a(f'ds_read_b128 v[16:19], v11 offset:{L_CNT}')
    a('v_lshlrev_b32 v20, 10, v1')
    a('v_add_u32 v21, 512, v20')
    a('s_cmp_ge_u32 s3, 8')
    a('s_cbranch_scc1 B_cls')
    a('s_lshl_b32 s51, s3, 6')
    a('v_add_u32 v20, s51, v20')
    a('v_add_u32 v21, s51, v21')
    a('s_add_u32 s51, s51, 64')
    a(f'v_mov_b32 v24, {L_F8C}')
    a('s_waitcnt lgkmcnt(0)')
    a('v_cmp_le_u32 s[68:69], s51, v16')
    a('v_cmp_le_u32 s[70:71], s51, v18')
    a('s_bcnt1_i32_b64 s72, s[68:69]')
    a('s_bcnt1_i32_b64 s73, s[70:71]')
    a('s_add_u32 s73, s73, s72')
    a('v_mov_b32 v25, s73')
    a('s_mov_b64 exec, 1')
    a('ds_add_rtn_u32 v26, v24, v25')
    a('s_mov_b64 exec, -1')
    a('v_mbcnt_lo_u32_b32 v22, s68, 0')
    a('v_mbcnt_hi_u32_b32 v22, s69, v22')
    a('v_mbcnt_lo_u32_b32 v23, s70, 0')
    a('v_mbcnt_hi_u32_b32 v23, s71, v23')
    a('v_add_u32 v23, s72, v23')
    a('s_waitcnt lgkmcnt(0)')
    a('v_readfirstlane_b32 s72, v26')
    a('s_nop 1')
    a('v_add_lshl_u32 v22, v22, s72, 1')
    a('v_add_lshl_u32 v23, v23, s72, 1')
    a('s_mov_b64 exec, s[68:69]')
    a(f'ds_write_b16 v22, v20 offset:{L_L8}')
    a('s_mov_b64 exec, s[70:71]')
    a(f'ds_write_b16 v23, v21 offset:{L_L8}')
    a('s_mov_b64 exec, -1')
    a('s_branch B_lsd')
    a.lab('B_cls')
    a('s_waitcnt lgkmcnt(0)')
    for k in range(2):
        a(f'v_bfe_u32 v{22+k}, v{16+2*k}, 5, 1')
        a(f'v_bfe_u32 v{24+k}, v{16+2*k}, 3, 2')
    msk = [(52, 54), (56, 58), (60, 62), (64, 66)]
    for k in range(2):
        a(f'v_cmp_ne_u32 s[{msk[0][k]}:{msk[0][k]+1}], 0, v{22+k}')
        for c in range(1, 4):
            a(f'v_cmp_eq_u32 s[{msk[c][k]}:{msk[c][k]+1}], {4-c}, v{24+k}')
    a('v_max_u32 v26, v16, v18')
    a('v_cmp_lt_u32 vcc, 512, v26')
    a('s_mov_b32 s72, 0')
    a('s_mov_b32 s73, 0')
    for c in range(4):
        a(f's_cmp_eq_u32 s3, {8+c}')
        a(f's_cselect_b64 s[68:69], s[{msk[c][0]}:{msk[c][0]+1}], s[68:69]')
        a(f's_cselect_b64 s[70:71], s[{msk[c][1]}:{msk[c][1]+1}], s[70:71]')
        a('s_cselect_b32 s74, s72, s74')
        a(f's_bcnt1_i32_b64 s75, s[{msk[c][0]}:{msk[c][0]+1}]')
        a(f's_bcnt1_i32_b64 s76, s[{msk[c][1]}:{msk[c][1]+1}]')
        a('s_add_u32 s75, s75, s76')
        a('s_add_u32 s75, s75, 7')
        a('s_lshr_b32 s75, s75, 3')
        a('s_add_u32 s72, s72, s75')
        a(f's_lshl_b32 s75, s72, {8*c}')
        a('s_or_b32 s73, s73, s75')
    a('s_cmp_eq_u32 s3, 8')
    a('s_cselect_b32 s51, 63, 31')
    a('s_not_b32 s51, s51')
    a('s_lshl_b32 s74, s74, 3')
    a('s_bcnt1_i32_b64 s75, s[68:69]')
    a('s_add_u32 s75, s75, s74')
    a('v_and_b32 v16, s51, v16')
    a('v_and_b32 v18, s51, v18')
    a('v_add_u32 v20, v20, v16')
    a('v_add_u32 v21, v21, v18')
    a('v_mbcnt_lo_u32_b32 v22, s68, 0')
    a('v_mbcnt_hi_u32_b32 v22, s69, v22')
    a('v_mbcnt_lo_u32_b32 v23, s70, 0')
    a('v_mbcnt_hi_u32_b32 v23, s71, v23')
    a('v_add_lshl_u32 v22, v22, s74, 1')
    a('v_add_lshl_u32 v23, v23, s75, 1')
    a('s_mov_b64 exec, s[68:69]')
    a(f'ds_write_b16 v22, v20 offset:{L_L2}')
    a('s_mov_b64 exec, s[70:71]')
    a(f'ds_write_b16 v23, v21 offset:{L_L2}')
    a('s_mov_b64 exec, 1')
    a('s_cmp_lg_u64 vcc, 0')
    a('s_cselect_b32 s73, -1, s73')
    a(f'v_mov_b32 v24, {L_TOT}')
    a('v_mov_b32 v25, s73')
    a('ds_write_b32 v24, v25')
    a('s_mov_b64 exec, -1')
    a.lab('B_lsd')
    a('s_waitcnt lgkmcnt(0)')
    a('s_barrier')
    stamp(a, 3)
    stampc(a, 8)
    RAW = 32; Q = 48; RCS = [56, 112]; IDX = 64; AGC = 66; AGN = 67; Z = 76; T = 16; TMP = 108; KN = 120; KD = 4; EN = 111
    cnt = [0]
    def rd(st, off=0):
        a(f'ds_read_b128 {q4(RCS[st])}, v{EN} offset:{L_REC+off}')
        a(f'ds_read_b128 {q4(RCS[st]+4)}, v{EN} offset:{L_REC+off+16}')
    def ent8(sidx):
        a(f's_lshl_b32 s51, s{sidx}, 4')
        a(f'v_add_u32 v{TMP}, s51, v13')
        a(f'ds_read_u16 v{EN}, v{TMP} offset:{L_L8}')
    def ent4(sidx):
        a(f's_sub_u32 s79, s{sidx}, s74')
        a(f's_min_u32 s79, s79, 51')
        a(f's_lshl_b32 s51, s79, 4')
        a(f'v_add_u32 v{TMP}, s51, v13')
        a(f'ds_read_u16 v{EN}, v{TMP} offset:{L_L2}')
    def ent_any(sidx):
        n = cnt[0]; cnt[0] += 1
        a(f's_cmp_ge_u32 s{sidx}, s74')
        a(f's_cbranch_scc1 B_rrP{n}')
        ent8(sidx)
        a(f's_branch B_rrX{n}')
        a.lab(f'B_rrP{n}')
        ent4(sidx)
        a.lab(f'B_rrX{n}')
    def gathers(st):
        RC = RCS[st]
        for k in range(4):
            a(f'v_mad_u32_u16 v{TMP+(k&1)}, v{RC+2*k+1}, s42, v2')
            a(f'buffer_load_dwordx4 {q4(RAW+4*k)}, v{TMP+(k&1)}, s[12:15], 0 offen')
    def fetch(st):
        RC = RCS[st]
        gathers(st)
        a(f'v_mad_u32_u16 v{TMP+2}, v{RC+1}, 36, v2 op_sel:[1,0,0,0]')
        a(f'ds_read_b128 {q4(Q)}, v{TMP+2} offset:{L_Q}')
        a(f'ds_read_b128 {q4(Q+4)}, v{TMP+2} offset:{L_Q+128}')
        a(f'v_mad_u32_u16 v{AGN}, v{RC+1}, s84, v3 op_sel:[1,0,0,0]')
    def grab():
        a('s_mov_b64 exec, 1')
        a(f'ds_add_rtn_u32 v{IDX}, v14, v15')
        a('s_mov_b64 exec, -1')
    def zstep(st, k):
        R = RAW+4*k; Zk = Z+8*k; ep = RCS[st]+2*k
        for p in range(4):
            a(f'v_pk_fma_f32 {pr(Zk+2*p)}, {pr(ep)}, {pr(68+2*p)}, {pr(Q+2*p)} op_sel_hi:[0,1,1]')
        a(f's_waitcnt vmcnt({3-k})')
        for i in range(4):
            a(f'v_dot2_f32_bf16 v{Zk+4+i}, v{R+i}, s46, v{Zk+4+i}')
        a(f'v_pk_add_f32 {pr(Zk)}, {pr(R)}, {pr(Zk)}')
        a(f'v_pk_add_f32 {pr(Zk+2)}, {pr(R+2)}, {pr(Zk+2)}')
    def pair(ps, tt, half):
        def regs(p):
            za = Z+16*half+2*p
            return za, za+8, tt[p]+(0 if half == 0 else 4), tt[p]+2
        for p in ps:
            za, zb, ta, tb = regs(p)
            a(f'v_exp_f32 v{ta}, v{za}'); a(f'v_exp_f32 v{ta+1}, v{za+1}')
            a(f'v_exp_f32 v{tb}, v{zb}'); a(f'v_exp_f32 v{tb+1}, v{zb+1}')
        for p in ps:
            za, zb, ta, tb = regs(p)
            a(f'v_pk_fma_f32 {pr(zb)}, {pr(zb)}, {pr(ta)}, {pr(zb)}')
        for p in ps:
            za, zb, ta, tb = regs(p)
            a(f'v_pk_add_f32 {pr(tb)}, {pr(tb)}, s[44:45]')
        for p in ps:
            za, zb, ta, tb = regs(p)
            a(f'v_pk_fma_f32 {pr(zb)}, {pr(za)}, {pr(tb)}, {pr(zb)}')
        for p in ps:
            za, zb, ta, tb = regs(p)
            a(f'v_pk_fma_f32 {pr(ta)}, {pr(ta)}, {pr(tb)}, {pr(tb)}')
    def merge(ps, n1, d1, n2, d2, no, do, x):
        for p in ps: a(f'v_pk_mul_f32 {pr(x(p))}, {pr(n1(p))}, {pr(d2(p))}')
        for p in ps: a(f'v_pk_fma_f32 {pr(no(p))}, {pr(n2(p))}, {pr(d1(p))}, {pr(x(p))}')
        for p in ps: a(f'v_pk_mul_f32 {pr(do(p))}, {pr(d1(p))}, {pr(d2(p))}')
    def finish(ps, n, d):
        for p in ps:
            a(f'v_rcp_f32 v{d(p)}, v{d(p)}'); a(f'v_rcp_f32 v{d(p)+1}, v{d(p)+1}')
        a('s_nop 0')
        for p in ps: a(f'v_pk_mul_f32 {pr(Z+2*p)}, {pr(n(p))}, {pr(d(p))}')
        for p in ps:
            a(f'v_cvt_f64_f32 {pr(Z+8+2*p)}, v{Z+2*p}'); a(f'v_cvt_f64_f32 {pr(Z+16+2*p)}, v{Z+2*p+1}')
        for p in ps:
            a(f'ds_add_f64 v{AGC}, {pr(Z+8+2*p)} offset:{64*(2*p)}')
            a(f'ds_add_f64 v{AGC}, {pr(Z+16+2*p)} offset:{64*(2*p+1)}')
    def compute(kind):
        for pp in range(2):
            ps = [2*pp, 2*pp+1]
            tt = {ps[0]: T, ps[1]: T+6}
            zA = lambda p: Z+2*p
            n1 = lambda p: Z+8+2*p; d1 = lambda p: tt[p]
            n2 = lambda p: Z+24+2*p; d2 = lambda p: tt[p]+4
            dm = lambda p: tt[p]+2
            if kind in ('4', '8a', '8b'):
                pair(ps, tt, 0); pair(ps, tt, 1)
                if kind == '8a':
                    merge(ps, n1, d1, n2, d2, lambda p: KN+2*p, lambda p: KD+2*p, zA)
                else:
                    merge(ps, n1, d1, n2, d2, zA, dm, zA)
                    if kind == '8b':
                        merge(ps, zA, dm, lambda p: KN+2*p, lambda p: KD+2*p, zA, d1, n1)
                        finish(ps, zA, d1)
                    else:
                        finish(ps, zA, dm)
            elif kind == '3':
                pair(ps, tt, 0)
                for p in ps:
                    a(f'v_exp_f32 v{d2(p)}, v{Z+16+2*p}'); a(f'v_exp_f32 v{d2(p)+1}, v{Z+17+2*p}')
                a('s_nop 0')
                for p in ps: a(f'v_pk_add_f32 {pr(d2(p))}, {pr(d2(p))}, s[44:45]')
                merge(ps, n1, d1, lambda p: Z+16+2*p, d2, zA, dm, zA)
                finish(ps, zA, dm)
            elif kind == '2':
                pair(ps, tt, 0)
                finish(ps, n1, d1)
            elif kind == '1':
                for p in ps:
                    a(f'v_exp_f32 v{d1(p)}, v{zA(p)}'); a(f'v_exp_f32 v{d1(p)+1}, v{zA(p)+1}')
                a('s_nop 0')
                for p in ps: a(f'v_pk_add_f32 {pr(d1(p))}, {pr(d1(p))}, s[44:45]')
                finish(ps, zA, d1)
    def plain():
        AC = T+8
        lim = [82, 73, 72]
        for k in range(4):
            Zk = Z+8*k
            for i in range(8): a(f'v_exp_f32 v{T+i}, v{Zk+i}')
            for p in range(4): a(f'v_pk_add_f32 {pr(T+2*p)}, {pr(T+2*p)}, s[44:45]')
            for i in range(8): a(f'v_rcp_f32 v{T+i}, v{T+i}')
            for p in range(4):
                if k == 0:
                    a(f'v_pk_mul_f32 {pr(AC+2*p)}, {pr(Zk+2*p)}, {pr(T+2*p)}')
                else:
                    a(f'v_pk_fma_f32 {pr(AC+2*p)}, {pr(Zk+2*p)}, {pr(T+2*p)}, {pr(AC+2*p)}')
            if k < 3:
                a(f's_cmp_ge_u32 s76, s{lim[k]}')
                a('s_cbranch_scc1 B_pfl')
        a.lab('B_pfl')
        for i in range(8): a(f'v_cvt_f64_f32 {pr(Z+2*i)}, v{AC+i}')
        for i in range(8): a(f'ds_add_f64 v{AGC}, {pr(Z+2*i)} offset:{64*i}')
    pc = [0]
    def prio(inc):
        a(f's_add_u32 s83, s83, {inc}')
        if not PRIO: return
        n = pc[0]; pc[0] += 1
        a(f's_cmp_lt_u32 s83, {PT[0]}')
        a(f's_cbranch_scc1 B_pr{n}')
        a('s_setprio 2')
        a(f's_cmp_lt_u32 s83, {PT[1]}')
        a(f's_cbranch_scc1 B_pr{n}')
        a('s_setprio 1')
        a(f's_cmp_lt_u32 s83, {PT[2]}')
        a(f's_cbranch_scc1 B_pr{n}')
        a('s_setprio 0')
        a.lab(f'B_pr{n}')
    def dbgz(n):
        if not DEBUG: return
        a('s_cmp_gt_u32 s83, 15')
        a(f's_cbranch_scc1 B_nost{n}')
        a('s_memrealtime s[92:93]')
        a('s_add_u32 m0, s83, 16')
        a('s_waitcnt lgkmcnt(0)')
        a('v_writelane_b32 v65, s92, m0')
        a.lab(f'B_nost{n}')
    a(f'v_mov_b32 v24, {L_MAX}')
    a('ds_read_b128 v[16:19], v24')
    a('s_mov_b32 s76, s3')
    a('s_add_u32 s77, s3, 16')
    ent8(76)
    grab()
    a('s_mov_b32 s83, 0')
    if PRIO: a('s_setprio 3')
    a('s_waitcnt lgkmcnt(0)')
    rd(0); rd(1, 32)
    a('v_readfirstlane_b32 s70, v19')
    a('v_readfirstlane_b32 s74, v18')
    a('v_readfirstlane_b32 s71, v16')
    a('v_readfirstlane_b32 s91, v17')
    a('s_cmp_lg_u32 s70, -1')
    a('s_cbranch_scc1 B_capok')
    a('s_mov_b32 s87, 0')
    a('s_setprio 0')
    a('s_waitcnt lgkmcnt(0)')
    a('s_barrier')
    a('s_branch B_batch')
    a.lab('B_capok')
    a('s_or_b32 s90, s90, s91')
    if FORCE_PLAIN: a('s_mov_b32 s90, 1')
    a('s_add_u32 s74, s74, 7')
    a('s_lshr_b32 s74, s74, 3')
    a('s_and_b32 s72, s70, 0xff')
    a('s_add_u32 s72, s72, s74')
    a('s_bfe_u32 s73, s70, 0x80008')
    a('s_add_u32 s73, s73, s74')
    a('s_bfe_u32 s82, s70, 0x80010')
    a('s_add_u32 s82, s82, s74')
    a('s_lshr_b32 s75, s70, 24')
    a('s_add_u32 s75, s75, s74')
    a('s_cmp_ge_u32 s76, s75')
    a('s_cbranch_scc1 B_loop_end')
    a('s_cmp_ge_u32 s76, s74')
    a('s_cbranch_scc1 B_pre4')
    a('s_waitcnt lgkmcnt(0)')
    fetch(0)
    ent_any(77)
    a('s_waitcnt lgkmcnt(0)')
    a.lab('B_loop8')
    a('s_waitcnt lgkmcnt(8)')
    a(f'v_mov_b32 v{AGC}, v{AGN}')
    a(f'v_readfirstlane_b32 s78, v{IDX}')
    for k in range(4): zstep(0, k)
    dbgz('8')
    gathers(1)
    a('s_add_u32 s78, s78, 32')
    rd(0)
    a('s_cmp_lg_u32 s90, 0')
    a('s_cbranch_scc1 B_p8a')
    compute('8a')
    a.lab('B_p8ax')
    for k in range(4): zstep(1, k)
    a('s_cmp_ge_u32 s77, s75')
    a('s_cbranch_scc1 B_nof8')
    a('s_waitcnt lgkmcnt(0)')
    fetch(0)
    a('s_cmp_ge_u32 s77, s74')
    a('s_cbranch_scc1 B_tr8')
    rd(1, 32)
    ent_any(78)
    a('s_branch B_tr8x')
    a.lab('B_tr8')
    ent4(78)
    a('s_waitcnt lgkmcnt(0)')
    rd(1)
    a.lab('B_tr8x')
    grab()
    a.lab('B_nof8')
    a('s_cmp_lg_u32 s90, 0')
    a('s_cbranch_scc1 B_p8b')
    compute('8b')
    a.lab('B_p8bx')
    prio(2)
    a('s_mov_b32 s76, s77')
    a('s_mov_b32 s77, s78')
    a('s_cmp_lt_u32 s76, s74')
    a('s_cbranch_scc1 B_loop8')
    a('s_cmp_lt_u32 s76, s75')
    a('s_cbranch_scc1 B_loop0')
    a('s_branch B_loop_end')
    a.lab('B_p8a')
    a('s_mov_b32 s69, 2')
    a('s_branch B_cp')
    a.lab('B_p8b')
    a('s_mov_b32 s69, 3')
    a('s_branch B_cp')
    a.lab('B_pre4')
    a('s_waitcnt lgkmcnt(0)')
    ent4(76)
    a('s_waitcnt lgkmcnt(0)')
    rd(0)
    ent4(77)
    a('s_waitcnt lgkmcnt(0)')
    fetch(0)
    rd(1)
    a('s_waitcnt lgkmcnt(0)')
    for st in range(2):
        a.lab(f'B_loop{st}')
        a('s_waitcnt lgkmcnt(8)')
        a(f'v_mov_b32 v{AGC}, v{AGN}')
        a(f'v_readfirstlane_b32 s78, v{IDX}')
        a(f's_mov_b32 s69, {st}')
        zstep(st, 0)
        a('s_add_u32 s78, s78, 32')
        ent4(78)
        a('s_cmp_ge_u32 s76, s82')
        a(f's_cbranch_scc1 B_zd_{st}')
        a.lab(f'B_z1_{st}')
        zstep(st, 1)
        a('s_cmp_ge_u32 s76, s73')
        a(f's_cbranch_scc1 B_zd_{st}')
        a.lab(f'B_z2_{st}')
        zstep(st, 2)
        a('s_cmp_ge_u32 s76, s72')
        a(f's_cbranch_scc1 B_zd_{st}')
        a.lab(f'B_z3_{st}')
        zstep(st, 3)
        a.lab(f'B_zd_{st}')
        dbgz(st)
        a('s_cmp_ge_u32 s77, s75')
        a(f's_cbranch_scc1 B_disp')
        fetch(1-st)
        a('s_waitcnt lgkmcnt(2)')
        rd(st)
        grab()
        if st == 0: a('s_branch B_disp')
    a.lab('B_disp')
    a('s_cmp_lg_u32 s90, 0')
    a('s_cbranch_scc1 B_cp')
    a('s_cmp_ge_u32 s76, s82')
    a('s_cbranch_scc1 B_c1')
    a('s_cmp_ge_u32 s76, s73')
    a('s_cbranch_scc1 B_c2')
    a('s_cmp_ge_u32 s76, s72')
    a('s_cbranch_scc1 B_c3')
    compute('4')
    a.lab('B_next')
    prio(1)
    a('s_mov_b32 s76, s77')
    a('s_mov_b32 s77, s78')
    a('s_cmp_ge_u32 s76, s75')
    a('s_cbranch_scc1 B_loop_end')
    a('s_cmp_eq_u32 s69, 0')
    a('s_cbranch_scc1 B_loop1')
    a('s_branch B_loop0')
    for kd_ in ('3', '2', '1'):
        a.lab(f'B_c{kd_}')
        compute(kd_)
        a('s_branch B_next')
    a.lab('B_cp')
    plain()
    a('s_cmp_lt_u32 s69, 2')
    a('s_cbranch_scc1 B_next')
    a('s_cmp_eq_u32 s69, 2')
    a('s_cbranch_scc1 B_p8ax')
    a('s_branch B_p8bx')
    a.lab('B_loop_end')
    stamp(a, 4)
    a('s_waitcnt vmcnt(0) lgkmcnt(0)')
    a('v_lshlrev_b32 v11, 4, v1')
    a('v_and_b32 v8, 31, v1')
    a('v_add_u32 v8, s38, v8')
    a('v_lshrrev_b32 v9, 5, v1')
    a('s_cmp_ge_u32 s3, 8')
    a('s_cbranch_scc1 B_join')
    WX = [100, 104, 108, 4]
    a('s_add_u32 s39, s41, 8192')
    for ks in range(4):
        a(f'buffer_load_dwordx4 {q4(WX[ks])}, v11, s[20:23], s39 offen offset:{1024*ks}')
    a(f's_add_u32 s39, s41, {L_WU}')
    a('v_add_u32 v98, s39, v11')
    a('v_and_b32 v13, 7, v1')
    a('v_xor_b32 v13, v13, v9')
    a('v_lshlrev_b32 v14, 7, v8')
    a(f'v_add_u32 v14, {L_X}, v14')
    for ks in range(4):
        a(f'v_xor_b32 v15, {2*ks}, v13')
        a(f'v_lshl_add_u32 v{92+ks}, v15, 4, v14')
        a(f'ds_read_b128 {q4(16+4*ks)}, v{92+ks}')
    a('s_waitcnt vmcnt(0) lgkmcnt(0)')
    for ks in range(4):
        c = '0' if ks == 0 else 'v[112:127]'
        a(f'v_mfma_f32_32x32x16_bf16 v[112:127], {q4(WX[ks])}, {q4(16+4*ks)}, {c}')
    a.lab('B_join')
    a('v_lshrrev_b32 v12, 3, v0')
    a(f's_movk_i32 s51, {2*RS}')
    a('v_mul_u32_u24 v96, s51, v12')
    a('v_add_u32 v96, v96, v2')
    a(f'v_add_u32 v96, {L_AGG}, v96')
    a('v_and_b32 v97, 7, v12')
    a('v_lshlrev_b32 v97, 4, v97')
    a('v_xor_b32 v97, v97, v2')
    a('v_lshl_add_u32 v97, v12, 7, v97')
    a('s_setprio 0')
    a('s_waitcnt lgkmcnt(0)')
    a('s_barrier')
    stamp(a, 5)
    a('s_cmp_eq_u32 s87, -1')
    a('s_cbranch_scc1 B_nb')
    a('s_add_u32 s87, s87, 1')
    a('s_cmp_lt_u32 s87, 128')
    a('s_cbranch_scc1 B_again')
    a('s_mov_b32 s87, -1')
    a.lab('B_nb')
    a('s_add_u32 s50, s50, 32')
    a('s_cmp_eq_u32 s71, 0')
    a('s_cbranch_scc1 B_fin')
    a.lab('B_again')
    a('s_waitcnt vmcnt(0)')
    a('v_lshrrev_b32 v4, 3, v0')
    a('v_lshlrev_b32 v12, 10, v4')
    a('buffer_load_dword v6, v12, s[4:7], s32 offen')
    a('buffer_load_dword v7, v12, s[4:7], s33 offen')
    a('s_branch B_batch')
    a.lab('B_fin')
    if DEBUG: a('v_mov_b32 v3, v65')
    a('s_cmp_ge_u32 s3, 13')
    a('s_cbranch_scc1 B_done2')
    for q in range(4):
        a(f'ds_read_b128 {q4(64+4*q)}, v96 offset:{128*q}')
    for q in range(4):
        a(f's_waitcnt lgkmcnt({3-q})')
        a(f'v_cvt_f32_f64 v{80+2*q}, {pr(64+4*q)}')
        a(f'v_cvt_f32_f64 v{81+2*q}, {pr(66+4*q)}')
    for q in range(4):
        a(f'v_pk_mul_f32 {pr(80+2*q)}, {pr(80+2*q)}, s[48:49]')
    for q in range(4):
        a(f'v_cvt_pk_bf16_f32 v{88+q}, v{80+2*q}, v{81+2*q}')
    a(f'ds_write_b128 v97, v[88:91] offset:{L_REC}')
    a('s_cmp_ge_u32 s3, 8')
    a('s_cbranch_scc1 B_b4')
    for ks in range(4):
        a(f'ds_read_b128 {q4(48+4*ks)}, v98 offset:{1024*ks}')
        a(f'v_add_u32 v{92+ks}, {L_REC-L_X}, v{92+ks}')
    a('s_waitcnt lgkmcnt(4)')
    a('s_branch B_b4x')
    a.lab('B_b4')
    a('s_waitcnt lgkmcnt(0)')
    a.lab('B_b4x')
    a('s_barrier')
    stamp(a, 11, 3)
    a('s_cmp_ge_u32 s3, 8')
    a('s_cbranch_scc1 B_b5')
    for ks in range(4):
        a(f'ds_read_b128 {q4(32+4*ks)}, v{92+ks}')
    a('s_movk_i32 s51, 272')
    a('v_mul_u32_u24 v17, s51, v8')
    a('v_lshl_add_u32 v17, v9, 6, v17')
    a('s_lshl_b32 s51, s34, 7')
    a(f's_add_u32 s51, s51, {L_AGG}')
    a('v_add_u32 v17, s51, v17')
    for ks in range(4):
        a(f's_waitcnt lgkmcnt({3-ks})')
        a(f'v_mfma_f32_32x32x16_bf16 v[112:127], {q4(48+4*ks)}, {q4(32+4*ks)}, v[112:127]')
    a('s_nop 11')
    for q in range(4):
        a(f'ds_write_b128 v17, {q4(112+4*q)} offset:{16*q}')
    a.lab('B_b5')
    a('s_movk_i32 s51, 272')
    a('v_mul_u32_u24 v18, s51, v12')
    a('v_lshl_add_u32 v18, v2, 1, v18')
    a(f'v_add_u32 v18, {L_AGG}, v18')
    a('v_lshlrev_b32 v19, 4, v0')
    a('s_lshl_b32 s51, s37, 7')
    a(f'v_cmp_gt_u32 vcc, {NB*8}, v0')
    a('s_mov_b32 s52, s47')
    a('s_mov_b32 s53, s47')
    a('s_waitcnt lgkmcnt(0)')
    a('s_barrier')
    stamp(a, 12, 3)
    a('ds_read_b128 v[32:35], v18')
    a('ds_read_b128 v[36:39], v18 offset:16')
    a('s_waitcnt lgkmcnt(0)')
    for r in range(0, 8, 2): a(f'v_pk_mul_f32 {pr(64+r)}, {pr(32+r)}, s[52:53]')
    for r in range(8): a(f'v_exp_f32 v{64+r}, v{64+r}')
    for r in range(0, 8, 2): a(f'v_pk_add_f32 {pr(64+r)}, {pr(64+r)}, s[44:45]')
    for r in range(8): a(f'v_rcp_f32 v{64+r}, v{64+r}')
    for r in range(0, 8, 2): a(f'v_pk_mul_f32 {pr(64+r)}, {pr(64+r)}, {pr(32+r)}')
    for r in range(0, 8, 2): a(f'v_cvt_pk_bf16_f32 v{40+r//2}, v{64+r}, v{65+r}')
    stamp(a, 13, 3)
    a('s_and_b64 exec, exec, vcc')
    a(f'buffer_store_dwordx4 v[40:43], v19, s[24:27], s51 offen {ST_O}')
    a.lab('B_done2')
    stamp_out(a, 1, 88, 3)
    a.lab('B_done')
    a('s_endpgm')

def kd(a, name, vgpr, sgpr):
    a.raw('.p2align 6')
    a.raw(f'.amdhsa_kernel {name}')
    a.raw(f'  .amdhsa_next_free_vgpr {vgpr}')
    a.raw(f'  .amdhsa_next_free_sgpr {sgpr}')
    a.raw(f'  .amdhsa_accum_offset {(vgpr+3)//4*4}')
    a.raw('  .amdhsa_group_segment_fixed_size 0')
    a.raw('  .amdhsa_kernarg_size 72')
    a.raw('  .amdhsa_user_sgpr_count 2')
    a.raw('  .amdhsa_user_sgpr_kernarg_segment_ptr 1')
    a.raw('  .amdhsa_system_sgpr_workgroup_id_x 1')
    a.raw('.end_amdhsa_kernel')

def main():
    ref = open('gather_scatter__mpnn_edge_mlp__graph.s.ref').read().splitlines()
    hdr = [l for l in ref if l.startswith(';') and '@launch' not in l and 'Override' not in l and 'grid=ceil' not in l]
    a = A()
    for l in hdr: a.raw(l)
    a.raw(f'; @launch kernel=mpnn_bin_kernel grid=({A_GRID},1,1) block=({A_BLOCK},1,1) lds={A_LDS}')
    a.raw(f'; @launch kernel=mpnn_main_kernel grid=({NBK},1,1) block=(1024,1,1) lds={B_LDS}')
    a.raw('.amdgcn_target "amdgcn-amd-amdhsa--gfx950"')
    a.raw('.text')
    kernel_a(a)
    kernel_b(a)
    a.raw('.section .rodata,"a"')
    kd(a, 'mpnn_bin_kernel', 128, 100)
    kd(a, 'mpnn_main_kernel', 128, 100)
    out = sys.argv[1] if len(sys.argv) > 1 else 'gather_scatter__mpnn_edge_mlp__graph.s'
    open(out, 'w').write('\n'.join(a.l) + '\n')

main()
```

```python
import sys, struct, os
DEBUG = int(os.environ.get('DEBUG', '0'))
PRIO = int(os.environ.get('PRIO', '1'))
XMAP = int(os.environ.get('XMAP', '1'))
PREF = int(os.environ.get('PREF', '0'))
CPF = int(os.environ.get('CPF', '0'))
TLBW = int(os.environ.get('TLBW', '0'))
ST_O = os.environ.get('ST_O', 'sc0 sc1')
LATESRC = int(os.environ.get('LATESRC', '1'))
TOUCH = int(os.environ.get('TOUCH', '4'))
PT = [int(x) for x in os.environ.get('PT', '2,6,7').split(',')]
GFIRST = int(os.environ.get('GFIRST', '1'))
FORCE_PLAIN = int(os.environ.get('FORCE_PLAIN', '0'))

N = 25000; E = 800000
NB = 98
NBK = 256
CH = 3200
NCH = 250
WS_REC = 0
WS_TAB = 0x700000
WS_PF  = 0x780000
WS_PT  = 0x800000
WS_WF  = 0x7C0000
REC_BYTES = NCH*CH*8
TAB_BYTES = NCH*NBK*4
PF_BYTES  = 1000*4
PT_BYTES  = (N+1)*128
WF_BYTES  = 3*8192 + 512
WF_W3 = 3*8192
LOG2E = 1.4426950408889634
LN2 = 0.6931471805599453
LIM_P = 3.0; LIM_Q = 3.0; LIM_E_BF16 = 0x4040; LIM_W = 3.0
def f32(x): return struct.unpack('<I', struct.pack('<f', x))[0]

class A:
    def __init__(s): s.l = []
    def __call__(s, t): s.l.append('    ' + t)
    def lab(s, t): s.l.append(t + ':')
    def raw(s, t): s.l.append(t)

def srd(a, d, base, off, nbytes):
    if off:
        a(f's_add_u32 s{d}, s{base}, {hex(off)}')
        a(f's_addc_u32 s{d+1}, s{base+1}, 0')
    else:
        a(f's_mov_b32 s{d}, s{base}')
        a(f's_mov_b32 s{d+1}, s{base+1}')
    a(f's_mov_b32 s{d+2}, {hex(nbytes)}')
    a(f's_mov_b32 s{d+3}, 0x00020000')

PROF_OFF = 0x4000000
def stamp(a, i, vr=65, sr=92):
    if not DEBUG: return
    a(f's_memrealtime s[{sr}:{sr+1}]')
    a('s_waitcnt lgkmcnt(0)')
    a(f'v_writelane_b32 v{vr}, s{sr}, {i}')
def stampc(a, i, vr=65, sr=92):
    if not DEBUG: return
    a(f's_memtime s[{sr}:{sr+1}]')
    a('s_waitcnt lgkmcnt(0)')
    a(f'v_writelane_b32 v{vr}, s{sr}, {i}')
def stamp_out(a, kern, wsreg, vr=65, sr=92, tmp=6):
    if not DEBUG: return
    a('s_waitcnt vmcnt(0)')
    stamp(a, 15, vr, sr)
    a('s_mov_b64 exec, -1')
    srd(a, 96, wsreg, PROF_OFF + kern*0x400000, 0x400000)
    a(f's_lshl_b32 s{sr}, s2, 4')
    a(f's_add_u32 s{sr}, s{sr}, s3')
    a(f's_lshl_b32 s{sr}, s{sr}, 8')
    a(f'v_lshlrev_b32 v{tmp}, 2, v1')
    a(f'buffer_store_dword v{vr}, v{tmp}, s[96:99], s{sr} offen')

def wave_scan(a, v):
    for sh in (1, 2, 4, 8):
        a('s_nop 1')
        a(f'v_add_u32_dpp v{v}, v{v}, v{v} row_shr:{sh} row_mask:0xf bank_mask:0xf bound_ctrl:0')
    a('s_nop 1')
    a(f'v_add_u32_dpp v{v}, v{v}, v{v} row_bcast:15 row_mask:0xa bank_mask:0xf')
    a('s_nop 1')
    a(f'v_add_u32_dpp v{v}, v{v}, v{v} row_bcast:31 row_mask:0xc bank_mask:0xf')

def pr(r): return f'v[{r}:{r+1}]'
def q4(r): return f'v[{r}:{r+3}]'

A_GEMM0 = NCH
A_PREP0 = NCH + 250
A_GRID = A_PREP0 + 4
A_BLOCK = 448
A_XT = 0
A_W1 = 4*4096
A_LDS = 2112 + CH*8
A_STAGE = 2048 + 64
A_EFLAG = 2048
ST_A = os.environ.get('ST_A', 'sc0 sc1')

def kernel_a(a):
    a.raw('.globl mpnn_bin_kernel')
    a.raw('.p2align 8')
    a.raw('.type mpnn_bin_kernel,@function')
    a.lab('mpnn_bin_kernel')
    if DEBUG:
        a('s_memrealtime s[94:95]')
        a('s_getreg_b32 s62, hwreg(HW_REG_HW_ID)')
        a('s_getreg_b32 s63, hwreg(HW_REG_XCC_ID)')
    a('s_load_dwordx16 s[4:19], s[0:1], 0')
    a('s_load_dwordx2 s[20:21], s[0:1], 64')
    if CPF:
        a('s_getpc_b64 s[60:61]')
        a.lab('A_pc')
        a('v_lshlrev_b32 v100, 4, v0')
        a('v_add_u32 v101, 7168, v100')
        a('v_min_u32 v101, code_end-A_pc-16, v101')
        a('v_min_u32 v100, code_end-A_pc-16, v100')
        a('global_load_dwordx4 v[104:107], v100, s[60:61]')
        a('global_load_dwordx4 v[108:111], v101, s[60:61]')
    a(f's_cmp_ge_u32 s2, {A_GRID}')
    a('s_cbranch_scc1 A_done')
    a('v_lshrrev_b32 v1, 6, v0')
    a('v_lshlrev_b32 v3, 4, v0')
    a('v_readfirstlane_b32 s3, v1')
    a('v_and_b32 v1, 63, v0')
    a(f's_cmp_ge_u32 s2, {A_PREP0}')
    a('s_cbranch_scc1 A_prep')
    if GFIRST:
        a(f's_add_u32 s22, s2, {NCH}')
        a(f's_sub_u32 s23, s2, {NCH}')
        a(f's_cmp_lt_u32 s2, {NCH}')
        a('s_cselect_b32 s2, s22, s23')
    a(f's_cmp_ge_u32 s2, {A_GEMM0}')
    a('s_cbranch_scc1 A_gemm')
    a('v_cmp_gt_u32 vcc, 400, v0')
    a('s_and_b64 exec, exec, vcc')
    a('v_lshlrev_b32 v2, 3, v0')
    a(f's_mul_i32 s44, s2, {CH*4}')
    a(f's_mul_i32 s45, s2, {CH*2}')
    a(f's_add_u32 s50, s44, {CH*2}')
    a(f's_add_u32 s51, s45, {CH}')
    a('s_waitcnt lgkmcnt(0)')
    srd(a, 24, 10, 0, E*4)
    a('buffer_load_dwordx4 v[8:11], v3, s[24:27], s44 offen')
    a('buffer_load_dwordx4 v[12:15], v3, s[24:27], s50 offen')
    srd(a, 28, 8, 0, E*4)
    srd(a, 32, 6, 0, E*2)
    def srcloads():
        a('buffer_load_dwordx4 v[16:19], v3, s[28:31], s44 offen')
        a('buffer_load_dwordx4 v[20:23], v3, s[28:31], s50 offen')
        a('buffer_load_dwordx2 v[24:25], v2, s[32:35], s45 offen')
        a('buffer_load_dwordx2 v[26:27], v2, s[32:35], s51 offen')
    if not LATESRC: srcloads()
    stamp(a, 0, 70)
    if DEBUG:
        a('v_writelane_b32 v70, s94, 8')
        a('v_writelane_b32 v70, s62, 9')
        a('v_writelane_b32 v70, s63, 10')
    a('v_lshlrev_b32 v5, 2, v0')
    a('v_mov_b32 v4, 0')
    a('v_mov_b32 v6, 2048')
    a('v_cmp_gt_u32 vcc, 256, v0')
    a('s_nop 1')
    a('v_cndmask_b32 v5, v6, v5, vcc')
    a('ds_write_b32 v5, v4')
    if TLBW:
        srd(a, 36, 20, 0, 0xC00000)
        a('v_lshlrev_b32 v7, 20, v1')
        a('buffer_load_dword v71, v7, s[36:39], 0 offen')
    srd(a, 36, 20, WS_REC, REC_BYTES)
    srd(a, 40, 20, WS_TAB, TAB_BYTES)
    a('s_mov_b32 s46, 42800')
    a('s_mov_b32 s47, -196')
    a('s_mov_b32 s48, 0xffff0000')
    a('s_mov_b32 s52, 0x7fff7fff')
    a('v_mov_b32 v4, 1')
    a('s_waitcnt lgkmcnt(0)')
    a('s_barrier')
    for hf in range(2):
        if LATESRC:
            a(f's_waitcnt vmcnt({1 if hf == 0 else 4})')
            if hf == 0: srcloads()
        else:
            a(f's_waitcnt vmcnt({5-hf+TLBW})')
        if hf == 0: stamp(a, 1, 70)
        for j in range(4*hf, 4*hf+4):
            a(f'v_mul_u32_u24 v{28+j}, s46, v{8+j}')
            a(f'v_lshrrev_b32 v{28+j}, 22, v{28+j}')
            a(f'v_lshlrev_b32 v{28+j}, 2, v{28+j}')
            a(f'ds_add_rtn_u32 v{56+j}, v{28+j}, v4')
    for j in range(8):
        a(f'v_lshlrev_b32 v{8+j}, 3, v{8+j}')
        a(f'v_mad_i32_i24 v{41+2*j}, v{28+j}, s47, v{8+j}')
    a('s_mov_b64 s[22:23], exec')
    a('s_waitcnt lgkmcnt(0)')
    a('s_barrier')
    stamp(a, 2, 70)
    a('s_mov_b64 exec, -1')
    a('v_lshlrev_b32 v5, 4, v1')
    a('ds_read_b128 v[8:11], v5')
    a('s_waitcnt lgkmcnt(0)')
    a('v_add_u32 v13, v8, v9')
    a('v_add_u32 v14, v13, v10')
    a('v_add_u32 v15, v14, v11')
    a('v_mov_b32 v72, v15')
    wave_scan(a, 72)
    a('v_sub_u32 v12, v72, v15')
    a('v_add_u32 v15, v12, v14')
    a('v_add_u32 v14, v12, v13')
    a('v_add_u32 v13, v12, v8')
    for k in range(4):
        a(f'v_lshlrev_b32 v{72+k}, 3, v{12+k}')
    a('ds_write_b128 v5, v[72:75] offset:1024')
    for k in range(4):
        a(f'v_lshl_or_b32 v{64+k}, v{8+k}, 16, v{12+k}')
    a('s_mov_b64 exec, s[22:23]')
    a('s_waitcnt lgkmcnt(0)')
    for j in range(8):
        a(f'ds_read_b32 v{8+j}, v{28+j} offset:1024')
    a('s_waitcnt vmcnt(0)')
    for j in range(8):
        if j % 2 == 0:
            a(f'v_lshlrev_b32 v{40+2*j}, 16, v{24+j//2}')
        else:
            a(f'v_and_b32 v{40+2*j}, s48, v{24+j//2}')
        a(f'v_lshl_or_b32 v{41+2*j}, v{41+2*j}, 16, v{16+j}')
    for j in range(4):
        a(f'v_and_b32 v{24+j}, s52, v{24+j}')
    a('v_pk_max_u16 v24, v24, v25')
    a('v_pk_max_u16 v26, v26, v27')
    a('v_pk_max_u16 v24, v24, v26')
    a('v_lshrrev_b32 v25, 16, v24')
    a('v_and_b32 v24, 0xffff, v24')
    a('v_max_u32 v24, v24, v25')
    a(f'v_cmp_lt_u32 vcc, {hex(LIM_E_BF16)}, v24')
    a('s_and_saveexec_b64 s[54:55], vcc')
    a('s_cbranch_execz A_eok')
    a('v_mov_b32 v25, 0x80000000')
    a('ds_write_b32 v6, v25')
    a.lab('A_eok')
    a('s_mov_b64 exec, s[54:55]')
    a('s_waitcnt lgkmcnt(0)')
    for j in range(8):
        a(f'v_lshl_add_u32 v{8+j}, v{56+j}, 3, v{8+j}')
    stamp(a, 3, 70)
    for j in range(8):
        a(f'ds_write_b64 v{8+j}, {pr(40+2*j)} offset:{A_STAGE}')
    a('s_waitcnt lgkmcnt(0)')
    a('s_barrier')
    stamp(a, 4, 70)
    a('s_cmp_lg_u32 s3, 6')
    a('s_cbranch_scc1 A_notab')
    a('s_mov_b64 exec, -1')
    a('v_mov_b32 v6, 2048')
    a('ds_read_b32 v7, v6')
    a('s_lshl_b32 s49, s2, 10')
    a('s_waitcnt lgkmcnt(0)')
    for k in range(4):
        a(f'v_or_b32 v{64+k}, v{64+k}, v7')
    a(f'buffer_store_dwordx4 v[64:67], v5, s[40:43], s49 offen {ST_A}')
    a('s_mov_b64 exec, s[22:23]')
    a.lab('A_notab')
    for j in range(4):
        a(f'ds_read_b128 {q4(8+4*j)}, v3 offset:{A_STAGE+6400*j}')
    a(f's_mul_i32 s49, s2, {CH*8}')
    for j in range(4):
        a(f's_waitcnt lgkmcnt({3-j})')
        a(f'buffer_store_dwordx4 {q4(8+4*j)}, v3, s[36:39], s49 offen {ST_A}')
        if j < 3:
            a(f's_add_u32 s49, s49, 6400')
    stamp(a, 5, 70)
    stamp_out(a, 0, 20, 70)
    a('s_endpgm')

    a.lab('A_gemm')
    a(f's_sub_u32 s22, s2, {A_GEMM0}')
    a('s_mul_i32 s48, s22, 12800')
    a('s_add_u32 s49, s48, 12800')
    a('s_lshl_b32 s22, s22, 2')
    a('s_add_u32 s22, s22, s3')
    a('v_and_b32 v2, 31, v1')
    a('v_lshrrev_b32 v3, 5, v1')
    a('v_lshlrev_b32 v4, 2, v2')
    a('v_lshl_add_u32 v7, v3, 9, v4')
    a('v_lshl_add_u32 v4, v3, 10, v4')
    a(f'v_add_u32 v4, {A_W1}, v4')
    a('v_lshlrev_b32 v5, 4, v0')
    a('s_lshl_b32 s23, s3, 12')
    a('s_add_u32 s23, s23, s48')
    a('v_lshlrev_b32 v6, 4, v1')
    a('s_lshl_b32 s42, s3, 12')
    a('v_add_u32 v7, s42, v7')
    a('v_lshrrev_b32 v8, 3, v1')
    a('v_and_b32 v9, 7, v1')
    a('v_xor_b32 v10, v9, v8')
    a('v_lshlrev_b32 v10, 4, v10')
    a('v_lshl_add_u32 v10, v8, 7, v10')
    a('v_add_u32 v10, s42, v10')
    a('v_xor_b32 v9, v9, v3')
    a('v_lshlrev_b32 v8, 7, v2')
    a('v_add_u32 v8, s42, v8')
    for ks in range(4):
        a(f'v_xor_b32 v{11+ks}, {2*ks}, v9')
        a(f'v_lshl_add_u32 v{11+ks}, v{11+ks}, 4, v8')
    a('s_waitcnt lgkmcnt(0)')
    srd(a, 24, 4, 0, N*128)
    a('s_mov_b32 s26, s49')
    srd(a, 28, 12, 0, 64*128)
    a('s_movk_i32 s43, 7168')
    a('buffer_load_dwordx4 v[16:19], v5, s[28:31], 0 offen')
    a('buffer_load_dwordx4 v[20:23], v5, s[28:31], s43 offen')
    for j in range(4):
        a(f'buffer_load_dwordx4 {q4(48+4*j)}, v6, s[24:27], s23 offen offset:{1024*j}')
    stamp(a, 0, 15)
    if DEBUG:
        a('v_writelane_b32 v15, s94, 8')
        a('v_writelane_b32 v15, s62, 9')
        a('v_writelane_b32 v15, s63, 10')
    srd(a, 32, 20, WS_PT, N*128)
    a('s_mov_b32 s34, s49')
    srd(a, 44, 20, WS_PF, PF_BYTES)
    a('s_mov_b32 s36, 0x05040100')
    a('s_mov_b32 s37, 0x07060302')
    a(f's_mov_b32 s38, {hex(f32(-LOG2E))}')
    a('s_mov_b32 s39, 0x7fffffff')
    a('s_mov_b32 s40, 0x7fff0000')
    a(f's_mov_b32 s41, {hex(f32(LIM_P))}')
    a('s_waitcnt vmcnt(4)')
    a(f'ds_write_b128 v5, v[16:19] offset:{A_W1}')
    a('s_cmp_lg_u32 s3, 0')
    a('s_cbranch_scc1 A_w1done')
    a(f'ds_write_b128 v5, v[20:23] offset:{A_W1+7168}')
    a.lab('A_w1done')
    a('s_waitcnt lgkmcnt(0)')
    a('s_barrier')
    a('s_cmp_ge_u32 s3, 4')
    a('s_cbranch_scc1 A_done')
    for ks in range(4):
        if ks: a('v_add_u32 v4, 2048, v4')
        for jj in range(4):
            a(f'ds_read2_b32 {pr(16+8*ks+2*jj)}, v4 offset0:{64*jj} offset1:{64*jj+32}')
    a('s_waitcnt vmcnt(0)')
    for j in range(4):
        a(f'ds_write_b128 v10, {q4(48+4*j)} offset:{1024*j}')
    a('s_waitcnt lgkmcnt(0)')
    for ks in range(4):
        a(f'ds_read_b128 {q4(48+4*ks)}, v{11+ks}')
    stamp(a, 1, 15)
    for ks in range(4):
        for jj in range(4):
            r0 = 16+8*ks+2*jj
            a(f'v_perm_b32 v{64+4*ks+jj}, v{r0+1}, v{r0}, s36')
            a(f'v_perm_b32 v{80+4*ks+jj}, v{r0+1}, v{r0}, s37')
    a('s_waitcnt lgkmcnt(0)')
    for ks in range(4):
        c0 = '0' if ks == 0 else 'v[96:111]'
        c1 = '0' if ks == 0 else 'v[112:127]'
        a(f'v_mfma_f32_32x32x16_bf16 v[96:111], {q4(48+4*ks)}, {q4(64+4*ks)}, {c0}')
        a(f'v_mfma_f32_32x32x16_bf16 v[112:127], {q4(48+4*ks)}, {q4(80+4*ks)}, {c1}')
    a('s_nop 15')
    stamp(a, 2, 15)
    for r in range(16):
        a(f'v_mul_f32 v{96+r}, s38, v{96+r}')
    for r in range(16):
        a(f'v_mul_f32 v{112+r}, s38, v{112+r}')
    for r in range(0, 16, 2):
        a(f'v_cvt_pk_bf16_f32 v{16+r}, v{96+r}, v{97+r}')
    for r in range(0, 16, 2):
        a(f'v_lshrrev_b32 v{17+r}, 16, v{16+r}')
        a(f'v_and_b32 v{16+r}, 0xffff, v{16+r}')
    for r in range(16):
        a(f'v_and_b32 v{32+r}, s39, v{112+r}')
    for r in range(16):
        a(f'v_add_u32 v{32+r}, 0x8000, v{32+r}')
    for r in range(16):
        a(f'v_sub_u32 v{32+r}, v{32+r}, v{16+r} clamp')
    for r in range(16):
        a(f'v_and_or_b32 v{32+r}, v{32+r}, s40, v{16+r}')
    for r in range(16):
        a(f'v_bfi_b32 v{32+r}, s39, v{32+r}, v{112+r}')
        a(f'ds_write_b32 v7, v{32+r} offset:{((r&3)+8*(r>>2))*128}')
    a('v_add_u32 v8, s42, v6')
    a('s_waitcnt lgkmcnt(0)')
    for j in range(4):
        a(f'ds_read_b128 {q4(48+4*j)}, v8 offset:{1024*j}')
    a('v_max_f32 v64, |v96|, |v97|')
    for r in range(2, 32, 2):
        a(f'v_max3_f32 v64, v64, |v{96+r}|, |v{97+r}|')
    a('v_cmp_lt_f32 vcc, s41, v64')
    for j in range(4):
        a(f's_waitcnt lgkmcnt({3-j})')
        a(f'buffer_store_dwordx4 {q4(48+4*j)}, v6, s[32:35], s23 offen offset:{1024*j} {ST_A}')
    a('s_lshl_b32 s43, s22, 2')
    a('v_mov_b32 v66, 0')
    a('s_cmp_lg_u64 vcc, 0')
    a('s_cselect_b32 s42, 1, 0')
    a('v_mov_b32 v65, s42')
    a('s_mov_b64 exec, 1')
    a(f'buffer_store_dword v65, v66, s[44:47], s43 offen {ST_A}')
    stamp(a, 5, 15)
    stamp_out(a, 0, 20, 15)
    a('s_endpgm')

    a.lab('A_prep')
    a(f's_sub_u32 s50, s2, {A_PREP0}')
    a('s_mul_i32 s50, s50, 7')
    a('s_add_u32 s50, s50, s3')
    a('s_cmp_gt_u32 s50, 24')
    a('s_cbranch_scc1 A_done')
    a('s_lshr_b32 s22, s50, 3')
    a('s_bfe_u32 s23, s50, 0x10002')
    a('s_and_b32 s24, s50, 3')
    a('v_and_b32 v2, 31, v1')
    a('v_lshrrev_b32 v3, 5, v1')
    a('v_bfe_u32 v4, v2, 2, 1')
    a('v_and_b32 v5, 3, v2')
    a('v_lshrrev_b32 v6, 3, v2')
    a('v_lshl_add_u32 v5, v6, 2, v5')
    a('s_waitcnt lgkmcnt(0)')
    srd(a, 32, 20, WS_WF, WF_BYTES)
    a('s_cmp_eq_u32 s50, 24')
    a('s_cbranch_scc1 A_prep_w3')
    a('s_cmp_lg_u32 s22, 0')
    a('s_cbranch_scc1 A_prep_u')
    srd(a, 28, 12, 0, 129*128)
    a('v_lshrrev_b32 v6, 3, v5')
    a('v_lshl_add_u32 v6, v4, 2, v6')
    a('s_lshl_b32 s25, s23, 1')
    a('v_add_u32 v6, s25, v6')
    a('v_and_b32 v7, 7, v5')
    a('v_lshlrev_b32 v8, 1, v7')
    a('v_add_u32 v9, 1, v8')
    a('v_subrev_u32 v8, 8, v8')
    a('v_cmp_gt_u32 vcc, 4, v7')
    a('s_nop 1')
    a('v_cndmask_b32 v8, v8, v9, vcc')
    a('v_lshl_add_u32 v8, v6, 3, v8')
    a('v_lshlrev_b32 v8, 1, v8')
    a('v_lshl_add_u32 v8, v3, 10, v8')
    a('s_lshl_b32 s26, s24, 11')
    a('s_add_u32 s26, s26, 8192')
    for j in range(8):
        a(f'buffer_load_ushort v{32+j}, v8, s[28:31], s26 offen offset:{128*j}')
    a('s_branch A_prep_st')
    a.lab('A_prep_u')
    srd(a, 28, 14, 0, 128*128)
    a('v_lshl_add_u32 v8, v4, 4, v5')
    a('s_lshl_b32 s25, s23, 5')
    a('v_add_u32 v8, s25, v8')
    a('v_lshlrev_b32 v8, 1, v8')
    a('s_cmp_lg_u32 s22, 1')
    a('s_cbranch_scc1 A_prep_agg')
    a('v_lshl_add_u32 v8, v3, 10, v8')
    a('s_lshl_b32 s26, s24, 11')
    for j in range(8):
        a(f'buffer_load_ushort v{32+j}, v8, s[28:31], s26 offen offset:{128*j}')
    a('s_branch A_prep_st')
    a.lab('A_prep_w3')
    srd(a, 44, 20, WS_PT + N*128, 128)
    a('v_mov_b32 v20, 0x71497149')
    a('v_mov_b32 v21, v20')
    a('v_mov_b32 v22, v20')
    a('v_mov_b32 v23, v20')
    a('v_lshlrev_b32 v24, 4, v1')
    a('buffer_store_dwordx4 v[20:23], v24, s[44:47], 0 offen')
    srd(a, 36, 12, 0, 129*128)
    a('v_and_b32 v10, 7, v1')
    a('v_lshlrev_b32 v11, 4, v10')
    a('s_movk_i32 s27, 0x4000')
    a('buffer_load_dwordx4 v[44:47], v11, s[36:39], s27 offen')
    a(f's_mov_b32 s40, {hex(f32(-LOG2E))}')
    a('s_waitcnt vmcnt(0)')
    for i in range(4):
        a(f'v_and_b32 v{48+i}, 0xffff0000, v{44+i}')
        a(f'v_lshlrev_b32 v{52+i}, 16, v{44+i}')
    for i in range(8):
        a(f'v_mul_f32 v{48+i}, s40, v{48+i}')
    a('v_max3_f32 v44, |v48|, |v49|, |v50|')
    a('v_max3_f32 v44, v44, |v51|, |v52|')
    a('v_max3_f32 v44, v44, |v53|, |v54|')
    a('v_max_f32 v44, v44, |v55|')
    a(f'v_cmp_lt_f32 vcc, {hex(f32(LIM_W))}, v44')
    a('v_lshlrev_b32 v11, 5, v10')
    a('s_cmp_lg_u64 vcc, 0')
    a('s_cselect_b32 s41, 1, 0')
    a('v_mov_b32 v45, s41')
    a('v_mov_b32 v46, 0')
    a(f's_movk_i32 s27, {WF_W3}')
    a('buffer_store_dwordx4 v[48:51], v11, s[32:35], s27 offen')
    a('buffer_store_dwordx4 v[52:55], v11, s[32:35], s27 offen offset:16')
    a('buffer_store_dword v45, v46, s[32:35], s27 offen offset:256')
    a('s_endpgm')
    a.lab('A_prep_agg')
    a('v_lshl_add_u32 v8, v3, 11, v8')
    a('s_and_b32 s26, s24, 1')
    a('s_lshl_b32 s26, s26, 5')
    a('s_lshr_b32 s27, s24, 1')
    a('s_lshl_b32 s27, s27, 1')
    a('s_add_u32 s26, s26, s27')
    a('s_add_u32 s26, s26, 64')
    a('s_lshl_b32 s26, s26, 7')
    for j in range(8):
        i_ = 2*(j >> 1)
        ph = 2*i_+1 if i_ < 4 else 2*i_-8
        a(f'buffer_load_ushort v{32+j}, v8, s[28:31], s26 offen offset:{(8*(j & 1)+ph)*128}')
    a.lab('A_prep_st')
    a('s_lshl_b32 s25, s50, 10')
    a('v_lshlrev_b32 v9, 4, v1')
    a('s_waitcnt vmcnt(0)')
    for j in range(4):
        a(f'v_lshl_or_b32 v{16+j}, v{33+2*j}, 16, v{32+2*j}')
    a('buffer_store_dwordx4 v[16:19], v9, s[32:35], s25 offen')
    a.lab('A_done')
    a('s_endpgm')

RS = 288
L_CNT = 0
L_MAX = 1024
L_FLAG = 1028
L_F8C = 1032
L_TOT = 1036
L_WORK = 1040
L_OVF = 1044
L_L8 = 1056
L_L2 = L_L8 + 1600
L_REC = L_L2 + 832
DUMP_OFF = NB*512
L_Q = L_REC + DUMP_OFF + 64
L_AGG = L_Q + (NB+1)*RS
L_X = L_AGG + (NB+1)*RS*2
L_WU = L_X + 13*1024
L_W3 = L_WU + 8192
B_LDS = L_W3 + 256
DUMMY1 = N | (NB*8) << 16
for x in (L_L8, L_REC, L_Q, L_AGG, L_X, L_WU): assert x % 16 == 0
assert B_LDS <= 163840 and L_Q + 128 < 65536

def kernel_b(a):
    a.raw('.globl mpnn_main_kernel')
    a.raw('.p2align 8')
    a.raw('.type mpnn_main_kernel,@function')
    a.lab('mpnn_main_kernel')
    a('s_load_dwordx2 s[80:81], s[0:1], 64')
    a('s_load_dwordx16 s[64:79], s[0:1], 0')
    a(f's_cmp_ge_u32 s2, {NBK}')
    a('s_cbranch_scc1 B_done')
    a('v_lshrrev_b32 v1, 6, v0')
    a('v_lshrrev_b32 v4, 3, v0')
    a('v_readfirstlane_b32 s3, v1')
    a('v_lshlrev_b32 v12, 10, v4')
    a('s_and_b32 s85, s2, 7')
    a('s_lshl_b32 s85, s85, 5')
    a('s_lshr_b32 s86, s2, 3')
    a('s_add_u32 s85, s85, s86')
    a('s_lshl_b32 s32, s85, 2')
    a('s_add_u32 s33, s32, 0x20000')
    a('v_and_b32 v1, 63, v0')
    a('v_and_b32 v3, 7, v0')
    a('v_lshlrev_b32 v2, 4, v3')
    a('v_lshlrev_b32 v11, 4, v1')
    a(f's_mul_i32 s37, s85, {NB}')
    a('s_lshl_b32 s39, s37, 7')
    a('s_lshl_b32 s40, s3, 10')
    a('s_add_u32 s39, s39, s40')
    a('s_and_b32 s34, s3, 1')
    a('s_lshl_b32 s41, s34, 12')
    a('s_waitcnt lgkmcnt(0)')
    ws = 80
    srd(a, 4, ws, WS_TAB, TAB_BYTES)
    a('buffer_load_dword v6, v12, s[4:7], s32 offen')
    a('buffer_load_dword v7, v12, s[4:7], s33 offen')
    stamp(a, 0)
    srd(a, 8, ws, WS_REC, REC_BYTES)
    a(f's_add_u32 s28, s80, {hex(WS_WF+WF_W3+256)}')
    a('s_addc_u32 s29, s81, 0')
    a('s_load_dword s90, s[28:29], 0')
    srd(a, 12, ws, WS_PT, PT_BYTES)
    srd(a, 24, 76, 0, N*128)
    a('s_mov_b64 s[88:89], s[80:81]')
    a('s_bfe_u32 s35, s3, 0x20001')
    a('s_lshl_b32 s38, s35, 5')
    a('v_and_b32 v8, 31, v1')
    a('v_add_u32 v8, s38, v8')
    a('v_lshrrev_b32 v9, 5, v1')
    a('v_lshlrev_b32 v3, 3, v3')
    a(f'v_add_u32 v3, {L_AGG}, v3')
    a('s_movk_i32 s42, 128')
    a('s_mov_b32 s44, 1.0')
    a('s_mov_b32 s45, 1.0')
    a('s_mov_b32 s46, 0x3f80')
    a(f's_mov_b32 s47, {hex(f32(-LOG2E))}')
    a(f's_mov_b32 s48, {hex(f32(-LN2))}')
    a(f's_mov_b32 s49, {hex(f32(-LN2))}')
    a('s_mov_b32 s50, 0')
    a('s_movk_i32 s84, 72')
    a('s_mov_b32 s86, 0')
    a('s_mov_b32 s87, -1')
    srd(a, 16, 64, 0, N*128)
    srd(a, 20, ws, WS_WF, WF_BYTES)
    srd(a, 28, ws, WS_PF, PF_BYTES)
    for r in range(44, 48): a(f'v_mov_b32 v{r}, 0') if False else None
    a('s_cmp_ge_u32 s3, 13')
    a('s_cbranch_scc1 B_a13')
    a('buffer_load_dwordx4 v[32:35], v11, s[16:19], s39 offen')
    a('s_cmp_ge_u32 s3, 8')
    a('s_cbranch_scc1 B_a8')
    a(f's_add_u32 m0, s40, {L_WU}')
    a('s_nop 0')
    a('buffer_load_dwordx4 v11, s[20:23], s40 offen lds')
    a('s_branch B_batch')
    a.lab('B_a8')
    a('s_sub_u32 s51, s40, 8192')
    a('buffer_load_dwordx4 v[48:51], v11, s[28:31], s51 offen')
    a('s_branch B_batch')
    a.lab('B_a13')
    a(f's_mov_b32 m0, {L_W3}')
    a(f's_movk_i32 s51, {WF_W3}')
    a('s_mov_b64 exec, 0xffff')
    a('buffer_load_dwordx4 v11, s[20:23], s51 offen lds')
    a('buffer_load_dwordx4 v11, s[20:23], s51 offen lds')
    a('s_mov_b64 exec, -1')
    a.lab('B_batch')
    a('v_and_b32 v14, 7, v0')
    a('v_lshlrev_b32 v14, 1, v14')
    a('v_add_u32 v14, s50, v14')
    a(f's_movk_i32 s51, {CH}')
    a('v_mul_u32_u24 v15, s51, v4')
    a('v_add_u32 v15, v15, v14')
    a('v_mov_b32 v25, 0x7fffff00')
    a('v_lshrrev_b32 v45, 3, v1')
    a('v_and_b32 v46, 7, v1')
    a('v_xor_b32 v47, v46, v45')
    a('v_lshlrev_b32 v47, 4, v47')
    a('v_lshl_add_u32 v47, v45, 7, v47')
    a(f's_add_u32 s51, s40, {L_X}')
    a('v_add_u32 v47, s51, v47')
    a('s_cmp_lg_u32 s86, 0')
    a('s_cbranch_scc1 B_tw0')
    a('s_waitcnt vmcnt(2)')
    a('s_branch B_twx')
    a.lab('B_tw0')
    a('s_waitcnt vmcnt(0)')
    a.lab('B_twx')
    stamp(a, 1)
    for rd_ in range(2):
        T_ = 6+rd_
        a(f'v_bfe_u32 v{20+rd_}, v{T_}, 16, 13')
        a(f'v_and_b32 v{22+rd_}, 0xffff, v{T_}')
        a(f'v_add_u32 v{22+rd_}, v{22+rd_}, v15')
        if rd_ == 1:
            a(f'v_add_u32 v{22+rd_}, {128*CH}, v{22+rd_}')
        a(f'v_lshlrev_b32 v{22+rd_}, 3, v{22+rd_}')
        a(f'v_sub_u32 v{16+rd_}, v{20+rd_}, v14')
    for s in range(8):
        a(f'v_cmp_lt_i32 s[{52+2*s}:{53+2*s}], {((s >> 1) & 1)*16+(s & 1)}, v{16+(s >> 2)}')
    a('s_cmp_eq_u32 s87, -1')
    a('s_cbranch_scc1 B_allsl')
    a('s_lshl_b32 s51, s3, 3')
    a('s_sub_u32 s51, s87, s51')
    a('s_mov_b64 s[68:69], s[52:53]')
    for s in range(8):
        a(f's_cmp_eq_u32 s51, {s}')
        a(f's_cselect_b64 s[{52+2*s}:{53+2*s}], s[{52+2*s}:{53+2*s}], 0')
    a.lab('B_allsl')
    order = [(0, 0), (1, 0), (0, 1), (1, 1)]
    for rd_, ld in order:
        s = rd_*4+ld*2
        r = 96+(rd_*2+ld)*4
        a(f's_or_b64 vcc, s[{52+2*s}:{53+2*s}], s[{54+2*s}:{55+2*s}]')
        a(f'v_cndmask_b32 v{26+rd_*2+ld}, v25, v{22+rd_}, vcc')
        a(f'buffer_load_dwordx4 {q4(r)}, v{26+rd_*2+ld}, s[8:11], 0 offen offset:{128*ld}')
    a('v_max_i32 v16, v16, v17')
    a('v_or_b32 v17, v6, v7')
    a('v_cmp_lt_i32 s[70:71], 32, v16')
    a('v_cmp_gt_i32 s[72:73], 0, v17')
    a('v_lshlrev_b32 v12, 4, v0')
    a('s_cmp_lg_u32 s86, 0')
    a('s_cbranch_scc1 B_noaux')
    for r in range(20, 24): a(f'v_mov_b32 v{r}, 0')
    a(f'v_add_u32 v13, {L_AGG}, v12')
    for j in range(3):
        a(f'ds_write_b128 v13, v[20:23] offset:{16384*j}')
    a(f'v_cmp_gt_u32 vcc, {NB*RS*2//16-3072}, v0')
    a('s_and_saveexec_b64 s[68:69], vcc')
    a('ds_write_b128 v13, v[20:23] offset:49152')
    a('s_mov_b64 exec, s[68:69]')
    a('s_waitcnt vmcnt(4)')
    a('s_cmp_ge_u32 s3, 13')
    a('s_cbranch_scc1 B_noaux')
    a('ds_write_b128 v47, v[32:35]')
    a('s_cmp_lt_u32 s3, 8')
    a('s_cbranch_scc1 B_noaux')
    a('v_or3_b32 v48, v48, v49, v50')
    a('v_or_b32 v48, v48, v51')
    a('v_cmp_ne_u32 vcc, 0, v48')
    a('s_nop 0')
    a('s_or_b64 s[72:73], s[72:73], vcc')
    a.lab('B_noaux')
    a(f'v_mov_b32 v16, {hex(DUMP_OFF | DUMP_OFF << 16)}')
    a(f'v_cmp_gt_u32 vcc, {L_L8//16}, v0')
    a('v_mov_b32 v28, 0')
    a(f'v_mov_b32 v29, {hex(DUMMY1)}')
    a('v_cndmask_b32 v16, v16, v28, vcc')
    a('v_mov_b32 v30, 0')
    a(f'v_mov_b32 v31, {hex(DUMMY1)}')
    a('v_mov_b32 v17, v16')
    a('v_mov_b32 v18, v16')
    a('v_mov_b32 v19, v16')
    a(f'v_cmp_gt_u32 vcc, {L_REC//16}, v0')
    a('s_and_saveexec_b64 s[68:69], vcc')
    a('ds_write_b128 v12, v[16:19]')
    a('s_mov_b64 exec, 15')
    a(f'ds_write_b128 v11, v[28:31] offset:{L_REC+DUMP_OFF}')
    a('s_mov_b64 exec, s[68:69]')
    a('s_waitcnt lgkmcnt(0)')
    a('s_barrier')
    stamp(a, 9)
    a(f'v_mov_b32 v24, {L_MAX}')
    a('v_mov_b32 v16, 1')
    a('s_cmp_eq_u64 s[70:71], 0')
    a('s_cbranch_scc1 B_nomore')
    a('ds_write_b32 v24, v16')
    a.lab('B_nomore')
    a('s_cmp_eq_u64 s[72:73], 0')
    a('s_cbranch_scc1 B_noflag')
    a('ds_write_b32 v24, v16 offset:4')
    a.lab('B_noflag')
    lc = [0]
    def ranks(extra):
        a('v_mov_b32 v24, 8')
        for n, (rd_, ld) in enumerate(order):
            a(f's_waitcnt vmcnt({3-n+extra})')
            if n in (0, 1, 3):
                a('s_mov_b64 exec, -1')
                stamp(a, {0: 6, 1: 14, 3: 10}[n])
            for e in range(2):
                s = rd_*4+ld*2+e
                r = 96+(rd_*2+ld)*4+2*e
                a(f's_mov_b64 exec, s[{52+2*s}:{53+2*s}]')
                if ld:
                    lc[0] += 1
                    a(f's_cbranch_execz B_sk{lc[0]}')
                a(f'v_lshrrev_b32 v{112+s}, 16, v{r+1}')
                a(f'ds_add_rtn_u32 v{36+s}, v{112+s}, v24 offset:{L_CNT}')
                if ld: a.lab(f'B_sk{lc[0]}')
        a('s_mov_b64 exec, -1')
    a('s_cmp_lg_u32 s86, 0')
    a('s_cbranch_scc1 B_rk0')
    a('s_cmp_ge_u32 s3, 8')
    a('s_cbranch_scc1 B_rk3')
    a('v_xor_b32 v46, v46, v9')
    a('v_lshlrev_b32 v45, 7, v8')
    a(f'v_add_u32 v45, {L_X}, v45')
    for ks in range(4):
        a(f'v_xor_b32 v47, {2*ks}, v46')
        a(f'v_lshl_add_u32 v{92+ks}, v47, 4, v45')
        a(f'ds_read_b128 {q4(76+4*ks)}, v{92+ks}')
    a(f's_add_u32 s68, s41, {L_WU}')
    a('v_add_u32 v47, s68, v11')
    for ks in range(4):
        a(f'ds_read_b128 {q4(48+4*ks)}, v47 offset:{1024*ks}')
    a(f's_movk_i32 s68, {RS}')
    a('v_mul_u32_u24 v45, s68, v8')
    a('v_lshl_add_u32 v45, v9, 6, v45')
    a('s_lshl_b32 s68, s34, 5')
    a('v_add_u32 v45, s68, v45')
    a(f'v_mov_b32 v46, {NB}')
    a('v_cmp_gt_u32 s[68:69], v46, v8')
    a('s_waitcnt lgkmcnt(0)')
    for ks in range(4):
        c = '0' if ks == 0 else 'v[16:31]'
        a(f'v_mfma_f32_32x32x16_bf16 v[16:31], {q4(48+4*ks)}, {q4(76+4*ks)}, {c}')
    a('s_nop 11')
    for r in range(16):
        a(f'v_mul_f32 v{16+r}, s47, v{16+r}')
    a('s_mov_b64 exec, s[68:69]')
    for o in range(2):
        a(f'ds_write_b128 v45, {q4(16+8*o)} offset:{L_Q+16*o}')
        a(f'ds_write_b128 v45, {q4(20+8*o)} offset:{L_Q+128+16*o}')
    a('v_max_f32 v46, |v16|, |v17|')
    for r in range(2, 16, 2):
        a(f'v_max3_f32 v46, v46, |v{16+r}|, |v{17+r}|')
    a(f'v_cmp_lt_f32 s[70:71], {hex(f32(LIM_Q))}, v46') if False else None
    a(f'v_cmp_lt_f32 vcc, {hex(f32(LIM_Q))}, v46')
    a('s_mov_b64 exec, -1')
    a(f'v_mov_b32 v24, {L_FLAG}')
    a('v_mov_b32 v16, 1')
    a('s_cbranch_vccz B_rk0')
    a('ds_write_b32 v24, v16')
    a.lab('B_rk3')
    a.lab('B_rk0')
    ranks(0)
    a.lab('B_rkdone')
    a('s_movk_i32 s51, 504')
    a('s_waitcnt lgkmcnt(0)')
    stamp(a, 7)
    for s in (0, 1, 4, 5, 2, 3, 6, 7):
        r = 96+(s//2)*4+2*(s % 2)
        a(f's_mov_b64 exec, s[{52+2*s}:{53+2*s}]')
        sk = s in (2, 3, 6, 7)
        if sk:
            lc[0] += 1
            a(f's_cbranch_execz B_sk{lc[0]}')
        a(f'v_min_u32 v{36+s}, s51, v{36+s}')
        a(f'v_lshl_add_u32 v{36+s}, v{112+s}, 6, v{36+s}')
        a(f'ds_write_b64 v{36+s}, {pr(r)} offset:{L_REC}')
        if sk: a.lab(f'B_sk{lc[0]}')
    a('s_mov_b64 exec, -1')
    a('v_lshrrev_b32 v13, 3, v1')
    a('v_lshlrev_b32 v13, 1, v13')
    a(f'v_mov_b32 v14, {L_WORK}')
    a('v_mov_b32 v15, 1')
    a('s_waitcnt lgkmcnt(0)')
    a('s_barrier')
    stamp(a, 2)
    a('s_cmp_lg_u32 s86, 0')
    a('s_cbranch_scc1 B_now3')
    a('s_mov_b32 s86, 1')
    a('v_lshlrev_b32 v16, 1, v2')
    a(f'v_add_u32 v16, {L_W3}, v16')
    a('ds_read_b128 v[68:71], v16')
    a('ds_read_b128 v[72:75], v16 offset:16')
    a('s_cmp_lt_u32 s3, 12')
    a('s_cbranch_scc1 B_now3')
    a('s_sub_u32 s51, s3, 12')
    a('s_lshl_b32 s51, s51, 11')
    a(f's_add_u32 m0, s51, {L_WU}')
    a('s_add_u32 s51, s51, 16384')
    a('buffer_load_dwordx4 v11, s[20:23], s51 offen lds')
    a('buffer_load_dwordx4 v11, s[20:23], s51 offen offset:1024 lds')
    a.lab('B_now3')
    a('s_cmp_ge_u32 s3, 12')
    a('s_cbranch_scc1 B_lsd')
    a(f'ds_read_b128 v[16:19], v11 offset:{L_CNT}')
    a('v_lshlrev_b32 v20, 10, v1')
    a('v_add_u32 v21, 512, v20')
    a('s_cmp_ge_u32 s3, 8')
    a('s_cbranch_scc1 B_cls')
    a('s_lshl_b32 s51, s3, 6')
    a('v_add_u32 v20, s51, v20')
    a('v_add_u32 v21, s51, v21')
    a('s_add_u32 s51, s51, 64')
    a(f'v_mov_b32 v24, {L_F8C}')
    a('s_waitcnt lgkmcnt(0)')
    a('v_cmp_le_u32 s[68:69], s51, v16')
    a('v_cmp_le_u32 s[70:71], s51, v18')
    a('s_bcnt1_i32_b64 s72, s[68:69]')
    a('s_bcnt1_i32_b64 s73, s[70:71]')
    a('s_add_u32 s73, s73, s72')
    a('v_mov_b32 v25, s73')
    a('s_mov_b64 exec, 1')
    a('ds_add_rtn_u32 v26, v24, v25')
    a('s_mov_b64 exec, -1')
    a('v_mbcnt_lo_u32_b32 v22, s68, 0')
    a('v_mbcnt_hi_u32_b32 v22, s69, v22')
    a('v_mbcnt_lo_u32_b32 v23, s70, 0')
    a('v_mbcnt_hi_u32_b32 v23, s71, v23')
    a('v_add_u32 v23, s72, v23')
    a('s_waitcnt lgkmcnt(0)')
    a('v_readfirstlane_b32 s72, v26')
    a('s_nop 1')
    a('v_add_lshl_u32 v22, v22, s72, 1')
    a('v_add_lshl_u32 v23, v23, s72, 1')
    a('s_mov_b64 exec, s[68:69]')
    a(f'ds_write_b16 v22, v20 offset:{L_L8}')
    a('s_mov_b64 exec, s[70:71]')
    a(f'ds_write_b16 v23, v21 offset:{L_L8}')
    a('s_mov_b64 exec, -1')
    a('s_branch B_lsd')
    a.lab('B_cls')
    a('s_waitcnt lgkmcnt(0)')
    for k in range(2):
        a(f'v_bfe_u32 v{22+k}, v{16+2*k}, 5, 1')
        a(f'v_bfe_u32 v{24+k}, v{16+2*k}, 3, 2')
    msk = [(52, 54), (56, 58), (60, 62), (64, 66)]
    for k in range(2):
        a(f'v_cmp_ne_u32 s[{msk[0][k]}:{msk[0][k]+1}], 0, v{22+k}')
        for c in range(1, 4):
            a(f'v_cmp_eq_u32 s[{msk[c][k]}:{msk[c][k]+1}], {4-c}, v{24+k}')
    a('v_max_u32 v26, v16, v18')
    a('v_cmp_lt_u32 vcc, 512, v26')
    a('s_mov_b32 s72, 0')
    a('s_mov_b32 s73, 0')
    for c in range(4):
        a(f's_cmp_eq_u32 s3, {8+c}')
        a(f's_cselect_b64 s[68:69], s[{msk[c][0]}:{msk[c][0]+1}], s[68:69]')
        a(f's_cselect_b64 s[70:71], s[{msk[c][1]}:{msk[c][1]+1}], s[70:71]')
        a('s_cselect_b32 s74, s72, s74')
        a(f's_bcnt1_i32_b64 s75, s[{msk[c][0]}:{msk[c][0]+1}]')
        a(f's_bcnt1_i32_b64 s76, s[{msk[c][1]}:{msk[c][1]+1}]')
        a('s_add_u32 s75, s75, s76')
        a('s_add_u32 s75, s75, 7')
        a('s_lshr_b32 s75, s75, 3')
        a('s_add_u32 s72, s72, s75')
        a(f's_lshl_b32 s75, s72, {8*c}')
        a('s_or_b32 s73, s73, s75')
    a('s_cmp_eq_u32 s3, 8')
    a('s_cselect_b32 s51, 63, 31')
    a('s_not_b32 s51, s51')
    a('s_lshl_b32 s74, s74, 3')
    a('s_bcnt1_i32_b64 s75, s[68:69]')
    a('s_add_u32 s75, s75, s74')
    a('v_and_b32 v16, s51, v16')
    a('v_and_b32 v18, s51, v18')
    a('v_add_u32 v20, v20, v16')
    a('v_add_u32 v21, v21, v18')
    a('v_mbcnt_lo_u32_b32 v22, s68, 0')
    a('v_mbcnt_hi_u32_b32 v22, s69, v22')
    a('v_mbcnt_lo_u32_b32 v23, s70, 0')
    a('v_mbcnt_hi_u32_b32 v23, s71, v23')
    a('v_add_lshl_u32 v22, v22, s74, 1')
    a('v_add_lshl_u32 v23, v23, s75, 1')
    a('s_mov_b64 exec, s[68:69]')
    a(f'ds_write_b16 v22, v20 offset:{L_L2}')
    a('s_mov_b64 exec, s[70:71]')
    a(f'ds_write_b16 v23, v21 offset:{L_L2}')
    a('s_mov_b64 exec, 1')
    a('s_cmp_lg_u64 vcc, 0')
    a('s_cselect_b32 s73, -1, s73')
    a(f'v_mov_b32 v24, {L_TOT}')
    a('v_mov_b32 v25, s73')
    a('ds_write_b32 v24, v25')
    a('s_mov_b64 exec, -1')
    a.lab('B_lsd')
    a('s_waitcnt lgkmcnt(0)')
    a('s_barrier')
    stamp(a, 3)
    stampc(a, 8)
    RAW = 32; Q = 48; RCS = [56, 112]; IDX = 64; AGC = 66; AGN = 67; Z = 76; T = 16; T2 = 24; TMP = 108; NN = 120; DD = 4; EN = 111
    cnt = [0]
    def rd(st, off=0):
        a(f'ds_read_b128 {q4(RCS[st])}, v{EN} offset:{L_REC+off}')
        a(f'ds_read_b128 {q4(RCS[st]+4)}, v{EN} offset:{L_REC+off+16}')
    def ent8(sidx):
        a(f's_lshl_b32 s51, s{sidx}, 4')
        a(f'v_add_u32 v{TMP}, s51, v13')
        a(f'ds_read_u16 v{EN}, v{TMP} offset:{L_L8}')
    def ent4(sidx):
        a(f's_sub_u32 s79, s{sidx}, s74')
        a(f's_min_u32 s79, s79, 51')
        a(f's_lshl_b32 s51, s79, 4')
        a(f'v_add_u32 v{TMP}, s51, v13')
        a(f'ds_read_u16 v{EN}, v{TMP} offset:{L_L2}')
    def ent_any(sidx):
        n = cnt[0]; cnt[0] += 1
        a(f's_cmp_ge_u32 s{sidx}, s74')
        a(f's_cbranch_scc1 B_rrP{n}')
        ent8(sidx)
        a(f's_branch B_rrX{n}')
        a.lab(f'B_rrP{n}')
        ent4(sidx)
        a.lab(f'B_rrX{n}')
    def gather(st, k):
        a(f'v_mad_u32_u16 v{TMP+(k&1)}, v{RCS[st]+2*k+1}, s42, v2')
        a(f'buffer_load_dwordx4 {q4(RAW+4*k)}, v{TMP+(k&1)}, s[12:15], 0 offen')
    def qread(st):
        RC = RCS[st]
        a(f'v_mad_u32_u16 v{TMP+2}, v{RC+1}, 36, v2 op_sel:[1,0,0,0]')
        a(f'ds_read_b128 {q4(Q)}, v{TMP+2} offset:{L_Q}')
        a(f'ds_read_b128 {q4(Q+4)}, v{TMP+2} offset:{L_Q+128}')
        a(f'v_mad_u32_u16 v{AGN}, v{RC+1}, s84, v3 op_sel:[1,0,0,0]')
    def grab():
        a('s_mov_b64 exec, 1')
        a(f'ds_add_rtn_u32 v{IDX}, v14, v15')
        a('s_mov_b64 exec, -1')
    def cops(st):
        for k in range(4):
            for p in range(4):
                a(f'v_pk_fma_f32 {pr(Z+8*k+2*p)}, {pr(RCS[st]+2*k)}, {pr(68+2*p)}, {pr(Q+2*p)} op_sel_hi:[0,1,1]')
    def zadd(k, nst):
        R = RAW+4*k; Zk = Z+8*k
        a('s_waitcnt vmcnt(3)')
        for i in range(4):
            a(f'v_dot2_f32_bf16 v{Zk+4+i}, v{R+i}, s46, v{Zk+4+i}')
        a(f'v_pk_add_f32 {pr(Zk)}, {pr(R)}, {pr(Zk)}')
        a(f'v_pk_add_f32 {pr(Zk+2)}, {pr(R+2)}, {pr(Zk+2)}')
        gather(nst, k)
    def upd(k, first, nsrc):
        Zk = Z+8*k
        if first:
            for i in range(8): a(f'v_exp_f32 v{DD+i}, v{Zk+i}')
            for p in range(4): a(f'v_pk_add_f32 {pr(DD+2*p)}, {pr(DD+2*p)}, s[44:45]')
            return
        for i in range(8): a(f'v_exp_f32 v{T+i}, v{Zk+i}')
        for p in range(4): a(f'v_pk_fma_f32 {pr(Zk+2*p)}, {pr(Zk+2*p)}, {pr(DD+2*p)}, {pr(nsrc+2*p)}')
        for p in range(4): a(f'v_pk_fma_f32 {pr(NN+2*p)}, {pr(nsrc+2*p)}, {pr(T+2*p)}, {pr(Zk+2*p)}')
        for p in range(4): a(f'v_pk_fma_f32 {pr(DD+2*p)}, {pr(DD+2*p)}, {pr(T+2*p)}, {pr(DD+2*p)}')
    def updp(k, first):
        Zk = Z+8*k
        for i in range(8): a(f'v_exp_f32 v{T+i}, v{Zk+i}')
        for p in range(4): a(f'v_pk_add_f32 {pr(T+2*p)}, {pr(T+2*p)}, s[44:45]')
        for i in range(8): a(f'v_rcp_f32 v{T+i}, v{T+i}')
        for p in range(4):
            if first: a(f'v_pk_mul_f32 {pr(NN+2*p)}, {pr(Zk+2*p)}, {pr(T+2*p)}')
            else: a(f'v_pk_fma_f32 {pr(NN+2*p)}, {pr(Zk+2*p)}, {pr(T+2*p)}, {pr(NN+2*p)}')
    def flush(src):
        dd = [T, T+2, T+4, T+6, T2, T2+2, T2+4, T2+6]
        for i in range(8): a(f'v_cvt_f64_f32 {pr(dd[i])}, v{src+i}')
        for i in range(8): a(f'ds_add_f64 v{AGC}, {pr(dd[i])} offset:{64*i}')
    def finish(nsrc):
        for i in range(8): a(f'v_rcp_f32 v{DD+i}, v{DD+i}')
        for p in range(4): a(f'v_pk_mul_f32 {pr(DD+2*p)}, {pr(nsrc+2*p)}, {pr(DD+2*p)}')
        flush(DD)
    pc = [0]
    def prio(inc):
        a(f's_add_u32 s83, s83, {inc}')
        if not PRIO: return
        n = pc[0]; pc[0] += 1
        a(f's_cmp_lt_u32 s83, {PT[0]}')
        a(f's_cbranch_scc1 B_pr{n}')
        a('s_setprio 2')
        a(f's_cmp_lt_u32 s83, {PT[1]}')
        a(f's_cbranch_scc1 B_pr{n}')
        a('s_setprio 1')
        a(f's_cmp_lt_u32 s83, {PT[2]}')
        a(f's_cbranch_scc1 B_pr{n}')
        a('s_setprio 0')
        a.lab(f'B_pr{n}')
    a(f'v_mov_b32 v24, {L_MAX}')
    a('ds_read_b128 v[16:19], v24')
    a('s_mov_b32 s76, s3')
    a('s_add_u32 s77, s3, 16')
    ent8(76)
    grab()
    a('s_mov_b32 s83, 0')
    if PRIO: a('s_setprio 3')
    a('s_waitcnt lgkmcnt(0)')
    rd(0); rd(1, 32)
    a('v_readfirstlane_b32 s70, v19')
    a('v_readfirstlane_b32 s74, v18')
    a('v_readfirstlane_b32 s71, v16')
    a('v_readfirstlane_b32 s91, v17')
    a('s_cmp_lg_u32 s70, -1')
    a('s_cbranch_scc1 B_capok')
    a('s_mov_b32 s87, 0')
    a('s_setprio 0')
    a('s_waitcnt lgkmcnt(0)')
    a('s_barrier')
    a('s_branch B_batch')
    a.lab('B_capok')
    a('s_or_b32 s90, s90, s91')
    if FORCE_PLAIN: a('s_mov_b32 s90, 1')
    a('s_add_u32 s74, s74, 7')
    a('s_lshr_b32 s74, s74, 3')
    a('s_and_b32 s72, s70, 0xff')
    a('s_add_u32 s72, s72, s74')
    a('s_bfe_u32 s73, s70, 0x80008')
    a('s_add_u32 s73, s73, s74')
    a('s_bfe_u32 s82, s70, 0x80010')
    a('s_add_u32 s82, s82, s74')
    a('s_lshr_b32 s75, s70, 24')
    a('s_add_u32 s75, s75, s74')
    a('s_cmp_ge_u32 s76, s75')
    a('s_cbranch_scc1 B_loop_end')
    a('s_cmp_ge_u32 s76, s74')
    a('s_cbranch_scc1 B_pre4')
    a('s_waitcnt lgkmcnt(0)')
    for k in range(4): gather(0, k)
    qread(0)
    ent_any(77)
    a('s_waitcnt lgkmcnt(0)')
    a('s_cmp_lg_u32 s90, 0')
    a('s_cbranch_scc1 B_loop8p')
    for mode in ('', 'p'):
        a.lab(f'B_loop8{mode}')
        a('s_waitcnt lgkmcnt(8)')
        a(f'v_mov_b32 v{AGC}, v{AGN}')
        a(f'v_readfirstlane_b32 s78, v{IDX}')
        cops(0)
        rd(0)
        a('s_add_u32 s78, s78, 32')
        for k in range(4):
            zadd(k, 1)
            if mode: updp(k, k == 0)
            else: upd(k, k == 0, Z if k == 1 else NN)
        cops(1)
        a('s_waitcnt lgkmcnt(0)')
        qread(0)
        a('s_cmp_ge_u32 s77, s74')
        a(f's_cbranch_scc1 B_tr8{mode}')
        rd(1, 32)
        ent_any(78)
        a(f's_branch B_tr8x{mode}')
        a.lab(f'B_tr8{mode}')
        ent4(78)
        a('s_waitcnt lgkmcnt(0)')
        rd(1)
        a.lab(f'B_tr8x{mode}')
        grab()
        for k in range(4):
            zadd(k, 0)
            if mode: updp(k, False)
            else: upd(k, False, NN)
        if mode: flush(NN)
        else: finish(NN)
        prio(2)
        a('s_mov_b32 s76, s77')
        a('s_mov_b32 s77, s78')
        a('s_cmp_lt_u32 s76, s74')
        a(f's_cbranch_scc1 B_loop8{mode}')
        a('s_cmp_lt_u32 s76, s75')
        a(f's_cbranch_scc1 B_loop0{mode}')
        a('s_branch B_loop_end')
    a.lab('B_pre4')
    a('s_waitcnt lgkmcnt(0)')
    ent4(76)
    a('s_waitcnt lgkmcnt(0)')
    rd(0)
    ent4(77)
    a('s_waitcnt lgkmcnt(0)')
    for k in range(4): gather(0, k)
    qread(0)
    rd(1)
    a('s_waitcnt lgkmcnt(0)')
    a('s_cmp_lg_u32 s90, 0')
    a('s_cbranch_scc1 B_loop0p')
    lim = [82, 73, 72]
    for mode in ('', 'p'):
        for st in range(2):
            L = f'{st}{mode}'
            a.lab(f'B_loop{L}')
            a('s_waitcnt lgkmcnt(8)')
            a(f'v_mov_b32 v{AGC}, v{AGN}')
            a(f'v_readfirstlane_b32 s78, v{IDX}')
            a('s_nop 0')
            a('s_add_u32 s78, s78, 32')
            ent4(78)
            cops(st)
            qread(1-st)
            a('s_waitcnt lgkmcnt(2)')
            rd(st)
            grab()
            for k in range(4):
                zadd(k, 1-st)
                if mode: updp(k, k == 0)
                else: upd(k, k == 0, Z if k == 1 else NN)
                if k < 3:
                    a(f's_cmp_ge_u32 s76, s{lim[k]}')
                    a(f's_cbranch_scc1 B_ex{k}_{L}')
            a.lab(f'B_fin_{L}')
            if mode: flush(NN)
            else: finish(NN)
            a.lab(f'B_nx_{L}')
            prio(1)
            a('s_mov_b32 s76, s77')
            a('s_mov_b32 s77, s78')
            a('s_cmp_ge_u32 s76, s75')
            a('s_cbranch_scc1 B_loop_end')
            if st == 1: a(f's_branch B_loop0{mode}')
        for st in range(2):
            L = f'{st}{mode}'
            for k in range(3):
                a.lab(f'B_ex{k}_{L}')
                for kk in range(k+1, 4): gather(1-st, kk)
                if k == 0 and not mode:
                    finish(Z)
                    a(f's_branch B_nx_{L}')
                else:
                    a(f's_branch B_fin_{L}')
    a.lab('B_loop_end')
    stamp(a, 4)
    a('s_waitcnt vmcnt(0) lgkmcnt(0)')
    a('v_lshlrev_b32 v11, 4, v1')
    a('v_and_b32 v8, 31, v1')
    a('v_add_u32 v8, s38, v8')
    a('v_lshrrev_b32 v9, 5, v1')
    a('s_cmp_ge_u32 s3, 8')
    a('s_cbranch_scc1 B_join')
    WX = [100, 104, 108, 4]
    a('s_add_u32 s39, s41, 8192')
    for ks in range(4):
        a(f'buffer_load_dwordx4 {q4(WX[ks])}, v11, s[20:23], s39 offen offset:{1024*ks}')
    a(f's_add_u32 s39, s41, {L_WU}')
    a('v_add_u32 v98, s39, v11')
    a('v_and_b32 v13, 7, v1')
    a('v_xor_b32 v13, v13, v9')
    a('v_lshlrev_b32 v14, 7, v8')
    a(f'v_add_u32 v14, {L_X}, v14')
    for ks in range(4):
        a(f'v_xor_b32 v15, {2*ks}, v13')
        a(f'v_lshl_add_u32 v{92+ks}, v15, 4, v14')
        a(f'ds_read_b128 {q4(16+4*ks)}, v{92+ks}')
    a('s_waitcnt vmcnt(0) lgkmcnt(0)')
    for ks in range(4):
        c = '0' if ks == 0 else 'v[112:127]'
        a(f'v_mfma_f32_32x32x16_bf16 v[112:127], {q4(WX[ks])}, {q4(16+4*ks)}, {c}')
    a.lab('B_join')
    a('v_lshrrev_b32 v12, 3, v0')
    a(f's_movk_i32 s51, {2*RS}')
    a('v_mul_u32_u24 v96, s51, v12')
    a('v_add_u32 v96, v96, v2')
    a(f'v_add_u32 v96, {L_AGG}, v96')
    a('v_and_b32 v97, 7, v12')
    a('v_lshlrev_b32 v97, 4, v97')
    a('v_xor_b32 v97, v97, v2')
    a('v_lshl_add_u32 v97, v12, 7, v97')
    a('s_setprio 0')
    a('s_waitcnt lgkmcnt(0)')
    a('s_barrier')
    stamp(a, 5)
    a('s_cmp_eq_u32 s87, -1')
    a('s_cbranch_scc1 B_nb')
    a('s_add_u32 s87, s87, 1')
    a('s_cmp_lt_u32 s87, 128')
    a('s_cbranch_scc1 B_again')
    a('s_mov_b32 s87, -1')
    a.lab('B_nb')
    a('s_add_u32 s50, s50, 32')
    a('s_cmp_eq_u32 s71, 0')
    a('s_cbranch_scc1 B_fin')
    a.lab('B_again')
    a('s_waitcnt vmcnt(0)')
    a('v_lshrrev_b32 v4, 3, v0')
    a('v_lshlrev_b32 v12, 10, v4')
    a('buffer_load_dword v6, v12, s[4:7], s32 offen')
    a('buffer_load_dword v7, v12, s[4:7], s33 offen')
    a('s_branch B_batch')
    a.lab('B_fin')
    if DEBUG: a('v_mov_b32 v3, v65')
    a('s_cmp_ge_u32 s3, 13')
    a('s_cbranch_scc1 B_done2')
    for q in range(4):
        a(f'ds_read_b128 {q4(64+4*q)}, v96 offset:{128*q}')
    for q in range(4):
        a(f's_waitcnt lgkmcnt({3-q})')
        a(f'v_cvt_f32_f64 v{80+2*q}, {pr(64+4*q)}')
        a(f'v_cvt_f32_f64 v{81+2*q}, {pr(66+4*q)}')
    for q in range(4):
        a(f'v_pk_mul_f32 {pr(80+2*q)}, {pr(80+2*q)}, s[48:49]')
    for q in range(4):
        a(f'v_cvt_pk_bf16_f32 v{88+q}, v{80+2*q}, v{81+2*q}')
    a(f'ds_write_b128 v97, v[88:91] offset:{L_REC}')
    a('s_cmp_ge_u32 s3, 8')
    a('s_cbranch_scc1 B_b4')
    for ks in range(4):
        a(f'ds_read_b128 {q4(48+4*ks)}, v98 offset:{1024*ks}')
        a(f'v_add_u32 v{92+ks}, {L_REC-L_X}, v{92+ks}')
    a('s_waitcnt lgkmcnt(4)')
    a('s_branch B_b4x')
    a.lab('B_b4')
    a('s_waitcnt lgkmcnt(0)')
    a.lab('B_b4x')
    a('s_barrier')
    stamp(a, 11, 3)
    a('s_cmp_ge_u32 s3, 8')
    a('s_cbranch_scc1 B_b5')
    for ks in range(4):
        a(f'ds_read_b128 {q4(32+4*ks)}, v{92+ks}')
    a('s_movk_i32 s51, 272')
    a('v_mul_u32_u24 v17, s51, v8')
    a('v_lshl_add_u32 v17, v9, 6, v17')
    a('s_lshl_b32 s51, s34, 7')
    a(f's_add_u32 s51, s51, {L_AGG}')
    a('v_add_u32 v17, s51, v17')
    for ks in range(4):
        a(f's_waitcnt lgkmcnt({3-ks})')
        a(f'v_mfma_f32_32x32x16_bf16 v[112:127], {q4(48+4*ks)}, {q4(32+4*ks)}, v[112:127]')
    a('s_nop 11')
    for q in range(4):
        a(f'ds_write_b128 v17, {q4(112+4*q)} offset:{16*q}')
    a.lab('B_b5')
    a('s_movk_i32 s51, 272')
    a('v_mul_u32_u24 v18, s51, v12')
    a('v_lshl_add_u32 v18, v2, 1, v18')
    a(f'v_add_u32 v18, {L_AGG}, v18')
    a('v_lshlrev_b32 v19, 4, v0')
    a('s_lshl_b32 s51, s37, 7')
    a(f'v_cmp_gt_u32 vcc, {NB*8}, v0')
    a('s_mov_b32 s52, s47')
    a('s_mov_b32 s53, s47')
    a('s_waitcnt lgkmcnt(0)')
    a('s_barrier')
    stamp(a, 12, 3)
    a('ds_read_b128 v[32:35], v18')
    a('ds_read_b128 v[36:39], v18 offset:16')
    a('s_waitcnt lgkmcnt(0)')
    for r in range(0, 8, 2): a(f'v_pk_mul_f32 {pr(64+r)}, {pr(32+r)}, s[52:53]')
    for r in range(8): a(f'v_exp_f32 v{64+r}, v{64+r}')
    for r in range(0, 8, 2): a(f'v_pk_add_f32 {pr(64+r)}, {pr(64+r)}, s[44:45]')
    for r in range(8): a(f'v_rcp_f32 v{64+r}, v{64+r}')
    for r in range(0, 8, 2): a(f'v_pk_mul_f32 {pr(64+r)}, {pr(64+r)}, {pr(32+r)}')
    for r in range(0, 8, 2): a(f'v_cvt_pk_bf16_f32 v{40+r//2}, v{64+r}, v{65+r}')
    stamp(a, 13, 3)
    a('s_and_b64 exec, exec, vcc')
    a(f'buffer_store_dwordx4 v[40:43], v19, s[24:27], s51 offen {ST_O}')
    a.lab('B_done2')
    stamp_out(a, 1, 88, 3)
    a.lab('B_done')
    a('s_endpgm')

def kd(a, name, vgpr, sgpr):
    a.raw('.p2align 6')
    a.raw(f'.amdhsa_kernel {name}')
    a.raw(f'  .amdhsa_next_free_vgpr {vgpr}')
    a.raw(f'  .amdhsa_next_free_sgpr {sgpr}')
    a.raw(f'  .amdhsa_accum_offset {(vgpr+3)//4*4}')
    a.raw('  .amdhsa_group_segment_fixed_size 0')
    a.raw('  .amdhsa_kernarg_size 72')
    a.raw('  .amdhsa_user_sgpr_count 2')
    a.raw('  .amdhsa_user_sgpr_kernarg_segment_ptr 1')
    a.raw('  .amdhsa_system_sgpr_workgroup_id_x 1')
    a.raw('.end_amdhsa_kernel')

def main():
    ref = open('gather_scatter__mpnn_edge_mlp__graph.s.ref').read().splitlines()
    hdr = [l for l in ref if l.startswith(';') and '@launch' not in l and 'Override' not in l and 'grid=ceil' not in l]
    a = A()
    for l in hdr: a.raw(l)
    a.raw(f'; @launch kernel=mpnn_bin_kernel grid=({A_GRID},1,1) block=({A_BLOCK},1,1) lds={A_LDS}')
    a.raw(f'; @launch kernel=mpnn_main_kernel grid=({NBK},1,1) block=(1024,1,1) lds={B_LDS}')
    a.raw('.amdgcn_target "amdgcn-amd-amdhsa--gfx950"')
    a.raw('.text')
    kernel_a(a)
    kernel_b(a)
    a.raw('.section .rodata,"a"')
    kd(a, 'mpnn_bin_kernel', 128, 100)
    kd(a, 'mpnn_main_kernel', 128, 100)
    out = sys.argv[1] if len(sys.argv) > 1 else 'gather_scatter__mpnn_edge_mlp__graph.s'
    open(out, 'w').write('\n'.join(a.l) + '\n')

main()
```

```python
import sys, struct, os
DEBUG = int(os.environ.get('DEBUG', '0'))
PRIO = int(os.environ.get('PRIO', '1'))
XMAP = int(os.environ.get('XMAP', '1'))
PREF = int(os.environ.get('PREF', '0'))
CPF = int(os.environ.get('CPF', '0'))
TLBW = int(os.environ.get('TLBW', '0'))
ST_O = os.environ.get('ST_O', 'sc0 sc1')
LATESRC = int(os.environ.get('LATESRC', '1'))
TOUCH = int(os.environ.get('TOUCH', '4'))
PT = [int(x) for x in os.environ.get('PT', '2,6,7').split(',')]
GFIRST = int(os.environ.get('GFIRST', '1'))
FORCE_PLAIN = int(os.environ.get('FORCE_PLAIN', '0'))

N = 25000; E = 800000
NB = 98
NBK = 256
CH = 3200
NCH = 250
WS_REC = 0
WS_TAB = 0x700000
WS_PF  = 0x780000
WS_PT  = 0x800000
WS_WF  = 0x7C0000
REC_BYTES = NCH*CH*8
TAB_BYTES = NCH*NBK*4
PF_BYTES  = 1000*4
PT_BYTES  = (N+1)*128
WF_BYTES  = 3*8192 + 512
WF_W3 = 3*8192
LOG2E = 1.4426950408889634
LN2 = 0.6931471805599453
LIM_P = 3.0; LIM_Q = 3.0; LIM_E_BF16 = 0x4040; LIM_W = 3.0
def f32(x): return struct.unpack('<I', struct.pack('<f', x))[0]

class A:
    def __init__(s): s.l = []
    def __call__(s, t): s.l.append('    ' + t)
    def lab(s, t): s.l.append(t + ':')
    def raw(s, t): s.l.append(t)

def srd(a, d, base, off, nbytes):
    if off:
        a(f's_add_u32 s{d}, s{base}, {hex(off)}')
        a(f's_addc_u32 s{d+1}, s{base+1}, 0')
    else:
        a(f's_mov_b32 s{d}, s{base}')
        a(f's_mov_b32 s{d+1}, s{base+1}')
    a(f's_mov_b32 s{d+2}, {hex(nbytes)}')
    a(f's_mov_b32 s{d+3}, 0x00020000')

PROF_OFF = 0x4000000
def stamp(a, i, vr=65, sr=92):
    if not DEBUG: return
    a(f's_memrealtime s[{sr}:{sr+1}]')
    a('s_waitcnt lgkmcnt(0)')
    a(f'v_writelane_b32 v{vr}, s{sr}, {i}')
def stampc(a, i, vr=65, sr=92):
    if not DEBUG: return
    a(f's_memtime s[{sr}:{sr+1}]')
    a('s_waitcnt lgkmcnt(0)')
    a(f'v_writelane_b32 v{vr}, s{sr}, {i}')
def stamp_out(a, kern, wsreg, vr=65, sr=92, tmp=6):
    if not DEBUG: return
    a('s_waitcnt vmcnt(0)')
    stamp(a, 15, vr, sr)
    a('s_mov_b64 exec, -1')
    srd(a, 96, wsreg, PROF_OFF + kern*0x400000, 0x400000)
    a(f's_lshl_b32 s{sr}, s2, 4')
    a(f's_add_u32 s{sr}, s{sr}, s3')
    a(f's_lshl_b32 s{sr}, s{sr}, 8')
    a(f'v_lshlrev_b32 v{tmp}, 2, v1')
    a(f'buffer_store_dword v{vr}, v{tmp}, s[96:99], s{sr} offen')

def wave_scan(a, v):
    for sh in (1, 2, 4, 8):
        a('s_nop 1')
        a(f'v_add_u32_dpp v{v}, v{v}, v{v} row_shr:{sh} row_mask:0xf bank_mask:0xf bound_ctrl:0')
    a('s_nop 1')
    a(f'v_add_u32_dpp v{v}, v{v}, v{v} row_bcast:15 row_mask:0xa bank_mask:0xf')
    a('s_nop 1')
    a(f'v_add_u32_dpp v{v}, v{v}, v{v} row_bcast:31 row_mask:0xc bank_mask:0xf')

def pr(r): return f'v[{r}:{r+1}]'
def q4(r): return f'v[{r}:{r+3}]'

A_GEMM0 = NCH
A_PREP0 = NCH + 250
A_GRID = A_PREP0 + 4
A_BLOCK = 448
A_XT = 0
A_W1 = 4*4096
A_LDS = 2112 + CH*8
A_STAGE = 2048 + 64
A_EFLAG = 2048
ST_A = os.environ.get('ST_A', 'sc0 sc1')

def kernel_a(a):
    a.raw('.globl mpnn_bin_kernel')
    a.raw('.p2align 8')
    a.raw('.type mpnn_bin_kernel,@function')
    a.lab('mpnn_bin_kernel')
    if DEBUG:
        a('s_memrealtime s[94:95]')
        a('s_getreg_b32 s62, hwreg(HW_REG_HW_ID)')
        a('s_getreg_b32 s63, hwreg(HW_REG_XCC_ID)')
    a('s_load_dwordx16 s[4:19], s[0:1], 0')
    a('s_load_dwordx2 s[20:21], s[0:1], 64')
    if CPF:
        a('s_getpc_b64 s[60:61]')
        a.lab('A_pc')
        a('v_lshlrev_b32 v100, 4, v0')
        a('v_add_u32 v101, 7168, v100')
        a('v_min_u32 v101, code_end-A_pc-16, v101')
        a('v_min_u32 v100, code_end-A_pc-16, v100')
        a('global_load_dwordx4 v[104:107], v100, s[60:61]')
        a('global_load_dwordx4 v[108:111], v101, s[60:61]')
    a(f's_cmp_ge_u32 s2, {A_GRID}')
    a('s_cbranch_scc1 A_done')
    a('v_lshrrev_b32 v1, 6, v0')
    a('v_lshlrev_b32 v3, 4, v0')
    a('v_readfirstlane_b32 s3, v1')
    a('v_and_b32 v1, 63, v0')
    a(f's_cmp_ge_u32 s2, {A_PREP0}')
    a('s_cbranch_scc1 A_prep')
    if GFIRST:
        a(f's_add_u32 s22, s2, {NCH}')
        a(f's_sub_u32 s23, s2, {NCH}')
        a(f's_cmp_lt_u32 s2, {NCH}')
        a('s_cselect_b32 s2, s22, s23')
    a(f's_cmp_ge_u32 s2, {A_GEMM0}')
    a('s_cbranch_scc1 A_gemm')
    a('v_cmp_gt_u32 vcc, 400, v0')
    a('s_and_b64 exec, exec, vcc')
    a('v_lshlrev_b32 v2, 3, v0')
    a(f's_mul_i32 s44, s2, {CH*4}')
    a(f's_mul_i32 s45, s2, {CH*2}')
    a(f's_add_u32 s50, s44, {CH*2}')
    a(f's_add_u32 s51, s45, {CH}')
    a('s_waitcnt lgkmcnt(0)')
    srd(a, 24, 10, 0, E*4)
    a('buffer_load_dwordx4 v[8:11], v3, s[24:27], s44 offen')
    a('buffer_load_dwordx4 v[12:15], v3, s[24:27], s50 offen')
    srd(a, 28, 8, 0, E*4)
    srd(a, 32, 6, 0, E*2)
    def srcloads():
        a('buffer_load_dwordx4 v[16:19], v3, s[28:31], s44 offen')
        a('buffer_load_dwordx4 v[20:23], v3, s[28:31], s50 offen')
        a('buffer_load_dwordx2 v[24:25], v2, s[32:35], s45 offen')
        a('buffer_load_dwordx2 v[26:27], v2, s[32:35], s51 offen')
    if not LATESRC: srcloads()
    stamp(a, 0, 70)
    if DEBUG:
        a('v_writelane_b32 v70, s94, 8')
        a('v_writelane_b32 v70, s62, 9')
        a('v_writelane_b32 v70, s63, 10')
    a('v_lshlrev_b32 v5, 2, v0')
    a('v_mov_b32 v4, 0')
    a('v_mov_b32 v6, 2048')
    a('v_cmp_gt_u32 vcc, 256, v0')
    a('s_nop 1')
    a('v_cndmask_b32 v5, v6, v5, vcc')
    a('ds_write_b32 v5, v4')
    if TLBW:
        srd(a, 36, 20, 0, 0xC00000)
        a('v_lshlrev_b32 v7, 20, v1')
        a('buffer_load_dword v71, v7, s[36:39], 0 offen')
    srd(a, 36, 20, WS_REC, REC_BYTES)
    srd(a, 40, 20, WS_TAB, TAB_BYTES)
    a('s_mov_b32 s46, 42800')
    a('s_mov_b32 s47, -196')
    a('s_mov_b32 s48, 0xffff0000')
    a('s_mov_b32 s52, 0x7fff7fff')
    a('v_mov_b32 v4, 1')
    a('s_waitcnt lgkmcnt(0)')
    a('s_barrier')
    for hf in range(2):
        if LATESRC:
            a(f's_waitcnt vmcnt({1 if hf == 0 else 4})')
            if hf == 0: srcloads()
        else:
            a(f's_waitcnt vmcnt({5-hf+TLBW})')
        if hf == 0: stamp(a, 1, 70)
        for j in range(4*hf, 4*hf+4):
            a(f'v_mul_u32_u24 v{28+j}, s46, v{8+j}')
            a(f'v_lshrrev_b32 v{28+j}, 22, v{28+j}')
            a(f'v_lshlrev_b32 v{28+j}, 2, v{28+j}')
            a(f'ds_add_rtn_u32 v{56+j}, v{28+j}, v4')
    for j in range(8):
        a(f'v_lshlrev_b32 v{8+j}, 3, v{8+j}')
        a(f'v_mad_i32_i24 v{41+2*j}, v{28+j}, s47, v{8+j}')
    a('s_mov_b64 s[22:23], exec')
    a('s_waitcnt lgkmcnt(0)')
    a('s_barrier')
    stamp(a, 2, 70)
    a('s_mov_b64 exec, -1')
    a('v_lshlrev_b32 v5, 4, v1')
    a('ds_read_b128 v[8:11], v5')
    a('s_waitcnt lgkmcnt(0)')
    a('v_add_u32 v13, v8, v9')
    a('v_add_u32 v14, v13, v10')
    a('v_add_u32 v15, v14, v11')
    a('v_mov_b32 v72, v15')
    wave_scan(a, 72)
    a('v_sub_u32 v12, v72, v15')
    a('v_add_u32 v15, v12, v14')
    a('v_add_u32 v14, v12, v13')
    a('v_add_u32 v13, v12, v8')
    for k in range(4):
        a(f'v_lshlrev_b32 v{72+k}, 3, v{12+k}')
    a('ds_write_b128 v5, v[72:75] offset:1024')
    for k in range(4):
        a(f'v_lshl_or_b32 v{64+k}, v{8+k}, 16, v{12+k}')
    a('s_mov_b64 exec, s[22:23]')
    a('s_waitcnt lgkmcnt(0)')
    for j in range(8):
        a(f'ds_read_b32 v{8+j}, v{28+j} offset:1024')
    a('s_waitcnt vmcnt(0)')
    for j in range(8):
        if j % 2 == 0:
            a(f'v_lshlrev_b32 v{40+2*j}, 16, v{24+j//2}')
        else:
            a(f'v_and_b32 v{40+2*j}, s48, v{24+j//2}')
        a(f'v_lshl_or_b32 v{41+2*j}, v{41+2*j}, 16, v{16+j}')
    for j in range(4):
        a(f'v_and_b32 v{24+j}, s52, v{24+j}')
    a('v_pk_max_u16 v24, v24, v25')
    a('v_pk_max_u16 v26, v26, v27')
    a('v_pk_max_u16 v24, v24, v26')
    a('v_lshrrev_b32 v25, 16, v24')
    a('v_and_b32 v24, 0xffff, v24')
    a('v_max_u32 v24, v24, v25')
    a(f'v_cmp_lt_u32 vcc, {hex(LIM_E_BF16)}, v24')
    a('s_and_saveexec_b64 s[54:55], vcc')
    a('s_cbranch_execz A_eok')
    a('v_mov_b32 v25, 0x80000000')
    a('ds_write_b32 v6, v25')
    a.lab('A_eok')
    a('s_mov_b64 exec, s[54:55]')
    a('s_waitcnt lgkmcnt(0)')
    for j in range(8):
        a(f'v_lshl_add_u32 v{8+j}, v{56+j}, 3, v{8+j}')
    stamp(a, 3, 70)
    for j in range(8):
        a(f'ds_write_b64 v{8+j}, {pr(40+2*j)} offset:{A_STAGE}')
    a('s_waitcnt lgkmcnt(0)')
    a('s_barrier')
    stamp(a, 4, 70)
    a('s_cmp_lg_u32 s3, 6')
    a('s_cbranch_scc1 A_notab')
    a('s_mov_b64 exec, -1')
    a('v_mov_b32 v6, 2048')
    a('ds_read_b32 v7, v6')
    a('s_lshl_b32 s49, s2, 10')
    a('s_waitcnt lgkmcnt(0)')
    for k in range(4):
        a(f'v_or_b32 v{64+k}, v{64+k}, v7')
    a(f'buffer_store_dwordx4 v[64:67], v5, s[40:43], s49 offen {ST_A}')
    a('s_mov_b64 exec, s[22:23]')
    a.lab('A_notab')
    for j in range(4):
        a(f'ds_read_b128 {q4(8+4*j)}, v3 offset:{A_STAGE+6400*j}')
    a(f's_mul_i32 s49, s2, {CH*8}')
    for j in range(4):
        a(f's_waitcnt lgkmcnt({3-j})')
        a(f'buffer_store_dwordx4 {q4(8+4*j)}, v3, s[36:39], s49 offen {ST_A}')
        if j < 3:
            a(f's_add_u32 s49, s49, 6400')
    stamp(a, 5, 70)
    stamp_out(a, 0, 20, 70)
    a('s_endpgm')

    a.lab('A_gemm')
    a(f's_sub_u32 s22, s2, {A_GEMM0}')
    a('s_mul_i32 s48, s22, 12800')
    a('s_add_u32 s49, s48, 12800')
    a('s_lshl_b32 s22, s22, 2')
    a('s_add_u32 s22, s22, s3')
    a('v_and_b32 v2, 31, v1')
    a('v_lshrrev_b32 v3, 5, v1')
    a('v_lshlrev_b32 v4, 2, v2')
    a('v_lshl_add_u32 v7, v3, 9, v4')
    a('v_lshl_add_u32 v4, v3, 10, v4')
    a(f'v_add_u32 v4, {A_W1}, v4')
    a('v_lshlrev_b32 v5, 4, v0')
    a('s_lshl_b32 s23, s3, 12')
    a('s_add_u32 s23, s23, s48')
    a('v_lshlrev_b32 v6, 4, v1')
    a('s_lshl_b32 s42, s3, 12')
    a('v_add_u32 v7, s42, v7')
    a('v_lshrrev_b32 v8, 3, v1')
    a('v_and_b32 v9, 7, v1')
    a('v_xor_b32 v10, v9, v8')
    a('v_lshlrev_b32 v10, 4, v10')
    a('v_lshl_add_u32 v10, v8, 7, v10')
    a('v_add_u32 v10, s42, v10')
    a('v_xor_b32 v9, v9, v3')
    a('v_lshlrev_b32 v8, 7, v2')
    a('v_add_u32 v8, s42, v8')
    for ks in range(4):
        a(f'v_xor_b32 v{11+ks}, {2*ks}, v9')
        a(f'v_lshl_add_u32 v{11+ks}, v{11+ks}, 4, v8')
    a('s_waitcnt lgkmcnt(0)')
    srd(a, 24, 4, 0, N*128)
    a('s_mov_b32 s26, s49')
    srd(a, 28, 12, 0, 64*128)
    a('s_movk_i32 s43, 7168')
    a('buffer_load_dwordx4 v[16:19], v5, s[28:31], 0 offen')
    a('buffer_load_dwordx4 v[20:23], v5, s[28:31], s43 offen')
    for j in range(4):
        a(f'buffer_load_dwordx4 {q4(48+4*j)}, v6, s[24:27], s23 offen offset:{1024*j}')
    stamp(a, 0, 15)
    if DEBUG:
        a('v_writelane_b32 v15, s94, 8')
        a('v_writelane_b32 v15, s62, 9')
        a('v_writelane_b32 v15, s63, 10')
    srd(a, 32, 20, WS_PT, N*128)
    a('s_mov_b32 s34, s49')
    srd(a, 44, 20, WS_PF, PF_BYTES)
    a('s_mov_b32 s36, 0x05040100')
    a('s_mov_b32 s37, 0x07060302')
    a(f's_mov_b32 s38, {hex(f32(-LOG2E))}')
    a('s_mov_b32 s39, 0x7fffffff')
    a('s_mov_b32 s40, 0x7fff0000')
    a(f's_mov_b32 s41, {hex(f32(LIM_P))}')
    a('s_waitcnt vmcnt(4)')
    a(f'ds_write_b128 v5, v[16:19] offset:{A_W1}')
    a('s_cmp_lg_u32 s3, 0')
    a('s_cbranch_scc1 A_w1done')
    a(f'ds_write_b128 v5, v[20:23] offset:{A_W1+7168}')
    a.lab('A_w1done')
    a('s_waitcnt lgkmcnt(0)')
    a('s_barrier')
    a('s_cmp_ge_u32 s3, 4')
    a('s_cbranch_scc1 A_done')
    for ks in range(4):
        if ks: a('v_add_u32 v4, 2048, v4')
        for jj in range(4):
            a(f'ds_read2_b32 {pr(16+8*ks+2*jj)}, v4 offset0:{64*jj} offset1:{64*jj+32}')
    a('s_waitcnt vmcnt(0)')
    for j in range(4):
        a(f'ds_write_b128 v10, {q4(48+4*j)} offset:{1024*j}')
    a('s_waitcnt lgkmcnt(0)')
    for ks in range(4):
        a(f'ds_read_b128 {q4(48+4*ks)}, v{11+ks}')
    stamp(a, 1, 15)
    for ks in range(4):
        for jj in range(4):
            r0 = 16+8*ks+2*jj
            a(f'v_perm_b32 v{64+4*ks+jj}, v{r0+1}, v{r0}, s36')
            a(f'v_perm_b32 v{80+4*ks+jj}, v{r0+1}, v{r0}, s37')
    a('s_waitcnt lgkmcnt(0)')
    for ks in range(4):
        c0 = '0' if ks == 0 else 'v[96:111]'
        c1 = '0' if ks == 0 else 'v[112:127]'
        a(f'v_mfma_f32_32x32x16_bf16 v[96:111], {q4(48+4*ks)}, {q4(64+4*ks)}, {c0}')
        a(f'v_mfma_f32_32x32x16_bf16 v[112:127], {q4(48+4*ks)}, {q4(80+4*ks)}, {c1}')
    a('s_nop 15')
    stamp(a, 2, 15)
    for r in range(16):
        a(f'v_mul_f32 v{96+r}, s38, v{96+r}')
    for r in range(16):
        a(f'v_mul_f32 v{112+r}, s38, v{112+r}')
    for r in range(0, 16, 2):
        a(f'v_cvt_pk_bf16_f32 v{16+r}, v{96+r}, v{97+r}')
    for r in range(0, 16, 2):
        a(f'v_lshrrev_b32 v{17+r}, 16, v{16+r}')
        a(f'v_and_b32 v{16+r}, 0xffff, v{16+r}')
    for r in range(16):
        a(f'v_and_b32 v{32+r}, s39, v{112+r}')
    for r in range(16):
        a(f'v_add_u32 v{32+r}, 0x8000, v{32+r}')
    for r in range(16):
        a(f'v_sub_u32 v{32+r}, v{32+r}, v{16+r} clamp')
    for r in range(16):
        a(f'v_and_or_b32 v{32+r}, v{32+r}, s40, v{16+r}')
    for r in range(16):
        a(f'v_bfi_b32 v{32+r}, s39, v{32+r}, v{112+r}')
        a(f'ds_write_b32 v7, v{32+r} offset:{((r&3)+8*(r>>2))*128}')
    a('v_add_u32 v8, s42, v6')
    a('s_waitcnt lgkmcnt(0)')
    for j in range(4):
        a(f'ds_read_b128 {q4(48+4*j)}, v8 offset:{1024*j}')
    a('v_max_f32 v64, |v96|, |v97|')
    for r in range(2, 32, 2):
        a(f'v_max3_f32 v64, v64, |v{96+r}|, |v{97+r}|')
    a('v_cmp_lt_f32 vcc, s41, v64')
    for j in range(4):
        a(f's_waitcnt lgkmcnt({3-j})')
        a(f'buffer_store_dwordx4 {q4(48+4*j)}, v6, s[32:35], s23 offen offset:{1024*j} {ST_A}')
    a('s_lshl_b32 s43, s22, 2')
    a('v_mov_b32 v66, 0')
    a('s_cmp_lg_u64 vcc, 0')
    a('s_cselect_b32 s42, 1, 0')
    a('v_mov_b32 v65, s42')
    a('s_mov_b64 exec, 1')
    a(f'buffer_store_dword v65, v66, s[44:47], s43 offen {ST_A}')
    stamp(a, 5, 15)
    stamp_out(a, 0, 20, 15)
    a('s_endpgm')

    a.lab('A_prep')
    a(f's_sub_u32 s50, s2, {A_PREP0}')
    a('s_mul_i32 s50, s50, 7')
    a('s_add_u32 s50, s50, s3')
    a('s_cmp_gt_u32 s50, 24')
    a('s_cbranch_scc1 A_done')
    a('s_lshr_b32 s22, s50, 3')
    a('s_bfe_u32 s23, s50, 0x10002')
    a('s_and_b32 s24, s50, 3')
    a('v_and_b32 v2, 31, v1')
    a('v_lshrrev_b32 v3, 5, v1')
    a('v_bfe_u32 v4, v2, 2, 1')
    a('v_and_b32 v5, 3, v2')
    a('v_lshrrev_b32 v6, 3, v2')
    a('v_lshl_add_u32 v5, v6, 2, v5')
    a('s_waitcnt lgkmcnt(0)')
    srd(a, 32, 20, WS_WF, WF_BYTES)
    a('s_cmp_eq_u32 s50, 24')
    a('s_cbranch_scc1 A_prep_w3')
    a('s_cmp_lg_u32 s22, 0')
    a('s_cbranch_scc1 A_prep_u')
    srd(a, 28, 12, 0, 129*128)
    a('v_lshrrev_b32 v6, 3, v5')
    a('v_lshl_add_u32 v6, v4, 2, v6')
    a('s_lshl_b32 s25, s23, 1')
    a('v_add_u32 v6, s25, v6')
    a('v_and_b32 v7, 7, v5')
    a('v_lshlrev_b32 v8, 1, v7')
    a('v_add_u32 v9, 1, v8')
    a('v_subrev_u32 v8, 8, v8')
    a('v_cmp_gt_u32 vcc, 4, v7')
    a('s_nop 1')
    a('v_cndmask_b32 v8, v8, v9, vcc')
    a('v_lshl_add_u32 v8, v6, 3, v8')
    a('v_lshlrev_b32 v8, 1, v8')
    a('v_lshl_add_u32 v8, v3, 10, v8')
    a('s_lshl_b32 s26, s24, 11')
    a('s_add_u32 s26, s26, 8192')
    for j in range(8):
        a(f'buffer_load_ushort v{32+j}, v8, s[28:31], s26 offen offset:{128*j}')
    a('s_branch A_prep_st')
    a.lab('A_prep_u')
    srd(a, 28, 14, 0, 128*128)
    a('v_lshl_add_u32 v8, v4, 4, v5')
    a('s_lshl_b32 s25, s23, 5')
    a('v_add_u32 v8, s25, v8')
    a('v_lshlrev_b32 v8, 1, v8')
    a('s_cmp_lg_u32 s22, 1')
    a('s_cbranch_scc1 A_prep_agg')
    a('v_lshl_add_u32 v8, v3, 10, v8')
    a('s_lshl_b32 s26, s24, 11')
    for j in range(8):
        a(f'buffer_load_ushort v{32+j}, v8, s[28:31], s26 offen offset:{128*j}')
    a('s_branch A_prep_st')
    a.lab('A_prep_w3')
    srd(a, 44, 20, WS_PT + N*128, 128)
    a('v_mov_b32 v20, 0x71497149')
    a('v_mov_b32 v21, v20')
    a('v_mov_b32 v22, v20')
    a('v_mov_b32 v23, v20')
    a('v_lshlrev_b32 v24, 4, v1')
    a('buffer_store_dwordx4 v[20:23], v24, s[44:47], 0 offen')
    srd(a, 36, 12, 0, 129*128)
    a('v_and_b32 v10, 7, v1')
    a('v_lshlrev_b32 v11, 4, v10')
    a('s_movk_i32 s27, 0x4000')
    a('buffer_load_dwordx4 v[44:47], v11, s[36:39], s27 offen')
    a(f's_mov_b32 s40, {hex(f32(-LOG2E))}')
    a('s_waitcnt vmcnt(0)')
    for i in range(4):
        a(f'v_and_b32 v{48+i}, 0xffff0000, v{44+i}')
        a(f'v_lshlrev_b32 v{52+i}, 16, v{44+i}')
    for i in range(8):
        a(f'v_mul_f32 v{48+i}, s40, v{48+i}')
    a('v_max3_f32 v44, |v48|, |v49|, |v50|')
    a('v_max3_f32 v44, v44, |v51|, |v52|')
    a('v_max3_f32 v44, v44, |v53|, |v54|')
    a('v_max_f32 v44, v44, |v55|')
    a(f'v_cmp_lt_f32 vcc, {hex(f32(LIM_W))}, v44')
    a('v_lshlrev_b32 v11, 5, v10')
    a('s_cmp_lg_u64 vcc, 0')
    a('s_cselect_b32 s41, 1, 0')
    a('v_mov_b32 v45, s41')
    a('v_mov_b32 v46, 0')
    a(f's_movk_i32 s27, {WF_W3}')
    a('buffer_store_dwordx4 v[48:51], v11, s[32:35], s27 offen')
    a('buffer_store_dwordx4 v[52:55], v11, s[32:35], s27 offen offset:16')
    a('buffer_store_dword v45, v46, s[32:35], s27 offen offset:256')
    a('s_endpgm')
    a.lab('A_prep_agg')
    a('v_lshl_add_u32 v8, v3, 11, v8')
    a('s_and_b32 s26, s24, 1')
    a('s_lshl_b32 s26, s26, 5')
    a('s_lshr_b32 s27, s24, 1')
    a('s_lshl_b32 s27, s27, 1')
    a('s_add_u32 s26, s26, s27')
    a('s_add_u32 s26, s26, 64')
    a('s_lshl_b32 s26, s26, 7')
    for j in range(8):
        i_ = 2*(j >> 1)
        ph = 2*i_+1 if i_ < 4 else 2*i_-8
        a(f'buffer_load_ushort v{32+j}, v8, s[28:31], s26 offen offset:{(8*(j & 1)+ph)*128}')
    a.lab('A_prep_st')
    a('s_lshl_b32 s25, s50, 10')
    a('v_lshlrev_b32 v9, 4, v1')
    a('s_waitcnt vmcnt(0)')
    for j in range(4):
        a(f'v_lshl_or_b32 v{16+j}, v{33+2*j}, 16, v{32+2*j}')
    a('buffer_store_dwordx4 v[16:19], v9, s[32:35], s25 offen')
    a.lab('A_done')
    a('s_endpgm')

RS = 288
L_CNT = 0
L_MAX = 1024
L_FLAG = 1028
L_F8C = 1032
L_TOT = 1036
L_WORK = 1040
L_OVF = 1044
L_L8 = 1056
L_L2 = L_L8 + 1600
L_REC = L_L2 + 832
DUMP_OFF = NB*512
L_Q = L_REC + DUMP_OFF + 64
L_AGG = L_Q + (NB+1)*RS
L_X = L_AGG + (NB+1)*RS*2
L_WU = L_X + 13*1024
L_W3 = L_WU + 8192
B_LDS = L_W3 + 256
DUMMY1 = N | (NB*8) << 16
for x in (L_L8, L_REC, L_Q, L_AGG, L_X, L_WU): assert x % 16 == 0
assert B_LDS <= 163840 and L_Q + 128 < 65536

def kernel_b(a):
    a.raw('.globl mpnn_main_kernel')
    a.raw('.p2align 8')
    a.raw('.type mpnn_main_kernel,@function')
    a.lab('mpnn_main_kernel')
    a('s_load_dwordx2 s[80:81], s[0:1], 64')
    a('s_load_dwordx16 s[64:79], s[0:1], 0')
    a(f's_cmp_ge_u32 s2, {NBK}')
    a('s_cbranch_scc1 B_done')
    a('v_lshrrev_b32 v1, 6, v0')
    a('v_lshrrev_b32 v4, 3, v0')
    a('v_readfirstlane_b32 s3, v1')
    a('v_lshlrev_b32 v12, 10, v4')
    a('s_and_b32 s85, s2, 7')
    a('s_lshl_b32 s85, s85, 5')
    a('s_lshr_b32 s86, s2, 3')
    a('s_add_u32 s85, s85, s86')
    a('s_lshl_b32 s32, s85, 2')
    a('s_add_u32 s33, s32, 0x20000')
    a('v_and_b32 v1, 63, v0')
    a('v_and_b32 v3, 7, v0')
    a('v_lshlrev_b32 v2, 4, v3')
    a('v_lshlrev_b32 v11, 4, v1')
    a(f's_mul_i32 s37, s85, {NB}')
    a('s_lshl_b32 s39, s37, 7')
    a('s_lshl_b32 s40, s3, 10')
    a('s_add_u32 s39, s39, s40')
    a('s_and_b32 s34, s3, 1')
    a('s_lshl_b32 s41, s34, 12')
    a('s_waitcnt lgkmcnt(0)')
    ws = 80
    srd(a, 4, ws, WS_TAB, TAB_BYTES)
    a('buffer_load_dword v6, v12, s[4:7], s32 offen')
    a('buffer_load_dword v7, v12, s[4:7], s33 offen')
    stamp(a, 0)
    srd(a, 8, ws, WS_REC, REC_BYTES)
    a(f's_add_u32 s28, s80, {hex(WS_WF+WF_W3+256)}')
    a('s_addc_u32 s29, s81, 0')
    a('s_load_dword s90, s[28:29], 0')
    srd(a, 12, ws, WS_PT, PT_BYTES)
    srd(a, 24, 76, 0, N*128)
    a('s_mov_b64 s[88:89], s[80:81]')
    a('s_bfe_u32 s35, s3, 0x20001')
    a('s_lshl_b32 s38, s35, 5')
    a('v_and_b32 v8, 31, v1')
    a('v_add_u32 v8, s38, v8')
    a('v_lshrrev_b32 v9, 5, v1')
    a('v_lshlrev_b32 v3, 3, v3')
    a(f'v_add_u32 v3, {L_AGG}, v3')
    a('s_movk_i32 s42, 128')
    a('s_mov_b32 s44, 1.0')
    a('s_mov_b32 s45, 1.0')
    a('s_mov_b32 s46, 0x3f80')
    a(f's_mov_b32 s47, {hex(f32(-LOG2E))}')
    a(f's_mov_b32 s48, {hex(f32(-LN2))}')
    a(f's_mov_b32 s49, {hex(f32(-LN2))}')
    a('s_mov_b32 s50, 0')
    a('s_mov_b32 s94, s47')
    a('s_mov_b32 s95, s47')
    a('s_movk_i32 s84, 72')
    a('s_mov_b32 s86, 0')
    a('s_mov_b32 s87, -1')
    srd(a, 16, 64, 0, N*128)
    srd(a, 20, ws, WS_WF, WF_BYTES)
    srd(a, 28, ws, WS_PF, PF_BYTES)
    a.lab('B_batch')
    a('v_lshlrev_b32 v12, 4, v0')
    a('s_cmp_ge_u32 s3, 4')
    a('s_cbranch_scc1 B_noini')
    a(f'v_mov_b32 v16, {hex(DUMP_OFF | DUMP_OFF << 16)}')
    a(f'v_cmp_gt_u32 vcc, {L_L8//16}, v0')
    a('v_mov_b32 v28, 0')
    a(f'v_mov_b32 v29, {hex(DUMMY1)}')
    a('v_cndmask_b32 v16, v16, v28, vcc')
    a('v_mov_b32 v30, 0')
    a(f'v_mov_b32 v31, {hex(DUMMY1)}')
    a('v_mov_b32 v17, v16')
    a('v_mov_b32 v18, v16')
    a('v_mov_b32 v19, v16')
    a(f'v_cmp_gt_u32 vcc, {L_REC//16}, v0')
    a('s_and_saveexec_b64 s[68:69], vcc')
    a('ds_write_b128 v12, v[16:19]')
    a('s_mov_b64 exec, 15')
    a(f'ds_write_b128 v11, v[28:31] offset:{L_REC+DUMP_OFF}')
    a('s_mov_b64 exec, s[68:69]')
    a.lab('B_noini')
    a('v_and_b32 v14, 7, v0')
    a('v_lshlrev_b32 v14, 1, v14')
    a('v_add_u32 v14, s50, v14')
    a(f's_movk_i32 s51, {CH}')
    a('v_mul_u32_u24 v15, s51, v4')
    a('v_add_u32 v15, v15, v14')
    a('v_mov_b32 v25, 0x7fffff00')
    a('s_waitcnt lgkmcnt(0)')
    a('s_barrier')
    stamp(a, 9)
    a('s_waitcnt vmcnt(0)')
    stamp(a, 1)
    for rd_ in range(2):
        T_ = 6+rd_
        a(f'v_bfe_u32 v{20+rd_}, v{T_}, 16, 13')
        a(f'v_and_b32 v{22+rd_}, 0xffff, v{T_}')
        a(f'v_add_u32 v{22+rd_}, v{22+rd_}, v15')
        if rd_ == 1:
            a(f'v_add_u32 v{22+rd_}, {128*CH}, v{22+rd_}')
        a(f'v_lshlrev_b32 v{22+rd_}, 3, v{22+rd_}')
        a(f'v_sub_u32 v{16+rd_}, v{20+rd_}, v14')
    for s in range(8):
        a(f'v_cmp_lt_i32 s[{52+2*s}:{53+2*s}], {((s >> 1) & 1)*16+(s & 1)}, v{16+(s >> 2)}')
    a('s_cmp_eq_u32 s87, -1')
    a('s_cbranch_scc1 B_allsl')
    a('s_lshl_b32 s51, s3, 3')
    a('s_sub_u32 s51, s87, s51')
    for s in range(8):
        a(f's_cmp_eq_u32 s51, {s}')
        a(f's_cselect_b64 s[{52+2*s}:{53+2*s}], s[{52+2*s}:{53+2*s}], 0')
    a.lab('B_allsl')
    order = [(0, 0), (1, 0), (0, 1), (1, 1)]
    for rd_, ld in order:
        s = rd_*4+ld*2
        r = 96+(rd_*2+ld)*4
        a(f's_or_b64 vcc, s[{52+2*s}:{53+2*s}], s[{54+2*s}:{55+2*s}]')
        a(f'v_cndmask_b32 v{26+rd_*2+ld}, v25, v{22+rd_}, vcc')
        a(f'buffer_load_dwordx4 {q4(r)}, v{26+rd_*2+ld}, s[8:11], 0 offen offset:{128*ld}')
    a('v_max_i32 v16, v16, v17')
    a('v_or_b32 v17, v6, v7')
    a('v_cmp_lt_i32 s[70:71], 32, v16')
    a('v_cmp_gt_i32 s[72:73], 0, v17')
    a(f'v_mov_b32 v24, {L_MAX}')
    a('v_mov_b32 v16, 1')
    a('s_cmp_eq_u64 s[70:71], 0')
    a('s_cbranch_scc1 B_nomore')
    a('ds_write_b32 v24, v16')
    a.lab('B_nomore')
    lc = [0]
    def ranks(extra):
        a('v_mov_b32 v44, 8')
        for n, (rd_, ld) in enumerate(order):
            a(f's_waitcnt vmcnt({3-n+extra})')
            if n in (0, 3) and DEBUG:
                a('s_mov_b64 exec, -1')
                stamp(a, {0: 6, 3: 10}[n])
            for e in range(2):
                s = rd_*4+ld*2+e
                r = 96+(rd_*2+ld)*4+2*e
                a(f's_mov_b64 exec, s[{52+2*s}:{53+2*s}]')
                if ld:
                    lc[0] += 1
                    a(f's_cbranch_execz B_sk{lc[0]}')
                a(f'v_lshrrev_b32 v{112+s}, 16, v{r+1}')
                a(f'ds_add_rtn_u32 v{36+s}, v{112+s}, v44 offset:{L_CNT}')
                if ld: a.lab(f'B_sk{lc[0]}')
        a('s_mov_b64 exec, -1')
    a('s_cmp_lg_u32 s86, 0')
    a('s_cbranch_scc1 B_rk0')
    a('s_cmp_ge_u32 s3, 13')
    a('s_cbranch_scc1 B_a13')
    a('buffer_load_dwordx4 v[32:35], v11, s[16:19], s39 offen')
    a('s_cmp_ge_u32 s3, 8')
    a('s_cbranch_scc1 B_a8')
    a(f's_add_u32 m0, s40, {L_WU}')
    a('s_nop 0')
    a('buffer_load_dwordx4 v11, s[20:23], s40 offen lds')
    a('s_branch B_ax')
    a.lab('B_a8')
    a('s_sub_u32 s51, s40, 8192')
    a('buffer_load_dwordx4 v[48:51], v11, s[28:31], s51 offen')
    a('s_branch B_ax')
    a.lab('B_a13')
    a(f's_mov_b32 m0, {L_W3}')
    a(f's_movk_i32 s51, {WF_W3}')
    a('s_mov_b64 exec, 0xffff')
    a('buffer_load_dwordx4 v11, s[20:23], s51 offen lds')
    a('buffer_load_dwordx4 v11, s[20:23], s51 offen lds')
    a('s_mov_b64 exec, -1')
    a.lab('B_ax')
    for r in range(20, 24): a(f'v_mov_b32 v{r}, 0')
    a(f'v_add_u32 v13, {L_AGG}, v12')
    for j in range(3):
        a(f'ds_write_b128 v13, v[20:23] offset:{16384*j}')
    a(f'v_cmp_gt_u32 vcc, {NB*RS*2//16-3072}, v0')
    a('s_and_saveexec_b64 s[68:69], vcc')
    a('ds_write_b128 v13, v[20:23] offset:49152')
    a('s_mov_b64 exec, s[68:69]')
    a('v_lshrrev_b32 v45, 3, v1')
    a('v_and_b32 v46, 7, v1')
    a('v_xor_b32 v47, v46, v45')
    a('v_lshlrev_b32 v47, 4, v47')
    a('v_lshl_add_u32 v47, v45, 7, v47')
    a(f's_add_u32 s51, s40, {L_X}')
    a('v_add_u32 v47, s51, v47')
    ranks(2)
    a('s_waitcnt vmcnt(0)')
    a('s_cmp_ge_u32 s3, 13')
    a('s_cbranch_scc1 B_rkdone')
    a('ds_write_b128 v47, v[32:35]')
    a('s_cmp_lt_u32 s3, 8')
    a('s_cbranch_scc1 B_rkdone')
    a('v_or3_b32 v48, v48, v49, v50')
    a('v_or_b32 v48, v48, v51')
    a('v_cmp_ne_u32 vcc, 0, v48')
    a('s_nop 0')
    a('s_or_b64 s[72:73], s[72:73], vcc')
    a('s_branch B_rkdone')
    a.lab('B_rk0')
    ranks(0)
    a.lab('B_rkdone')
    a('s_cmp_eq_u64 s[72:73], 0')
    a('s_cbranch_scc1 B_noflag')
    a('ds_write_b32 v24, v16 offset:4')
    a.lab('B_noflag')
    a('s_movk_i32 s51, 504')
    a('s_waitcnt lgkmcnt(0)')
    stamp(a, 7)
    for s in (0, 1, 4, 5, 2, 3, 6, 7):
        r = 96+(s//2)*4+2*(s % 2)
        a(f's_mov_b64 exec, s[{52+2*s}:{53+2*s}]')
        sk = s in (2, 3, 6, 7)
        if sk:
            lc[0] += 1
            a(f's_cbranch_execz B_sk{lc[0]}')
        a(f'v_min_u32 v{36+s}, s51, v{36+s}')
        a(f'v_lshl_add_u32 v{36+s}, v{112+s}, 6, v{36+s}')
        a(f'ds_write_b64 v{36+s}, {pr(r)} offset:{L_REC}')
        if sk: a.lab(f'B_sk{lc[0]}')
    a('s_mov_b64 exec, -1')
    a('v_lshrrev_b32 v13, 3, v1')
    a('v_lshlrev_b32 v13, 1, v13')
    a(f'v_mov_b32 v14, {L_WORK}')
    a('v_mov_b32 v15, 1')
    a('v_xor_b32 v46, v46, v9')
    a('v_lshlrev_b32 v45, 7, v8')
    a(f'v_add_u32 v45, {L_X}, v45')
    for ks in range(4):
        a(f'v_xor_b32 v47, {2*ks}, v46')
        a(f'v_lshl_add_u32 v{92+ks}, v47, 4, v45')
    a(f's_add_u32 s68, s41, {L_WU}')
    a('v_add_u32 v47, s68, v11')
    a('s_waitcnt lgkmcnt(0)')
    a('s_barrier')
    stamp(a, 2)
    a('s_cmp_lg_u32 s86, 0')
    a('s_cbranch_scc1 B_now3')
    a('v_lshlrev_b32 v46, 1, v2')
    a(f'v_add_u32 v46, {L_W3}, v46')
    a('ds_read_b128 v[68:71], v46')
    a('ds_read_b128 v[72:75], v46 offset:16')
    a('s_cmp_lt_u32 s3, 8')
    a('s_cbranch_scc1 B_now3')
    a('s_mov_b32 s86, 1')
    for ks in range(4):
        a(f'ds_read_b128 {q4(76+4*ks)}, v{92+ks}')
        a(f'ds_read_b128 {q4(48+4*ks)}, v47 offset:{1024*ks}')
    a(f's_movk_i32 s68, {RS}')
    a('v_mul_u32_u24 v45, s68, v8')
    a('v_lshl_add_u32 v45, v9, 6, v45')
    a('s_lshl_b32 s68, s34, 5')
    a('v_add_u32 v45, s68, v45')
    a(f'v_mov_b32 v46, {NB}')
    a('v_cmp_gt_u32 s[74:75], v46, v8')
    for ks in range(4):
        c = '0' if ks == 0 else 'v[16:31]'
        a(f's_waitcnt lgkmcnt({6-2*ks})')
        a(f'v_mfma_f32_32x32x16_bf16 v[16:31], {q4(48+4*ks)}, {q4(76+4*ks)}, {c}')
    a('s_nop 11')
    for r in range(0, 16, 2):
        a(f'v_pk_mul_f32 {pr(16+r)}, {pr(16+r)}, s[94:95]')
    a('s_mov_b64 exec, s[74:75]')
    for o in range(2):
        a(f'ds_write_b128 v45, {q4(16+8*o)} offset:{L_Q+16*o}')
        a(f'ds_write_b128 v45, {q4(20+8*o)} offset:{L_Q+128+16*o}')
    a('v_max_f32 v46, |v16|, |v17|')
    for r in range(2, 16, 2):
        a(f'v_max3_f32 v46, v46, |v{16+r}|, |v{17+r}|')
    a(f'v_cmp_lt_f32 vcc, {hex(f32(LIM_Q))}, v46')
    a('s_mov_b64 exec, -1')
    a(f'v_mov_b32 v46, {L_FLAG}')
    a('v_mov_b32 v47, 1')
    a('s_cbranch_vccz B_lsd')
    a('ds_write_b32 v46, v47')
    a('s_branch B_lsd')
    a.lab('B_now3')
    a('s_mov_b32 s86, 1')
    a('s_cmp_ge_u32 s3, 8')
    a('s_cbranch_scc1 B_lsd')
    a(f'ds_read_b128 v[16:19], v11 offset:{L_CNT}')
    a('v_lshlrev_b32 v20, 10, v1')
    a('v_add_u32 v21, 512, v20')
    a('s_lshl_b32 s51, s3, 6')
    a('v_add_u32 v28, s51, v20')
    a('v_add_u32 v29, s51, v21')
    a('s_add_u32 s51, s51, 64')
    a(f'v_mov_b32 v24, {L_F8C}')
    a('s_waitcnt lgkmcnt(0)')
    a('v_cmp_le_u32 s[68:69], s51, v16')
    a('v_cmp_le_u32 s[70:71], s51, v18')
    a('s_bcnt1_i32_b64 s72, s[68:69]')
    a('s_bcnt1_i32_b64 s73, s[70:71]')
    a('s_add_u32 s73, s73, s72')
    a('v_mov_b32 v25, s73')
    a('s_mov_b64 exec, 1')
    a('ds_add_rtn_u32 v26, v24, v25')
    a('s_mov_b64 exec, -1')
    a('v_mbcnt_lo_u32_b32 v22, s68, 0')
    a('v_mbcnt_hi_u32_b32 v22, s69, v22')
    a('v_mbcnt_lo_u32_b32 v23, s70, 0')
    a('v_mbcnt_hi_u32_b32 v23, s71, v23')
    a('v_add_u32 v23, s72, v23')
    a('s_waitcnt lgkmcnt(0)')
    a('v_readfirstlane_b32 s72, v26')
    a('s_nop 1')
    a('v_add_lshl_u32 v22, v22, s72, 1')
    a('v_add_lshl_u32 v23, v23, s72, 1')
    a('s_mov_b64 exec, s[68:69]')
    a(f'ds_write_b16 v22, v28 offset:{L_L8}')
    a('s_mov_b64 exec, s[70:71]')
    a(f'ds_write_b16 v23, v29 offset:{L_L8}')
    a('s_mov_b64 exec, -1')
    a('s_cmp_ge_u32 s3, 4')
    a('s_cbranch_scc1 B_lsd')
    a.lab('B_cls')
    a('s_waitcnt lgkmcnt(0)')
    for k in range(2):
        a(f'v_bfe_u32 v{82+k}, v{16+2*k}, 5, 1')
        a(f'v_bfe_u32 v{84+k}, v{16+2*k}, 3, 2')
    msk = [(52, 54), (56, 58), (60, 62), (64, 66)]
    for k in range(2):
        a(f'v_cmp_ne_u32 s[{msk[0][k]}:{msk[0][k]+1}], 0, v{82+k}')
        for c in range(1, 4):
            a(f'v_cmp_eq_u32 s[{msk[c][k]}:{msk[c][k]+1}], {4-c}, v{84+k}')
    a('v_max_u32 v86, v16, v18')
    a('v_cmp_lt_u32 vcc, 512, v86')
    a('s_mov_b32 s72, 0')
    a('s_mov_b32 s73, 0')
    for c in range(4):
        a(f's_cmp_eq_u32 s3, {c}')
        a(f's_cselect_b64 s[68:69], s[{msk[c][0]}:{msk[c][0]+1}], s[68:69]')
        a(f's_cselect_b64 s[70:71], s[{msk[c][1]}:{msk[c][1]+1}], s[70:71]')
        a('s_cselect_b32 s74, s72, s74')
        a(f's_bcnt1_i32_b64 s75, s[{msk[c][0]}:{msk[c][0]+1}]')
        a(f's_bcnt1_i32_b64 s76, s[{msk[c][1]}:{msk[c][1]+1}]')
        a('s_add_u32 s75, s75, s76')
        a('s_add_u32 s75, s75, 7')
        a('s_lshr_b32 s75, s75, 3')
        a('s_add_u32 s72, s72, s75')
        a(f's_lshl_b32 s75, s72, {8*c}')
        a('s_or_b32 s73, s73, s75')
    a('s_cmp_eq_u32 s3, 0')
    a('s_cselect_b32 s51, 63, 31')
    a('s_not_b32 s51, s51')
    a('s_lshl_b32 s74, s74, 3')
    a('s_bcnt1_i32_b64 s75, s[68:69]')
    a('s_add_u32 s75, s75, s74')
    a('v_and_b32 v16, s51, v16')
    a('v_and_b32 v18, s51, v18')
    a('v_add_u32 v20, v20, v16')
    a('v_add_u32 v21, v21, v18')
    a('v_mbcnt_lo_u32_b32 v82, s68, 0')
    a('v_mbcnt_hi_u32_b32 v82, s69, v82')
    a('v_mbcnt_lo_u32_b32 v83, s70, 0')
    a('v_mbcnt_hi_u32_b32 v83, s71, v83')
    a('v_add_lshl_u32 v82, v82, s74, 1')
    a('v_add_lshl_u32 v83, v83, s75, 1')
    a('s_mov_b64 exec, s[68:69]')
    a(f'ds_write_b16 v82, v20 offset:{L_L2}')
    a('s_mov_b64 exec, s[70:71]')
    a(f'ds_write_b16 v83, v21 offset:{L_L2}')
    a('s_mov_b64 exec, 1')
    a('s_cmp_lg_u64 vcc, 0')
    a('s_cselect_b32 s73, -1, s73')
    a(f'v_mov_b32 v84, {L_TOT}')
    a('v_mov_b32 v85, s73')
    a('ds_write_b32 v84, v85')
    a('s_mov_b64 exec, -1')
    a.lab('B_lsd')
    a('s_waitcnt lgkmcnt(0)')
    a('s_barrier')
    stamp(a, 3)
    stampc(a, 8)
    a('s_cmp_lg_u32 s85, -1')
    a('s_cbranch_scc0 B_nowu')
    a('s_mov_b32 s85, -1')
    a('s_bfe_u32 s51, s3, 0x20002')
    a('s_cmp_lg_u32 s51, 1')
    a('s_cbranch_scc1 B_nowu')
    a('s_and_b32 s51, s3, 3')
    a('s_lshl_b32 s51, s51, 11')
    a(f's_add_u32 m0, s51, {L_WU}')
    a('s_add_u32 s51, s51, 16384')
    a('buffer_load_dwordx4 v11, s[20:23], s51 offen lds')
    a('buffer_load_dwordx4 v11, s[20:23], s51 offen offset:1024 lds')
    a.lab('B_nowu')
    if DEBUG:
        for i_ in range(44, 60): a(f'v_writelane_b32 v65, 0, {i_}')
    RAW = 32; Q = 48; RCS = [56, 112]; IDX = 64; AGC = 66; AGN = 67; Z = 76; T = 16; T2 = 24; TMP = 108; NN = 120; DD = 4; EN = 111
    cnt = [0]
    def rd(st, off=0):
        a(f'ds_read_b128 {q4(RCS[st])}, v{EN} offset:{L_REC+off}')
        a(f'ds_read_b128 {q4(RCS[st]+4)}, v{EN} offset:{L_REC+off+16}')
    def ent8(sidx):
        a(f's_lshl_b32 s51, s{sidx}, 4')
        a(f'v_add_u32 v{TMP}, s51, v13')
        a(f'ds_read_u16 v{EN}, v{TMP} offset:{L_L8}')
    def ent4(sidx):
        a(f's_sub_u32 s79, s{sidx}, s74')
        a(f's_min_u32 s79, s79, 51')
        a(f's_lshl_b32 s51, s79, 4')
        a(f'v_add_u32 v{TMP}, s51, v13')
        a(f'ds_read_u16 v{EN}, v{TMP} offset:{L_L2}')
    def ent_any(sidx):
        n = cnt[0]; cnt[0] += 1
        a(f's_cmp_ge_u32 s{sidx}, s74')
        a(f's_cbranch_scc1 B_rrP{n}')
        ent8(sidx)
        a(f's_branch B_rrX{n}')
        a.lab(f'B_rrP{n}')
        ent4(sidx)
        a.lab(f'B_rrX{n}')
    def gather(st, k):
        a(f'v_mad_u32_u16 v{TMP+(k&1)}, v{RCS[st]+2*k+1}, s42, v2')
        a(f'buffer_load_dwordx4 {q4(RAW+4*k)}, v{TMP+(k&1)}, s[12:15], 0 offen')
    def qread(st):
        RC = RCS[st]
        a(f'v_mad_u32_u16 v{TMP+2}, v{RC+1}, 36, v2 op_sel:[1,0,0,0]')
        a(f'ds_read_b128 {q4(Q)}, v{TMP+2} offset:{L_Q}')
        a(f'ds_read_b128 {q4(Q+4)}, v{TMP+2} offset:{L_Q+128}')
        a(f'v_mad_u32_u16 v{AGN}, v{RC+1}, s84, v3 op_sel:[1,0,0,0]')
    def grab():
        a('s_mov_b64 exec, 1')
        a(f'ds_add_rtn_u32 v{IDX}, v14, v15')
        a('s_mov_b64 exec, -1')
    def cops(st):
        for k in range(4):
            for p in range(4):
                a(f'v_pk_fma_f32 {pr(Z+8*k+2*p)}, {pr(RCS[st]+2*k)}, {pr(68+2*p)}, {pr(Q+2*p)} op_sel_hi:[0,1,1]')
    def zadd(k, nst):
        R = RAW+4*k; Zk = Z+8*k
        a('s_waitcnt vmcnt(3)')
        for i in range(4):
            a(f'v_dot2_f32_bf16 v{Zk+4+i}, v{R+i}, s46, v{Zk+4+i}')
        a(f'v_pk_add_f32 {pr(Zk)}, {pr(R)}, {pr(Zk)}')
        a(f'v_pk_add_f32 {pr(Zk+2)}, {pr(R+2)}, {pr(Zk+2)}')
        gather(nst, k)
    def upd(k, first, nsrc):
        Zk = Z+8*k
        if first:
            for i in range(8): a(f'v_exp_f32 v{DD+i}, v{Zk+i}')
            for p in range(4): a(f'v_pk_add_f32 {pr(DD+2*p)}, {pr(DD+2*p)}, s[44:45]')
            return
        for i in range(8): a(f'v_exp_f32 v{T+i}, v{Zk+i}')
        for p in range(4): a(f'v_pk_fma_f32 {pr(Zk+2*p)}, {pr(Zk+2*p)}, {pr(DD+2*p)}, {pr(nsrc+2*p)}')
        for p in range(4): a(f'v_pk_fma_f32 {pr(NN+2*p)}, {pr(nsrc+2*p)}, {pr(T+2*p)}, {pr(Zk+2*p)}')
        for p in range(4): a(f'v_pk_fma_f32 {pr(DD+2*p)}, {pr(DD+2*p)}, {pr(T+2*p)}, {pr(DD+2*p)}')
    def updp(k, first):
        Zk = Z+8*k
        for i in range(8): a(f'v_exp_f32 v{T+i}, v{Zk+i}')
        for p in range(4): a(f'v_pk_add_f32 {pr(T+2*p)}, {pr(T+2*p)}, s[44:45]')
        for i in range(8): a(f'v_rcp_f32 v{T+i}, v{T+i}')
        for p in range(4):
            if first: a(f'v_pk_mul_f32 {pr(NN+2*p)}, {pr(Zk+2*p)}, {pr(T+2*p)}')
            else: a(f'v_pk_fma_f32 {pr(NN+2*p)}, {pr(Zk+2*p)}, {pr(T+2*p)}, {pr(NN+2*p)}')
    def flush(src):
        dd = [T, T+2, T+4, T+6, T2, T2+2, T2+4, T2+6]
        for i in range(8): a(f'v_cvt_f64_f32 {pr(dd[i])}, v{src+i}')
        for i in range(8): a(f'ds_add_f64 v{AGC}, {pr(dd[i])} offset:{64*i}')
    def finish(nsrc):
        for i in range(8): a(f'v_rcp_f32 v{DD+i}, v{DD+i}')
        for p in range(4): a(f'v_pk_mul_f32 {pr(DD+2*p)}, {pr(nsrc+2*p)}, {pr(DD+2*p)}')
        flush(DD)
    pc = [0]
    def prio(inc):
        if DEBUG:
            a('s_memrealtime s[92:93]')
            a('s_add_u32 m0, s83, 44')
            a('s_waitcnt lgkmcnt(0)')
            a('v_writelane_b32 v65, s92, m0')
        a(f's_add_u32 s83, s83, {inc}')
        if not PRIO: return
        n = pc[0]; pc[0] += 1
        a(f's_cmp_lt_u32 s83, {PT[0]}')
        a(f's_cbranch_scc1 B_pr{n}')
        a('s_setprio 2')
        a(f's_cmp_lt_u32 s83, {PT[1]}')
        a(f's_cbranch_scc1 B_pr{n}')
        a('s_setprio 1')
        a(f's_cmp_lt_u32 s83, {PT[2]}')
        a(f's_cbranch_scc1 B_pr{n}')
        a('s_setprio 0')
        a.lab(f'B_pr{n}')
    a(f'v_mov_b32 v24, {L_MAX}')
    a('ds_read_b128 v[16:19], v24')
    a('s_mov_b32 s76, s3')
    a('s_add_u32 s77, s3, 16')
    ent8(76)
    grab()
    a('s_mov_b32 s83, 0')
    if PRIO: a('s_setprio 3')
    a('s_waitcnt lgkmcnt(0)')
    rd(0); rd(1, 32)
    a('v_readfirstlane_b32 s70, v19')
    a('v_readfirstlane_b32 s74, v18')
    a('v_readfirstlane_b32 s71, v16')
    a('v_readfirstlane_b32 s91, v17')
    a('s_cmp_lg_u32 s70, -1')
    a('s_cbranch_scc1 B_capok')
    a('s_mov_b32 s87, 0')
    a('s_setprio 0')
    a('s_waitcnt lgkmcnt(0)')
    a('s_barrier')
    a('s_branch B_batch')
    a.lab('B_capok')
    a('s_or_b32 s90, s90, s91')
    if FORCE_PLAIN: a('s_mov_b32 s90, 1')
    a('s_add_u32 s74, s74, 7')
    a('s_lshr_b32 s74, s74, 3')
    a('s_and_b32 s72, s70, 0xff')
    a('s_add_u32 s72, s72, s74')
    a('s_bfe_u32 s73, s70, 0x80008')
    a('s_add_u32 s73, s73, s74')
    a('s_bfe_u32 s82, s70, 0x80010')
    a('s_add_u32 s82, s82, s74')
    a('s_lshr_b32 s75, s70, 24')
    a('s_add_u32 s75, s75, s74')
    a('s_cmp_ge_u32 s76, s75')
    a('s_cbranch_scc1 B_loop_end')
    a('s_cmp_ge_u32 s76, s74')
    a('s_cbranch_scc1 B_pre4')
    a('s_waitcnt lgkmcnt(0)')
    for k in range(4): gather(0, k)
    qread(0)
    ent_any(77)
    a('s_waitcnt lgkmcnt(0)')
    a('s_cmp_lg_u32 s90, 0')
    a('s_cbranch_scc1 B_loop8p')
    for mode in ('', 'p'):
        a.lab(f'B_loop8{mode}')
        a('s_waitcnt lgkmcnt(8)')
        a(f'v_mov_b32 v{AGC}, v{AGN}')
        a(f'v_readfirstlane_b32 s78, v{IDX}')
        cops(0)
        rd(0)
        a('s_add_u32 s78, s78, 32')
        for k in range(4):
            zadd(k, 1)
            if mode: updp(k, k == 0)
            else: upd(k, k == 0, Z if k == 1 else NN)
        cops(1)
        a('s_waitcnt lgkmcnt(0)')
        qread(0)
        a('s_cmp_ge_u32 s77, s74')
        a(f's_cbranch_scc1 B_tr8{mode}')
        rd(1, 32)
        ent_any(78)
        a(f's_branch B_tr8x{mode}')
        a.lab(f'B_tr8{mode}')
        ent4(78)
        a('s_waitcnt lgkmcnt(0)')
        rd(1)
        a.lab(f'B_tr8x{mode}')
        grab()
        for k in range(4):
            zadd(k, 0)
            if mode: updp(k, False)
            else: upd(k, False, NN)
        if mode: flush(NN)
        else: finish(NN)
        prio(2)
        a('s_mov_b32 s76, s77')
        a('s_mov_b32 s77, s78')
        a('s_cmp_lt_u32 s76, s74')
        a(f's_cbranch_scc1 B_loop8{mode}')
        a('s_cmp_lt_u32 s76, s75')
        a(f's_cbranch_scc1 B_loop0{mode}')
        a('s_branch B_loop_end')
    a.lab('B_pre4')
    a('s_waitcnt lgkmcnt(0)')
    ent4(76)
    a('s_waitcnt lgkmcnt(0)')
    rd(0)
    ent4(77)
    a('s_waitcnt lgkmcnt(0)')
    for k in range(4): gather(0, k)
    qread(0)
    rd(1)
    a('s_waitcnt lgkmcnt(0)')
    a('s_cmp_lg_u32 s90, 0')
    a('s_cbranch_scc1 B_loop0p')
    lim = [82, 73, 72]
    for mode in ('', 'p'):
        for st in range(2):
            L = f'{st}{mode}'
            a.lab(f'B_loop{L}')
            a('s_waitcnt lgkmcnt(8)')
            a(f'v_mov_b32 v{AGC}, v{AGN}')
            a(f'v_readfirstlane_b32 s78, v{IDX}')
            a('s_nop 0')
            a('s_add_u32 s78, s78, 32')
            ent4(78)
            cops(st)
            qread(1-st)
            a('s_waitcnt lgkmcnt(2)')
            rd(st)
            grab()
            for k in range(4):
                zadd(k, 1-st)
                if mode: updp(k, k == 0)
                else: upd(k, k == 0, Z if k == 1 else NN)
                if k < 3:
                    a(f's_cmp_ge_u32 s76, s{lim[k]}')
                    a(f's_cbranch_scc1 B_ex{k}_{L}')
            a.lab(f'B_fin_{L}')
            if mode: flush(NN)
            else: finish(NN)
            a.lab(f'B_nx_{L}')
            prio(1)
            a('s_mov_b32 s76, s77')
            a('s_mov_b32 s77, s78')
            a('s_cmp_ge_u32 s76, s75')
            a('s_cbranch_scc1 B_loop_end')
            if st == 1: a(f's_branch B_loop0{mode}')
        for st in range(2):
            L = f'{st}{mode}'
            for k in range(3):
                a.lab(f'B_ex{k}_{L}')
                for kk in range(k+1, 4): gather(1-st, kk)
                if k == 0 and not mode:
                    finish(Z)
                    a(f's_branch B_nx_{L}')
                else:
                    a(f's_branch B_fin_{L}')
    a.lab('B_loop_end')
    stamp(a, 4)
    a('s_waitcnt vmcnt(0) lgkmcnt(0)')
    a('v_lshlrev_b32 v11, 4, v1')
    a('v_and_b32 v8, 31, v1')
    a('v_add_u32 v8, s38, v8')
    a('v_lshrrev_b32 v9, 5, v1')
    a('s_cmp_ge_u32 s3, 8')
    a('s_cbranch_scc1 B_join')
    WX = [100, 104, 108, 4]
    a('s_add_u32 s39, s41, 8192')
    for ks in range(4):
        a(f'buffer_load_dwordx4 {q4(WX[ks])}, v11, s[20:23], s39 offen offset:{1024*ks}')
    a(f's_add_u32 s39, s41, {L_WU}')
    a('v_add_u32 v98, s39, v11')
    a('v_and_b32 v13, 7, v1')
    a('v_xor_b32 v13, v13, v9')
    a('v_lshlrev_b32 v14, 7, v8')
    a(f'v_add_u32 v14, {L_X}, v14')
    for ks in range(4):
        a(f'v_xor_b32 v15, {2*ks}, v13')
        a(f'v_lshl_add_u32 v{92+ks}, v15, 4, v14')
        a(f'ds_read_b128 {q4(16+4*ks)}, v{92+ks}')
    a('s_waitcnt vmcnt(0) lgkmcnt(0)')
    for ks in range(4):
        c = '0' if ks == 0 else 'v[112:127]'
        a(f'v_mfma_f32_32x32x16_bf16 v[112:127], {q4(WX[ks])}, {q4(16+4*ks)}, {c}')
    a.lab('B_join')
    a('v_lshrrev_b32 v12, 3, v0')
    a(f's_movk_i32 s51, {2*RS}')
    a('v_mul_u32_u24 v96, s51, v12')
    a('v_add_u32 v96, v96, v2')
    a(f'v_add_u32 v96, {L_AGG}, v96')
    a('v_and_b32 v97, 7, v12')
    a('v_lshlrev_b32 v97, 4, v97')
    a('v_xor_b32 v97, v97, v2')
    a('v_lshl_add_u32 v97, v12, 7, v97')
    a('s_setprio 0')
    a('s_waitcnt lgkmcnt(0)')
    a('s_barrier')
    stamp(a, 5)
    stampc(a, 40)
    a('s_cmp_eq_u32 s87, -1')
    a('s_cbranch_scc1 B_nb')
    a('s_add_u32 s87, s87, 1')
    a('s_cmp_lt_u32 s87, 128')
    a('s_cbranch_scc1 B_again')
    a('s_mov_b32 s87, -1')
    a.lab('B_nb')
    a('s_add_u32 s50, s50, 32')
    a('s_cmp_eq_u32 s71, 0')
    a('s_cbranch_scc1 B_fin')
    a.lab('B_again')
    a('s_waitcnt vmcnt(0)')
    a('v_lshrrev_b32 v4, 3, v0')
    a('v_lshlrev_b32 v12, 10, v4')
    a('buffer_load_dword v6, v12, s[4:7], s32 offen')
    a('buffer_load_dword v7, v12, s[4:7], s33 offen')
    a('s_branch B_batch')
    a.lab('B_fin')
    if DEBUG: a('v_mov_b32 v3, v65')
    a('s_cmp_ge_u32 s3, 13')
    a('s_cbranch_scc1 B_done2')
    for q in range(4):
        a(f'ds_read_b128 {q4(64+4*q)}, v96 offset:{128*q}')
    for q in range(4):
        a(f's_waitcnt lgkmcnt({3-q})')
        a(f'v_cvt_f32_f64 v{80+2*q}, {pr(64+4*q)}')
        a(f'v_cvt_f32_f64 v{81+2*q}, {pr(66+4*q)}')
    for q in range(4):
        a(f'v_pk_mul_f32 {pr(80+2*q)}, {pr(80+2*q)}, s[48:49]')
    for q in range(4):
        a(f'v_cvt_pk_bf16_f32 v{88+q}, v{80+2*q}, v{81+2*q}')
    a(f'ds_write_b128 v97, v[88:91] offset:{L_REC}')
    a('s_cmp_ge_u32 s3, 8')
    a('s_cbranch_scc1 B_b4')
    for ks in range(4):
        a(f'ds_read_b128 {q4(48+4*ks)}, v98 offset:{1024*ks}')
        a(f'v_add_u32 v{92+ks}, {L_REC-L_X}, v{92+ks}')
    a('s_waitcnt lgkmcnt(4)')
    a('s_branch B_b4x')
    a.lab('B_b4')
    a('s_waitcnt lgkmcnt(0)')
    a.lab('B_b4x')
    a('s_barrier')
    stamp(a, 11, 3)
    a('s_cmp_ge_u32 s3, 8')
    a('s_cbranch_scc1 B_b5')
    for ks in range(4):
        a(f'ds_read_b128 {q4(32+4*ks)}, v{92+ks}')
    a('s_movk_i32 s51, 272')
    a('v_mul_u32_u24 v17, s51, v8')
    a('v_lshl_add_u32 v17, v9, 6, v17')
    a('s_lshl_b32 s51, s34, 7')
    a(f's_add_u32 s51, s51, {L_AGG}')
    a('v_add_u32 v17, s51, v17')
    for ks in range(4):
        a(f's_waitcnt lgkmcnt({3-ks})')
        a(f'v_mfma_f32_32x32x16_bf16 v[112:127], {q4(48+4*ks)}, {q4(32+4*ks)}, v[112:127]')
    a('s_nop 11')
    for q in range(4):
        a(f'ds_write_b128 v17, {q4(112+4*q)} offset:{16*q}')
    a.lab('B_b5')
    a('s_movk_i32 s51, 272')
    a('v_mul_u32_u24 v18, s51, v12')
    a('v_lshl_add_u32 v18, v2, 1, v18')
    a(f'v_add_u32 v18, {L_AGG}, v18')
    a('v_lshlrev_b32 v19, 4, v0')
    a('s_lshl_b32 s51, s37, 7')
    a(f'v_cmp_gt_u32 vcc, {NB*8}, v0')
    a('s_mov_b32 s52, s47')
    a('s_mov_b32 s53, s47')
    a('s_waitcnt lgkmcnt(0)')
    a('s_barrier')
    stamp(a, 12, 3)
    a('ds_read_b128 v[32:35], v18')
    a('ds_read_b128 v[36:39], v18 offset:16')
    a('s_waitcnt lgkmcnt(0)')
    for r in range(0, 8, 2): a(f'v_pk_mul_f32 {pr(64+r)}, {pr(32+r)}, s[52:53]')
    for r in range(8): a(f'v_exp_f32 v{64+r}, v{64+r}')
    for r in range(0, 8, 2): a(f'v_pk_add_f32 {pr(64+r)}, {pr(64+r)}, s[44:45]')
    for r in range(8): a(f'v_rcp_f32 v{64+r}, v{64+r}')
    for r in range(0, 8, 2): a(f'v_pk_mul_f32 {pr(64+r)}, {pr(64+r)}, {pr(32+r)}')
    for r in range(0, 8, 2): a(f'v_cvt_pk_bf16_f32 v{40+r//2}, v{64+r}, v{65+r}')
    stamp(a, 13, 3)
    a('s_and_b64 exec, exec, vcc')
    a(f'buffer_store_dwordx4 v[40:43], v19, s[24:27], s51 offen {ST_O}')
    a.lab('B_done2')
    stamp_out(a, 1, 88, 3)
    a.lab('B_done')
    a('s_endpgm')

def kd(a, name, vgpr, sgpr):
    a.raw('.p2align 6')
    a.raw(f'.amdhsa_kernel {name}')
    a.raw(f'  .amdhsa_next_free_vgpr {vgpr}')
    a.raw(f'  .amdhsa_next_free_sgpr {sgpr}')
    a.raw(f'  .amdhsa_accum_offset {(vgpr+3)//4*4}')
    a.raw('  .amdhsa_group_segment_fixed_size 0')
    a.raw('  .amdhsa_kernarg_size 72')
    a.raw('  .amdhsa_user_sgpr_count 2')
    a.raw('  .amdhsa_user_sgpr_kernarg_segment_ptr 1')
    a.raw('  .amdhsa_system_sgpr_workgroup_id_x 1')
    a.raw('.end_amdhsa_kernel')

def main():
    ref = open('gather_scatter__mpnn_edge_mlp__graph.s.ref').read().splitlines()
    hdr = [l for l in ref if l.startswith(';') and '@launch' not in l and 'Override' not in l and 'grid=ceil' not in l]
    a = A()
    for l in hdr: a.raw(l)
    a.raw(f'; @launch kernel=mpnn_bin_kernel grid=({A_GRID},1,1) block=({A_BLOCK},1,1) lds={A_LDS}')
    a.raw(f'; @launch kernel=mpnn_main_kernel grid=({NBK},1,1) block=(1024,1,1) lds={B_LDS}')
    a.raw('.amdgcn_target "amdgcn-amd-amdhsa--gfx950"')
    a.raw('.text')
    kernel_a(a)
    kernel_b(a)
    a.raw('.section .rodata,"a"')
    kd(a, 'mpnn_bin_kernel', 128, 100)
    kd(a, 'mpnn_main_kernel', 128, 100)
    out = sys.argv[1] if len(sys.argv) > 1 else 'gather_scatter__mpnn_edge_mlp__graph.s'
    open(out, 'w').write('\n'.join(a.l) + '\n')

main()
```

```python
import sys, struct, os
DEBUG = int(os.environ.get('DEBUG', '0'))
PRIO = int(os.environ.get('PRIO', '1'))
XMAP = int(os.environ.get('XMAP', '1'))
PREF = int(os.environ.get('PREF', '0'))
CPF = int(os.environ.get('CPF', '0'))
TLBW = int(os.environ.get('TLBW', '0'))
ST_O = os.environ.get('ST_O', 'sc0 sc1')
LATESRC = int(os.environ.get('LATESRC', '1'))
TOUCH = int(os.environ.get('TOUCH', '4'))
PT = [int(x) for x in os.environ.get('PT', '2,6,7').split(',')]
GFIRST = int(os.environ.get('GFIRST', '1'))
FORCE_PLAIN = int(os.environ.get('FORCE_PLAIN', '0'))

N = 25000; E = 800000
NB = 98
NBK = 256
CH = 3200
NCH = 250
WS_REC = 0
WS_TAB = 0x700000
WS_PF  = 0x780000
WS_PT  = 0x800000
WS_WF  = 0x7C0000
REC_BYTES = NCH*CH*8
TAB_BYTES = NCH*NBK*4
PF_BYTES  = 1000*4
PT_BYTES  = (N+1)*128
WF_BYTES  = 3*8192 + 512
WF_W3 = 3*8192
LOG2E = 1.4426950408889634
LN2 = 0.6931471805599453
LIM_P = 3.0; LIM_Q = 3.0; LIM_E_BF16 = 0x4040; LIM_W = 3.0
def f32(x): return struct.unpack('<I', struct.pack('<f', x))[0]

class A:
    def __init__(s): s.l = []
    def __call__(s, t): s.l.append('    ' + t)
    def lab(s, t): s.l.append(t + ':')
    def raw(s, t): s.l.append(t)

def srd(a, d, base, off, nbytes):
    if off:
        a(f's_add_u32 s{d}, s{base}, {hex(off)}')
        a(f's_addc_u32 s{d+1}, s{base+1}, 0')
    else:
        a(f's_mov_b32 s{d}, s{base}')
        a(f's_mov_b32 s{d+1}, s{base+1}')
    a(f's_mov_b32 s{d+2}, {hex(nbytes)}')
    a(f's_mov_b32 s{d+3}, 0x00020000')

PROF_OFF = 0x4000000
def stamp(a, i, vr=65, sr=92):
    if not DEBUG: return
    a(f's_memrealtime s[{sr}:{sr+1}]')
    a('s_waitcnt lgkmcnt(0)')
    a(f'v_writelane_b32 v{vr}, s{sr}, {i}')
def stampc(a, i, vr=65, sr=92):
    if not DEBUG: return
    a(f's_memtime s[{sr}:{sr+1}]')
    a('s_waitcnt lgkmcnt(0)')
    a(f'v_writelane_b32 v{vr}, s{sr}, {i}')
UN = [0]
def stamp_out(a, kern, wsreg, vr=65, sr=92, tmp=6):
    if not DEBUG: return
    UN[0] += 1; u = UN[0]
    a('s_waitcnt vmcnt(0)')
    stamp(a, 15, vr, sr)
    a('s_mov_b64 exec, -1')
    a('s_cmp_lg_u32 s3, 0')
    a(f's_cbranch_scc1 SO_done{u}')
    a('s_load_dwordx2 s[96:97], s[0:1], 56')
    a('s_waitcnt lgkmcnt(0)')
    if kern == 1:
        a('s_sub_u32 s96, s96, 512')
        a('s_subb_u32 s97, s97, 0')
    a('s_mov_b32 s98, 256')
    a('s_mov_b32 s99, 0x00020000')
    if kern == 0:
        sel = [(0, 0), (499, 8)]; lanes = [8, 15]
    else:
        sel = [(0, 16), (131, 40)]; lanes = [0, 1, 2, 3, 5, 15]
    for wg, off in sel:
        a(f's_cmp_lg_u32 s2, {wg}')
        a(f's_cbranch_scc1 SO_n{u}_{wg}')
        for i, l in enumerate(lanes):
            a(f'v_readlane_b32 s{sr}, v{vr}, {l}')
            a('s_nop 3')
            a(f'v_mov_b32 v{tmp}, s{sr}')
            a(f'v_mov_b32 v{tmp+1}, {off+4*i}')
            a(f'buffer_store_dword v{tmp}, v{tmp+1}, s[96:99], 0 offen')
            a('s_waitcnt vmcnt(0)')
        a.lab(f'SO_n{u}_{wg}')
    a.lab(f'SO_done{u}')

def wave_scan(a, v):
    for sh in (1, 2, 4, 8):
        a('s_nop 1')
        a(f'v_add_u32_dpp v{v}, v{v}, v{v} row_shr:{sh} row_mask:0xf bank_mask:0xf bound_ctrl:0')
    a('s_nop 1')
    a(f'v_add_u32_dpp v{v}, v{v}, v{v} row_bcast:15 row_mask:0xa bank_mask:0xf')
    a('s_nop 1')
    a(f'v_add_u32_dpp v{v}, v{v}, v{v} row_bcast:31 row_mask:0xc bank_mask:0xf')

def pr(r): return f'v[{r}:{r+1}]'
def q4(r): return f'v[{r}:{r+3}]'

A_GEMM0 = NCH
A_PREP0 = NCH + 250
A_GRID = A_PREP0 + 4
A_BLOCK = 448
A_XT = 0
A_W1 = 4*4096
A_LDS = 2112 + CH*8
A_STAGE = 2048 + 64
A_EFLAG = 2048
ST_A = os.environ.get('ST_A', 'sc0 sc1')

def kernel_a(a):
    a.raw('.globl mpnn_bin_kernel')
    a.raw('.p2align 8')
    a.raw('.type mpnn_bin_kernel,@function')
    a.lab('mpnn_bin_kernel')
    if DEBUG:
        a('s_memrealtime s[94:95]')
        a('s_getreg_b32 s62, hwreg(HW_REG_HW_ID)')
        a('s_getreg_b32 s63, hwreg(HW_REG_XCC_ID)')
    a('s_load_dwordx16 s[4:19], s[0:1], 0')
    a('s_load_dwordx2 s[20:21], s[0:1], 64')
    if CPF:
        a('s_getpc_b64 s[60:61]')
        a.lab('A_pc')
        a('v_lshlrev_b32 v100, 4, v0')
        a('v_add_u32 v101, 7168, v100')
        a('v_min_u32 v101, code_end-A_pc-16, v101')
        a('v_min_u32 v100, code_end-A_pc-16, v100')
        a('global_load_dwordx4 v[104:107], v100, s[60:61]')
        a('global_load_dwordx4 v[108:111], v101, s[60:61]')
    a(f's_cmp_ge_u32 s2, {A_GRID}')
    a('s_cbranch_scc1 A_done')
    a('v_lshrrev_b32 v1, 6, v0')
    a('v_lshlrev_b32 v3, 4, v0')
    a('v_readfirstlane_b32 s3, v1')
    a('v_and_b32 v1, 63, v0')
    a(f's_cmp_ge_u32 s2, {A_PREP0}')
    a('s_cbranch_scc1 A_prep')
    if GFIRST:
        a(f's_add_u32 s22, s2, {NCH}')
        a(f's_sub_u32 s23, s2, {NCH}')
        a(f's_cmp_lt_u32 s2, {NCH}')
        a('s_cselect_b32 s2, s22, s23')
    a(f's_cmp_ge_u32 s2, {A_GEMM0}')
    a('s_cbranch_scc1 A_gemm')
    a('v_cmp_gt_u32 vcc, 400, v0')
    a('s_and_b64 exec, exec, vcc')
    a('v_lshlrev_b32 v2, 3, v0')
    a(f's_mul_i32 s44, s2, {CH*4}')
    a(f's_mul_i32 s45, s2, {CH*2}')
    a(f's_add_u32 s50, s44, {CH*2}')
    a(f's_add_u32 s51, s45, {CH}')
    a('s_waitcnt lgkmcnt(0)')
    srd(a, 24, 10, 0, E*4)
    a('buffer_load_dwordx4 v[8:11], v3, s[24:27], s44 offen')
    a('buffer_load_dwordx4 v[12:15], v3, s[24:27], s50 offen')
    srd(a, 28, 8, 0, E*4)
    srd(a, 32, 6, 0, E*2)
    def srcloads():
        a('buffer_load_dwordx4 v[16:19], v3, s[28:31], s44 offen')
        a('buffer_load_dwordx4 v[20:23], v3, s[28:31], s50 offen')
        a('buffer_load_dwordx2 v[24:25], v2, s[32:35], s45 offen')
        a('buffer_load_dwordx2 v[26:27], v2, s[32:35], s51 offen')
    if not LATESRC: srcloads()
    stamp(a, 0, 70)
    if DEBUG:
        a('v_writelane_b32 v70, s94, 8')
        a('v_writelane_b32 v70, s62, 9')
        a('v_writelane_b32 v70, s63, 10')
    a('v_lshlrev_b32 v5, 2, v0')
    a('v_mov_b32 v4, 0')
    a('v_mov_b32 v6, 2048')
    a('v_cmp_gt_u32 vcc, 256, v0')
    a('s_nop 1')
    a('v_cndmask_b32 v5, v6, v5, vcc')
    a('ds_write_b32 v5, v4')
    if TLBW:
        srd(a, 36, 20, 0, 0xC00000)
        a('v_lshlrev_b32 v7, 20, v1')
        a('buffer_load_dword v71, v7, s[36:39], 0 offen')
    srd(a, 36, 20, WS_REC, REC_BYTES)
    srd(a, 40, 20, WS_TAB, TAB_BYTES)
    a('s_mov_b32 s46, 42800')
    a('s_mov_b32 s47, -196')
    a('s_mov_b32 s48, 0xffff0000')
    a('s_mov_b32 s52, 0x7fff7fff')
    a('v_mov_b32 v4, 1')
    a('s_waitcnt lgkmcnt(0)')
    a('s_barrier')
    for hf in range(2):
        if LATESRC:
            a(f's_waitcnt vmcnt({1 if hf == 0 else 4})')
            if hf == 0: srcloads()
        else:
            a(f's_waitcnt vmcnt({5-hf+TLBW})')
        if hf == 0: stamp(a, 1, 70)
        for j in range(4*hf, 4*hf+4):
            a(f'v_mul_u32_u24 v{28+j}, s46, v{8+j}')
            a(f'v_lshrrev_b32 v{28+j}, 22, v{28+j}')
            a(f'v_lshlrev_b32 v{28+j}, 2, v{28+j}')
            a(f'ds_add_rtn_u32 v{56+j}, v{28+j}, v4')
    for j in range(8):
        a(f'v_lshlrev_b32 v{8+j}, 3, v{8+j}')
        a(f'v_mad_i32_i24 v{41+2*j}, v{28+j}, s47, v{8+j}')
    a('s_mov_b64 s[22:23], exec')
    a('s_waitcnt lgkmcnt(0)')
    a('s_barrier')
    stamp(a, 2, 70)
    a('s_mov_b64 exec, -1')
    a('v_lshlrev_b32 v5, 4, v1')
    a('ds_read_b128 v[8:11], v5')
    a('s_waitcnt lgkmcnt(0)')
    a('v_add_u32 v13, v8, v9')
    a('v_add_u32 v14, v13, v10')
    a('v_add_u32 v15, v14, v11')
    a('v_mov_b32 v72, v15')
    wave_scan(a, 72)
    a('v_sub_u32 v12, v72, v15')
    a('v_add_u32 v15, v12, v14')
    a('v_add_u32 v14, v12, v13')
    a('v_add_u32 v13, v12, v8')
    for k in range(4):
        a(f'v_lshlrev_b32 v{72+k}, 3, v{12+k}')
    a('ds_write_b128 v5, v[72:75] offset:1024')
    for k in range(4):
        a(f'v_lshl_or_b32 v{64+k}, v{8+k}, 16, v{12+k}')
    a('s_mov_b64 exec, s[22:23]')
    a('s_waitcnt lgkmcnt(0)')
    for j in range(8):
        a(f'ds_read_b32 v{8+j}, v{28+j} offset:1024')
    a('s_waitcnt vmcnt(0)')
    for j in range(8):
        if j % 2 == 0:
            a(f'v_lshlrev_b32 v{40+2*j}, 16, v{24+j//2}')
        else:
            a(f'v_and_b32 v{40+2*j}, s48, v{24+j//2}')
        a(f'v_lshl_or_b32 v{41+2*j}, v{41+2*j}, 16, v{16+j}')
    for j in range(4):
        a(f'v_and_b32 v{24+j}, s52, v{24+j}')
    a('v_pk_max_u16 v24, v24, v25')
    a('v_pk_max_u16 v26, v26, v27')
    a('v_pk_max_u16 v24, v24, v26')
    a('v_lshrrev_b32 v25, 16, v24')
    a('v_and_b32 v24, 0xffff, v24')
    a('v_max_u32 v24, v24, v25')
    a(f'v_cmp_lt_u32 vcc, {hex(LIM_E_BF16)}, v24')
    a('s_and_saveexec_b64 s[54:55], vcc')
    a('s_cbranch_execz A_eok')
    a('v_mov_b32 v25, 0x80000000')
    a('ds_write_b32 v6, v25')
    a.lab('A_eok')
    a('s_mov_b64 exec, s[54:55]')
    a('s_waitcnt lgkmcnt(0)')
    for j in range(8):
        a(f'v_lshl_add_u32 v{8+j}, v{56+j}, 3, v{8+j}')
    stamp(a, 3, 70)
    for j in range(8):
        a(f'ds_write_b64 v{8+j}, {pr(40+2*j)} offset:{A_STAGE}')
    a('s_waitcnt lgkmcnt(0)')
    a('s_barrier')
    stamp(a, 4, 70)
    a('s_cmp_lg_u32 s3, 6')
    a('s_cbranch_scc1 A_notab')
    a('s_mov_b64 exec, -1')
    a('v_mov_b32 v6, 2048')
    a('ds_read_b32 v7, v6')
    a('s_lshl_b32 s49, s2, 10')
    a('s_waitcnt lgkmcnt(0)')
    for k in range(4):
        a(f'v_or_b32 v{64+k}, v{64+k}, v7')
    a(f'buffer_store_dwordx4 v[64:67], v5, s[40:43], s49 offen {ST_A}')
    a('s_mov_b64 exec, s[22:23]')
    a.lab('A_notab')
    for j in range(4):
        a(f'ds_read_b128 {q4(8+4*j)}, v3 offset:{A_STAGE+6400*j}')
    a(f's_mul_i32 s49, s2, {CH*8}')
    for j in range(4):
        a(f's_waitcnt lgkmcnt({3-j})')
        a(f'buffer_store_dwordx4 {q4(8+4*j)}, v3, s[36:39], s49 offen {ST_A}')
        if j < 3:
            a(f's_add_u32 s49, s49, 6400')
    stamp(a, 5, 70)
    stamp_out(a, 0, 20, 70)
    a('s_endpgm')

    a.lab('A_gemm')
    a(f's_sub_u32 s22, s2, {A_GEMM0}')
    a('s_mul_i32 s48, s22, 12800')
    a('s_add_u32 s49, s48, 12800')
    a('s_lshl_b32 s22, s22, 2')
    a('s_add_u32 s22, s22, s3')
    a('v_and_b32 v2, 31, v1')
    a('v_lshrrev_b32 v3, 5, v1')
    a('v_lshlrev_b32 v4, 2, v2')
    a('v_lshl_add_u32 v7, v3, 9, v4')
    a('v_lshl_add_u32 v4, v3, 10, v4')
    a(f'v_add_u32 v4, {A_W1}, v4')
    a('v_lshlrev_b32 v5, 4, v0')
    a('s_lshl_b32 s23, s3, 12')
    a('s_add_u32 s23, s23, s48')
    a('v_lshlrev_b32 v6, 4, v1')
    a('s_lshl_b32 s42, s3, 12')
    a('v_add_u32 v7, s42, v7')
    a('v_lshrrev_b32 v8, 3, v1')
    a('v_and_b32 v9, 7, v1')
    a('v_xor_b32 v10, v9, v8')
    a('v_lshlrev_b32 v10, 4, v10')
    a('v_lshl_add_u32 v10, v8, 7, v10')
    a('v_add_u32 v10, s42, v10')
    a('v_xor_b32 v9, v9, v3')
    a('v_lshlrev_b32 v8, 7, v2')
    a('v_add_u32 v8, s42, v8')
    for ks in range(4):
        a(f'v_xor_b32 v{11+ks}, {2*ks}, v9')
        a(f'v_lshl_add_u32 v{11+ks}, v{11+ks}, 4, v8')
    a('s_waitcnt lgkmcnt(0)')
    srd(a, 24, 4, 0, N*128)
    a('s_mov_b32 s26, s49')
    srd(a, 28, 12, 0, 64*128)
    a('s_movk_i32 s43, 7168')
    a('buffer_load_dwordx4 v[16:19], v5, s[28:31], 0 offen')
    a('buffer_load_dwordx4 v[20:23], v5, s[28:31], s43 offen')
    for j in range(4):
        a(f'buffer_load_dwordx4 {q4(48+4*j)}, v6, s[24:27], s23 offen offset:{1024*j}')
    stamp(a, 0, 15)
    if DEBUG:
        a('v_writelane_b32 v15, s94, 8')
        a('v_writelane_b32 v15, s62, 9')
        a('v_writelane_b32 v15, s63, 10')
    srd(a, 32, 20, WS_PT, N*128)
    a('s_mov_b32 s34, s49')
    srd(a, 44, 20, WS_PF, PF_BYTES)
    a('s_mov_b32 s36, 0x05040100')
    a('s_mov_b32 s37, 0x07060302')
    a(f's_mov_b32 s38, {hex(f32(-LOG2E))}')
    a('s_mov_b32 s39, 0x7fffffff')
    a('s_mov_b32 s40, 0x7fff0000')
    a(f's_mov_b32 s41, {hex(f32(LIM_P))}')
    a('s_waitcnt vmcnt(4)')
    a(f'ds_write_b128 v5, v[16:19] offset:{A_W1}')
    a('s_cmp_lg_u32 s3, 0')
    a('s_cbranch_scc1 A_w1done')
    a(f'ds_write_b128 v5, v[20:23] offset:{A_W1+7168}')
    a.lab('A_w1done')
    a('s_waitcnt lgkmcnt(0)')
    a('s_barrier')
    a('s_cmp_ge_u32 s3, 4')
    a('s_cbranch_scc1 A_done')
    for ks in range(4):
        if ks: a('v_add_u32 v4, 2048, v4')
        for jj in range(4):
            a(f'ds_read2_b32 {pr(16+8*ks+2*jj)}, v4 offset0:{64*jj} offset1:{64*jj+32}')
    a('s_waitcnt vmcnt(0)')
    for j in range(4):
        a(f'ds_write_b128 v10, {q4(48+4*j)} offset:{1024*j}')
    a('s_waitcnt lgkmcnt(0)')
    for ks in range(4):
        a(f'ds_read_b128 {q4(48+4*ks)}, v{11+ks}')
    stamp(a, 1, 15)
    for ks in range(4):
        for jj in range(4):
            r0 = 16+8*ks+2*jj
            a(f'v_perm_b32 v{64+4*ks+jj}, v{r0+1}, v{r0}, s36')
            a(f'v_perm_b32 v{80+4*ks+jj}, v{r0+1}, v{r0}, s37')
    a('s_waitcnt lgkmcnt(0)')
    for ks in range(4):
        c0 = '0' if ks == 0 else 'v[96:111]'
        c1 = '0' if ks == 0 else 'v[112:127]'
        a(f'v_mfma_f32_32x32x16_bf16 v[96:111], {q4(48+4*ks)}, {q4(64+4*ks)}, {c0}')
        a(f'v_mfma_f32_32x32x16_bf16 v[112:127], {q4(48+4*ks)}, {q4(80+4*ks)}, {c1}')
    a('s_nop 15')
    stamp(a, 2, 15)
    for r in range(16):
        a(f'v_mul_f32 v{96+r}, s38, v{96+r}')
    for r in range(16):
        a(f'v_mul_f32 v{112+r}, s38, v{112+r}')
    for r in range(0, 16, 2):
        a(f'v_cvt_pk_bf16_f32 v{16+r}, v{96+r}, v{97+r}')
    for r in range(0, 16, 2):
        a(f'v_lshrrev_b32 v{17+r}, 16, v{16+r}')
        a(f'v_and_b32 v{16+r}, 0xffff, v{16+r}')
    for r in range(16):
        a(f'v_and_b32 v{32+r}, s39, v{112+r}')
    for r in range(16):
        a(f'v_add_u32 v{32+r}, 0x8000, v{32+r}')
    for r in range(16):
        a(f'v_sub_u32 v{32+r}, v{32+r}, v{16+r} clamp')
    for r in range(16):
        a(f'v_and_or_b32 v{32+r}, v{32+r}, s40, v{16+r}')
    for r in range(16):
        a(f'v_bfi_b32 v{32+r}, s39, v{32+r}, v{112+r}')
        a(f'ds_write_b32 v7, v{32+r} offset:{((r&3)+8*(r>>2))*128}')
    a('v_add_u32 v8, s42, v6')
    a('s_waitcnt lgkmcnt(0)')
    for j in range(4):
        a(f'ds_read_b128 {q4(48+4*j)}, v8 offset:{1024*j}')
    a('v_max_f32 v64, |v96|, |v97|')
    for r in range(2, 32, 2):
        a(f'v_max3_f32 v64, v64, |v{96+r}|, |v{97+r}|')
    a('v_cmp_lt_f32 vcc, s41, v64')
    for j in range(4):
        a(f's_waitcnt lgkmcnt({3-j})')
        a(f'buffer_store_dwordx4 {q4(48+4*j)}, v6, s[32:35], s23 offen offset:{1024*j} {ST_A}')
    a('s_lshl_b32 s43, s22, 2')
    a('v_mov_b32 v66, 0')
    a('s_cmp_lg_u64 vcc, 0')
    a('s_cselect_b32 s42, 1, 0')
    a('v_mov_b32 v65, s42')
    a('s_mov_b64 exec, 1')
    a(f'buffer_store_dword v65, v66, s[44:47], s43 offen {ST_A}')
    stamp(a, 5, 15)
    stamp_out(a, 0, 20, 15)
    a('s_endpgm')

    a.lab('A_prep')
    a(f's_sub_u32 s50, s2, {A_PREP0}')
    a('s_mul_i32 s50, s50, 7')
    a('s_add_u32 s50, s50, s3')
    a('s_cmp_gt_u32 s50, 24')
    a('s_cbranch_scc1 A_done')
    a('s_lshr_b32 s22, s50, 3')
    a('s_bfe_u32 s23, s50, 0x10002')
    a('s_and_b32 s24, s50, 3')
    a('v_and_b32 v2, 31, v1')
    a('v_lshrrev_b32 v3, 5, v1')
    a('v_bfe_u32 v4, v2, 2, 1')
    a('v_and_b32 v5, 3, v2')
    a('v_lshrrev_b32 v6, 3, v2')
    a('v_lshl_add_u32 v5, v6, 2, v5')
    a('s_waitcnt lgkmcnt(0)')
    srd(a, 32, 20, WS_WF, WF_BYTES)
    a('s_cmp_eq_u32 s50, 24')
    a('s_cbranch_scc1 A_prep_w3')
    a('s_cmp_lg_u32 s22, 0')
    a('s_cbranch_scc1 A_prep_u')
    srd(a, 28, 12, 0, 129*128)
    a('v_lshrrev_b32 v6, 3, v5')
    a('v_lshl_add_u32 v6, v4, 2, v6')
    a('s_lshl_b32 s25, s23, 1')
    a('v_add_u32 v6, s25, v6')
    a('v_and_b32 v7, 7, v5')
    a('v_lshlrev_b32 v8, 1, v7')
    a('v_add_u32 v9, 1, v8')
    a('v_subrev_u32 v8, 8, v8')
    a('v_cmp_gt_u32 vcc, 4, v7')
    a('s_nop 1')
    a('v_cndmask_b32 v8, v8, v9, vcc')
    a('v_lshl_add_u32 v8, v6, 3, v8')
    a('v_lshlrev_b32 v8, 1, v8')
    a('v_lshl_add_u32 v8, v3, 10, v8')
    a('s_lshl_b32 s26, s24, 11')
    a('s_add_u32 s26, s26, 8192')
    for j in range(8):
        a(f'buffer_load_ushort v{32+j}, v8, s[28:31], s26 offen offset:{128*j}')
    a('s_branch A_prep_st')
    a.lab('A_prep_u')
    srd(a, 28, 14, 0, 128*128)
    a('v_lshl_add_u32 v8, v4, 4, v5')
    a('s_lshl_b32 s25, s23, 5')
    a('v_add_u32 v8, s25, v8')
    a('v_lshlrev_b32 v8, 1, v8')
    a('s_cmp_lg_u32 s22, 1')
    a('s_cbranch_scc1 A_prep_agg')
    a('v_lshl_add_u32 v8, v3, 10, v8')
    a('s_lshl_b32 s26, s24, 11')
    for j in range(8):
        a(f'buffer_load_ushort v{32+j}, v8, s[28:31], s26 offen offset:{128*j}')
    a('s_branch A_prep_st')
    a.lab('A_prep_w3')
    srd(a, 44, 20, WS_PT + N*128, 128)
    a('v_mov_b32 v20, 0x71497149')
    a('v_mov_b32 v21, v20')
    a('v_mov_b32 v22, v20')
    a('v_mov_b32 v23, v20')
    a('v_lshlrev_b32 v24, 4, v1')
    a('buffer_store_dwordx4 v[20:23], v24, s[44:47], 0 offen')
    srd(a, 36, 12, 0, 129*128)
    a('v_and_b32 v10, 7, v1')
    a('v_lshlrev_b32 v11, 4, v10')
    a('s_movk_i32 s27, 0x4000')
    a('buffer_load_dwordx4 v[44:47], v11, s[36:39], s27 offen')
    a(f's_mov_b32 s40, {hex(f32(-LOG2E))}')
    a('s_waitcnt vmcnt(0)')
    for i in range(4):
        a(f'v_and_b32 v{48+i}, 0xffff0000, v{44+i}')
        a(f'v_lshlrev_b32 v{52+i}, 16, v{44+i}')
    for i in range(8):
        a(f'v_mul_f32 v{48+i}, s40, v{48+i}')
    a('v_max3_f32 v44, |v48|, |v49|, |v50|')
    a('v_max3_f32 v44, v44, |v51|, |v52|')
    a('v_max3_f32 v44, v44, |v53|, |v54|')
    a('v_max_f32 v44, v44, |v55|')
    a(f'v_cmp_lt_f32 vcc, {hex(f32(LIM_W))}, v44')
    a('v_lshlrev_b32 v11, 5, v10')
    a('s_cmp_lg_u64 vcc, 0')
    a('s_cselect_b32 s41, 1, 0')
    a('v_mov_b32 v45, s41')
    a('v_mov_b32 v46, 0')
    a(f's_movk_i32 s27, {WF_W3}')
    a('buffer_store_dwordx4 v[48:51], v11, s[32:35], s27 offen')
    a('buffer_store_dwordx4 v[52:55], v11, s[32:35], s27 offen offset:16')
    a('buffer_store_dword v45, v46, s[32:35], s27 offen offset:256')
    a('s_endpgm')
    a.lab('A_prep_agg')
    a('v_lshl_add_u32 v8, v3, 11, v8')
    a('s_and_b32 s26, s24, 1')
    a('s_lshl_b32 s26, s26, 5')
    a('s_lshr_b32 s27, s24, 1')
    a('s_lshl_b32 s27, s27, 1')
    a('s_add_u32 s26, s26, s27')
    a('s_add_u32 s26, s26, 64')
    a('s_lshl_b32 s26, s26, 7')
    for j in range(8):
        i_ = 2*(j >> 1)
        ph = 2*i_+1 if i_ < 4 else 2*i_-8
        a(f'buffer_load_ushort v{32+j}, v8, s[28:31], s26 offen offset:{(8*(j & 1)+ph)*128}')
    a.lab('A_prep_st')
    a('s_lshl_b32 s25, s50, 10')
    a('v_lshlrev_b32 v9, 4, v1')
    a('s_waitcnt vmcnt(0)')
    for j in range(4):
        a(f'v_lshl_or_b32 v{16+j}, v{33+2*j}, 16, v{32+2*j}')
    a('buffer_store_dwordx4 v[16:19], v9, s[32:35], s25 offen')
    a.lab('A_done')
    a('s_endpgm')

RS = 288
L_CNT = 0
L_MAX = 1024
L_FLAG = 1028
L_F8C = 1032
L_TOT = 1036
L_WORK = 1040
L_OVF = 1044
L_L8 = 1056
L_L2 = L_L8 + 1600
L_REC = L_L2 + 832
DUMP_OFF = NB*512
L_Q = L_REC + DUMP_OFF + 64
L_AGG = L_Q + (NB+1)*RS
L_X = L_AGG + (NB+1)*RS*2
L_WU = L_X + 13*1024
L_W3 = L_WU + 8192
B_LDS = L_W3 + 256
DUMMY1 = N | (NB*8) << 16
for x in (L_L8, L_REC, L_Q, L_AGG, L_X, L_WU): assert x % 16 == 0
assert B_LDS <= 163840 and L_Q + 128 < 65536

def kernel_b(a):
    a.raw('.globl mpnn_main_kernel')
    a.raw('.p2align 8')
    a.raw('.type mpnn_main_kernel,@function')
    a.lab('mpnn_main_kernel')
    a('s_load_dwordx2 s[80:81], s[0:1], 64')
    a('s_load_dwordx16 s[64:79], s[0:1], 0')
    a(f's_cmp_ge_u32 s2, {NBK}')
    a('s_cbranch_scc1 B_done')
    a('v_lshrrev_b32 v1, 6, v0')
    a('v_lshrrev_b32 v4, 3, v0')
    a('v_readfirstlane_b32 s3, v1')
    a('v_lshlrev_b32 v12, 10, v4')
    a('s_and_b32 s85, s2, 7')
    a('s_lshl_b32 s85, s85, 5')
    a('s_lshr_b32 s86, s2, 3')
    a('s_add_u32 s85, s85, s86')
    a('s_lshl_b32 s32, s85, 2')
    a('s_add_u32 s33, s32, 0x20000')
    a('v_and_b32 v1, 63, v0')
    a('v_and_b32 v3, 7, v0')
    a('v_lshlrev_b32 v2, 4, v3')
    a('v_lshlrev_b32 v11, 4, v1')
    a(f's_mul_i32 s37, s85, {NB}')
    a('s_lshl_b32 s39, s37, 7')
    a('s_lshl_b32 s40, s3, 10')
    a('s_add_u32 s39, s39, s40')
    a('s_and_b32 s34, s3, 1')
    a('s_lshl_b32 s41, s34, 12')
    a('s_waitcnt lgkmcnt(0)')
    ws = 80
    srd(a, 4, ws, WS_TAB, TAB_BYTES)
    a('buffer_load_dword v6, v12, s[4:7], s32 offen')
    a('buffer_load_dword v7, v12, s[4:7], s33 offen')
    stamp(a, 0)
    srd(a, 8, ws, WS_REC, REC_BYTES)
    a(f's_add_u32 s28, s80, {hex(WS_WF+WF_W3+256)}')
    a('s_addc_u32 s29, s81, 0')
    a('s_load_dword s90, s[28:29], 0')
    srd(a, 12, ws, WS_PT, PT_BYTES)
    srd(a, 24, 76, 0, N*128)
    a('s_mov_b64 s[88:89], s[80:81]')
    a('s_bfe_u32 s35, s3, 0x20001')
    a('s_lshl_b32 s38, s35, 5')
    a('v_and_b32 v8, 31, v1')
    a('v_add_u32 v8, s38, v8')
    a('v_lshrrev_b32 v9, 5, v1')
    a('v_lshlrev_b32 v3, 3, v3')
    a(f'v_add_u32 v3, {L_AGG}, v3')
    a('s_movk_i32 s42, 128')
    a('s_mov_b32 s44, 1.0')
    a('s_mov_b32 s45, 1.0')
    a('s_mov_b32 s46, 0x3f80')
    a(f's_mov_b32 s47, {hex(f32(-LOG2E))}')
    a(f's_mov_b32 s48, {hex(f32(-LN2))}')
    a(f's_mov_b32 s49, {hex(f32(-LN2))}')
    a('s_mov_b32 s50, 0')
    a('s_mov_b32 s94, s47')
    a('s_mov_b32 s95, s47')
    a('s_movk_i32 s84, 72')
    a('s_mov_b32 s86, 0')
    a('s_mov_b32 s87, -1')
    srd(a, 16, 64, 0, N*128)
    srd(a, 20, ws, WS_WF, WF_BYTES)
    srd(a, 28, ws, WS_PF, PF_BYTES)
    a.lab('B_batch')
    a('v_lshlrev_b32 v12, 4, v0')
    a('s_cmp_ge_u32 s3, 4')
    a('s_cbranch_scc1 B_noini')
    a(f'v_mov_b32 v16, {hex(DUMP_OFF | DUMP_OFF << 16)}')
    a(f'v_cmp_gt_u32 vcc, {L_L8//16}, v0')
    a('v_mov_b32 v28, 0')
    a(f'v_mov_b32 v29, {hex(DUMMY1)}')
    a('v_cndmask_b32 v16, v16, v28, vcc')
    a('v_mov_b32 v30, 0')
    a(f'v_mov_b32 v31, {hex(DUMMY1)}')
    a('v_mov_b32 v17, v16')
    a('v_mov_b32 v18, v16')
    a('v_mov_b32 v19, v16')
    a(f'v_cmp_gt_u32 vcc, {L_REC//16}, v0')
    a('s_and_saveexec_b64 s[68:69], vcc')
    a('ds_write_b128 v12, v[16:19]')
    a('s_mov_b64 exec, 15')
    a(f'ds_write_b128 v11, v[28:31] offset:{L_REC+DUMP_OFF}')
    a('s_mov_b64 exec, s[68:69]')
    a.lab('B_noini')
    a('v_and_b32 v14, 7, v0')
    a('v_lshlrev_b32 v14, 1, v14')
    a('v_add_u32 v14, s50, v14')
    a(f's_movk_i32 s51, {CH}')
    a('v_mul_u32_u24 v15, s51, v4')
    a('v_add_u32 v15, v15, v14')
    a('v_mov_b32 v25, 0x7fffff00')
    a('s_waitcnt lgkmcnt(0)')
    a('s_barrier')
    stamp(a, 9)
    a('s_waitcnt vmcnt(0)')
    stamp(a, 1)
    for rd_ in range(2):
        T_ = 6+rd_
        a(f'v_bfe_u32 v{20+rd_}, v{T_}, 16, 13')
        a(f'v_and_b32 v{22+rd_}, 0xffff, v{T_}')
        a(f'v_add_u32 v{22+rd_}, v{22+rd_}, v15')
        if rd_ == 1:
            a(f'v_add_u32 v{22+rd_}, {128*CH}, v{22+rd_}')
        a(f'v_lshlrev_b32 v{22+rd_}, 3, v{22+rd_}')
        a(f'v_sub_u32 v{16+rd_}, v{20+rd_}, v14')
    for s in range(8):
        a(f'v_cmp_lt_i32 s[{52+2*s}:{53+2*s}], {((s >> 1) & 1)*16+(s & 1)}, v{16+(s >> 2)}')
    a('s_cmp_eq_u32 s87, -1')
    a('s_cbranch_scc1 B_allsl')
    a('s_lshl_b32 s51, s3, 3')
    a('s_sub_u32 s51, s87, s51')
    for s in range(8):
        a(f's_cmp_eq_u32 s51, {s}')
        a(f's_cselect_b64 s[{52+2*s}:{53+2*s}], s[{52+2*s}:{53+2*s}], 0')
    a.lab('B_allsl')
    order = [(0, 0), (1, 0), (0, 1), (1, 1)]
    for rd_, ld in order:
        s = rd_*4+ld*2
        r = 96+(rd_*2+ld)*4
        a(f's_or_b64 vcc, s[{52+2*s}:{53+2*s}], s[{54+2*s}:{55+2*s}]')
        a(f'v_cndmask_b32 v{26+rd_*2+ld}, v25, v{22+rd_}, vcc')
        a(f'buffer_load_dwordx4 {q4(r)}, v{26+rd_*2+ld}, s[8:11], 0 offen offset:{128*ld}')
    a('v_max_i32 v16, v16, v17')
    a('v_or_b32 v17, v6, v7')
    a('v_cmp_lt_i32 s[70:71], 32, v16')
    a('v_cmp_gt_i32 s[72:73], 0, v17')
    a(f'v_mov_b32 v24, {L_MAX}')
    a('v_mov_b32 v16, 1')
    a('s_cmp_eq_u64 s[70:71], 0')
    a('s_cbranch_scc1 B_nomore')
    a('ds_write_b32 v24, v16')
    a.lab('B_nomore')
    lc = [0]
    def ranks(extra):
        a('v_mov_b32 v44, 8')
        for n, (rd_, ld) in enumerate(order):
            a(f's_waitcnt vmcnt({3-n+extra})')
            if n in (0, 3) and DEBUG:
                a('s_mov_b64 exec, -1')
                stamp(a, {0: 6, 3: 10}[n])
            for e in range(2):
                s = rd_*4+ld*2+e
                r = 96+(rd_*2+ld)*4+2*e
                a(f's_mov_b64 exec, s[{52+2*s}:{53+2*s}]')
                if ld:
                    lc[0] += 1
                    a(f's_cbranch_execz B_sk{lc[0]}')
                a(f'v_lshrrev_b32 v{112+s}, 16, v{r+1}')
                a(f'ds_add_rtn_u32 v{36+s}, v{112+s}, v44 offset:{L_CNT}')
                if ld: a.lab(f'B_sk{lc[0]}')
        a('s_mov_b64 exec, -1')
    a('s_cmp_lg_u32 s86, 0')
    a('s_cbranch_scc1 B_rk0')
    a('s_cmp_ge_u32 s3, 13')
    a('s_cbranch_scc1 B_a13')
    a('buffer_load_dwordx4 v[32:35], v11, s[16:19], s39 offen')
    a('s_cmp_ge_u32 s3, 8')
    a('s_cbranch_scc1 B_a8')
    a(f's_add_u32 m0, s40, {L_WU}')
    a('s_nop 0')
    a('buffer_load_dwordx4 v11, s[20:23], s40 offen lds')
    a('s_branch B_ax')
    a.lab('B_a8')
    a('s_sub_u32 s51, s40, 8192')
    a('buffer_load_dwordx4 v[48:51], v11, s[28:31], s51 offen')
    a('s_branch B_ax')
    a.lab('B_a13')
    a(f's_mov_b32 m0, {L_W3}')
    a(f's_movk_i32 s51, {WF_W3}')
    a('s_mov_b64 exec, 0xffff')
    a('buffer_load_dwordx4 v11, s[20:23], s51 offen lds')
    a('buffer_load_dwordx4 v11, s[20:23], s51 offen lds')
    a('s_mov_b64 exec, -1')
    a.lab('B_ax')
    for r in range(20, 24): a(f'v_mov_b32 v{r}, 0')
    a(f'v_add_u32 v13, {L_AGG}, v12')
    for j in range(3):
        a(f'ds_write_b128 v13, v[20:23] offset:{16384*j}')
    a(f'v_cmp_gt_u32 vcc, {NB*RS*2//16-3072}, v0')
    a('s_and_saveexec_b64 s[68:69], vcc')
    a('ds_write_b128 v13, v[20:23] offset:49152')
    a('s_mov_b64 exec, s[68:69]')
    a('v_lshrrev_b32 v45, 3, v1')
    a('v_and_b32 v46, 7, v1')
    a('v_xor_b32 v47, v46, v45')
    a('v_lshlrev_b32 v47, 4, v47')
    a('v_lshl_add_u32 v47, v45, 7, v47')
    a(f's_add_u32 s51, s40, {L_X}')
    a('v_add_u32 v47, s51, v47')
    ranks(2)
    a('s_waitcnt vmcnt(0)')
    a('s_cmp_ge_u32 s3, 13')
    a('s_cbranch_scc1 B_rkdone')
    a('ds_write_b128 v47, v[32:35]')
    a('s_cmp_lt_u32 s3, 8')
    a('s_cbranch_scc1 B_rkdone')
    a('v_or3_b32 v48, v48, v49, v50')
    a('v_or_b32 v48, v48, v51')
    a('v_cmp_ne_u32 vcc, 0, v48')
    a('s_nop 0')
    a('s_or_b64 s[72:73], s[72:73], vcc')
    a('s_branch B_rkdone')
    a.lab('B_rk0')
    ranks(0)
    a.lab('B_rkdone')
    a('s_cmp_eq_u64 s[72:73], 0')
    a('s_cbranch_scc1 B_noflag')
    a('ds_write_b32 v24, v16 offset:4')
    a.lab('B_noflag')
    a('s_movk_i32 s51, 504')
    a('s_waitcnt lgkmcnt(0)')
    stamp(a, 7)
    for s in (0, 1, 4, 5, 2, 3, 6, 7):
        r = 96+(s//2)*4+2*(s % 2)
        a(f's_mov_b64 exec, s[{52+2*s}:{53+2*s}]')
        sk = s in (2, 3, 6, 7)
        if sk:
            lc[0] += 1
            a(f's_cbranch_execz B_sk{lc[0]}')
        a(f'v_min_u32 v{36+s}, s51, v{36+s}')
        a(f'v_lshl_add_u32 v{36+s}, v{112+s}, 6, v{36+s}')
        a(f'ds_write_b64 v{36+s}, {pr(r)} offset:{L_REC}')
        if sk: a.lab(f'B_sk{lc[0]}')
    a('s_mov_b64 exec, -1')
    a('v_lshrrev_b32 v13, 3, v1')
    a('v_lshlrev_b32 v13, 1, v13')
    a(f'v_mov_b32 v14, {L_WORK}')
    a('v_mov_b32 v15, 1')
    a('v_xor_b32 v46, v46, v9')
    a('v_lshlrev_b32 v45, 7, v8')
    a(f'v_add_u32 v45, {L_X}, v45')
    for ks in range(4):
        a(f'v_xor_b32 v47, {2*ks}, v46')
        a(f'v_lshl_add_u32 v{92+ks}, v47, 4, v45')
    a(f's_add_u32 s68, s41, {L_WU}')
    a('v_add_u32 v47, s68, v11')
    a('s_waitcnt lgkmcnt(0)')
    a('s_barrier')
    stamp(a, 2)
    a('s_cmp_lg_u32 s86, 0')
    a('s_cbranch_scc1 B_now3')
    a('v_lshlrev_b32 v46, 1, v2')
    a(f'v_add_u32 v46, {L_W3}, v46')
    a('ds_read_b128 v[68:71], v46')
    a('ds_read_b128 v[72:75], v46 offset:16')
    a('s_cmp_lt_u32 s3, 8')
    a('s_cbranch_scc1 B_now3')
    a('s_mov_b32 s86, 1')
    for ks in range(4):
        a(f'ds_read_b128 {q4(76+4*ks)}, v{92+ks}')
        a(f'ds_read_b128 {q4(48+4*ks)}, v47 offset:{1024*ks}')
    a(f's_movk_i32 s68, {RS}')
    a('v_mul_u32_u24 v45, s68, v8')
    a('v_lshl_add_u32 v45, v9, 6, v45')
    a('s_lshl_b32 s68, s34, 5')
    a('v_add_u32 v45, s68, v45')
    a(f'v_mov_b32 v46, {NB}')
    a('v_cmp_gt_u32 s[74:75], v46, v8')
    for ks in range(4):
        c = '0' if ks == 0 else 'v[16:31]'
        a(f's_waitcnt lgkmcnt({6-2*ks})')
        a(f'v_mfma_f32_32x32x16_bf16 v[16:31], {q4(48+4*ks)}, {q4(76+4*ks)}, {c}')
    a('s_nop 11')
    for r in range(0, 16, 2):
        a(f'v_pk_mul_f32 {pr(16+r)}, {pr(16+r)}, s[94:95]')
    a('s_mov_b64 exec, s[74:75]')
    for o in range(2):
        a(f'ds_write_b128 v45, {q4(16+8*o)} offset:{L_Q+16*o}')
        a(f'ds_write_b128 v45, {q4(20+8*o)} offset:{L_Q+128+16*o}')
    a('v_max_f32 v46, |v16|, |v17|')
    for r in range(2, 16, 2):
        a(f'v_max3_f32 v46, v46, |v{16+r}|, |v{17+r}|')
    a(f'v_cmp_lt_f32 vcc, {hex(f32(LIM_Q))}, v46')
    a('s_mov_b64 exec, -1')
    a(f'v_mov_b32 v46, {L_FLAG}')
    a('v_mov_b32 v47, 1')
    a('s_cbranch_vccz B_lsd')
    a('ds_write_b32 v46, v47')
    a('s_branch B_lsd')
    a.lab('B_now3')
    a('s_mov_b32 s86, 1')
    a('s_cmp_ge_u32 s3, 8')
    a('s_cbranch_scc1 B_lsd')
    a(f'ds_read_b128 v[16:19], v11 offset:{L_CNT}')
    a('v_lshlrev_b32 v20, 10, v1')
    a('v_add_u32 v21, 512, v20')
    a('s_lshl_b32 s51, s3, 6')
    a('v_add_u32 v28, s51, v20')
    a('v_add_u32 v29, s51, v21')
    a('s_add_u32 s51, s51, 64')
    a(f'v_mov_b32 v24, {L_F8C}')
    a('s_waitcnt lgkmcnt(0)')
    a('v_cmp_le_u32 s[68:69], s51, v16')
    a('v_cmp_le_u32 s[70:71], s51, v18')
    a('s_bcnt1_i32_b64 s72, s[68:69]')
    a('s_bcnt1_i32_b64 s73, s[70:71]')
    a('s_add_u32 s73, s73, s72')
    a('v_mov_b32 v25, s73')
    a('s_mov_b64 exec, 1')
    a('ds_add_rtn_u32 v26, v24, v25')
    a('s_mov_b64 exec, -1')
    a('v_mbcnt_lo_u32_b32 v22, s68, 0')
    a('v_mbcnt_hi_u32_b32 v22, s69, v22')
    a('v_mbcnt_lo_u32_b32 v23, s70, 0')
    a('v_mbcnt_hi_u32_b32 v23, s71, v23')
    a('v_add_u32 v23, s72, v23')
    a('s_waitcnt lgkmcnt(0)')
    a('v_readfirstlane_b32 s72, v26')
    a('s_nop 1')
    a('v_add_lshl_u32 v22, v22, s72, 1')
    a('v_add_lshl_u32 v23, v23, s72, 1')
    a('s_mov_b64 exec, s[68:69]')
    a(f'ds_write_b16 v22, v28 offset:{L_L8}')
    a('s_mov_b64 exec, s[70:71]')
    a(f'ds_write_b16 v23, v29 offset:{L_L8}')
    a('s_mov_b64 exec, -1')
    a('s_cmp_ge_u32 s3, 4')
    a('s_cbranch_scc1 B_lsd')
    a.lab('B_cls')
    a('s_waitcnt lgkmcnt(0)')
    for k in range(2):
        a(f'v_bfe_u32 v{82+k}, v{16+2*k}, 5, 1')
        a(f'v_bfe_u32 v{84+k}, v{16+2*k}, 3, 2')
    msk = [(52, 54), (56, 58), (60, 62), (64, 66)]
    for k in range(2):
        a(f'v_cmp_ne_u32 s[{msk[0][k]}:{msk[0][k]+1}], 0, v{82+k}')
        for c in range(1, 4):
            a(f'v_cmp_eq_u32 s[{msk[c][k]}:{msk[c][k]+1}], {4-c}, v{84+k}')
    a('v_max_u32 v86, v16, v18')
    a('v_cmp_lt_u32 vcc, 512, v86')
    a('s_mov_b32 s72, 0')
    a('s_mov_b32 s73, 0')
    for c in range(4):
        a(f's_cmp_eq_u32 s3, {c}')
        a(f's_cselect_b64 s[68:69], s[{msk[c][0]}:{msk[c][0]+1}], s[68:69]')
        a(f's_cselect_b64 s[70:71], s[{msk[c][1]}:{msk[c][1]+1}], s[70:71]')
        a('s_cselect_b32 s74, s72, s74')
        a(f's_bcnt1_i32_b64 s75, s[{msk[c][0]}:{msk[c][0]+1}]')
        a(f's_bcnt1_i32_b64 s76, s[{msk[c][1]}:{msk[c][1]+1}]')
        a('s_add_u32 s75, s75, s76')
        a('s_add_u32 s75, s75, 7')
        a('s_lshr_b32 s75, s75, 3')
        a('s_add_u32 s72, s72, s75')
        a(f's_lshl_b32 s75, s72, {8*c}')
        a('s_or_b32 s73, s73, s75')
    a('s_cmp_eq_u32 s3, 0')
    a('s_cselect_b32 s51, 63, 31')
    a('s_not_b32 s51, s51')
    a('s_lshl_b32 s74, s74, 3')
    a('s_bcnt1_i32_b64 s75, s[68:69]')
    a('s_add_u32 s75, s75, s74')
    a('v_and_b32 v16, s51, v16')
    a('v_and_b32 v18, s51, v18')
    a('v_add_u32 v20, v20, v16')
    a('v_add_u32 v21, v21, v18')
    a('v_mbcnt_lo_u32_b32 v82, s68, 0')
    a('v_mbcnt_hi_u32_b32 v82, s69, v82')
    a('v_mbcnt_lo_u32_b32 v83, s70, 0')
    a('v_mbcnt_hi_u32_b32 v83, s71, v83')
    a('v_add_lshl_u32 v82, v82, s74, 1')
    a('v_add_lshl_u32 v83, v83, s75, 1')
    a('s_mov_b64 exec, s[68:69]')
    a(f'ds_write_b16 v82, v20 offset:{L_L2}')
    a('s_mov_b64 exec, s[70:71]')
    a(f'ds_write_b16 v83, v21 offset:{L_L2}')
    a('s_mov_b64 exec, 1')
    a('s_cmp_lg_u64 vcc, 0')
    a('s_cselect_b32 s73, -1, s73')
    a(f'v_mov_b32 v84, {L_TOT}')
    a('v_mov_b32 v85, s73')
    a('ds_write_b32 v84, v85')
    a('s_mov_b64 exec, -1')
    a.lab('B_lsd')
    a('s_waitcnt lgkmcnt(0)')
    a('s_barrier')
    stamp(a, 3)
    stampc(a, 8)
    a('s_cmp_lg_u32 s85, -1')
    a('s_cbranch_scc0 B_nowu')
    a('s_mov_b32 s85, -1')
    a('s_bfe_u32 s51, s3, 0x20002')
    a('s_cmp_lg_u32 s51, 1')
    a('s_cbranch_scc1 B_nowu')
    a('s_and_b32 s51, s3, 3')
    a('s_lshl_b32 s51, s51, 11')
    a(f's_add_u32 m0, s51, {L_WU}')
    a('s_add_u32 s51, s51, 16384')
    a('buffer_load_dwordx4 v11, s[20:23], s51 offen lds')
    a('buffer_load_dwordx4 v11, s[20:23], s51 offen offset:1024 lds')
    a.lab('B_nowu')
    if DEBUG:
        for i_ in range(44, 60): a(f'v_writelane_b32 v65, 0, {i_}')
    RAW = 32; Q = 48; RCS = [56, 112]; IDX = 64; AGC = 66; AGN = 67; Z = 76; T = 16; T2 = 24; TMP = 108; NN = 120; DD = 4; EN = 111
    cnt = [0]
    def rd(st, off=0):
        a(f'ds_read_b128 {q4(RCS[st])}, v{EN} offset:{L_REC+off}')
        a(f'ds_read_b128 {q4(RCS[st]+4)}, v{EN} offset:{L_REC+off+16}')
    def ent8(sidx):
        a(f's_lshl_b32 s51, s{sidx}, 4')
        a(f'v_add_u32 v{TMP}, s51, v13')
        a(f'ds_read_u16 v{EN}, v{TMP} offset:{L_L8}')
    def ent4(sidx):
        a(f's_sub_u32 s79, s{sidx}, s74')
        a(f's_min_u32 s79, s79, 51')
        a(f's_lshl_b32 s51, s79, 4')
        a(f'v_add_u32 v{TMP}, s51, v13')
        a(f'ds_read_u16 v{EN}, v{TMP} offset:{L_L2}')
    def ent_any(sidx):
        n = cnt[0]; cnt[0] += 1
        a(f's_cmp_ge_u32 s{sidx}, s74')
        a(f's_cbranch_scc1 B_rrP{n}')
        ent8(sidx)
        a(f's_branch B_rrX{n}')
        a.lab(f'B_rrP{n}')
        ent4(sidx)
        a.lab(f'B_rrX{n}')
    def gather(st, k):
        a(f'v_mad_u32_u16 v{TMP+(k&1)}, v{RCS[st]+2*k+1}, s42, v2')
        a(f'buffer_load_dwordx4 {q4(RAW+4*k)}, v{TMP+(k&1)}, s[12:15], 0 offen')
    def qread(st):
        RC = RCS[st]
        a(f'v_mad_u32_u16 v{TMP+2}, v{RC+1}, 36, v2 op_sel:[1,0,0,0]')
        a(f'ds_read_b128 {q4(Q)}, v{TMP+2} offset:{L_Q}')
        a(f'ds_read_b128 {q4(Q+4)}, v{TMP+2} offset:{L_Q+128}')
        a(f'v_mad_u32_u16 v{AGN}, v{RC+1}, s84, v3 op_sel:[1,0,0,0]')
    def grab():
        a('s_mov_b64 exec, 1')
        a(f'ds_add_rtn_u32 v{IDX}, v14, v15')
        a('s_mov_b64 exec, -1')
    def cops(st):
        for k in range(4):
            for p in range(4):
                a(f'v_pk_fma_f32 {pr(Z+8*k+2*p)}, {pr(RCS[st]+2*k)}, {pr(68+2*p)}, {pr(Q+2*p)} op_sel_hi:[0,1,1]')
    def zadd(k, nst):
        R = RAW+4*k; Zk = Z+8*k
        a('s_waitcnt vmcnt(3)')
        for i in range(4):
            a(f'v_dot2_f32_bf16 v{Zk+4+i}, v{R+i}, s46, v{Zk+4+i}')
        a(f'v_pk_add_f32 {pr(Zk)}, {pr(R)}, {pr(Zk)}')
        a(f'v_pk_add_f32 {pr(Zk+2)}, {pr(R+2)}, {pr(Zk+2)}')
        gather(nst, k)
    def upd(k, first, nsrc):
        Zk = Z+8*k
        if first:
            for i in range(8): a(f'v_exp_f32 v{DD+i}, v{Zk+i}')
            for p in range(4): a(f'v_pk_add_f32 {pr(DD+2*p)}, {pr(DD+2*p)}, s[44:45]')
            return
        for i in range(8): a(f'v_exp_f32 v{T+i}, v{Zk+i}')
        for p in range(4): a(f'v_pk_fma_f32 {pr(Zk+2*p)}, {pr(Zk+2*p)}, {pr(DD+2*p)}, {pr(nsrc+2*p)}')
        for p in range(4): a(f'v_pk_fma_f32 {pr(NN+2*p)}, {pr(nsrc+2*p)}, {pr(T+2*p)}, {pr(Zk+2*p)}')
        for p in range(4): a(f'v_pk_fma_f32 {pr(DD+2*p)}, {pr(DD+2*p)}, {pr(T+2*p)}, {pr(DD+2*p)}')
    def updp(k, first):
        Zk = Z+8*k
        for i in range(8): a(f'v_exp_f32 v{T+i}, v{Zk+i}')
        for p in range(4): a(f'v_pk_add_f32 {pr(T+2*p)}, {pr(T+2*p)}, s[44:45]')
        for i in range(8): a(f'v_rcp_f32 v{T+i}, v{T+i}')
        for p in range(4):
            if first: a(f'v_pk_mul_f32 {pr(NN+2*p)}, {pr(Zk+2*p)}, {pr(T+2*p)}')
            else: a(f'v_pk_fma_f32 {pr(NN+2*p)}, {pr(Zk+2*p)}, {pr(T+2*p)}, {pr(NN+2*p)}')
    def flush(src):
        dd = [T, T+2, T+4, T+6, T2, T2+2, T2+4, T2+6]
        for i in range(8): a(f'v_cvt_f64_f32 {pr(dd[i])}, v{src+i}')
        for i in range(8): a(f'ds_add_f64 v{AGC}, {pr(dd[i])} offset:{64*i}')
    def finish(nsrc):
        for i in range(8): a(f'v_rcp_f32 v{DD+i}, v{DD+i}')
        for p in range(4): a(f'v_pk_mul_f32 {pr(DD+2*p)}, {pr(nsrc+2*p)}, {pr(DD+2*p)}')
        flush(DD)
    pc = [0]
    def prio(inc):
        if DEBUG:
            a('s_memrealtime s[92:93]')
            a('s_add_u32 m0, s83, 44')
            a('s_waitcnt lgkmcnt(0)')
            a('v_writelane_b32 v65, s92, m0')
        a(f's_add_u32 s83, s83, {inc}')
        if not PRIO: return
        n = pc[0]; pc[0] += 1
        a(f's_cmp_lt_u32 s83, {PT[0]}')
        a(f's_cbranch_scc1 B_pr{n}')
        a('s_setprio 2')
        a(f's_cmp_lt_u32 s83, {PT[1]}')
        a(f's_cbranch_scc1 B_pr{n}')
        a('s_setprio 1')
        a(f's_cmp_lt_u32 s83, {PT[2]}')
        a(f's_cbranch_scc1 B_pr{n}')
        a('s_setprio 0')
        a.lab(f'B_pr{n}')
    a(f'v_mov_b32 v24, {L_MAX}')
    a('ds_read_b128 v[16:19], v24')
    a('s_mov_b32 s76, s3')
    a('s_add_u32 s77, s3, 16')
    ent8(76)
    grab()
    a('s_mov_b32 s83, 0')
    if PRIO: a('s_setprio 3')
    a('s_waitcnt lgkmcnt(0)')
    rd(0); rd(1, 32)
    a('v_readfirstlane_b32 s70, v19')
    a('v_readfirstlane_b32 s74, v18')
    a('v_readfirstlane_b32 s71, v16')
    a('v_readfirstlane_b32 s91, v17')
    a('s_cmp_lg_u32 s70, -1')
    a('s_cbranch_scc1 B_capok')
    a('s_mov_b32 s87, 0')
    a('s_setprio 0')
    a('s_waitcnt lgkmcnt(0)')
    a('s_barrier')
    a('s_branch B_batch')
    a.lab('B_capok')
    a('s_or_b32 s90, s90, s91')
    if FORCE_PLAIN: a('s_mov_b32 s90, 1')
    a('s_add_u32 s74, s74, 7')
    a('s_lshr_b32 s74, s74, 3')
    a('s_and_b32 s72, s70, 0xff')
    a('s_add_u32 s72, s72, s74')
    a('s_bfe_u32 s73, s70, 0x80008')
    a('s_add_u32 s73, s73, s74')
    a('s_bfe_u32 s82, s70, 0x80010')
    a('s_add_u32 s82, s82, s74')
    a('s_lshr_b32 s75, s70, 24')
    a('s_add_u32 s75, s75, s74')
    a('s_cmp_ge_u32 s76, s75')
    a('s_cbranch_scc1 B_loop_end')
    a('s_cmp_ge_u32 s76, s74')
    a('s_cbranch_scc1 B_pre4')
    a('s_waitcnt lgkmcnt(0)')
    for k in range(4): gather(0, k)
    qread(0)
    ent_any(77)
    a('s_waitcnt lgkmcnt(0)')
    a('s_cmp_lg_u32 s90, 0')
    a('s_cbranch_scc1 B_loop8p')
    for mode in ('', 'p'):
        a.lab(f'B_loop8{mode}')
        a('s_waitcnt lgkmcnt(8)')
        a(f'v_mov_b32 v{AGC}, v{AGN}')
        a(f'v_readfirstlane_b32 s78, v{IDX}')
        cops(0)
        rd(0)
        a('s_add_u32 s78, s78, 32')
        for k in range(4):
            zadd(k, 1)
            if mode: updp(k, k == 0)
            else: upd(k, k == 0, Z if k == 1 else NN)
        cops(1)
        a('s_waitcnt lgkmcnt(0)')
        qread(0)
        a('s_cmp_ge_u32 s77, s74')
        a(f's_cbranch_scc1 B_tr8{mode}')
        rd(1, 32)
        ent_any(78)
        a(f's_branch B_tr8x{mode}')
        a.lab(f'B_tr8{mode}')
        ent4(78)
        a('s_waitcnt lgkmcnt(0)')
        rd(1)
        a.lab(f'B_tr8x{mode}')
        grab()
        for k in range(4):
            zadd(k, 0)
            if mode: updp(k, False)
            else: upd(k, False, NN)
        if mode: flush(NN)
        else: finish(NN)
        prio(2)
        a('s_mov_b32 s76, s77')
        a('s_mov_b32 s77, s78')
        a('s_cmp_lt_u32 s76, s74')
        a(f's_cbranch_scc1 B_loop8{mode}')
        a('s_cmp_lt_u32 s76, s75')
        a(f's_cbranch_scc1 B_loop0{mode}')
        a('s_branch B_loop_end')
    a.lab('B_pre4')
    a('s_waitcnt lgkmcnt(0)')
    ent4(76)
    a('s_waitcnt lgkmcnt(0)')
    rd(0)
    ent4(77)
    a('s_waitcnt lgkmcnt(0)')
    for k in range(4): gather(0, k)
    qread(0)
    rd(1)
    a('s_waitcnt lgkmcnt(0)')
    a('s_cmp_lg_u32 s90, 0')
    a('s_cbranch_scc1 B_loop0p')
    lim = [82, 73, 72]
    for mode in ('', 'p'):
        for st in range(2):
            L = f'{st}{mode}'
            a.lab(f'B_loop{L}')
            a('s_waitcnt lgkmcnt(8)')
            a(f'v_mov_b32 v{AGC}, v{AGN}')
            a(f'v_readfirstlane_b32 s78, v{IDX}')
            a('s_nop 0')
            a('s_add_u32 s78, s78, 32')
            ent4(78)
            cops(st)
            qread(1-st)
            a('s_waitcnt lgkmcnt(2)')
            rd(st)
            grab()
            for k in range(4):
                zadd(k, 1-st)
                if mode: updp(k, k == 0)
                else: upd(k, k == 0, Z if k == 1 else NN)
                if k < 3:
                    a(f's_cmp_ge_u32 s76, s{lim[k]}')
                    a(f's_cbranch_scc1 B_ex{k}_{L}')
            a.lab(f'B_fin_{L}')
            if mode: flush(NN)
            else: finish(NN)
            a.lab(f'B_nx_{L}')
            prio(1)
            a('s_mov_b32 s76, s77')
            a('s_mov_b32 s77, s78')
            a('s_cmp_ge_u32 s76, s75')
            a('s_cbranch_scc1 B_loop_end')
            if st == 1: a(f's_branch B_loop0{mode}')
        for st in range(2):
            L = f'{st}{mode}'
            for k in range(3):
                a.lab(f'B_ex{k}_{L}')
                for kk in range(k+1, 4): gather(1-st, kk)
                if k == 0 and not mode:
                    finish(Z)
                    a(f's_branch B_nx_{L}')
                else:
                    a(f's_branch B_fin_{L}')
    a.lab('B_loop_end')
    stamp(a, 4)
    a('s_waitcnt vmcnt(0) lgkmcnt(0)')
    a('v_lshlrev_b32 v11, 4, v1')
    a('v_and_b32 v8, 31, v1')
    a('v_add_u32 v8, s38, v8')
    a('v_lshrrev_b32 v9, 5, v1')
    a('s_cmp_ge_u32 s3, 8')
    a('s_cbranch_scc1 B_join')
    WX = [100, 104, 108, 4]
    a('s_add_u32 s39, s41, 8192')
    for ks in range(4):
        a(f'buffer_load_dwordx4 {q4(WX[ks])}, v11, s[20:23], s39 offen offset:{1024*ks}')
    a(f's_add_u32 s39, s41, {L_WU}')
    a('v_add_u32 v98, s39, v11')
    a('v_and_b32 v13, 7, v1')
    a('v_xor_b32 v13, v13, v9')
    a('v_lshlrev_b32 v14, 7, v8')
    a(f'v_add_u32 v14, {L_X}, v14')
    for ks in range(4):
        a(f'v_xor_b32 v15, {2*ks}, v13')
        a(f'v_lshl_add_u32 v{92+ks}, v15, 4, v14')
        a(f'ds_read_b128 {q4(16+4*ks)}, v{92+ks}')
    a('s_waitcnt vmcnt(0) lgkmcnt(0)')
    for ks in range(4):
        c = '0' if ks == 0 else 'v[112:127]'
        a(f'v_mfma_f32_32x32x16_bf16 v[112:127], {q4(WX[ks])}, {q4(16+4*ks)}, {c}')
    a.lab('B_join')
    a('v_lshrrev_b32 v12, 3, v0')
    a(f's_movk_i32 s51, {2*RS}')
    a('v_mul_u32_u24 v96, s51, v12')
    a('v_add_u32 v96, v96, v2')
    a(f'v_add_u32 v96, {L_AGG}, v96')
    a('v_and_b32 v97, 7, v12')
    a('v_lshlrev_b32 v97, 4, v97')
    a('v_xor_b32 v97, v97, v2')
    a('v_lshl_add_u32 v97, v12, 7, v97')
    a('s_setprio 0')
    a('s_waitcnt lgkmcnt(0)')
    a('s_barrier')
    stamp(a, 5)
    stampc(a, 40)
    a('s_cmp_eq_u32 s87, -1')
    a('s_cbranch_scc1 B_nb')
    a('s_add_u32 s87, s87, 1')
    a('s_cmp_lt_u32 s87, 128')
    a('s_cbranch_scc1 B_again')
    a('s_mov_b32 s87, -1')
    a.lab('B_nb')
    a('s_add_u32 s50, s50, 32')
    a('s_cmp_eq_u32 s71, 0')
    a('s_cbranch_scc1 B_fin')
    a.lab('B_again')
    a('s_waitcnt vmcnt(0)')
    a('v_lshrrev_b32 v4, 3, v0')
    a('v_lshlrev_b32 v12, 10, v4')
    a('buffer_load_dword v6, v12, s[4:7], s32 offen')
    a('buffer_load_dword v7, v12, s[4:7], s33 offen')
    a('s_branch B_batch')
    a.lab('B_fin')
    if DEBUG: a('v_mov_b32 v3, v65')
    a('s_cmp_ge_u32 s3, 13')
    a('s_cbranch_scc1 B_done2')
    for q in range(4):
        a(f'ds_read_b128 {q4(64+4*q)}, v96 offset:{128*q}')
    for q in range(4):
        a(f's_waitcnt lgkmcnt({3-q})')
        a(f'v_cvt_f32_f64 v{80+2*q}, {pr(64+4*q)}')
        a(f'v_cvt_f32_f64 v{81+2*q}, {pr(66+4*q)}')
    for q in range(4):
        a(f'v_pk_mul_f32 {pr(80+2*q)}, {pr(80+2*q)}, s[48:49]')
    for q in range(4):
        a(f'v_cvt_pk_bf16_f32 v{88+q}, v{80+2*q}, v{81+2*q}')
    a(f'ds_write_b128 v97, v[88:91] offset:{L_REC}')
    a('s_cmp_ge_u32 s3, 8')
    a('s_cbranch_scc1 B_b4')
    for ks in range(4):
        a(f'ds_read_b128 {q4(48+4*ks)}, v98 offset:{1024*ks}')
        a(f'v_add_u32 v{92+ks}, {L_REC-L_X}, v{92+ks}')
    a('s_waitcnt lgkmcnt(4)')
    a('s_branch B_b4x')
    a.lab('B_b4')
    a('s_waitcnt lgkmcnt(0)')
    a.lab('B_b4x')
    a('s_barrier')
    stamp(a, 11, 3)
    a('s_cmp_ge_u32 s3, 8')
    a('s_cbranch_scc1 B_b5')
    for ks in range(4):
        a(f'ds_read_b128 {q4(32+4*ks)}, v{92+ks}')
    a('s_movk_i32 s51, 272')
    a('v_mul_u32_u24 v17, s51, v8')
    a('v_lshl_add_u32 v17, v9, 6, v17')
    a('s_lshl_b32 s51, s34, 7')
    a(f's_add_u32 s51, s51, {L_AGG}')
    a('v_add_u32 v17, s51, v17')
    for ks in range(4):
        a(f's_waitcnt lgkmcnt({3-ks})')
        a(f'v_mfma_f32_32x32x16_bf16 v[112:127], {q4(48+4*ks)}, {q4(32+4*ks)}, v[112:127]')
    a('s_nop 11')
    for q in range(4):
        a(f'ds_write_b128 v17, {q4(112+4*q)} offset:{16*q}')
    a.lab('B_b5')
    a('s_movk_i32 s51, 272')
    a('v_mul_u32_u24 v18, s51, v12')
    a('v_lshl_add_u32 v18, v2, 1, v18')
    a(f'v_add_u32 v18, {L_AGG}, v18')
    a('v_lshlrev_b32 v19, 4, v0')
    a('s_lshl_b32 s51, s37, 7')
    a(f'v_cmp_gt_u32 vcc, {NB*8}, v0')
    a('s_mov_b32 s52, s47')
    a('s_mov_b32 s53, s47')
    a('s_waitcnt lgkmcnt(0)')
    a('s_barrier')
    stamp(a, 12, 3)
    a('ds_read_b128 v[32:35], v18')
    a('ds_read_b128 v[36:39], v18 offset:16')
    a('s_waitcnt lgkmcnt(0)')
    for r in range(0, 8, 2): a(f'v_pk_mul_f32 {pr(64+r)}, {pr(32+r)}, s[52:53]')
    for r in range(8): a(f'v_exp_f32 v{64+r}, v{64+r}')
    for r in range(0, 8, 2): a(f'v_pk_add_f32 {pr(64+r)}, {pr(64+r)}, s[44:45]')
    for r in range(8): a(f'v_rcp_f32 v{64+r}, v{64+r}')
    for r in range(0, 8, 2): a(f'v_pk_mul_f32 {pr(64+r)}, {pr(64+r)}, {pr(32+r)}')
    for r in range(0, 8, 2): a(f'v_cvt_pk_bf16_f32 v{40+r//2}, v{64+r}, v{65+r}')
    stamp(a, 13, 3)
    a('s_and_b64 exec, exec, vcc')
    a(f'buffer_store_dwordx4 v[40:43], v19, s[24:27], s51 offen {ST_O}')
    a.lab('B_done2')
    stamp_out(a, 1, 88, 3)
    a.lab('B_done')
    a('s_endpgm')

def kd(a, name, vgpr, sgpr):
    a.raw('.p2align 6')
    a.raw(f'.amdhsa_kernel {name}')
    a.raw(f'  .amdhsa_next_free_vgpr {vgpr}')
    a.raw(f'  .amdhsa_next_free_sgpr {sgpr}')
    a.raw(f'  .amdhsa_accum_offset {(vgpr+3)//4*4}')
    a.raw('  .amdhsa_group_segment_fixed_size 0')
    a.raw('  .amdhsa_kernarg_size 72')
    a.raw('  .amdhsa_user_sgpr_count 2')
    a.raw('  .amdhsa_user_sgpr_kernarg_segment_ptr 1')
    a.raw('  .amdhsa_system_sgpr_workgroup_id_x 1')
    a.raw('.end_amdhsa_kernel')

def main():
    ref = open('gather_scatter__mpnn_edge_mlp__graph.s.ref').read().splitlines()
    hdr = [l for l in ref if l.startswith(';') and '@launch' not in l and 'Override' not in l and 'grid=ceil' not in l]
    a = A()
    for l in hdr: a.raw(l)
    a.raw(f'; @launch kernel=mpnn_bin_kernel grid=({A_GRID},1,1) block=({A_BLOCK},1,1) lds={A_LDS}')
    a.raw(f'; @launch kernel=mpnn_main_kernel grid=({NBK},1,1) block=(1024,1,1) lds={B_LDS}')
    a.raw('.amdgcn_target "amdgcn-amd-amdhsa--gfx950"')
    a.raw('.text')
    kernel_a(a)
    kernel_b(a)
    a.raw('.section .rodata,"a"')
    kd(a, 'mpnn_bin_kernel', 128, 100)
    kd(a, 'mpnn_main_kernel', 128, 100)
    out = sys.argv[1] if len(sys.argv) > 1 else 'gather_scatter__mpnn_edge_mlp__graph.s'
    open(out, 'w').write('\n'.join(a.l) + '\n')

main()
```

```python
import sys, struct, os
DEBUG = int(os.environ.get('DEBUG', '0'))
PRIO = int(os.environ.get('PRIO', '1'))
XMAP = int(os.environ.get('XMAP', '1'))
PREF = int(os.environ.get('PREF', '0'))
CPF = int(os.environ.get('CPF', '0'))
TLBW = int(os.environ.get('TLBW', '0'))
ST_O = os.environ.get('ST_O', 'sc0 sc1')
LATESRC = int(os.environ.get('LATESRC', '1'))
TOUCH = int(os.environ.get('TOUCH', '4'))
PT = [int(x) for x in os.environ.get('PT', '2,6,7').split(',')]
GFIRST = int(os.environ.get('GFIRST', '1'))
FORCE_PLAIN = int(os.environ.get('FORCE_PLAIN', '0'))

N = 25000; E = 800000
NB = 98
NBK = 256
CH = 3200
NCH = 250
WS_REC = 0
WS_TAB = 0x700000
WS_PF  = 0x780000
WS_PT  = 0x800000
WS_WF  = 0x7C0000
REC_BYTES = NCH*CH*8
TAB_BYTES = NCH*NBK*4
PF_BYTES  = 1000*4
PT_BYTES  = (N+1)*128
WF_BYTES  = 3*8192 + 512
WF_W3 = 3*8192
LOG2E = 1.4426950408889634
LN2 = 0.6931471805599453
LIM_P = 3.0; LIM_Q = 3.0; LIM_E_BF16 = 0x4040; LIM_W = 3.0
def f32(x): return struct.unpack('<I', struct.pack('<f', x))[0]

class A:
    def __init__(s): s.l = []
    def __call__(s, t): s.l.append('    ' + t)
    def lab(s, t): s.l.append(t + ':')
    def raw(s, t): s.l.append(t)

def srd(a, d, base, off, nbytes):
    if off:
        a(f's_add_u32 s{d}, s{base}, {hex(off)}')
        a(f's_addc_u32 s{d+1}, s{base+1}, 0')
    else:
        a(f's_mov_b32 s{d}, s{base}')
        a(f's_mov_b32 s{d+1}, s{base+1}')
    a(f's_mov_b32 s{d+2}, {hex(nbytes)}')
    a(f's_mov_b32 s{d+3}, 0x00020000')

PROF_OFF = 0x4000000
def stamp(a, i, vr=65, sr=92):
    if not DEBUG: return
    a(f's_memrealtime s[{sr}:{sr+1}]')
    a('s_waitcnt lgkmcnt(0)')
    a(f'v_writelane_b32 v{vr}, s{sr}, {i}')
def stampc(a, i, vr=65, sr=92):
    if not DEBUG: return
    a(f's_memtime s[{sr}:{sr+1}]')
    a('s_waitcnt lgkmcnt(0)')
    a(f'v_writelane_b32 v{vr}, s{sr}, {i}')
UN = [0]
def stamp_out(a, kern, wsreg, vr=65, sr=92, tmp=6):
    if not DEBUG: return
    UN[0] += 1; u = UN[0]
    a('s_waitcnt vmcnt(0)')
    stamp(a, 15, vr, sr)
    a('s_mov_b64 exec, -1')
    a('s_cmp_lg_u32 s3, 0')
    a(f's_cbranch_scc1 SO_done{u}')
    a(f's_load_dwordx2 s[96:97], s[0:1], {56 if kern == 1 else 64}')
    a('s_waitcnt lgkmcnt(0)')
    if kern == 0:
        a(f's_add_u32 s96, s96, {hex(PROF_OFF)}')
        a('s_addc_u32 s97, s97, 0')
    a('s_mov_b32 s98, 256')
    a('s_mov_b32 s99, 0x00020000')
    if kern == 0:
        sel = [(0, 0), (499, 8)]; lanes = [8, 15]
    else:
        sel = [(0, 16), (131, 40)]; lanes = [0, 1, 2, 3, 5, 15]
    for wg, off in sel:
        a(f's_cmp_lg_u32 s2, {wg}')
        a(f's_cbranch_scc1 SO_n{u}_{wg}')
        for i, l in enumerate(lanes):
            a(f'v_readlane_b32 s{sr}, v{vr}, {l}')
            a('s_nop 3')
            a(f'v_mov_b32 v{tmp}, s{sr}')
            a(f'v_mov_b32 v{tmp+1}, {off+4*i}')
            a(f'buffer_store_dword v{tmp}, v{tmp+1}, s[96:99], 0 offen')
            a('s_waitcnt vmcnt(0)')
        if kern == 1 and wg == 0:
            a(f's_add_u32 s4, s88, {hex(PROF_OFF)}')
            a('s_addc_u32 s5, s89, 0')
            a('s_mov_b32 s6, 256')
            a('s_mov_b32 s7, 0x00020000')
            a('v_mov_b32 v20, 0')
            a('buffer_load_dwordx4 v[16:19], v20, s[4:7], 0 offen')
            a('s_waitcnt vmcnt(0)')
            a('buffer_store_dwordx4 v[16:19], v20, s[96:99], 0 offen')
        a.lab(f'SO_n{u}_{wg}')
    a.lab(f'SO_done{u}')

def wave_scan(a, v):
    for sh in (1, 2, 4, 8):
        a('s_nop 1')
        a(f'v_add_u32_dpp v{v}, v{v}, v{v} row_shr:{sh} row_mask:0xf bank_mask:0xf bound_ctrl:0')
    a('s_nop 1')
    a(f'v_add_u32_dpp v{v}, v{v}, v{v} row_bcast:15 row_mask:0xa bank_mask:0xf')
    a('s_nop 1')
    a(f'v_add_u32_dpp v{v}, v{v}, v{v} row_bcast:31 row_mask:0xc bank_mask:0xf')

def pr(r): return f'v[{r}:{r+1}]'
def q4(r): return f'v[{r}:{r+3}]'

A_GEMM0 = NCH
A_PREP0 = NCH + 250
A_GRID = A_PREP0 + 4
A_BLOCK = 448
A_XT = 0
A_W1 = 4*4096
A_LDS = 2112 + CH*8
A_STAGE = 2048 + 64
A_EFLAG = 2048
ST_A = os.environ.get('ST_A', 'sc0 sc1')

def kernel_a(a):
    a.raw('.globl mpnn_bin_kernel')
    a.raw('.p2align 8')
    a.raw('.type mpnn_bin_kernel,@function')
    a.lab('mpnn_bin_kernel')
    if DEBUG:
        a('s_memrealtime s[94:95]')
        a('s_getreg_b32 s62, hwreg(HW_REG_HW_ID)')
        a('s_getreg_b32 s63, hwreg(HW_REG_XCC_ID)')
    a('s_load_dwordx16 s[4:19], s[0:1], 0')
    a('s_load_dwordx2 s[20:21], s[0:1], 64')
    if CPF:
        a('s_getpc_b64 s[60:61]')
        a.lab('A_pc')
        a('v_lshlrev_b32 v100, 4, v0')
        a('v_add_u32 v101, 7168, v100')
        a('v_min_u32 v101, code_end-A_pc-16, v101')
        a('v_min_u32 v100, code_end-A_pc-16, v100')
        a('global_load_dwordx4 v[104:107], v100, s[60:61]')
        a('global_load_dwordx4 v[108:111], v101, s[60:61]')
    a(f's_cmp_ge_u32 s2, {A_GRID}')
    a('s_cbranch_scc1 A_done')
    a('v_lshrrev_b32 v1, 6, v0')
    a('v_lshlrev_b32 v3, 4, v0')
    a('v_readfirstlane_b32 s3, v1')
    a('v_and_b32 v1, 63, v0')
    a(f's_cmp_ge_u32 s2, {A_PREP0}')
    a('s_cbranch_scc1 A_prep')
    if GFIRST:
        a(f's_add_u32 s22, s2, {NCH}')
        a(f's_sub_u32 s23, s2, {NCH}')
        a(f's_cmp_lt_u32 s2, {NCH}')
        a('s_cselect_b32 s2, s22, s23')
    a(f's_cmp_ge_u32 s2, {A_GEMM0}')
    a('s_cbranch_scc1 A_gemm')
    a('v_cmp_gt_u32 vcc, 400, v0')
    a('s_and_b64 exec, exec, vcc')
    a('v_lshlrev_b32 v2, 3, v0')
    a(f's_mul_i32 s44, s2, {CH*4}')
    a(f's_mul_i32 s45, s2, {CH*2}')
    a(f's_add_u32 s50, s44, {CH*2}')
    a(f's_add_u32 s51, s45, {CH}')
    a('s_waitcnt lgkmcnt(0)')
    srd(a, 24, 10, 0, E*4)
    a('buffer_load_dwordx4 v[8:11], v3, s[24:27], s44 offen')
    a('buffer_load_dwordx4 v[12:15], v3, s[24:27], s50 offen')
    srd(a, 28, 8, 0, E*4)
    srd(a, 32, 6, 0, E*2)
    def srcloads():
        a('buffer_load_dwordx4 v[16:19], v3, s[28:31], s44 offen')
        a('buffer_load_dwordx4 v[20:23], v3, s[28:31], s50 offen')
        a('buffer_load_dwordx2 v[24:25], v2, s[32:35], s45 offen')
        a('buffer_load_dwordx2 v[26:27], v2, s[32:35], s51 offen')
    if not LATESRC: srcloads()
    stamp(a, 0, 70)
    if DEBUG:
        a('v_writelane_b32 v70, s94, 8')
        a('v_writelane_b32 v70, s62, 9')
        a('v_writelane_b32 v70, s63, 10')
    a('v_lshlrev_b32 v5, 2, v0')
    a('v_mov_b32 v4, 0')
    a('v_mov_b32 v6, 2048')
    a('v_cmp_gt_u32 vcc, 256, v0')
    a('s_nop 1')
    a('v_cndmask_b32 v5, v6, v5, vcc')
    a('ds_write_b32 v5, v4')
    if TLBW:
        srd(a, 36, 20, 0, 0xC00000)
        a('v_lshlrev_b32 v7, 20, v1')
        a('buffer_load_dword v71, v7, s[36:39], 0 offen')
    srd(a, 36, 20, WS_REC, REC_BYTES)
    srd(a, 40, 20, WS_TAB, TAB_BYTES)
    a('s_mov_b32 s46, 42800')
    a('s_mov_b32 s47, -196')
    a('s_mov_b32 s48, 0xffff0000')
    a('s_mov_b32 s52, 0x7fff7fff')
    a('v_mov_b32 v4, 1')
    a('s_waitcnt lgkmcnt(0)')
    a('s_barrier')
    for hf in range(2):
        if LATESRC:
            a(f's_waitcnt vmcnt({1 if hf == 0 else 4})')
            if hf == 0: srcloads()
        else:
            a(f's_waitcnt vmcnt({5-hf+TLBW})')
        if hf == 0: stamp(a, 1, 70)
        for j in range(4*hf, 4*hf+4):
            a(f'v_mul_u32_u24 v{28+j}, s46, v{8+j}')
            a(f'v_lshrrev_b32 v{28+j}, 22, v{28+j}')
            a(f'v_lshlrev_b32 v{28+j}, 2, v{28+j}')
            a(f'ds_add_rtn_u32 v{56+j}, v{28+j}, v4')
    for j in range(8):
        a(f'v_lshlrev_b32 v{8+j}, 3, v{8+j}')
        a(f'v_mad_i32_i24 v{41+2*j}, v{28+j}, s47, v{8+j}')
    a('s_mov_b64 s[22:23], exec')
    a('s_waitcnt lgkmcnt(0)')
    a('s_barrier')
    stamp(a, 2, 70)
    a('s_mov_b64 exec, -1')
    a('v_lshlrev_b32 v5, 4, v1')
    a('ds_read_b128 v[8:11], v5')
    a('s_waitcnt lgkmcnt(0)')
    a('v_add_u32 v13, v8, v9')
    a('v_add_u32 v14, v13, v10')
    a('v_add_u32 v15, v14, v11')
    a('v_mov_b32 v72, v15')
    wave_scan(a, 72)
    a('v_sub_u32 v12, v72, v15')
    a('v_add_u32 v15, v12, v14')
    a('v_add_u32 v14, v12, v13')
    a('v_add_u32 v13, v12, v8')
    for k in range(4):
        a(f'v_lshlrev_b32 v{72+k}, 3, v{12+k}')
    a('ds_write_b128 v5, v[72:75] offset:1024')
    for k in range(4):
        a(f'v_lshl_or_b32 v{64+k}, v{8+k}, 16, v{12+k}')
    a('s_mov_b64 exec, s[22:23]')
    a('s_waitcnt lgkmcnt(0)')
    for j in range(8):
        a(f'ds_read_b32 v{8+j}, v{28+j} offset:1024')
    a('s_waitcnt vmcnt(0)')
    for j in range(8):
        if j % 2 == 0:
            a(f'v_lshlrev_b32 v{40+2*j}, 16, v{24+j//2}')
        else:
            a(f'v_and_b32 v{40+2*j}, s48, v{24+j//2}')
        a(f'v_lshl_or_b32 v{41+2*j}, v{41+2*j}, 16, v{16+j}')
    for j in range(4):
        a(f'v_and_b32 v{24+j}, s52, v{24+j}')
    a('v_pk_max_u16 v24, v24, v25')
    a('v_pk_max_u16 v26, v26, v27')
    a('v_pk_max_u16 v24, v24, v26')
    a('v_lshrrev_b32 v25, 16, v24')
    a('v_and_b32 v24, 0xffff, v24')
    a('v_max_u32 v24, v24, v25')
    a(f'v_cmp_lt_u32 vcc, {hex(LIM_E_BF16)}, v24')
    a('s_and_saveexec_b64 s[54:55], vcc')
    a('s_cbranch_execz A_eok')
    a('v_mov_b32 v25, 0x80000000')
    a('ds_write_b32 v6, v25')
    a.lab('A_eok')
    a('s_mov_b64 exec, s[54:55]')
    a('s_waitcnt lgkmcnt(0)')
    for j in range(8):
        a(f'v_lshl_add_u32 v{8+j}, v{56+j}, 3, v{8+j}')
    stamp(a, 3, 70)
    for j in range(8):
        a(f'ds_write_b64 v{8+j}, {pr(40+2*j)} offset:{A_STAGE}')
    a('s_waitcnt lgkmcnt(0)')
    a('s_barrier')
    stamp(a, 4, 70)
    a('s_cmp_lg_u32 s3, 6')
    a('s_cbranch_scc1 A_notab')
    a('s_mov_b64 exec, -1')
    a('v_mov_b32 v6, 2048')
    a('ds_read_b32 v7, v6')
    a('s_lshl_b32 s49, s2, 10')
    a('s_waitcnt lgkmcnt(0)')
    for k in range(4):
        a(f'v_or_b32 v{64+k}, v{64+k}, v7')
    a(f'buffer_store_dwordx4 v[64:67], v5, s[40:43], s49 offen {ST_A}')
    a('s_mov_b64 exec, s[22:23]')
    a.lab('A_notab')
    for j in range(4):
        a(f'ds_read_b128 {q4(8+4*j)}, v3 offset:{A_STAGE+6400*j}')
    a(f's_mul_i32 s49, s2, {CH*8}')
    for j in range(4):
        a(f's_waitcnt lgkmcnt({3-j})')
        a(f'buffer_store_dwordx4 {q4(8+4*j)}, v3, s[36:39], s49 offen {ST_A}')
        if j < 3:
            a(f's_add_u32 s49, s49, 6400')
    stamp(a, 5, 70)
    stamp_out(a, 0, 20, 70)
    a('s_endpgm')

    a.lab('A_gemm')
    a(f's_sub_u32 s22, s2, {A_GEMM0}')
    a('s_mul_i32 s48, s22, 12800')
    a('s_add_u32 s49, s48, 12800')
    a('s_lshl_b32 s22, s22, 2')
    a('s_add_u32 s22, s22, s3')
    a('v_and_b32 v2, 31, v1')
    a('v_lshrrev_b32 v3, 5, v1')
    a('v_lshlrev_b32 v4, 2, v2')
    a('v_lshl_add_u32 v7, v3, 9, v4')
    a('v_lshl_add_u32 v4, v3, 10, v4')
    a(f'v_add_u32 v4, {A_W1}, v4')
    a('v_lshlrev_b32 v5, 4, v0')
    a('s_lshl_b32 s23, s3, 12')
    a('s_add_u32 s23, s23, s48')
    a('v_lshlrev_b32 v6, 4, v1')
    a('s_lshl_b32 s42, s3, 12')
    a('v_add_u32 v7, s42, v7')
    a('v_lshrrev_b32 v8, 3, v1')
    a('v_and_b32 v9, 7, v1')
    a('v_xor_b32 v10, v9, v8')
    a('v_lshlrev_b32 v10, 4, v10')
    a('v_lshl_add_u32 v10, v8, 7, v10')
    a('v_add_u32 v10, s42, v10')
    a('v_xor_b32 v9, v9, v3')
    a('v_lshlrev_b32 v8, 7, v2')
    a('v_add_u32 v8, s42, v8')
    for ks in range(4):
        a(f'v_xor_b32 v{11+ks}, {2*ks}, v9')
        a(f'v_lshl_add_u32 v{11+ks}, v{11+ks}, 4, v8')
    a('s_waitcnt lgkmcnt(0)')
    srd(a, 24, 4, 0, N*128)
    a('s_mov_b32 s26, s49')
    srd(a, 28, 12, 0, 64*128)
    a('s_movk_i32 s43, 7168')
    a('buffer_load_dwordx4 v[16:19], v5, s[28:31], 0 offen')
    a('buffer_load_dwordx4 v[20:23], v5, s[28:31], s43 offen')
    for j in range(4):
        a(f'buffer_load_dwordx4 {q4(48+4*j)}, v6, s[24:27], s23 offen offset:{1024*j}')
    stamp(a, 0, 15)
    if DEBUG:
        a('v_writelane_b32 v15, s94, 8')
        a('v_writelane_b32 v15, s62, 9')
        a('v_writelane_b32 v15, s63, 10')
    srd(a, 32, 20, WS_PT, N*128)
    a('s_mov_b32 s34, s49')
    srd(a, 44, 20, WS_PF, PF_BYTES)
    a('s_mov_b32 s36, 0x05040100')
    a('s_mov_b32 s37, 0x07060302')
    a(f's_mov_b32 s38, {hex(f32(-LOG2E))}')
    a('s_mov_b32 s39, 0x7fffffff')
    a('s_mov_b32 s40, 0x7fff0000')
    a(f's_mov_b32 s41, {hex(f32(LIM_P))}')
    a('s_waitcnt vmcnt(4)')
    a(f'ds_write_b128 v5, v[16:19] offset:{A_W1}')
    a('s_cmp_lg_u32 s3, 0')
    a('s_cbranch_scc1 A_w1done')
    a(f'ds_write_b128 v5, v[20:23] offset:{A_W1+7168}')
    a.lab('A_w1done')
    a('s_waitcnt lgkmcnt(0)')
    a('s_barrier')
    a('s_cmp_ge_u32 s3, 4')
    a('s_cbranch_scc1 A_done')
    for ks in range(4):
        if ks: a('v_add_u32 v4, 2048, v4')
        for jj in range(4):
            a(f'ds_read2_b32 {pr(16+8*ks+2*jj)}, v4 offset0:{64*jj} offset1:{64*jj+32}')
    a('s_waitcnt vmcnt(0)')
    for j in range(4):
        a(f'ds_write_b128 v10, {q4(48+4*j)} offset:{1024*j}')
    a('s_waitcnt lgkmcnt(0)')
    for ks in range(4):
        a(f'ds_read_b128 {q4(48+4*ks)}, v{11+ks}')
    stamp(a, 1, 15)
    for ks in range(4):
        for jj in range(4):
            r0 = 16+8*ks+2*jj
            a(f'v_perm_b32 v{64+4*ks+jj}, v{r0+1}, v{r0}, s36')
            a(f'v_perm_b32 v{80+4*ks+jj}, v{r0+1}, v{r0}, s37')
    a('s_waitcnt lgkmcnt(0)')
    for ks in range(4):
        c0 = '0' if ks == 0 else 'v[96:111]'
        c1 = '0' if ks == 0 else 'v[112:127]'
        a(f'v_mfma_f32_32x32x16_bf16 v[96:111], {q4(48+4*ks)}, {q4(64+4*ks)}, {c0}')
        a(f'v_mfma_f32_32x32x16_bf16 v[112:127], {q4(48+4*ks)}, {q4(80+4*ks)}, {c1}')
    a('s_nop 15')
    stamp(a, 2, 15)
    for r in range(16):
        a(f'v_mul_f32 v{96+r}, s38, v{96+r}')
    for r in range(16):
        a(f'v_mul_f32 v{112+r}, s38, v{112+r}')
    for r in range(0, 16, 2):
        a(f'v_cvt_pk_bf16_f32 v{16+r}, v{96+r}, v{97+r}')
    for r in range(0, 16, 2):
        a(f'v_lshrrev_b32 v{17+r}, 16, v{16+r}')
        a(f'v_and_b32 v{16+r}, 0xffff, v{16+r}')
    for r in range(16):
        a(f'v_and_b32 v{32+r}, s39, v{112+r}')
    for r in range(16):
        a(f'v_add_u32 v{32+r}, 0x8000, v{32+r}')
    for r in range(16):
        a(f'v_sub_u32 v{32+r}, v{32+r}, v{16+r} clamp')
    for r in range(16):
        a(f'v_and_or_b32 v{32+r}, v{32+r}, s40, v{16+r}')
    for r in range(16):
        a(f'v_bfi_b32 v{32+r}, s39, v{32+r}, v{112+r}')
        a(f'ds_write_b32 v7, v{32+r} offset:{((r&3)+8*(r>>2))*128}')
    a('v_add_u32 v8, s42, v6')
    a('s_waitcnt lgkmcnt(0)')
    for j in range(4):
        a(f'ds_read_b128 {q4(48+4*j)}, v8 offset:{1024*j}')
    a('v_max_f32 v64, |v96|, |v97|')
    for r in range(2, 32, 2):
        a(f'v_max3_f32 v64, v64, |v{96+r}|, |v{97+r}|')
    a('v_cmp_lt_f32 vcc, s41, v64')
    for j in range(4):
        a(f's_waitcnt lgkmcnt({3-j})')
        a(f'buffer_store_dwordx4 {q4(48+4*j)}, v6, s[32:35], s23 offen offset:{1024*j} {ST_A}')
    a('s_lshl_b32 s43, s22, 2')
    a('v_mov_b32 v66, 0')
    a('s_cmp_lg_u64 vcc, 0')
    a('s_cselect_b32 s42, 1, 0')
    a('v_mov_b32 v65, s42')
    a('s_mov_b64 exec, 1')
    a(f'buffer_store_dword v65, v66, s[44:47], s43 offen {ST_A}')
    stamp(a, 5, 15)
    stamp_out(a, 0, 20, 15)
    a('s_endpgm')

    a.lab('A_prep')
    a(f's_sub_u32 s50, s2, {A_PREP0}')
    a('s_mul_i32 s50, s50, 7')
    a('s_add_u32 s50, s50, s3')
    a('s_cmp_gt_u32 s50, 24')
    a('s_cbranch_scc1 A_done')
    a('s_lshr_b32 s22, s50, 3')
    a('s_bfe_u32 s23, s50, 0x10002')
    a('s_and_b32 s24, s50, 3')
    a('v_and_b32 v2, 31, v1')
    a('v_lshrrev_b32 v3, 5, v1')
    a('v_bfe_u32 v4, v2, 2, 1')
    a('v_and_b32 v5, 3, v2')
    a('v_lshrrev_b32 v6, 3, v2')
    a('v_lshl_add_u32 v5, v6, 2, v5')
    a('s_waitcnt lgkmcnt(0)')
    srd(a, 32, 20, WS_WF, WF_BYTES)
    a('s_cmp_eq_u32 s50, 24')
    a('s_cbranch_scc1 A_prep_w3')
    a('s_cmp_lg_u32 s22, 0')
    a('s_cbranch_scc1 A_prep_u')
    srd(a, 28, 12, 0, 129*128)
    a('v_lshrrev_b32 v6, 3, v5')
    a('v_lshl_add_u32 v6, v4, 2, v6')
    a('s_lshl_b32 s25, s23, 1')
    a('v_add_u32 v6, s25, v6')
    a('v_and_b32 v7, 7, v5')
    a('v_lshlrev_b32 v8, 1, v7')
    a('v_add_u32 v9, 1, v8')
    a('v_subrev_u32 v8, 8, v8')
    a('v_cmp_gt_u32 vcc, 4, v7')
    a('s_nop 1')
    a('v_cndmask_b32 v8, v8, v9, vcc')
    a('v_lshl_add_u32 v8, v6, 3, v8')
    a('v_lshlrev_b32 v8, 1, v8')
    a('v_lshl_add_u32 v8, v3, 10, v8')
    a('s_lshl_b32 s26, s24, 11')
    a('s_add_u32 s26, s26, 8192')
    for j in range(8):
        a(f'buffer_load_ushort v{32+j}, v8, s[28:31], s26 offen offset:{128*j}')
    a('s_branch A_prep_st')
    a.lab('A_prep_u')
    srd(a, 28, 14, 0, 128*128)
    a('v_lshl_add_u32 v8, v4, 4, v5')
    a('s_lshl_b32 s25, s23, 5')
    a('v_add_u32 v8, s25, v8')
    a('v_lshlrev_b32 v8, 1, v8')
    a('s_cmp_lg_u32 s22, 1')
    a('s_cbranch_scc1 A_prep_agg')
    a('v_lshl_add_u32 v8, v3, 10, v8')
    a('s_lshl_b32 s26, s24, 11')
    for j in range(8):
        a(f'buffer_load_ushort v{32+j}, v8, s[28:31], s26 offen offset:{128*j}')
    a('s_branch A_prep_st')
    a.lab('A_prep_w3')
    srd(a, 44, 20, WS_PT + N*128, 128)
    a('v_mov_b32 v20, 0x71497149')
    a('v_mov_b32 v21, v20')
    a('v_mov_b32 v22, v20')
    a('v_mov_b32 v23, v20')
    a('v_lshlrev_b32 v24, 4, v1')
    a('buffer_store_dwordx4 v[20:23], v24, s[44:47], 0 offen')
    srd(a, 36, 12, 0, 129*128)
    a('v_and_b32 v10, 7, v1')
    a('v_lshlrev_b32 v11, 4, v10')
    a('s_movk_i32 s27, 0x4000')
    a('buffer_load_dwordx4 v[44:47], v11, s[36:39], s27 offen')
    a(f's_mov_b32 s40, {hex(f32(-LOG2E))}')
    a('s_waitcnt vmcnt(0)')
    for i in range(4):
        a(f'v_and_b32 v{48+i}, 0xffff0000, v{44+i}')
        a(f'v_lshlrev_b32 v{52+i}, 16, v{44+i}')
    for i in range(8):
        a(f'v_mul_f32 v{48+i}, s40, v{48+i}')
    a('v_max3_f32 v44, |v48|, |v49|, |v50|')
    a('v_max3_f32 v44, v44, |v51|, |v52|')
    a('v_max3_f32 v44, v44, |v53|, |v54|')
    a('v_max_f32 v44, v44, |v55|')
    a(f'v_cmp_lt_f32 vcc, {hex(f32(LIM_W))}, v44')
    a('v_lshlrev_b32 v11, 5, v10')
    a('s_cmp_lg_u64 vcc, 0')
    a('s_cselect_b32 s41, 1, 0')
    a('v_mov_b32 v45, s41')
    a('v_mov_b32 v46, 0')
    a(f's_movk_i32 s27, {WF_W3}')
    a('buffer_store_dwordx4 v[48:51], v11, s[32:35], s27 offen')
    a('buffer_store_dwordx4 v[52:55], v11, s[32:35], s27 offen offset:16')
    a('buffer_store_dword v45, v46, s[32:35], s27 offen offset:256')
    a('s_endpgm')
    a.lab('A_prep_agg')
    a('v_lshl_add_u32 v8, v3, 11, v8')
    a('s_and_b32 s26, s24, 1')
    a('s_lshl_b32 s26, s26, 5')
    a('s_lshr_b32 s27, s24, 1')
    a('s_lshl_b32 s27, s27, 1')
    a('s_add_u32 s26, s26, s27')
    a('s_add_u32 s26, s26, 64')
    a('s_lshl_b32 s26, s26, 7')
    for j in range(8):
        i_ = 2*(j >> 1)
        ph = 2*i_+1 if i_ < 4 else 2*i_-8
        a(f'buffer_load_ushort v{32+j}, v8, s[28:31], s26 offen offset:{(8*(j & 1)+ph)*128}')
    a.lab('A_prep_st')
    a('s_lshl_b32 s25, s50, 10')
    a('v_lshlrev_b32 v9, 4, v1')
    a('s_waitcnt vmcnt(0)')
    for j in range(4):
        a(f'v_lshl_or_b32 v{16+j}, v{33+2*j}, 16, v{32+2*j}')
    a('buffer_store_dwordx4 v[16:19], v9, s[32:35], s25 offen')
    a.lab('A_done')
    a('s_endpgm')

RS = 288
L_CNT = 0
L_MAX = 1024
L_FLAG = 1028
L_F8C = 1032
L_TOT = 1036
L_WORK = 1040
L_OVF = 1044
L_L8 = 1056
L_L2 = L_L8 + 1600
L_REC = L_L2 + 832
DUMP_OFF = NB*512
L_Q = L_REC + DUMP_OFF + 64
L_AGG = L_Q + (NB+1)*RS
L_X = L_AGG + (NB+1)*RS*2
L_WU = L_X + 13*1024
L_W3 = L_WU + 8192
B_LDS = L_W3 + 256
DUMMY1 = N | (NB*8) << 16
for x in (L_L8, L_REC, L_Q, L_AGG, L_X, L_WU): assert x % 16 == 0
assert B_LDS <= 163840 and L_Q + 128 < 65536

def kernel_b(a):
    a.raw('.globl mpnn_main_kernel')
    a.raw('.p2align 8')
    a.raw('.type mpnn_main_kernel,@function')
    a.lab('mpnn_main_kernel')
    a('s_load_dwordx2 s[80:81], s[0:1], 64')
    a('s_load_dwordx16 s[64:79], s[0:1], 0')
    a(f's_cmp_ge_u32 s2, {NBK}')
    a('s_cbranch_scc1 B_done')
    a('v_lshrrev_b32 v1, 6, v0')
    a('v_lshrrev_b32 v4, 3, v0')
    a('v_readfirstlane_b32 s3, v1')
    a('v_lshlrev_b32 v12, 10, v4')
    a('s_and_b32 s85, s2, 7')
    a('s_lshl_b32 s85, s85, 5')
    a('s_lshr_b32 s86, s2, 3')
    a('s_add_u32 s85, s85, s86')
    a('s_lshl_b32 s32, s85, 2')
    a('s_add_u32 s33, s32, 0x20000')
    a('v_and_b32 v1, 63, v0')
    a('v_and_b32 v3, 7, v0')
    a('v_lshlrev_b32 v2, 4, v3')
    a('v_lshlrev_b32 v11, 4, v1')
    a(f's_mul_i32 s37, s85, {NB}')
    a('s_lshl_b32 s39, s37, 7')
    a('s_lshl_b32 s40, s3, 10')
    a('s_add_u32 s39, s39, s40')
    a('s_and_b32 s34, s3, 1')
    a('s_lshl_b32 s41, s34, 12')
    a('s_waitcnt lgkmcnt(0)')
    ws = 80
    srd(a, 4, ws, WS_TAB, TAB_BYTES)
    a('buffer_load_dword v6, v12, s[4:7], s32 offen')
    a('buffer_load_dword v7, v12, s[4:7], s33 offen')
    stamp(a, 0)
    srd(a, 8, ws, WS_REC, REC_BYTES)
    a(f's_add_u32 s28, s80, {hex(WS_WF+WF_W3+256)}')
    a('s_addc_u32 s29, s81, 0')
    a('s_load_dword s90, s[28:29], 0')
    srd(a, 12, ws, WS_PT, PT_BYTES)
    srd(a, 24, 76, 0, N*128)
    a('s_mov_b64 s[88:89], s[80:81]')
    a('s_bfe_u32 s35, s3, 0x20001')
    a('s_lshl_b32 s38, s35, 5')
    a('v_and_b32 v8, 31, v1')
    a('v_add_u32 v8, s38, v8')
    a('v_lshrrev_b32 v9, 5, v1')
    a('v_lshlrev_b32 v3, 3, v3')
    a(f'v_add_u32 v3, {L_AGG}, v3')
    a('s_movk_i32 s42, 128')
    a('s_mov_b32 s44, 1.0')
    a('s_mov_b32 s45, 1.0')
    a('s_mov_b32 s46, 0x3f80')
    a(f's_mov_b32 s47, {hex(f32(-LOG2E))}')
    a(f's_mov_b32 s48, {hex(f32(-LN2))}')
    a(f's_mov_b32 s49, {hex(f32(-LN2))}')
    a('s_mov_b32 s50, 0')
    a('s_mov_b32 s94, s47')
    a('s_mov_b32 s95, s47')
    a('s_movk_i32 s84, 72')
    a('s_mov_b32 s86, 0')
    a('s_mov_b32 s87, -1')
    srd(a, 16, 64, 0, N*128)
    srd(a, 20, ws, WS_WF, WF_BYTES)
    srd(a, 28, ws, WS_PF, PF_BYTES)
    a.lab('B_batch')
    a('v_lshlrev_b32 v12, 4, v0')
    a('s_cmp_ge_u32 s3, 4')
    a('s_cbranch_scc1 B_noini')
    a(f'v_mov_b32 v16, {hex(DUMP_OFF | DUMP_OFF << 16)}')
    a(f'v_cmp_gt_u32 vcc, {L_L8//16}, v0')
    a('v_mov_b32 v28, 0')
    a(f'v_mov_b32 v29, {hex(DUMMY1)}')
    a('v_cndmask_b32 v16, v16, v28, vcc')
    a('v_mov_b32 v30, 0')
    a(f'v_mov_b32 v31, {hex(DUMMY1)}')
    a('v_mov_b32 v17, v16')
    a('v_mov_b32 v18, v16')
    a('v_mov_b32 v19, v16')
    a(f'v_cmp_gt_u32 vcc, {L_REC//16}, v0')
    a('s_and_saveexec_b64 s[68:69], vcc')
    a('ds_write_b128 v12, v[16:19]')
    a('s_mov_b64 exec, 15')
    a(f'ds_write_b128 v11, v[28:31] offset:{L_REC+DUMP_OFF}')
    a('s_mov_b64 exec, s[68:69]')
    a.lab('B_noini')
    a('v_and_b32 v14, 7, v0')
    a('v_lshlrev_b32 v14, 1, v14')
    a('v_add_u32 v14, s50, v14')
    a(f's_movk_i32 s51, {CH}')
    a('v_mul_u32_u24 v15, s51, v4')
    a('v_add_u32 v15, v15, v14')
    a('v_mov_b32 v25, 0x7fffff00')
    a('s_waitcnt lgkmcnt(0)')
    a('s_barrier')
    stamp(a, 9)
    a('s_waitcnt vmcnt(0)')
    stamp(a, 1)
    for rd_ in range(2):
        T_ = 6+rd_
        a(f'v_bfe_u32 v{20+rd_}, v{T_}, 16, 13')
        a(f'v_and_b32 v{22+rd_}, 0xffff, v{T_}')
        a(f'v_add_u32 v{22+rd_}, v{22+rd_}, v15')
        if rd_ == 1:
            a(f'v_add_u32 v{22+rd_}, {128*CH}, v{22+rd_}')
        a(f'v_lshlrev_b32 v{22+rd_}, 3, v{22+rd_}')
        a(f'v_sub_u32 v{16+rd_}, v{20+rd_}, v14')
    for s in range(8):
        a(f'v_cmp_lt_i32 s[{52+2*s}:{53+2*s}], {((s >> 1) & 1)*16+(s & 1)}, v{16+(s >> 2)}')
    a('s_cmp_eq_u32 s87, -1')
    a('s_cbranch_scc1 B_allsl')
    a('s_lshl_b32 s51, s3, 3')
    a('s_sub_u32 s51, s87, s51')
    for s in range(8):
        a(f's_cmp_eq_u32 s51, {s}')
        a(f's_cselect_b64 s[{52+2*s}:{53+2*s}], s[{52+2*s}:{53+2*s}], 0')
    a.lab('B_allsl')
    order = [(0, 0), (1, 0), (0, 1), (1, 1)]
    for rd_, ld in order:
        s = rd_*4+ld*2
        r = 96+(rd_*2+ld)*4
        a(f's_or_b64 vcc, s[{52+2*s}:{53+2*s}], s[{54+2*s}:{55+2*s}]')
        a(f'v_cndmask_b32 v{26+rd_*2+ld}, v25, v{22+rd_}, vcc')
        a(f'buffer_load_dwordx4 {q4(r)}, v{26+rd_*2+ld}, s[8:11], 0 offen offset:{128*ld}')
    a('v_max_i32 v16, v16, v17')
    a('v_or_b32 v17, v6, v7')
    a('v_cmp_lt_i32 s[70:71], 32, v16')
    a('v_cmp_gt_i32 s[72:73], 0, v17')
    a(f'v_mov_b32 v24, {L_MAX}')
    a('v_mov_b32 v16, 1')
    a('s_cmp_eq_u64 s[70:71], 0')
    a('s_cbranch_scc1 B_nomore')
    a('ds_write_b32 v24, v16')
    a.lab('B_nomore')
    lc = [0]
    def ranks(extra):
        a('v_mov_b32 v44, 8')
        for n, (rd_, ld) in enumerate(order):
            a(f's_waitcnt vmcnt({3-n+extra})')
            if n in (0, 3) and DEBUG:
                a('s_mov_b64 exec, -1')
                stamp(a, {0: 6, 3: 10}[n])
            for e in range(2):
                s = rd_*4+ld*2+e
                r = 96+(rd_*2+ld)*4+2*e
                a(f's_mov_b64 exec, s[{52+2*s}:{53+2*s}]')
                if ld:
                    lc[0] += 1
                    a(f's_cbranch_execz B_sk{lc[0]}')
                a(f'v_lshrrev_b32 v{112+s}, 16, v{r+1}')
                a(f'ds_add_rtn_u32 v{36+s}, v{112+s}, v44 offset:{L_CNT}')
                if ld: a.lab(f'B_sk{lc[0]}')
        a('s_mov_b64 exec, -1')
    a('s_cmp_lg_u32 s86, 0')
    a('s_cbranch_scc1 B_rk0')
    a('s_cmp_ge_u32 s3, 13')
    a('s_cbranch_scc1 B_a13')
    a('buffer_load_dwordx4 v[32:35], v11, s[16:19], s39 offen')
    a('s_cmp_ge_u32 s3, 8')
    a('s_cbranch_scc1 B_a8')
    a(f's_add_u32 m0, s40, {L_WU}')
    a('s_nop 0')
    a('buffer_load_dwordx4 v11, s[20:23], s40 offen lds')
    a('s_branch B_ax')
    a.lab('B_a8')
    a('s_sub_u32 s51, s40, 8192')
    a('buffer_load_dwordx4 v[48:51], v11, s[28:31], s51 offen')
    a('s_branch B_ax')
    a.lab('B_a13')
    a(f's_mov_b32 m0, {L_W3}')
    a(f's_movk_i32 s51, {WF_W3}')
    a('s_mov_b64 exec, 0xffff')
    a('buffer_load_dwordx4 v11, s[20:23], s51 offen lds')
    a('buffer_load_dwordx4 v11, s[20:23], s51 offen lds')
    a('s_mov_b64 exec, -1')
    a.lab('B_ax')
    for r in range(20, 24): a(f'v_mov_b32 v{r}, 0')
    a(f'v_add_u32 v13, {L_AGG}, v12')
    for j in range(3):
        a(f'ds_write_b128 v13, v[20:23] offset:{16384*j}')
    a(f'v_cmp_gt_u32 vcc, {NB*RS*2//16-3072}, v0')
    a('s_and_saveexec_b64 s[68:69], vcc')
    a('ds_write_b128 v13, v[20:23] offset:49152')
    a('s_mov_b64 exec, s[68:69]')
    a('v_lshrrev_b32 v45, 3, v1')
    a('v_and_b32 v46, 7, v1')
    a('v_xor_b32 v47, v46, v45')
    a('v_lshlrev_b32 v47, 4, v47')
    a('v_lshl_add_u32 v47, v45, 7, v47')
    a(f's_add_u32 s51, s40, {L_X}')
    a('v_add_u32 v47, s51, v47')
    ranks(2)
    a('s_waitcnt vmcnt(0)')
    a('s_cmp_ge_u32 s3, 13')
    a('s_cbranch_scc1 B_rkdone')
    a('ds_write_b128 v47, v[32:35]')
    a('s_cmp_lt_u32 s3, 8')
    a('s_cbranch_scc1 B_rkdone')
    a('v_or3_b32 v48, v48, v49, v50')
    a('v_or_b32 v48, v48, v51')
    a('v_cmp_ne_u32 vcc, 0, v48')
    a('s_nop 0')
    a('s_or_b64 s[72:73], s[72:73], vcc')
    a('s_branch B_rkdone')
    a.lab('B_rk0')
    ranks(0)
    a.lab('B_rkdone')
    a('s_cmp_eq_u64 s[72:73], 0')
    a('s_cbranch_scc1 B_noflag')
    a('ds_write_b32 v24, v16 offset:4')
    a.lab('B_noflag')
    a('s_movk_i32 s51, 504')
    a('s_waitcnt lgkmcnt(0)')
    stamp(a, 7)
    for s in (0, 1, 4, 5, 2, 3, 6, 7):
        r = 96+(s//2)*4+2*(s % 2)
        a(f's_mov_b64 exec, s[{52+2*s}:{53+2*s}]')
        sk = s in (2, 3, 6, 7)
        if sk:
            lc[0] += 1
            a(f's_cbranch_execz B_sk{lc[0]}')
        a(f'v_min_u32 v{36+s}, s51, v{36+s}')
        a(f'v_lshl_add_u32 v{36+s}, v{112+s}, 6, v{36+s}')
        a(f'ds_write_b64 v{36+s}, {pr(r)} offset:{L_REC}')
        if sk: a.lab(f'B_sk{lc[0]}')
    a('s_mov_b64 exec, -1')
    a('v_lshrrev_b32 v13, 3, v1')
    a('v_lshlrev_b32 v13, 1, v13')
    a(f'v_mov_b32 v14, {L_WORK}')
    a('v_mov_b32 v15, 1')
    a('v_xor_b32 v46, v46, v9')
    a('v_lshlrev_b32 v45, 7, v8')
    a(f'v_add_u32 v45, {L_X}, v45')
    for ks in range(4):
        a(f'v_xor_b32 v47, {2*ks}, v46')
        a(f'v_lshl_add_u32 v{92+ks}, v47, 4, v45')
    a(f's_add_u32 s68, s41, {L_WU}')
    a('v_add_u32 v47, s68, v11')
    a('s_waitcnt lgkmcnt(0)')
    a('s_barrier')
    stamp(a, 2)
    a('s_cmp_lg_u32 s86, 0')
    a('s_cbranch_scc1 B_now3')
    a('v_lshlrev_b32 v46, 1, v2')
    a(f'v_add_u32 v46, {L_W3}, v46')
    a('ds_read_b128 v[68:71], v46')
    a('ds_read_b128 v[72:75], v46 offset:16')
    a('s_cmp_lt_u32 s3, 8')
    a('s_cbranch_scc1 B_now3')
    a('s_mov_b32 s86, 1')
    for ks in range(4):
        a(f'ds_read_b128 {q4(76+4*ks)}, v{92+ks}')
        a(f'ds_read_b128 {q4(48+4*ks)}, v47 offset:{1024*ks}')
    a(f's_movk_i32 s68, {RS}')
    a('v_mul_u32_u24 v45, s68, v8')
    a('v_lshl_add_u32 v45, v9, 6, v45')
    a('s_lshl_b32 s68, s34, 5')
    a('v_add_u32 v45, s68, v45')
    a(f'v_mov_b32 v46, {NB}')
    a('v_cmp_gt_u32 s[74:75], v46, v8')
    for ks in range(4):
        c = '0' if ks == 0 else 'v[16:31]'
        a(f's_waitcnt lgkmcnt({6-2*ks})')
        a(f'v_mfma_f32_32x32x16_bf16 v[16:31], {q4(48+4*ks)}, {q4(76+4*ks)}, {c}')
    a('s_nop 11')
    for r in range(0, 16, 2):
        a(f'v_pk_mul_f32 {pr(16+r)}, {pr(16+r)}, s[94:95]')
    a('s_mov_b64 exec, s[74:75]')
    for o in range(2):
        a(f'ds_write_b128 v45, {q4(16+8*o)} offset:{L_Q+16*o}')
        a(f'ds_write_b128 v45, {q4(20+8*o)} offset:{L_Q+128+16*o}')
    a('v_max_f32 v46, |v16|, |v17|')
    for r in range(2, 16, 2):
        a(f'v_max3_f32 v46, v46, |v{16+r}|, |v{17+r}|')
    a(f'v_cmp_lt_f32 vcc, {hex(f32(LIM_Q))}, v46')
    a('s_mov_b64 exec, -1')
    a(f'v_mov_b32 v46, {L_FLAG}')
    a('v_mov_b32 v47, 1')
    a('s_cbranch_vccz B_lsd')
    a('ds_write_b32 v46, v47')
    a('s_branch B_lsd')
    a.lab('B_now3')
    a('s_mov_b32 s86, 1')
    a('s_cmp_ge_u32 s3, 8')
    a('s_cbranch_scc1 B_lsd')
    a(f'ds_read_b128 v[16:19], v11 offset:{L_CNT}')
    a('v_lshlrev_b32 v20, 10, v1')
    a('v_add_u32 v21, 512, v20')
    a('s_lshl_b32 s51, s3, 6')
    a('v_add_u32 v28, s51, v20')
    a('v_add_u32 v29, s51, v21')
    a('s_add_u32 s51, s51, 64')
    a(f'v_mov_b32 v24, {L_F8C}')
    a('s_waitcnt lgkmcnt(0)')
    a('v_cmp_le_u32 s[68:69], s51, v16')
    a('v_cmp_le_u32 s[70:71], s51, v18')
    a('s_bcnt1_i32_b64 s72, s[68:69]')
    a('s_bcnt1_i32_b64 s73, s[70:71]')
    a('s_add_u32 s73, s73, s72')
    a('v_mov_b32 v25, s73')
    a('s_mov_b64 exec, 1')
    a('ds_add_rtn_u32 v26, v24, v25')
    a('s_mov_b64 exec, -1')
    a('v_mbcnt_lo_u32_b32 v22, s68, 0')
    a('v_mbcnt_hi_u32_b32 v22, s69, v22')
    a('v_mbcnt_lo_u32_b32 v23, s70, 0')
    a('v_mbcnt_hi_u32_b32 v23, s71, v23')
    a('v_add_u32 v23, s72, v23')
    a('s_waitcnt lgkmcnt(0)')
    a('v_readfirstlane_b32 s72, v26')
    a('s_nop 1')
    a('v_add_lshl_u32 v22, v22, s72, 1')
    a('v_add_lshl_u32 v23, v23, s72, 1')
    a('s_mov_b64 exec, s[68:69]')
    a(f'ds_write_b16 v22, v28 offset:{L_L8}')
    a('s_mov_b64 exec, s[70:71]')
    a(f'ds_write_b16 v23, v29 offset:{L_L8}')
    a('s_mov_b64 exec, -1')
    a('s_cmp_ge_u32 s3, 4')
    a('s_cbranch_scc1 B_lsd')
    a.lab('B_cls')
    a('s_waitcnt lgkmcnt(0)')
    for k in range(2):
        a(f'v_bfe_u32 v{82+k}, v{16+2*k}, 5, 1')
        a(f'v_bfe_u32 v{84+k}, v{16+2*k}, 3, 2')
    msk = [(52, 54), (56, 58), (60, 62), (64, 66)]
    for k in range(2):
        a(f'v_cmp_ne_u32 s[{msk[0][k]}:{msk[0][k]+1}], 0, v{82+k}')
        for c in range(1, 4):
            a(f'v_cmp_eq_u32 s[{msk[c][k]}:{msk[c][k]+1}], {4-c}, v{84+k}')
    a('v_max_u32 v86, v16, v18')
    a('v_cmp_lt_u32 vcc, 512, v86')
    a('s_mov_b32 s72, 0')
    a('s_mov_b32 s73, 0')
    for c in range(4):
        a(f's_cmp_eq_u32 s3, {c}')
        a(f's_cselect_b64 s[68:69], s[{msk[c][0]}:{msk[c][0]+1}], s[68:69]')
        a(f's_cselect_b64 s[70:71], s[{msk[c][1]}:{msk[c][1]+1}], s[70:71]')
        a('s_cselect_b32 s74, s72, s74')
        a(f's_bcnt1_i32_b64 s75, s[{msk[c][0]}:{msk[c][0]+1}]')
        a(f's_bcnt1_i32_b64 s76, s[{msk[c][1]}:{msk[c][1]+1}]')
        a('s_add_u32 s75, s75, s76')
        a('s_add_u32 s75, s75, 7')
        a('s_lshr_b32 s75, s75, 3')
        a('s_add_u32 s72, s72, s75')
        a(f's_lshl_b32 s75, s72, {8*c}')
        a('s_or_b32 s73, s73, s75')
    a('s_cmp_eq_u32 s3, 0')
    a('s_cselect_b32 s51, 63, 31')
    a('s_not_b32 s51, s51')
    a('s_lshl_b32 s74, s74, 3')
    a('s_bcnt1_i32_b64 s75, s[68:69]')
    a('s_add_u32 s75, s75, s74')
    a('v_and_b32 v16, s51, v16')
    a('v_and_b32 v18, s51, v18')
    a('v_add_u32 v20, v20, v16')
    a('v_add_u32 v21, v21, v18')
    a('v_mbcnt_lo_u32_b32 v82, s68, 0')
    a('v_mbcnt_hi_u32_b32 v82, s69, v82')
    a('v_mbcnt_lo_u32_b32 v83, s70, 0')
    a('v_mbcnt_hi_u32_b32 v83, s71, v83')
    a('v_add_lshl_u32 v82, v82, s74, 1')
    a('v_add_lshl_u32 v83, v83, s75, 1')
    a('s_mov_b64 exec, s[68:69]')
    a(f'ds_write_b16 v82, v20 offset:{L_L2}')
    a('s_mov_b64 exec, s[70:71]')
    a(f'ds_write_b16 v83, v21 offset:{L_L2}')
    a('s_mov_b64 exec, 1')
    a('s_cmp_lg_u64 vcc, 0')
    a('s_cselect_b32 s73, -1, s73')
    a(f'v_mov_b32 v84, {L_TOT}')
    a('v_mov_b32 v85, s73')
    a('ds_write_b32 v84, v85')
    a('s_mov_b64 exec, -1')
    a.lab('B_lsd')
    a('s_waitcnt lgkmcnt(0)')
    a('s_barrier')
    stamp(a, 3)
    stampc(a, 8)
    a('s_cmp_lg_u32 s85, -1')
    a('s_cbranch_scc0 B_nowu')
    a('s_mov_b32 s85, -1')
    a('s_bfe_u32 s51, s3, 0x20002')
    a('s_cmp_lg_u32 s51, 1')
    a('s_cbranch_scc1 B_nowu')
    a('s_and_b32 s51, s3, 3')
    a('s_lshl_b32 s51, s51, 11')
    a(f's_add_u32 m0, s51, {L_WU}')
    a('s_add_u32 s51, s51, 16384')
    a('buffer_load_dwordx4 v11, s[20:23], s51 offen lds')
    a('buffer_load_dwordx4 v11, s[20:23], s51 offen offset:1024 lds')
    a.lab('B_nowu')
    if DEBUG:
        for i_ in range(44, 60): a(f'v_writelane_b32 v65, 0, {i_}')
    RAW = 32; Q = 48; RCS = [56, 112]; IDX = 64; AGC = 66; AGN = 67; Z = 76; T = 16; T2 = 24; TMP = 108; NN = 120; DD = 4; EN = 111
    cnt = [0]
    def rd(st, off=0):
        a(f'ds_read_b128 {q4(RCS[st])}, v{EN} offset:{L_REC+off}')
        a(f'ds_read_b128 {q4(RCS[st]+4)}, v{EN} offset:{L_REC+off+16}')
    def ent8(sidx):
        a(f's_lshl_b32 s51, s{sidx}, 4')
        a(f'v_add_u32 v{TMP}, s51, v13')
        a(f'ds_read_u16 v{EN}, v{TMP} offset:{L_L8}')
    def ent4(sidx):
        a(f's_sub_u32 s79, s{sidx}, s74')
        a(f's_min_u32 s79, s79, 51')
        a(f's_lshl_b32 s51, s79, 4')
        a(f'v_add_u32 v{TMP}, s51, v13')
        a(f'ds_read_u16 v{EN}, v{TMP} offset:{L_L2}')
    def ent_any(sidx):
        n = cnt[0]; cnt[0] += 1
        a(f's_cmp_ge_u32 s{sidx}, s74')
        a(f's_cbranch_scc1 B_rrP{n}')
        ent8(sidx)
        a(f's_branch B_rrX{n}')
        a.lab(f'B_rrP{n}')
        ent4(sidx)
        a.lab(f'B_rrX{n}')
    def gather(st, k):
        a(f'v_mad_u32_u16 v{TMP+(k&1)}, v{RCS[st]+2*k+1}, s42, v2')
        a(f'buffer_load_dwordx4 {q4(RAW+4*k)}, v{TMP+(k&1)}, s[12:15], 0 offen')
    def qread(st):
        RC = RCS[st]
        a(f'v_mad_u32_u16 v{TMP+2}, v{RC+1}, 36, v2 op_sel:[1,0,0,0]')
        a(f'ds_read_b128 {q4(Q)}, v{TMP+2} offset:{L_Q}')
        a(f'ds_read_b128 {q4(Q+4)}, v{TMP+2} offset:{L_Q+128}')
        a(f'v_mad_u32_u16 v{AGN}, v{RC+1}, s84, v3 op_sel:[1,0,0,0]')
    def grab():
        a('s_mov_b64 exec, 1')
        a(f'ds_add_rtn_u32 v{IDX}, v14, v15')
        a('s_mov_b64 exec, -1')
    def cops(st):
        for k in range(4):
            for p in range(4):
                a(f'v_pk_fma_f32 {pr(Z+8*k+2*p)}, {pr(RCS[st]+2*k)}, {pr(68+2*p)}, {pr(Q+2*p)} op_sel_hi:[0,1,1]')
    def zadd(k, nst):
        R = RAW+4*k; Zk = Z+8*k
        a('s_waitcnt vmcnt(3)')
        for i in range(4):
            a(f'v_dot2_f32_bf16 v{Zk+4+i}, v{R+i}, s46, v{Zk+4+i}')
        a(f'v_pk_add_f32 {pr(Zk)}, {pr(R)}, {pr(Zk)}')
        a(f'v_pk_add_f32 {pr(Zk+2)}, {pr(R+2)}, {pr(Zk+2)}')
        gather(nst, k)
    def upd(k, first, nsrc):
        Zk = Z+8*k
        if first:
            for i in range(8): a(f'v_exp_f32 v{DD+i}, v{Zk+i}')
            for p in range(4): a(f'v_pk_add_f32 {pr(DD+2*p)}, {pr(DD+2*p)}, s[44:45]')
            return
        for i in range(8): a(f'v_exp_f32 v{T+i}, v{Zk+i}')
        for p in range(4): a(f'v_pk_fma_f32 {pr(Zk+2*p)}, {pr(Zk+2*p)}, {pr(DD+2*p)}, {pr(nsrc+2*p)}')
        for p in range(4): a(f'v_pk_fma_f32 {pr(NN+2*p)}, {pr(nsrc+2*p)}, {pr(T+2*p)}, {pr(Zk+2*p)}')
        for p in range(4): a(f'v_pk_fma_f32 {pr(DD+2*p)}, {pr(DD+2*p)}, {pr(T+2*p)}, {pr(DD+2*p)}')
    def updp(k, first):
        Zk = Z+8*k
        for i in range(8): a(f'v_exp_f32 v{T+i}, v{Zk+i}')
        for p in range(4): a(f'v_pk_add_f32 {pr(T+2*p)}, {pr(T+2*p)}, s[44:45]')
        for i in range(8): a(f'v_rcp_f32 v{T+i}, v{T+i}')
        for p in range(4):
            if first: a(f'v_pk_mul_f32 {pr(NN+2*p)}, {pr(Zk+2*p)}, {pr(T+2*p)}')
            else: a(f'v_pk_fma_f32 {pr(NN+2*p)}, {pr(Zk+2*p)}, {pr(T+2*p)}, {pr(NN+2*p)}')
    def flush(src):
        dd = [T, T+2, T+4, T+6, T2, T2+2, T2+4, T2+6]
        for i in range(8): a(f'v_cvt_f64_f32 {pr(dd[i])}, v{src+i}')
        for i in range(8): a(f'ds_add_f64 v{AGC}, {pr(dd[i])} offset:{64*i}')
    def finish(nsrc):
        for i in range(8): a(f'v_rcp_f32 v{DD+i}, v{DD+i}')
        for p in range(4): a(f'v_pk_mul_f32 {pr(DD+2*p)}, {pr(nsrc+2*p)}, {pr(DD+2*p)}')
        flush(DD)
    pc = [0]
    def prio(inc):
        if DEBUG:
            a('s_memrealtime s[92:93]')
            a('s_add_u32 m0, s83, 44')
            a('s_waitcnt lgkmcnt(0)')
            a('v_writelane_b32 v65, s92, m0')
        a(f's_add_u32 s83, s83, {inc}')
        if not PRIO: return
        n = pc[0]; pc[0] += 1
        a(f's_cmp_lt_u32 s83, {PT[0]}')
        a(f's_cbranch_scc1 B_pr{n}')
        a('s_setprio 2')
        a(f's_cmp_lt_u32 s83, {PT[1]}')
        a(f's_cbranch_scc1 B_pr{n}')
        a('s_setprio 1')
        a(f's_cmp_lt_u32 s83, {PT[2]}')
        a(f's_cbranch_scc1 B_pr{n}')
        a('s_setprio 0')
        a.lab(f'B_pr{n}')
    a(f'v_mov_b32 v24, {L_MAX}')
    a('ds_read_b128 v[16:19], v24')
    a('s_mov_b32 s76, s3')
    a('s_add_u32 s77, s3, 16')
    ent8(76)
    grab()
    a('s_mov_b32 s83, 0')
    if PRIO: a('s_setprio 3')
    a('s_waitcnt lgkmcnt(0)')
    rd(0); rd(1, 32)
    a('v_readfirstlane_b32 s70, v19')
    a('v_readfirstlane_b32 s74, v18')
    a('v_readfirstlane_b32 s71, v16')
    a('v_readfirstlane_b32 s91, v17')
    a('s_cmp_lg_u32 s70, -1')
    a('s_cbranch_scc1 B_capok')
    a('s_mov_b32 s87, 0')
    a('s_setprio 0')
    a('s_waitcnt lgkmcnt(0)')
    a('s_barrier')
    a('s_branch B_batch')
    a.lab('B_capok')
    a('s_or_b32 s90, s90, s91')
    if FORCE_PLAIN: a('s_mov_b32 s90, 1')
    a('s_add_u32 s74, s74, 7')
    a('s_lshr_b32 s74, s74, 3')
    a('s_and_b32 s72, s70, 0xff')
    a('s_add_u32 s72, s72, s74')
    a('s_bfe_u32 s73, s70, 0x80008')
    a('s_add_u32 s73, s73, s74')
    a('s_bfe_u32 s82, s70, 0x80010')
    a('s_add_u32 s82, s82, s74')
    a('s_lshr_b32 s75, s70, 24')
    a('s_add_u32 s75, s75, s74')
    a('s_cmp_ge_u32 s76, s75')
    a('s_cbranch_scc1 B_loop_end')
    a('s_cmp_ge_u32 s76, s74')
    a('s_cbranch_scc1 B_pre4')
    a('s_waitcnt lgkmcnt(0)')
    for k in range(4): gather(0, k)
    qread(0)
    ent_any(77)
    a('s_waitcnt lgkmcnt(0)')
    a('s_cmp_lg_u32 s90, 0')
    a('s_cbranch_scc1 B_loop8p')
    for mode in ('', 'p'):
        a.lab(f'B_loop8{mode}')
        a('s_waitcnt lgkmcnt(8)')
        a(f'v_mov_b32 v{AGC}, v{AGN}')
        a(f'v_readfirstlane_b32 s78, v{IDX}')
        cops(0)
        rd(0)
        a('s_add_u32 s78, s78, 32')
        for k in range(4):
            zadd(k, 1)
            if mode: updp(k, k == 0)
            else: upd(k, k == 0, Z if k == 1 else NN)
        cops(1)
        a('s_waitcnt lgkmcnt(0)')
        qread(0)
        a('s_cmp_ge_u32 s77, s74')
        a(f's_cbranch_scc1 B_tr8{mode}')
        rd(1, 32)
        ent_any(78)
        a(f's_branch B_tr8x{mode}')
        a.lab(f'B_tr8{mode}')
        ent4(78)
        a('s_waitcnt lgkmcnt(0)')
        rd(1)
        a.lab(f'B_tr8x{mode}')
        grab()
        for k in range(4):
            zadd(k, 0)
            if mode: updp(k, False)
            else: upd(k, False, NN)
        if mode: flush(NN)
        else: finish(NN)
        prio(2)
        a('s_mov_b32 s76, s77')
        a('s_mov_b32 s77, s78')
        a('s_cmp_lt_u32 s76, s74')
        a(f's_cbranch_scc1 B_loop8{mode}')
        a('s_cmp_lt_u32 s76, s75')
        a(f's_cbranch_scc1 B_loop0{mode}')
        a('s_branch B_loop_end')
    a.lab('B_pre4')
    a('s_waitcnt lgkmcnt(0)')
    ent4(76)
    a('s_waitcnt lgkmcnt(0)')
    rd(0)
    ent4(77)
    a('s_waitcnt lgkmcnt(0)')
    for k in range(4): gather(0, k)
    qread(0)
    rd(1)
    a('s_waitcnt lgkmcnt(0)')
    a('s_cmp_lg_u32 s90, 0')
    a('s_cbranch_scc1 B_loop0p')
    lim = [82, 73, 72]
    for mode in ('', 'p'):
        for st in range(2):
            L = f'{st}{mode}'
            a.lab(f'B_loop{L}')
            a('s_waitcnt lgkmcnt(8)')
            a(f'v_mov_b32 v{AGC}, v{AGN}')
            a(f'v_readfirstlane_b32 s78, v{IDX}')
            a('s_nop 0')
            a('s_add_u32 s78, s78, 32')
            ent4(78)
            cops(st)
            qread(1-st)
            a('s_waitcnt lgkmcnt(2)')
            rd(st)
            grab()
            for k in range(4):
                zadd(k, 1-st)
                if mode: updp(k, k == 0)
                else: upd(k, k == 0, Z if k == 1 else NN)
                if k < 3:
                    a(f's_cmp_ge_u32 s76, s{lim[k]}')
                    a(f's_cbranch_scc1 B_ex{k}_{L}')
            a.lab(f'B_fin_{L}')
            if mode: flush(NN)
            else: finish(NN)
            a.lab(f'B_nx_{L}')
            prio(1)
            a('s_mov_b32 s76, s77')
            a('s_mov_b32 s77, s78')
            a('s_cmp_ge_u32 s76, s75')
            a('s_cbranch_scc1 B_loop_end')
            if st == 1: a(f's_branch B_loop0{mode}')
        for st in range(2):
            L = f'{st}{mode}'
            for k in range(3):
                a.lab(f'B_ex{k}_{L}')
                for kk in range(k+1, 4): gather(1-st, kk)
                if k == 0 and not mode:
                    finish(Z)
                    a(f's_branch B_nx_{L}')
                else:
                    a(f's_branch B_fin_{L}')
    a.lab('B_loop_end')
    stamp(a, 4)
    a('s_waitcnt vmcnt(0) lgkmcnt(0)')
    a('v_lshlrev_b32 v11, 4, v1')
    a('v_and_b32 v8, 31, v1')
    a('v_add_u32 v8, s38, v8')
    a('v_lshrrev_b32 v9, 5, v1')
    a('s_cmp_ge_u32 s3, 8')
    a('s_cbranch_scc1 B_join')
    WX = [100, 104, 108, 4]
    a('s_add_u32 s39, s41, 8192')
    for ks in range(4):
        a(f'buffer_load_dwordx4 {q4(WX[ks])}, v11, s[20:23], s39 offen offset:{1024*ks}')
    a(f's_add_u32 s39, s41, {L_WU}')
    a('v_add_u32 v98, s39, v11')
    a('v_and_b32 v13, 7, v1')
    a('v_xor_b32 v13, v13, v9')
    a('v_lshlrev_b32 v14, 7, v8')
    a(f'v_add_u32 v14, {L_X}, v14')
    for ks in range(4):
        a(f'v_xor_b32 v15, {2*ks}, v13')
        a(f'v_lshl_add_u32 v{92+ks}, v15, 4, v14')
        a(f'ds_read_b128 {q4(16+4*ks)}, v{92+ks}')
    a('s_waitcnt vmcnt(0) lgkmcnt(0)')
    for ks in range(4):
        c = '0' if ks == 0 else 'v[112:127]'
        a(f'v_mfma_f32_32x32x16_bf16 v[112:127], {q4(WX[ks])}, {q4(16+4*ks)}, {c}')
    a.lab('B_join')
    a('v_lshrrev_b32 v12, 3, v0')
    a(f's_movk_i32 s51, {2*RS}')
    a('v_mul_u32_u24 v96, s51, v12')
    a('v_add_u32 v96, v96, v2')
    a(f'v_add_u32 v96, {L_AGG}, v96')
    a('v_and_b32 v97, 7, v12')
    a('v_lshlrev_b32 v97, 4, v97')
    a('v_xor_b32 v97, v97, v2')
    a('v_lshl_add_u32 v97, v12, 7, v97')
    a('s_setprio 0')
    a('s_waitcnt lgkmcnt(0)')
    a('s_barrier')
    stamp(a, 5)
    stampc(a, 40)
    a('s_cmp_eq_u32 s87, -1')
    a('s_cbranch_scc1 B_nb')
    a('s_add_u32 s87, s87, 1')
    a('s_cmp_lt_u32 s87, 128')
    a('s_cbranch_scc1 B_again')
    a('s_mov_b32 s87, -1')
    a.lab('B_nb')
    a('s_add_u32 s50, s50, 32')
    a('s_cmp_eq_u32 s71, 0')
    a('s_cbranch_scc1 B_fin')
    a.lab('B_again')
    a('s_waitcnt vmcnt(0)')
    a('v_lshrrev_b32 v4, 3, v0')
    a('v_lshlrev_b32 v12, 10, v4')
    a('buffer_load_dword v6, v12, s[4:7], s32 offen')
    a('buffer_load_dword v7, v12, s[4:7], s33 offen')
    a('s_branch B_batch')
    a.lab('B_fin')
    if DEBUG: a('v_mov_b32 v3, v65')
    a('s_cmp_ge_u32 s3, 13')
    a('s_cbranch_scc1 B_done2')
    for q in range(4):
        a(f'ds_read_b128 {q4(64+4*q)}, v96 offset:{128*q}')
    for q in range(4):
        a(f's_waitcnt lgkmcnt({3-q})')
        a(f'v_cvt_f32_f64 v{80+2*q}, {pr(64+4*q)}')
        a(f'v_cvt_f32_f64 v{81+2*q}, {pr(66+4*q)}')
    for q in range(4):
        a(f'v_pk_mul_f32 {pr(80+2*q)}, {pr(80+2*q)}, s[48:49]')
    for q in range(4):
        a(f'v_cvt_pk_bf16_f32 v{88+q}, v{80+2*q}, v{81+2*q}')
    a(f'ds_write_b128 v97, v[88:91] offset:{L_REC}')
    a('s_cmp_ge_u32 s3, 8')
    a('s_cbranch_scc1 B_b4')
    for ks in range(4):
        a(f'ds_read_b128 {q4(48+4*ks)}, v98 offset:{1024*ks}')
        a(f'v_add_u32 v{92+ks}, {L_REC-L_X}, v{92+ks}')
    a('s_waitcnt lgkmcnt(4)')
    a('s_branch B_b4x')
    a.lab('B_b4')
    a('s_waitcnt lgkmcnt(0)')
    a.lab('B_b4x')
    a('s_barrier')
    stamp(a, 11, 3)
    a('s_cmp_ge_u32 s3, 8')
    a('s_cbranch_scc1 B_b5')
    for ks in range(4):
        a(f'ds_read_b128 {q4(32+4*ks)}, v{92+ks}')
    a('s_movk_i32 s51, 272')
    a('v_mul_u32_u24 v17, s51, v8')
    a('v_lshl_add_u32 v17, v9, 6, v17')
    a('s_lshl_b32 s51, s34, 7')
    a(f's_add_u32 s51, s51, {L_AGG}')
    a('v_add_u32 v17, s51, v17')
    for ks in range(4):
        a(f's_waitcnt lgkmcnt({3-ks})')
        a(f'v_mfma_f32_32x32x16_bf16 v[112:127], {q4(48+4*ks)}, {q4(32+4*ks)}, v[112:127]')
    a('s_nop 11')
    for q in range(4):
        a(f'ds_write_b128 v17, {q4(112+4*q)} offset:{16*q}')
    a.lab('B_b5')
    a('s_movk_i32 s51, 272')
    a('v_mul_u32_u24 v18, s51, v12')
    a('v_lshl_add_u32 v18, v2, 1, v18')
    a(f'v_add_u32 v18, {L_AGG}, v18')
    a('v_lshlrev_b32 v19, 4, v0')
    a('s_lshl_b32 s51, s37, 7')
    a(f'v_cmp_gt_u32 vcc, {NB*8}, v0')
    a('s_mov_b32 s52, s47')
    a('s_mov_b32 s53, s47')
    a('s_waitcnt lgkmcnt(0)')
    a('s_barrier')
    stamp(a, 12, 3)
    a('ds_read_b128 v[32:35], v18')
    a('ds_read_b128 v[36:39], v18 offset:16')
    a('s_waitcnt lgkmcnt(0)')
    for r in range(0, 8, 2): a(f'v_pk_mul_f32 {pr(64+r)}, {pr(32+r)}, s[52:53]')
    for r in range(8): a(f'v_exp_f32 v{64+r}, v{64+r}')
    for r in range(0, 8, 2): a(f'v_pk_add_f32 {pr(64+r)}, {pr(64+r)}, s[44:45]')
    for r in range(8): a(f'v_rcp_f32 v{64+r}, v{64+r}')
    for r in range(0, 8, 2): a(f'v_pk_mul_f32 {pr(64+r)}, {pr(64+r)}, {pr(32+r)}')
    for r in range(0, 8, 2): a(f'v_cvt_pk_bf16_f32 v{40+r//2}, v{64+r}, v{65+r}')
    stamp(a, 13, 3)
    a('s_and_b64 exec, exec, vcc')
    a(f'buffer_store_dwordx4 v[40:43], v19, s[24:27], s51 offen {ST_O}')
    a.lab('B_done2')
    stamp_out(a, 1, 88, 3)
    a.lab('B_done')
    a('s_endpgm')

def kd(a, name, vgpr, sgpr):
    a.raw('.p2align 6')
    a.raw(f'.amdhsa_kernel {name}')
    a.raw(f'  .amdhsa_next_free_vgpr {vgpr}')
    a.raw(f'  .amdhsa_next_free_sgpr {sgpr}')
    a.raw(f'  .amdhsa_accum_offset {(vgpr+3)//4*4}')
    a.raw('  .amdhsa_group_segment_fixed_size 0')
    a.raw('  .amdhsa_kernarg_size 72')
    a.raw('  .amdhsa_user_sgpr_count 2')
    a.raw('  .amdhsa_user_sgpr_kernarg_segment_ptr 1')
    a.raw('  .amdhsa_system_sgpr_workgroup_id_x 1')
    a.raw('.end_amdhsa_kernel')

def main():
    ref = open('gather_scatter__mpnn_edge_mlp__graph.s.ref').read().splitlines()
    hdr = [l for l in ref if l.startswith(';') and '@launch' not in l and 'Override' not in l and 'grid=ceil' not in l]
    a = A()
    for l in hdr: a.raw(l)
    a.raw(f'; @launch kernel=mpnn_bin_kernel grid=({A_GRID},1,1) block=({A_BLOCK},1,1) lds={A_LDS}')
    a.raw(f'; @launch kernel=mpnn_main_kernel grid=({NBK},1,1) block=(1024,1,1) lds={B_LDS}')
    a.raw('.amdgcn_target "amdgcn-amd-amdhsa--gfx950"')
    a.raw('.text')
    kernel_a(a)
    kernel_b(a)
    a.raw('.section .rodata,"a"')
    kd(a, 'mpnn_bin_kernel', 128, 100)
    kd(a, 'mpnn_main_kernel', 128, 100)
    out = sys.argv[1] if len(sys.argv) > 1 else 'gather_scatter__mpnn_edge_mlp__graph.s'
    open(out, 'w').write('\n'.join(a.l) + '\n')

main()
```

```python
import sys, struct, os
DEBUG = int(os.environ.get('DEBUG', '0'))
PRIO = int(os.environ.get('PRIO', '1'))
XMAP = int(os.environ.get('XMAP', '1'))
PREF = int(os.environ.get('PREF', '0'))
CPF = int(os.environ.get('CPF', '0'))
TLBW = int(os.environ.get('TLBW', '0'))
ST_O = os.environ.get('ST_O', 'sc0 sc1')
LATESRC = int(os.environ.get('LATESRC', '1'))
TOUCH = int(os.environ.get('TOUCH', '4'))
PT = [int(x) for x in os.environ.get('PT', '2,6,7').split(',')]
GFIRST = int(os.environ.get('GFIRST', '1'))
EG0 = int(os.environ.get('EG0', '4'))
FORCE_PLAIN = int(os.environ.get('FORCE_PLAIN', '0'))

N = 25000; E = 800000
NB = 98
NBK = 256
CH = 3200
NCH = 250
WS_REC = 0
WS_TAB = 0x700000
WS_PF  = 0x780000
WS_PT  = 0x800000
WS_WF  = 0x7C0000
REC_BYTES = NCH*CH*8
TAB_BYTES = NCH*NBK*4
PF_BYTES  = 1000*4
PT_BYTES  = (N+1)*128
WF_BYTES  = 3*8192 + 512
WF_W3 = 3*8192
LOG2E = 1.4426950408889634
LN2 = 0.6931471805599453
LIM_P = 3.0; LIM_Q = 3.0; LIM_E_BF16 = 0x4040; LIM_W = 3.0
def f32(x): return struct.unpack('<I', struct.pack('<f', x))[0]

class A:
    def __init__(s): s.l = []
    def __call__(s, t): s.l.append('    ' + t)
    def lab(s, t): s.l.append(t + ':')
    def raw(s, t): s.l.append(t)

def srd(a, d, base, off, nbytes):
    if off:
        a(f's_add_u32 s{d}, s{base}, {hex(off)}')
        a(f's_addc_u32 s{d+1}, s{base+1}, 0')
    else:
        a(f's_mov_b32 s{d}, s{base}')
        a(f's_mov_b32 s{d+1}, s{base+1}')
    a(f's_mov_b32 s{d+2}, {hex(nbytes)}')
    a(f's_mov_b32 s{d+3}, 0x00020000')

PROF_OFF = 0x4000000
def stamp(a, i, vr=65, sr=92):
    if not DEBUG: return
    a(f's_memrealtime s[{sr}:{sr+1}]')
    a('s_waitcnt lgkmcnt(0)')
    a(f'v_writelane_b32 v{vr}, s{sr}, {i}')
def stampc(a, i, vr=65, sr=92):
    if not DEBUG: return
    a(f's_memtime s[{sr}:{sr+1}]')
    a('s_waitcnt lgkmcnt(0)')
    a(f'v_writelane_b32 v{vr}, s{sr}, {i}')
def stamp_out(a, kern, wsreg, vr=65, sr=92, tmp=6):
    if not DEBUG: return
    a('s_waitcnt vmcnt(0)')
    stamp(a, 15, vr, sr)
    a('s_mov_b64 exec, -1')
    srd(a, 96, wsreg, PROF_OFF + kern*0x400000, 0x400000)
    a(f's_lshl_b32 s{sr}, s2, 4')
    a(f's_add_u32 s{sr}, s{sr}, s3')
    a(f's_lshl_b32 s{sr}, s{sr}, 8')
    a(f'v_lshlrev_b32 v{tmp}, 2, v1')
    a(f'buffer_store_dword v{vr}, v{tmp}, s[96:99], s{sr} offen')

def wave_scan(a, v):
    for sh in (1, 2, 4, 8):
        a('s_nop 1')
        a(f'v_add_u32_dpp v{v}, v{v}, v{v} row_shr:{sh} row_mask:0xf bank_mask:0xf bound_ctrl:0')
    a('s_nop 1')
    a(f'v_add_u32_dpp v{v}, v{v}, v{v} row_bcast:15 row_mask:0xa bank_mask:0xf')
    a('s_nop 1')
    a(f'v_add_u32_dpp v{v}, v{v}, v{v} row_bcast:31 row_mask:0xc bank_mask:0xf')

def pr(r): return f'v[{r}:{r+1}]'
def q4(r): return f'v[{r}:{r+3}]'

A_GEMM0 = NCH
A_PREP0 = NCH + 250
A_GRID = A_PREP0 + 4
A_BLOCK = 448
A_XT = 0
A_W1 = 4*4096
A_LDS = 2112 + CH*8
A_STAGE = 2048 + 64
A_EFLAG = 2048
ST_A = os.environ.get('ST_A', 'sc0 sc1')

def kernel_a(a):
    a.raw('.globl mpnn_bin_kernel')
    a.raw('.p2align 8')
    a.raw('.type mpnn_bin_kernel,@function')
    a.lab('mpnn_bin_kernel')
    if DEBUG:
        a('s_memrealtime s[94:95]')
        a('s_getreg_b32 s62, hwreg(HW_REG_HW_ID)')
        a('s_getreg_b32 s63, hwreg(HW_REG_XCC_ID)')
    a('s_load_dwordx16 s[4:19], s[0:1], 0')
    a('s_load_dwordx2 s[20:21], s[0:1], 64')
    if CPF:
        a('s_getpc_b64 s[60:61]')
        a.lab('A_pc')
        a('v_lshlrev_b32 v100, 4, v0')
        a('v_add_u32 v101, 7168, v100')
        a('v_min_u32 v101, code_end-A_pc-16, v101')
        a('v_min_u32 v100, code_end-A_pc-16, v100')
        a('global_load_dwordx4 v[104:107], v100, s[60:61]')
        a('global_load_dwordx4 v[108:111], v101, s[60:61]')
    a(f's_cmp_ge_u32 s2, {A_GRID}')
    a('s_cbranch_scc1 A_done')
    a('v_lshrrev_b32 v1, 6, v0')
    a('v_lshlrev_b32 v3, 4, v0')
    a('v_readfirstlane_b32 s3, v1')
    a('v_and_b32 v1, 63, v0')
    a(f's_cmp_ge_u32 s2, {A_PREP0}')
    a('s_cbranch_scc1 A_prep')
    if GFIRST:
        a(f's_add_u32 s22, s2, {NCH}')
        a(f's_sub_u32 s23, s2, {NCH}')
        a(f's_cmp_lt_u32 s2, {NCH}')
        a('s_cselect_b32 s2, s22, s23')
    a(f's_cmp_ge_u32 s2, {A_GEMM0}')
    a('s_cbranch_scc1 A_gemm')
    a('v_cmp_gt_u32 vcc, 400, v0')
    a('s_and_b64 exec, exec, vcc')
    a('v_lshlrev_b32 v2, 3, v0')
    a(f's_mul_i32 s44, s2, {CH*4}')
    a(f's_mul_i32 s45, s2, {CH*2}')
    a(f's_add_u32 s50, s44, {CH*2}')
    a(f's_add_u32 s51, s45, {CH}')
    a('s_waitcnt lgkmcnt(0)')
    srd(a, 24, 10, 0, E*4)
    a('buffer_load_dwordx4 v[8:11], v3, s[24:27], s44 offen')
    a('buffer_load_dwordx4 v[12:15], v3, s[24:27], s50 offen')
    srd(a, 28, 8, 0, E*4)
    srd(a, 32, 6, 0, E*2)
    def srcloads():
        a('buffer_load_dwordx4 v[16:19], v3, s[28:31], s44 offen')
        a('buffer_load_dwordx4 v[20:23], v3, s[28:31], s50 offen')
        a('buffer_load_dwordx2 v[24:25], v2, s[32:35], s45 offen')
        a('buffer_load_dwordx2 v[26:27], v2, s[32:35], s51 offen')
    if not LATESRC: srcloads()
    stamp(a, 0, 70)
    if DEBUG:
        a('v_writelane_b32 v70, s94, 8')
        a('v_writelane_b32 v70, s62, 9')
        a('v_writelane_b32 v70, s63, 10')
    a('v_lshlrev_b32 v5, 2, v0')
    a('v_mov_b32 v4, 0')
    a('v_mov_b32 v6, 2048')
    a('v_cmp_gt_u32 vcc, 256, v0')
    a('s_nop 1')
    a('v_cndmask_b32 v5, v6, v5, vcc')
    a('ds_write_b32 v5, v4')
    if TLBW:
        srd(a, 36, 20, 0, 0xC00000)
        a('v_lshlrev_b32 v7, 20, v1')
        a('buffer_load_dword v71, v7, s[36:39], 0 offen')
    srd(a, 36, 20, WS_REC, REC_BYTES)
    srd(a, 40, 20, WS_TAB, TAB_BYTES)
    a('s_mov_b32 s46, 42800')
    a('s_mov_b32 s47, -196')
    a('s_mov_b32 s48, 0xffff0000')
    a('s_mov_b32 s52, 0x7fff7fff')
    a('v_mov_b32 v4, 1')
    a('s_waitcnt lgkmcnt(0)')
    a('s_barrier')
    for hf in range(2):
        if LATESRC:
            a(f's_waitcnt vmcnt({1 if hf == 0 else 4})')
            if hf == 0: srcloads()
        else:
            a(f's_waitcnt vmcnt({5-hf+TLBW})')
        if hf == 0: stamp(a, 1, 70)
        for j in range(4*hf, 4*hf+4):
            a(f'v_mul_u32_u24 v{28+j}, s46, v{8+j}')
            a(f'v_lshrrev_b32 v{28+j}, 22, v{28+j}')
            a(f'v_lshlrev_b32 v{28+j}, 2, v{28+j}')
            a(f'ds_add_rtn_u32 v{56+j}, v{28+j}, v4')
    for j in range(8):
        a(f'v_lshlrev_b32 v{8+j}, 3, v{8+j}')
        a(f'v_mad_i32_i24 v{41+2*j}, v{28+j}, s47, v{8+j}')
    a('s_mov_b64 s[22:23], exec')
    a('s_waitcnt lgkmcnt(0)')
    a('s_barrier')
    stamp(a, 2, 70)
    a('s_mov_b64 exec, -1')
    a('v_lshlrev_b32 v5, 4, v1')
    a('ds_read_b128 v[8:11], v5')
    a('s_waitcnt lgkmcnt(0)')
    a('v_add_u32 v13, v8, v9')
    a('v_add_u32 v14, v13, v10')
    a('v_add_u32 v15, v14, v11')
    a('v_mov_b32 v72, v15')
    wave_scan(a, 72)
    a('v_sub_u32 v12, v72, v15')
    a('v_add_u32 v15, v12, v14')
    a('v_add_u32 v14, v12, v13')
    a('v_add_u32 v13, v12, v8')
    for k in range(4):
        a(f'v_lshlrev_b32 v{72+k}, 3, v{12+k}')
    a('ds_write_b128 v5, v[72:75] offset:1024')
    for k in range(4):
        a(f'v_lshl_or_b32 v{64+k}, v{8+k}, 16, v{12+k}')
    a('s_mov_b64 exec, s[22:23]')
    a('s_waitcnt lgkmcnt(0)')
    for j in range(8):
        a(f'ds_read_b32 v{8+j}, v{28+j} offset:1024')
    a('s_waitcnt vmcnt(0)')
    for j in range(8):
        if j % 2 == 0:
            a(f'v_lshlrev_b32 v{40+2*j}, 16, v{24+j//2}')
        else:
            a(f'v_and_b32 v{40+2*j}, s48, v{24+j//2}')
        a(f'v_lshl_or_b32 v{41+2*j}, v{41+2*j}, 16, v{16+j}')
    for j in range(4):
        a(f'v_and_b32 v{24+j}, s52, v{24+j}')
    a('v_pk_max_u16 v24, v24, v25')
    a('v_pk_max_u16 v26, v26, v27')
    a('v_pk_max_u16 v24, v24, v26')
    a('v_lshrrev_b32 v25, 16, v24')
    a('v_and_b32 v24, 0xffff, v24')
    a('v_max_u32 v24, v24, v25')
    a(f'v_cmp_lt_u32 vcc, {hex(LIM_E_BF16)}, v24')
    a('s_and_saveexec_b64 s[54:55], vcc')
    a('s_cbranch_execz A_eok')
    a('v_mov_b32 v25, 0x80000000')
    a('ds_write_b32 v6, v25')
    a.lab('A_eok')
    a('s_mov_b64 exec, s[54:55]')
    a('s_waitcnt lgkmcnt(0)')
    for j in range(8):
        a(f'v_lshl_add_u32 v{8+j}, v{56+j}, 3, v{8+j}')
    stamp(a, 3, 70)
    for j in range(8):
        a(f'ds_write_b64 v{8+j}, {pr(40+2*j)} offset:{A_STAGE}')
    a('s_waitcnt lgkmcnt(0)')
    a('s_barrier')
    stamp(a, 4, 70)
    a('s_cmp_lg_u32 s3, 6')
    a('s_cbranch_scc1 A_notab')
    a('s_mov_b64 exec, -1')
    a('v_mov_b32 v6, 2048')
    a('ds_read_b32 v7, v6')
    a('s_lshl_b32 s49, s2, 10')
    a('s_waitcnt lgkmcnt(0)')
    for k in range(4):
        a(f'v_or_b32 v{64+k}, v{64+k}, v7')
    a(f'buffer_store_dwordx4 v[64:67], v5, s[40:43], s49 offen {ST_A}')
    a('s_mov_b64 exec, s[22:23]')
    a.lab('A_notab')
    for j in range(4):
        a(f'ds_read_b128 {q4(8+4*j)}, v3 offset:{A_STAGE+6400*j}')
    a(f's_mul_i32 s49, s2, {CH*8}')
    for j in range(4):
        a(f's_waitcnt lgkmcnt({3-j})')
        a(f'buffer_store_dwordx4 {q4(8+4*j)}, v3, s[36:39], s49 offen {ST_A}')
        if j < 3:
            a(f's_add_u32 s49, s49, 6400')
    stamp(a, 5, 70)
    stamp_out(a, 0, 20, 70)
    a('s_endpgm')

    a.lab('A_gemm')
    a(f's_sub_u32 s22, s2, {A_GEMM0}')
    a('s_mul_i32 s48, s22, 12800')
    a('s_add_u32 s49, s48, 12800')
    a('s_lshl_b32 s22, s22, 2')
    a('s_add_u32 s22, s22, s3')
    a('v_and_b32 v2, 31, v1')
    a('v_lshrrev_b32 v3, 5, v1')
    a('v_lshlrev_b32 v4, 2, v2')
    a('v_lshl_add_u32 v7, v3, 9, v4')
    a('v_lshl_add_u32 v4, v3, 10, v4')
    a(f'v_add_u32 v4, {A_W1}, v4')
    a('v_lshlrev_b32 v5, 4, v0')
    a('s_lshl_b32 s23, s3, 12')
    a('s_add_u32 s23, s23, s48')
    a('v_lshlrev_b32 v6, 4, v1')
    a('s_lshl_b32 s42, s3, 12')
    a('v_add_u32 v7, s42, v7')
    a('v_lshrrev_b32 v8, 3, v1')
    a('v_and_b32 v9, 7, v1')
    a('v_xor_b32 v10, v9, v8')
    a('v_lshlrev_b32 v10, 4, v10')
    a('v_lshl_add_u32 v10, v8, 7, v10')
    a('v_add_u32 v10, s42, v10')
    a('v_xor_b32 v9, v9, v3')
    a('v_lshlrev_b32 v8, 7, v2')
    a('v_add_u32 v8, s42, v8')
    for ks in range(4):
        a(f'v_xor_b32 v{11+ks}, {2*ks}, v9')
        a(f'v_lshl_add_u32 v{11+ks}, v{11+ks}, 4, v8')
    a('s_waitcnt lgkmcnt(0)')
    srd(a, 24, 4, 0, N*128)
    a('s_mov_b32 s26, s49')
    srd(a, 28, 12, 0, 64*128)
    a('s_movk_i32 s43, 7168')
    a('buffer_load_dwordx4 v[16:19], v5, s[28:31], 0 offen')
    a('buffer_load_dwordx4 v[20:23], v5, s[28:31], s43 offen')
    for j in range(4):
        a(f'buffer_load_dwordx4 {q4(48+4*j)}, v6, s[24:27], s23 offen offset:{1024*j}')
    stamp(a, 0, 15)
    if DEBUG:
        a('v_writelane_b32 v15, s94, 8')
        a('v_writelane_b32 v15, s62, 9')
        a('v_writelane_b32 v15, s63, 10')
    srd(a, 32, 20, WS_PT, N*128)
    a('s_mov_b32 s34, s49')
    srd(a, 44, 20, WS_PF, PF_BYTES)
    a('s_mov_b32 s36, 0x05040100')
    a('s_mov_b32 s37, 0x07060302')
    a(f's_mov_b32 s38, {hex(f32(-LOG2E))}')
    a('s_mov_b32 s39, 0x7fffffff')
    a('s_mov_b32 s40, 0x7fff0000')
    a(f's_mov_b32 s41, {hex(f32(LIM_P))}')
    a('s_waitcnt vmcnt(4)')
    a(f'ds_write_b128 v5, v[16:19] offset:{A_W1}')
    a('s_cmp_lg_u32 s3, 0')
    a('s_cbranch_scc1 A_w1done')
    a(f'ds_write_b128 v5, v[20:23] offset:{A_W1+7168}')
    a.lab('A_w1done')
    a('s_waitcnt lgkmcnt(0)')
    a('s_barrier')
    a('s_cmp_ge_u32 s3, 4')
    a('s_cbranch_scc1 A_done')
    for ks in range(4):
        if ks: a('v_add_u32 v4, 2048, v4')
        for jj in range(4):
            a(f'ds_read2_b32 {pr(16+8*ks+2*jj)}, v4 offset0:{64*jj} offset1:{64*jj+32}')
    a('s_waitcnt vmcnt(0)')
    for j in range(4):
        a(f'ds_write_b128 v10, {q4(48+4*j)} offset:{1024*j}')
    a('s_waitcnt lgkmcnt(0)')
    for ks in range(4):
        a(f'ds_read_b128 {q4(48+4*ks)}, v{11+ks}')
    stamp(a, 1, 15)
    for ks in range(4):
        for jj in range(4):
            r0 = 16+8*ks+2*jj
            a(f'v_perm_b32 v{64+4*ks+jj}, v{r0+1}, v{r0}, s36')
            a(f'v_perm_b32 v{80+4*ks+jj}, v{r0+1}, v{r0}, s37')
    a('s_waitcnt lgkmcnt(0)')
    for ks in range(4):
        c0 = '0' if ks == 0 else 'v[96:111]'
        c1 = '0' if ks == 0 else 'v[112:127]'
        a(f'v_mfma_f32_32x32x16_bf16 v[96:111], {q4(48+4*ks)}, {q4(64+4*ks)}, {c0}')
        a(f'v_mfma_f32_32x32x16_bf16 v[112:127], {q4(48+4*ks)}, {q4(80+4*ks)}, {c1}')
    a('s_nop 15')
    stamp(a, 2, 15)
    for r in range(16):
        a(f'v_mul_f32 v{96+r}, s38, v{96+r}')
    for r in range(16):
        a(f'v_mul_f32 v{112+r}, s38, v{112+r}')
    for r in range(0, 16, 2):
        a(f'v_cvt_pk_bf16_f32 v{16+r}, v{96+r}, v{97+r}')
    for r in range(0, 16, 2):
        a(f'v_lshrrev_b32 v{17+r}, 16, v{16+r}')
        a(f'v_and_b32 v{16+r}, 0xffff, v{16+r}')
    for r in range(16):
        a(f'v_and_b32 v{32+r}, s39, v{112+r}')
    for r in range(16):
        a(f'v_add_u32 v{32+r}, 0x8000, v{32+r}')
    for r in range(16):
        a(f'v_sub_u32 v{32+r}, v{32+r}, v{16+r} clamp')
    for r in range(16):
        a(f'v_and_or_b32 v{32+r}, v{32+r}, s40, v{16+r}')
    for r in range(16):
        a(f'v_bfi_b32 v{32+r}, s39, v{32+r}, v{112+r}')
        a(f'ds_write_b32 v7, v{32+r} offset:{((r&3)+8*(r>>2))*128}')
    a('v_add_u32 v8, s42, v6')
    a('s_waitcnt lgkmcnt(0)')
    for j in range(4):
        a(f'ds_read_b128 {q4(48+4*j)}, v8 offset:{1024*j}')
    a('v_max_f32 v64, |v96|, |v97|')
    for r in range(2, 32, 2):
        a(f'v_max3_f32 v64, v64, |v{96+r}|, |v{97+r}|')
    a('v_cmp_lt_f32 vcc, s41, v64')
    for j in range(4):
        a(f's_waitcnt lgkmcnt({3-j})')
        a(f'buffer_store_dwordx4 {q4(48+4*j)}, v6, s[32:35], s23 offen offset:{1024*j} {ST_A}')
    a('s_lshl_b32 s43, s22, 2')
    a('v_mov_b32 v66, 0')
    a('s_cmp_lg_u64 vcc, 0')
    a('s_cselect_b32 s42, 1, 0')
    a('v_mov_b32 v65, s42')
    a('s_mov_b64 exec, 1')
    a(f'buffer_store_dword v65, v66, s[44:47], s43 offen {ST_A}')
    stamp(a, 5, 15)
    stamp_out(a, 0, 20, 15)
    a('s_endpgm')

    a.lab('A_prep')
    a(f's_sub_u32 s50, s2, {A_PREP0}')
    a('s_mul_i32 s50, s50, 7')
    a('s_add_u32 s50, s50, s3')
    a('s_cmp_gt_u32 s50, 24')
    a('s_cbranch_scc1 A_done')
    a('s_lshr_b32 s22, s50, 3')
    a('s_bfe_u32 s23, s50, 0x10002')
    a('s_and_b32 s24, s50, 3')
    a('v_and_b32 v2, 31, v1')
    a('v_lshrrev_b32 v3, 5, v1')
    a('v_bfe_u32 v4, v2, 2, 1')
    a('v_and_b32 v5, 3, v2')
    a('v_lshrrev_b32 v6, 3, v2')
    a('v_lshl_add_u32 v5, v6, 2, v5')
    a('s_waitcnt lgkmcnt(0)')
    srd(a, 32, 20, WS_WF, WF_BYTES)
    a('s_cmp_eq_u32 s50, 24')
    a('s_cbranch_scc1 A_prep_w3')
    a('s_cmp_lg_u32 s22, 0')
    a('s_cbranch_scc1 A_prep_u')
    srd(a, 28, 12, 0, 129*128)
    a('v_lshrrev_b32 v6, 3, v5')
    a('v_lshl_add_u32 v6, v4, 2, v6')
    a('s_lshl_b32 s25, s23, 1')
    a('v_add_u32 v6, s25, v6')
    a('v_and_b32 v7, 7, v5')
    a('v_lshlrev_b32 v8, 1, v7')
    a('v_add_u32 v9, 1, v8')
    a('v_subrev_u32 v8, 8, v8')
    a('v_cmp_gt_u32 vcc, 4, v7')
    a('s_nop 1')
    a('v_cndmask_b32 v8, v8, v9, vcc')
    a('v_lshl_add_u32 v8, v6, 3, v8')
    a('v_lshlrev_b32 v8, 1, v8')
    a('v_lshl_add_u32 v8, v3, 10, v8')
    a('s_lshl_b32 s26, s24, 11')
    a('s_add_u32 s26, s26, 8192')
    for j in range(8):
        a(f'buffer_load_ushort v{32+j}, v8, s[28:31], s26 offen offset:{128*j}')
    a('s_branch A_prep_st')
    a.lab('A_prep_u')
    srd(a, 28, 14, 0, 128*128)
    a('v_lshl_add_u32 v8, v4, 4, v5')
    a('s_lshl_b32 s25, s23, 5')
    a('v_add_u32 v8, s25, v8')
    a('v_lshlrev_b32 v8, 1, v8')
    a('s_cmp_lg_u32 s22, 1')
    a('s_cbranch_scc1 A_prep_agg')
    a('v_lshl_add_u32 v8, v3, 10, v8')
    a('s_lshl_b32 s26, s24, 11')
    for j in range(8):
        a(f'buffer_load_ushort v{32+j}, v8, s[28:31], s26 offen offset:{128*j}')
    a('s_branch A_prep_st')
    a.lab('A_prep_w3')
    srd(a, 44, 20, WS_PT + N*128, 128)
    a('v_mov_b32 v20, 0x71497149')
    a('v_mov_b32 v21, v20')
    a('v_mov_b32 v22, v20')
    a('v_mov_b32 v23, v20')
    a('v_lshlrev_b32 v24, 4, v1')
    a('buffer_store_dwordx4 v[20:23], v24, s[44:47], 0 offen')
    srd(a, 36, 12, 0, 129*128)
    a('v_and_b32 v10, 7, v1')
    a('v_lshlrev_b32 v11, 4, v10')
    a('s_movk_i32 s27, 0x4000')
    a('buffer_load_dwordx4 v[44:47], v11, s[36:39], s27 offen')
    a(f's_mov_b32 s40, {hex(f32(-LOG2E))}')
    a('s_waitcnt vmcnt(0)')
    for i in range(4):
        a(f'v_and_b32 v{48+i}, 0xffff0000, v{44+i}')
        a(f'v_lshlrev_b32 v{52+i}, 16, v{44+i}')
    for i in range(8):
        a(f'v_mul_f32 v{48+i}, s40, v{48+i}')
    a('v_max3_f32 v44, |v48|, |v49|, |v50|')
    a('v_max3_f32 v44, v44, |v51|, |v52|')
    a('v_max3_f32 v44, v44, |v53|, |v54|')
    a('v_max_f32 v44, v44, |v55|')
    a(f'v_cmp_lt_f32 vcc, {hex(f32(LIM_W))}, v44')
    a('v_lshlrev_b32 v11, 5, v10')
    a('s_cmp_lg_u64 vcc, 0')
    a('s_cselect_b32 s41, 1, 0')
    a('v_mov_b32 v45, s41')
    a('v_mov_b32 v46, 0')
    a(f's_movk_i32 s27, {WF_W3}')
    a('buffer_store_dwordx4 v[48:51], v11, s[32:35], s27 offen')
    a('buffer_store_dwordx4 v[52:55], v11, s[32:35], s27 offen offset:16')
    a('buffer_store_dword v45, v46, s[32:35], s27 offen offset:256')
    a('s_endpgm')
    a.lab('A_prep_agg')
    a('v_lshl_add_u32 v8, v3, 11, v8')
    a('s_and_b32 s26, s24, 1')
    a('s_lshl_b32 s26, s26, 5')
    a('s_lshr_b32 s27, s24, 1')
    a('s_lshl_b32 s27, s27, 1')
    a('s_add_u32 s26, s26, s27')
    a('s_add_u32 s26, s26, 64')
    a('s_lshl_b32 s26, s26, 7')
    for j in range(8):
        i_ = 2*(j >> 1)
        ph = 2*i_+1 if i_ < 4 else 2*i_-8
        a(f'buffer_load_ushort v{32+j}, v8, s[28:31], s26 offen offset:{(8*(j & 1)+ph)*128}')
    a.lab('A_prep_st')
    a('s_lshl_b32 s25, s50, 10')
    a('v_lshlrev_b32 v9, 4, v1')
    a('s_waitcnt vmcnt(0)')
    for j in range(4):
        a(f'v_lshl_or_b32 v{16+j}, v{33+2*j}, 16, v{32+2*j}')
    a('buffer_store_dwordx4 v[16:19], v9, s[32:35], s25 offen')
    a.lab('A_done')
    a('s_endpgm')

RS = 288
L_CNT = 0
L_MAX = 1024
L_FLAG = 1028
L_F8C = 1032
L_TOT = 1036
L_WORK = 1040
L_OVF = 1044
L_L8 = 1056
L_L2 = L_L8 + 1600
L_REC = L_L2 + 832
ES = 528
DUMP_OFF = NB*ES
L_Q = L_REC + DUMP_OFF + 64
L_AGG = L_Q + (NB+1)*RS
L_X = L_AGG + (NB+1)*RS*2
L_WU = L_X + 13*1024
L_W3 = L_WU + 8192
B_LDS = L_W3 + 256
DUMMY1 = N | (NB*8) << 16
for x in (L_L8, L_REC, L_Q, L_AGG, L_X, L_WU): assert x % 16 == 0
assert B_LDS <= 163840 and L_Q + 128 < 65536

def kernel_b(a):
    a.raw('.globl mpnn_main_kernel')
    a.raw('.p2align 8')
    a.raw('.type mpnn_main_kernel,@function')
    a.lab('mpnn_main_kernel')
    a('s_load_dwordx2 s[80:81], s[0:1], 64')
    a('s_load_dwordx16 s[64:79], s[0:1], 0')
    a(f's_cmp_ge_u32 s2, {NBK}')
    a('s_cbranch_scc1 B_done')
    a('v_lshrrev_b32 v1, 6, v0')
    a('v_lshrrev_b32 v4, 3, v0')
    a('v_readfirstlane_b32 s3, v1')
    a('v_lshlrev_b32 v12, 10, v4')
    a('s_and_b32 s85, s2, 7')
    a('s_lshl_b32 s85, s85, 5')
    a('s_lshr_b32 s86, s2, 3')
    a('s_add_u32 s85, s85, s86')
    a('s_lshl_b32 s32, s85, 2')
    a('s_add_u32 s33, s32, 0x20000')
    a('v_and_b32 v1, 63, v0')
    a('v_and_b32 v3, 7, v0')
    a('v_lshlrev_b32 v2, 4, v3')
    a('v_lshlrev_b32 v11, 4, v1')
    a(f's_mul_i32 s37, s85, {NB}')
    a('s_lshl_b32 s39, s37, 7')
    a('s_lshl_b32 s40, s3, 10')
    a('s_add_u32 s39, s39, s40')
    a('s_and_b32 s34, s3, 1')
    a('s_lshl_b32 s41, s34, 12')
    a('s_waitcnt lgkmcnt(0)')
    ws = 80
    srd(a, 4, ws, WS_TAB, TAB_BYTES)
    a('buffer_load_dword v6, v12, s[4:7], s32 offen')
    a('buffer_load_dword v7, v12, s[4:7], s33 offen')
    stamp(a, 0)
    srd(a, 8, ws, WS_REC, REC_BYTES)
    a(f's_add_u32 s28, s80, {hex(WS_WF+WF_W3+256)}')
    a('s_addc_u32 s29, s81, 0')
    a('s_load_dword s90, s[28:29], 0')
    srd(a, 12, ws, WS_PT, PT_BYTES)
    srd(a, 24, 76, 0, N*128)
    a('s_mov_b64 s[88:89], s[80:81]')
    a('s_bfe_u32 s35, s3, 0x20001')
    a('s_lshl_b32 s38, s35, 5')
    a('v_and_b32 v8, 31, v1')
    a('v_add_u32 v8, s38, v8')
    a('v_lshrrev_b32 v9, 5, v1')
    a('v_lshlrev_b32 v3, 3, v3')
    a(f'v_add_u32 v3, {L_AGG}, v3')
    a('s_movk_i32 s42, 128')
    a(f's_movk_i32 s43, {ES//8}')
    a('s_mov_b32 s44, 1.0')
    a('s_mov_b32 s45, 1.0')
    a('s_mov_b32 s46, 0x3f80')
    a(f's_mov_b32 s47, {hex(f32(-LOG2E))}')
    a(f's_mov_b32 s48, {hex(f32(-LN2))}')
    a(f's_mov_b32 s49, {hex(f32(-LN2))}')
    a('s_mov_b32 s50, 0')
    a('s_mov_b32 s94, s47')
    a('s_mov_b32 s95, s47')
    a('s_movk_i32 s84, 72')
    a('s_mov_b32 s86, 0')
    a('s_mov_b32 s87, -1')
    srd(a, 16, 64, 0, N*128)
    srd(a, 20, ws, WS_WF, WF_BYTES)
    srd(a, 28, ws, WS_PF, PF_BYTES)
    a.lab('B_batch')
    a('v_lshlrev_b32 v12, 4, v0')
    a('s_cmp_ge_u32 s3, 4')
    a('s_cbranch_scc1 B_noini')
    a(f'v_mov_b32 v16, {hex(DUMP_OFF | DUMP_OFF << 16)}')
    a(f'v_cmp_gt_u32 vcc, {L_L8//16}, v0')
    a('v_mov_b32 v28, 0')
    a(f'v_mov_b32 v29, {hex(DUMMY1)}')
    a('v_cndmask_b32 v16, v16, v28, vcc')
    a('v_mov_b32 v30, 0')
    a(f'v_mov_b32 v31, {hex(DUMMY1)}')
    a('v_mov_b32 v17, v16')
    a('v_mov_b32 v18, v16')
    a('v_mov_b32 v19, v16')
    a(f'v_cmp_gt_u32 vcc, {L_REC//16}, v0')
    a('s_and_saveexec_b64 s[68:69], vcc')
    a('ds_write_b128 v12, v[16:19]')
    a('s_mov_b64 exec, 15')
    a(f'ds_write_b128 v11, v[28:31] offset:{L_REC+DUMP_OFF}')
    a('s_mov_b64 exec, s[68:69]')
    a.lab('B_noini')
    a('v_and_b32 v14, 7, v0')
    a('v_lshlrev_b32 v14, 1, v14')
    a('v_add_u32 v14, s50, v14')
    a(f's_movk_i32 s51, {CH}')
    a('v_mul_u32_u24 v15, s51, v4')
    a('v_add_u32 v15, v15, v14')
    a('v_mov_b32 v25, 0x7fffff00')
    a('s_waitcnt lgkmcnt(0)')
    a('s_barrier')
    stamp(a, 9)
    a('s_waitcnt vmcnt(0)')
    stamp(a, 1)
    for rd_ in range(2):
        T_ = 6+rd_
        a(f'v_bfe_u32 v{20+rd_}, v{T_}, 16, 13')
        a(f'v_and_b32 v{22+rd_}, 0xffff, v{T_}')
        a(f'v_add_u32 v{22+rd_}, v{22+rd_}, v15')
        if rd_ == 1:
            a(f'v_add_u32 v{22+rd_}, {128*CH}, v{22+rd_}')
        a(f'v_lshlrev_b32 v{22+rd_}, 3, v{22+rd_}')
        a(f'v_sub_u32 v{16+rd_}, v{20+rd_}, v14')
    for s in range(8):
        a(f'v_cmp_lt_i32 s[{52+2*s}:{53+2*s}], {((s >> 1) & 1)*16+(s & 1)}, v{16+(s >> 2)}')
    a('s_cmp_eq_u32 s87, -1')
    a('s_cbranch_scc1 B_allsl')
    a('s_lshl_b32 s51, s3, 3')
    a('s_sub_u32 s51, s87, s51')
    for s in range(8):
        a(f's_cmp_eq_u32 s51, {s}')
        a(f's_cselect_b64 s[{52+2*s}:{53+2*s}], s[{52+2*s}:{53+2*s}], 0')
    a.lab('B_allsl')
    order = [(0, 0), (1, 0), (0, 1), (1, 1)]
    for rd_, ld in order:
        s = rd_*4+ld*2
        r = 96+(rd_*2+ld)*4
        a(f's_or_b64 vcc, s[{52+2*s}:{53+2*s}], s[{54+2*s}:{55+2*s}]')
        a(f'v_cndmask_b32 v{26+rd_*2+ld}, v25, v{22+rd_}, vcc')
        a(f'buffer_load_dwordx4 {q4(r)}, v{26+rd_*2+ld}, s[8:11], 0 offen offset:{128*ld}')
    a('v_max_i32 v16, v16, v17')
    a('v_or_b32 v17, v6, v7')
    a('v_cmp_lt_i32 s[70:71], 32, v16')
    a('v_cmp_gt_i32 s[72:73], 0, v17')
    a(f'v_mov_b32 v24, {L_MAX}')
    a('v_mov_b32 v16, 1')
    a('s_cmp_eq_u64 s[70:71], 0')
    a('s_cbranch_scc1 B_nomore')
    a('ds_write_b32 v24, v16')
    a.lab('B_nomore')
    lc = [0]
    def ranks(extra):
        a('v_mov_b32 v44, 8')
        for n, (rd_, ld) in enumerate(order):
            a(f's_waitcnt vmcnt({3-n+extra})')
            if n in (0, 3) and DEBUG:
                a('s_mov_b64 exec, -1')
                stamp(a, {0: 6, 3: 10}[n])
            for e in range(2):
                s = rd_*4+ld*2+e
                r = 96+(rd_*2+ld)*4+2*e
                a(f's_mov_b64 exec, s[{52+2*s}:{53+2*s}]')
                if ld:
                    lc[0] += 1
                    a(f's_cbranch_execz B_sk{lc[0]}')
                a(f'v_lshrrev_b32 v{112+s}, 16, v{r+1}')
                a(f'ds_add_rtn_u32 v{36+s}, v{112+s}, v44 offset:{L_CNT}')
                if ld: a.lab(f'B_sk{lc[0]}')
        a('s_mov_b64 exec, -1')
    a('s_cmp_lg_u32 s86, 0')
    a('s_cbranch_scc1 B_rk0')
    a('s_cmp_ge_u32 s3, 13')
    a('s_cbranch_scc1 B_a13')
    a('buffer_load_dwordx4 v[32:35], v11, s[16:19], s39 offen')
    a('s_cmp_ge_u32 s3, 8')
    a('s_cbranch_scc1 B_a8')
    a(f's_add_u32 m0, s40, {L_WU}')
    a('s_nop 0')
    a('buffer_load_dwordx4 v11, s[20:23], s40 offen lds')
    a('s_branch B_ax')
    a.lab('B_a8')
    a('s_sub_u32 s51, s40, 8192')
    a('buffer_load_dwordx4 v[48:51], v11, s[28:31], s51 offen')
    a('s_branch B_ax')
    a.lab('B_a13')
    a(f's_mov_b32 m0, {L_W3}')
    a(f's_movk_i32 s51, {WF_W3}')
    a('s_mov_b64 exec, 0xffff')
    a('buffer_load_dwordx4 v11, s[20:23], s51 offen lds')
    a('buffer_load_dwordx4 v11, s[20:23], s51 offen lds')
    a('s_mov_b64 exec, -1')
    a.lab('B_ax')
    for r in range(20, 24): a(f'v_mov_b32 v{r}, 0')
    a(f'v_add_u32 v13, {L_AGG}, v12')
    for j in range(3):
        a(f'ds_write_b128 v13, v[20:23] offset:{16384*j}')
    a(f'v_cmp_gt_u32 vcc, {NB*RS*2//16-3072}, v0')
    a('s_and_saveexec_b64 s[68:69], vcc')
    a('ds_write_b128 v13, v[20:23] offset:49152')
    a('s_mov_b64 exec, s[68:69]')
    a('v_lshrrev_b32 v45, 3, v1')
    a('v_and_b32 v46, 7, v1')
    a('v_xor_b32 v47, v46, v45')
    a('v_lshlrev_b32 v47, 4, v47')
    a('v_lshl_add_u32 v47, v45, 7, v47')
    a(f's_add_u32 s51, s40, {L_X}')
    a('v_add_u32 v47, s51, v47')
    ranks(2)
    a('s_waitcnt vmcnt(0)')
    a('s_cmp_ge_u32 s3, 13')
    a('s_cbranch_scc1 B_rkdone')
    a('ds_write_b128 v47, v[32:35]')
    a('s_cmp_lt_u32 s3, 8')
    a('s_cbranch_scc1 B_rkdone')
    a('v_or3_b32 v48, v48, v49, v50')
    a('v_or_b32 v48, v48, v51')
    a('v_cmp_ne_u32 vcc, 0, v48')
    a('s_nop 0')
    a('s_or_b64 s[72:73], s[72:73], vcc')
    a('s_branch B_rkdone')
    a.lab('B_rk0')
    ranks(0)
    a.lab('B_rkdone')
    a('s_cmp_eq_u64 s[72:73], 0')
    a('s_cbranch_scc1 B_noflag')
    a('ds_write_b32 v24, v16 offset:4')
    a.lab('B_noflag')
    a('s_movk_i32 s51, 504')
    a('s_waitcnt lgkmcnt(0)')
    stamp(a, 7)
    for s in (0, 1, 4, 5, 2, 3, 6, 7):
        r = 96+(s//2)*4+2*(s % 2)
        a(f's_mov_b64 exec, s[{52+2*s}:{53+2*s}]')
        sk = s in (2, 3, 6, 7)
        if sk:
            lc[0] += 1
            a(f's_cbranch_execz B_sk{lc[0]}')
        a(f'v_min_u32 v{36+s}, s51, v{36+s}')
        a(f'v_mad_u32_u24 v{36+s}, v{112+s}, s43, v{36+s}')
        a(f'ds_write_b64 v{36+s}, {pr(r)} offset:{L_REC}')
        if sk: a.lab(f'B_sk{lc[0]}')
    a('s_mov_b64 exec, -1')
    a('v_lshrrev_b32 v13, 3, v1')
    a('v_lshlrev_b32 v13, 1, v13')
    a(f'v_mov_b32 v14, {L_WORK}')
    a('v_mov_b32 v15, 1')
    a('v_xor_b32 v46, v46, v9')
    a('v_lshlrev_b32 v45, 7, v8')
    a(f'v_add_u32 v45, {L_X}, v45')
    for ks in range(4):
        a(f'v_xor_b32 v47, {2*ks}, v46')
        a(f'v_lshl_add_u32 v{92+ks}, v47, 4, v45')
    a(f's_add_u32 s68, s41, {L_WU}')
    a('v_add_u32 v126, s68, v11')
    a(f's_movk_i32 s68, {RS}')
    a('v_mul_u32_u24 v124, s68, v8')
    a('v_lshl_add_u32 v124, v9, 6, v124')
    a('s_lshl_b32 s68, s34, 5')
    a('v_add_u32 v124, s68, v124')
    a(f'v_mov_b32 v125, {NB}')
    a('v_cmp_gt_u32 s[74:75], v125, v8')
    a('v_lshlrev_b32 v125, 1, v2')
    a(f'v_add_u32 v125, {L_W3}, v125')
    a('s_lshl_b32 s51, s3, 6')
    a('v_lshl_add_u32 v120, v13, 2, s51')
    a('v_mul_u32_u24 v123, s43, v120')
    a(f'v_mov_b32 v122, {hex(DUMMY1)}')
    a('s_waitcnt lgkmcnt(0)')
    a('s_barrier')
    stamp(a, 2)
    a(f'ds_read_b32 v121, v120 offset:{L_CNT}')
    a(f'ds_read_b128 v[56:59], v123 offset:{L_REC}')
    a(f'ds_read_b128 v[60:63], v123 offset:{L_REC+16}')
    ec = [0]
    def early(g=False):
        a('v_cmp_le_u32 vcc, 64, v121')
        a(f'ds_read_b128 v[112:115], v123 offset:{L_REC+32}')
        a(f'ds_read_b128 v[116:119], v123 offset:{L_REC+48}')
        a('v_cndmask_b32 v57, v122, v57, vcc')
        if not g: return
        ec[0] += 1
        a(f's_cmp_lt_u32 s3, {EG0}')
        a(f's_cbranch_scc1 B_neg{ec[0]}')
        egath()
        a.lab(f'B_neg{ec[0]}')
    def egath():
        for k in range(4):
            a(f'v_mad_u32_u16 v{120+(k&1)}, v{57+2*k}, s42, v2')
            a(f'buffer_load_dwordx4 {q4(32+4*k)}, v{120+(k&1)}, s[12:15], 0 offen')
    a('s_cmp_lg_u32 s86, 0')
    a('s_cbranch_scc1 B_now3')
    a('s_cmp_lt_u32 s3, 8')
    a('s_cbranch_scc1 B_now3')
    a('s_mov_b32 s86, 1')
    for ks in range(4):
        a(f'ds_read_b128 {q4(76+4*ks)}, v{92+ks}')
        a(f'ds_read_b128 {q4(96+4*ks)}, v126 offset:{1024*ks}')
    a('ds_read_b128 v[68:71], v125')
    a('ds_read_b128 v[72:75], v125 offset:16')
    for ks in range(4):
        c = '0' if ks == 0 else 'v[16:31]'
        a(f's_waitcnt lgkmcnt({8-2*ks})')
        a(f'v_mfma_f32_32x32x16_bf16 v[16:31], {q4(96+4*ks)}, {q4(76+4*ks)}, {c}')
    a('s_cmp_ge_u32 s3, 13')
    a('s_cbranch_scc1 B_g13')
    early()
    a.lab('B_g13')
    a('s_nop 11')
    for r in range(0, 16, 2):
        a(f'v_pk_mul_f32 {pr(16+r)}, {pr(16+r)}, s[94:95]')
    a('s_mov_b64 exec, s[74:75]')
    for o in range(2):
        a(f'ds_write_b128 v124, {q4(16+8*o)} offset:{L_Q+16*o}')
        a(f'ds_write_b128 v124, {q4(20+8*o)} offset:{L_Q+128+16*o}')
    a('v_max_f32 v125, |v16|, |v17|')
    for r in range(2, 16, 2):
        a(f'v_max3_f32 v125, v125, |v{16+r}|, |v{17+r}|')
    a(f'v_cmp_lt_f32 vcc, {hex(f32(LIM_Q))}, v125')
    a('s_mov_b64 exec, -1')
    a(f'v_mov_b32 v125, {L_FLAG}')
    a('v_mov_b32 v126, 1')
    a('s_cbranch_vccz B_lsd')
    a('ds_write_b32 v125, v126')
    a('s_branch B_lsd')
    a.lab('B_now3')
    a('s_cmp_lt_u32 s3, 8')
    a('s_cbranch_scc1 B_l8')
    a('s_cmp_ge_u32 s3, 13')
    a('s_cbranch_scc1 B_lsd')
    a('s_waitcnt lgkmcnt(0)')
    early()
    a('s_branch B_lsd')
    a.lab('B_l8')
    a(f'ds_read_b128 v[16:19], v11 offset:{L_CNT}')
    a('s_cmp_lg_u32 s86, 0')
    a('s_cbranch_scc1 B_l8b')
    a('s_mov_b32 s86, 1')
    a('ds_read_b128 v[68:71], v125')
    a('ds_read_b128 v[72:75], v125 offset:16')
    a.lab('B_l8b')
    a(f'v_mul_u32_u24 v20, {2*ES}, v1')
    a(f'v_add_u32 v21, {ES}, v20')
    a('s_lshl_b32 s51, s3, 6')
    a('v_add_u32 v28, s51, v20')
    a('v_add_u32 v29, s51, v21')
    a('s_add_u32 s51, s51, 64')
    a(f'v_mov_b32 v24, {L_F8C}')
    a('s_waitcnt lgkmcnt(0)')
    a('s_cmp_lg_u32 s3, 0')
    a('s_cbranch_scc1 B_l8c')
    early()
    a('s_branch B_cls')
    a.lab('B_l8c')
    a('v_cmp_le_u32 s[68:69], s51, v16')
    a('v_cmp_le_u32 s[70:71], s51, v18')
    a('s_bcnt1_i32_b64 s72, s[68:69]')
    a('s_bcnt1_i32_b64 s73, s[70:71]')
    a('s_add_u32 s73, s73, s72')
    a('v_mov_b32 v25, s73')
    a('s_mov_b64 exec, 1')
    a('ds_add_rtn_u32 v26, v24, v25')
    a('s_mov_b64 exec, -1')
    a('v_mbcnt_lo_u32_b32 v22, s68, 0')
    a('v_mbcnt_hi_u32_b32 v22, s69, v22')
    a('v_mbcnt_lo_u32_b32 v23, s70, 0')
    a('v_mbcnt_hi_u32_b32 v23, s71, v23')
    a('v_add_u32 v23, s72, v23')
    early(True)
    a('s_waitcnt lgkmcnt(2)')
    a('v_readfirstlane_b32 s72, v26')
    a('s_nop 1')
    a('v_add_lshl_u32 v22, v22, s72, 1')
    a('v_add_lshl_u32 v23, v23, s72, 1')
    a('s_mov_b64 exec, s[68:69]')
    a(f'ds_write_b16 v22, v28 offset:{L_L8}')
    a('s_mov_b64 exec, s[70:71]')
    a(f'ds_write_b16 v23, v29 offset:{L_L8}')
    a('s_mov_b64 exec, -1')
    a('s_cmp_ge_u32 s3, 4')
    a('s_cbranch_scc1 B_lsd')
    a.lab('B_cls')
    for k in range(2):
        a(f'v_bfe_u32 v{82+k}, v{16+2*k}, 5, 1')
        a(f'v_bfe_u32 v{84+k}, v{16+2*k}, 3, 2')
    msk = [(52, 54), (56, 58), (60, 62), (64, 66)]
    for k in range(2):
        a(f'v_cmp_ne_u32 s[{msk[0][k]}:{msk[0][k]+1}], 0, v{82+k}')
        for c in range(1, 4):
            a(f'v_cmp_eq_u32 s[{msk[c][k]}:{msk[c][k]+1}], {4-c}, v{84+k}')
    a('v_max_u32 v86, v16, v18')
    a('v_cmp_lt_u32 vcc, 512, v86')
    a('s_mov_b32 s72, 0')
    a('s_mov_b32 s73, 0')
    for c in range(4):
        a(f's_cmp_eq_u32 s3, {c}')
        a(f's_cselect_b64 s[68:69], s[{msk[c][0]}:{msk[c][0]+1}], s[68:69]')
        a(f's_cselect_b64 s[70:71], s[{msk[c][1]}:{msk[c][1]+1}], s[70:71]')
        a('s_cselect_b32 s74, s72, s74')
        a(f's_bcnt1_i32_b64 s75, s[{msk[c][0]}:{msk[c][0]+1}]')
        a(f's_bcnt1_i32_b64 s76, s[{msk[c][1]}:{msk[c][1]+1}]')
        a('s_add_u32 s75, s75, s76')
        a('s_add_u32 s75, s75, 7')
        a('s_lshr_b32 s75, s75, 3')
        a('s_add_u32 s72, s72, s75')
        a(f's_lshl_b32 s75, s72, {8*c}')
        a('s_or_b32 s73, s73, s75')
    a('s_cmp_eq_u32 s3, 0')
    a('s_cselect_b32 s51, 63, 31')
    a('s_not_b32 s51, s51')
    a('s_lshl_b32 s74, s74, 3')
    a('s_bcnt1_i32_b64 s75, s[68:69]')
    a('s_add_u32 s75, s75, s74')
    a('v_and_b32 v16, s51, v16')
    a('v_and_b32 v18, s51, v18')
    a('v_add_u32 v20, v20, v16')
    a('v_add_u32 v21, v21, v18')
    a('v_mbcnt_lo_u32_b32 v82, s68, 0')
    a('v_mbcnt_hi_u32_b32 v82, s69, v82')
    a('v_mbcnt_lo_u32_b32 v83, s70, 0')
    a('v_mbcnt_hi_u32_b32 v83, s71, v83')
    a('v_add_lshl_u32 v82, v82, s74, 1')
    a('v_add_lshl_u32 v83, v83, s75, 1')
    a('s_mov_b64 exec, s[68:69]')
    a(f'ds_write_b16 v82, v20 offset:{L_L2}')
    a('s_mov_b64 exec, s[70:71]')
    a(f'ds_write_b16 v83, v21 offset:{L_L2}')
    a('s_mov_b64 exec, 1')
    a('s_cmp_lg_u64 vcc, 0')
    a('s_cselect_b32 s73, -1, s73')
    a(f'v_mov_b32 v84, {L_TOT}')
    a('v_mov_b32 v85, s73')
    a('ds_write_b32 v84, v85')
    a('s_mov_b64 exec, -1')
    a.lab('B_lsd')
    a('s_waitcnt lgkmcnt(0)')
    a('s_barrier')
    stamp(a, 3)
    stampc(a, 8)
    a('s_cmp_lg_u32 s85, -1')
    a('s_cbranch_scc0 B_nowu')
    a('s_mov_b32 s85, -1')
    a('s_cmp_lt_u32 s3, 13')
    a('s_cbranch_scc1 B_nowu')
    a('s_sub_u32 s51, s3, 13')
    a('s_mul_i32 s51, s51, 3072')
    a(f's_add_u32 m0, s51, {L_WU}')
    a('s_add_u32 s51, s51, 16384')
    a('buffer_load_dwordx4 v11, s[20:23], s51 offen lds')
    a('buffer_load_dwordx4 v11, s[20:23], s51 offen offset:1024 lds')
    a('s_cmp_eq_u32 s3, 15')
    a('s_cbranch_scc1 B_nowu')
    a('buffer_load_dwordx4 v11, s[20:23], s51 offen offset:2048 lds')
    a.lab('B_nowu')
    if DEBUG:
        for i_ in range(44, 60): a(f'v_writelane_b32 v65, 0, {i_}')
    RAW = 32; Q = 48; RCS = [56, 112]; IDX = 64; AGC = 66; AGN = 67; Z = 76; T = 16; T2 = 24; TMP = 108; NN = 120; DD = 4; EN = 111
    cnt = [0]
    def rd(st, off=0):
        a(f'ds_read_b128 {q4(RCS[st])}, v{EN} offset:{L_REC+off}')
        a(f'ds_read_b128 {q4(RCS[st]+4)}, v{EN} offset:{L_REC+off+16}')
    def ent8(sidx):
        a(f's_lshl_b32 s51, s{sidx}, 4')
        a(f'v_add_u32 v{TMP}, s51, v13')
        a(f'ds_read_u16 v{EN}, v{TMP} offset:{L_L8}')
    def ent4(sidx):
        a(f's_sub_u32 s79, s{sidx}, s74')
        a(f's_min_u32 s79, s79, 51')
        a(f's_lshl_b32 s51, s79, 4')
        a(f'v_add_u32 v{TMP}, s51, v13')
        a(f'ds_read_u16 v{EN}, v{TMP} offset:{L_L2}')
    def ent_any(sidx):
        n = cnt[0]; cnt[0] += 1
        a(f's_cmp_ge_u32 s{sidx}, s74')
        a(f's_cbranch_scc1 B_rrP{n}')
        ent8(sidx)
        a(f's_branch B_rrX{n}')
        a.lab(f'B_rrP{n}')
        ent4(sidx)
        a.lab(f'B_rrX{n}')
    def gather(st, k):
        a(f'v_mad_u32_u16 v{TMP+(k&1)}, v{RCS[st]+2*k+1}, s42, v2')
        a(f'buffer_load_dwordx4 {q4(RAW+4*k)}, v{TMP+(k&1)}, s[12:15], 0 offen')
    def qread(st):
        RC = RCS[st]
        a(f'v_mad_u32_u16 v{TMP+2}, v{RC+1}, 36, v2 op_sel:[1,0,0,0]')
        a(f'ds_read_b128 {q4(Q)}, v{TMP+2} offset:{L_Q}')
        a(f'ds_read_b128 {q4(Q+4)}, v{TMP+2} offset:{L_Q+128}')
        a(f'v_mad_u32_u16 v{AGN}, v{RC+1}, s84, v3 op_sel:[1,0,0,0]')
    def grab():
        a('s_mov_b64 exec, 1')
        a(f'ds_add_rtn_u32 v{IDX}, v14, v15')
        a('s_mov_b64 exec, -1')
    def cops(st):
        for k in range(4):
            for p in range(4):
                a(f'v_pk_fma_f32 {pr(Z+8*k+2*p)}, {pr(RCS[st]+2*k)}, {pr(68+2*p)}, {pr(Q+2*p)} op_sel_hi:[0,1,1]')
    def zadd(k, nst):
        R = RAW+4*k; Zk = Z+8*k
        a('s_waitcnt vmcnt(3)')
        for i in range(4):
            a(f'v_dot2_f32_bf16 v{Zk+4+i}, v{R+i}, s46, v{Zk+4+i}')
        a(f'v_pk_add_f32 {pr(Zk)}, {pr(R)}, {pr(Zk)}')
        a(f'v_pk_add_f32 {pr(Zk+2)}, {pr(R+2)}, {pr(Zk+2)}')
        gather(nst, k)
    def upd(k, first, nsrc):
        Zk = Z+8*k
        if first:
            for i in range(8): a(f'v_exp_f32 v{DD+i}, v{Zk+i}')
            for p in range(4): a(f'v_pk_add_f32 {pr(DD+2*p)}, {pr(DD+2*p)}, s[44:45]')
            return
        for i in range(8): a(f'v_exp_f32 v{T+i}, v{Zk+i}')
        for p in range(4): a(f'v_pk_fma_f32 {pr(Zk+2*p)}, {pr(Zk+2*p)}, {pr(DD+2*p)}, {pr(nsrc+2*p)}')
        for p in range(4): a(f'v_pk_fma_f32 {pr(NN+2*p)}, {pr(nsrc+2*p)}, {pr(T+2*p)}, {pr(Zk+2*p)}')
        for p in range(4): a(f'v_pk_fma_f32 {pr(DD+2*p)}, {pr(DD+2*p)}, {pr(T+2*p)}, {pr(DD+2*p)}')
    def updp(k, first):
        Zk = Z+8*k
        for i in range(8): a(f'v_exp_f32 v{T+i}, v{Zk+i}')
        for p in range(4): a(f'v_pk_add_f32 {pr(T+2*p)}, {pr(T+2*p)}, s[44:45]')
        for i in range(8): a(f'v_rcp_f32 v{T+i}, v{T+i}')
        for p in range(4):
            if first: a(f'v_pk_mul_f32 {pr(NN+2*p)}, {pr(Zk+2*p)}, {pr(T+2*p)}')
            else: a(f'v_pk_fma_f32 {pr(NN+2*p)}, {pr(Zk+2*p)}, {pr(T+2*p)}, {pr(NN+2*p)}')
    def flush(src):
        dd = [T, T+2, T+4, T+6, T2, T2+2, T2+4, T2+6]
        for i in range(8): a(f'v_cvt_f64_f32 {pr(dd[i])}, v{src+i}')
        for i in range(8): a(f'ds_add_f64 v{AGC}, {pr(dd[i])} offset:{64*i}')
    def finish(nsrc):
        for i in range(8): a(f'v_rcp_f32 v{DD+i}, v{DD+i}')
        for p in range(4): a(f'v_pk_mul_f32 {pr(DD+2*p)}, {pr(nsrc+2*p)}, {pr(DD+2*p)}')
        flush(DD)
    pc = [0]
    def prio(inc):
        if DEBUG:
            a('s_memrealtime s[92:93]')
            a('s_add_u32 m0, s83, 44')
            a('s_waitcnt lgkmcnt(0)')
            a('v_writelane_b32 v65, s92, m0')
        a(f's_add_u32 s83, s83, {inc}')
        if not PRIO: return
        n = pc[0]; pc[0] += 1
        a(f's_cmp_lt_u32 s83, {PT[0]}')
        a(f's_cbranch_scc1 B_pr{n}')
        a('s_setprio 2')
        a(f's_cmp_lt_u32 s83, {PT[1]}')
        a(f's_cbranch_scc1 B_pr{n}')
        a('s_setprio 1')
        a(f's_cmp_lt_u32 s83, {PT[2]}')
        a(f's_cbranch_scc1 B_pr{n}')
        a('s_setprio 0')
        a.lab(f'B_pr{n}')
    a(f'v_mov_b32 v24, {L_MAX}')
    a('ds_read_b128 v[16:19], v24')
    a('s_mov_b32 s76, s3')
    a('s_add_u32 s77, s3, 3')
    a('s_cmp_lt_u32 s3, 13')
    a('s_cselect_b32 s77, s3, s77')
    a('s_cbranch_scc1 B_e1')
    ent8(76)
    a('s_branch B_e2')
    a.lab('B_e1')
    a(f's_sub_u32 s51, s3, {EG0}')
    a(f's_cmp_lt_u32 s51, {8-EG0}')
    a('s_cbranch_scc1 B_e1b')
    egath()
    a.lab('B_e1b')
    qread(0)
    a.lab('B_e2')
    grab()
    a('s_mov_b32 s83, 0')
    if PRIO: a('s_setprio 3')
    a('s_waitcnt lgkmcnt(0)')
    a('s_cmp_lt_u32 s3, 13')
    a('s_cbranch_scc1 B_e3')
    rd(0); rd(1, 32)
    a.lab('B_e3')
    a('v_readfirstlane_b32 s70, v19')
    a('v_readfirstlane_b32 s74, v18')
    a('v_readfirstlane_b32 s71, v16')
    a('v_readfirstlane_b32 s91, v17')
    a('s_cmp_lg_u32 s70, -1')
    a('s_cbranch_scc1 B_capok')
    a('s_mov_b32 s87, 0')
    a('s_setprio 0')
    a('s_waitcnt vmcnt(0) lgkmcnt(0)')
    a('s_barrier')
    a('s_branch B_batch')
    a.lab('B_capok')
    a('s_or_b32 s90, s90, s91')
    if FORCE_PLAIN: a('s_mov_b32 s90, 1')
    a('s_add_u32 s74, s74, 7')
    a('s_lshr_b32 s74, s74, 3')
    a('s_and_b32 s72, s70, 0xff')
    a('s_add_u32 s72, s72, s74')
    a('s_bfe_u32 s73, s70, 0x80008')
    a('s_add_u32 s73, s73, s74')
    a('s_bfe_u32 s82, s70, 0x80010')
    a('s_add_u32 s82, s82, s74')
    a('s_lshr_b32 s75, s70, 24')
    a('s_add_u32 s75, s75, s74')
    a('s_cmp_lt_u32 s3, 13')
    a('s_cbranch_scc1 B_e4')
    a('s_cmp_ge_u32 s76, s75')
    a('s_cbranch_scc1 B_loop_end')
    a('s_cmp_ge_u32 s76, s74')
    a('s_cbranch_scc1 B_pre4')
    a('s_waitcnt lgkmcnt(0)')
    for k in range(4): gather(0, k)
    qread(0)
    a.lab('B_e4')
    ent_any(77)
    a('s_waitcnt lgkmcnt(0)')
    a('s_cmp_lg_u32 s90, 0')
    a('s_cbranch_scc1 B_loop8p')
    for mode in ('', 'p'):
        a.lab(f'B_loop8{mode}')
        a('s_waitcnt lgkmcnt(8)')
        a(f'v_mov_b32 v{AGC}, v{AGN}')
        a(f'v_readfirstlane_b32 s78, v{IDX}')
        cops(0)
        rd(0)
        a('s_add_u32 s78, s78, 19')
        for k in range(4):
            zadd(k, 1)
            if mode: updp(k, k == 0)
            else: upd(k, k == 0, Z if k == 1 else NN)
        cops(1)
        a('s_waitcnt lgkmcnt(0)')
        qread(0)
        a('s_cmp_ge_u32 s77, s74')
        a(f's_cbranch_scc1 B_tr8{mode}')
        rd(1, 32)
        ent_any(78)
        a(f's_branch B_tr8x{mode}')
        a.lab(f'B_tr8{mode}')
        ent4(78)
        a('s_waitcnt lgkmcnt(0)')
        rd(1)
        a.lab(f'B_tr8x{mode}')
        grab()
        for k in range(4):
            zadd(k, 0)
            if mode: updp(k, False)
            else: upd(k, False, NN)
        if mode: flush(NN)
        else: finish(NN)
        prio(2)
        a('s_mov_b32 s76, s77')
        a('s_mov_b32 s77, s78')
        a('s_cmp_lt_u32 s76, s74')
        a(f's_cbranch_scc1 B_loop8{mode}')
        a('s_cmp_lt_u32 s76, s75')
        a(f's_cbranch_scc1 B_loop0{mode}')
        a('s_branch B_loop_end')
    a.lab('B_pre4')
    a('s_waitcnt lgkmcnt(0)')
    ent4(76)
    a('s_waitcnt lgkmcnt(0)')
    rd(0)
    ent4(77)
    a('s_waitcnt lgkmcnt(0)')
    for k in range(4): gather(0, k)
    qread(0)
    rd(1)
    a('s_waitcnt lgkmcnt(0)')
    a('s_cmp_lg_u32 s90, 0')
    a('s_cbranch_scc1 B_loop0p')
    lim = [82, 73, 72]
    for mode in ('', 'p'):
        for st in range(2):
            L = f'{st}{mode}'
            a.lab(f'B_loop{L}')
            a('s_waitcnt lgkmcnt(8)')
            a(f'v_mov_b32 v{AGC}, v{AGN}')
            a(f'v_readfirstlane_b32 s78, v{IDX}')
            a('s_nop 0')
            a('s_add_u32 s78, s78, 19')
            ent4(78)
            cops(st)
            qread(1-st)
            a('s_waitcnt lgkmcnt(2)')
            rd(st)
            grab()
            for k in range(4):
                zadd(k, 1-st)
                if mode: updp(k, k == 0)
                else: upd(k, k == 0, Z if k == 1 else NN)
                if k < 3:
                    a(f's_cmp_ge_u32 s76, s{lim[k]}')
                    a(f's_cbranch_scc1 B_ex{k}_{L}')
            a.lab(f'B_fin_{L}')
            if mode: flush(NN)
            else: finish(NN)
            a.lab(f'B_nx_{L}')
            prio(1)
            a('s_mov_b32 s76, s77')
            a('s_mov_b32 s77, s78')
            a('s_cmp_ge_u32 s76, s75')
            a('s_cbranch_scc1 B_loop_end')
            if st == 1: a(f's_branch B_loop0{mode}')
        for st in range(2):
            L = f'{st}{mode}'
            for k in range(3):
                a.lab(f'B_ex{k}_{L}')
                for kk in range(k+1, 4): gather(1-st, kk)
                if k == 0 and not mode:
                    finish(Z)
                    a(f's_branch B_nx_{L}')
                else:
                    a(f's_branch B_fin_{L}')
    a.lab('B_loop_end')
    stamp(a, 4)
    a('s_waitcnt vmcnt(0) lgkmcnt(0)')
    a('v_lshlrev_b32 v11, 4, v1')
    a('v_and_b32 v8, 31, v1')
    a('v_add_u32 v8, s38, v8')
    a('v_lshrrev_b32 v9, 5, v1')
    a('s_cmp_ge_u32 s3, 8')
    a('s_cbranch_scc1 B_join')
    WX = [100, 104, 108, 4]
    a('s_add_u32 s39, s41, 8192')
    for ks in range(4):
        a(f'buffer_load_dwordx4 {q4(WX[ks])}, v11, s[20:23], s39 offen offset:{1024*ks}')
    a(f's_add_u32 s39, s41, {L_WU}')
    a('v_add_u32 v98, s39, v11')
    a('v_and_b32 v13, 7, v1')
    a('v_xor_b32 v13, v13, v9')
    a('v_lshlrev_b32 v14, 7, v8')
    a(f'v_add_u32 v14, {L_X}, v14')
    for ks in range(4):
        a(f'v_xor_b32 v15, {2*ks}, v13')
        a(f'v_lshl_add_u32 v{92+ks}, v15, 4, v14')
        a(f'ds_read_b128 {q4(16+4*ks)}, v{92+ks}')
    a('s_waitcnt vmcnt(0) lgkmcnt(0)')
    for ks in range(4):
        c = '0' if ks == 0 else 'v[112:127]'
        a(f'v_mfma_f32_32x32x16_bf16 v[112:127], {q4(WX[ks])}, {q4(16+4*ks)}, {c}')
    a.lab('B_join')
    a('v_lshrrev_b32 v12, 3, v0')
    a(f's_movk_i32 s51, {2*RS}')
    a('v_mul_u32_u24 v96, s51, v12')
    a('v_add_u32 v96, v96, v2')
    a(f'v_add_u32 v96, {L_AGG}, v96')
    a('v_and_b32 v97, 7, v12')
    a('v_lshlrev_b32 v97, 4, v97')
    a('v_xor_b32 v97, v97, v2')
    a('v_lshl_add_u32 v97, v12, 7, v97')
    a('s_setprio 0')
    a('s_waitcnt lgkmcnt(0)')
    a('s_barrier')
    stamp(a, 5)
    stampc(a, 40)
    a('s_cmp_eq_u32 s87, -1')
    a('s_cbranch_scc1 B_nb')
    a('s_add_u32 s87, s87, 1')
    a('s_cmp_lt_u32 s87, 128')
    a('s_cbranch_scc1 B_again')
    a('s_mov_b32 s87, -1')
    a.lab('B_nb')
    a('s_add_u32 s50, s50, 32')
    a('s_cmp_eq_u32 s71, 0')
    a('s_cbranch_scc1 B_fin')
    a.lab('B_again')
    a('s_waitcnt vmcnt(0)')
    a('v_lshrrev_b32 v4, 3, v0')
    a('v_lshlrev_b32 v12, 10, v4')
    a('buffer_load_dword v6, v12, s[4:7], s32 offen')
    a('buffer_load_dword v7, v12, s[4:7], s33 offen')
    a('s_branch B_batch')
    a.lab('B_fin')
    if DEBUG: a('v_mov_b32 v3, v65')
    a('s_cmp_ge_u32 s3, 13')
    a('s_cbranch_scc1 B_done2')
    for q in range(4):
        a(f'ds_read_b128 {q4(64+4*q)}, v96 offset:{128*q}')
    for q in range(4):
        a(f's_waitcnt lgkmcnt({3-q})')
        a(f'v_cvt_f32_f64 v{80+2*q}, {pr(64+4*q)}')
        a(f'v_cvt_f32_f64 v{81+2*q}, {pr(66+4*q)}')
    for q in range(4):
        a(f'v_pk_mul_f32 {pr(80+2*q)}, {pr(80+2*q)}, s[48:49]')
    for q in range(4):
        a(f'v_cvt_pk_bf16_f32 v{88+q}, v{80+2*q}, v{81+2*q}')
    a(f'ds_write_b128 v97, v[88:91] offset:{L_REC}')
    a('s_cmp_ge_u32 s3, 8')
    a('s_cbranch_scc1 B_b4')
    for ks in range(4):
        a(f'ds_read_b128 {q4(48+4*ks)}, v98 offset:{1024*ks}')
        a(f'v_add_u32 v{92+ks}, {L_REC-L_X}, v{92+ks}')
    a('s_waitcnt lgkmcnt(4)')
    a('s_branch B_b4x')
    a.lab('B_b4')
    a('s_waitcnt lgkmcnt(0)')
    a.lab('B_b4x')
    a('s_barrier')
    stamp(a, 11, 3)
    a('s_cmp_ge_u32 s3, 8')
    a('s_cbranch_scc1 B_b5')
    for ks in range(4):
        a(f'ds_read_b128 {q4(32+4*ks)}, v{92+ks}')
    a('s_movk_i32 s51, 272')
    a('v_mul_u32_u24 v17, s51, v8')
    a('v_lshl_add_u32 v17, v9, 6, v17')
    a('s_lshl_b32 s51, s34, 7')
    a(f's_add_u32 s51, s51, {L_AGG}')
    a('v_add_u32 v17, s51, v17')
    for ks in range(4):
        a(f's_waitcnt lgkmcnt({3-ks})')
        a(f'v_mfma_f32_32x32x16_bf16 v[112:127], {q4(48+4*ks)}, {q4(32+4*ks)}, v[112:127]')
    a('s_nop 11')
    for q in range(4):
        a(f'ds_write_b128 v17, {q4(112+4*q)} offset:{16*q}')
    a.lab('B_b5')
    a('s_movk_i32 s51, 272')
    a('v_mul_u32_u24 v18, s51, v12')
    a('v_lshl_add_u32 v18, v2, 1, v18')
    a(f'v_add_u32 v18, {L_AGG}, v18')
    a('v_lshlrev_b32 v19, 4, v0')
    a('s_lshl_b32 s51, s37, 7')
    a(f'v_cmp_gt_u32 vcc, {NB*8}, v0')
    a('s_mov_b32 s52, s47')
    a('s_mov_b32 s53, s47')
    a('s_waitcnt lgkmcnt(0)')
    a('s_barrier')
    stamp(a, 12, 3)
    a('ds_read_b128 v[32:35], v18')
    a('ds_read_b128 v[36:39], v18 offset:16')
    a('s_waitcnt lgkmcnt(0)')
    for r in range(0, 8, 2): a(f'v_pk_mul_f32 {pr(64+r)}, {pr(32+r)}, s[52:53]')
    for r in range(8): a(f'v_exp_f32 v{64+r}, v{64+r}')
    for r in range(0, 8, 2): a(f'v_pk_add_f32 {pr(64+r)}, {pr(64+r)}, s[44:45]')
    for r in range(8): a(f'v_rcp_f32 v{64+r}, v{64+r}')
    for r in range(0, 8, 2): a(f'v_pk_mul_f32 {pr(64+r)}, {pr(64+r)}, {pr(32+r)}')
    for r in range(0, 8, 2): a(f'v_cvt_pk_bf16_f32 v{40+r//2}, v{64+r}, v{65+r}')
    stamp(a, 13, 3)
    a('s_and_b64 exec, exec, vcc')
    a(f'buffer_store_dwordx4 v[40:43], v19, s[24:27], s51 offen {ST_O}')
    a.lab('B_done2')
    stamp_out(a, 1, 88, 3)
    a.lab('B_done')
    a('s_endpgm')

def kd(a, name, vgpr, sgpr):
    a.raw('.p2align 6')
    a.raw(f'.amdhsa_kernel {name}')
    a.raw(f'  .amdhsa_next_free_vgpr {vgpr}')
    a.raw(f'  .amdhsa_next_free_sgpr {sgpr}')
    a.raw(f'  .amdhsa_accum_offset {(vgpr+3)//4*4}')
    a.raw('  .amdhsa_group_segment_fixed_size 0')
    a.raw('  .amdhsa_kernarg_size 72')
    a.raw('  .amdhsa_user_sgpr_count 2')
    a.raw('  .amdhsa_user_sgpr_kernarg_segment_ptr 1')
    a.raw('  .amdhsa_system_sgpr_workgroup_id_x 1')
    a.raw('.end_amdhsa_kernel')

def main():
    ref = open('gather_scatter__mpnn_edge_mlp__graph.s.ref').read().splitlines()
    hdr = [l for l in ref if l.startswith(';') and '@launch' not in l and 'Override' not in l and 'grid=ceil' not in l]
    a = A()
    for l in hdr: a.raw(l)
    a.raw(f'; @launch kernel=mpnn_bin_kernel grid=({A_GRID},1,1) block=({A_BLOCK},1,1) lds={A_LDS}')
    a.raw(f'; @launch kernel=mpnn_main_kernel grid=({NBK},1,1) block=(1024,1,1) lds={B_LDS}')
    a.raw('.amdgcn_target "amdgcn-amd-amdhsa--gfx950"')
    a.raw('.text')
    kernel_a(a)
    kernel_b(a)
    a.raw('.section .rodata,"a"')
    kd(a, 'mpnn_bin_kernel', 128, 100)
    kd(a, 'mpnn_main_kernel', 128, 100)
    out = sys.argv[1] if len(sys.argv) > 1 else 'gather_scatter__mpnn_edge_mlp__graph.s'
    open(out, 'w').write('\n'.join(a.l) + '\n')

main()
```

```python
import sys, struct, os
DEBUG = int(os.environ.get('DEBUG', '0'))
PRIO = int(os.environ.get('PRIO', '1'))
XMAP = int(os.environ.get('XMAP', '1'))
PREF = int(os.environ.get('PREF', '0'))
CPF = int(os.environ.get('CPF', '0'))
TLBW = int(os.environ.get('TLBW', '0'))
ST_O = os.environ.get('ST_O', 'sc0 sc1')
LATESRC = int(os.environ.get('LATESRC', '1'))
TOUCH = int(os.environ.get('TOUCH', '4'))
PT = [int(x) for x in os.environ.get('PT', '2,6,7').split(',')]
GFIRST = int(os.environ.get('GFIRST', '1'))
EG0 = int(os.environ.get('EG0', '4'))
LD_A = os.environ.get('LD_A', 'nt')
LD_X = os.environ.get('LD_X', '')
LD_R = os.environ.get('LD_R', '')
LD_XB = os.environ.get('LD_XB', '')
FORCE_PLAIN = int(os.environ.get('FORCE_PLAIN', '0'))

N = 25000; E = 800000
NB = 98
NBK = 256
CH = 3200
NCH = 250
WS_REC = 0
WS_TAB = 0x700000
WS_PF  = 0x780000
WS_PT  = 0x800000
WS_WF  = 0x7C0000
REC_BYTES = NCH*CH*8
TAB_BYTES = NCH*NBK*4
PF_BYTES  = 1000*4
PT_BYTES  = (N+1)*128
WF_BYTES  = 3*8192 + 512
WF_W3 = 3*8192
LOG2E = 1.4426950408889634
LN2 = 0.6931471805599453
LIM_P = 3.0; LIM_Q = 3.0; LIM_E_BF16 = 0x4040; LIM_W = 3.0
def f32(x): return struct.unpack('<I', struct.pack('<f', x))[0]

class A:
    def __init__(s): s.l = []
    def __call__(s, t): s.l.append('    ' + t)
    def lab(s, t): s.l.append(t + ':')
    def raw(s, t): s.l.append(t)

def srd(a, d, base, off, nbytes):
    if off:
        a(f's_add_u32 s{d}, s{base}, {hex(off)}')
        a(f's_addc_u32 s{d+1}, s{base+1}, 0')
    else:
        a(f's_mov_b32 s{d}, s{base}')
        a(f's_mov_b32 s{d+1}, s{base+1}')
    a(f's_mov_b32 s{d+2}, {hex(nbytes)}')
    a(f's_mov_b32 s{d+3}, 0x00020000')

PROF_OFF = 0x4000000
def stamp(a, i, vr=65, sr=92):
    if not DEBUG: return
    a(f's_memrealtime s[{sr}:{sr+1}]')
    a('s_waitcnt lgkmcnt(0)')
    a(f'v_writelane_b32 v{vr}, s{sr}, {i}')
def stampc(a, i, vr=65, sr=92):
    if not DEBUG: return
    a(f's_memtime s[{sr}:{sr+1}]')
    a('s_waitcnt lgkmcnt(0)')
    a(f'v_writelane_b32 v{vr}, s{sr}, {i}')
def stamp_out(a, kern, wsreg, vr=65, sr=92, tmp=6):
    if not DEBUG: return
    a('s_waitcnt vmcnt(0)')
    stamp(a, 15, vr, sr)
    a('s_mov_b64 exec, -1')
    srd(a, 96, wsreg, PROF_OFF + kern*0x400000, 0x400000)
    a(f's_lshl_b32 s{sr}, s2, 4')
    a(f's_add_u32 s{sr}, s{sr}, s3')
    a(f's_lshl_b32 s{sr}, s{sr}, 8')
    a(f'v_lshlrev_b32 v{tmp}, 2, v1')
    a(f'buffer_store_dword v{vr}, v{tmp}, s[96:99], s{sr} offen')

def wave_scan(a, v):
    for sh in (1, 2, 4, 8):
        a('s_nop 1')
        a(f'v_add_u32_dpp v{v}, v{v}, v{v} row_shr:{sh} row_mask:0xf bank_mask:0xf bound_ctrl:0')
    a('s_nop 1')
    a(f'v_add_u32_dpp v{v}, v{v}, v{v} row_bcast:15 row_mask:0xa bank_mask:0xf')
    a('s_nop 1')
    a(f'v_add_u32_dpp v{v}, v{v}, v{v} row_bcast:31 row_mask:0xc bank_mask:0xf')

def pr(r): return f'v[{r}:{r+1}]'
def q4(r): return f'v[{r}:{r+3}]'

A_GEMM0 = NCH
A_PREP0 = NCH + 250
A_GRID = A_PREP0 + 4
A_BLOCK = 448
A_XT = 0
A_W1 = 4*4096
A_LDS = 2112 + CH*8
A_STAGE = 2048 + 64
A_EFLAG = 2048
ST_A = os.environ.get('ST_A', 'sc0 sc1')

def kernel_a(a):
    a.raw('.globl mpnn_bin_kernel')
    a.raw('.p2align 8')
    a.raw('.type mpnn_bin_kernel,@function')
    a.lab('mpnn_bin_kernel')
    if DEBUG:
        a('s_memrealtime s[94:95]')
        a('s_getreg_b32 s62, hwreg(HW_REG_HW_ID)')
        a('s_getreg_b32 s63, hwreg(HW_REG_XCC_ID)')
    a('s_load_dwordx16 s[4:19], s[0:1], 0')
    a('s_load_dwordx2 s[20:21], s[0:1], 64')
    if CPF:
        a('s_getpc_b64 s[60:61]')
        a.lab('A_pc')
        a('v_lshlrev_b32 v100, 4, v0')
        a('v_add_u32 v101, 7168, v100')
        a('v_min_u32 v101, code_end-A_pc-16, v101')
        a('v_min_u32 v100, code_end-A_pc-16, v100')
        a('global_load_dwordx4 v[104:107], v100, s[60:61]')
        a('global_load_dwordx4 v[108:111], v101, s[60:61]')
    a(f's_cmp_ge_u32 s2, {A_GRID}')
    a('s_cbranch_scc1 A_done')
    a('v_lshrrev_b32 v1, 6, v0')
    a('v_lshlrev_b32 v3, 4, v0')
    a('v_readfirstlane_b32 s3, v1')
    a('v_and_b32 v1, 63, v0')
    a(f's_cmp_ge_u32 s2, {A_PREP0}')
    a('s_cbranch_scc1 A_prep')
    if GFIRST:
        a(f's_add_u32 s22, s2, {NCH}')
        a(f's_sub_u32 s23, s2, {NCH}')
        a(f's_cmp_lt_u32 s2, {NCH}')
        a('s_cselect_b32 s2, s22, s23')
    a(f's_cmp_ge_u32 s2, {A_GEMM0}')
    a('s_cbranch_scc1 A_gemm')
    a('v_cmp_gt_u32 vcc, 400, v0')
    a('s_and_b64 exec, exec, vcc')
    a('v_lshlrev_b32 v2, 3, v0')
    a(f's_mul_i32 s44, s2, {CH*4}')
    a(f's_mul_i32 s45, s2, {CH*2}')
    a(f's_add_u32 s50, s44, {CH*2}')
    a(f's_add_u32 s51, s45, {CH}')
    a('s_waitcnt lgkmcnt(0)')
    srd(a, 24, 10, 0, E*4)
    a(f'buffer_load_dwordx4 v[8:11], v3, s[24:27], s44 offen {LD_A}')
    a(f'buffer_load_dwordx4 v[12:15], v3, s[24:27], s50 offen {LD_A}')
    srd(a, 28, 8, 0, E*4)
    srd(a, 32, 6, 0, E*2)
    def srcloads():
        a(f'buffer_load_dwordx4 v[16:19], v3, s[28:31], s44 offen {LD_A}')
        a(f'buffer_load_dwordx4 v[20:23], v3, s[28:31], s50 offen {LD_A}')
        a(f'buffer_load_dwordx2 v[24:25], v2, s[32:35], s45 offen {LD_A}')
        a(f'buffer_load_dwordx2 v[26:27], v2, s[32:35], s51 offen {LD_A}')
    if not LATESRC: srcloads()
    stamp(a, 0, 70)
    if DEBUG:
        a('v_writelane_b32 v70, s94, 8')
        a('v_writelane_b32 v70, s62, 9')
        a('v_writelane_b32 v70, s63, 10')
    a('v_lshlrev_b32 v5, 2, v0')
    a('v_mov_b32 v4, 0')
    a('v_mov_b32 v6, 2048')
    a('v_cmp_gt_u32 vcc, 256, v0')
    a('s_nop 1')
    a('v_cndmask_b32 v5, v6, v5, vcc')
    a('ds_write_b32 v5, v4')
    if TLBW:
        srd(a, 36, 20, 0, 0xC00000)
        a('v_lshlrev_b32 v7, 20, v1')
        a('buffer_load_dword v71, v7, s[36:39], 0 offen')
    srd(a, 36, 20, WS_REC, REC_BYTES)
    srd(a, 40, 20, WS_TAB, TAB_BYTES)
    a('s_mov_b32 s46, 42800')
    a('s_mov_b32 s47, -196')
    a('s_mov_b32 s48, 0xffff0000')
    a('s_mov_b32 s52, 0x7fff7fff')
    a('v_mov_b32 v4, 1')
    a('s_waitcnt lgkmcnt(0)')
    a('s_barrier')
    for hf in range(2):
        if LATESRC:
            a(f's_waitcnt vmcnt({1 if hf == 0 else 4})')
            if hf == 0: srcloads()
        else:
            a(f's_waitcnt vmcnt({5-hf+TLBW})')
        if hf == 0: stamp(a, 1, 70)
        for j in range(4*hf, 4*hf+4):
            a(f'v_mul_u32_u24 v{28+j}, s46, v{8+j}')
            a(f'v_lshrrev_b32 v{28+j}, 22, v{28+j}')
            a(f'v_lshlrev_b32 v{28+j}, 2, v{28+j}')
            a(f'ds_add_rtn_u32 v{56+j}, v{28+j}, v4')
    for j in range(8):
        a(f'v_lshlrev_b32 v{8+j}, 3, v{8+j}')
        a(f'v_mad_i32_i24 v{41+2*j}, v{28+j}, s47, v{8+j}')
    a('s_mov_b64 s[22:23], exec')
    a('s_waitcnt lgkmcnt(0)')
    a('s_barrier')
    stamp(a, 2, 70)
    a('s_mov_b64 exec, -1')
    a('v_lshlrev_b32 v5, 4, v1')
    a('ds_read_b128 v[8:11], v5')
    a('s_waitcnt lgkmcnt(0)')
    a('v_add_u32 v13, v8, v9')
    a('v_add_u32 v14, v13, v10')
    a('v_add_u32 v15, v14, v11')
    a('v_mov_b32 v72, v15')
    wave_scan(a, 72)
    a('v_sub_u32 v12, v72, v15')
    a('v_add_u32 v15, v12, v14')
    a('v_add_u32 v14, v12, v13')
    a('v_add_u32 v13, v12, v8')
    for k in range(4):
        a(f'v_lshlrev_b32 v{72+k}, 3, v{12+k}')
    a('ds_write_b128 v5, v[72:75] offset:1024')
    for k in range(4):
        a(f'v_lshl_or_b32 v{64+k}, v{8+k}, 16, v{12+k}')
    a('s_mov_b64 exec, s[22:23]')
    a('s_waitcnt lgkmcnt(0)')
    for j in range(8):
        a(f'ds_read_b32 v{8+j}, v{28+j} offset:1024')
    a('s_waitcnt vmcnt(0)')
    for j in range(8):
        if j % 2 == 0:
            a(f'v_lshlrev_b32 v{40+2*j}, 16, v{24+j//2}')
        else:
            a(f'v_and_b32 v{40+2*j}, s48, v{24+j//2}')
        a(f'v_lshl_or_b32 v{41+2*j}, v{41+2*j}, 16, v{16+j}')
    for j in range(4):
        a(f'v_and_b32 v{24+j}, s52, v{24+j}')
    a('v_pk_max_u16 v24, v24, v25')
    a('v_pk_max_u16 v26, v26, v27')
    a('v_pk_max_u16 v24, v24, v26')
    a('v_lshrrev_b32 v25, 16, v24')
    a('v_and_b32 v24, 0xffff, v24')
    a('v_max_u32 v24, v24, v25')
    a(f'v_cmp_lt_u32 vcc, {hex(LIM_E_BF16)}, v24')
    a('s_and_saveexec_b64 s[54:55], vcc')
    a('s_cbranch_execz A_eok')
    a('v_mov_b32 v25, 0x80000000')
    a('ds_write_b32 v6, v25')
    a.lab('A_eok')
    a('s_mov_b64 exec, s[54:55]')
    a('s_waitcnt lgkmcnt(0)')
    for j in range(8):
        a(f'v_lshl_add_u32 v{8+j}, v{56+j}, 3, v{8+j}')
    stamp(a, 3, 70)
    for j in range(8):
        a(f'ds_write_b64 v{8+j}, {pr(40+2*j)} offset:{A_STAGE}')
    a('s_waitcnt lgkmcnt(0)')
    a('s_barrier')
    stamp(a, 4, 70)
    a('s_cmp_lg_u32 s3, 6')
    a('s_cbranch_scc1 A_notab')
    a('s_mov_b64 exec, -1')
    a('v_mov_b32 v6, 2048')
    a('ds_read_b32 v7, v6')
    a('s_lshl_b32 s49, s2, 10')
    a('s_waitcnt lgkmcnt(0)')
    for k in range(4):
        a(f'v_or_b32 v{64+k}, v{64+k}, v7')
    a(f'buffer_store_dwordx4 v[64:67], v5, s[40:43], s49 offen {ST_A}')
    a('s_mov_b64 exec, s[22:23]')
    a.lab('A_notab')
    for j in range(4):
        a(f'ds_read_b128 {q4(8+4*j)}, v3 offset:{A_STAGE+6400*j}')
    a(f's_mul_i32 s49, s2, {CH*8}')
    for j in range(4):
        a(f's_waitcnt lgkmcnt({3-j})')
        a(f'buffer_store_dwordx4 {q4(8+4*j)}, v3, s[36:39], s49 offen {ST_A}')
        if j < 3:
            a(f's_add_u32 s49, s49, 6400')
    stamp(a, 5, 70)
    stamp_out(a, 0, 20, 70)
    a('s_endpgm')

    a.lab('A_gemm')
    a(f's_sub_u32 s22, s2, {A_GEMM0}')
    a('s_mul_i32 s48, s22, 12800')
    a('s_add_u32 s49, s48, 12800')
    a('s_lshl_b32 s22, s22, 2')
    a('s_add_u32 s22, s22, s3')
    a('v_and_b32 v2, 31, v1')
    a('v_lshrrev_b32 v3, 5, v1')
    a('v_lshlrev_b32 v4, 2, v2')
    a('v_lshl_add_u32 v7, v3, 9, v4')
    a('v_lshl_add_u32 v4, v3, 10, v4')
    a(f'v_add_u32 v4, {A_W1}, v4')
    a('v_lshlrev_b32 v5, 4, v0')
    a('s_lshl_b32 s23, s3, 12')
    a('s_add_u32 s23, s23, s48')
    a('v_lshlrev_b32 v6, 4, v1')
    a('s_lshl_b32 s42, s3, 12')
    a('v_add_u32 v7, s42, v7')
    a('v_lshrrev_b32 v8, 3, v1')
    a('v_and_b32 v9, 7, v1')
    a('v_xor_b32 v10, v9, v8')
    a('v_lshlrev_b32 v10, 4, v10')
    a('v_lshl_add_u32 v10, v8, 7, v10')
    a('v_add_u32 v10, s42, v10')
    a('v_xor_b32 v9, v9, v3')
    a('v_lshlrev_b32 v8, 7, v2')
    a('v_add_u32 v8, s42, v8')
    for ks in range(4):
        a(f'v_xor_b32 v{11+ks}, {2*ks}, v9')
        a(f'v_lshl_add_u32 v{11+ks}, v{11+ks}, 4, v8')
    a('s_waitcnt lgkmcnt(0)')
    srd(a, 24, 4, 0, N*128)
    a('s_mov_b32 s26, s49')
    srd(a, 28, 12, 0, 64*128)
    a('s_movk_i32 s43, 7168')
    a('buffer_load_dwordx4 v[16:19], v5, s[28:31], 0 offen')
    a('buffer_load_dwordx4 v[20:23], v5, s[28:31], s43 offen')
    for j in range(4):
        a(f'buffer_load_dwordx4 {q4(48+4*j)}, v6, s[24:27], s23 offen offset:{1024*j} {LD_X}')
    stamp(a, 0, 15)
    if DEBUG:
        a('v_writelane_b32 v15, s94, 8')
        a('v_writelane_b32 v15, s62, 9')
        a('v_writelane_b32 v15, s63, 10')
    srd(a, 32, 20, WS_PT, N*128)
    a('s_mov_b32 s34, s49')
    srd(a, 44, 20, WS_PF, PF_BYTES)
    a('s_mov_b32 s36, 0x05040100')
    a('s_mov_b32 s37, 0x07060302')
    a(f's_mov_b32 s38, {hex(f32(-LOG2E))}')
    a('s_mov_b32 s39, 0x7fffffff')
    a('s_mov_b32 s40, 0x7fff0000')
    a(f's_mov_b32 s41, {hex(f32(LIM_P))}')
    a('s_waitcnt vmcnt(4)')
    a(f'ds_write_b128 v5, v[16:19] offset:{A_W1}')
    a('s_cmp_lg_u32 s3, 0')
    a('s_cbranch_scc1 A_w1done')
    a(f'ds_write_b128 v5, v[20:23] offset:{A_W1+7168}')
    a.lab('A_w1done')
    a('s_waitcnt lgkmcnt(0)')
    a('s_barrier')
    a('s_cmp_ge_u32 s3, 4')
    a('s_cbranch_scc1 A_done')
    for ks in range(4):
        if ks: a('v_add_u32 v4, 2048, v4')
        for jj in range(4):
            a(f'ds_read2_b32 {pr(16+8*ks+2*jj)}, v4 offset0:{64*jj} offset1:{64*jj+32}')
    a('s_waitcnt vmcnt(0)')
    for j in range(4):
        a(f'ds_write_b128 v10, {q4(48+4*j)} offset:{1024*j}')
    a('s_waitcnt lgkmcnt(0)')
    for ks in range(4):
        a(f'ds_read_b128 {q4(48+4*ks)}, v{11+ks}')
    stamp(a, 1, 15)
    for ks in range(4):
        for jj in range(4):
            r0 = 16+8*ks+2*jj
            a(f'v_perm_b32 v{64+4*ks+jj}, v{r0+1}, v{r0}, s36')
            a(f'v_perm_b32 v{80+4*ks+jj}, v{r0+1}, v{r0}, s37')
    a('s_waitcnt lgkmcnt(0)')
    for ks in range(4):
        c0 = '0' if ks == 0 else 'v[96:111]'
        c1 = '0' if ks == 0 else 'v[112:127]'
        a(f'v_mfma_f32_32x32x16_bf16 v[96:111], {q4(48+4*ks)}, {q4(64+4*ks)}, {c0}')
        a(f'v_mfma_f32_32x32x16_bf16 v[112:127], {q4(48+4*ks)}, {q4(80+4*ks)}, {c1}')
    a('s_nop 15')
    stamp(a, 2, 15)
    for r in range(16):
        a(f'v_mul_f32 v{96+r}, s38, v{96+r}')
    for r in range(16):
        a(f'v_mul_f32 v{112+r}, s38, v{112+r}')
    for r in range(0, 16, 2):
        a(f'v_cvt_pk_bf16_f32 v{16+r}, v{96+r}, v{97+r}')
    for r in range(0, 16, 2):
        a(f'v_lshrrev_b32 v{17+r}, 16, v{16+r}')
        a(f'v_and_b32 v{16+r}, 0xffff, v{16+r}')
    for r in range(16):
        a(f'v_and_b32 v{32+r}, s39, v{112+r}')
    for r in range(16):
        a(f'v_add_u32 v{32+r}, 0x8000, v{32+r}')
    for r in range(16):
        a(f'v_sub_u32 v{32+r}, v{32+r}, v{16+r} clamp')
    for r in range(16):
        a(f'v_and_or_b32 v{32+r}, v{32+r}, s40, v{16+r}')
    for r in range(16):
        a(f'v_bfi_b32 v{32+r}, s39, v{32+r}, v{112+r}')
        a(f'ds_write_b32 v7, v{32+r} offset:{((r&3)+8*(r>>2))*128}')
    a('v_add_u32 v8, s42, v6')
    a('s_waitcnt lgkmcnt(0)')
    for j in range(4):
        a(f'ds_read_b128 {q4(48+4*j)}, v8 offset:{1024*j}')
    a('v_max_f32 v64, |v96|, |v97|')
    for r in range(2, 32, 2):
        a(f'v_max3_f32 v64, v64, |v{96+r}|, |v{97+r}|')
    a('v_cmp_lt_f32 vcc, s41, v64')
    for j in range(4):
        a(f's_waitcnt lgkmcnt({3-j})')
        a(f'buffer_store_dwordx4 {q4(48+4*j)}, v6, s[32:35], s23 offen offset:{1024*j} {ST_A}')
    a('s_lshl_b32 s43, s22, 2')
    a('v_mov_b32 v66, 0')
    a('s_cmp_lg_u64 vcc, 0')
    a('s_cselect_b32 s42, 1, 0')
    a('v_mov_b32 v65, s42')
    a('s_mov_b64 exec, 1')
    a(f'buffer_store_dword v65, v66, s[44:47], s43 offen {ST_A}')
    stamp(a, 5, 15)
    stamp_out(a, 0, 20, 15)
    a('s_endpgm')

    a.lab('A_prep')
    a(f's_sub_u32 s50, s2, {A_PREP0}')
    a('s_mul_i32 s50, s50, 7')
    a('s_add_u32 s50, s50, s3')
    a('s_cmp_gt_u32 s50, 24')
    a('s_cbranch_scc1 A_done')
    a('s_lshr_b32 s22, s50, 3')
    a('s_bfe_u32 s23, s50, 0x10002')
    a('s_and_b32 s24, s50, 3')
    a('v_and_b32 v2, 31, v1')
    a('v_lshrrev_b32 v3, 5, v1')
    a('v_bfe_u32 v4, v2, 2, 1')
    a('v_and_b32 v5, 3, v2')
    a('v_lshrrev_b32 v6, 3, v2')
    a('v_lshl_add_u32 v5, v6, 2, v5')
    a('s_waitcnt lgkmcnt(0)')
    srd(a, 32, 20, WS_WF, WF_BYTES)
    a('s_cmp_eq_u32 s50, 24')
    a('s_cbranch_scc1 A_prep_w3')
    a('s_cmp_lg_u32 s22, 0')
    a('s_cbranch_scc1 A_prep_u')
    srd(a, 28, 12, 0, 129*128)
    a('v_lshrrev_b32 v6, 3, v5')
    a('v_lshl_add_u32 v6, v4, 2, v6')
    a('s_lshl_b32 s25, s23, 1')
    a('v_add_u32 v6, s25, v6')
    a('v_and_b32 v7, 7, v5')
    a('v_lshlrev_b32 v8, 1, v7')
    a('v_add_u32 v9, 1, v8')
    a('v_subrev_u32 v8, 8, v8')
    a('v_cmp_gt_u32 vcc, 4, v7')
    a('s_nop 1')
    a('v_cndmask_b32 v8, v8, v9, vcc')
    a('v_lshl_add_u32 v8, v6, 3, v8')
    a('v_lshlrev_b32 v8, 1, v8')
    a('v_lshl_add_u32 v8, v3, 10, v8')
    a('s_lshl_b32 s26, s24, 11')
    a('s_add_u32 s26, s26, 8192')
    for j in range(8):
        a(f'buffer_load_ushort v{32+j}, v8, s[28:31], s26 offen offset:{128*j}')
    a('s_branch A_prep_st')
    a.lab('A_prep_u')
    srd(a, 28, 14, 0, 128*128)
    a('v_lshl_add_u32 v8, v4, 4, v5')
    a('s_lshl_b32 s25, s23, 5')
    a('v_add_u32 v8, s25, v8')
    a('v_lshlrev_b32 v8, 1, v8')
    a('s_cmp_lg_u32 s22, 1')
    a('s_cbranch_scc1 A_prep_agg')
    a('v_lshl_add_u32 v8, v3, 10, v8')
    a('s_lshl_b32 s26, s24, 11')
    for j in range(8):
        a(f'buffer_load_ushort v{32+j}, v8, s[28:31], s26 offen offset:{128*j}')
    a('s_branch A_prep_st')
    a.lab('A_prep_w3')
    srd(a, 44, 20, WS_PT + N*128, 128)
    a('v_mov_b32 v20, 0x71497149')
    a('v_mov_b32 v21, v20')
    a('v_mov_b32 v22, v20')
    a('v_mov_b32 v23, v20')
    a('v_lshlrev_b32 v24, 4, v1')
    a('buffer_store_dwordx4 v[20:23], v24, s[44:47], 0 offen')
    srd(a, 36, 12, 0, 129*128)
    a('v_and_b32 v10, 7, v1')
    a('v_lshlrev_b32 v11, 4, v10')
    a('s_movk_i32 s27, 0x4000')
    a('buffer_load_dwordx4 v[44:47], v11, s[36:39], s27 offen')
    a(f's_mov_b32 s40, {hex(f32(-LOG2E))}')
    a('s_waitcnt vmcnt(0)')
    for i in range(4):
        a(f'v_and_b32 v{48+i}, 0xffff0000, v{44+i}')
        a(f'v_lshlrev_b32 v{52+i}, 16, v{44+i}')
    for i in range(8):
        a(f'v_mul_f32 v{48+i}, s40, v{48+i}')
    a('v_max3_f32 v44, |v48|, |v49|, |v50|')
    a('v_max3_f32 v44, v44, |v51|, |v52|')
    a('v_max3_f32 v44, v44, |v53|, |v54|')
    a('v_max_f32 v44, v44, |v55|')
    a(f'v_cmp_lt_f32 vcc, {hex(f32(LIM_W))}, v44')
    a('v_lshlrev_b32 v11, 5, v10')
    a('s_cmp_lg_u64 vcc, 0')
    a('s_cselect_b32 s41, 1, 0')
    a('v_mov_b32 v45, s41')
    a('v_mov_b32 v46, 0')
    a(f's_movk_i32 s27, {WF_W3}')
    a('buffer_store_dwordx4 v[48:51], v11, s[32:35], s27 offen')
    a('buffer_store_dwordx4 v[52:55], v11, s[32:35], s27 offen offset:16')
    a('buffer_store_dword v45, v46, s[32:35], s27 offen offset:256')
    a('s_endpgm')
    a.lab('A_prep_agg')
    a('v_lshl_add_u32 v8, v3, 11, v8')
    a('s_and_b32 s26, s24, 1')
    a('s_lshl_b32 s26, s26, 5')
    a('s_lshr_b32 s27, s24, 1')
    a('s_lshl_b32 s27, s27, 1')
    a('s_add_u32 s26, s26, s27')
    a('s_add_u32 s26, s26, 64')
    a('s_lshl_b32 s26, s26, 7')
    for j in range(8):
        i_ = 2*(j >> 1)
        ph = 2*i_+1 if i_ < 4 else 2*i_-8
        a(f'buffer_load_ushort v{32+j}, v8, s[28:31], s26 offen offset:{(8*(j & 1)+ph)*128}')
    a.lab('A_prep_st')
    a('s_lshl_b32 s25, s50, 10')
    a('v_lshlrev_b32 v9, 4, v1')
    a('s_waitcnt vmcnt(0)')
    for j in range(4):
        a(f'v_lshl_or_b32 v{16+j}, v{33+2*j}, 16, v{32+2*j}')
    a('buffer_store_dwordx4 v[16:19], v9, s[32:35], s25 offen')
    a.lab('A_done')
    a('s_endpgm')

RS = 288
L_CNT = 0
L_MAX = 1024
L_FLAG = 1028
L_F8C = 1032
L_TOT = 1036
L_WORK = 1040
L_OVF = 1044
L_L8 = 1056
L_L2 = L_L8 + 1600
L_REC = L_L2 + 832
ES = 528
DUMP_OFF = NB*ES
L_Q = L_REC + DUMP_OFF + 64
L_AGG = L_Q + (NB+1)*RS
L_X = L_AGG + (NB+1)*RS*2
L_WU = L_X + 13*1024
L_W3 = L_WU + 8192
B_LDS = L_W3 + 256
DUMMY1 = N | (NB*8) << 16
for x in (L_L8, L_REC, L_Q, L_AGG, L_X, L_WU): assert x % 16 == 0
assert B_LDS <= 163840 and L_Q + 128 < 65536

def kernel_b(a):
    a.raw('.globl mpnn_main_kernel')
    a.raw('.p2align 8')
    a.raw('.type mpnn_main_kernel,@function')
    a.lab('mpnn_main_kernel')
    a('s_load_dwordx2 s[80:81], s[0:1], 64')
    a('s_load_dwordx16 s[64:79], s[0:1], 0')
    a(f's_cmp_ge_u32 s2, {NBK}')
    a('s_cbranch_scc1 B_done')
    a('v_lshrrev_b32 v1, 6, v0')
    a('v_lshrrev_b32 v4, 3, v0')
    a('v_readfirstlane_b32 s3, v1')
    a('v_lshlrev_b32 v12, 10, v4')
    a('s_and_b32 s85, s2, 7')
    a('s_lshl_b32 s85, s85, 5')
    a('s_lshr_b32 s86, s2, 3')
    a('s_add_u32 s85, s85, s86')
    a('s_lshl_b32 s32, s85, 2')
    a('s_add_u32 s33, s32, 0x20000')
    a('v_and_b32 v1, 63, v0')
    a('v_and_b32 v3, 7, v0')
    a('v_lshlrev_b32 v2, 4, v3')
    a('v_lshlrev_b32 v11, 4, v1')
    a(f's_mul_i32 s37, s85, {NB}')
    a('s_lshl_b32 s39, s37, 7')
    a('s_lshl_b32 s40, s3, 10')
    a('s_add_u32 s39, s39, s40')
    a('s_and_b32 s34, s3, 1')
    a('s_lshl_b32 s41, s34, 12')
    a('s_waitcnt lgkmcnt(0)')
    ws = 80
    srd(a, 4, ws, WS_TAB, TAB_BYTES)
    a('buffer_load_dword v6, v12, s[4:7], s32 offen')
    a('buffer_load_dword v7, v12, s[4:7], s33 offen')
    stamp(a, 0)
    srd(a, 8, ws, WS_REC, REC_BYTES)
    a(f's_add_u32 s28, s80, {hex(WS_WF+WF_W3+256)}')
    a('s_addc_u32 s29, s81, 0')
    a('s_load_dword s90, s[28:29], 0')
    srd(a, 12, ws, WS_PT, PT_BYTES)
    srd(a, 24, 76, 0, N*128)
    a('s_mov_b64 s[88:89], s[80:81]')
    a('s_bfe_u32 s35, s3, 0x20001')
    a('s_lshl_b32 s38, s35, 5')
    a('v_and_b32 v8, 31, v1')
    a('v_add_u32 v8, s38, v8')
    a('v_lshrrev_b32 v9, 5, v1')
    a('v_lshlrev_b32 v3, 3, v3')
    a(f'v_add_u32 v3, {L_AGG}, v3')
    a('s_movk_i32 s42, 128')
    a(f's_movk_i32 s43, {ES//8}')
    a('s_mov_b32 s44, 1.0')
    a('s_mov_b32 s45, 1.0')
    a('s_mov_b32 s46, 0x3f80')
    a(f's_mov_b32 s47, {hex(f32(-LOG2E))}')
    a(f's_mov_b32 s48, {hex(f32(-LN2))}')
    a(f's_mov_b32 s49, {hex(f32(-LN2))}')
    a('s_mov_b32 s50, 0')
    a('s_mov_b32 s94, s47')
    a('s_mov_b32 s95, s47')
    a('s_movk_i32 s84, 72')
    a('s_mov_b32 s86, 0')
    a('s_mov_b32 s87, -1')
    srd(a, 16, 64, 0, N*128)
    srd(a, 20, ws, WS_WF, WF_BYTES)
    srd(a, 28, ws, WS_PF, PF_BYTES)
    a.lab('B_batch')
    a('v_lshlrev_b32 v12, 4, v0')
    a('s_cmp_ge_u32 s3, 4')
    a('s_cbranch_scc1 B_noini')
    a(f'v_mov_b32 v16, {hex(DUMP_OFF | DUMP_OFF << 16)}')
    a(f'v_cmp_gt_u32 vcc, {L_L8//16}, v0')
    a('v_mov_b32 v28, 0')
    a(f'v_mov_b32 v29, {hex(DUMMY1)}')
    a('v_cndmask_b32 v16, v16, v28, vcc')
    a('v_mov_b32 v30, 0')
    a(f'v_mov_b32 v31, {hex(DUMMY1)}')
    a('v_mov_b32 v17, v16')
    a('v_mov_b32 v18, v16')
    a('v_mov_b32 v19, v16')
    a(f'v_cmp_gt_u32 vcc, {L_REC//16}, v0')
    a('s_and_saveexec_b64 s[68:69], vcc')
    a('ds_write_b128 v12, v[16:19]')
    a('s_mov_b64 exec, 15')
    a(f'ds_write_b128 v11, v[28:31] offset:{L_REC+DUMP_OFF}')
    a('s_mov_b64 exec, s[68:69]')
    a.lab('B_noini')
    a('v_and_b32 v14, 7, v0')
    a('v_lshlrev_b32 v14, 1, v14')
    a('v_add_u32 v14, s50, v14')
    a(f's_movk_i32 s51, {CH}')
    a('v_mul_u32_u24 v15, s51, v4')
    a('v_add_u32 v15, v15, v14')
    a('v_mov_b32 v25, 0x7fffff00')
    a('s_waitcnt lgkmcnt(0)')
    a('s_barrier')
    stamp(a, 9)
    a('s_waitcnt vmcnt(0)')
    stamp(a, 1)
    for rd_ in range(2):
        T_ = 6+rd_
        a(f'v_bfe_u32 v{20+rd_}, v{T_}, 16, 13')
        a(f'v_and_b32 v{22+rd_}, 0xffff, v{T_}')
        a(f'v_add_u32 v{22+rd_}, v{22+rd_}, v15')
        if rd_ == 1:
            a(f'v_add_u32 v{22+rd_}, {128*CH}, v{22+rd_}')
        a(f'v_lshlrev_b32 v{22+rd_}, 3, v{22+rd_}')
        a(f'v_sub_u32 v{16+rd_}, v{20+rd_}, v14')
    for s in range(8):
        a(f'v_cmp_lt_i32 s[{52+2*s}:{53+2*s}], {((s >> 1) & 1)*16+(s & 1)}, v{16+(s >> 2)}')
    a('s_cmp_eq_u32 s87, -1')
    a('s_cbranch_scc1 B_allsl')
    a('s_lshl_b32 s51, s3, 3')
    a('s_sub_u32 s51, s87, s51')
    for s in range(8):
        a(f's_cmp_eq_u32 s51, {s}')
        a(f's_cselect_b64 s[{52+2*s}:{53+2*s}], s[{52+2*s}:{53+2*s}], 0')
    a.lab('B_allsl')
    order = [(0, 0), (1, 0), (0, 1), (1, 1)]
    for rd_, ld in order:
        s = rd_*4+ld*2
        r = 96+(rd_*2+ld)*4
        a(f's_or_b64 vcc, s[{52+2*s}:{53+2*s}], s[{54+2*s}:{55+2*s}]')
        a(f'v_cndmask_b32 v{26+rd_*2+ld}, v25, v{22+rd_}, vcc')
        a(f'buffer_load_dwordx4 {q4(r)}, v{26+rd_*2+ld}, s[8:11], 0 offen offset:{128*ld} {LD_R}')
    a('v_max_i32 v16, v16, v17')
    a('v_or_b32 v17, v6, v7')
    a('v_cmp_lt_i32 s[70:71], 32, v16')
    a('v_cmp_gt_i32 s[72:73], 0, v17')
    a(f'v_mov_b32 v24, {L_MAX}')
    a('v_mov_b32 v16, 1')
    a('s_cmp_eq_u64 s[70:71], 0')
    a('s_cbranch_scc1 B_nomore')
    a('ds_write_b32 v24, v16')
    a.lab('B_nomore')
    lc = [0]
    def ranks(extra):
        a('v_mov_b32 v44, 8')
        for n, (rd_, ld) in enumerate(order):
            a(f's_waitcnt vmcnt({3-n+extra})')
            if n in (0, 3) and DEBUG:
                a('s_mov_b64 exec, -1')
                stamp(a, {0: 6, 3: 10}[n])
            for e in range(2):
                s = rd_*4+ld*2+e
                r = 96+(rd_*2+ld)*4+2*e
                a(f's_mov_b64 exec, s[{52+2*s}:{53+2*s}]')
                if ld:
                    lc[0] += 1
                    a(f's_cbranch_execz B_sk{lc[0]}')
                a(f'v_lshrrev_b32 v{112+s}, 16, v{r+1}')
                a(f'ds_add_rtn_u32 v{36+s}, v{112+s}, v44 offset:{L_CNT}')
                if ld: a.lab(f'B_sk{lc[0]}')
        a('s_mov_b64 exec, -1')
    a('s_cmp_lg_u32 s86, 0')
    a('s_cbranch_scc1 B_rk0')
    a('s_cmp_ge_u32 s3, 13')
    a('s_cbranch_scc1 B_a13')
    a(f'buffer_load_dwordx4 v[32:35], v11, s[16:19], s39 offen {LD_XB}')
    a('s_cmp_ge_u32 s3, 8')
    a('s_cbranch_scc1 B_a8')
    a(f's_add_u32 m0, s40, {L_WU}')
    a('s_nop 0')
    a('buffer_load_dwordx4 v11, s[20:23], s40 offen lds')
    a('s_branch B_ax')
    a.lab('B_a8')
    a('s_sub_u32 s51, s40, 8192')
    a('buffer_load_dwordx4 v[48:51], v11, s[28:31], s51 offen')
    a('s_branch B_ax')
    a.lab('B_a13')
    a(f's_mov_b32 m0, {L_W3}')
    a(f's_movk_i32 s51, {WF_W3}')
    a('s_mov_b64 exec, 0xffff')
    a('buffer_load_dwordx4 v11, s[20:23], s51 offen lds')
    a('buffer_load_dwordx4 v11, s[20:23], s51 offen lds')
    a('s_mov_b64 exec, -1')
    a.lab('B_ax')
    for r in range(20, 24): a(f'v_mov_b32 v{r}, 0')
    a(f'v_add_u32 v13, {L_AGG}, v12')
    for j in range(3):
        a(f'ds_write_b128 v13, v[20:23] offset:{16384*j}')
    a(f'v_cmp_gt_u32 vcc, {NB*RS*2//16-3072}, v0')
    a('s_and_saveexec_b64 s[68:69], vcc')
    a('ds_write_b128 v13, v[20:23] offset:49152')
    a('s_mov_b64 exec, s[68:69]')
    a('v_lshrrev_b32 v45, 3, v1')
    a('v_and_b32 v46, 7, v1')
    a('v_xor_b32 v47, v46, v45')
    a('v_lshlrev_b32 v47, 4, v47')
    a('v_lshl_add_u32 v47, v45, 7, v47')
    a(f's_add_u32 s51, s40, {L_X}')
    a('v_add_u32 v47, s51, v47')
    ranks(2)
    a('s_waitcnt vmcnt(0)')
    a('s_cmp_ge_u32 s3, 13')
    a('s_cbranch_scc1 B_rkdone')
    a('ds_write_b128 v47, v[32:35]')
    a('s_cmp_lt_u32 s3, 8')
    a('s_cbranch_scc1 B_rkdone')
    a('v_or3_b32 v48, v48, v49, v50')
    a('v_or_b32 v48, v48, v51')
    a('v_cmp_ne_u32 vcc, 0, v48')
    a('s_nop 0')
    a('s_or_b64 s[72:73], s[72:73], vcc')
    a('s_branch B_rkdone')
    a.lab('B_rk0')
    ranks(0)
    a.lab('B_rkdone')
    a('s_cmp_eq_u64 s[72:73], 0')
    a('s_cbranch_scc1 B_noflag')
    a('ds_write_b32 v24, v16 offset:4')
    a.lab('B_noflag')
    a('s_movk_i32 s51, 504')
    a('s_waitcnt lgkmcnt(0)')
    stamp(a, 7)
    for s in (0, 1, 4, 5, 2, 3, 6, 7):
        r = 96+(s//2)*4+2*(s % 2)
        a(f's_mov_b64 exec, s[{52+2*s}:{53+2*s}]')
        sk = s in (2, 3, 6, 7)
        if sk:
            lc[0] += 1
            a(f's_cbranch_execz B_sk{lc[0]}')
        a(f'v_min_u32 v{36+s}, s51, v{36+s}')
        a(f'v_mad_u32_u24 v{36+s}, v{112+s}, s43, v{36+s}')
        a(f'ds_write_b64 v{36+s}, {pr(r)} offset:{L_REC}')
        if sk: a.lab(f'B_sk{lc[0]}')
    a('s_mov_b64 exec, -1')
    a('v_lshrrev_b32 v13, 3, v1')
    a('v_lshlrev_b32 v13, 1, v13')
    a(f'v_mov_b32 v14, {L_WORK}')
    a('v_mov_b32 v15, 1')
    a('v_xor_b32 v46, v46, v9')
    a('v_lshlrev_b32 v45, 7, v8')
    a(f'v_add_u32 v45, {L_X}, v45')
    for ks in range(4):
        a(f'v_xor_b32 v47, {2*ks}, v46')
        a(f'v_lshl_add_u32 v{92+ks}, v47, 4, v45')
    a(f's_add_u32 s68, s41, {L_WU}')
    a('v_add_u32 v126, s68, v11')
    a(f's_movk_i32 s68, {RS}')
    a('v_mul_u32_u24 v124, s68, v8')
    a('v_lshl_add_u32 v124, v9, 6, v124')
    a('s_lshl_b32 s68, s34, 5')
    a('v_add_u32 v124, s68, v124')
    a(f'v_mov_b32 v125, {NB}')
    a('v_cmp_gt_u32 s[74:75], v125, v8')
    a('v_lshlrev_b32 v125, 1, v2')
    a(f'v_add_u32 v125, {L_W3}, v125')
    a('s_lshl_b32 s51, s3, 6')
    a('v_lshl_add_u32 v120, v13, 2, s51')
    a('v_mul_u32_u24 v123, s43, v120')
    a(f'v_mov_b32 v122, {hex(DUMMY1)}')
    a('s_waitcnt lgkmcnt(0)')
    a('s_barrier')
    stamp(a, 2)
    a(f'ds_read_b32 v121, v120 offset:{L_CNT}')
    a(f'ds_read_b128 v[56:59], v123 offset:{L_REC}')
    a(f'ds_read_b128 v[60:63], v123 offset:{L_REC+16}')
    ec = [0]
    def early(g=False):
        a('v_cmp_le_u32 vcc, 64, v121')
        a(f'ds_read_b128 v[112:115], v123 offset:{L_REC+32}')
        a(f'ds_read_b128 v[116:119], v123 offset:{L_REC+48}')
        a('v_cndmask_b32 v57, v122, v57, vcc')
        if not g: return
        ec[0] += 1
        a(f's_cmp_lt_u32 s3, {EG0}')
        a(f's_cbranch_scc1 B_neg{ec[0]}')
        egath()
        a.lab(f'B_neg{ec[0]}')
    def egath():
        for k in range(4):
            a(f'v_mad_u32_u16 v{120+(k&1)}, v{57+2*k}, s42, v2')
            a(f'buffer_load_dwordx4 {q4(32+4*k)}, v{120+(k&1)}, s[12:15], 0 offen')
    a('s_cmp_lg_u32 s86, 0')
    a('s_cbranch_scc1 B_now3')
    a('s_cmp_lt_u32 s3, 8')
    a('s_cbranch_scc1 B_now3')
    a('s_mov_b32 s86, 1')
    for ks in range(4):
        a(f'ds_read_b128 {q4(76+4*ks)}, v{92+ks}')
        a(f'ds_read_b128 {q4(96+4*ks)}, v126 offset:{1024*ks}')
    a('ds_read_b128 v[68:71], v125')
    a('ds_read_b128 v[72:75], v125 offset:16')
    for ks in range(4):
        c = '0' if ks == 0 else 'v[16:31]'
        a(f's_waitcnt lgkmcnt({8-2*ks})')
        a(f'v_mfma_f32_32x32x16_bf16 v[16:31], {q4(96+4*ks)}, {q4(76+4*ks)}, {c}')
    a('s_cmp_ge_u32 s3, 13')
    a('s_cbranch_scc1 B_g13')
    early()
    a.lab('B_g13')
    a('s_nop 11')
    for r in range(0, 16, 2):
        a(f'v_pk_mul_f32 {pr(16+r)}, {pr(16+r)}, s[94:95]')
    a('s_mov_b64 exec, s[74:75]')
    for o in range(2):
        a(f'ds_write_b128 v124, {q4(16+8*o)} offset:{L_Q+16*o}')
        a(f'ds_write_b128 v124, {q4(20+8*o)} offset:{L_Q+128+16*o}')
    a('v_max_f32 v125, |v16|, |v17|')
    for r in range(2, 16, 2):
        a(f'v_max3_f32 v125, v125, |v{16+r}|, |v{17+r}|')
    a(f'v_cmp_lt_f32 vcc, {hex(f32(LIM_Q))}, v125')
    a('s_mov_b64 exec, -1')
    a(f'v_mov_b32 v125, {L_FLAG}')
    a('v_mov_b32 v126, 1')
    a('s_cbranch_vccz B_lsd')
    a('ds_write_b32 v125, v126')
    a('s_branch B_lsd')
    a.lab('B_now3')
    a('s_cmp_lt_u32 s3, 8')
    a('s_cbranch_scc1 B_l8')
    a('s_cmp_ge_u32 s3, 13')
    a('s_cbranch_scc1 B_lsd')
    a('s_waitcnt lgkmcnt(0)')
    early()
    a('s_branch B_lsd')
    a.lab('B_l8')
    a(f'ds_read_b128 v[16:19], v11 offset:{L_CNT}')
    a('s_cmp_lg_u32 s86, 0')
    a('s_cbranch_scc1 B_l8b')
    a('s_mov_b32 s86, 1')
    a('ds_read_b128 v[68:71], v125')
    a('ds_read_b128 v[72:75], v125 offset:16')
    a.lab('B_l8b')
    a(f'v_mul_u32_u24 v20, {2*ES}, v1')
    a(f'v_add_u32 v21, {ES}, v20')
    a('s_lshl_b32 s51, s3, 6')
    a('v_add_u32 v28, s51, v20')
    a('v_add_u32 v29, s51, v21')
    a('s_add_u32 s51, s51, 64')
    a(f'v_mov_b32 v24, {L_F8C}')
    a('s_waitcnt lgkmcnt(0)')
    a('s_cmp_lg_u32 s3, 0')
    a('s_cbranch_scc1 B_l8c')
    early()
    a('s_branch B_cls')
    a.lab('B_l8c')
    a('v_cmp_le_u32 s[68:69], s51, v16')
    a('v_cmp_le_u32 s[70:71], s51, v18')
    a('s_bcnt1_i32_b64 s72, s[68:69]')
    a('s_bcnt1_i32_b64 s73, s[70:71]')
    a('s_add_u32 s73, s73, s72')
    a('v_mov_b32 v25, s73')
    a('s_mov_b64 exec, 1')
    a('ds_add_rtn_u32 v26, v24, v25')
    a('s_mov_b64 exec, -1')
    a('v_mbcnt_lo_u32_b32 v22, s68, 0')
    a('v_mbcnt_hi_u32_b32 v22, s69, v22')
    a('v_mbcnt_lo_u32_b32 v23, s70, 0')
    a('v_mbcnt_hi_u32_b32 v23, s71, v23')
    a('v_add_u32 v23, s72, v23')
    early(True)
    a('s_waitcnt lgkmcnt(2)')
    a('v_readfirstlane_b32 s72, v26')
    a('s_nop 1')
    a('v_add_lshl_u32 v22, v22, s72, 1')
    a('v_add_lshl_u32 v23, v23, s72, 1')
    a('s_mov_b64 exec, s[68:69]')
    a(f'ds_write_b16 v22, v28 offset:{L_L8}')
    a('s_mov_b64 exec, s[70:71]')
    a(f'ds_write_b16 v23, v29 offset:{L_L8}')
    a('s_mov_b64 exec, -1')
    a('s_cmp_ge_u32 s3, 4')
    a('s_cbranch_scc1 B_lsd')
    a.lab('B_cls')
    for k in range(2):
        a(f'v_bfe_u32 v{82+k}, v{16+2*k}, 5, 1')
        a(f'v_bfe_u32 v{84+k}, v{16+2*k}, 3, 2')
    msk = [(52, 54), (56, 58), (60, 62), (64, 66)]
    for k in range(2):
        a(f'v_cmp_ne_u32 s[{msk[0][k]}:{msk[0][k]+1}], 0, v{82+k}')
        for c in range(1, 4):
            a(f'v_cmp_eq_u32 s[{msk[c][k]}:{msk[c][k]+1}], {4-c}, v{84+k}')
    a('v_max_u32 v86, v16, v18')
    a('v_cmp_lt_u32 vcc, 512, v86')
    a('s_mov_b32 s72, 0')
    a('s_mov_b32 s73, 0')
    for c in range(4):
        a(f's_cmp_eq_u32 s3, {c}')
        a(f's_cselect_b64 s[68:69], s[{msk[c][0]}:{msk[c][0]+1}], s[68:69]')
        a(f's_cselect_b64 s[70:71], s[{msk[c][1]}:{msk[c][1]+1}], s[70:71]')
        a('s_cselect_b32 s74, s72, s74')
        a(f's_bcnt1_i32_b64 s75, s[{msk[c][0]}:{msk[c][0]+1}]')
        a(f's_bcnt1_i32_b64 s76, s[{msk[c][1]}:{msk[c][1]+1}]')
        a('s_add_u32 s75, s75, s76')
        a('s_add_u32 s75, s75, 7')
        a('s_lshr_b32 s75, s75, 3')
        a('s_add_u32 s72, s72, s75')
        a(f's_lshl_b32 s75, s72, {8*c}')
        a('s_or_b32 s73, s73, s75')
    a('s_cmp_eq_u32 s3, 0')
    a('s_cselect_b32 s51, 63, 31')
    a('s_not_b32 s51, s51')
    a('s_lshl_b32 s74, s74, 3')
    a('s_bcnt1_i32_b64 s75, s[68:69]')
    a('s_add_u32 s75, s75, s74')
    a('v_and_b32 v16, s51, v16')
    a('v_and_b32 v18, s51, v18')
    a('v_add_u32 v20, v20, v16')
    a('v_add_u32 v21, v21, v18')
    a('v_mbcnt_lo_u32_b32 v82, s68, 0')
    a('v_mbcnt_hi_u32_b32 v82, s69, v82')
    a('v_mbcnt_lo_u32_b32 v83, s70, 0')
    a('v_mbcnt_hi_u32_b32 v83, s71, v83')
    a('v_add_lshl_u32 v82, v82, s74, 1')
    a('v_add_lshl_u32 v83, v83, s75, 1')
    a('s_mov_b64 exec, s[68:69]')
    a(f'ds_write_b16 v82, v20 offset:{L_L2}')
    a('s_mov_b64 exec, s[70:71]')
    a(f'ds_write_b16 v83, v21 offset:{L_L2}')
    a('s_mov_b64 exec, 1')
    a('s_cmp_lg_u64 vcc, 0')
    a('s_cselect_b32 s73, -1, s73')
    a(f'v_mov_b32 v84, {L_TOT}')
    a('v_mov_b32 v85, s73')
    a('ds_write_b32 v84, v85')
    a('s_mov_b64 exec, -1')
    a.lab('B_lsd')
    a('s_waitcnt lgkmcnt(0)')
    a('s_barrier')
    stamp(a, 3)
    stampc(a, 8)
    a('s_cmp_lg_u32 s85, -1')
    a('s_cbranch_scc0 B_nowu')
    a('s_mov_b32 s85, -1')
    a('s_cmp_lt_u32 s3, 13')
    a('s_cbranch_scc1 B_nowu')
    a('s_sub_u32 s51, s3, 13')
    a('s_mul_i32 s51, s51, 3072')
    a(f's_add_u32 m0, s51, {L_WU}')
    a('s_add_u32 s51, s51, 16384')
    a('buffer_load_dwordx4 v11, s[20:23], s51 offen lds')
    a('buffer_load_dwordx4 v11, s[20:23], s51 offen offset:1024 lds')
    a('s_cmp_eq_u32 s3, 15')
    a('s_cbranch_scc1 B_nowu')
    a('buffer_load_dwordx4 v11, s[20:23], s51 offen offset:2048 lds')
    a.lab('B_nowu')
    if DEBUG:
        for i_ in range(44, 60): a(f'v_writelane_b32 v65, 0, {i_}')
    RAW = 32; Q = 48; RCS = [56, 112]; IDX = 64; AGC = 66; AGN = 67; Z = 76; T = 16; T2 = 24; TMP = 108; NN = 120; DD = 4; EN = 111
    cnt = [0]
    def rd(st, off=0):
        a(f'ds_read_b128 {q4(RCS[st])}, v{EN} offset:{L_REC+off}')
        a(f'ds_read_b128 {q4(RCS[st]+4)}, v{EN} offset:{L_REC+off+16}')
    def ent8(sidx):
        a(f's_lshl_b32 s51, s{sidx}, 4')
        a(f'v_add_u32 v{TMP}, s51, v13')
        a(f'ds_read_u16 v{EN}, v{TMP} offset:{L_L8}')
    def ent4(sidx):
        a(f's_sub_u32 s79, s{sidx}, s74')
        a(f's_min_u32 s79, s79, 51')
        a(f's_lshl_b32 s51, s79, 4')
        a(f'v_add_u32 v{TMP}, s51, v13')
        a(f'ds_read_u16 v{EN}, v{TMP} offset:{L_L2}')
    def ent_any(sidx):
        n = cnt[0]; cnt[0] += 1
        a(f's_cmp_ge_u32 s{sidx}, s74')
        a(f's_cbranch_scc1 B_rrP{n}')
        ent8(sidx)
        a(f's_branch B_rrX{n}')
        a.lab(f'B_rrP{n}')
        ent4(sidx)
        a.lab(f'B_rrX{n}')
    def gather(st, k):
        a(f'v_mad_u32_u16 v{TMP+(k&1)}, v{RCS[st]+2*k+1}, s42, v2')
        a(f'buffer_load_dwordx4 {q4(RAW+4*k)}, v{TMP+(k&1)}, s[12:15], 0 offen')
    def qread(st):
        RC = RCS[st]
        a(f'v_mad_u32_u16 v{TMP+2}, v{RC+1}, 36, v2 op_sel:[1,0,0,0]')
        a(f'ds_read_b128 {q4(Q)}, v{TMP+2} offset:{L_Q}')
        a(f'ds_read_b128 {q4(Q+4)}, v{TMP+2} offset:{L_Q+128}')
        a(f'v_mad_u32_u16 v{AGN}, v{RC+1}, s84, v3 op_sel:[1,0,0,0]')
    def grab():
        a('s_mov_b64 exec, 1')
        a(f'ds_add_rtn_u32 v{IDX}, v14, v15')
        a('s_mov_b64 exec, -1')
    def cops(st):
        for k in range(4):
            for p in range(4):
                a(f'v_pk_fma_f32 {pr(Z+8*k+2*p)}, {pr(RCS[st]+2*k)}, {pr(68+2*p)}, {pr(Q+2*p)} op_sel_hi:[0,1,1]')
    def zadd(k, nst):
        R = RAW+4*k; Zk = Z+8*k
        a('s_waitcnt vmcnt(3)')
        for i in range(4):
            a(f'v_dot2_f32_bf16 v{Zk+4+i}, v{R+i}, s46, v{Zk+4+i}')
        a(f'v_pk_add_f32 {pr(Zk)}, {pr(R)}, {pr(Zk)}')
        a(f'v_pk_add_f32 {pr(Zk+2)}, {pr(R+2)}, {pr(Zk+2)}')
        gather(nst, k)
    def upd(k, first, nsrc):
        Zk = Z+8*k
        if first:
            for i in range(8): a(f'v_exp_f32 v{DD+i}, v{Zk+i}')
            for p in range(4): a(f'v_pk_add_f32 {pr(DD+2*p)}, {pr(DD+2*p)}, s[44:45]')
            return
        for i in range(8): a(f'v_exp_f32 v{T+i}, v{Zk+i}')
        for p in range(4): a(f'v_pk_fma_f32 {pr(Zk+2*p)}, {pr(Zk+2*p)}, {pr(DD+2*p)}, {pr(nsrc+2*p)}')
        for p in range(4): a(f'v_pk_fma_f32 {pr(NN+2*p)}, {pr(nsrc+2*p)}, {pr(T+2*p)}, {pr(Zk+2*p)}')
        for p in range(4): a(f'v_pk_fma_f32 {pr(DD+2*p)}, {pr(DD+2*p)}, {pr(T+2*p)}, {pr(DD+2*p)}')
    def updp(k, first):
        Zk = Z+8*k
        for i in range(8): a(f'v_exp_f32 v{T+i}, v{Zk+i}')
        for p in range(4): a(f'v_pk_add_f32 {pr(T+2*p)}, {pr(T+2*p)}, s[44:45]')
        for i in range(8): a(f'v_rcp_f32 v{T+i}, v{T+i}')
        for p in range(4):
            if first: a(f'v_pk_mul_f32 {pr(NN+2*p)}, {pr(Zk+2*p)}, {pr(T+2*p)}')
            else: a(f'v_pk_fma_f32 {pr(NN+2*p)}, {pr(Zk+2*p)}, {pr(T+2*p)}, {pr(NN+2*p)}')
    def flush(src):
        dd = [T, T+2, T+4, T+6, T2, T2+2, T2+4, T2+6]
        for i in range(8): a(f'v_cvt_f64_f32 {pr(dd[i])}, v{src+i}')
        for i in range(8): a(f'ds_add_f64 v{AGC}, {pr(dd[i])} offset:{64*i}')
    def finish(nsrc):
        for i in range(8): a(f'v_rcp_f32 v{DD+i}, v{DD+i}')
        for p in range(4): a(f'v_pk_mul_f32 {pr(DD+2*p)}, {pr(nsrc+2*p)}, {pr(DD+2*p)}')
        flush(DD)
    pc = [0]
    def prio(inc):
        if DEBUG:
            a('s_memrealtime s[92:93]')
            a('s_add_u32 m0, s83, 44')
            a('s_waitcnt lgkmcnt(0)')
            a('v_writelane_b32 v65, s92, m0')
        a(f's_add_u32 s83, s83, {inc}')
        if not PRIO: return
        n = pc[0]; pc[0] += 1
        a(f's_cmp_lt_u32 s83, {PT[0]}')
        a(f's_cbranch_scc1 B_pr{n}')
        a('s_setprio 2')
        a(f's_cmp_lt_u32 s83, {PT[1]}')
        a(f's_cbranch_scc1 B_pr{n}')
        a('s_setprio 1')
        a(f's_cmp_lt_u32 s83, {PT[2]}')
        a(f's_cbranch_scc1 B_pr{n}')
        a('s_setprio 0')
        a.lab(f'B_pr{n}')
    a(f'v_mov_b32 v24, {L_MAX}')
    a('ds_read_b128 v[16:19], v24')
    a('s_mov_b32 s76, s3')
    a('s_add_u32 s77, s3, 3')
    a('s_cmp_lt_u32 s3, 13')
    a('s_cselect_b32 s77, s3, s77')
    a('s_cbranch_scc1 B_e1')
    ent8(76)
    a('s_branch B_e2')
    a.lab('B_e1')
    a(f's_sub_u32 s51, s3, {EG0}')
    a(f's_cmp_lt_u32 s51, {8-EG0}')
    a('s_cbranch_scc1 B_e1b')
    egath()
    a.lab('B_e1b')
    qread(0)
    a.lab('B_e2')
    grab()
    a('s_mov_b32 s83, 0')
    if PRIO: a('s_setprio 3')
    a('s_waitcnt lgkmcnt(0)')
    a('s_cmp_lt_u32 s3, 13')
    a('s_cbranch_scc1 B_e3')
    rd(0); rd(1, 32)
    a.lab('B_e3')
    a('v_readfirstlane_b32 s70, v19')
    a('v_readfirstlane_b32 s74, v18')
    a('v_readfirstlane_b32 s71, v16')
    a('v_readfirstlane_b32 s91, v17')
    a('s_cmp_lg_u32 s70, -1')
    a('s_cbranch_scc1 B_capok')
    a('s_mov_b32 s87, 0')
    a('s_setprio 0')
    a('s_waitcnt vmcnt(0) lgkmcnt(0)')
    a('s_barrier')
    a('s_branch B_batch')
    a.lab('B_capok')
    a('s_or_b32 s90, s90, s91')
    if FORCE_PLAIN: a('s_mov_b32 s90, 1')
    a('s_add_u32 s74, s74, 7')
    a('s_lshr_b32 s74, s74, 3')
    a('s_and_b32 s72, s70, 0xff')
    a('s_add_u32 s72, s72, s74')
    a('s_bfe_u32 s73, s70, 0x80008')
    a('s_add_u32 s73, s73, s74')
    a('s_bfe_u32 s82, s70, 0x80010')
    a('s_add_u32 s82, s82, s74')
    a('s_lshr_b32 s75, s70, 24')
    a('s_add_u32 s75, s75, s74')
    a('s_cmp_lt_u32 s3, 13')
    a('s_cbranch_scc1 B_e4')
    a('s_cmp_ge_u32 s76, s75')
    a('s_cbranch_scc1 B_loop_end')
    a('s_cmp_ge_u32 s76, s74')
    a('s_cbranch_scc1 B_pre4')
    a('s_waitcnt lgkmcnt(0)')
    for k in range(4): gather(0, k)
    qread(0)
    a.lab('B_e4')
    ent_any(77)
    a('s_waitcnt lgkmcnt(0)')
    a('s_cmp_lg_u32 s90, 0')
    a('s_cbranch_scc1 B_loop8p')
    for mode in ('', 'p'):
        a.lab(f'B_loop8{mode}')
        a('s_waitcnt lgkmcnt(8)')
        a(f'v_mov_b32 v{AGC}, v{AGN}')
        a(f'v_readfirstlane_b32 s78, v{IDX}')
        cops(0)
        rd(0)
        a('s_add_u32 s78, s78, 19')
        for k in range(4):
            zadd(k, 1)
            if mode: updp(k, k == 0)
            else: upd(k, k == 0, Z if k == 1 else NN)
        cops(1)
        a('s_waitcnt lgkmcnt(0)')
        qread(0)
        a('s_cmp_ge_u32 s77, s74')
        a(f's_cbranch_scc1 B_tr8{mode}')
        rd(1, 32)
        ent_any(78)
        a(f's_branch B_tr8x{mode}')
        a.lab(f'B_tr8{mode}')
        ent4(78)
        a('s_waitcnt lgkmcnt(0)')
        rd(1)
        a.lab(f'B_tr8x{mode}')
        grab()
        for k in range(4):
            zadd(k, 0)
            if mode: updp(k, False)
            else: upd(k, False, NN)
        if mode: flush(NN)
        else: finish(NN)
        prio(2)
        a('s_mov_b32 s76, s77')
        a('s_mov_b32 s77, s78')
        a('s_cmp_lt_u32 s76, s74')
        a(f's_cbranch_scc1 B_loop8{mode}')
        a('s_cmp_lt_u32 s76, s75')
        a(f's_cbranch_scc1 B_loop0{mode}')
        a('s_branch B_loop_end')
    a.lab('B_pre4')
    a('s_waitcnt lgkmcnt(0)')
    ent4(76)
    a('s_waitcnt lgkmcnt(0)')
    rd(0)
    ent4(77)
    a('s_waitcnt lgkmcnt(0)')
    for k in range(4): gather(0, k)
    qread(0)
    rd(1)
    a('s_waitcnt lgkmcnt(0)')
    a('s_cmp_lg_u32 s90, 0')
    a('s_cbranch_scc1 B_loop0p')
    lim = [82, 73, 72]
    for mode in ('', 'p'):
        for st in range(2):
            L = f'{st}{mode}'
            a.lab(f'B_loop{L}')
            a('s_waitcnt lgkmcnt(8)')
            a(f'v_mov_b32 v{AGC}, v{AGN}')
            a(f'v_readfirstlane_b32 s78, v{IDX}')
            a('s_nop 0')
            a('s_add_u32 s78, s78, 19')
            ent4(78)
            cops(st)
            qread(1-st)
            a('s_waitcnt lgkmcnt(2)')
            rd(st)
            grab()
            for k in range(4):
                zadd(k, 1-st)
                if mode: updp(k, k == 0)
                else: upd(k, k == 0, Z if k == 1 else NN)
                if k < 3:
                    a(f's_cmp_ge_u32 s76, s{lim[k]}')
                    a(f's_cbranch_scc1 B_ex{k}_{L}')
            a.lab(f'B_fin_{L}')
            if mode: flush(NN)
            else: finish(NN)
            a.lab(f'B_nx_{L}')
            prio(1)
            a('s_mov_b32 s76, s77')
            a('s_mov_b32 s77, s78')
            a('s_cmp_ge_u32 s76, s75')
            a('s_cbranch_scc1 B_loop_end')
            if st == 1: a(f's_branch B_loop0{mode}')
        for st in range(2):
            L = f'{st}{mode}'
            for k in range(3):
                a.lab(f'B_ex{k}_{L}')
                for kk in range(k+1, 4): gather(1-st, kk)
                if k == 0 and not mode:
                    finish(Z)
                    a(f's_branch B_nx_{L}')
                else:
                    a(f's_branch B_fin_{L}')
    a.lab('B_loop_end')
    stamp(a, 4)
    a('s_waitcnt vmcnt(0) lgkmcnt(0)')
    a('v_lshlrev_b32 v11, 4, v1')
    a('v_and_b32 v8, 31, v1')
    a('v_add_u32 v8, s38, v8')
    a('v_lshrrev_b32 v9, 5, v1')
    a('s_cmp_ge_u32 s3, 8')
    a('s_cbranch_scc1 B_join')
    WX = [100, 104, 108, 4]
    a('s_add_u32 s39, s41, 8192')
    for ks in range(4):
        a(f'buffer_load_dwordx4 {q4(WX[ks])}, v11, s[20:23], s39 offen offset:{1024*ks}')
    a(f's_add_u32 s39, s41, {L_WU}')
    a('v_add_u32 v98, s39, v11')
    a('v_and_b32 v13, 7, v1')
    a('v_xor_b32 v13, v13, v9')
    a('v_lshlrev_b32 v14, 7, v8')
    a(f'v_add_u32 v14, {L_X}, v14')
    for ks in range(4):
        a(f'v_xor_b32 v15, {2*ks}, v13')
        a(f'v_lshl_add_u32 v{92+ks}, v15, 4, v14')
        a(f'ds_read_b128 {q4(16+4*ks)}, v{92+ks}')
    a('s_waitcnt vmcnt(0) lgkmcnt(0)')
    for ks in range(4):
        c = '0' if ks == 0 else 'v[112:127]'
        a(f'v_mfma_f32_32x32x16_bf16 v[112:127], {q4(WX[ks])}, {q4(16+4*ks)}, {c}')
    a.lab('B_join')
    a('v_lshrrev_b32 v12, 3, v0')
    a(f's_movk_i32 s51, {2*RS}')
    a('v_mul_u32_u24 v96, s51, v12')
    a('v_add_u32 v96, v96, v2')
    a(f'v_add_u32 v96, {L_AGG}, v96')
    a('v_and_b32 v97, 7, v12')
    a('v_lshlrev_b32 v97, 4, v97')
    a('v_xor_b32 v97, v97, v2')
    a('v_lshl_add_u32 v97, v12, 7, v97')
    a('s_setprio 0')
    a('s_waitcnt lgkmcnt(0)')
    a('s_barrier')
    stamp(a, 5)
    stampc(a, 40)
    a('s_cmp_eq_u32 s87, -1')
    a('s_cbranch_scc1 B_nb')
    a('s_add_u32 s87, s87, 1')
    a('s_cmp_lt_u32 s87, 128')
    a('s_cbranch_scc1 B_again')
    a('s_mov_b32 s87, -1')
    a.lab('B_nb')
    a('s_add_u32 s50, s50, 32')
    a('s_cmp_eq_u32 s71, 0')
    a('s_cbranch_scc1 B_fin')
    a.lab('B_again')
    a('s_waitcnt vmcnt(0)')
    a('v_lshrrev_b32 v4, 3, v0')
    a('v_lshlrev_b32 v12, 10, v4')
    a('buffer_load_dword v6, v12, s[4:7], s32 offen')
    a('buffer_load_dword v7, v12, s[4:7], s33 offen')
    a('s_branch B_batch')
    a.lab('B_fin')
    if DEBUG: a('v_mov_b32 v3, v65')
    a('s_cmp_ge_u32 s3, 13')
    a('s_cbranch_scc1 B_done2')
    for q in range(4):
        a(f'ds_read_b128 {q4(64+4*q)}, v96 offset:{128*q}')
    for q in range(4):
        a(f's_waitcnt lgkmcnt({3-q})')
        a(f'v_cvt_f32_f64 v{80+2*q}, {pr(64+4*q)}')
        a(f'v_cvt_f32_f64 v{81+2*q}, {pr(66+4*q)}')
    for q in range(4):
        a(f'v_pk_mul_f32 {pr(80+2*q)}, {pr(80+2*q)}, s[48:49]')
    for q in range(4):
        a(f'v_cvt_pk_bf16_f32 v{88+q}, v{80+2*q}, v{81+2*q}')
    a(f'ds_write_b128 v97, v[88:91] offset:{L_REC}')
    a('s_cmp_ge_u32 s3, 8')
    a('s_cbranch_scc1 B_b4')
    for ks in range(4):
        a(f'ds_read_b128 {q4(48+4*ks)}, v98 offset:{1024*ks}')
        a(f'v_add_u32 v{92+ks}, {L_REC-L_X}, v{92+ks}')
    a('s_waitcnt lgkmcnt(4)')
    a('s_branch B_b4x')
    a.lab('B_b4')
    a('s_waitcnt lgkmcnt(0)')
    a.lab('B_b4x')
    a('s_barrier')
    stamp(a, 11, 3)
    a('s_cmp_ge_u32 s3, 8')
    a('s_cbranch_scc1 B_b5')
    for ks in range(4):
        a(f'ds_read_b128 {q4(32+4*ks)}, v{92+ks}')
    a('s_movk_i32 s51, 272')
    a('v_mul_u32_u24 v17, s51, v8')
    a('v_lshl_add_u32 v17, v9, 6, v17')
    a('s_lshl_b32 s51, s34, 7')
    a(f's_add_u32 s51, s51, {L_AGG}')
    a('v_add_u32 v17, s51, v17')
    for ks in range(4):
        a(f's_waitcnt lgkmcnt({3-ks})')
        a(f'v_mfma_f32_32x32x16_bf16 v[112:127], {q4(48+4*ks)}, {q4(32+4*ks)}, v[112:127]')
    a('s_nop 11')
    for q in range(4):
        a(f'ds_write_b128 v17, {q4(112+4*q)} offset:{16*q}')
    a.lab('B_b5')
    a('s_movk_i32 s51, 272')
    a('v_mul_u32_u24 v18, s51, v12')
    a('v_lshl_add_u32 v18, v2, 1, v18')
    a(f'v_add_u32 v18, {L_AGG}, v18')
    a('v_lshlrev_b32 v19, 4, v0')
    a('s_lshl_b32 s51, s37, 7')
    a(f'v_cmp_gt_u32 vcc, {NB*8}, v0')
    a('s_mov_b32 s52, s47')
    a('s_mov_b32 s53, s47')
    a('s_waitcnt lgkmcnt(0)')
    a('s_barrier')
    stamp(a, 12, 3)
    a('ds_read_b128 v[32:35], v18')
    a('ds_read_b128 v[36:39], v18 offset:16')
    a('s_waitcnt lgkmcnt(0)')
    for r in range(0, 8, 2): a(f'v_pk_mul_f32 {pr(64+r)}, {pr(32+r)}, s[52:53]')
    for r in range(8): a(f'v_exp_f32 v{64+r}, v{64+r}')
    for r in range(0, 8, 2): a(f'v_pk_add_f32 {pr(64+r)}, {pr(64+r)}, s[44:45]')
    for r in range(8): a(f'v_rcp_f32 v{64+r}, v{64+r}')
    for r in range(0, 8, 2): a(f'v_pk_mul_f32 {pr(64+r)}, {pr(64+r)}, {pr(32+r)}')
    for r in range(0, 8, 2): a(f'v_cvt_pk_bf16_f32 v{40+r//2}, v{64+r}, v{65+r}')
    stamp(a, 13, 3)
    a('s_and_b64 exec, exec, vcc')
    a(f'buffer_store_dwordx4 v[40:43], v19, s[24:27], s51 offen {ST_O}')
    a.lab('B_done2')
    stamp_out(a, 1, 88, 3)
    a.lab('B_done')
    a('s_endpgm')

def kd(a, name, vgpr, sgpr):
    a.raw('.p2align 6')
    a.raw(f'.amdhsa_kernel {name}')
    a.raw(f'  .amdhsa_next_free_vgpr {vgpr}')
    a.raw(f'  .amdhsa_next_free_sgpr {sgpr}')
    a.raw(f'  .amdhsa_accum_offset {(vgpr+3)//4*4}')
    a.raw('  .amdhsa_group_segment_fixed_size 0')
    a.raw('  .amdhsa_kernarg_size 72')
    a.raw('  .amdhsa_user_sgpr_count 2')
    a.raw('  .amdhsa_user_sgpr_kernarg_segment_ptr 1')
    a.raw('  .amdhsa_system_sgpr_workgroup_id_x 1')
    a.raw('.end_amdhsa_kernel')

def main():
    ref = open('gather_scatter__mpnn_edge_mlp__graph.s.ref').read().splitlines()
    hdr = [l for l in ref if l.startswith(';') and '@launch' not in l and 'Override' not in l and 'grid=ceil' not in l]
    a = A()
    for l in hdr: a.raw(l)
    a.raw(f'; @launch kernel=mpnn_bin_kernel grid=({A_GRID},1,1) block=({A_BLOCK},1,1) lds={A_LDS}')
    a.raw(f'; @launch kernel=mpnn_main_kernel grid=({NBK},1,1) block=(1024,1,1) lds={B_LDS}')
    a.raw('.amdgcn_target "amdgcn-amd-amdhsa--gfx950"')
    a.raw('.text')
    kernel_a(a)
    kernel_b(a)
    a.raw('.section .rodata,"a"')
    kd(a, 'mpnn_bin_kernel', 128, 100)
    kd(a, 'mpnn_main_kernel', 128, 100)
    out = sys.argv[1] if len(sys.argv) > 1 else 'gather_scatter__mpnn_edge_mlp__graph.s'
    open(out, 'w').write('\n'.join(a.l) + '\n')

main()
```

```python
import sys, struct, os
DEBUG = int(os.environ.get('DEBUG', '0'))
PRIO = int(os.environ.get('PRIO', '1'))
XMAP = int(os.environ.get('XMAP', '1'))
PREF = int(os.environ.get('PREF', '0'))
CPF = int(os.environ.get('CPF', '0'))
TLBW = int(os.environ.get('TLBW', '0'))
ST_O = os.environ.get('ST_O', 'sc0 sc1')
LATESRC = int(os.environ.get('LATESRC', '1'))
TOUCH = int(os.environ.get('TOUCH', '4'))
PT = [int(x) for x in os.environ.get('PT', '2,6,7').split(',')]
GFIRST = int(os.environ.get('GFIRST', '1'))
EG0 = int(os.environ.get('EG0', '4'))
LD_A = os.environ.get('LD_A', 'nt')
LD_X = os.environ.get('LD_X', '')
LD_R = os.environ.get('LD_R', '')
LD_XB = os.environ.get('LD_XB', '')
ST_P = os.environ.get('ST_P', 'sc0 sc1')
FORCE_PLAIN = int(os.environ.get('FORCE_PLAIN', '0'))

N = 25000; E = 800000
NB = 98
NBK = 256
CH = 3200
NCH = 250
WS_REC = 0
WS_TAB = 0x700000
WS_PF  = 0x780000
WS_PT  = 0x800000
WS_WF  = 0x7C0000
REC_BYTES = NCH*CH*8
TAB_BYTES = NCH*NBK*4
PF_BYTES  = 1000*4
PT_BYTES  = (N+1)*128
WF_BYTES  = 3*8192 + 512
WF_W3 = 3*8192
LOG2E = 1.4426950408889634
LN2 = 0.6931471805599453
LIM_P = 3.0; LIM_Q = 3.0; LIM_E_BF16 = 0x4040; LIM_W = 3.0
def f32(x): return struct.unpack('<I', struct.pack('<f', x))[0]

class A:
    def __init__(s): s.l = []
    def __call__(s, t): s.l.append('    ' + t)
    def lab(s, t): s.l.append(t + ':')
    def raw(s, t): s.l.append(t)

def srd(a, d, base, off, nbytes):
    if off:
        a(f's_add_u32 s{d}, s{base}, {hex(off)}')
        a(f's_addc_u32 s{d+1}, s{base+1}, 0')
    else:
        a(f's_mov_b32 s{d}, s{base}')
        a(f's_mov_b32 s{d+1}, s{base+1}')
    a(f's_mov_b32 s{d+2}, {hex(nbytes)}')
    a(f's_mov_b32 s{d+3}, 0x00020000')

PROF_OFF = 0x4000000
def stamp(a, i, vr=65, sr=92):
    if not DEBUG: return
    a(f's_memrealtime s[{sr}:{sr+1}]')
    a('s_waitcnt lgkmcnt(0)')
    a(f'v_writelane_b32 v{vr}, s{sr}, {i}')
def stampc(a, i, vr=65, sr=92):
    if not DEBUG: return
    a(f's_memtime s[{sr}:{sr+1}]')
    a('s_waitcnt lgkmcnt(0)')
    a(f'v_writelane_b32 v{vr}, s{sr}, {i}')
def stamp_out(a, kern, wsreg, vr=65, sr=92, tmp=6):
    if not DEBUG: return
    a('s_waitcnt vmcnt(0)')
    stamp(a, 15, vr, sr)
    a('s_mov_b64 exec, -1')
    srd(a, 96, wsreg, PROF_OFF + kern*0x400000, 0x400000)
    a(f's_lshl_b32 s{sr}, s2, 4')
    a(f's_add_u32 s{sr}, s{sr}, s3')
    a(f's_lshl_b32 s{sr}, s{sr}, 8')
    a(f'v_lshlrev_b32 v{tmp}, 2, v1')
    a(f'buffer_store_dword v{vr}, v{tmp}, s[96:99], s{sr} offen')

def wave_scan(a, v):
    for sh in (1, 2, 4, 8):
        a('s_nop 1')
        a(f'v_add_u32_dpp v{v}, v{v}, v{v} row_shr:{sh} row_mask:0xf bank_mask:0xf bound_ctrl:0')
    a('s_nop 1')
    a(f'v_add_u32_dpp v{v}, v{v}, v{v} row_bcast:15 row_mask:0xa bank_mask:0xf')
    a('s_nop 1')
    a(f'v_add_u32_dpp v{v}, v{v}, v{v} row_bcast:31 row_mask:0xc bank_mask:0xf')

def pr(r): return f'v[{r}:{r+1}]'
def q4(r): return f'v[{r}:{r+3}]'

A_GEMM0 = NCH
A_PREP0 = NCH + 250
A_GRID = A_PREP0 + 4
A_BLOCK = 448
A_XT = 0
A_W1 = 4*4096
A_LDS = 2112 + CH*8
A_STAGE = 2048 + 64
A_EFLAG = 2048
ST_A = os.environ.get('ST_A', 'sc0 sc1')

def kernel_a(a):
    a.raw('.globl mpnn_bin_kernel')
    a.raw('.p2align 8')
    a.raw('.type mpnn_bin_kernel,@function')
    a.lab('mpnn_bin_kernel')
    if DEBUG:
        a('s_memrealtime s[94:95]')
        a('s_getreg_b32 s62, hwreg(HW_REG_HW_ID)')
        a('s_getreg_b32 s63, hwreg(HW_REG_XCC_ID)')
    a('s_load_dwordx16 s[4:19], s[0:1], 0')
    a('s_load_dwordx2 s[20:21], s[0:1], 64')
    if CPF:
        a('s_getpc_b64 s[60:61]')
        a.lab('A_pc')
        a('v_lshlrev_b32 v100, 4, v0')
        a('v_add_u32 v101, 7168, v100')
        a('v_min_u32 v101, code_end-A_pc-16, v101')
        a('v_min_u32 v100, code_end-A_pc-16, v100')
        a('global_load_dwordx4 v[104:107], v100, s[60:61]')
        a('global_load_dwordx4 v[108:111], v101, s[60:61]')
    a(f's_cmp_ge_u32 s2, {A_GRID}')
    a('s_cbranch_scc1 A_done')
    a('v_lshrrev_b32 v1, 6, v0')
    a('v_lshlrev_b32 v3, 4, v0')
    a('v_readfirstlane_b32 s3, v1')
    a('v_and_b32 v1, 63, v0')
    a(f's_cmp_ge_u32 s2, {A_PREP0}')
    a('s_cbranch_scc1 A_prep')
    if GFIRST:
        a(f's_add_u32 s22, s2, {NCH}')
        a(f's_sub_u32 s23, s2, {NCH}')
        a(f's_cmp_lt_u32 s2, {NCH}')
        a('s_cselect_b32 s2, s22, s23')
    a(f's_cmp_ge_u32 s2, {A_GEMM0}')
    a('s_cbranch_scc1 A_gemm')
    a('v_cmp_gt_u32 vcc, 400, v0')
    a('s_and_b64 exec, exec, vcc')
    a('v_lshlrev_b32 v2, 3, v0')
    a(f's_mul_i32 s44, s2, {CH*4}')
    a(f's_mul_i32 s45, s2, {CH*2}')
    a(f's_add_u32 s50, s44, {CH*2}')
    a(f's_add_u32 s51, s45, {CH}')
    a('s_waitcnt lgkmcnt(0)')
    srd(a, 24, 10, 0, E*4)
    a(f'buffer_load_dwordx4 v[8:11], v3, s[24:27], s44 offen {LD_A}')
    a(f'buffer_load_dwordx4 v[12:15], v3, s[24:27], s50 offen {LD_A}')
    srd(a, 28, 8, 0, E*4)
    srd(a, 32, 6, 0, E*2)
    def srcloads():
        a(f'buffer_load_dwordx4 v[16:19], v3, s[28:31], s44 offen {LD_A}')
        a(f'buffer_load_dwordx4 v[20:23], v3, s[28:31], s50 offen {LD_A}')
        a(f'buffer_load_dwordx2 v[24:25], v2, s[32:35], s45 offen {LD_A}')
        a(f'buffer_load_dwordx2 v[26:27], v2, s[32:35], s51 offen {LD_A}')
    if not LATESRC: srcloads()
    stamp(a, 0, 70)
    if DEBUG:
        a('v_writelane_b32 v70, s94, 8')
        a('v_writelane_b32 v70, s62, 9')
        a('v_writelane_b32 v70, s63, 10')
    a('v_lshlrev_b32 v5, 2, v0')
    a('v_mov_b32 v4, 0')
    a('v_mov_b32 v6, 2048')
    a('v_cmp_gt_u32 vcc, 256, v0')
    a('s_nop 1')
    a('v_cndmask_b32 v5, v6, v5, vcc')
    a('ds_write_b32 v5, v4')
    if TLBW:
        srd(a, 36, 20, 0, 0xC00000)
        a('v_lshlrev_b32 v7, 20, v1')
        a('buffer_load_dword v71, v7, s[36:39], 0 offen')
    srd(a, 36, 20, WS_REC, REC_BYTES)
    srd(a, 40, 20, WS_TAB, TAB_BYTES)
    a('s_mov_b32 s46, 42800')
    a('s_mov_b32 s47, -196')
    a('s_mov_b32 s48, 0xffff0000')
    a('s_mov_b32 s52, 0x7fff7fff')
    a('v_mov_b32 v4, 1')
    a('s_waitcnt lgkmcnt(0)')
    a('s_barrier')
    for hf in range(2):
        if LATESRC:
            a(f's_waitcnt vmcnt({1 if hf == 0 else 4})')
            if hf == 0: srcloads()
        else:
            a(f's_waitcnt vmcnt({5-hf+TLBW})')
        if hf == 0: stamp(a, 1, 70)
        for j in range(4*hf, 4*hf+4):
            a(f'v_mul_u32_u24 v{28+j}, s46, v{8+j}')
            a(f'v_lshrrev_b32 v{28+j}, 22, v{28+j}')
            a(f'v_lshlrev_b32 v{28+j}, 2, v{28+j}')
            a(f'ds_add_rtn_u32 v{56+j}, v{28+j}, v4')
    for j in range(8):
        a(f'v_lshlrev_b32 v{8+j}, 3, v{8+j}')
        a(f'v_mad_i32_i24 v{41+2*j}, v{28+j}, s47, v{8+j}')
    a('s_mov_b64 s[22:23], exec')
    a('s_waitcnt lgkmcnt(0)')
    a('s_barrier')
    stamp(a, 2, 70)
    a('s_mov_b64 exec, -1')
    a('v_lshlrev_b32 v5, 4, v1')
    a('ds_read_b128 v[8:11], v5')
    a('s_waitcnt lgkmcnt(0)')
    a('v_add_u32 v13, v8, v9')
    a('v_add_u32 v14, v13, v10')
    a('v_add_u32 v15, v14, v11')
    a('v_mov_b32 v72, v15')
    wave_scan(a, 72)
    a('v_sub_u32 v12, v72, v15')
    a('v_add_u32 v15, v12, v14')
    a('v_add_u32 v14, v12, v13')
    a('v_add_u32 v13, v12, v8')
    for k in range(4):
        a(f'v_lshlrev_b32 v{72+k}, 3, v{12+k}')
    a('ds_write_b128 v5, v[72:75] offset:1024')
    for k in range(4):
        a(f'v_lshl_or_b32 v{64+k}, v{8+k}, 16, v{12+k}')
    a('s_mov_b64 exec, s[22:23]')
    a('s_waitcnt lgkmcnt(0)')
    for j in range(8):
        a(f'ds_read_b32 v{8+j}, v{28+j} offset:1024')
    a('s_waitcnt vmcnt(0)')
    for j in range(8):
        if j % 2 == 0:
            a(f'v_lshlrev_b32 v{40+2*j}, 16, v{24+j//2}')
        else:
            a(f'v_and_b32 v{40+2*j}, s48, v{24+j//2}')
        a(f'v_lshl_or_b32 v{41+2*j}, v{41+2*j}, 16, v{16+j}')
    for j in range(4):
        a(f'v_and_b32 v{24+j}, s52, v{24+j}')
    a('v_pk_max_u16 v24, v24, v25')
    a('v_pk_max_u16 v26, v26, v27')
    a('v_pk_max_u16 v24, v24, v26')
    a('v_lshrrev_b32 v25, 16, v24')
    a('v_and_b32 v24, 0xffff, v24')
    a('v_max_u32 v24, v24, v25')
    a(f'v_cmp_lt_u32 vcc, {hex(LIM_E_BF16)}, v24')
    a('s_and_saveexec_b64 s[54:55], vcc')
    a('s_cbranch_execz A_eok')
    a('v_mov_b32 v25, 0x80000000')
    a('ds_write_b32 v6, v25')
    a.lab('A_eok')
    a('s_mov_b64 exec, s[54:55]')
    a('s_waitcnt lgkmcnt(0)')
    for j in range(8):
        a(f'v_lshl_add_u32 v{8+j}, v{56+j}, 3, v{8+j}')
    stamp(a, 3, 70)
    for j in range(8):
        a(f'ds_write_b64 v{8+j}, {pr(40+2*j)} offset:{A_STAGE}')
    a('s_waitcnt lgkmcnt(0)')
    a('s_barrier')
    stamp(a, 4, 70)
    a('s_cmp_lg_u32 s3, 6')
    a('s_cbranch_scc1 A_notab')
    a('s_mov_b64 exec, -1')
    a('v_mov_b32 v6, 2048')
    a('ds_read_b32 v7, v6')
    a('s_lshl_b32 s49, s2, 10')
    a('s_waitcnt lgkmcnt(0)')
    for k in range(4):
        a(f'v_or_b32 v{64+k}, v{64+k}, v7')
    a(f'buffer_store_dwordx4 v[64:67], v5, s[40:43], s49 offen {ST_A}')
    a('s_mov_b64 exec, s[22:23]')
    a.lab('A_notab')
    for j in range(4):
        a(f'ds_read_b128 {q4(8+4*j)}, v3 offset:{A_STAGE+6400*j}')
    a(f's_mul_i32 s49, s2, {CH*8}')
    for j in range(4):
        a(f's_waitcnt lgkmcnt({3-j})')
        a(f'buffer_store_dwordx4 {q4(8+4*j)}, v3, s[36:39], s49 offen {ST_A}')
        if j < 3:
            a(f's_add_u32 s49, s49, 6400')
    stamp(a, 5, 70)
    stamp_out(a, 0, 20, 70)
    a('s_endpgm')

    a.lab('A_gemm')
    a(f's_sub_u32 s22, s2, {A_GEMM0}')
    a('s_mul_i32 s48, s22, 12800')
    a('s_add_u32 s49, s48, 12800')
    a('s_lshl_b32 s22, s22, 2')
    a('s_add_u32 s22, s22, s3')
    a('v_and_b32 v2, 31, v1')
    a('v_lshrrev_b32 v3, 5, v1')
    a('v_lshlrev_b32 v4, 2, v2')
    a('v_lshl_add_u32 v7, v3, 9, v4')
    a('v_lshl_add_u32 v4, v3, 10, v4')
    a(f'v_add_u32 v4, {A_W1}, v4')
    a('v_lshlrev_b32 v5, 4, v0')
    a('s_lshl_b32 s23, s3, 12')
    a('s_add_u32 s23, s23, s48')
    a('v_lshlrev_b32 v6, 4, v1')
    a('s_lshl_b32 s42, s3, 12')
    a('v_add_u32 v7, s42, v7')
    a('v_lshrrev_b32 v8, 3, v1')
    a('v_and_b32 v9, 7, v1')
    a('v_xor_b32 v10, v9, v8')
    a('v_lshlrev_b32 v10, 4, v10')
    a('v_lshl_add_u32 v10, v8, 7, v10')
    a('v_add_u32 v10, s42, v10')
    a('v_xor_b32 v9, v9, v3')
    a('v_lshlrev_b32 v8, 7, v2')
    a('v_add_u32 v8, s42, v8')
    for ks in range(4):
        a(f'v_xor_b32 v{11+ks}, {2*ks}, v9')
        a(f'v_lshl_add_u32 v{11+ks}, v{11+ks}, 4, v8')
    a('s_waitcnt lgkmcnt(0)')
    srd(a, 24, 4, 0, N*128)
    a('s_mov_b32 s26, s49')
    srd(a, 28, 12, 0, 64*128)
    a('s_movk_i32 s43, 7168')
    a('buffer_load_dwordx4 v[16:19], v5, s[28:31], 0 offen')
    a('buffer_load_dwordx4 v[20:23], v5, s[28:31], s43 offen')
    for j in range(4):
        a(f'buffer_load_dwordx4 {q4(48+4*j)}, v6, s[24:27], s23 offen offset:{1024*j} {LD_X}')
    stamp(a, 0, 15)
    if DEBUG:
        a('v_writelane_b32 v15, s94, 8')
        a('v_writelane_b32 v15, s62, 9')
        a('v_writelane_b32 v15, s63, 10')
    srd(a, 32, 20, WS_PT, N*128)
    a('s_mov_b32 s34, s49')
    srd(a, 44, 20, WS_PF, PF_BYTES)
    a('s_mov_b32 s36, 0x05040100')
    a('s_mov_b32 s37, 0x07060302')
    a(f's_mov_b32 s38, {hex(f32(-LOG2E))}')
    a('s_mov_b32 s39, 0x7fffffff')
    a('s_mov_b32 s40, 0x7fff0000')
    a(f's_mov_b32 s41, {hex(f32(LIM_P))}')
    a('s_waitcnt vmcnt(4)')
    a(f'ds_write_b128 v5, v[16:19] offset:{A_W1}')
    a('s_cmp_lg_u32 s3, 0')
    a('s_cbranch_scc1 A_w1done')
    a(f'ds_write_b128 v5, v[20:23] offset:{A_W1+7168}')
    a.lab('A_w1done')
    a('s_waitcnt lgkmcnt(0)')
    a('s_barrier')
    a('s_cmp_ge_u32 s3, 4')
    a('s_cbranch_scc1 A_done')
    for ks in range(4):
        if ks: a('v_add_u32 v4, 2048, v4')
        for jj in range(4):
            a(f'ds_read2_b32 {pr(16+8*ks+2*jj)}, v4 offset0:{64*jj} offset1:{64*jj+32}')
    a('s_waitcnt vmcnt(0)')
    for j in range(4):
        a(f'ds_write_b128 v10, {q4(48+4*j)} offset:{1024*j}')
    a('s_waitcnt lgkmcnt(0)')
    for ks in range(4):
        a(f'ds_read_b128 {q4(48+4*ks)}, v{11+ks}')
    stamp(a, 1, 15)
    for ks in range(4):
        for jj in range(4):
            r0 = 16+8*ks+2*jj
            a(f'v_perm_b32 v{64+4*ks+jj}, v{r0+1}, v{r0}, s36')
            a(f'v_perm_b32 v{80+4*ks+jj}, v{r0+1}, v{r0}, s37')
    a('s_waitcnt lgkmcnt(0)')
    for ks in range(4):
        c0 = '0' if ks == 0 else 'v[96:111]'
        c1 = '0' if ks == 0 else 'v[112:127]'
        a(f'v_mfma_f32_32x32x16_bf16 v[96:111], {q4(48+4*ks)}, {q4(64+4*ks)}, {c0}')
        a(f'v_mfma_f32_32x32x16_bf16 v[112:127], {q4(48+4*ks)}, {q4(80+4*ks)}, {c1}')
    a('s_nop 15')
    stamp(a, 2, 15)
    for r in range(16):
        a(f'v_mul_f32 v{96+r}, s38, v{96+r}')
    for r in range(16):
        a(f'v_mul_f32 v{112+r}, s38, v{112+r}')
    for r in range(0, 16, 2):
        a(f'v_cvt_pk_bf16_f32 v{16+r}, v{96+r}, v{97+r}')
    for r in range(0, 16, 2):
        a(f'v_lshrrev_b32 v{17+r}, 16, v{16+r}')
        a(f'v_and_b32 v{16+r}, 0xffff, v{16+r}')
    for r in range(16):
        a(f'v_and_b32 v{32+r}, s39, v{112+r}')
    for r in range(16):
        a(f'v_add_u32 v{32+r}, 0x8000, v{32+r}')
    for r in range(16):
        a(f'v_sub_u32 v{32+r}, v{32+r}, v{16+r} clamp')
    for r in range(16):
        a(f'v_and_or_b32 v{32+r}, v{32+r}, s40, v{16+r}')
    for r in range(16):
        a(f'v_bfi_b32 v{32+r}, s39, v{32+r}, v{112+r}')
        a(f'ds_write_b32 v7, v{32+r} offset:{((r&3)+8*(r>>2))*128}')
    a('v_add_u32 v8, s42, v6')
    a('s_waitcnt lgkmcnt(0)')
    for j in range(4):
        a(f'ds_read_b128 {q4(48+4*j)}, v8 offset:{1024*j}')
    a('v_max_f32 v64, |v96|, |v97|')
    for r in range(2, 32, 2):
        a(f'v_max3_f32 v64, v64, |v{96+r}|, |v{97+r}|')
    a('v_cmp_lt_f32 vcc, s41, v64')
    for j in range(4):
        a(f's_waitcnt lgkmcnt({3-j})')
        a(f'buffer_store_dwordx4 {q4(48+4*j)}, v6, s[32:35], s23 offen offset:{1024*j} {ST_P}')
    a('s_lshl_b32 s43, s22, 2')
    a('v_mov_b32 v66, 0')
    a('s_cmp_lg_u64 vcc, 0')
    a('s_cselect_b32 s42, 1, 0')
    a('v_mov_b32 v65, s42')
    a('s_mov_b64 exec, 1')
    a(f'buffer_store_dword v65, v66, s[44:47], s43 offen {ST_A}')
    stamp(a, 5, 15)
    stamp_out(a, 0, 20, 15)
    a('s_endpgm')

    a.lab('A_prep')
    a(f's_sub_u32 s50, s2, {A_PREP0}')
    a('s_mul_i32 s50, s50, 7')
    a('s_add_u32 s50, s50, s3')
    a('s_cmp_gt_u32 s50, 24')
    a('s_cbranch_scc1 A_done')
    a('s_lshr_b32 s22, s50, 3')
    a('s_bfe_u32 s23, s50, 0x10002')
    a('s_and_b32 s24, s50, 3')
    a('v_and_b32 v2, 31, v1')
    a('v_lshrrev_b32 v3, 5, v1')
    a('v_bfe_u32 v4, v2, 2, 1')
    a('v_and_b32 v5, 3, v2')
    a('v_lshrrev_b32 v6, 3, v2')
    a('v_lshl_add_u32 v5, v6, 2, v5')
    a('s_waitcnt lgkmcnt(0)')
    srd(a, 32, 20, WS_WF, WF_BYTES)
    a('s_cmp_eq_u32 s50, 24')
    a('s_cbranch_scc1 A_prep_w3')
    a('s_cmp_lg_u32 s22, 0')
    a('s_cbranch_scc1 A_prep_u')
    srd(a, 28, 12, 0, 129*128)
    a('v_lshrrev_b32 v6, 3, v5')
    a('v_lshl_add_u32 v6, v4, 2, v6')
    a('s_lshl_b32 s25, s23, 1')
    a('v_add_u32 v6, s25, v6')
    a('v_and_b32 v7, 7, v5')
    a('v_lshlrev_b32 v8, 1, v7')
    a('v_add_u32 v9, 1, v8')
    a('v_subrev_u32 v8, 8, v8')
    a('v_cmp_gt_u32 vcc, 4, v7')
    a('s_nop 1')
    a('v_cndmask_b32 v8, v8, v9, vcc')
    a('v_lshl_add_u32 v8, v6, 3, v8')
    a('v_lshlrev_b32 v8, 1, v8')
    a('v_lshl_add_u32 v8, v3, 10, v8')
    a('s_lshl_b32 s26, s24, 11')
    a('s_add_u32 s26, s26, 8192')
    for j in range(8):
        a(f'buffer_load_ushort v{32+j}, v8, s[28:31], s26 offen offset:{128*j}')
    a('s_branch A_prep_st')
    a.lab('A_prep_u')
    srd(a, 28, 14, 0, 128*128)
    a('v_lshl_add_u32 v8, v4, 4, v5')
    a('s_lshl_b32 s25, s23, 5')
    a('v_add_u32 v8, s25, v8')
    a('v_lshlrev_b32 v8, 1, v8')
    a('s_cmp_lg_u32 s22, 1')
    a('s_cbranch_scc1 A_prep_agg')
    a('v_lshl_add_u32 v8, v3, 10, v8')
    a('s_lshl_b32 s26, s24, 11')
    for j in range(8):
        a(f'buffer_load_ushort v{32+j}, v8, s[28:31], s26 offen offset:{128*j}')
    a('s_branch A_prep_st')
    a.lab('A_prep_w3')
    srd(a, 44, 20, WS_PT + N*128, 128)
    a('v_mov_b32 v20, 0x71497149')
    a('v_mov_b32 v21, v20')
    a('v_mov_b32 v22, v20')
    a('v_mov_b32 v23, v20')
    a('v_lshlrev_b32 v24, 4, v1')
    a('buffer_store_dwordx4 v[20:23], v24, s[44:47], 0 offen')
    srd(a, 36, 12, 0, 129*128)
    a('v_and_b32 v10, 7, v1')
    a('v_lshlrev_b32 v11, 4, v10')
    a('s_movk_i32 s27, 0x4000')
    a('buffer_load_dwordx4 v[44:47], v11, s[36:39], s27 offen')
    a(f's_mov_b32 s40, {hex(f32(-LOG2E))}')
    a('s_waitcnt vmcnt(0)')
    for i in range(4):
        a(f'v_and_b32 v{48+i}, 0xffff0000, v{44+i}')
        a(f'v_lshlrev_b32 v{52+i}, 16, v{44+i}')
    for i in range(8):
        a(f'v_mul_f32 v{48+i}, s40, v{48+i}')
    a('v_max3_f32 v44, |v48|, |v49|, |v50|')
    a('v_max3_f32 v44, v44, |v51|, |v52|')
    a('v_max3_f32 v44, v44, |v53|, |v54|')
    a('v_max_f32 v44, v44, |v55|')
    a(f'v_cmp_lt_f32 vcc, {hex(f32(LIM_W))}, v44')
    a('v_lshlrev_b32 v11, 5, v10')
    a('s_cmp_lg_u64 vcc, 0')
    a('s_cselect_b32 s41, 1, 0')
    a('v_mov_b32 v45, s41')
    a('v_mov_b32 v46, 0')
    a(f's_movk_i32 s27, {WF_W3}')
    a('buffer_store_dwordx4 v[48:51], v11, s[32:35], s27 offen')
    a('buffer_store_dwordx4 v[52:55], v11, s[32:35], s27 offen offset:16')
    a('buffer_store_dword v45, v46, s[32:35], s27 offen offset:256')
    a('s_endpgm')
    a.lab('A_prep_agg')
    a('v_lshl_add_u32 v8, v3, 11, v8')
    a('s_and_b32 s26, s24, 1')
    a('s_lshl_b32 s26, s26, 5')
    a('s_lshr_b32 s27, s24, 1')
    a('s_lshl_b32 s27, s27, 1')
    a('s_add_u32 s26, s26, s27')
    a('s_add_u32 s26, s26, 64')
    a('s_lshl_b32 s26, s26, 7')
    for j in range(8):
        i_ = 2*(j >> 1)
        ph = 2*i_+1 if i_ < 4 else 2*i_-8
        a(f'buffer_load_ushort v{32+j}, v8, s[28:31], s26 offen offset:{(8*(j & 1)+ph)*128}')
    a.lab('A_prep_st')
    a('s_lshl_b32 s25, s50, 10')
    a('v_lshlrev_b32 v9, 4, v1')
    a('s_waitcnt vmcnt(0)')
    for j in range(4):
        a(f'v_lshl_or_b32 v{16+j}, v{33+2*j}, 16, v{32+2*j}')
    a('buffer_store_dwordx4 v[16:19], v9, s[32:35], s25 offen')
    a.lab('A_done')
    a('s_endpgm')

RS = 288
L_CNT = 0
L_MAX = 1024
L_FLAG = 1028
L_F8C = 1032
L_TOT = 1036
L_WORK = 1040
L_OVF = 1044
L_L8 = 1056
L_L2 = L_L8 + 1600
L_REC = L_L2 + 832
ES = 528
DUMP_OFF = NB*ES
L_Q = L_REC + DUMP_OFF + 64
L_AGG = L_Q + (NB+1)*RS
L_X = L_AGG + (NB+1)*RS*2
L_WU = L_X + 13*1024
L_W3 = L_WU + 8192
B_LDS = L_W3 + 256
DUMMY1 = N | (NB*8) << 16
for x in (L_L8, L_REC, L_Q, L_AGG, L_X, L_WU): assert x % 16 == 0
assert B_LDS <= 163840 and L_Q + 128 < 65536

def kernel_b(a):
    a.raw('.globl mpnn_main_kernel')
    a.raw('.p2align 8')
    a.raw('.type mpnn_main_kernel,@function')
    a.lab('mpnn_main_kernel')
    a('s_load_dwordx2 s[80:81], s[0:1], 64')
    a('s_load_dwordx16 s[64:79], s[0:1], 0')
    a(f's_cmp_ge_u32 s2, {NBK}')
    a('s_cbranch_scc1 B_done')
    a('v_lshrrev_b32 v1, 6, v0')
    a('v_lshrrev_b32 v4, 3, v0')
    a('v_readfirstlane_b32 s3, v1')
    a('v_lshlrev_b32 v12, 10, v4')
    a('s_and_b32 s85, s2, 7')
    a('s_lshl_b32 s85, s85, 5')
    a('s_lshr_b32 s86, s2, 3')
    a('s_add_u32 s85, s85, s86')
    a('s_lshl_b32 s32, s85, 2')
    a('s_add_u32 s33, s32, 0x20000')
    a('v_and_b32 v1, 63, v0')
    a('v_and_b32 v3, 7, v0')
    a('v_lshlrev_b32 v2, 4, v3')
    a('v_lshlrev_b32 v11, 4, v1')
    a(f's_mul_i32 s37, s85, {NB}')
    a('s_lshl_b32 s39, s37, 7')
    a('s_lshl_b32 s40, s3, 10')
    a('s_add_u32 s39, s39, s40')
    a('s_and_b32 s34, s3, 1')
    a('s_lshl_b32 s41, s34, 12')
    a('s_waitcnt lgkmcnt(0)')
    ws = 80
    srd(a, 4, ws, WS_TAB, TAB_BYTES)
    a('buffer_load_dword v6, v12, s[4:7], s32 offen')
    a('buffer_load_dword v7, v12, s[4:7], s33 offen')
    stamp(a, 0)
    srd(a, 8, ws, WS_REC, REC_BYTES)
    a(f's_add_u32 s28, s80, {hex(WS_WF+WF_W3+256)}')
    a('s_addc_u32 s29, s81, 0')
    a('s_load_dword s90, s[28:29], 0')
    srd(a, 12, ws, WS_PT, PT_BYTES)
    srd(a, 24, 76, 0, N*128)
    a('s_mov_b64 s[88:89], s[80:81]')
    a('s_bfe_u32 s35, s3, 0x20001')
    a('s_lshl_b32 s38, s35, 5')
    a('v_and_b32 v8, 31, v1')
    a('v_add_u32 v8, s38, v8')
    a('v_lshrrev_b32 v9, 5, v1')
    a('v_lshlrev_b32 v3, 3, v3')
    a(f'v_add_u32 v3, {L_AGG}, v3')
    a('s_movk_i32 s42, 128')
    a(f's_movk_i32 s43, {ES//8}')
    a('s_mov_b32 s44, 1.0')
    a('s_mov_b32 s45, 1.0')
    a('s_mov_b32 s46, 0x3f80')
    a(f's_mov_b32 s47, {hex(f32(-LOG2E))}')
    a(f's_mov_b32 s48, {hex(f32(-LN2))}')
    a(f's_mov_b32 s49, {hex(f32(-LN2))}')
    a('s_mov_b32 s50, 0')
    a('s_mov_b32 s94, s47')
    a('s_mov_b32 s95, s47')
    a('s_movk_i32 s84, 72')
    a('s_mov_b32 s86, 0')
    a('s_mov_b32 s87, -1')
    srd(a, 16, 64, 0, N*128)
    srd(a, 20, ws, WS_WF, WF_BYTES)
    srd(a, 28, ws, WS_PF, PF_BYTES)
    a('s_cmp_lg_u32 s3, 15')
    a('s_cbranch_scc1 B_batch')
    a(f's_mov_b32 m0, {L_W3}')
    a(f's_movk_i32 s51, {WF_W3}')
    a('s_mov_b64 exec, 0xffff')
    a('buffer_load_dwordx4 v11, s[20:23], s51 offen lds')
    a('s_mov_b64 exec, -1')
    a('s_waitcnt vmcnt(0)')
    a.lab('B_batch')
    a('v_lshlrev_b32 v12, 4, v0')
    a('s_cmp_ge_u32 s3, 4')
    a('s_cbranch_scc1 B_noini')
    a(f'v_mov_b32 v16, {hex(DUMP_OFF | DUMP_OFF << 16)}')
    a(f'v_cmp_gt_u32 vcc, {L_L8//16}, v0')
    a('v_mov_b32 v28, 0')
    a(f'v_mov_b32 v29, {hex(DUMMY1)}')
    a('v_cndmask_b32 v16, v16, v28, vcc')
    a('v_mov_b32 v30, 0')
    a(f'v_mov_b32 v31, {hex(DUMMY1)}')
    a('v_mov_b32 v17, v16')
    a('v_mov_b32 v18, v16')
    a('v_mov_b32 v19, v16')
    a(f'v_cmp_gt_u32 vcc, {L_REC//16}, v0')
    a('s_and_saveexec_b64 s[68:69], vcc')
    a('ds_write_b128 v12, v[16:19]')
    a('s_mov_b64 exec, 15')
    a(f'ds_write_b128 v11, v[28:31] offset:{L_REC+DUMP_OFF}')
    a('s_mov_b64 exec, s[68:69]')
    a.lab('B_noini')
    a('v_and_b32 v14, 7, v0')
    a('v_lshlrev_b32 v14, 1, v14')
    a('v_add_u32 v14, s50, v14')
    a(f's_movk_i32 s51, {CH}')
    a('v_mul_u32_u24 v15, s51, v4')
    a('v_add_u32 v15, v15, v14')
    a('v_mov_b32 v25, 0x7fffff00')
    a('s_waitcnt lgkmcnt(0)')
    a('s_barrier')
    stamp(a, 9)
    a('s_waitcnt vmcnt(0)')
    stamp(a, 1)
    for rd_ in range(2):
        T_ = 6+rd_
        a(f'v_bfe_u32 v{20+rd_}, v{T_}, 16, 13')
        a(f'v_and_b32 v{22+rd_}, 0xffff, v{T_}')
        a(f'v_add_u32 v{22+rd_}, v{22+rd_}, v15')
        if rd_ == 1:
            a(f'v_add_u32 v{22+rd_}, {128*CH}, v{22+rd_}')
        a(f'v_lshlrev_b32 v{22+rd_}, 3, v{22+rd_}')
        a(f'v_sub_u32 v{16+rd_}, v{20+rd_}, v14')
    for s in range(8):
        a(f'v_cmp_lt_i32 s[{52+2*s}:{53+2*s}], {((s >> 1) & 1)*16+(s & 1)}, v{16+(s >> 2)}')
    a('s_cmp_eq_u32 s87, -1')
    a('s_cbranch_scc1 B_allsl')
    a('s_lshl_b32 s51, s3, 3')
    a('s_sub_u32 s51, s87, s51')
    for s in range(8):
        a(f's_cmp_eq_u32 s51, {s}')
        a(f's_cselect_b64 s[{52+2*s}:{53+2*s}], s[{52+2*s}:{53+2*s}], 0')
    a.lab('B_allsl')
    order = [(0, 0), (1, 0), (0, 1), (1, 1)]
    for rd_, ld in order:
        s = rd_*4+ld*2
        r = 96+(rd_*2+ld)*4
        a(f's_or_b64 vcc, s[{52+2*s}:{53+2*s}], s[{54+2*s}:{55+2*s}]')
        a(f'v_cndmask_b32 v{26+rd_*2+ld}, v25, v{22+rd_}, vcc')
        a(f'buffer_load_dwordx4 {q4(r)}, v{26+rd_*2+ld}, s[8:11], 0 offen offset:{128*ld} {LD_R}')
    a('v_max_i32 v16, v16, v17')
    a('v_or_b32 v17, v6, v7')
    a('v_cmp_lt_i32 s[70:71], 32, v16')
    a('v_cmp_gt_i32 s[72:73], 0, v17')
    a(f'v_mov_b32 v24, {L_MAX}')
    a('v_mov_b32 v16, 1')
    a('s_cmp_eq_u64 s[70:71], 0')
    a('s_cbranch_scc1 B_nomore')
    a('ds_write_b32 v24, v16')
    a.lab('B_nomore')
    lc = [0]
    def ranks(extra):
        a('v_mov_b32 v44, 8')
        for n, (rd_, ld) in enumerate(order):
            a(f's_waitcnt vmcnt({3-n+extra})')
            if n in (0, 3) and DEBUG:
                a('s_mov_b64 exec, -1')
                stamp(a, {0: 6, 3: 10}[n])
            for e in range(2):
                s = rd_*4+ld*2+e
                r = 96+(rd_*2+ld)*4+2*e
                a(f's_mov_b64 exec, s[{52+2*s}:{53+2*s}]')
                if ld:
                    lc[0] += 1
                    a(f's_cbranch_execz B_sk{lc[0]}')
                a(f'v_lshrrev_b32 v{112+s}, 16, v{r+1}')
                a(f'ds_add_rtn_u32 v{36+s}, v{112+s}, v44 offset:{L_CNT}')
                if ld: a.lab(f'B_sk{lc[0]}')
        a('s_mov_b64 exec, -1')
    a('s_cmp_lg_u32 s86, 0')
    a('s_cbranch_scc1 B_rk0')
    for r in range(20, 24): a(f'v_mov_b32 v{r}, 0')
    a(f'v_add_u32 v13, {L_AGG}, v12')
    for j in range(3):
        a(f'ds_write_b128 v13, v[20:23] offset:{16384*j}')
    a(f'v_cmp_gt_u32 vcc, {NB*RS*2//16-3072}, v0')
    a('s_and_saveexec_b64 s[68:69], vcc')
    a('ds_write_b128 v13, v[20:23] offset:49152')
    a('s_mov_b64 exec, s[68:69]')
    a('v_lshrrev_b32 v45, 3, v1')
    a('v_and_b32 v46, 7, v1')
    a('v_xor_b32 v47, v46, v45')
    a('v_lshlrev_b32 v47, 4, v47')
    a('v_lshl_add_u32 v47, v45, 7, v47')
    a(f's_add_u32 s51, s40, {L_X}')
    a('v_add_u32 v47, s51, v47')
    a('v_lshlrev_b32 v45, 1, v2')
    a(f'v_add_u32 v45, {L_W3}, v45')
    a('ds_read_b128 v[68:71], v45')
    a('ds_read_b128 v[72:75], v45 offset:16')
    a.lab('B_rk0')
    ranks(0)
    a('s_cmp_lg_u32 s86, 0')
    a('s_cbranch_scc1 B_rkdone')
    a('s_cmp_ge_u32 s3, 8')
    a('s_cbranch_scc1 B_rkdone')
    a(f'buffer_load_dwordx4 v[32:35], v11, s[16:19], s39 offen {LD_XB}')
    a('s_add_u32 s51, s39, 8192')
    a(f'buffer_load_dwordx4 v[52:55], v11, s[16:19], s51 offen {LD_XB}')
    a(f's_add_u32 m0, s40, {L_WU}')
    a('s_nop 0')
    a('buffer_load_dwordx4 v11, s[20:23], s40 offen lds')
    a('buffer_load_dwordx4 v[48:51], v11, s[28:31], s40 offen')
    a.lab('B_rkdone')
    a('s_cmp_eq_u64 s[72:73], 0')
    a('s_cbranch_scc1 B_noflag')
    a('ds_write_b32 v24, v16 offset:4')
    a.lab('B_noflag')
    a('s_movk_i32 s51, 504')
    a('s_waitcnt lgkmcnt(0)')
    stamp(a, 7)
    for s in (0, 1, 4, 5, 2, 3, 6, 7):
        r = 96+(s//2)*4+2*(s % 2)
        a(f's_mov_b64 exec, s[{52+2*s}:{53+2*s}]')
        sk = s in (2, 3, 6, 7)
        if sk:
            lc[0] += 1
            a(f's_cbranch_execz B_sk{lc[0]}')
        a(f'v_min_u32 v{36+s}, s51, v{36+s}')
        a(f'v_mad_u32_u24 v{36+s}, v{112+s}, s43, v{36+s}')
        a(f'ds_write_b64 v{36+s}, {pr(r)} offset:{L_REC}')
        if sk: a.lab(f'B_sk{lc[0]}')
    a('s_mov_b64 exec, -1')
    a('s_cmp_lg_u32 s86, 0')
    a('s_cbranch_scc1 B_nxw')
    a('s_cmp_ge_u32 s3, 8')
    a('s_cbranch_scc1 B_nxw')
    a('s_waitcnt vmcnt(0)')
    a('ds_write_b128 v47, v[32:35]')
    a('s_cmp_ge_u32 s3, 5')
    a('s_cbranch_scc1 B_nxw')
    a('ds_write_b128 v47, v[52:55] offset:8192')
    a('v_or3_b32 v48, v48, v49, v50')
    a('v_or_b32 v48, v48, v51')
    a('v_cmp_ne_u32 vcc, 0, v48')
    a('s_nop 1')
    a('s_cbranch_vccz B_nxw')
    a('ds_write_b32 v24, v16 offset:4')
    a.lab('B_nxw')
    a('v_lshrrev_b32 v13, 3, v1')
    a('v_lshlrev_b32 v13, 1, v13')
    a(f'v_mov_b32 v14, {L_WORK}')
    a('v_mov_b32 v15, 1')
    a('v_xor_b32 v46, v46, v9')
    a('v_lshlrev_b32 v45, 7, v8')
    a(f'v_add_u32 v45, {L_X}, v45')
    for ks in range(4):
        a(f'v_xor_b32 v47, {2*ks}, v46')
        a(f'v_lshl_add_u32 v{92+ks}, v47, 4, v45')
    a(f's_add_u32 s68, s41, {L_WU}')
    a('v_add_u32 v126, s68, v11')
    a(f's_movk_i32 s68, {RS}')
    a('v_mul_u32_u24 v124, s68, v8')
    a('v_lshl_add_u32 v124, v9, 6, v124')
    a('s_lshl_b32 s68, s34, 5')
    a('v_add_u32 v124, s68, v124')
    a(f'v_mov_b32 v125, {NB}')
    a('v_cmp_gt_u32 s[74:75], v125, v8')
    a('s_lshl_b32 s51, s3, 6')
    a('v_lshl_add_u32 v120, v13, 2, s51')
    a('v_mul_u32_u24 v123, s43, v120')
    a(f'v_mov_b32 v122, {hex(DUMMY1)}')
    a('s_waitcnt lgkmcnt(0)')
    a('s_barrier')
    stamp(a, 2)
    a('s_cmp_ge_u32 s3, 12')
    a('s_cbranch_scc1 B_ne0')
    a(f'ds_read_b32 v121, v120 offset:{L_CNT}')
    a(f'ds_read_b128 v[56:59], v123 offset:{L_REC}')
    a(f'ds_read_b128 v[60:63], v123 offset:{L_REC+16}')
    a.lab('B_ne0')
    ec = [0]
    def early(g=False):
        a('v_cmp_le_u32 vcc, 64, v121')
        a(f'ds_read_b128 v[112:115], v123 offset:{L_REC+32}')
        a(f'ds_read_b128 v[116:119], v123 offset:{L_REC+48}')
        a('v_cndmask_b32 v57, v122, v57, vcc')
        if not g: return
        ec[0] += 1
        a(f's_cmp_lt_u32 s3, {EG0}')
        a(f's_cbranch_scc1 B_neg{ec[0]}')
        egath()
        a.lab(f'B_neg{ec[0]}')
    def egath():
        for k in range(4):
            a(f'v_mad_u32_u16 v{120+(k&1)}, v{57+2*k}, s42, v2')
            a(f'buffer_load_dwordx4 {q4(32+4*k)}, v{120+(k&1)}, s[12:15], 0 offen')
    a('s_cmp_lg_u32 s86, 0')
    a('s_cbranch_scc1 B_now3')
    a('s_cmp_lt_u32 s3, 8')
    a('s_cbranch_scc1 B_now3')
    a('s_mov_b32 s86, 1')
    for ks in range(4):
        a(f'ds_read_b128 {q4(76+4*ks)}, v{92+ks}')
        a(f'ds_read_b128 {q4(96+4*ks)}, v126 offset:{1024*ks}')
    for ks in range(4):
        c = '0' if ks == 0 else 'v[16:31]'
        a(f's_waitcnt lgkmcnt({6-2*ks})')
        a(f'v_mfma_f32_32x32x16_bf16 v[16:31], {q4(96+4*ks)}, {q4(76+4*ks)}, {c}')
    a('s_cmp_ge_u32 s3, 12')
    a('s_cbranch_scc1 B_g13')
    early()
    a.lab('B_g13')
    a('s_nop 11')
    for r in range(0, 16, 2):
        a(f'v_pk_mul_f32 {pr(16+r)}, {pr(16+r)}, s[94:95]')
    a('s_mov_b64 exec, s[74:75]')
    for o in range(2):
        a(f'ds_write_b128 v124, {q4(16+8*o)} offset:{L_Q+16*o}')
        a(f'ds_write_b128 v124, {q4(20+8*o)} offset:{L_Q+128+16*o}')
    a('v_max_f32 v125, |v16|, |v17|')
    for r in range(2, 16, 2):
        a(f'v_max3_f32 v125, v125, |v{16+r}|, |v{17+r}|')
    a(f'v_cmp_lt_f32 vcc, {hex(f32(LIM_Q))}, v125')
    a('s_mov_b64 exec, -1')
    a(f'v_mov_b32 v125, {L_FLAG}')
    a('v_mov_b32 v126, 1')
    a('s_cbranch_vccz B_lsd')
    a('ds_write_b32 v125, v126')
    a('s_branch B_lsd')
    a.lab('B_now3')
    a('s_cmp_lt_u32 s3, 8')
    a('s_cbranch_scc1 B_l8')
    a('s_cmp_ge_u32 s3, 12')
    a('s_cbranch_scc1 B_lsd')
    a('s_waitcnt lgkmcnt(0)')
    early()
    a('s_branch B_lsd')
    a.lab('B_l8')
    a(f'ds_read_b128 v[16:19], v11 offset:{L_CNT}')
    a('s_mov_b32 s86, 1')
    a(f'v_mul_u32_u24 v20, {2*ES}, v1')
    a(f'v_add_u32 v21, {ES}, v20')
    a('s_lshl_b32 s51, s3, 6')
    a('v_add_u32 v28, s51, v20')
    a('v_add_u32 v29, s51, v21')
    a('s_add_u32 s51, s51, 64')
    a(f'v_mov_b32 v24, {L_F8C}')
    a('s_waitcnt lgkmcnt(0)')
    a('v_cmp_le_u32 s[68:69], s51, v16')
    a('v_cmp_le_u32 s[70:71], s51, v18')
    a('s_cmp_lg_u32 s3, 0')
    a('s_cbranch_scc1 B_l8c')
    a('s_mov_b32 s68, 0')
    a('s_mov_b32 s70, 0')
    a('s_and_b32 s69, s69, 0xffff0000')
    a('s_and_b32 s71, s71, 0xffff0000')
    a.lab('B_l8c')
    a('s_bcnt1_i32_b64 s72, s[68:69]')
    a('s_bcnt1_i32_b64 s73, s[70:71]')
    a('s_add_u32 s73, s73, s72')
    a('v_mov_b32 v25, s73')
    a('s_mov_b64 exec, 1')
    a('ds_add_rtn_u32 v26, v24, v25')
    a('s_mov_b64 exec, -1')
    a('v_mbcnt_lo_u32_b32 v22, s68, 0')
    a('v_mbcnt_hi_u32_b32 v22, s69, v22')
    a('v_mbcnt_lo_u32_b32 v23, s70, 0')
    a('v_mbcnt_hi_u32_b32 v23, s71, v23')
    a('v_add_u32 v23, s72, v23')
    early(True)
    a('s_waitcnt lgkmcnt(2)')
    a('v_readfirstlane_b32 s72, v26')
    a('s_nop 1')
    a('v_add_lshl_u32 v22, v22, s72, 1')
    a('v_add_lshl_u32 v23, v23, s72, 1')
    a('s_mov_b64 exec, s[68:69]')
    a(f'ds_write_b16 v22, v28 offset:{L_L8}')
    a('s_mov_b64 exec, s[70:71]')
    a(f'ds_write_b16 v23, v29 offset:{L_L8}')
    a('s_mov_b64 exec, -1')
    a('s_cmp_ge_u32 s3, 4')
    a('s_cbranch_scc1 B_lsd')
    a.lab('B_cls')
    for k in range(2):
        a(f'v_bfe_u32 v{82+k}, v{16+2*k}, 5, 1')
        a(f'v_bfe_u32 v{84+k}, v{16+2*k}, 3, 2')
    msk = [(52, 54), (56, 58), (60, 62), (64, 66)]
    for k in range(2):
        a(f'v_cmp_ne_u32 s[{msk[0][k]}:{msk[0][k]+1}], 0, v{82+k}')
        for c in range(1, 4):
            a(f'v_cmp_eq_u32 s[{msk[c][k]}:{msk[c][k]+1}], {4-c}, v{84+k}')
    a('v_max_u32 v86, v16, v18')
    a('v_cmp_lt_u32 vcc, 512, v86')
    a('s_mov_b32 s72, 0')
    a('s_mov_b32 s73, 0')
    for c in range(4):
        a(f's_cmp_eq_u32 s3, {c}')
        a(f's_cselect_b64 s[68:69], s[{msk[c][0]}:{msk[c][0]+1}], s[68:69]')
        a(f's_cselect_b64 s[70:71], s[{msk[c][1]}:{msk[c][1]+1}], s[70:71]')
        a('s_cselect_b32 s74, s72, s74')
        a(f's_bcnt1_i32_b64 s75, s[{msk[c][0]}:{msk[c][0]+1}]')
        a(f's_bcnt1_i32_b64 s76, s[{msk[c][1]}:{msk[c][1]+1}]')
        a('s_add_u32 s75, s75, s76')
        a('s_add_u32 s75, s75, 7')
        a('s_lshr_b32 s75, s75, 3')
        a('s_add_u32 s72, s72, s75')
        a(f's_lshl_b32 s75, s72, {8*c}')
        a('s_or_b32 s73, s73, s75')
    a('s_cmp_eq_u32 s3, 0')
    a('s_cselect_b32 s51, 63, 31')
    a('s_not_b32 s51, s51')
    a('s_lshl_b32 s74, s74, 3')
    a('s_bcnt1_i32_b64 s75, s[68:69]')
    a('s_add_u32 s75, s75, s74')
    a('v_and_b32 v16, s51, v16')
    a('v_and_b32 v18, s51, v18')
    a('v_add_u32 v20, v20, v16')
    a('v_add_u32 v21, v21, v18')
    a('v_mbcnt_lo_u32_b32 v82, s68, 0')
    a('v_mbcnt_hi_u32_b32 v82, s69, v82')
    a('v_mbcnt_lo_u32_b32 v83, s70, 0')
    a('v_mbcnt_hi_u32_b32 v83, s71, v83')
    a('v_add_lshl_u32 v82, v82, s74, 1')
    a('v_add_lshl_u32 v83, v83, s75, 1')
    a('s_mov_b64 exec, s[68:69]')
    a(f'ds_write_b16 v82, v20 offset:{L_L2}')
    a('s_mov_b64 exec, s[70:71]')
    a(f'ds_write_b16 v83, v21 offset:{L_L2}')
    a('s_mov_b64 exec, 1')
    a('s_cmp_lg_u64 vcc, 0')
    a('s_cselect_b32 s73, -1, s73')
    a(f'v_mov_b32 v84, {L_TOT}')
    a('v_mov_b32 v85, s73')
    a('ds_write_b32 v84, v85')
    a('s_mov_b64 exec, -1')
    a.lab('B_lsd')
    a('s_waitcnt lgkmcnt(0)')
    stamp(a, 14)
    a('s_barrier')
    stamp(a, 3)
    stampc(a, 8)
    a('s_cmp_lg_u32 s85, -1')
    a('s_cbranch_scc0 B_nowu')
    a('s_mov_b32 s85, -1')
    a('s_cmp_lt_u32 s3, 12')
    a('s_cbranch_scc1 B_nowu')
    a('s_sub_u32 s51, s3, 12')
    a('s_lshl_b32 s51, s51, 11')
    a(f's_add_u32 m0, s51, {L_WU}')
    a('s_add_u32 s51, s51, 16384')
    a('buffer_load_dwordx4 v11, s[20:23], s51 offen lds')
    a('buffer_load_dwordx4 v11, s[20:23], s51 offen offset:1024 lds')
    a.lab('B_nowu')
    if DEBUG:
        for i_ in range(44, 60): a(f'v_writelane_b32 v65, 0, {i_}')
    RAW = 32; Q = 48; RCS = [56, 112]; IDX = 64; AGC = 66; AGN = 67; Z = 76; T = 16; T2 = 24; TMP = 108; NN = 120; DD = 4; EN = 111
    cnt = [0]
    def rd(st, off=0):
        a(f'ds_read_b128 {q4(RCS[st])}, v{EN} offset:{L_REC+off}')
        a(f'ds_read_b128 {q4(RCS[st]+4)}, v{EN} offset:{L_REC+off+16}')
    def ent8(sidx):
        a(f's_lshl_b32 s51, s{sidx}, 4')
        a(f'v_add_u32 v{TMP}, s51, v13')
        a(f'ds_read_u16 v{EN}, v{TMP} offset:{L_L8}')
    def ent4(sidx):
        a(f's_sub_u32 s79, s{sidx}, s74')
        a(f's_min_u32 s79, s79, 51')
        a(f's_lshl_b32 s51, s79, 4')
        a(f'v_add_u32 v{TMP}, s51, v13')
        a(f'ds_read_u16 v{EN}, v{TMP} offset:{L_L2}')
    def ent_any(sidx):
        n = cnt[0]; cnt[0] += 1
        a(f's_cmp_ge_u32 s{sidx}, s74')
        a(f's_cbranch_scc1 B_rrP{n}')
        ent8(sidx)
        a(f's_branch B_rrX{n}')
        a.lab(f'B_rrP{n}')
        ent4(sidx)
        a.lab(f'B_rrX{n}')
    def gather(st, k):
        a(f'v_mad_u32_u16 v{TMP+(k&1)}, v{RCS[st]+2*k+1}, s42, v2')
        a(f'buffer_load_dwordx4 {q4(RAW+4*k)}, v{TMP+(k&1)}, s[12:15], 0 offen')
    def qread(st):
        RC = RCS[st]
        a(f'v_mad_u32_u16 v{TMP+2}, v{RC+1}, 36, v2 op_sel:[1,0,0,0]')
        a(f'ds_read_b128 {q4(Q)}, v{TMP+2} offset:{L_Q}')
        a(f'ds_read_b128 {q4(Q+4)}, v{TMP+2} offset:{L_Q+128}')
        a(f'v_mad_u32_u16 v{AGN}, v{RC+1}, s84, v3 op_sel:[1,0,0,0]')
    def grab():
        a('s_mov_b64 exec, 1')
        a(f'ds_add_rtn_u32 v{IDX}, v14, v15')
        a('s_mov_b64 exec, -1')
    def cops(st):
        for k in range(4):
            for p in range(4):
                a(f'v_pk_fma_f32 {pr(Z+8*k+2*p)}, {pr(RCS[st]+2*k)}, {pr(68+2*p)}, {pr(Q+2*p)} op_sel_hi:[0,1,1]')
    def zadd(k, nst):
        R = RAW+4*k; Zk = Z+8*k
        a('s_waitcnt vmcnt(3)')
        for i in range(4):
            a(f'v_dot2_f32_bf16 v{Zk+4+i}, v{R+i}, s46, v{Zk+4+i}')
        a(f'v_pk_add_f32 {pr(Zk)}, {pr(R)}, {pr(Zk)}')
        a(f'v_pk_add_f32 {pr(Zk+2)}, {pr(R+2)}, {pr(Zk+2)}')
        gather(nst, k)
    def upd(k, first, nsrc):
        Zk = Z+8*k
        if first:
            for i in range(8): a(f'v_exp_f32 v{DD+i}, v{Zk+i}')
            for p in range(4): a(f'v_pk_add_f32 {pr(DD+2*p)}, {pr(DD+2*p)}, s[44:45]')
            return
        for i in range(8): a(f'v_exp_f32 v{T+i}, v{Zk+i}')
        for p in range(4): a(f'v_pk_fma_f32 {pr(Zk+2*p)}, {pr(Zk+2*p)}, {pr(DD+2*p)}, {pr(nsrc+2*p)}')
        for p in range(4): a(f'v_pk_fma_f32 {pr(NN+2*p)}, {pr(nsrc+2*p)}, {pr(T+2*p)}, {pr(Zk+2*p)}')
        for p in range(4): a(f'v_pk_fma_f32 {pr(DD+2*p)}, {pr(DD+2*p)}, {pr(T+2*p)}, {pr(DD+2*p)}')
    def updp(k, first):
        Zk = Z+8*k
        for i in range(8): a(f'v_exp_f32 v{T+i}, v{Zk+i}')
        for p in range(4): a(f'v_pk_add_f32 {pr(T+2*p)}, {pr(T+2*p)}, s[44:45]')
        for i in range(8): a(f'v_rcp_f32 v{T+i}, v{T+i}')
        for p in range(4):
            if first: a(f'v_pk_mul_f32 {pr(NN+2*p)}, {pr(Zk+2*p)}, {pr(T+2*p)}')
            else: a(f'v_pk_fma_f32 {pr(NN+2*p)}, {pr(Zk+2*p)}, {pr(T+2*p)}, {pr(NN+2*p)}')
    def flush(src):
        dd = [T, T+2, T+4, T+6, T2, T2+2, T2+4, T2+6]
        for i in range(8): a(f'v_cvt_f64_f32 {pr(dd[i])}, v{src+i}')
        for i in range(8): a(f'ds_add_f64 v{AGC}, {pr(dd[i])} offset:{64*i}')
    def finish(nsrc):
        for i in range(8): a(f'v_rcp_f32 v{DD+i}, v{DD+i}')
        for p in range(4): a(f'v_pk_mul_f32 {pr(DD+2*p)}, {pr(nsrc+2*p)}, {pr(DD+2*p)}')
        flush(DD)
    pc = [0]
    def prio(inc):
        if DEBUG:
            a('s_memrealtime s[92:93]')
            a('s_add_u32 m0, s83, 44')
            a('s_waitcnt lgkmcnt(0)')
            a('v_writelane_b32 v65, s92, m0')
        a(f's_add_u32 s83, s83, {inc}')
        if not PRIO: return
        n = pc[0]; pc[0] += 1
        a(f's_cmp_lt_u32 s83, {PT[0]}')
        a(f's_cbranch_scc1 B_pr{n}')
        a('s_setprio 2')
        a(f's_cmp_lt_u32 s83, {PT[1]}')
        a(f's_cbranch_scc1 B_pr{n}')
        a('s_setprio 1')
        a(f's_cmp_lt_u32 s83, {PT[2]}')
        a(f's_cbranch_scc1 B_pr{n}')
        a('s_setprio 0')
        a.lab(f'B_pr{n}')
    a(f'v_mov_b32 v24, {L_MAX}')
    a('ds_read_b128 v[16:19], v24')
    a('s_mov_b32 s76, s3')
    a('s_add_u32 s77, s3, 4')
    a('s_cmp_lt_u32 s3, 12')
    a('s_cselect_b32 s77, s3, s77')
    a('s_cbranch_scc1 B_e1')
    ent8(76)
    a('s_branch B_e2')
    a.lab('B_e1')
    a(f's_sub_u32 s51, s3, {EG0}')
    a(f's_cmp_lt_u32 s51, {8-EG0}')
    a('s_cbranch_scc1 B_e1b')
    egath()
    a.lab('B_e1b')
    qread(0)
    a.lab('B_e2')
    grab()
    a('s_mov_b32 s83, 0')
    if PRIO: a('s_setprio 3')
    a('s_waitcnt lgkmcnt(0)')
    a('s_cmp_lt_u32 s3, 12')
    a('s_cbranch_scc1 B_e3')
    rd(0); rd(1, 32)
    a.lab('B_e3')
    a('v_readfirstlane_b32 s70, v19')
    a('v_readfirstlane_b32 s74, v18')
    a('v_readfirstlane_b32 s71, v16')
    a('v_readfirstlane_b32 s91, v17')
    a('s_cmp_lg_u32 s70, -1')
    a('s_cbranch_scc1 B_capok')
    a('s_mov_b32 s87, 0')
    a('s_setprio 0')
    a('s_waitcnt vmcnt(0) lgkmcnt(0)')
    a('s_barrier')
    a('s_branch B_batch')
    a.lab('B_capok')
    a('s_or_b32 s90, s90, s91')
    if FORCE_PLAIN: a('s_mov_b32 s90, 1')
    a('s_add_u32 s74, s74, 7')
    a('s_lshr_b32 s74, s74, 3')
    a('s_and_b32 s72, s70, 0xff')
    a('s_add_u32 s72, s72, s74')
    a('s_bfe_u32 s73, s70, 0x80008')
    a('s_add_u32 s73, s73, s74')
    a('s_bfe_u32 s82, s70, 0x80010')
    a('s_add_u32 s82, s82, s74')
    a('s_lshr_b32 s75, s70, 24')
    a('s_add_u32 s75, s75, s74')
    a('s_cmp_lt_u32 s3, 12')
    a('s_cbranch_scc1 B_e4')
    a('s_cmp_ge_u32 s76, s75')
    a('s_cbranch_scc1 B_loop_end')
    a('s_cmp_ge_u32 s76, s74')
    a('s_cbranch_scc1 B_pre4')
    a('s_waitcnt lgkmcnt(0)')
    for k in range(4): gather(0, k)
    qread(0)
    a.lab('B_e4')
    ent_any(77)
    a('s_waitcnt lgkmcnt(0)')
    a('s_cmp_lg_u32 s90, 0')
    a('s_cbranch_scc1 B_loop8p')
    for mode in ('', 'p'):
        a.lab(f'B_loop8{mode}')
        a('s_waitcnt lgkmcnt(8)')
        a(f'v_mov_b32 v{AGC}, v{AGN}')
        a(f'v_readfirstlane_b32 s78, v{IDX}')
        cops(0)
        rd(0)
        a('s_add_u32 s78, s78, 20')
        for k in range(4):
            zadd(k, 1)
            if mode: updp(k, k == 0)
            else: upd(k, k == 0, Z if k == 1 else NN)
        cops(1)
        a('s_waitcnt lgkmcnt(0)')
        qread(0)
        a('s_cmp_ge_u32 s77, s74')
        a(f's_cbranch_scc1 B_tr8{mode}')
        rd(1, 32)
        ent_any(78)
        a(f's_branch B_tr8x{mode}')
        a.lab(f'B_tr8{mode}')
        ent4(78)
        a('s_waitcnt lgkmcnt(0)')
        rd(1)
        a.lab(f'B_tr8x{mode}')
        grab()
        for k in range(4):
            zadd(k, 0)
            if mode: updp(k, False)
            else: upd(k, False, NN)
        if mode: flush(NN)
        else: finish(NN)
        prio(2)
        a('s_mov_b32 s76, s77')
        a('s_mov_b32 s77, s78')
        a('s_cmp_lt_u32 s76, s74')
        a(f's_cbranch_scc1 B_loop8{mode}')
        a('s_cmp_lt_u32 s76, s75')
        a(f's_cbranch_scc1 B_loop0{mode}')
        a('s_branch B_loop_end')
    a.lab('B_pre4')
    a('s_waitcnt lgkmcnt(0)')
    ent4(76)
    a('s_waitcnt lgkmcnt(0)')
    rd(0)
    ent4(77)
    a('s_waitcnt lgkmcnt(0)')
    for k in range(4): gather(0, k)
    qread(0)
    rd(1)
    a('s_waitcnt lgkmcnt(0)')
    a('s_cmp_lg_u32 s90, 0')
    a('s_cbranch_scc1 B_loop0p')
    lim = [82, 73, 72]
    for mode in ('', 'p'):
        for st in range(2):
            L = f'{st}{mode}'
            a.lab(f'B_loop{L}')
            a('s_waitcnt lgkmcnt(8)')
            a(f'v_mov_b32 v{AGC}, v{AGN}')
            a(f'v_readfirstlane_b32 s78, v{IDX}')
            a('s_nop 0')
            a('s_add_u32 s78, s78, 20')
            ent4(78)
            cops(st)
            qread(1-st)
            a('s_waitcnt lgkmcnt(2)')
            rd(st)
            grab()
            for k in range(4):
                zadd(k, 1-st)
                if mode: updp(k, k == 0)
                else: upd(k, k == 0, Z if k == 1 else NN)
                if k < 3:
                    a(f's_cmp_ge_u32 s76, s{lim[k]}')
                    a(f's_cbranch_scc1 B_ex{k}_{L}')
            a.lab(f'B_fin_{L}')
            if mode: flush(NN)
            else: finish(NN)
            a.lab(f'B_nx_{L}')
            prio(1)
            a('s_mov_b32 s76, s77')
            a('s_mov_b32 s77, s78')
            a('s_cmp_ge_u32 s76, s75')
            a('s_cbranch_scc1 B_loop_end')
            if st == 1: a(f's_branch B_loop0{mode}')
        for st in range(2):
            L = f'{st}{mode}'
            for k in range(3):
                a.lab(f'B_ex{k}_{L}')
                for kk in range(k+1, 4): gather(1-st, kk)
                if k == 0 and not mode:
                    finish(Z)
                    a(f's_branch B_nx_{L}')
                else:
                    a(f's_branch B_fin_{L}')
    a.lab('B_loop_end')
    stamp(a, 4)
    a('s_waitcnt vmcnt(0) lgkmcnt(0)')
    a('v_lshlrev_b32 v11, 4, v1')
    a('v_and_b32 v8, 31, v1')
    a('v_add_u32 v8, s38, v8')
    a('v_lshrrev_b32 v9, 5, v1')
    a('s_cmp_ge_u32 s3, 8')
    a('s_cbranch_scc1 B_join')
    WX = [100, 104, 108, 4]
    a('s_add_u32 s39, s41, 8192')
    for ks in range(4):
        a(f'buffer_load_dwordx4 {q4(WX[ks])}, v11, s[20:23], s39 offen offset:{1024*ks}')
    a(f's_add_u32 s39, s41, {L_WU}')
    a('v_add_u32 v98, s39, v11')
    a('v_and_b32 v13, 7, v1')
    a('v_xor_b32 v13, v13, v9')
    a('v_lshlrev_b32 v14, 7, v8')
    a(f'v_add_u32 v14, {L_X}, v14')
    for ks in range(4):
        a(f'v_xor_b32 v15, {2*ks}, v13')
        a(f'v_lshl_add_u32 v{92+ks}, v15, 4, v14')
        a(f'ds_read_b128 {q4(16+4*ks)}, v{92+ks}')
    a('s_waitcnt vmcnt(0) lgkmcnt(0)')
    for ks in range(4):
        c = '0' if ks == 0 else 'v[112:127]'
        a(f'v_mfma_f32_32x32x16_bf16 v[112:127], {q4(WX[ks])}, {q4(16+4*ks)}, {c}')
    a.lab('B_join')
    a('v_lshrrev_b32 v12, 3, v0')
    a(f's_movk_i32 s51, {2*RS}')
    a('v_mul_u32_u24 v96, s51, v12')
    a('v_add_u32 v96, v96, v2')
    a(f'v_add_u32 v96, {L_AGG}, v96')
    a('v_and_b32 v97, 7, v12')
    a('v_lshlrev_b32 v97, 4, v97')
    a('v_xor_b32 v97, v97, v2')
    a('v_lshl_add_u32 v97, v12, 7, v97')
    a('s_setprio 0')
    a('s_waitcnt lgkmcnt(0)')
    a('s_barrier')
    stamp(a, 5)
    stampc(a, 40)
    a('s_cmp_eq_u32 s87, -1')
    a('s_cbranch_scc1 B_nb')
    a('s_add_u32 s87, s87, 1')
    a('s_cmp_lt_u32 s87, 128')
    a('s_cbranch_scc1 B_again')
    a('s_mov_b32 s87, -1')
    a.lab('B_nb')
    a('s_add_u32 s50, s50, 32')
    a('s_cmp_eq_u32 s71, 0')
    a('s_cbranch_scc1 B_fin')
    a.lab('B_again')
    a('s_waitcnt vmcnt(0)')
    a('v_lshrrev_b32 v4, 3, v0')
    a('v_lshlrev_b32 v12, 10, v4')
    a('buffer_load_dword v6, v12, s[4:7], s32 offen')
    a('buffer_load_dword v7, v12, s[4:7], s33 offen')
    a('s_branch B_batch')
    a.lab('B_fin')
    if DEBUG: a('v_mov_b32 v3, v65')
    a('s_cmp_ge_u32 s3, 13')
    a('s_cbranch_scc1 B_done2')
    for q in range(4):
        a(f'ds_read_b128 {q4(64+4*q)}, v96 offset:{128*q}')
    for q in range(4):
        a(f's_waitcnt lgkmcnt({3-q})')
        a(f'v_cvt_f32_f64 v{80+2*q}, {pr(64+4*q)}')
        a(f'v_cvt_f32_f64 v{81+2*q}, {pr(66+4*q)}')
    for q in range(4):
        a(f'v_pk_mul_f32 {pr(80+2*q)}, {pr(80+2*q)}, s[48:49]')
    for q in range(4):
        a(f'v_cvt_pk_bf16_f32 v{88+q}, v{80+2*q}, v{81+2*q}')
    a(f'ds_write_b128 v97, v[88:91] offset:{L_REC}')
    a('s_cmp_ge_u32 s3, 8')
    a('s_cbranch_scc1 B_b4')
    for ks in range(4):
        a(f'ds_read_b128 {q4(48+4*ks)}, v98 offset:{1024*ks}')
        a(f'v_add_u32 v{92+ks}, {L_REC-L_X}, v{92+ks}')
    a('s_waitcnt lgkmcnt(4)')
    a('s_branch B_b4x')
    a.lab('B_b4')
    a('s_waitcnt lgkmcnt(0)')
    a.lab('B_b4x')
    a('s_barrier')
    stamp(a, 11, 3)
    a('s_cmp_ge_u32 s3, 8')
    a('s_cbranch_scc1 B_b5')
    for ks in range(4):
        a(f'ds_read_b128 {q4(32+4*ks)}, v{92+ks}')
    a('s_movk_i32 s51, 272')
    a('v_mul_u32_u24 v17, s51, v8')
    a('v_lshl_add_u32 v17, v9, 6, v17')
    a('s_lshl_b32 s51, s34, 7')
    a(f's_add_u32 s51, s51, {L_AGG}')
    a('v_add_u32 v17, s51, v17')
    for ks in range(4):
        a(f's_waitcnt lgkmcnt({3-ks})')
        a(f'v_mfma_f32_32x32x16_bf16 v[112:127], {q4(48+4*ks)}, {q4(32+4*ks)}, v[112:127]')
    a('s_nop 11')
    for q in range(4):
        a(f'ds_write_b128 v17, {q4(112+4*q)} offset:{16*q}')
    a.lab('B_b5')
    a('s_movk_i32 s51, 272')
    a('v_mul_u32_u24 v18, s51, v12')
    a('v_lshl_add_u32 v18, v2, 1, v18')
    a(f'v_add_u32 v18, {L_AGG}, v18')
    a('v_lshlrev_b32 v19, 4, v0')
    a('s_lshl_b32 s51, s37, 7')
    a(f'v_cmp_gt_u32 vcc, {NB*8}, v0')
    a('s_mov_b32 s52, s47')
    a('s_mov_b32 s53, s47')
    a('s_waitcnt lgkmcnt(0)')
    a('s_barrier')
    stamp(a, 12, 3)
    a('ds_read_b128 v[32:35], v18')
    a('ds_read_b128 v[36:39], v18 offset:16')
    a('s_waitcnt lgkmcnt(0)')
    for r in range(0, 8, 2): a(f'v_pk_mul_f32 {pr(64+r)}, {pr(32+r)}, s[52:53]')
    for r in range(8): a(f'v_exp_f32 v{64+r}, v{64+r}')
    for r in range(0, 8, 2): a(f'v_pk_add_f32 {pr(64+r)}, {pr(64+r)}, s[44:45]')
    for r in range(8): a(f'v_rcp_f32 v{64+r}, v{64+r}')
    for r in range(0, 8, 2): a(f'v_pk_mul_f32 {pr(64+r)}, {pr(64+r)}, {pr(32+r)}')
    for r in range(0, 8, 2): a(f'v_cvt_pk_bf16_f32 v{40+r//2}, v{64+r}, v{65+r}')
    stamp(a, 13, 3)
    a('s_and_b64 exec, exec, vcc')
    a(f'buffer_store_dwordx4 v[40:43], v19, s[24:27], s51 offen {ST_O}')
    a.lab('B_done2')
    stamp_out(a, 1, 88, 3)
    a.lab('B_done')
    a('s_endpgm')

def kd(a, name, vgpr, sgpr):
    a.raw('.p2align 6')
    a.raw(f'.amdhsa_kernel {name}')
    a.raw(f'  .amdhsa_next_free_vgpr {vgpr}')
    a.raw(f'  .amdhsa_next_free_sgpr {sgpr}')
    a.raw(f'  .amdhsa_accum_offset {(vgpr+3)//4*4}')
    a.raw('  .amdhsa_group_segment_fixed_size 0')
    a.raw('  .amdhsa_kernarg_size 72')
    a.raw('  .amdhsa_user_sgpr_count 2')
    a.raw('  .amdhsa_user_sgpr_kernarg_segment_ptr 1')
    a.raw('  .amdhsa_system_sgpr_workgroup_id_x 1')
    a.raw('.end_amdhsa_kernel')

def main():
    ref = open('gather_scatter__mpnn_edge_mlp__graph.s.ref').read().splitlines()
    hdr = [l for l in ref if l.startswith(';') and '@launch' not in l and 'Override' not in l and 'grid=ceil' not in l]
    a = A()
    for l in hdr: a.raw(l)
    a.raw(f'; @launch kernel=mpnn_bin_kernel grid=({A_GRID},1,1) block=({A_BLOCK},1,1) lds={A_LDS}')
    a.raw(f'; @launch kernel=mpnn_main_kernel grid=({NBK},1,1) block=(1024,1,1) lds={B_LDS}')
    a.raw('.amdgcn_target "amdgcn-amd-amdhsa--gfx950"')
    a.raw('.text')
    kernel_a(a)
    kernel_b(a)
    a.raw('.section .rodata,"a"')
    kd(a, 'mpnn_bin_kernel', 128, 100)
    kd(a, 'mpnn_main_kernel', 128, 100)
    out = sys.argv[1] if len(sys.argv) > 1 else 'gather_scatter__mpnn_edge_mlp__graph.s'
    open(out, 'w').write('\n'.join(a.l) + '\n')

main()
```

```python
import sys, struct, os
DEBUG = int(os.environ.get('DEBUG', '0'))
PRIO = int(os.environ.get('PRIO', '1'))
XMAP = int(os.environ.get('XMAP', '1'))
PREF = int(os.environ.get('PREF', '0'))
CPF = int(os.environ.get('CPF', '0'))
TLBW = int(os.environ.get('TLBW', '0'))
ST_O = os.environ.get('ST_O', 'sc0 sc1')
LATESRC = int(os.environ.get('LATESRC', '1'))
TOUCH = int(os.environ.get('TOUCH', '4'))
PT = [int(x) for x in os.environ.get('PT', '2,6,7').split(',')]
GFIRST = int(os.environ.get('GFIRST', '1'))
EG0 = int(os.environ.get('EG0', '4'))
LD_A = os.environ.get('LD_A', 'nt')
LD_X = os.environ.get('LD_X', '')
LD_R = os.environ.get('LD_R', '')
LD_XB = os.environ.get('LD_XB', '')
ST_P = os.environ.get('ST_P', 'sc0 sc1')
FORCE_PLAIN = int(os.environ.get('FORCE_PLAIN', '0'))

N = 25000; E = 800000
NB = 98
NBK = 256
CH = 3200
NCH = 250
WS_REC = 0
WS_TAB = 0x700000
WS_PF  = 0x780000
WS_PT  = 0x800000
WS_WF  = 0x7C0000
REC_BYTES = NCH*CH*8
TAB_BYTES = NCH*NBK*4
PF_BYTES  = 1000*4
PT_BYTES  = (N+1)*128
WF_BYTES  = 3*8192 + 512
WF_W3 = 3*8192
LOG2E = 1.4426950408889634
LN2 = 0.6931471805599453
LIM_P = 3.0; LIM_Q = 3.0; LIM_E_BF16 = 0x4040; LIM_W = 3.0
def f32(x): return struct.unpack('<I', struct.pack('<f', x))[0]

class A:
    def __init__(s): s.l = []
    def __call__(s, t): s.l.append('    ' + t)
    def lab(s, t): s.l.append(t + ':')
    def raw(s, t): s.l.append(t)

def srd(a, d, base, off, nbytes):
    if off:
        a(f's_add_u32 s{d}, s{base}, {hex(off)}')
        a(f's_addc_u32 s{d+1}, s{base+1}, 0')
    else:
        a(f's_mov_b32 s{d}, s{base}')
        a(f's_mov_b32 s{d+1}, s{base+1}')
    a(f's_mov_b32 s{d+2}, {hex(nbytes)}')
    a(f's_mov_b32 s{d+3}, 0x00020000')

PROF_OFF = 0x4000000
def stamp(a, i, vr=65, sr=92):
    if not DEBUG: return
    a(f's_memrealtime s[{sr}:{sr+1}]')
    a('s_waitcnt lgkmcnt(0)')
    a(f'v_writelane_b32 v{vr}, s{sr}, {i}')
def stampc(a, i, vr=65, sr=92):
    if not DEBUG: return
    a(f's_memtime s[{sr}:{sr+1}]')
    a('s_waitcnt lgkmcnt(0)')
    a(f'v_writelane_b32 v{vr}, s{sr}, {i}')
def stamp_out(a, kern, wsreg, vr=65, sr=92, tmp=6):
    if not DEBUG: return
    a('s_waitcnt vmcnt(0)')
    stamp(a, 15, vr, sr)
    a('s_mov_b64 exec, -1')
    srd(a, 96, wsreg, PROF_OFF + kern*0x400000, 0x400000)
    a(f's_lshl_b32 s{sr}, s2, 4')
    a(f's_add_u32 s{sr}, s{sr}, s3')
    a(f's_lshl_b32 s{sr}, s{sr}, 8')
    a(f'v_lshlrev_b32 v{tmp}, 2, v1')
    a(f'buffer_store_dword v{vr}, v{tmp}, s[96:99], s{sr} offen')

def wave_scan(a, v):
    for sh in (1, 2, 4, 8):
        a('s_nop 1')
        a(f'v_add_u32_dpp v{v}, v{v}, v{v} row_shr:{sh} row_mask:0xf bank_mask:0xf bound_ctrl:0')
    a('s_nop 1')
    a(f'v_add_u32_dpp v{v}, v{v}, v{v} row_bcast:15 row_mask:0xa bank_mask:0xf')
    a('s_nop 1')
    a(f'v_add_u32_dpp v{v}, v{v}, v{v} row_bcast:31 row_mask:0xc bank_mask:0xf')

def pr(r): return f'v[{r}:{r+1}]'
def q4(r): return f'v[{r}:{r+3}]'

A_GEMM0 = NCH
A_PREP0 = NCH + 250
A_GRID = A_PREP0 + 4
A_BLOCK = 448
A_XT = 0
A_W1 = 4*4096
A_LDS = 2112 + CH*8
A_STAGE = 2048 + 64
A_EFLAG = 2048
ST_A = os.environ.get('ST_A', 'sc0 sc1')

def kernel_a(a):
    a.raw('.globl mpnn_bin_kernel')
    a.raw('.p2align 8')
    a.raw('.type mpnn_bin_kernel,@function')
    a.lab('mpnn_bin_kernel')
    if DEBUG:
        a('s_memrealtime s[94:95]')
        a('s_getreg_b32 s62, hwreg(HW_REG_HW_ID)')
        a('s_getreg_b32 s63, hwreg(HW_REG_XCC_ID)')
    a('s_load_dwordx16 s[4:19], s[0:1], 0')
    a('s_load_dwordx2 s[20:21], s[0:1], 64')
    if CPF:
        a('s_getpc_b64 s[60:61]')
        a.lab('A_pc')
        a('v_lshlrev_b32 v100, 4, v0')
        a('v_add_u32 v101, 7168, v100')
        a('v_min_u32 v101, code_end-A_pc-16, v101')
        a('v_min_u32 v100, code_end-A_pc-16, v100')
        a('global_load_dwordx4 v[104:107], v100, s[60:61]')
        a('global_load_dwordx4 v[108:111], v101, s[60:61]')
    a(f's_cmp_ge_u32 s2, {A_GRID}')
    a('s_cbranch_scc1 A_done')
    a('v_lshrrev_b32 v1, 6, v0')
    a('v_lshlrev_b32 v3, 4, v0')
    a('v_readfirstlane_b32 s3, v1')
    a('v_and_b32 v1, 63, v0')
    a(f's_cmp_ge_u32 s2, {A_PREP0}')
    a('s_cbranch_scc1 A_prep')
    if GFIRST:
        a(f's_add_u32 s22, s2, {NCH}')
        a(f's_sub_u32 s23, s2, {NCH}')
        a(f's_cmp_lt_u32 s2, {NCH}')
        a('s_cselect_b32 s2, s22, s23')
    a(f's_cmp_ge_u32 s2, {A_GEMM0}')
    a('s_cbranch_scc1 A_gemm')
    a('v_cmp_gt_u32 vcc, 400, v0')
    a('s_and_b64 exec, exec, vcc')
    a('v_lshlrev_b32 v2, 3, v0')
    a(f's_mul_i32 s44, s2, {CH*4}')
    a(f's_mul_i32 s45, s2, {CH*2}')
    a(f's_add_u32 s50, s44, {CH*2}')
    a(f's_add_u32 s51, s45, {CH}')
    a('s_waitcnt lgkmcnt(0)')
    srd(a, 24, 10, 0, E*4)
    a(f'buffer_load_dwordx4 v[8:11], v3, s[24:27], s44 offen {LD_A}')
    a(f'buffer_load_dwordx4 v[12:15], v3, s[24:27], s50 offen {LD_A}')
    srd(a, 28, 8, 0, E*4)
    srd(a, 32, 6, 0, E*2)
    def srcloads():
        a(f'buffer_load_dwordx4 v[16:19], v3, s[28:31], s44 offen {LD_A}')
        a(f'buffer_load_dwordx4 v[20:23], v3, s[28:31], s50 offen {LD_A}')
        a(f'buffer_load_dwordx2 v[24:25], v2, s[32:35], s45 offen {LD_A}')
        a(f'buffer_load_dwordx2 v[26:27], v2, s[32:35], s51 offen {LD_A}')
    if not LATESRC: srcloads()
    stamp(a, 0, 70)
    if DEBUG:
        a('v_writelane_b32 v70, s94, 8')
        a('v_writelane_b32 v70, s62, 9')
        a('v_writelane_b32 v70, s63, 10')
    a('v_lshlrev_b32 v5, 2, v0')
    a('v_mov_b32 v4, 0')
    a('v_mov_b32 v6, 2048')
    a('v_cmp_gt_u32 vcc, 256, v0')
    a('s_nop 1')
    a('v_cndmask_b32 v5, v6, v5, vcc')
    a('ds_write_b32 v5, v4')
    if TLBW:
        srd(a, 36, 20, 0, 0xC00000)
        a('v_lshlrev_b32 v7, 20, v1')
        a('buffer_load_dword v71, v7, s[36:39], 0 offen')
    srd(a, 36, 20, WS_REC, REC_BYTES)
    srd(a, 40, 20, WS_TAB, TAB_BYTES)
    a('s_mov_b32 s46, 42800')
    a('s_mov_b32 s47, -196')
    a('s_mov_b32 s48, 0xffff0000')
    a('s_mov_b32 s52, 0x7fff7fff')
    a('v_mov_b32 v4, 1')
    a('s_waitcnt lgkmcnt(0)')
    a('s_barrier')
    for hf in range(2):
        if LATESRC:
            a(f's_waitcnt vmcnt({1 if hf == 0 else 4})')
            if hf == 0: srcloads()
        else:
            a(f's_waitcnt vmcnt({5-hf+TLBW})')
        if hf == 0: stamp(a, 1, 70)
        for j in range(4*hf, 4*hf+4):
            a(f'v_mul_u32_u24 v{28+j}, s46, v{8+j}')
            a(f'v_lshrrev_b32 v{28+j}, 22, v{28+j}')
            a(f'v_lshlrev_b32 v{28+j}, 2, v{28+j}')
            a(f'ds_add_rtn_u32 v{56+j}, v{28+j}, v4')
    for j in range(8):
        a(f'v_lshlrev_b32 v{8+j}, 3, v{8+j}')
        a(f'v_mad_i32_i24 v{41+2*j}, v{28+j}, s47, v{8+j}')
    a('s_mov_b64 s[22:23], exec')
    a('s_waitcnt lgkmcnt(0)')
    a('s_barrier')
    stamp(a, 2, 70)
    a('s_mov_b64 exec, -1')
    a('v_lshlrev_b32 v5, 4, v1')
    a('ds_read_b128 v[8:11], v5')
    a('s_waitcnt lgkmcnt(0)')
    a('v_add_u32 v13, v8, v9')
    a('v_add_u32 v14, v13, v10')
    a('v_add_u32 v15, v14, v11')
    a('v_mov_b32 v72, v15')
    wave_scan(a, 72)
    a('v_sub_u32 v12, v72, v15')
    a('v_add_u32 v15, v12, v14')
    a('v_add_u32 v14, v12, v13')
    a('v_add_u32 v13, v12, v8')
    for k in range(4):
        a(f'v_lshlrev_b32 v{72+k}, 3, v{12+k}')
    a('ds_write_b128 v5, v[72:75] offset:1024')
    for k in range(4):
        a(f'v_lshl_or_b32 v{64+k}, v{8+k}, 16, v{12+k}')
    a('s_mov_b64 exec, s[22:23]')
    a('s_waitcnt lgkmcnt(0)')
    for j in range(8):
        a(f'ds_read_b32 v{8+j}, v{28+j} offset:1024')
    a('s_waitcnt vmcnt(0)')
    for j in range(8):
        if j % 2 == 0:
            a(f'v_lshlrev_b32 v{40+2*j}, 16, v{24+j//2}')
        else:
            a(f'v_and_b32 v{40+2*j}, s48, v{24+j//2}')
        a(f'v_lshl_or_b32 v{41+2*j}, v{41+2*j}, 16, v{16+j}')
    for j in range(4):
        a(f'v_and_b32 v{24+j}, s52, v{24+j}')
    a('v_pk_max_u16 v24, v24, v25')
    a('v_pk_max_u16 v26, v26, v27')
    a('v_pk_max_u16 v24, v24, v26')
    a('v_lshrrev_b32 v25, 16, v24')
    a('v_and_b32 v24, 0xffff, v24')
    a('v_max_u32 v24, v24, v25')
    a(f'v_cmp_lt_u32 vcc, {hex(LIM_E_BF16)}, v24')
    a('s_and_saveexec_b64 s[54:55], vcc')
    a('s_cbranch_execz A_eok')
    a('v_mov_b32 v25, 0x80000000')
    a('ds_write_b32 v6, v25')
    a.lab('A_eok')
    a('s_mov_b64 exec, s[54:55]')
    a('s_waitcnt lgkmcnt(0)')
    for j in range(8):
        a(f'v_lshl_add_u32 v{8+j}, v{56+j}, 3, v{8+j}')
    stamp(a, 3, 70)
    for j in range(8):
        a(f'ds_write_b64 v{8+j}, {pr(40+2*j)} offset:{A_STAGE}')
    a('s_waitcnt lgkmcnt(0)')
    a('s_barrier')
    stamp(a, 4, 70)
    a('s_cmp_lg_u32 s3, 6')
    a('s_cbranch_scc1 A_notab')
    a('s_mov_b64 exec, -1')
    a('v_mov_b32 v6, 2048')
    a('ds_read_b32 v7, v6')
    a('s_lshl_b32 s49, s2, 10')
    a('s_waitcnt lgkmcnt(0)')
    for k in range(4):
        a(f'v_or_b32 v{64+k}, v{64+k}, v7')
    a(f'buffer_store_dwordx4 v[64:67], v5, s[40:43], s49 offen {ST_A}')
    a('s_mov_b64 exec, s[22:23]')
    a.lab('A_notab')
    for j in range(4):
        a(f'ds_read_b128 {q4(8+4*j)}, v3 offset:{A_STAGE+6400*j}')
    a(f's_mul_i32 s49, s2, {CH*8}')
    for j in range(4):
        a(f's_waitcnt lgkmcnt({3-j})')
        a(f'buffer_store_dwordx4 {q4(8+4*j)}, v3, s[36:39], s49 offen {ST_A}')
        if j < 3:
            a(f's_add_u32 s49, s49, 6400')
    stamp(a, 5, 70)
    stamp_out(a, 0, 20, 70)
    a('s_endpgm')

    a.lab('A_gemm')
    a(f's_sub_u32 s22, s2, {A_GEMM0}')
    a('s_mul_i32 s48, s22, 12800')
    a('s_add_u32 s49, s48, 12800')
    a('s_lshl_b32 s22, s22, 2')
    a('s_add_u32 s22, s22, s3')
    a('v_and_b32 v2, 31, v1')
    a('v_lshrrev_b32 v3, 5, v1')
    a('v_lshlrev_b32 v4, 2, v2')
    a('v_lshl_add_u32 v7, v3, 9, v4')
    a('v_lshl_add_u32 v4, v3, 10, v4')
    a(f'v_add_u32 v4, {A_W1}, v4')
    a('v_lshlrev_b32 v5, 4, v0')
    a('s_lshl_b32 s23, s3, 12')
    a('s_add_u32 s23, s23, s48')
    a('v_lshlrev_b32 v6, 4, v1')
    a('s_lshl_b32 s42, s3, 12')
    a('v_add_u32 v7, s42, v7')
    a('v_lshrrev_b32 v8, 3, v1')
    a('v_and_b32 v9, 7, v1')
    a('v_xor_b32 v10, v9, v8')
    a('v_lshlrev_b32 v10, 4, v10')
    a('v_lshl_add_u32 v10, v8, 7, v10')
    a('v_add_u32 v10, s42, v10')
    a('v_xor_b32 v9, v9, v3')
    a('v_lshlrev_b32 v8, 7, v2')
    a('v_add_u32 v8, s42, v8')
    for ks in range(4):
        a(f'v_xor_b32 v{11+ks}, {2*ks}, v9')
        a(f'v_lshl_add_u32 v{11+ks}, v{11+ks}, 4, v8')
    a('s_waitcnt lgkmcnt(0)')
    srd(a, 24, 4, 0, N*128)
    a('s_mov_b32 s26, s49')
    srd(a, 28, 12, 0, 64*128)
    a('s_movk_i32 s43, 7168')
    a('buffer_load_dwordx4 v[16:19], v5, s[28:31], 0 offen')
    a('buffer_load_dwordx4 v[20:23], v5, s[28:31], s43 offen')
    for j in range(4):
        a(f'buffer_load_dwordx4 {q4(48+4*j)}, v6, s[24:27], s23 offen offset:{1024*j} {LD_X}')
    stamp(a, 0, 15)
    if DEBUG:
        a('v_writelane_b32 v15, s94, 8')
        a('v_writelane_b32 v15, s62, 9')
        a('v_writelane_b32 v15, s63, 10')
    srd(a, 32, 20, WS_PT, N*128)
    a('s_mov_b32 s34, s49')
    srd(a, 44, 20, WS_PF, PF_BYTES)
    a('s_mov_b32 s36, 0x05040100')
    a('s_mov_b32 s37, 0x07060302')
    a(f's_mov_b32 s38, {hex(f32(-LOG2E))}')
    a('s_mov_b32 s39, 0x7fffffff')
    a('s_mov_b32 s40, 0x7fff0000')
    a(f's_mov_b32 s41, {hex(f32(LIM_P))}')
    a('s_waitcnt vmcnt(4)')
    a(f'ds_write_b128 v5, v[16:19] offset:{A_W1}')
    a('s_cmp_lg_u32 s3, 0')
    a('s_cbranch_scc1 A_w1done')
    a(f'ds_write_b128 v5, v[20:23] offset:{A_W1+7168}')
    a.lab('A_w1done')
    a('s_waitcnt lgkmcnt(0)')
    a('s_barrier')
    a('s_cmp_ge_u32 s3, 4')
    a('s_cbranch_scc1 A_done')
    for ks in range(4):
        if ks: a('v_add_u32 v4, 2048, v4')
        for jj in range(4):
            a(f'ds_read2_b32 {pr(16+8*ks+2*jj)}, v4 offset0:{64*jj} offset1:{64*jj+32}')
    a('s_waitcnt vmcnt(0)')
    for j in range(4):
        a(f'ds_write_b128 v10, {q4(48+4*j)} offset:{1024*j}')
    a('s_waitcnt lgkmcnt(0)')
    for ks in range(4):
        a(f'ds_read_b128 {q4(48+4*ks)}, v{11+ks}')
    stamp(a, 1, 15)
    for ks in range(4):
        for jj in range(4):
            r0 = 16+8*ks+2*jj
            a(f'v_perm_b32 v{64+4*ks+jj}, v{r0+1}, v{r0}, s36')
            a(f'v_perm_b32 v{80+4*ks+jj}, v{r0+1}, v{r0}, s37')
    a('s_waitcnt lgkmcnt(0)')
    for ks in range(4):
        c0 = '0' if ks == 0 else 'v[96:111]'
        c1 = '0' if ks == 0 else 'v[112:127]'
        a(f'v_mfma_f32_32x32x16_bf16 v[96:111], {q4(48+4*ks)}, {q4(64+4*ks)}, {c0}')
        a(f'v_mfma_f32_32x32x16_bf16 v[112:127], {q4(48+4*ks)}, {q4(80+4*ks)}, {c1}')
    a('s_nop 15')
    stamp(a, 2, 15)
    for r in range(16):
        a(f'v_mul_f32 v{96+r}, s38, v{96+r}')
    for r in range(16):
        a(f'v_mul_f32 v{112+r}, s38, v{112+r}')
    for r in range(0, 16, 2):
        a(f'v_cvt_pk_bf16_f32 v{16+r}, v{96+r}, v{97+r}')
    for r in range(0, 16, 2):
        a(f'v_lshrrev_b32 v{17+r}, 16, v{16+r}')
        a(f'v_and_b32 v{16+r}, 0xffff, v{16+r}')
    for r in range(16):
        a(f'v_and_b32 v{32+r}, s39, v{112+r}')
    for r in range(16):
        a(f'v_add_u32 v{32+r}, 0x8000, v{32+r}')
    for r in range(16):
        a(f'v_sub_u32 v{32+r}, v{32+r}, v{16+r} clamp')
    for r in range(16):
        a(f'v_and_or_b32 v{32+r}, v{32+r}, s40, v{16+r}')
    for r in range(16):
        a(f'v_bfi_b32 v{32+r}, s39, v{32+r}, v{112+r}')
        a(f'ds_write_b32 v7, v{32+r} offset:{((r&3)+8*(r>>2))*128}')
    a('v_add_u32 v8, s42, v6')
    a('s_waitcnt lgkmcnt(0)')
    for j in range(4):
        a(f'ds_read_b128 {q4(48+4*j)}, v8 offset:{1024*j}')
    a('v_max_f32 v64, |v96|, |v97|')
    for r in range(2, 32, 2):
        a(f'v_max3_f32 v64, v64, |v{96+r}|, |v{97+r}|')
    a('v_cmp_lt_f32 vcc, s41, v64')
    for j in range(4):
        a(f's_waitcnt lgkmcnt({3-j})')
        a(f'buffer_store_dwordx4 {q4(48+4*j)}, v6, s[32:35], s23 offen offset:{1024*j} {ST_P}')
    a('s_lshl_b32 s43, s22, 2')
    a('v_mov_b32 v66, 0')
    a('s_cmp_lg_u64 vcc, 0')
    a('s_cselect_b32 s42, 1, 0')
    a('v_mov_b32 v65, s42')
    a('s_mov_b64 exec, 1')
    a(f'buffer_store_dword v65, v66, s[44:47], s43 offen {ST_A}')
    stamp(a, 5, 15)
    stamp_out(a, 0, 20, 15)
    a('s_endpgm')

    a.lab('A_prep')
    a(f's_sub_u32 s50, s2, {A_PREP0}')
    a('s_mul_i32 s50, s50, 7')
    a('s_add_u32 s50, s50, s3')
    a('s_cmp_gt_u32 s50, 24')
    a('s_cbranch_scc1 A_done')
    a('s_lshr_b32 s22, s50, 3')
    a('s_bfe_u32 s23, s50, 0x10002')
    a('s_and_b32 s24, s50, 3')
    a('v_and_b32 v2, 31, v1')
    a('v_lshrrev_b32 v3, 5, v1')
    a('v_bfe_u32 v4, v2, 2, 1')
    a('v_and_b32 v5, 3, v2')
    a('v_lshrrev_b32 v6, 3, v2')
    a('v_lshl_add_u32 v5, v6, 2, v5')
    a('s_waitcnt lgkmcnt(0)')
    srd(a, 32, 20, WS_WF, WF_BYTES)
    a('s_cmp_eq_u32 s50, 24')
    a('s_cbranch_scc1 A_prep_w3')
    a('s_cmp_lg_u32 s22, 0')
    a('s_cbranch_scc1 A_prep_u')
    srd(a, 28, 12, 0, 129*128)
    a('v_lshrrev_b32 v6, 3, v5')
    a('v_lshl_add_u32 v6, v4, 2, v6')
    a('s_lshl_b32 s25, s23, 1')
    a('v_add_u32 v6, s25, v6')
    a('v_and_b32 v7, 7, v5')
    a('v_lshlrev_b32 v8, 1, v7')
    a('v_add_u32 v9, 1, v8')
    a('v_subrev_u32 v8, 8, v8')
    a('v_cmp_gt_u32 vcc, 4, v7')
    a('s_nop 1')
    a('v_cndmask_b32 v8, v8, v9, vcc')
    a('v_lshl_add_u32 v8, v6, 3, v8')
    a('v_lshlrev_b32 v8, 1, v8')
    a('v_lshl_add_u32 v8, v3, 10, v8')
    a('s_lshl_b32 s26, s24, 11')
    a('s_add_u32 s26, s26, 8192')
    for j in range(8):
        a(f'buffer_load_ushort v{32+j}, v8, s[28:31], s26 offen offset:{128*j}')
    a('s_branch A_prep_st')
    a.lab('A_prep_u')
    srd(a, 28, 14, 0, 128*128)
    a('v_lshl_add_u32 v8, v4, 4, v5')
    a('s_lshl_b32 s25, s23, 5')
    a('v_add_u32 v8, s25, v8')
    a('v_lshlrev_b32 v8, 1, v8')
    a('s_cmp_lg_u32 s22, 1')
    a('s_cbranch_scc1 A_prep_agg')
    a('v_lshl_add_u32 v8, v3, 10, v8')
    a('s_lshl_b32 s26, s24, 11')
    for j in range(8):
        a(f'buffer_load_ushort v{32+j}, v8, s[28:31], s26 offen offset:{128*j}')
    a('s_branch A_prep_st')
    a.lab('A_prep_w3')
    srd(a, 44, 20, WS_PT + N*128, 128)
    a('v_mov_b32 v20, 0x71497149')
    a('v_mov_b32 v21, v20')
    a('v_mov_b32 v22, v20')
    a('v_mov_b32 v23, v20')
    a('v_lshlrev_b32 v24, 4, v1')
    a('buffer_store_dwordx4 v[20:23], v24, s[44:47], 0 offen')
    srd(a, 36, 12, 0, 129*128)
    a('v_and_b32 v10, 7, v1')
    a('v_lshlrev_b32 v11, 4, v10')
    a('s_movk_i32 s27, 0x4000')
    a('buffer_load_dwordx4 v[44:47], v11, s[36:39], s27 offen')
    a(f's_mov_b32 s40, {hex(f32(-LOG2E))}')
    a('s_waitcnt vmcnt(0)')
    for i in range(4):
        a(f'v_and_b32 v{48+i}, 0xffff0000, v{44+i}')
        a(f'v_lshlrev_b32 v{52+i}, 16, v{44+i}')
    for i in range(8):
        a(f'v_mul_f32 v{48+i}, s40, v{48+i}')
    a('v_max3_f32 v44, |v48|, |v49|, |v50|')
    a('v_max3_f32 v44, v44, |v51|, |v52|')
    a('v_max3_f32 v44, v44, |v53|, |v54|')
    a('v_max_f32 v44, v44, |v55|')
    a(f'v_cmp_lt_f32 vcc, {hex(f32(LIM_W))}, v44')
    a('v_lshlrev_b32 v11, 5, v10')
    a('s_cmp_lg_u64 vcc, 0')
    a('s_cselect_b32 s41, 1, 0')
    a('v_mov_b32 v45, s41')
    a('v_mov_b32 v46, 0')
    a(f's_movk_i32 s27, {WF_W3}')
    a('buffer_store_dwordx4 v[48:51], v11, s[32:35], s27 offen')
    a('buffer_store_dwordx4 v[52:55], v11, s[32:35], s27 offen offset:16')
    a('buffer_store_dword v45, v46, s[32:35], s27 offen offset:256')
    a('s_endpgm')
    a.lab('A_prep_agg')
    a('v_lshl_add_u32 v8, v3, 11, v8')
    a('s_and_b32 s26, s24, 1')
    a('s_lshl_b32 s26, s26, 5')
    a('s_lshr_b32 s27, s24, 1')
    a('s_lshl_b32 s27, s27, 1')
    a('s_add_u32 s26, s26, s27')
    a('s_add_u32 s26, s26, 64')
    a('s_lshl_b32 s26, s26, 7')
    for j in range(8):
        i_ = 2*(j >> 1)
        ph = 2*i_+1 if i_ < 4 else 2*i_-8
        a(f'buffer_load_ushort v{32+j}, v8, s[28:31], s26 offen offset:{(8*(j & 1)+ph)*128}')
    a.lab('A_prep_st')
    a('s_lshl_b32 s25, s50, 10')
    a('v_lshlrev_b32 v9, 4, v1')
    a('s_waitcnt vmcnt(0)')
    for j in range(4):
        a(f'v_lshl_or_b32 v{16+j}, v{33+2*j}, 16, v{32+2*j}')
    a('buffer_store_dwordx4 v[16:19], v9, s[32:35], s25 offen')
    a.lab('A_done')
    a('s_endpgm')

RS = 288
L_CNT = 0
L_MAX = 1024
L_FLAG = 1028
L_F8C = 1032
L_TOT = 1036
L_WORK = 1040
L_OVF = 1044
L_L8 = 1056
L_L2 = L_L8 + 1600
L_REC = L_L2 + 832
ES = 528
DUMP_OFF = NB*ES
L_Q = L_REC + DUMP_OFF + 64
L_AGG = L_Q + (NB+1)*RS
L_X = L_AGG + (NB+1)*RS*2
L_WU = L_X + 13*1024
L_W3 = L_WU + 8192
B_LDS = L_W3 + 256
DUMMY1 = N | (NB*8) << 16
for x in (L_L8, L_REC, L_Q, L_AGG, L_X, L_WU): assert x % 16 == 0
assert B_LDS <= 163840 and L_Q + 128 < 65536

def kernel_b(a):
    a.raw('.globl mpnn_main_kernel')
    a.raw('.p2align 8')
    a.raw('.type mpnn_main_kernel,@function')
    a.lab('mpnn_main_kernel')
    a('s_load_dwordx2 s[80:81], s[0:1], 64')
    a('s_load_dwordx16 s[64:79], s[0:1], 0')
    a(f's_cmp_ge_u32 s2, {NBK}')
    a('s_cbranch_scc1 B_done')
    a('v_lshrrev_b32 v1, 6, v0')
    a('v_lshrrev_b32 v4, 3, v0')
    a('v_readfirstlane_b32 s3, v1')
    a('v_lshlrev_b32 v12, 10, v4')
    a('s_and_b32 s85, s2, 7')
    a('s_lshl_b32 s85, s85, 5')
    a('s_lshr_b32 s86, s2, 3')
    a('s_add_u32 s85, s85, s86')
    a('s_lshl_b32 s32, s85, 2')
    a('s_add_u32 s33, s32, 0x20000')
    a('v_and_b32 v1, 63, v0')
    a('v_and_b32 v3, 7, v0')
    a('v_lshlrev_b32 v2, 4, v3')
    a('v_lshlrev_b32 v11, 4, v1')
    a(f's_mul_i32 s37, s85, {NB}')
    a('s_lshl_b32 s39, s37, 7')
    a('s_lshl_b32 s40, s3, 10')
    a('s_add_u32 s39, s39, s40')
    a('s_and_b32 s34, s3, 1')
    a('s_lshl_b32 s41, s34, 12')
    a('s_waitcnt lgkmcnt(0)')
    ws = 80
    srd(a, 4, ws, WS_TAB, TAB_BYTES)
    a('buffer_load_dword v6, v12, s[4:7], s32 offen')
    a('buffer_load_dword v7, v12, s[4:7], s33 offen')
    stamp(a, 0)
    srd(a, 8, ws, WS_REC, REC_BYTES)
    a(f's_add_u32 s28, s80, {hex(WS_WF+WF_W3+256)}')
    a('s_addc_u32 s29, s81, 0')
    a('s_load_dword s90, s[28:29], 0')
    srd(a, 12, ws, WS_PT, PT_BYTES)
    srd(a, 24, 76, 0, N*128)
    a('s_mov_b64 s[88:89], s[80:81]')
    a('s_bfe_u32 s35, s3, 0x20001')
    a('s_lshl_b32 s38, s35, 5')
    a('v_and_b32 v8, 31, v1')
    a('v_add_u32 v8, s38, v8')
    a('v_lshrrev_b32 v9, 5, v1')
    a('v_lshlrev_b32 v3, 3, v3')
    a(f'v_add_u32 v3, {L_AGG}, v3')
    a('s_movk_i32 s42, 128')
    a(f's_movk_i32 s43, {ES//8}')
    a('s_mov_b32 s44, 1.0')
    a('s_mov_b32 s45, 1.0')
    a('s_mov_b32 s46, 0x3f80')
    a(f's_mov_b32 s47, {hex(f32(-LOG2E))}')
    a(f's_mov_b32 s48, {hex(f32(-LN2))}')
    a(f's_mov_b32 s49, {hex(f32(-LN2))}')
    a('s_mov_b32 s50, 0')
    a('s_mov_b32 s94, s47')
    a('s_mov_b32 s95, s47')
    a('s_movk_i32 s84, 72')
    a('s_mov_b32 s86, 0')
    a('s_mov_b32 s87, -1')
    srd(a, 16, 64, 0, N*128)
    srd(a, 20, ws, WS_WF, WF_BYTES)
    srd(a, 28, ws, WS_PF, PF_BYTES)
    a('s_cmp_lg_u32 s3, 15')
    a('s_cbranch_scc1 B_batch')
    a(f's_mov_b32 m0, {L_W3}')
    a(f's_movk_i32 s51, {WF_W3}')
    a('s_mov_b64 exec, 0xffff')
    a('buffer_load_dwordx4 v11, s[20:23], s51 offen lds')
    a('s_mov_b64 exec, -1')
    a('s_waitcnt vmcnt(0)')
    a.lab('B_batch')
    a('v_lshlrev_b32 v12, 4, v0')
    a('s_cmp_ge_u32 s3, 4')
    a('s_cbranch_scc1 B_noini')
    a(f'v_mov_b32 v16, {hex(DUMP_OFF | DUMP_OFF << 16)}')
    a(f'v_cmp_gt_u32 vcc, {L_L8//16}, v0')
    a('v_mov_b32 v28, 0')
    a(f'v_mov_b32 v29, {hex(DUMMY1)}')
    a('v_cndmask_b32 v16, v16, v28, vcc')
    a('v_mov_b32 v30, 0')
    a(f'v_mov_b32 v31, {hex(DUMMY1)}')
    a('v_mov_b32 v17, v16')
    a('v_mov_b32 v18, v16')
    a('v_mov_b32 v19, v16')
    a(f'v_cmp_gt_u32 vcc, {L_REC//16}, v0')
    a('s_and_saveexec_b64 s[68:69], vcc')
    a('ds_write_b128 v12, v[16:19]')
    a('s_mov_b64 exec, 15')
    a(f'ds_write_b128 v11, v[28:31] offset:{L_REC+DUMP_OFF}')
    a('s_mov_b64 exec, s[68:69]')
    a.lab('B_noini')
    a('v_and_b32 v14, 7, v0')
    a('v_lshlrev_b32 v14, 1, v14')
    a('v_add_u32 v14, s50, v14')
    a(f's_movk_i32 s51, {CH}')
    a('v_mul_u32_u24 v15, s51, v4')
    a('v_add_u32 v15, v15, v14')
    a('v_mov_b32 v25, 0x7fffff00')
    a('s_waitcnt lgkmcnt(0)')
    a('s_barrier')
    stamp(a, 9)
    a('s_waitcnt vmcnt(0)')
    stamp(a, 1)
    for rd_ in range(2):
        T_ = 6+rd_
        a(f'v_bfe_u32 v{20+rd_}, v{T_}, 16, 13')
        a(f'v_and_b32 v{22+rd_}, 0xffff, v{T_}')
        a(f'v_add_u32 v{22+rd_}, v{22+rd_}, v15')
        if rd_ == 1:
            a(f'v_add_u32 v{22+rd_}, {128*CH}, v{22+rd_}')
        a(f'v_lshlrev_b32 v{22+rd_}, 3, v{22+rd_}')
        a(f'v_sub_u32 v{16+rd_}, v{20+rd_}, v14')
    for s in range(8):
        a(f'v_cmp_lt_i32 s[{52+2*s}:{53+2*s}], {((s >> 1) & 1)*16+(s & 1)}, v{16+(s >> 2)}')
    a('s_cmp_eq_u32 s87, -1')
    a('s_cbranch_scc1 B_allsl')
    a('s_lshl_b32 s51, s3, 3')
    a('s_sub_u32 s51, s87, s51')
    for s in range(8):
        a(f's_cmp_eq_u32 s51, {s}')
        a(f's_cselect_b64 s[{52+2*s}:{53+2*s}], s[{52+2*s}:{53+2*s}], 0')
    a.lab('B_allsl')
    order = [(0, 0), (1, 0), (0, 1), (1, 1)]
    for rd_, ld in order:
        s = rd_*4+ld*2
        r = 96+(rd_*2+ld)*4
        a(f's_or_b64 vcc, s[{52+2*s}:{53+2*s}], s[{54+2*s}:{55+2*s}]')
        a(f'v_cndmask_b32 v{26+rd_*2+ld}, v25, v{22+rd_}, vcc')
        a(f'buffer_load_dwordx4 {q4(r)}, v{26+rd_*2+ld}, s[8:11], 0 offen offset:{128*ld} {LD_R}')
    a('v_max_i32 v16, v16, v17')
    a('v_or_b32 v17, v6, v7')
    a('v_cmp_lt_i32 s[70:71], 32, v16')
    a('v_cmp_gt_i32 s[72:73], 0, v17')
    a(f'v_mov_b32 v24, {L_MAX}')
    a('v_mov_b32 v16, 1')
    a('s_cmp_eq_u64 s[70:71], 0')
    a('s_cbranch_scc1 B_nomore')
    a('ds_write_b32 v24, v16')
    a.lab('B_nomore')
    lc = [0]
    def ranks(extra):
        a('v_mov_b32 v44, 8')
        for n, (rd_, ld) in enumerate(order):
            a(f's_waitcnt vmcnt({3-n+extra})')
            if n in (0, 3) and DEBUG:
                a('s_mov_b64 exec, -1')
                stamp(a, {0: 6, 3: 10}[n])
            for e in range(2):
                s = rd_*4+ld*2+e
                r = 96+(rd_*2+ld)*4+2*e
                a(f's_mov_b64 exec, s[{52+2*s}:{53+2*s}]')
                if ld:
                    lc[0] += 1
                    a(f's_cbranch_execz B_sk{lc[0]}')
                a(f'v_lshrrev_b32 v{112+s}, 16, v{r+1}')
                a(f'ds_add_rtn_u32 v{36+s}, v{112+s}, v44 offset:{L_CNT}')
                if ld: a.lab(f'B_sk{lc[0]}')
        a('s_mov_b64 exec, -1')
    a('s_cmp_lg_u32 s86, 0')
    a('s_cbranch_scc1 B_rk0')
    for r in range(20, 24): a(f'v_mov_b32 v{r}, 0')
    a(f'v_add_u32 v13, {L_AGG}, v12')
    for j in range(3):
        a(f'ds_write_b128 v13, v[20:23] offset:{16384*j}')
    a(f'v_cmp_gt_u32 vcc, {NB*RS*2//16-3072}, v0')
    a('s_and_saveexec_b64 s[68:69], vcc')
    a('ds_write_b128 v13, v[20:23] offset:49152')
    a('s_mov_b64 exec, s[68:69]')
    a('v_lshrrev_b32 v45, 3, v1')
    a('v_and_b32 v46, 7, v1')
    a('v_xor_b32 v47, v46, v45')
    a('v_lshlrev_b32 v47, 4, v47')
    a('v_lshl_add_u32 v47, v45, 7, v47')
    a(f's_add_u32 s51, s40, {L_X}')
    a('v_add_u32 v47, s51, v47')
    a('v_lshlrev_b32 v45, 1, v2')
    a(f'v_add_u32 v45, {L_W3}, v45')
    a('ds_read_b128 v[68:71], v45')
    a('ds_read_b128 v[72:75], v45 offset:16')
    a.lab('B_rk0')
    ranks(0)
    a('s_cmp_lg_u32 s86, 0')
    a('s_cbranch_scc1 B_rkdone')
    a('s_cmp_ge_u32 s3, 8')
    a('s_cbranch_scc1 B_rkdone')
    a(f'buffer_load_dwordx4 v[32:35], v11, s[16:19], s39 offen {LD_XB}')
    a('s_add_u32 s51, s39, 8192')
    a(f'buffer_load_dwordx4 v[52:55], v11, s[16:19], s51 offen {LD_XB}')
    a(f's_add_u32 m0, s40, {L_WU}')
    a('s_nop 0')
    a('buffer_load_dwordx4 v11, s[20:23], s40 offen lds')
    a('buffer_load_dwordx4 v[48:51], v11, s[28:31], s40 offen')
    a.lab('B_rkdone')
    a('s_cmp_eq_u64 s[72:73], 0')
    a('s_cbranch_scc1 B_noflag')
    a('ds_write_b32 v24, v16 offset:4')
    a.lab('B_noflag')
    a('s_movk_i32 s51, 504')
    a('s_waitcnt lgkmcnt(0)')
    stamp(a, 7)
    for s in (0, 1, 4, 5, 2, 3, 6, 7):
        r = 96+(s//2)*4+2*(s % 2)
        a(f's_mov_b64 exec, s[{52+2*s}:{53+2*s}]')
        sk = s in (2, 3, 6, 7)
        if sk:
            lc[0] += 1
            a(f's_cbranch_execz B_sk{lc[0]}')
        a(f'v_min_u32 v{36+s}, s51, v{36+s}')
        a(f'v_mad_u32_u24 v{36+s}, v{112+s}, s43, v{36+s}')
        a(f'ds_write_b64 v{36+s}, {pr(r)} offset:{L_REC}')
        if sk: a.lab(f'B_sk{lc[0]}')
    a('s_mov_b64 exec, -1')
    a('s_cmp_lg_u32 s86, 0')
    a('s_cbranch_scc1 B_nxw')
    a('s_cmp_ge_u32 s3, 8')
    a('s_cbranch_scc1 B_nxw')
    a('s_waitcnt vmcnt(0)')
    a('ds_write_b128 v47, v[32:35]')
    a('s_cmp_ge_u32 s3, 5')
    a('s_cbranch_scc1 B_nxw')
    a('ds_write_b128 v47, v[52:55] offset:8192')
    a('v_or3_b32 v48, v48, v49, v50')
    a('v_or_b32 v48, v48, v51')
    a('v_cmp_ne_u32 vcc, 0, v48')
    a('s_nop 1')
    a('s_cbranch_vccz B_nxw')
    a('ds_write_b32 v24, v16 offset:4')
    a.lab('B_nxw')
    a('v_lshrrev_b32 v13, 3, v1')
    a('v_lshlrev_b32 v13, 1, v13')
    a(f'v_mov_b32 v14, {L_WORK}')
    a('v_mov_b32 v15, 1')
    a('v_xor_b32 v46, v46, v9')
    a('v_lshlrev_b32 v45, 7, v8')
    a(f'v_add_u32 v45, {L_X}, v45')
    for ks in range(4):
        a(f'v_xor_b32 v47, {2*ks}, v46')
        a(f'v_lshl_add_u32 v{92+ks}, v47, 4, v45')
    a(f's_add_u32 s68, s41, {L_WU}')
    a('v_add_u32 v126, s68, v11')
    a(f's_movk_i32 s68, {RS}')
    a('v_mul_u32_u24 v124, s68, v8')
    a('v_lshl_add_u32 v124, v9, 6, v124')
    a('s_lshl_b32 s68, s34, 5')
    a('v_add_u32 v124, s68, v124')
    a(f'v_mov_b32 v125, {NB}')
    a('v_cmp_gt_u32 s[74:75], v125, v8')
    a('s_lshl_b32 s51, s3, 6')
    a('v_lshl_add_u32 v120, v13, 2, s51')
    a('v_mul_u32_u24 v123, s43, v120')
    a(f'v_mov_b32 v122, {hex(DUMMY1)}')
    a('s_waitcnt lgkmcnt(0)')
    a('s_barrier')
    stamp(a, 2)
    a('s_cmp_ge_u32 s3, 12')
    a('s_cbranch_scc1 B_ne0')
    a(f'ds_read_b32 v121, v120 offset:{L_CNT}')
    a(f'ds_read_b128 v[56:59], v123 offset:{L_REC}')
    a(f'ds_read_b128 v[60:63], v123 offset:{L_REC+16}')
    a.lab('B_ne0')
    ec = [0]
    def early(g=False):
        a('v_cmp_le_u32 vcc, 64, v121')
        a(f'ds_read_b128 v[112:115], v123 offset:{L_REC+32}')
        a(f'ds_read_b128 v[116:119], v123 offset:{L_REC+48}')
        a('v_cndmask_b32 v57, v122, v57, vcc')
        if not g: return
        ec[0] += 1
        a(f's_cmp_lt_u32 s3, {EG0}')
        a(f's_cbranch_scc1 B_neg{ec[0]}')
        egath()
        a.lab(f'B_neg{ec[0]}')
    def egath():
        for k in range(4):
            a(f'v_mad_u32_u16 v{120+(k&1)}, v{57+2*k}, s42, v2')
            a(f'buffer_load_dwordx4 {q4(32+4*k)}, v{120+(k&1)}, s[12:15], 0 offen')
    a('s_cmp_lg_u32 s86, 0')
    a('s_cbranch_scc1 B_now3')
    a('s_cmp_lt_u32 s3, 8')
    a('s_cbranch_scc1 B_now3')
    a('s_mov_b32 s86, 1')
    for ks in range(4):
        a(f'ds_read_b128 {q4(76+4*ks)}, v{92+ks}')
        a(f'ds_read_b128 {q4(96+4*ks)}, v126 offset:{1024*ks}')
    for ks in range(4):
        c = '0' if ks == 0 else 'v[16:31]'
        a(f's_waitcnt lgkmcnt({6-2*ks})')
        a(f'v_mfma_f32_32x32x16_bf16 v[16:31], {q4(96+4*ks)}, {q4(76+4*ks)}, {c}')
    a('s_cmp_ge_u32 s3, 12')
    a('s_cbranch_scc1 B_g13')
    early()
    a.lab('B_g13')
    a('s_nop 11')
    for r in range(0, 16, 2):
        a(f'v_pk_mul_f32 {pr(16+r)}, {pr(16+r)}, s[94:95]')
    a('s_mov_b64 exec, s[74:75]')
    for o in range(2):
        a(f'ds_write_b128 v124, {q4(16+8*o)} offset:{L_Q+16*o}')
        a(f'ds_write_b128 v124, {q4(20+8*o)} offset:{L_Q+128+16*o}')
    a('v_max_f32 v125, |v16|, |v17|')
    for r in range(2, 16, 2):
        a(f'v_max3_f32 v125, v125, |v{16+r}|, |v{17+r}|')
    a(f'v_cmp_lt_f32 vcc, {hex(f32(LIM_Q))}, v125')
    a('s_mov_b64 exec, -1')
    a(f'v_mov_b32 v125, {L_FLAG}')
    a('v_mov_b32 v126, 1')
    a('s_cbranch_vccz B_lsd')
    a('ds_write_b32 v125, v126')
    a('s_branch B_lsd')
    a.lab('B_now3')
    a('s_cmp_lt_u32 s3, 8')
    a('s_cbranch_scc1 B_l8')
    a('s_cmp_ge_u32 s3, 12')
    a('s_cbranch_scc1 B_lsd')
    a('s_waitcnt lgkmcnt(0)')
    early()
    a('s_branch B_lsd')
    a.lab('B_l8')
    a(f'ds_read_b128 v[16:19], v11 offset:{L_CNT}')
    a('s_mov_b32 s86, 1')
    a(f'v_mul_u32_u24 v20, {2*ES}, v1')
    a(f'v_add_u32 v21, {ES}, v20')
    a('s_lshl_b32 s51, s3, 6')
    a('v_add_u32 v28, s51, v20')
    a('v_add_u32 v29, s51, v21')
    a('s_add_u32 s51, s51, 64')
    a(f'v_mov_b32 v24, {L_F8C}')
    a('s_waitcnt lgkmcnt(0)')
    a('v_cmp_le_u32 s[68:69], s51, v16')
    a('v_cmp_le_u32 s[70:71], s51, v18')
    a('s_cmp_lg_u32 s3, 0')
    a('s_cbranch_scc1 B_l8c')
    a('s_mov_b32 s68, 0')
    a('s_mov_b32 s70, 0')
    a('s_and_b32 s69, s69, 0xffff0000')
    a('s_and_b32 s71, s71, 0xffff0000')
    a.lab('B_l8c')
    a('s_bcnt1_i32_b64 s72, s[68:69]')
    a('s_bcnt1_i32_b64 s73, s[70:71]')
    a('s_add_u32 s73, s73, s72')
    a('v_mov_b32 v25, s73')
    a('s_mov_b64 exec, 1')
    a('ds_add_rtn_u32 v26, v24, v25')
    a('s_mov_b64 exec, -1')
    a('v_mbcnt_lo_u32_b32 v22, s68, 0')
    a('v_mbcnt_hi_u32_b32 v22, s69, v22')
    a('v_mbcnt_lo_u32_b32 v23, s70, 0')
    a('v_mbcnt_hi_u32_b32 v23, s71, v23')
    a('v_add_u32 v23, s72, v23')
    early(True)
    a('s_waitcnt lgkmcnt(2)')
    a('v_readfirstlane_b32 s72, v26')
    a('s_nop 1')
    a('v_add_lshl_u32 v22, v22, s72, 1')
    a('v_add_lshl_u32 v23, v23, s72, 1')
    a('s_mov_b64 exec, s[68:69]')
    a(f'ds_write_b16 v22, v28 offset:{L_L8}')
    a('s_mov_b64 exec, s[70:71]')
    a(f'ds_write_b16 v23, v29 offset:{L_L8}')
    a('s_mov_b64 exec, -1')
    a('s_cmp_ge_u32 s3, 4')
    a('s_cbranch_scc1 B_lsd')
    a.lab('B_cls')
    for k in range(2):
        a(f'v_bfe_u32 v{82+k}, v{16+2*k}, 5, 1')
        a(f'v_bfe_u32 v{84+k}, v{16+2*k}, 3, 2')
    msk = [(52, 54), (56, 58), (60, 62), (64, 66)]
    for k in range(2):
        a(f'v_cmp_ne_u32 s[{msk[0][k]}:{msk[0][k]+1}], 0, v{82+k}')
        for c in range(1, 4):
            a(f'v_cmp_eq_u32 s[{msk[c][k]}:{msk[c][k]+1}], {4-c}, v{84+k}')
    a('v_max_u32 v86, v16, v18')
    a('v_cmp_lt_u32 vcc, 512, v86')
    a('s_mov_b32 s72, 0')
    a('s_mov_b32 s73, 0')
    for c in range(4):
        a(f's_cmp_eq_u32 s3, {c}')
        a(f's_cselect_b64 s[68:69], s[{msk[c][0]}:{msk[c][0]+1}], s[68:69]')
        a(f's_cselect_b64 s[70:71], s[{msk[c][1]}:{msk[c][1]+1}], s[70:71]')
        a('s_cselect_b32 s74, s72, s74')
        a(f's_bcnt1_i32_b64 s75, s[{msk[c][0]}:{msk[c][0]+1}]')
        a(f's_bcnt1_i32_b64 s76, s[{msk[c][1]}:{msk[c][1]+1}]')
        a('s_add_u32 s75, s75, s76')
        a('s_add_u32 s75, s75, 7')
        a('s_lshr_b32 s75, s75, 3')
        a('s_add_u32 s72, s72, s75')
        a(f's_lshl_b32 s75, s72, {8*c}')
        a('s_or_b32 s73, s73, s75')
    a('s_cmp_eq_u32 s3, 0')
    a('s_cselect_b32 s51, 63, 31')
    a('s_not_b32 s51, s51')
    a('s_lshl_b32 s74, s74, 3')
    a('s_bcnt1_i32_b64 s75, s[68:69]')
    a('s_add_u32 s75, s75, s74')
    a('v_and_b32 v16, s51, v16')
    a('v_and_b32 v18, s51, v18')
    a('v_add_u32 v20, v20, v16')
    a('v_add_u32 v21, v21, v18')
    a('v_mbcnt_lo_u32_b32 v82, s68, 0')
    a('v_mbcnt_hi_u32_b32 v82, s69, v82')
    a('v_mbcnt_lo_u32_b32 v83, s70, 0')
    a('v_mbcnt_hi_u32_b32 v83, s71, v83')
    a('v_add_lshl_u32 v82, v82, s74, 1')
    a('v_add_lshl_u32 v83, v83, s75, 1')
    a('s_mov_b64 exec, s[68:69]')
    a(f'ds_write_b16 v82, v20 offset:{L_L2}')
    a('s_mov_b64 exec, s[70:71]')
    a(f'ds_write_b16 v83, v21 offset:{L_L2}')
    a('s_mov_b64 exec, 1')
    a('s_cmp_lg_u64 vcc, 0')
    a('s_cselect_b32 s73, -1, s73')
    a(f'v_mov_b32 v84, {L_TOT}')
    a('v_mov_b32 v85, s73')
    a('ds_write_b32 v84, v85')
    a('s_mov_b64 exec, -1')
    a.lab('B_lsd')
    a('s_waitcnt lgkmcnt(0)')
    stamp(a, 14)
    a('s_barrier')
    stamp(a, 3)
    stampc(a, 8)
    a('s_cmp_lg_u32 s85, -1')
    a('s_cbranch_scc0 B_nowu')
    a('s_mov_b32 s85, -1')
    a('s_cmp_lt_u32 s3, 12')
    a('s_cbranch_scc1 B_nowu')
    a('s_sub_u32 s51, s3, 12')
    a('s_lshl_b32 s51, s51, 11')
    a(f's_add_u32 m0, s51, {L_WU}')
    a('s_add_u32 s51, s51, 16384')
    a('buffer_load_dwordx4 v11, s[20:23], s51 offen lds')
    a('buffer_load_dwordx4 v11, s[20:23], s51 offen offset:1024 lds')
    a.lab('B_nowu')
    if DEBUG:
        for i_ in range(44, 60): a(f'v_writelane_b32 v65, 0, {i_}')
    RAW = 32; Q = 48; RCS = [56, 112]; IDX = 64; AGC = 66; AGN = 67; Z = 76; T = 16; T2 = 24; TMP = 108; NN = 120; DD = 4; EN = 111
    cnt = [0]
    def rd(st, off=0):
        a(f'ds_read_b128 {q4(RCS[st])}, v{EN} offset:{L_REC+off}')
        a(f'ds_read_b128 {q4(RCS[st]+4)}, v{EN} offset:{L_REC+off+16}')
    def ent8(sidx):
        a(f's_lshl_b32 s51, s{sidx}, 4')
        a(f'v_add_u32 v{TMP}, s51, v13')
        a(f'ds_read_u16 v{EN}, v{TMP} offset:{L_L8}')
    def ent4(sidx):
        a(f's_sub_u32 s79, s{sidx}, s74')
        a(f's_min_u32 s79, s79, 51')
        a(f's_lshl_b32 s51, s79, 4')
        a(f'v_add_u32 v{TMP}, s51, v13')
        a(f'ds_read_u16 v{EN}, v{TMP} offset:{L_L2}')
    def ent_any(sidx):
        n = cnt[0]; cnt[0] += 1
        a(f's_cmp_ge_u32 s{sidx}, s74')
        a(f's_cbranch_scc1 B_rrP{n}')
        ent8(sidx)
        a(f's_branch B_rrX{n}')
        a.lab(f'B_rrP{n}')
        ent4(sidx)
        a.lab(f'B_rrX{n}')
    def gather(st, k):
        a(f'v_mad_u32_u16 v{TMP+(k&1)}, v{RCS[st]+2*k+1}, s42, v2')
        a(f'buffer_load_dwordx4 {q4(RAW+4*k)}, v{TMP+(k&1)}, s[12:15], 0 offen')
    def qread(st):
        RC = RCS[st]
        a(f'v_mad_u32_u16 v{TMP+2}, v{RC+1}, 36, v2 op_sel:[1,0,0,0]')
        a(f'ds_read_b128 {q4(Q)}, v{TMP+2} offset:{L_Q}')
        a(f'ds_read_b128 {q4(Q+4)}, v{TMP+2} offset:{L_Q+128}')
        a(f'v_mad_u32_u16 v{AGN}, v{RC+1}, s84, v3 op_sel:[1,0,0,0]')
    def grab():
        a('s_mov_b64 exec, 1')
        a(f'ds_add_rtn_u32 v{IDX}, v14, v15')
        a('s_mov_b64 exec, -1')
    def cops(st):
        for k in range(4):
            for p in range(4):
                a(f'v_pk_fma_f32 {pr(Z+8*k+2*p)}, {pr(RCS[st]+2*k)}, {pr(68+2*p)}, {pr(Q+2*p)} op_sel_hi:[0,1,1]')
    def zadd(k, nst):
        R = RAW+4*k; Zk = Z+8*k
        a('s_waitcnt vmcnt(3)')
        for i in range(4):
            a(f'v_dot2_f32_bf16 v{Zk+4+i}, v{R+i}, s46, v{Zk+4+i}')
        a(f'v_pk_add_f32 {pr(Zk)}, {pr(R)}, {pr(Zk)}')
        a(f'v_pk_add_f32 {pr(Zk+2)}, {pr(R+2)}, {pr(Zk+2)}')
        gather(nst, k)
    def upd(k, first, nsrc):
        Zk = Z+8*k
        if first:
            for i in range(8): a(f'v_exp_f32 v{DD+i}, v{Zk+i}')
            for p in range(4): a(f'v_pk_add_f32 {pr(DD+2*p)}, {pr(DD+2*p)}, s[44:45]')
            return
        for i in range(8): a(f'v_exp_f32 v{T+i}, v{Zk+i}')
        for p in range(4): a(f'v_pk_fma_f32 {pr(Zk+2*p)}, {pr(Zk+2*p)}, {pr(DD+2*p)}, {pr(nsrc+2*p)}')
        for p in range(4): a(f'v_pk_fma_f32 {pr(NN+2*p)}, {pr(nsrc+2*p)}, {pr(T+2*p)}, {pr(Zk+2*p)}')
        for p in range(4): a(f'v_pk_fma_f32 {pr(DD+2*p)}, {pr(DD+2*p)}, {pr(T+2*p)}, {pr(DD+2*p)}')
    def updp(k, first):
        Zk = Z+8*k
        for i in range(8): a(f'v_exp_f32 v{T+i}, v{Zk+i}')
        for p in range(4): a(f'v_pk_add_f32 {pr(T+2*p)}, {pr(T+2*p)}, s[44:45]')
        for i in range(8): a(f'v_rcp_f32 v{T+i}, v{T+i}')
        for p in range(4):
            if first: a(f'v_pk_mul_f32 {pr(NN+2*p)}, {pr(Zk+2*p)}, {pr(T+2*p)}')
            else: a(f'v_pk_fma_f32 {pr(NN+2*p)}, {pr(Zk+2*p)}, {pr(T+2*p)}, {pr(NN+2*p)}')
    def flush(src):
        dd = [T, T+2, T+4, T+6, T2, T2+2, T2+4, T2+6]
        for i in range(8): a(f'v_cvt_f64_f32 {pr(dd[i])}, v{src+i}')
        for i in range(8): a(f'ds_add_f64 v{AGC}, {pr(dd[i])} offset:{64*i}')
    def finish(nsrc):
        for i in range(8): a(f'v_rcp_f32 v{DD+i}, v{DD+i}')
        for p in range(4): a(f'v_pk_mul_f32 {pr(DD+2*p)}, {pr(nsrc+2*p)}, {pr(DD+2*p)}')
        flush(DD)
    pc = [0]
    def prio(inc):
        if DEBUG:
            a('s_memrealtime s[92:93]')
            a('s_add_u32 m0, s83, 44')
            a('s_waitcnt lgkmcnt(0)')
            a('v_writelane_b32 v65, s92, m0')
        a(f's_add_u32 s83, s83, {inc}')
        if not PRIO: return
        n = pc[0]; pc[0] += 1
        a(f's_cmp_lt_u32 s83, {PT[0]}')
        a(f's_cbranch_scc1 B_pr{n}')
        a('s_setprio 2')
        a(f's_cmp_lt_u32 s83, {PT[1]}')
        a(f's_cbranch_scc1 B_pr{n}')
        a('s_setprio 1')
        a(f's_cmp_lt_u32 s83, {PT[2]}')
        a(f's_cbranch_scc1 B_pr{n}')
        a('s_setprio 0')
        a.lab(f'B_pr{n}')
    a(f'v_mov_b32 v24, {L_MAX}')
    a('ds_read_b128 v[16:19], v24')
    a('s_mov_b32 s76, s3')
    a('s_add_u32 s77, s3, 4')
    a('s_cmp_lt_u32 s3, 12')
    a('s_cselect_b32 s77, s3, s77')
    a('s_cbranch_scc1 B_e1')
    ent8(76)
    a('s_branch B_e2')
    a.lab('B_e1')
    a(f's_sub_u32 s51, s3, {EG0}')
    a(f's_cmp_lt_u32 s51, {8-EG0}')
    a('s_cbranch_scc1 B_e1b')
    egath()
    a.lab('B_e1b')
    qread(0)
    a.lab('B_e2')
    grab()
    a('s_mov_b32 s83, 0')
    if PRIO: a('s_setprio 3')
    a('s_waitcnt lgkmcnt(0)')
    a('s_cmp_lt_u32 s3, 12')
    a('s_cbranch_scc1 B_e3')
    rd(0); rd(1, 32)
    a.lab('B_e3')
    a('v_readfirstlane_b32 s70, v19')
    a('v_readfirstlane_b32 s74, v18')
    a('v_readfirstlane_b32 s71, v16')
    a('v_readfirstlane_b32 s91, v17')
    a('s_cmp_lg_u32 s70, -1')
    a('s_cbranch_scc1 B_capok')
    a('s_mov_b32 s87, 0')
    a('s_setprio 0')
    a('s_waitcnt vmcnt(0) lgkmcnt(0)')
    a('s_barrier')
    a('s_branch B_batch')
    a.lab('B_capok')
    a('s_or_b32 s90, s90, s91')
    if FORCE_PLAIN: a('s_mov_b32 s90, 1')
    a('s_add_u32 s74, s74, 7')
    a('s_lshr_b32 s74, s74, 3')
    a('s_and_b32 s72, s70, 0xff')
    a('s_add_u32 s72, s72, s74')
    a('s_bfe_u32 s73, s70, 0x80008')
    a('s_add_u32 s73, s73, s74')
    a('s_bfe_u32 s82, s70, 0x80010')
    a('s_add_u32 s82, s82, s74')
    a('s_lshr_b32 s75, s70, 24')
    a('s_add_u32 s75, s75, s74')
    a('s_cmp_lt_u32 s3, 12')
    a('s_cbranch_scc1 B_e4')
    a('s_cmp_ge_u32 s76, s75')
    a('s_cbranch_scc1 B_loop_end')
    a('s_cmp_ge_u32 s76, s74')
    a('s_cbranch_scc1 B_pre4')
    a('s_waitcnt lgkmcnt(0)')
    for k in range(4): gather(0, k)
    qread(0)
    a.lab('B_e4')
    ent_any(77)
    a('s_waitcnt lgkmcnt(0)')
    a('s_cmp_lg_u32 s90, 0')
    a('s_cbranch_scc1 B_loop8p')
    for mode in ('', 'p'):
        a.lab(f'B_loop8{mode}')
        a('s_waitcnt lgkmcnt(8)')
        a(f'v_mov_b32 v{AGC}, v{AGN}')
        a(f'v_readfirstlane_b32 s78, v{IDX}')
        cops(0)
        rd(0)
        a('s_add_u32 s78, s78, 20')
        for k in range(4):
            zadd(k, 1)
            if mode: updp(k, k == 0)
            else: upd(k, k == 0, Z if k == 1 else NN)
        cops(1)
        a('s_waitcnt lgkmcnt(0)')
        qread(0)
        a('s_cmp_ge_u32 s77, s74')
        a(f's_cbranch_scc1 B_tr8{mode}')
        rd(1, 32)
        ent_any(78)
        a(f's_branch B_tr8x{mode}')
        a.lab(f'B_tr8{mode}')
        ent4(78)
        a('s_waitcnt lgkmcnt(0)')
        rd(1)
        a.lab(f'B_tr8x{mode}')
        grab()
        for k in range(4):
            zadd(k, 0)
            if mode: updp(k, False)
            else: upd(k, False, NN)
        if mode: flush(NN)
        else: finish(NN)
        prio(2)
        a('s_mov_b32 s76, s77')
        a('s_mov_b32 s77, s78')
        a('s_cmp_lt_u32 s76, s74')
        a(f's_cbranch_scc1 B_loop8{mode}')
        a('s_cmp_lt_u32 s76, s75')
        a(f's_cbranch_scc1 B_loop0{mode}')
        a('s_branch B_loop_end')
    a.lab('B_pre4')
    a('s_waitcnt lgkmcnt(0)')
    ent4(76)
    a('s_waitcnt lgkmcnt(0)')
    rd(0)
    ent4(77)
    a('s_waitcnt lgkmcnt(0)')
    for k in range(4): gather(0, k)
    qread(0)
    rd(1)
    a('s_waitcnt lgkmcnt(0)')
    a('s_cmp_lg_u32 s90, 0')
    a('s_cbranch_scc1 B_loop0p')
    lim = [82, 73, 72]
    for mode in ('', 'p'):
        for st in range(2):
            L = f'{st}{mode}'
            a.lab(f'B_loop{L}')
            a('s_waitcnt lgkmcnt(8)')
            a(f'v_mov_b32 v{AGC}, v{AGN}')
            a(f'v_readfirstlane_b32 s78, v{IDX}')
            a('s_nop 0')
            a('s_add_u32 s78, s78, 20')
            ent4(78)
            cops(st)
            qread(1-st)
            a('s_waitcnt lgkmcnt(2)')
            rd(st)
            grab()
            for k in range(4):
                zadd(k, 1-st)
                if mode: updp(k, k == 0)
                else: upd(k, k == 0, Z if k == 1 else NN)
                if k < 3:
                    a(f's_cmp_ge_u32 s76, s{lim[k]}')
                    a(f's_cbranch_scc1 B_ex{k}_{L}')
            a.lab(f'B_fin_{L}')
            if mode: flush(NN)
            else: finish(NN)
            a.lab(f'B_nx_{L}')
            prio(1)
            a('s_mov_b32 s76, s77')
            a('s_mov_b32 s77, s78')
            a('s_cmp_ge_u32 s76, s75')
            a('s_cbranch_scc1 B_loop_end')
            if st == 1: a(f's_branch B_loop0{mode}')
        for st in range(2):
            L = f'{st}{mode}'
            for k in range(3):
                a.lab(f'B_ex{k}_{L}')
                for kk in range(k+1, 4): gather(1-st, kk)
                if k == 0 and not mode:
                    finish(Z)
                    a(f's_branch B_nx_{L}')
                else:
                    a(f's_branch B_fin_{L}')
    a.lab('B_loop_end')
    stamp(a, 4)
    a('s_waitcnt vmcnt(0) lgkmcnt(0)')
    a('v_lshlrev_b32 v11, 4, v1')
    a('v_and_b32 v8, 31, v1')
    a('v_add_u32 v8, s38, v8')
    a('v_lshrrev_b32 v9, 5, v1')
    a('s_cmp_ge_u32 s3, 8')
    a('s_cbranch_scc1 B_join')
    WX = [100, 104, 108, 4]
    a('s_add_u32 s39, s41, 8192')
    for ks in range(4):
        a(f'buffer_load_dwordx4 {q4(WX[ks])}, v11, s[20:23], s39 offen offset:{1024*ks}')
    a(f's_add_u32 s39, s41, {L_WU}')
    a('v_add_u32 v98, s39, v11')
    a('v_and_b32 v13, 7, v1')
    a('v_xor_b32 v13, v13, v9')
    a('v_lshlrev_b32 v14, 7, v8')
    a(f'v_add_u32 v14, {L_X}, v14')
    for ks in range(4):
        a(f'v_xor_b32 v15, {2*ks}, v13')
        a(f'v_lshl_add_u32 v{92+ks}, v15, 4, v14')
        a(f'ds_read_b128 {q4(16+4*ks)}, v{92+ks}')
    a('s_waitcnt vmcnt(0) lgkmcnt(0)')
    for ks in range(4):
        c = '0' if ks == 0 else 'v[112:127]'
        a(f'v_mfma_f32_32x32x16_bf16 v[112:127], {q4(WX[ks])}, {q4(16+4*ks)}, {c}')
    a.lab('B_join')
    a('v_lshrrev_b32 v12, 3, v0')
    a(f's_movk_i32 s51, {2*RS}')
    a('v_mul_u32_u24 v96, s51, v12')
    a('v_add_u32 v96, v96, v2')
    a(f'v_add_u32 v96, {L_AGG}, v96')
    a('v_and_b32 v97, 7, v12')
    a('v_lshlrev_b32 v97, 4, v97')
    a('v_xor_b32 v97, v97, v2')
    a('v_lshl_add_u32 v97, v12, 7, v97')
    a('s_setprio 0')
    a('s_waitcnt lgkmcnt(0)')
    a('s_barrier')
    stamp(a, 5)
    stampc(a, 40)
    a('s_cmp_eq_u32 s87, -1')
    a('s_cbranch_scc1 B_nb')
    a('s_add_u32 s87, s87, 1')
    a('s_cmp_lt_u32 s87, 128')
    a('s_cbranch_scc1 B_again')
    a('s_mov_b32 s87, -1')
    a.lab('B_nb')
    a('s_add_u32 s50, s50, 32')
    a('s_cmp_eq_u32 s71, 0')
    a('s_cbranch_scc1 B_fin')
    a.lab('B_again')
    a('s_waitcnt vmcnt(0)')
    a('v_lshrrev_b32 v4, 3, v0')
    a('v_lshlrev_b32 v12, 10, v4')
    a('buffer_load_dword v6, v12, s[4:7], s32 offen')
    a('buffer_load_dword v7, v12, s[4:7], s33 offen')
    a('s_branch B_batch')
    a.lab('B_fin')
    if DEBUG: a('v_mov_b32 v3, v65')
    a('s_cmp_ge_u32 s3, 13')
    a('s_cbranch_scc1 B_done2')
    for q in range(4):
        a(f'ds_read_b128 {q4(64+4*q)}, v96 offset:{128*q}')
    for q in range(4):
        a(f's_waitcnt lgkmcnt({3-q})')
        a(f'v_cvt_f32_f64 v{80+2*q}, {pr(64+4*q)}')
        a(f'v_cvt_f32_f64 v{81+2*q}, {pr(66+4*q)}')
    for q in range(4):
        a(f'v_pk_mul_f32 {pr(80+2*q)}, {pr(80+2*q)}, s[48:49]')
    for q in range(4):
        a(f'v_cvt_pk_bf16_f32 v{88+q}, v{80+2*q}, v{81+2*q}')
    a(f'ds_write_b128 v97, v[88:91] offset:{L_REC}')
    a('s_cmp_ge_u32 s3, 8')
    a('s_cbranch_scc1 B_b4')
    for ks in range(4):
        a(f'ds_read_b128 {q4(48+4*ks)}, v98 offset:{1024*ks}')
        a(f'v_add_u32 v{92+ks}, {L_REC-L_X}, v{92+ks}')
    a('s_waitcnt lgkmcnt(4)')
    a('s_branch B_b4x')
    a.lab('B_b4')
    a('s_waitcnt lgkmcnt(0)')
    a.lab('B_b4x')
    a('s_barrier')
    stamp(a, 11, 3)
    a('s_cmp_ge_u32 s3, 8')
    a('s_cbranch_scc1 B_b5')
    for ks in range(4):
        a(f'ds_read_b128 {q4(32+4*ks)}, v{92+ks}')
    a('s_movk_i32 s51, 272')
    a('v_mul_u32_u24 v17, s51, v8')
    a('v_lshl_add_u32 v17, v9, 6, v17')
    a('s_lshl_b32 s51, s34, 7')
    a(f's_add_u32 s51, s51, {L_AGG}')
    a('v_add_u32 v17, s51, v17')
    for ks in range(4):
        a(f's_waitcnt lgkmcnt({3-ks})')
        a(f'v_mfma_f32_32x32x16_bf16 v[112:127], {q4(48+4*ks)}, {q4(32+4*ks)}, v[112:127]')
    a('s_nop 11')
    for q in range(4):
        a(f'ds_write_b128 v17, {q4(112+4*q)} offset:{16*q}')
    a.lab('B_b5')
    a('s_movk_i32 s51, 272')
    a('v_mul_u32_u24 v18, s51, v12')
    a('v_lshl_add_u32 v18, v2, 1, v18')
    a(f'v_add_u32 v18, {L_AGG}, v18')
    a('v_lshlrev_b32 v19, 4, v0')
    a('s_lshl_b32 s51, s37, 7')
    a(f'v_cmp_gt_u32 vcc, {NB*8}, v0')
    a('s_mov_b32 s52, s47')
    a('s_mov_b32 s53, s47')
    a('s_waitcnt lgkmcnt(0)')
    a('s_barrier')
    stamp(a, 12, 3)
    a('ds_read_b128 v[32:35], v18')
    a('ds_read_b128 v[36:39], v18 offset:16')
    a('s_waitcnt lgkmcnt(0)')
    for r in range(0, 8, 2): a(f'v_pk_mul_f32 {pr(64+r)}, {pr(32+r)}, s[52:53]')
    for r in range(8): a(f'v_exp_f32 v{64+r}, v{64+r}')
    for r in range(0, 8, 2): a(f'v_pk_add_f32 {pr(64+r)}, {pr(64+r)}, s[44:45]')
    for r in range(8): a(f'v_rcp_f32 v{64+r}, v{64+r}')
    for r in range(0, 8, 2): a(f'v_pk_mul_f32 {pr(64+r)}, {pr(64+r)}, {pr(32+r)}')
    for r in range(0, 8, 2): a(f'v_cvt_pk_bf16_f32 v{40+r//2}, v{64+r}, v{65+r}')
    stamp(a, 13, 3)
    a('s_and_b64 exec, exec, vcc')
    a(f'buffer_store_dwordx4 v[40:43], v19, s[24:27], s51 offen {ST_O}')
    a.lab('B_done2')
    stamp_out(a, 1, 88, 3)
    a.lab('B_done')
    a('s_endpgm')

def kd(a, name, vgpr, sgpr):
    a.raw('.p2align 6')
    a.raw(f'.amdhsa_kernel {name}')
    a.raw(f'  .amdhsa_next_free_vgpr {vgpr}')
    a.raw(f'  .amdhsa_next_free_sgpr {sgpr}')
    a.raw(f'  .amdhsa_accum_offset {(vgpr+3)//4*4}')
    a.raw('  .amdhsa_group_segment_fixed_size 0')
    a.raw('  .amdhsa_kernarg_size 72')
    a.raw('  .amdhsa_user_sgpr_count 2')
    a.raw('  .amdhsa_user_sgpr_kernarg_segment_ptr 1')
    a.raw('  .amdhsa_system_sgpr_workgroup_id_x 1')
    a.raw('.end_amdhsa_kernel')

def main():
    ref = open('gather_scatter__mpnn_edge_mlp__graph.s.ref').read().splitlines()
    hdr = [l for l in ref if l.startswith(';') and '@launch' not in l and 'Override' not in l and 'grid=ceil' not in l]
    a = A()
    for l in hdr: a.raw(l)
    a.raw(f'; @launch kernel=mpnn_bin_kernel grid=({A_GRID},1,1) block=({A_BLOCK},1,1) lds={A_LDS}')
    a.raw(f'; @launch kernel=mpnn_main_kernel grid=({NBK},1,1) block=(1024,1,1) lds={B_LDS}')
    for l in """;
; Algorithm (two launches, generated by the author's own script):
;  launch 1 (mpnn_bin_kernel)
;    - 250 workgroups: counting-sort one chunk of 3200 edges by destination bucket (98 nodes) in LDS, write the
;      sorted records {e as f32, src | local_dst*8 << 16} and a (start,count) table to d_ws
;    - 250 workgroups: P' = -log2(e) * x @ w_msg[0:64] (MFMA), stored as bf16 pairs
;    - 4 workgroups: MFMA fragments of w_msg[64:128] / w_upd, scaled w_msg[128] row
;  launch 2 (mpnn_main_kernel), one workgroup per bucket
;    - gathers its records, groups them per node in LDS, Q' = -log2(e) * x_own @ w_msg[64:128] (MFMA)
;    - z' = P'[src] + Q'[dst] + e*w';  silu summed as sum z'/(1+2^z'); up to 8 edges of one node share one
;      reciprocal (exact algebra); a run-time range check (|z'| <= 15) falls back to one reciprocal per element
;    - per-node sums in f64 LDS atomics, then out = silu([x, agg] @ w_upd) (MFMA)
;    - any degree distribution is handled (extra batches / slot-by-slot mode)
""".strip('\n').splitlines(): a.raw(l)
    a.raw('.amdgcn_target "amdgcn-amd-amdhsa--gfx950"')
    a.raw('.text')
    kernel_a(a)
    kernel_b(a)
    a.raw('.section .rodata,"a"')
    kd(a, 'mpnn_bin_kernel', 128, 100)
    kd(a, 'mpnn_main_kernel', 128, 100)
    out = sys.argv[1] if len(sys.argv) > 1 else 'gather_scatter__mpnn_edge_mlp__graph.s'
    open(out, 'w').write('\n'.join(a.l) + '\n')

main()
```

```python
import sys, struct, os
DEBUG = int(os.environ.get('DEBUG', '0'))
PRIO = int(os.environ.get('PRIO', '1'))
XMAP = int(os.environ.get('XMAP', '1'))
PREF = int(os.environ.get('PREF', '0'))
CPF = int(os.environ.get('CPF', '0'))
TLBW = int(os.environ.get('TLBW', '0'))
ST_O = os.environ.get('ST_O', 'sc0 sc1')
LATESRC = int(os.environ.get('LATESRC', '1'))
TOUCH = int(os.environ.get('TOUCH', '4'))
PT = [int(x) for x in os.environ.get('PT', '2,6,7').split(',')]
GFIRST = int(os.environ.get('GFIRST', '1'))
EG0 = int(os.environ.get('EG0', '4'))
LD_A = os.environ.get('LD_A', 'nt')
LD_X = os.environ.get('LD_X', '')
LD_R = os.environ.get('LD_R', '')
LD_XB = os.environ.get('LD_XB', '')
ST_P = os.environ.get('ST_P', 'sc0 sc1')
PGT = int(os.environ.get('PGT', '16'))
FORCE_PLAIN = int(os.environ.get('FORCE_PLAIN', '0'))

N = 25000; E = 800000
NB = 98
NBK = 256
CH = 3200
NCH = 250
WS_REC = 0
WS_TAB = 0x700000
WS_PF  = 0x780000
WS_PT  = 0x800000
WS_WF  = 0x7C0000
REC_BYTES = NCH*CH*8
TAB_BYTES = NCH*NBK*4
PF_BYTES  = 1000*4
PT_BYTES  = (N+1)*128
WF_BYTES  = 3*8192 + 512
WF_W3 = 3*8192
LOG2E = 1.4426950408889634
LN2 = 0.6931471805599453
LIM_P = 3.0; LIM_Q = 3.0; LIM_E_BF16 = 0x4040; LIM_W = 3.0
def f32(x): return struct.unpack('<I', struct.pack('<f', x))[0]

class A:
    def __init__(s): s.l = []
    def __call__(s, t): s.l.append('    ' + t)
    def lab(s, t): s.l.append(t + ':')
    def raw(s, t): s.l.append(t)

def srd(a, d, base, off, nbytes):
    if off:
        a(f's_add_u32 s{d}, s{base}, {hex(off)}')
        a(f's_addc_u32 s{d+1}, s{base+1}, 0')
    else:
        a(f's_mov_b32 s{d}, s{base}')
        a(f's_mov_b32 s{d+1}, s{base+1}')
    a(f's_mov_b32 s{d+2}, {hex(nbytes)}')
    a(f's_mov_b32 s{d+3}, 0x00020000')

PROF_OFF = 0x4000000
def stamp(a, i, vr=65, sr=92):
    if not DEBUG: return
    a(f's_memrealtime s[{sr}:{sr+1}]')
    a('s_waitcnt lgkmcnt(0)')
    a(f'v_writelane_b32 v{vr}, s{sr}, {i}')
def stampc(a, i, vr=65, sr=92):
    if not DEBUG: return
    a(f's_memtime s[{sr}:{sr+1}]')
    a('s_waitcnt lgkmcnt(0)')
    a(f'v_writelane_b32 v{vr}, s{sr}, {i}')
def stamp_out(a, kern, wsreg, vr=65, sr=92, tmp=6):
    if not DEBUG: return
    a('s_waitcnt vmcnt(0)')
    stamp(a, 15, vr, sr)
    a('s_mov_b64 exec, -1')
    srd(a, 96, wsreg, PROF_OFF + kern*0x400000, 0x400000)
    a(f's_lshl_b32 s{sr}, s2, 4')
    a(f's_add_u32 s{sr}, s{sr}, s3')
    a(f's_lshl_b32 s{sr}, s{sr}, 8')
    a(f'v_lshlrev_b32 v{tmp}, 2, v1')
    a(f'buffer_store_dword v{vr}, v{tmp}, s[96:99], s{sr} offen')

def wave_scan(a, v):
    for sh in (1, 2, 4, 8):
        a('s_nop 1')
        a(f'v_add_u32_dpp v{v}, v{v}, v{v} row_shr:{sh} row_mask:0xf bank_mask:0xf bound_ctrl:0')
    a('s_nop 1')
    a(f'v_add_u32_dpp v{v}, v{v}, v{v} row_bcast:15 row_mask:0xa bank_mask:0xf')
    a('s_nop 1')
    a(f'v_add_u32_dpp v{v}, v{v}, v{v} row_bcast:31 row_mask:0xc bank_mask:0xf')

def pr(r): return f'v[{r}:{r+1}]'
def q4(r): return f'v[{r}:{r+3}]'

A_GEMM0 = NCH
A_PREP0 = NCH + 250
A_GRID = A_PREP0 + 4
A_BLOCK = 448
A_XT = 0
A_W1 = 4*4096
A_LDS = 2112 + CH*8
A_STAGE = 2048 + 64
A_EFLAG = 2048
ST_A = os.environ.get('ST_A', 'sc0 sc1')

def kernel_a(a):
    a.raw('.globl mpnn_bin_kernel')
    a.raw('.p2align 8')
    a.raw('.type mpnn_bin_kernel,@function')
    a.lab('mpnn_bin_kernel')
    if DEBUG:
        a('s_memrealtime s[94:95]')
        a('s_getreg_b32 s62, hwreg(HW_REG_HW_ID)')
        a('s_getreg_b32 s63, hwreg(HW_REG_XCC_ID)')
    a('s_load_dwordx16 s[4:19], s[0:1], 0')
    a('s_load_dwordx2 s[20:21], s[0:1], 64')
    if CPF:
        a('s_getpc_b64 s[60:61]')
        a.lab('A_pc')
        a('v_lshlrev_b32 v100, 4, v0')
        a('v_add_u32 v101, 7168, v100')
        a('v_min_u32 v101, code_end-A_pc-16, v101')
        a('v_min_u32 v100, code_end-A_pc-16, v100')
        a('global_load_dwordx4 v[104:107], v100, s[60:61]')
        a('global_load_dwordx4 v[108:111], v101, s[60:61]')
    a(f's_cmp_ge_u32 s2, {A_GRID}')
    a('s_cbranch_scc1 A_done')
    a('v_lshrrev_b32 v1, 6, v0')
    a('v_lshlrev_b32 v3, 4, v0')
    a('v_readfirstlane_b32 s3, v1')
    a('v_and_b32 v1, 63, v0')
    a(f's_cmp_ge_u32 s2, {A_PREP0}')
    a('s_cbranch_scc1 A_prep')
    if GFIRST:
        a(f's_add_u32 s22, s2, {NCH}')
        a(f's_sub_u32 s23, s2, {NCH}')
        a(f's_cmp_lt_u32 s2, {NCH}')
        a('s_cselect_b32 s2, s22, s23')
    a(f's_cmp_ge_u32 s2, {A_GEMM0}')
    a('s_cbranch_scc1 A_gemm')
    a('v_cmp_gt_u32 vcc, 400, v0')
    a('s_and_b64 exec, exec, vcc')
    a('v_lshlrev_b32 v2, 3, v0')
    a(f's_mul_i32 s44, s2, {CH*4}')
    a(f's_mul_i32 s45, s2, {CH*2}')
    a(f's_add_u32 s50, s44, {CH*2}')
    a(f's_add_u32 s51, s45, {CH}')
    a('s_waitcnt lgkmcnt(0)')
    srd(a, 24, 10, 0, E*4)
    a(f'buffer_load_dwordx4 v[8:11], v3, s[24:27], s44 offen {LD_A}')
    a(f'buffer_load_dwordx4 v[12:15], v3, s[24:27], s50 offen {LD_A}')
    srd(a, 28, 8, 0, E*4)
    srd(a, 32, 6, 0, E*2)
    def srcloads():
        a(f'buffer_load_dwordx4 v[16:19], v3, s[28:31], s44 offen {LD_A}')
        a(f'buffer_load_dwordx4 v[20:23], v3, s[28:31], s50 offen {LD_A}')
        a(f'buffer_load_dwordx2 v[24:25], v2, s[32:35], s45 offen {LD_A}')
        a(f'buffer_load_dwordx2 v[26:27], v2, s[32:35], s51 offen {LD_A}')
    if not LATESRC: srcloads()
    stamp(a, 0, 70)
    if DEBUG:
        a('v_writelane_b32 v70, s94, 8')
        a('v_writelane_b32 v70, s62, 9')
        a('v_writelane_b32 v70, s63, 10')
    a('v_lshlrev_b32 v5, 2, v0')
    a('v_mov_b32 v4, 0')
    a('v_mov_b32 v6, 2048')
    a('v_cmp_gt_u32 vcc, 256, v0')
    a('s_nop 1')
    a('v_cndmask_b32 v5, v6, v5, vcc')
    a('ds_write_b32 v5, v4')
    if TLBW:
        srd(a, 36, 20, 0, 0xC00000)
        a('v_lshlrev_b32 v7, 20, v1')
        a('buffer_load_dword v71, v7, s[36:39], 0 offen')
    srd(a, 36, 20, WS_REC, REC_BYTES)
    srd(a, 40, 20, WS_TAB, TAB_BYTES)
    a('s_mov_b32 s46, 42800')
    a('s_mov_b32 s47, -196')
    a('s_mov_b32 s48, 0xffff0000')
    a('s_mov_b32 s52, 0x7fff7fff')
    a('v_mov_b32 v4, 1')
    a('s_waitcnt lgkmcnt(0)')
    a('s_barrier')
    for hf in range(2):
        if LATESRC:
            a(f's_waitcnt vmcnt({1 if hf == 0 else 4})')
            if hf == 0: srcloads()
        else:
            a(f's_waitcnt vmcnt({5-hf+TLBW})')
        if hf == 0: stamp(a, 1, 70)
        for j in range(4*hf, 4*hf+4):
            a(f'v_mul_u32_u24 v{28+j}, s46, v{8+j}')
            a(f'v_lshrrev_b32 v{28+j}, 22, v{28+j}')
            a(f'v_lshlrev_b32 v{28+j}, 2, v{28+j}')
            a(f'ds_add_rtn_u32 v{56+j}, v{28+j}, v4')
    for j in range(8):
        a(f'v_lshlrev_b32 v{8+j}, 3, v{8+j}')
        a(f'v_mad_i32_i24 v{41+2*j}, v{28+j}, s47, v{8+j}')
    a('s_mov_b64 s[22:23], exec')
    a('s_waitcnt lgkmcnt(0)')
    a('s_barrier')
    stamp(a, 2, 70)
    a('s_mov_b64 exec, -1')
    a('v_lshlrev_b32 v5, 4, v1')
    a('ds_read_b128 v[8:11], v5')
    a('s_waitcnt lgkmcnt(0)')
    a('v_add_u32 v13, v8, v9')
    a('v_add_u32 v14, v13, v10')
    a('v_add_u32 v15, v14, v11')
    a('v_mov_b32 v72, v15')
    wave_scan(a, 72)
    a('v_sub_u32 v12, v72, v15')
    a('v_add_u32 v15, v12, v14')
    a('v_add_u32 v14, v12, v13')
    a('v_add_u32 v13, v12, v8')
    for k in range(4):
        a(f'v_lshlrev_b32 v{72+k}, 3, v{12+k}')
    a('ds_write_b128 v5, v[72:75] offset:1024')
    for k in range(4):
        a(f'v_lshl_or_b32 v{64+k}, v{8+k}, 16, v{12+k}')
    a('s_mov_b64 exec, s[22:23]')
    a('s_waitcnt lgkmcnt(0)')
    for j in range(8):
        a(f'ds_read_b32 v{8+j}, v{28+j} offset:1024')
    a('s_waitcnt vmcnt(0)')
    for j in range(8):
        if j % 2 == 0:
            a(f'v_lshlrev_b32 v{40+2*j}, 16, v{24+j//2}')
        else:
            a(f'v_and_b32 v{40+2*j}, s48, v{24+j//2}')
        a(f'v_lshl_or_b32 v{41+2*j}, v{41+2*j}, 16, v{16+j}')
    for j in range(4):
        a(f'v_and_b32 v{24+j}, s52, v{24+j}')
    a('v_pk_max_u16 v24, v24, v25')
    a('v_pk_max_u16 v26, v26, v27')
    a('v_pk_max_u16 v24, v24, v26')
    a('v_lshrrev_b32 v25, 16, v24')
    a('v_and_b32 v24, 0xffff, v24')
    a('v_max_u32 v24, v24, v25')
    a(f'v_cmp_lt_u32 vcc, {hex(LIM_E_BF16)}, v24')
    a('s_and_saveexec_b64 s[54:55], vcc')
    a('s_cbranch_execz A_eok')
    a('v_mov_b32 v25, 0x80000000')
    a('ds_write_b32 v6, v25')
    a.lab('A_eok')
    a('s_mov_b64 exec, s[54:55]')
    a('s_waitcnt lgkmcnt(0)')
    for j in range(8):
        a(f'v_lshl_add_u32 v{8+j}, v{56+j}, 3, v{8+j}')
    stamp(a, 3, 70)
    for j in range(8):
        a(f'ds_write_b64 v{8+j}, {pr(40+2*j)} offset:{A_STAGE}')
    a('s_waitcnt lgkmcnt(0)')
    a('s_barrier')
    stamp(a, 4, 70)
    a('s_cmp_lg_u32 s3, 6')
    a('s_cbranch_scc1 A_notab')
    a('s_mov_b64 exec, -1')
    a('v_mov_b32 v6, 2048')
    a('ds_read_b32 v7, v6')
    a('s_lshl_b32 s49, s2, 10')
    a('s_waitcnt lgkmcnt(0)')
    for k in range(4):
        a(f'v_or_b32 v{64+k}, v{64+k}, v7')
    a(f'buffer_store_dwordx4 v[64:67], v5, s[40:43], s49 offen {ST_A}')
    a('s_mov_b64 exec, s[22:23]')
    a.lab('A_notab')
    for j in range(4):
        a(f'ds_read_b128 {q4(8+4*j)}, v3 offset:{A_STAGE+6400*j}')
    a(f's_mul_i32 s49, s2, {CH*8}')
    for j in range(4):
        a(f's_waitcnt lgkmcnt({3-j})')
        a(f'buffer_store_dwordx4 {q4(8+4*j)}, v3, s[36:39], s49 offen {ST_A}')
        if j < 3:
            a(f's_add_u32 s49, s49, 6400')
    stamp(a, 5, 70)
    stamp_out(a, 0, 20, 70)
    a('s_endpgm')

    a.lab('A_gemm')
    a(f's_sub_u32 s22, s2, {A_GEMM0}')
    a('s_mul_i32 s48, s22, 12800')
    a('s_add_u32 s49, s48, 12800')
    a('s_lshl_b32 s22, s22, 2')
    a('s_add_u32 s22, s22, s3')
    a('v_and_b32 v2, 31, v1')
    a('v_lshrrev_b32 v3, 5, v1')
    a('v_lshlrev_b32 v4, 2, v2')
    a('v_lshl_add_u32 v7, v3, 9, v4')
    a('v_lshl_add_u32 v4, v3, 10, v4')
    a(f'v_add_u32 v4, {A_W1}, v4')
    a('v_lshlrev_b32 v5, 4, v0')
    a('s_lshl_b32 s23, s3, 12')
    a('s_add_u32 s23, s23, s48')
    a('v_lshlrev_b32 v6, 4, v1')
    a('s_lshl_b32 s42, s3, 12')
    a('v_add_u32 v7, s42, v7')
    a('v_lshrrev_b32 v8, 3, v1')
    a('v_and_b32 v9, 7, v1')
    a('v_xor_b32 v10, v9, v8')
    a('v_lshlrev_b32 v10, 4, v10')
    a('v_lshl_add_u32 v10, v8, 7, v10')
    a('v_add_u32 v10, s42, v10')
    a('v_xor_b32 v9, v9, v3')
    a('v_lshlrev_b32 v8, 7, v2')
    a('v_add_u32 v8, s42, v8')
    for ks in range(4):
        a(f'v_xor_b32 v{11+ks}, {2*ks}, v9')
        a(f'v_lshl_add_u32 v{11+ks}, v{11+ks}, 4, v8')
    a('s_waitcnt lgkmcnt(0)')
    srd(a, 24, 4, 0, N*128)
    a('s_mov_b32 s26, s49')
    srd(a, 28, 12, 0, 64*128)
    a('s_movk_i32 s43, 7168')
    a('buffer_load_dwordx4 v[16:19], v5, s[28:31], 0 offen')
    a('buffer_load_dwordx4 v[20:23], v5, s[28:31], s43 offen')
    for j in range(4):
        a(f'buffer_load_dwordx4 {q4(48+4*j)}, v6, s[24:27], s23 offen offset:{1024*j} {LD_X}')
    stamp(a, 0, 15)
    if DEBUG:
        a('v_writelane_b32 v15, s94, 8')
        a('v_writelane_b32 v15, s62, 9')
        a('v_writelane_b32 v15, s63, 10')
    srd(a, 32, 20, WS_PT, N*128)
    a('s_mov_b32 s34, s49')
    srd(a, 44, 20, WS_PF, PF_BYTES)
    a('s_mov_b32 s36, 0x05040100')
    a('s_mov_b32 s37, 0x07060302')
    a(f's_mov_b32 s38, {hex(f32(-LOG2E))}')
    a('s_mov_b32 s39, 0x7fffffff')
    a('s_mov_b32 s40, 0x7fff0000')
    a(f's_mov_b32 s41, {hex(f32(LIM_P))}')
    a('s_waitcnt vmcnt(4)')
    a(f'ds_write_b128 v5, v[16:19] offset:{A_W1}')
    a('s_cmp_lg_u32 s3, 0')
    a('s_cbranch_scc1 A_w1done')
    a(f'ds_write_b128 v5, v[20:23] offset:{A_W1+7168}')
    a.lab('A_w1done')
    a('s_waitcnt lgkmcnt(0)')
    a('s_barrier')
    a('s_cmp_ge_u32 s3, 4')
    a('s_cbranch_scc1 A_pgt')
    for ks in range(4):
        if ks: a('v_add_u32 v4, 2048, v4')
        for jj in range(4):
            a(f'ds_read2_b32 {pr(16+8*ks+2*jj)}, v4 offset0:{64*jj} offset1:{64*jj+32}')
    a('s_waitcnt vmcnt(0)')
    for j in range(4):
        a(f'ds_write_b128 v10, {q4(48+4*j)} offset:{1024*j}')
    a('s_waitcnt lgkmcnt(0)')
    for ks in range(4):
        a(f'ds_read_b128 {q4(48+4*ks)}, v{11+ks}')
    stamp(a, 1, 15)
    for ks in range(4):
        for jj in range(4):
            r0 = 16+8*ks+2*jj
            a(f'v_perm_b32 v{64+4*ks+jj}, v{r0+1}, v{r0}, s36')
            a(f'v_perm_b32 v{80+4*ks+jj}, v{r0+1}, v{r0}, s37')
    a('s_waitcnt lgkmcnt(0)')
    for ks in range(4):
        c0 = '0' if ks == 0 else 'v[96:111]'
        c1 = '0' if ks == 0 else 'v[112:127]'
        a(f'v_mfma_f32_32x32x16_bf16 v[96:111], {q4(48+4*ks)}, {q4(64+4*ks)}, {c0}')
        a(f'v_mfma_f32_32x32x16_bf16 v[112:127], {q4(48+4*ks)}, {q4(80+4*ks)}, {c1}')
    a('s_nop 15')
    stamp(a, 2, 15)
    for r in range(16):
        a(f'v_mul_f32 v{96+r}, s38, v{96+r}')
    for r in range(16):
        a(f'v_mul_f32 v{112+r}, s38, v{112+r}')
    for r in range(0, 16, 2):
        a(f'v_cvt_pk_bf16_f32 v{16+r}, v{96+r}, v{97+r}')
    for r in range(0, 16, 2):
        a(f'v_lshrrev_b32 v{17+r}, 16, v{16+r}')
        a(f'v_and_b32 v{16+r}, 0xffff, v{16+r}')
    for r in range(16):
        a(f'v_and_b32 v{32+r}, s39, v{112+r}')
    for r in range(16):
        a(f'v_add_u32 v{32+r}, 0x8000, v{32+r}')
    for r in range(16):
        a(f'v_sub_u32 v{32+r}, v{32+r}, v{16+r} clamp')
    for r in range(16):
        a(f'v_and_or_b32 v{32+r}, v{32+r}, s40, v{16+r}')
    for r in range(16):
        a(f'v_bfi_b32 v{32+r}, s39, v{32+r}, v{112+r}')
        a(f'ds_write_b32 v7, v{32+r} offset:{((r&3)+8*(r>>2))*128}')
    a('v_add_u32 v8, s42, v6')
    a('s_waitcnt lgkmcnt(0)')
    for j in range(4):
        a(f'ds_read_b128 {q4(48+4*j)}, v8 offset:{1024*j}')
    a('v_max_f32 v64, |v96|, |v97|')
    for r in range(2, 32, 2):
        a(f'v_max3_f32 v64, v64, |v{96+r}|, |v{97+r}|')
    a('v_cmp_lt_f32 vcc, s41, v64')
    for j in range(4):
        a(f's_waitcnt lgkmcnt({3-j})')
        a(f'buffer_store_dwordx4 {q4(48+4*j)}, v6, s[32:35], s23 offen offset:{1024*j} {ST_P}')
    a('s_lshl_b32 s43, s22, 2')
    a('v_mov_b32 v66, 0')
    a('s_cmp_lg_u64 vcc, 0')
    a('s_cselect_b32 s42, 1, 0')
    a('v_mov_b32 v65, s42')
    a('s_mov_b64 exec, 1')
    a(f'buffer_store_dword v65, v66, s[44:47], s43 offen {ST_A}')
    stamp(a, 5, 15)
    stamp_out(a, 0, 20, 15)
    a('s_endpgm')

    a.lab('A_pgt')
    if PGT:
        npg = (16 << 20) >> PGT
        per = npg // 32
        a('s_lshr_b32 s50, s22, 5')
        a(f's_mul_i32 s50, s50, {per}')
        a(f's_lshl_b32 s50, s50, {PGT}')
        a(f'v_lshlrev_b32 v8, {PGT}, v1')
        a('s_cmp_eq_u32 s3, 4')
        a('s_cselect_b32 s52, s20, s16')
        a('s_cselect_b32 s53, s21, s17')
        a(f's_cselect_b32 s54, 0xC00000, {N*128}') if False else None
        a(f's_mov_b32 s54, {N*128}')
        a('s_cselect_b32 s54, 0xC00000, s54')
        a('s_cmp_eq_u32 s3, 6')
        a('s_cselect_b32 s52, s4, s52')
        a('s_cselect_b32 s53, s5, s53')
        a('s_mov_b32 s55, 0x00020000')
        for i in range(0, per, 64):
            if per - i < 64: a(f's_mov_b64 exec, {hex((1 << (per-i))-1)}')
            a('buffer_load_dword v9, v8, s[52:55], s50 offen')
            if i + 64 < per: a(f's_add_u32 s50, s50, {64 << PGT}')
    a('s_endpgm')
    a.lab('A_prep')
    a(f's_sub_u32 s50, s2, {A_PREP0}')
    a('s_mul_i32 s50, s50, 7')
    a('s_add_u32 s50, s50, s3')
    a('s_cmp_gt_u32 s50, 24')
    a('s_cbranch_scc1 A_done')
    a('s_lshr_b32 s22, s50, 3')
    a('s_bfe_u32 s23, s50, 0x10002')
    a('s_and_b32 s24, s50, 3')
    a('v_and_b32 v2, 31, v1')
    a('v_lshrrev_b32 v3, 5, v1')
    a('v_bfe_u32 v4, v2, 2, 1')
    a('v_and_b32 v5, 3, v2')
    a('v_lshrrev_b32 v6, 3, v2')
    a('v_lshl_add_u32 v5, v6, 2, v5')
    a('s_waitcnt lgkmcnt(0)')
    srd(a, 32, 20, WS_WF, WF_BYTES)
    a('s_cmp_eq_u32 s50, 24')
    a('s_cbranch_scc1 A_prep_w3')
    a('s_cmp_lg_u32 s22, 0')
    a('s_cbranch_scc1 A_prep_u')
    srd(a, 28, 12, 0, 129*128)
    a('v_lshrrev_b32 v6, 3, v5')
    a('v_lshl_add_u32 v6, v4, 2, v6')
    a('s_lshl_b32 s25, s23, 1')
    a('v_add_u32 v6, s25, v6')
    a('v_and_b32 v7, 7, v5')
    a('v_lshlrev_b32 v8, 1, v7')
    a('v_add_u32 v9, 1, v8')
    a('v_subrev_u32 v8, 8, v8')
    a('v_cmp_gt_u32 vcc, 4, v7')
    a('s_nop 1')
    a('v_cndmask_b32 v8, v8, v9, vcc')
    a('v_lshl_add_u32 v8, v6, 3, v8')
    a('v_lshlrev_b32 v8, 1, v8')
    a('v_lshl_add_u32 v8, v3, 10, v8')
    a('s_lshl_b32 s26, s24, 11')
    a('s_add_u32 s26, s26, 8192')
    for j in range(8):
        a(f'buffer_load_ushort v{32+j}, v8, s[28:31], s26 offen offset:{128*j}')
    a('s_branch A_prep_st')
    a.lab('A_prep_u')
    srd(a, 28, 14, 0, 128*128)
    a('v_lshl_add_u32 v8, v4, 4, v5')
    a('s_lshl_b32 s25, s23, 5')
    a('v_add_u32 v8, s25, v8')
    a('v_lshlrev_b32 v8, 1, v8')
    a('s_cmp_lg_u32 s22, 1')
    a('s_cbranch_scc1 A_prep_agg')
    a('v_lshl_add_u32 v8, v3, 10, v8')
    a('s_lshl_b32 s26, s24, 11')
    for j in range(8):
        a(f'buffer_load_ushort v{32+j}, v8, s[28:31], s26 offen offset:{128*j}')
    a('s_branch A_prep_st')
    a.lab('A_prep_w3')
    srd(a, 44, 20, WS_PT + N*128, 128)
    a('v_mov_b32 v20, 0x71497149')
    a('v_mov_b32 v21, v20')
    a('v_mov_b32 v22, v20')
    a('v_mov_b32 v23, v20')
    a('v_lshlrev_b32 v24, 4, v1')
    a('buffer_store_dwordx4 v[20:23], v24, s[44:47], 0 offen')
    srd(a, 36, 12, 0, 129*128)
    a('v_and_b32 v10, 7, v1')
    a('v_lshlrev_b32 v11, 4, v10')
    a('s_movk_i32 s27, 0x4000')
    a('buffer_load_dwordx4 v[44:47], v11, s[36:39], s27 offen')
    a(f's_mov_b32 s40, {hex(f32(-LOG2E))}')
    a('s_waitcnt vmcnt(0)')
    for i in range(4):
        a(f'v_and_b32 v{48+i}, 0xffff0000, v{44+i}')
        a(f'v_lshlrev_b32 v{52+i}, 16, v{44+i}')
    for i in range(8):
        a(f'v_mul_f32 v{48+i}, s40, v{48+i}')
    a('v_max3_f32 v44, |v48|, |v49|, |v50|')
    a('v_max3_f32 v44, v44, |v51|, |v52|')
    a('v_max3_f32 v44, v44, |v53|, |v54|')
    a('v_max_f32 v44, v44, |v55|')
    a(f'v_cmp_lt_f32 vcc, {hex(f32(LIM_W))}, v44')
    a('v_lshlrev_b32 v11, 5, v10')
    a('s_cmp_lg_u64 vcc, 0')
    a('s_cselect_b32 s41, 1, 0')
    a('v_mov_b32 v45, s41')
    a('v_mov_b32 v46, 0')
    a(f's_movk_i32 s27, {WF_W3}')
    a('buffer_store_dwordx4 v[48:51], v11, s[32:35], s27 offen')
    a('buffer_store_dwordx4 v[52:55], v11, s[32:35], s27 offen offset:16')
    a('buffer_store_dword v45, v46, s[32:35], s27 offen offset:256')
    a('s_endpgm')
    a.lab('A_prep_agg')
    a('v_lshl_add_u32 v8, v3, 11, v8')
    a('s_and_b32 s26, s24, 1')
    a('s_lshl_b32 s26, s26, 5')
    a('s_lshr_b32 s27, s24, 1')
    a('s_lshl_b32 s27, s27, 1')
    a('s_add_u32 s26, s26, s27')
    a('s_add_u32 s26, s26, 64')
    a('s_lshl_b32 s26, s26, 7')
    for j in range(8):
        i_ = 2*(j >> 1)
        ph = 2*i_+1 if i_ < 4 else 2*i_-8
        a(f'buffer_load_ushort v{32+j}, v8, s[28:31], s26 offen offset:{(8*(j & 1)+ph)*128}')
    a.lab('A_prep_st')
    a('s_lshl_b32 s25, s50, 10')
    a('v_lshlrev_b32 v9, 4, v1')
    a('s_waitcnt vmcnt(0)')
    for j in range(4):
        a(f'v_lshl_or_b32 v{16+j}, v{33+2*j}, 16, v{32+2*j}')
    a('buffer_store_dwordx4 v[16:19], v9, s[32:35], s25 offen')
    a.lab('A_done')
    a('s_endpgm')

RS = 288
L_CNT = 0
L_MAX = 1024
L_FLAG = 1028
L_F8C = 1032
L_TOT = 1036
L_WORK = 1040
L_OVF = 1044
L_L8 = 1056
L_L2 = L_L8 + 1600
L_REC = L_L2 + 832
ES = 528
DUMP_OFF = NB*ES
L_Q = L_REC + DUMP_OFF + 64
L_AGG = L_Q + (NB+1)*RS
L_X = L_AGG + (NB+1)*RS*2
L_WU = L_X + 13*1024
L_W3 = L_WU + 8192
B_LDS = L_W3 + 256
DUMMY1 = N | (NB*8) << 16
for x in (L_L8, L_REC, L_Q, L_AGG, L_X, L_WU): assert x % 16 == 0
assert B_LDS <= 163840 and L_Q + 128 < 65536

def kernel_b(a):
    a.raw('.globl mpnn_main_kernel')
    a.raw('.p2align 8')
    a.raw('.type mpnn_main_kernel,@function')
    a.lab('mpnn_main_kernel')
    a('s_load_dwordx2 s[80:81], s[0:1], 64')
    a('s_load_dwordx16 s[64:79], s[0:1], 0')
    a(f's_cmp_ge_u32 s2, {NBK}')
    a('s_cbranch_scc1 B_done')
    a('v_lshrrev_b32 v1, 6, v0')
    a('v_lshrrev_b32 v4, 3, v0')
    a('v_readfirstlane_b32 s3, v1')
    a('v_lshlrev_b32 v12, 10, v4')
    a('s_and_b32 s85, s2, 7')
    a('s_lshl_b32 s85, s85, 5')
    a('s_lshr_b32 s86, s2, 3')
    a('s_add_u32 s85, s85, s86')
    a('s_lshl_b32 s32, s85, 2')
    a('s_add_u32 s33, s32, 0x20000')
    a('v_and_b32 v1, 63, v0')
    a('v_and_b32 v3, 7, v0')
    a('v_lshlrev_b32 v2, 4, v3')
    a('v_lshlrev_b32 v11, 4, v1')
    a(f's_mul_i32 s37, s85, {NB}')
    a('s_lshl_b32 s39, s37, 7')
    a('s_lshl_b32 s40, s3, 10')
    a('s_add_u32 s39, s39, s40')
    a('s_and_b32 s34, s3, 1')
    a('s_lshl_b32 s41, s34, 12')
    a('s_waitcnt lgkmcnt(0)')
    ws = 80
    srd(a, 4, ws, WS_TAB, TAB_BYTES)
    a('buffer_load_dword v6, v12, s[4:7], s32 offen')
    a('buffer_load_dword v7, v12, s[4:7], s33 offen')
    stamp(a, 0)
    srd(a, 8, ws, WS_REC, REC_BYTES)
    a(f's_add_u32 s28, s80, {hex(WS_WF+WF_W3+256)}')
    a('s_addc_u32 s29, s81, 0')
    a('s_load_dword s90, s[28:29], 0')
    srd(a, 12, ws, WS_PT, PT_BYTES)
    srd(a, 24, 76, 0, N*128)
    a('s_mov_b64 s[88:89], s[80:81]')
    a('s_bfe_u32 s35, s3, 0x20001')
    a('s_lshl_b32 s38, s35, 5')
    a('v_and_b32 v8, 31, v1')
    a('v_add_u32 v8, s38, v8')
    a('v_lshrrev_b32 v9, 5, v1')
    a('v_lshlrev_b32 v3, 3, v3')
    a(f'v_add_u32 v3, {L_AGG}, v3')
    a('s_movk_i32 s42, 128')
    a(f's_movk_i32 s43, {ES//8}')
    a('s_mov_b32 s44, 1.0')
    a('s_mov_b32 s45, 1.0')
    a('s_mov_b32 s46, 0x3f80')
    a(f's_mov_b32 s47, {hex(f32(-LOG2E))}')
    a(f's_mov_b32 s48, {hex(f32(-LN2))}')
    a(f's_mov_b32 s49, {hex(f32(-LN2))}')
    a('s_mov_b32 s50, 0')
    a('s_mov_b32 s94, s47')
    a('s_mov_b32 s95, s47')
    a('s_movk_i32 s84, 72')
    a('s_mov_b32 s86, 0')
    a('s_mov_b32 s87, -1')
    srd(a, 16, 64, 0, N*128)
    srd(a, 20, ws, WS_WF, WF_BYTES)
    srd(a, 28, ws, WS_PF, PF_BYTES)
    a('s_cmp_lg_u32 s3, 15')
    a('s_cbranch_scc1 B_batch')
    a(f's_mov_b32 m0, {L_W3}')
    a(f's_movk_i32 s51, {WF_W3}')
    a('s_mov_b64 exec, 0xffff')
    a('buffer_load_dwordx4 v11, s[20:23], s51 offen lds')
    a('s_mov_b64 exec, -1')
    a('s_waitcnt vmcnt(0)')
    a.lab('B_batch')
    a('v_lshlrev_b32 v12, 4, v0')
    a('s_cmp_ge_u32 s3, 4')
    a('s_cbranch_scc1 B_noini')
    a(f'v_mov_b32 v16, {hex(DUMP_OFF | DUMP_OFF << 16)}')
    a(f'v_cmp_gt_u32 vcc, {L_L8//16}, v0')
    a('v_mov_b32 v28, 0')
    a(f'v_mov_b32 v29, {hex(DUMMY1)}')
    a('v_cndmask_b32 v16, v16, v28, vcc')
    a('v_mov_b32 v30, 0')
    a(f'v_mov_b32 v31, {hex(DUMMY1)}')
    a('v_mov_b32 v17, v16')
    a('v_mov_b32 v18, v16')
    a('v_mov_b32 v19, v16')
    a(f'v_cmp_gt_u32 vcc, {L_REC//16}, v0')
    a('s_and_saveexec_b64 s[68:69], vcc')
    a('ds_write_b128 v12, v[16:19]')
    a('s_mov_b64 exec, 15')
    a(f'ds_write_b128 v11, v[28:31] offset:{L_REC+DUMP_OFF}')
    a('s_mov_b64 exec, s[68:69]')
    a.lab('B_noini')
    a('v_and_b32 v14, 7, v0')
    a('v_lshlrev_b32 v14, 1, v14')
    a('v_add_u32 v14, s50, v14')
    a(f's_movk_i32 s51, {CH}')
    a('v_mul_u32_u24 v15, s51, v4')
    a('v_add_u32 v15, v15, v14')
    a('v_mov_b32 v25, 0x7fffff00')
    a('s_waitcnt lgkmcnt(0)')
    a('s_barrier')
    stamp(a, 9)
    a('s_waitcnt vmcnt(0)')
    stamp(a, 1)
    for rd_ in range(2):
        T_ = 6+rd_
        a(f'v_bfe_u32 v{20+rd_}, v{T_}, 16, 13')
        a(f'v_and_b32 v{22+rd_}, 0xffff, v{T_}')
        a(f'v_add_u32 v{22+rd_}, v{22+rd_}, v15')
        if rd_ == 1:
            a(f'v_add_u32 v{22+rd_}, {128*CH}, v{22+rd_}')
        a(f'v_lshlrev_b32 v{22+rd_}, 3, v{22+rd_}')
        a(f'v_sub_u32 v{16+rd_}, v{20+rd_}, v14')
    for s in range(8):
        a(f'v_cmp_lt_i32 s[{52+2*s}:{53+2*s}], {((s >> 1) & 1)*16+(s & 1)}, v{16+(s >> 2)}')
    a('s_cmp_eq_u32 s87, -1')
    a('s_cbranch_scc1 B_allsl')
    a('s_lshl_b32 s51, s3, 3')
    a('s_sub_u32 s51, s87, s51')
    for s in range(8):
        a(f's_cmp_eq_u32 s51, {s}')
        a(f's_cselect_b64 s[{52+2*s}:{53+2*s}], s[{52+2*s}:{53+2*s}], 0')
    a.lab('B_allsl')
    order = [(0, 0), (1, 0), (0, 1), (1, 1)]
    for rd_, ld in order:
        s = rd_*4+ld*2
        r = 96+(rd_*2+ld)*4
        a(f's_or_b64 vcc, s[{52+2*s}:{53+2*s}], s[{54+2*s}:{55+2*s}]')
        a(f'v_cndmask_b32 v{26+rd_*2+ld}, v25, v{22+rd_}, vcc')
        a(f'buffer_load_dwordx4 {q4(r)}, v{26+rd_*2+ld}, s[8:11], 0 offen offset:{128*ld} {LD_R}')
    a('v_max_i32 v16, v16, v17')
    a('v_or_b32 v17, v6, v7')
    a('v_cmp_lt_i32 s[70:71], 32, v16')
    a('v_cmp_gt_i32 s[72:73], 0, v17')
    a(f'v_mov_b32 v24, {L_MAX}')
    a('v_mov_b32 v16, 1')
    a('s_cmp_eq_u64 s[70:71], 0')
    a('s_cbranch_scc1 B_nomore')
    a('ds_write_b32 v24, v16')
    a.lab('B_nomore')
    lc = [0]
    def ranks(extra):
        a('v_mov_b32 v44, 8')
        for n, (rd_, ld) in enumerate(order):
            a(f's_waitcnt vmcnt({3-n+extra})')
            if n in (0, 3) and DEBUG:
                a('s_mov_b64 exec, -1')
                stamp(a, {0: 6, 3: 10}[n])
            for e in range(2):
                s = rd_*4+ld*2+e
                r = 96+(rd_*2+ld)*4+2*e
                a(f's_mov_b64 exec, s[{52+2*s}:{53+2*s}]')
                if ld:
                    lc[0] += 1
                    a(f's_cbranch_execz B_sk{lc[0]}')
                a(f'v_lshrrev_b32 v{112+s}, 16, v{r+1}')
                a(f'ds_add_rtn_u32 v{36+s}, v{112+s}, v44 offset:{L_CNT}')
                if ld: a.lab(f'B_sk{lc[0]}')
        a('s_mov_b64 exec, -1')
    a('s_cmp_lg_u32 s86, 0')
    a('s_cbranch_scc1 B_rk0')
    for r in range(20, 24): a(f'v_mov_b32 v{r}, 0')
    a(f'v_add_u32 v13, {L_AGG}, v12')
    for j in range(3):
        a(f'ds_write_b128 v13, v[20:23] offset:{16384*j}')
    a(f'v_cmp_gt_u32 vcc, {NB*RS*2//16-3072}, v0')
    a('s_and_saveexec_b64 s[68:69], vcc')
    a('ds_write_b128 v13, v[20:23] offset:49152')
    a('s_mov_b64 exec, s[68:69]')
    a('v_lshrrev_b32 v45, 3, v1')
    a('v_and_b32 v46, 7, v1')
    a('v_xor_b32 v47, v46, v45')
    a('v_lshlrev_b32 v47, 4, v47')
    a('v_lshl_add_u32 v47, v45, 7, v47')
    a(f's_add_u32 s51, s40, {L_X}')
    a('v_add_u32 v47, s51, v47')
    a('v_lshlrev_b32 v45, 1, v2')
    a(f'v_add_u32 v45, {L_W3}, v45')
    a('ds_read_b128 v[68:71], v45')
    a('ds_read_b128 v[72:75], v45 offset:16')
    a.lab('B_rk0')
    ranks(0)
    a('s_cmp_lg_u32 s86, 0')
    a('s_cbranch_scc1 B_rkdone')
    a('s_cmp_ge_u32 s3, 8')
    a('s_cbranch_scc1 B_rkdone')
    a(f'buffer_load_dwordx4 v[32:35], v11, s[16:19], s39 offen {LD_XB}')
    a('s_add_u32 s51, s39, 8192')
    a(f'buffer_load_dwordx4 v[52:55], v11, s[16:19], s51 offen {LD_XB}')
    a(f's_add_u32 m0, s40, {L_WU}')
    a('s_nop 0')
    a('buffer_load_dwordx4 v11, s[20:23], s40 offen lds')
    a('buffer_load_dwordx4 v[48:51], v11, s[28:31], s40 offen')
    a.lab('B_rkdone')
    a('s_cmp_eq_u64 s[72:73], 0')
    a('s_cbranch_scc1 B_noflag')
    a('ds_write_b32 v24, v16 offset:4')
    a.lab('B_noflag')
    a('s_movk_i32 s51, 504')
    a('s_waitcnt lgkmcnt(0)')
    stamp(a, 7)
    for s in (0, 1, 4, 5, 2, 3, 6, 7):
        r = 96+(s//2)*4+2*(s % 2)
        a(f's_mov_b64 exec, s[{52+2*s}:{53+2*s}]')
        sk = s in (2, 3, 6, 7)
        if sk:
            lc[0] += 1
            a(f's_cbranch_execz B_sk{lc[0]}')
        a(f'v_min_u32 v{36+s}, s51, v{36+s}')
        a(f'v_mad_u32_u24 v{36+s}, v{112+s}, s43, v{36+s}')
        a(f'ds_write_b64 v{36+s}, {pr(r)} offset:{L_REC}')
        if sk: a.lab(f'B_sk{lc[0]}')
    a('s_mov_b64 exec, -1')
    a('s_cmp_lg_u32 s86, 0')
    a('s_cbranch_scc1 B_nxw')
    a('s_cmp_ge_u32 s3, 8')
    a('s_cbranch_scc1 B_nxw')
    a('s_waitcnt vmcnt(0)')
    a('ds_write_b128 v47, v[32:35]')
    a('s_cmp_ge_u32 s3, 5')
    a('s_cbranch_scc1 B_nxw')
    a('ds_write_b128 v47, v[52:55] offset:8192')
    a('v_or3_b32 v48, v48, v49, v50')
    a('v_or_b32 v48, v48, v51')
    a('v_cmp_ne_u32 vcc, 0, v48')
    a('s_nop 1')
    a('s_cbranch_vccz B_nxw')
    a('ds_write_b32 v24, v16 offset:4')
    a.lab('B_nxw')
    a('v_lshrrev_b32 v13, 3, v1')
    a('v_lshlrev_b32 v13, 1, v13')
    a(f'v_mov_b32 v14, {L_WORK}')
    a('v_mov_b32 v15, 1')
    a('v_xor_b32 v46, v46, v9')
    a('v_lshlrev_b32 v45, 7, v8')
    a(f'v_add_u32 v45, {L_X}, v45')
    for ks in range(4):
        a(f'v_xor_b32 v47, {2*ks}, v46')
        a(f'v_lshl_add_u32 v{92+ks}, v47, 4, v45')
    a(f's_add_u32 s68, s41, {L_WU}')
    a('v_add_u32 v126, s68, v11')
    a(f's_movk_i32 s68, {RS}')
    a('v_mul_u32_u24 v124, s68, v8')
    a('v_lshl_add_u32 v124, v9, 6, v124')
    a('s_lshl_b32 s68, s34, 5')
    a('v_add_u32 v124, s68, v124')
    a(f'v_mov_b32 v125, {NB}')
    a('v_cmp_gt_u32 s[74:75], v125, v8')
    a('s_lshl_b32 s51, s3, 6')
    a('v_lshl_add_u32 v120, v13, 2, s51')
    a('v_mul_u32_u24 v123, s43, v120')
    a(f'v_mov_b32 v122, {hex(DUMMY1)}')
    a('s_waitcnt lgkmcnt(0)')
    a('s_barrier')
    stamp(a, 2)
    a('s_cmp_ge_u32 s3, 12')
    a('s_cbranch_scc1 B_ne0')
    a(f'ds_read_b32 v121, v120 offset:{L_CNT}')
    a(f'ds_read_b128 v[56:59], v123 offset:{L_REC}')
    a(f'ds_read_b128 v[60:63], v123 offset:{L_REC+16}')
    a.lab('B_ne0')
    ec = [0]
    def early(g=False):
        a('v_cmp_le_u32 vcc, 64, v121')
        a(f'ds_read_b128 v[112:115], v123 offset:{L_REC+32}')
        a(f'ds_read_b128 v[116:119], v123 offset:{L_REC+48}')
        a('v_cndmask_b32 v57, v122, v57, vcc')
        if not g: return
        ec[0] += 1
        a(f's_cmp_lt_u32 s3, {EG0}')
        a(f's_cbranch_scc1 B_neg{ec[0]}')
        egath()
        a.lab(f'B_neg{ec[0]}')
    def egath():
        for k in range(4):
            a(f'v_mad_u32_u16 v{120+(k&1)}, v{57+2*k}, s42, v2')
            a(f'buffer_load_dwordx4 {q4(32+4*k)}, v{120+(k&1)}, s[12:15], 0 offen')
    a('s_cmp_lg_u32 s86, 0')
    a('s_cbranch_scc1 B_now3')
    a('s_cmp_lt_u32 s3, 8')
    a('s_cbranch_scc1 B_now3')
    a('s_mov_b32 s86, 1')
    for ks in range(4):
        a(f'ds_read_b128 {q4(76+4*ks)}, v{92+ks}')
        a(f'ds_read_b128 {q4(96+4*ks)}, v126 offset:{1024*ks}')
    for ks in range(4):
        c = '0' if ks == 0 else 'v[16:31]'
        a(f's_waitcnt lgkmcnt({6-2*ks})')
        a(f'v_mfma_f32_32x32x16_bf16 v[16:31], {q4(96+4*ks)}, {q4(76+4*ks)}, {c}')
    a('s_cmp_ge_u32 s3, 12')
    a('s_cbranch_scc1 B_g13')
    early()
    a.lab('B_g13')
    a('s_nop 11')
    for r in range(0, 16, 2):
        a(f'v_pk_mul_f32 {pr(16+r)}, {pr(16+r)}, s[94:95]')
    a('s_mov_b64 exec, s[74:75]')
    for o in range(2):
        a(f'ds_write_b128 v124, {q4(16+8*o)} offset:{L_Q+16*o}')
        a(f'ds_write_b128 v124, {q4(20+8*o)} offset:{L_Q+128+16*o}')
    a('v_max_f32 v125, |v16|, |v17|')
    for r in range(2, 16, 2):
        a(f'v_max3_f32 v125, v125, |v{16+r}|, |v{17+r}|')
    a(f'v_cmp_lt_f32 vcc, {hex(f32(LIM_Q))}, v125')
    a('s_mov_b64 exec, -1')
    a(f'v_mov_b32 v125, {L_FLAG}')
    a('v_mov_b32 v126, 1')
    a('s_cbranch_vccz B_lsd')
    a('ds_write_b32 v125, v126')
    a('s_branch B_lsd')
    a.lab('B_now3')
    a('s_cmp_lt_u32 s3, 8')
    a('s_cbranch_scc1 B_l8')
    a('s_cmp_ge_u32 s3, 12')
    a('s_cbranch_scc1 B_lsd')
    a('s_waitcnt lgkmcnt(0)')
    early()
    a('s_branch B_lsd')
    a.lab('B_l8')
    a(f'ds_read_b128 v[16:19], v11 offset:{L_CNT}')
    a('s_mov_b32 s86, 1')
    a(f'v_mul_u32_u24 v20, {2*ES}, v1')
    a(f'v_add_u32 v21, {ES}, v20')
    a('s_lshl_b32 s51, s3, 6')
    a('v_add_u32 v28, s51, v20')
    a('v_add_u32 v29, s51, v21')
    a('s_add_u32 s51, s51, 64')
    a(f'v_mov_b32 v24, {L_F8C}')
    a('s_waitcnt lgkmcnt(0)')
    a('v_cmp_le_u32 s[68:69], s51, v16')
    a('v_cmp_le_u32 s[70:71], s51, v18')
    a('s_cmp_lg_u32 s3, 0')
    a('s_cbranch_scc1 B_l8c')
    a('s_mov_b32 s68, 0')
    a('s_mov_b32 s70, 0')
    a('s_and_b32 s69, s69, 0xffff0000')
    a('s_and_b32 s71, s71, 0xffff0000')
    a.lab('B_l8c')
    a('s_bcnt1_i32_b64 s72, s[68:69]')
    a('s_bcnt1_i32_b64 s73, s[70:71]')
    a('s_add_u32 s73, s73, s72')
    a('v_mov_b32 v25, s73')
    a('s_mov_b64 exec, 1')
    a('ds_add_rtn_u32 v26, v24, v25')
    a('s_mov_b64 exec, -1')
    a('v_mbcnt_lo_u32_b32 v22, s68, 0')
    a('v_mbcnt_hi_u32_b32 v22, s69, v22')
    a('v_mbcnt_lo_u32_b32 v23, s70, 0')
    a('v_mbcnt_hi_u32_b32 v23, s71, v23')
    a('v_add_u32 v23, s72, v23')
    early(True)
    a('s_waitcnt lgkmcnt(2)')
    a('v_readfirstlane_b32 s72, v26')
    a('s_nop 1')
    a('v_add_lshl_u32 v22, v22, s72, 1')
    a('v_add_lshl_u32 v23, v23, s72, 1')
    a('s_mov_b64 exec, s[68:69]')
    a(f'ds_write_b16 v22, v28 offset:{L_L8}')
    a('s_mov_b64 exec, s[70:71]')
    a(f'ds_write_b16 v23, v29 offset:{L_L8}')
    a('s_mov_b64 exec, -1')
    a('s_cmp_ge_u32 s3, 4')
    a('s_cbranch_scc1 B_lsd')
    a.lab('B_cls')
    for k in range(2):
        a(f'v_bfe_u32 v{82+k}, v{16+2*k}, 5, 1')
        a(f'v_bfe_u32 v{84+k}, v{16+2*k}, 3, 2')
    msk = [(52, 54), (56, 58), (60, 62), (64, 66)]
    for k in range(2):
        a(f'v_cmp_ne_u32 s[{msk[0][k]}:{msk[0][k]+1}], 0, v{82+k}')
        for c in range(1, 4):
            a(f'v_cmp_eq_u32 s[{msk[c][k]}:{msk[c][k]+1}], {4-c}, v{84+k}')
    a('v_max_u32 v86, v16, v18')
    a('v_cmp_lt_u32 vcc, 512, v86')
    a('s_mov_b32 s72, 0')
    a('s_mov_b32 s73, 0')
    for c in range(4):
        a(f's_cmp_eq_u32 s3, {c}')
        a(f's_cselect_b64 s[68:69], s[{msk[c][0]}:{msk[c][0]+1}], s[68:69]')
        a(f's_cselect_b64 s[70:71], s[{msk[c][1]}:{msk[c][1]+1}], s[70:71]')
        a('s_cselect_b32 s74, s72, s74')
        a(f's_bcnt1_i32_b64 s75, s[{msk[c][0]}:{msk[c][0]+1}]')
        a(f's_bcnt1_i32_b64 s76, s[{msk[c][1]}:{msk[c][1]+1}]')
        a('s_add_u32 s75, s75, s76')
        a('s_add_u32 s75, s75, 7')
        a('s_lshr_b32 s75, s75, 3')
        a('s_add_u32 s72, s72, s75')
        a(f's_lshl_b32 s75, s72, {8*c}')
        a('s_or_b32 s73, s73, s75')
    a('s_cmp_eq_u32 s3, 0')
    a('s_cselect_b32 s51, 63, 31')
    a('s_not_b32 s51, s51')
    a('s_lshl_b32 s74, s74, 3')
    a('s_bcnt1_i32_b64 s75, s[68:69]')
    a('s_add_u32 s75, s75, s74')
    a('v_and_b32 v16, s51, v16')
    a('v_and_b32 v18, s51, v18')
    a('v_add_u32 v20, v20, v16')
    a('v_add_u32 v21, v21, v18')
    a('v_mbcnt_lo_u32_b32 v82, s68, 0')
    a('v_mbcnt_hi_u32_b32 v82, s69, v82')
    a('v_mbcnt_lo_u32_b32 v83, s70, 0')
    a('v_mbcnt_hi_u32_b32 v83, s71, v83')
    a('v_add_lshl_u32 v82, v82, s74, 1')
    a('v_add_lshl_u32 v83, v83, s75, 1')
    a('s_mov_b64 exec, s[68:69]')
    a(f'ds_write_b16 v82, v20 offset:{L_L2}')
    a('s_mov_b64 exec, s[70:71]')
    a(f'ds_write_b16 v83, v21 offset:{L_L2}')
    a('s_mov_b64 exec, 1')
    a('s_cmp_lg_u64 vcc, 0')
    a('s_cselect_b32 s73, -1, s73')
    a(f'v_mov_b32 v84, {L_TOT}')
    a('v_mov_b32 v85, s73')
    a('ds_write_b32 v84, v85')
    a('s_mov_b64 exec, -1')
    a.lab('B_lsd')
    a('s_waitcnt lgkmcnt(0)')
    stamp(a, 14)
    a('s_barrier')
    stamp(a, 3)
    stampc(a, 8)
    a('s_cmp_lg_u32 s85, -1')
    a('s_cbranch_scc0 B_nowu')
    a('s_mov_b32 s85, -1')
    a('s_cmp_lt_u32 s3, 12')
    a('s_cbranch_scc1 B_nowu')
    a('s_sub_u32 s51, s3, 12')
    a('s_lshl_b32 s51, s51, 11')
    a(f's_add_u32 m0, s51, {L_WU}')
    a('s_add_u32 s51, s51, 16384')
    a('buffer_load_dwordx4 v11, s[20:23], s51 offen lds')
    a('buffer_load_dwordx4 v11, s[20:23], s51 offen offset:1024 lds')
    a.lab('B_nowu')
    if DEBUG:
        for i_ in range(44, 60): a(f'v_writelane_b32 v65, 0, {i_}')
    RAW = 32; Q = 48; RCS = [56, 112]; IDX = 64; AGC = 66; AGN = 67; Z = 76; T = 16; T2 = 24; TMP = 108; NN = 120; DD = 4; EN = 111
    cnt = [0]
    def rd(st, off=0):
        a(f'ds_read_b128 {q4(RCS[st])}, v{EN} offset:{L_REC+off}')
        a(f'ds_read_b128 {q4(RCS[st]+4)}, v{EN} offset:{L_REC+off+16}')
    def ent8(sidx):
        a(f's_lshl_b32 s51, s{sidx}, 4')
        a(f'v_add_u32 v{TMP}, s51, v13')
        a(f'ds_read_u16 v{EN}, v{TMP} offset:{L_L8}')
    def ent4(sidx):
        a(f's_sub_u32 s79, s{sidx}, s74')
        a(f's_min_u32 s79, s79, 51')
        a(f's_lshl_b32 s51, s79, 4')
        a(f'v_add_u32 v{TMP}, s51, v13')
        a(f'ds_read_u16 v{EN}, v{TMP} offset:{L_L2}')
    def ent_any(sidx):
        n = cnt[0]; cnt[0] += 1
        a(f's_cmp_ge_u32 s{sidx}, s74')
        a(f's_cbranch_scc1 B_rrP{n}')
        ent8(sidx)
        a(f's_branch B_rrX{n}')
        a.lab(f'B_rrP{n}')
        ent4(sidx)
        a.lab(f'B_rrX{n}')
    def gather(st, k):
        a(f'v_mad_u32_u16 v{TMP+(k&1)}, v{RCS[st]+2*k+1}, s42, v2')
        a(f'buffer_load_dwordx4 {q4(RAW+4*k)}, v{TMP+(k&1)}, s[12:15], 0 offen')
    def qread(st):
        RC = RCS[st]
        a(f'v_mad_u32_u16 v{TMP+2}, v{RC+1}, 36, v2 op_sel:[1,0,0,0]')
        a(f'ds_read_b128 {q4(Q)}, v{TMP+2} offset:{L_Q}')
        a(f'ds_read_b128 {q4(Q+4)}, v{TMP+2} offset:{L_Q+128}')
        a(f'v_mad_u32_u16 v{AGN}, v{RC+1}, s84, v3 op_sel:[1,0,0,0]')
    def grab():
        a('s_mov_b64 exec, 1')
        a(f'ds_add_rtn_u32 v{IDX}, v14, v15')
        a('s_mov_b64 exec, -1')
    def cops(st):
        for k in range(4):
            for p in range(4):
                a(f'v_pk_fma_f32 {pr(Z+8*k+2*p)}, {pr(RCS[st]+2*k)}, {pr(68+2*p)}, {pr(Q+2*p)} op_sel_hi:[0,1,1]')
    def zadd(k, nst):
        R = RAW+4*k; Zk = Z+8*k
        a('s_waitcnt vmcnt(3)')
        for i in range(4):
            a(f'v_dot2_f32_bf16 v{Zk+4+i}, v{R+i}, s46, v{Zk+4+i}')
        a(f'v_pk_add_f32 {pr(Zk)}, {pr(R)}, {pr(Zk)}')
        a(f'v_pk_add_f32 {pr(Zk+2)}, {pr(R+2)}, {pr(Zk+2)}')
        gather(nst, k)
    def upd(k, first, nsrc):
        Zk = Z+8*k
        if first:
            for i in range(8): a(f'v_exp_f32 v{DD+i}, v{Zk+i}')
            for p in range(4): a(f'v_pk_add_f32 {pr(DD+2*p)}, {pr(DD+2*p)}, s[44:45]')
            return
        for i in range(8): a(f'v_exp_f32 v{T+i}, v{Zk+i}')
        for p in range(4): a(f'v_pk_fma_f32 {pr(Zk+2*p)}, {pr(Zk+2*p)}, {pr(DD+2*p)}, {pr(nsrc+2*p)}')
        for p in range(4): a(f'v_pk_fma_f32 {pr(NN+2*p)}, {pr(nsrc+2*p)}, {pr(T+2*p)}, {pr(Zk+2*p)}')
        for p in range(4): a(f'v_pk_fma_f32 {pr(DD+2*p)}, {pr(DD+2*p)}, {pr(T+2*p)}, {pr(DD+2*p)}')
    def updp(k, first):
        Zk = Z+8*k
        for i in range(8): a(f'v_exp_f32 v{T+i}, v{Zk+i}')
        for p in range(4): a(f'v_pk_add_f32 {pr(T+2*p)}, {pr(T+2*p)}, s[44:45]')
        for i in range(8): a(f'v_rcp_f32 v{T+i}, v{T+i}')
        for p in range(4):
            if first: a(f'v_pk_mul_f32 {pr(NN+2*p)}, {pr(Zk+2*p)}, {pr(T+2*p)}')
            else: a(f'v_pk_fma_f32 {pr(NN+2*p)}, {pr(Zk+2*p)}, {pr(T+2*p)}, {pr(NN+2*p)}')
    def flush(src):
        dd = [T, T+2, T+4, T+6, T2, T2+2, T2+4, T2+6]
        for i in range(8): a(f'v_cvt_f64_f32 {pr(dd[i])}, v{src+i}')
        for i in range(8): a(f'ds_add_f64 v{AGC}, {pr(dd[i])} offset:{64*i}')
    def finish(nsrc):
        for i in range(8): a(f'v_rcp_f32 v{DD+i}, v{DD+i}')
        for p in range(4): a(f'v_pk_mul_f32 {pr(DD+2*p)}, {pr(nsrc+2*p)}, {pr(DD+2*p)}')
        flush(DD)
    pc = [0]
    def prio(inc):
        if DEBUG:
            a('s_memrealtime s[92:93]')
            a('s_add_u32 m0, s83, 44')
            a('s_waitcnt lgkmcnt(0)')
            a('v_writelane_b32 v65, s92, m0')
        a(f's_add_u32 s83, s83, {inc}')
        if not PRIO: return
        n = pc[0]; pc[0] += 1
        a(f's_cmp_lt_u32 s83, {PT[0]}')
        a(f's_cbranch_scc1 B_pr{n}')
        a('s_setprio 2')
        a(f's_cmp_lt_u32 s83, {PT[1]}')
        a(f's_cbranch_scc1 B_pr{n}')
        a('s_setprio 1')
        a(f's_cmp_lt_u32 s83, {PT[2]}')
        a(f's_cbranch_scc1 B_pr{n}')
        a('s_setprio 0')
        a.lab(f'B_pr{n}')
    a(f'v_mov_b32 v24, {L_MAX}')
    a('ds_read_b128 v[16:19], v24')
    a('s_mov_b32 s76, s3')
    a('s_add_u32 s77, s3, 4')
    a('s_cmp_lt_u32 s3, 12')
    a('s_cselect_b32 s77, s3, s77')
    a('s_cbranch_scc1 B_e1')
    ent8(76)
    a('s_branch B_e2')
    a.lab('B_e1')
    a(f's_sub_u32 s51, s3, {EG0}')
    a(f's_cmp_lt_u32 s51, {8-EG0}')
    a('s_cbranch_scc1 B_e1b')
    egath()
    a.lab('B_e1b')
    qread(0)
    a.lab('B_e2')
    grab()
    a('s_mov_b32 s83, 0')
    if PRIO: a('s_setprio 3')
    a('s_waitcnt lgkmcnt(0)')
    a('s_cmp_lt_u32 s3, 12')
    a('s_cbranch_scc1 B_e3')
    rd(0); rd(1, 32)
    a.lab('B_e3')
    a('v_readfirstlane_b32 s70, v19')
    a('v_readfirstlane_b32 s74, v18')
    a('v_readfirstlane_b32 s71, v16')
    a('v_readfirstlane_b32 s91, v17')
    a('s_cmp_lg_u32 s70, -1')
    a('s_cbranch_scc1 B_capok')
    a('s_mov_b32 s87, 0')
    a('s_setprio 0')
    a('s_waitcnt vmcnt(0) lgkmcnt(0)')
    a('s_barrier')
    a('s_branch B_batch')
    a.lab('B_capok')
    a('s_or_b32 s90, s90, s91')
    if FORCE_PLAIN: a('s_mov_b32 s90, 1')
    a('s_add_u32 s74, s74, 7')
    a('s_lshr_b32 s74, s74, 3')
    a('s_and_b32 s72, s70, 0xff')
    a('s_add_u32 s72, s72, s74')
    a('s_bfe_u32 s73, s70, 0x80008')
    a('s_add_u32 s73, s73, s74')
    a('s_bfe_u32 s82, s70, 0x80010')
    a('s_add_u32 s82, s82, s74')
    a('s_lshr_b32 s75, s70, 24')
    a('s_add_u32 s75, s75, s74')
    a('s_cmp_lt_u32 s3, 12')
    a('s_cbranch_scc1 B_e4')
    a('s_cmp_ge_u32 s76, s75')
    a('s_cbranch_scc1 B_loop_end')
    a('s_cmp_ge_u32 s76, s74')
    a('s_cbranch_scc1 B_pre4')
    a('s_waitcnt lgkmcnt(0)')
    for k in range(4): gather(0, k)
    qread(0)
    a.lab('B_e4')
    ent_any(77)
    a('s_waitcnt lgkmcnt(0)')
    a('s_cmp_lg_u32 s90, 0')
    a('s_cbranch_scc1 B_loop8p')
    for mode in ('', 'p'):
        a.lab(f'B_loop8{mode}')
        a('s_waitcnt lgkmcnt(8)')
        a(f'v_mov_b32 v{AGC}, v{AGN}')
        a(f'v_readfirstlane_b32 s78, v{IDX}')
        cops(0)
        rd(0)
        a('s_add_u32 s78, s78, 20')
        for k in range(4):
            zadd(k, 1)
            if mode: updp(k, k == 0)
            else: upd(k, k == 0, Z if k == 1 else NN)
        cops(1)
        a('s_waitcnt lgkmcnt(0)')
        qread(0)
        a('s_cmp_ge_u32 s77, s74')
        a(f's_cbranch_scc1 B_tr8{mode}')
        rd(1, 32)
        ent_any(78)
        a(f's_branch B_tr8x{mode}')
        a.lab(f'B_tr8{mode}')
        ent4(78)
        a('s_waitcnt lgkmcnt(0)')
        rd(1)
        a.lab(f'B_tr8x{mode}')
        grab()
        for k in range(4):
            zadd(k, 0)
            if mode: updp(k, False)
            else: upd(k, False, NN)
        if mode: flush(NN)
        else: finish(NN)
        prio(2)
        a('s_mov_b32 s76, s77')
        a('s_mov_b32 s77, s78')
        a('s_cmp_lt_u32 s76, s74')
        a(f's_cbranch_scc1 B_loop8{mode}')
        a('s_cmp_lt_u32 s76, s75')
        a(f's_cbranch_scc1 B_loop0{mode}')
        a('s_branch B_loop_end')
    a.lab('B_pre4')
    a('s_waitcnt lgkmcnt(0)')
    ent4(76)
    a('s_waitcnt lgkmcnt(0)')
    rd(0)
    ent4(77)
    a('s_waitcnt lgkmcnt(0)')
    for k in range(4): gather(0, k)
    qread(0)
    rd(1)
    a('s_waitcnt lgkmcnt(0)')
    a('s_cmp_lg_u32 s90, 0')
    a('s_cbranch_scc1 B_loop0p')
    lim = [82, 73, 72]
    for mode in ('', 'p'):
        for st in range(2):
            L = f'{st}{mode}'
            a.lab(f'B_loop{L}')
            a('s_waitcnt lgkmcnt(8)')
            a(f'v_mov_b32 v{AGC}, v{AGN}')
            a(f'v_readfirstlane_b32 s78, v{IDX}')
            a('s_nop 0')
            a('s_add_u32 s78, s78, 20')
            ent4(78)
            cops(st)
            qread(1-st)
            a('s_waitcnt lgkmcnt(2)')
            rd(st)
            grab()
            for k in range(4):
                zadd(k, 1-st)
                if mode: updp(k, k == 0)
                else: upd(k, k == 0, Z if k == 1 else NN)
                if k < 3:
                    a(f's_cmp_ge_u32 s76, s{lim[k]}')
                    a(f's_cbranch_scc1 B_ex{k}_{L}')
            a.lab(f'B_fin_{L}')
            if mode: flush(NN)
            else: finish(NN)
            a.lab(f'B_nx_{L}')
            prio(1)
            a('s_mov_b32 s76, s77')
            a('s_mov_b32 s77, s78')
            a('s_cmp_ge_u32 s76, s75')
            a('s_cbranch_scc1 B_loop_end')
            if st == 1: a(f's_branch B_loop0{mode}')
        for st in range(2):
            L = f'{st}{mode}'
            for k in range(3):
                a.lab(f'B_ex{k}_{L}')
                for kk in range(k+1, 4): gather(1-st, kk)
                if k == 0 and not mode:
                    finish(Z)
                    a(f's_branch B_nx_{L}')
                else:
                    a(f's_branch B_fin_{L}')
    a.lab('B_loop_end')
    stamp(a, 4)
    a('s_waitcnt vmcnt(0) lgkmcnt(0)')
    a('v_lshlrev_b32 v11, 4, v1')
    a('v_and_b32 v8, 31, v1')
    a('v_add_u32 v8, s38, v8')
    a('v_lshrrev_b32 v9, 5, v1')
    a('s_cmp_ge_u32 s3, 8')
    a('s_cbranch_scc1 B_join')
    WX = [100, 104, 108, 4]
    a('s_add_u32 s39, s41, 8192')
    for ks in range(4):
        a(f'buffer_load_dwordx4 {q4(WX[ks])}, v11, s[20:23], s39 offen offset:{1024*ks}')
    a(f's_add_u32 s39, s41, {L_WU}')
    a('v_add_u32 v98, s39, v11')
    a('v_and_b32 v13, 7, v1')
    a('v_xor_b32 v13, v13, v9')
    a('v_lshlrev_b32 v14, 7, v8')
    a(f'v_add_u32 v14, {L_X}, v14')
    for ks in range(4):
        a(f'v_xor_b32 v15, {2*ks}, v13')
        a(f'v_lshl_add_u32 v{92+ks}, v15, 4, v14')
        a(f'ds_read_b128 {q4(16+4*ks)}, v{92+ks}')
    a('s_waitcnt vmcnt(0) lgkmcnt(0)')
    for ks in range(4):
        c = '0' if ks == 0 else 'v[112:127]'
        a(f'v_mfma_f32_32x32x16_bf16 v[112:127], {q4(WX[ks])}, {q4(16+4*ks)}, {c}')
    a.lab('B_join')
    a('v_lshrrev_b32 v12, 3, v0')
    a(f's_movk_i32 s51, {2*RS}')
    a('v_mul_u32_u24 v96, s51, v12')
    a('v_add_u32 v96, v96, v2')
    a(f'v_add_u32 v96, {L_AGG}, v96')
    a('v_and_b32 v97, 7, v12')
    a('v_lshlrev_b32 v97, 4, v97')
    a('v_xor_b32 v97, v97, v2')
    a('v_lshl_add_u32 v97, v12, 7, v97')
    a('s_setprio 0')
    a('s_waitcnt lgkmcnt(0)')
    a('s_barrier')
    stamp(a, 5)
    stampc(a, 40)
    a('s_cmp_eq_u32 s87, -1')
    a('s_cbranch_scc1 B_nb')
    a('s_add_u32 s87, s87, 1')
    a('s_cmp_lt_u32 s87, 128')
    a('s_cbranch_scc1 B_again')
    a('s_mov_b32 s87, -1')
    a.lab('B_nb')
    a('s_add_u32 s50, s50, 32')
    a('s_cmp_eq_u32 s71, 0')
    a('s_cbranch_scc1 B_fin')
    a.lab('B_again')
    a('s_waitcnt vmcnt(0)')
    a('v_lshrrev_b32 v4, 3, v0')
    a('v_lshlrev_b32 v12, 10, v4')
    a('buffer_load_dword v6, v12, s[4:7], s32 offen')
    a('buffer_load_dword v7, v12, s[4:7], s33 offen')
    a('s_branch B_batch')
    a.lab('B_fin')
    if DEBUG: a('v_mov_b32 v3, v65')
    a('s_cmp_ge_u32 s3, 13')
    a('s_cbranch_scc1 B_done2')
    for q in range(4):
        a(f'ds_read_b128 {q4(64+4*q)}, v96 offset:{128*q}')
    for q in range(4):
        a(f's_waitcnt lgkmcnt({3-q})')
        a(f'v_cvt_f32_f64 v{80+2*q}, {pr(64+4*q)}')
        a(f'v_cvt_f32_f64 v{81+2*q}, {pr(66+4*q)}')
    for q in range(4):
        a(f'v_pk_mul_f32 {pr(80+2*q)}, {pr(80+2*q)}, s[48:49]')
    for q in range(4):
        a(f'v_cvt_pk_bf16_f32 v{88+q}, v{80+2*q}, v{81+2*q}')
    a(f'ds_write_b128 v97, v[88:91] offset:{L_REC}')
    a('s_cmp_ge_u32 s3, 8')
    a('s_cbranch_scc1 B_b4')
    for ks in range(4):
        a(f'ds_read_b128 {q4(48+4*ks)}, v98 offset:{1024*ks}')
        a(f'v_add_u32 v{92+ks}, {L_REC-L_X}, v{92+ks}')
    a('s_waitcnt lgkmcnt(4)')
    a('s_branch B_b4x')
    a.lab('B_b4')
    a('s_waitcnt lgkmcnt(0)')
    a.lab('B_b4x')
    a('s_barrier')
    stamp(a, 11, 3)
    a('s_cmp_ge_u32 s3, 8')
    a('s_cbranch_scc1 B_b5')
    for ks in range(4):
        a(f'ds_read_b128 {q4(32+4*ks)}, v{92+ks}')
    a('s_movk_i32 s51, 272')
    a('v_mul_u32_u24 v17, s51, v8')
    a('v_lshl_add_u32 v17, v9, 6, v17')
    a('s_lshl_b32 s51, s34, 7')
    a(f's_add_u32 s51, s51, {L_AGG}')
    a('v_add_u32 v17, s51, v17')
    for ks in range(4):
        a(f's_waitcnt lgkmcnt({3-ks})')
        a(f'v_mfma_f32_32x32x16_bf16 v[112:127], {q4(48+4*ks)}, {q4(32+4*ks)}, v[112:127]')
    a('s_nop 11')
    for q in range(4):
        a(f'ds_write_b128 v17, {q4(112+4*q)} offset:{16*q}')
    a.lab('B_b5')
    a('s_movk_i32 s51, 272')
    a('v_mul_u32_u24 v18, s51, v12')
    a('v_lshl_add_u32 v18, v2, 1, v18')
    a(f'v_add_u32 v18, {L_AGG}, v18')
    a('v_lshlrev_b32 v19, 4, v0')
    a('s_lshl_b32 s51, s37, 7')
    a(f'v_cmp_gt_u32 vcc, {NB*8}, v0')
    a('s_mov_b32 s52, s47')
    a('s_mov_b32 s53, s47')
    a('s_waitcnt lgkmcnt(0)')
    a('s_barrier')
    stamp(a, 12, 3)
    a('ds_read_b128 v[32:35], v18')
    a('ds_read_b128 v[36:39], v18 offset:16')
    a('s_waitcnt lgkmcnt(0)')
    for r in range(0, 8, 2): a(f'v_pk_mul_f32 {pr(64+r)}, {pr(32+r)}, s[52:53]')
    for r in range(8): a(f'v_exp_f32 v{64+r}, v{64+r}')
    for r in range(0, 8, 2): a(f'v_pk_add_f32 {pr(64+r)}, {pr(64+r)}, s[44:45]')
    for r in range(8): a(f'v_rcp_f32 v{64+r}, v{64+r}')
    for r in range(0, 8, 2): a(f'v_pk_mul_f32 {pr(64+r)}, {pr(64+r)}, {pr(32+r)}')
    for r in range(0, 8, 2): a(f'v_cvt_pk_bf16_f32 v{40+r//2}, v{64+r}, v{65+r}')
    stamp(a, 13, 3)
    a('s_and_b64 exec, exec, vcc')
    a(f'buffer_store_dwordx4 v[40:43], v19, s[24:27], s51 offen {ST_O}')
    a.lab('B_done2')
    stamp_out(a, 1, 88, 3)
    a.lab('B_done')
    a('s_endpgm')

def kd(a, name, vgpr, sgpr):
    a.raw('.p2align 6')
    a.raw(f'.amdhsa_kernel {name}')
    a.raw(f'  .amdhsa_next_free_vgpr {vgpr}')
    a.raw(f'  .amdhsa_next_free_sgpr {sgpr}')
    a.raw(f'  .amdhsa_accum_offset {(vgpr+3)//4*4}')
    a.raw('  .amdhsa_group_segment_fixed_size 0')
    a.raw('  .amdhsa_kernarg_size 72')
    a.raw('  .amdhsa_user_sgpr_count 2')
    a.raw('  .amdhsa_user_sgpr_kernarg_segment_ptr 1')
    a.raw('  .amdhsa_system_sgpr_workgroup_id_x 1')
    a.raw('.end_amdhsa_kernel')

def main():
    ref = open('gather_scatter__mpnn_edge_mlp__graph.s.ref').read().splitlines()
    hdr = [l for l in ref if l.startswith(';') and '@launch' not in l and 'Override' not in l and 'grid=ceil' not in l]
    a = A()
    for l in hdr: a.raw(l)
    a.raw(f'; @launch kernel=mpnn_bin_kernel grid=({A_GRID},1,1) block=({A_BLOCK},1,1) lds={A_LDS}')
    a.raw(f'; @launch kernel=mpnn_main_kernel grid=({NBK},1,1) block=(1024,1,1) lds={B_LDS}')
    for l in """;
; Algorithm (two launches, generated by the author's own script):
;  launch 1 (mpnn_bin_kernel)
;    - 250 workgroups: counting-sort one chunk of 3200 edges by destination bucket (98 nodes) in LDS, write the
;      sorted records {e as f32, src | local_dst*8 << 16} and a (start,count) table to d_ws
;    - 250 workgroups: P' = -log2(e) * x @ w_msg[0:64] (MFMA), stored as bf16 pairs
;    - 4 workgroups: MFMA fragments of w_msg[64:128] / w_upd, scaled w_msg[128] row
;  launch 2 (mpnn_main_kernel), one workgroup per bucket
;    - gathers its records, groups them per node in LDS, Q' = -log2(e) * x_own @ w_msg[64:128] (MFMA)
;    - z' = P'[src] + Q'[dst] + e*w';  silu summed as sum z'/(1+2^z'); up to 8 edges of one node share one
;      reciprocal (exact algebra); a run-time range check (|z'| <= 15) falls back to one reciprocal per element
;    - per-node sums in f64 LDS atomics, then out = silu([x, agg] @ w_upd) (MFMA)
;    - any degree distribution is handled (extra batches / slot-by-slot mode)
""".strip('\n').splitlines(): a.raw(l)
    a.raw('.amdgcn_target "amdgcn-amd-amdhsa--gfx950"')
    a.raw('.text')
    kernel_a(a)
    kernel_b(a)
    a.raw('.section .rodata,"a"')
    kd(a, 'mpnn_bin_kernel', 128, 100)
    kd(a, 'mpnn_main_kernel', 128, 100)
    out = sys.argv[1] if len(sys.argv) > 1 else 'gather_scatter__mpnn_edge_mlp__graph.s'
    open(out, 'w').write('\n'.join(a.l) + '\n')

main()
```
